```python
import torch

def _softmax(x, axis=-1):
    return torch.softmax(x, dim=axis)
def _gelu(x):
    return torch.nn.functional.gelu(x, approximate="tanh")
def _silu(x):
    return torch.nn.functional.silu(x)
def _sigmoid(x):
    return torch.sigmoid(x)
def _layernorm(x, axis=-1, eps=1e-5):
    m = x.mean(dim=axis, keepdim=True)
    v = x.var(dim=axis, keepdim=True, unbiased=False)
    return (x - m) / torch.sqrt(v + eps)
def _scatter_add(tgt, idx, src, axis=0):
    return tgt.clone().index_add_(axis, idx, src)
def _segment_sum(src, seg, n):
    out = torch.zeros((n,) + src.shape[1:], dtype=src.dtype)
    return out.index_add_(0, seg, src)
def _pad(x, pw):
    flat = tuple(v for pair in reversed(pw) for v in pair)
    return torch.nn.functional.pad(x, flat)

kernel_name = 'recurrent_scan__gqa_block_cached__dense_activation_relu__prompt'

def setup_inputs():

    _w = (lambda a: (lambda t: t.to(torch.bfloat16) if t.is_floating_point() else t)(torch.as_tensor(a)))
    def _A_setup():
        B, Sq, D = 1, 2048, 640
        Hq, Hkv, Sk, Dh = 32, 32, 2048, 192
        assert Hq % Hkv == 0, (Hq, Hkv)
        return {
            "x": _w((lambda *s: torch.randn(*s, dtype=torch.bfloat16) * 0.05)(B, Sq, D)),
            "k_cache": _w((lambda *s: torch.randn(*s, dtype=torch.bfloat16) * 1.6)(B, Hkv, Sk, Dh)),
            "v_cache": _w((lambda *s: torch.randn(*s, dtype=torch.bfloat16) * 0.2)(B, Hkv, Sk, Dh)),
            "wq": _w((lambda *s: torch.randn(*s, dtype=torch.bfloat16) * 1.6)(D, Hq * Dh) * (D ** -0.5)),
            "wo": _w((lambda *s: torch.randn(*s, dtype=torch.bfloat16) * 0.2)(Hq * Dh, D) * ((Hq * Dh) ** -0.5)),
        }
    _A_in = _A_setup()

    def _B_setup():
        B, S, D, Dff = 1, 2048, 640, 1536
        return {
            "x": _w((lambda *s: torch.randn(*s, dtype=torch.bfloat16) * 0.05)(B, S, D)),
            "w1": _w((lambda *s: torch.randn(*s, dtype=torch.bfloat16) * 0.1)(D, Dff)),
            "w2": _w((lambda *s: torch.randn(*s, dtype=torch.bfloat16) * 0.1)(Dff, D)),
        }
    _B_in = _B_setup()

    return {
        "A_x": _A_in["x"],
        "A_k_cache": _A_in["k_cache"],
        "A_v_cache": _A_in["v_cache"],
        "A_wq": _A_in["wq"],
        "A_wo": _A_in["wo"],
        "B_x": _B_in["x"],
        "B_w1": _B_in["w1"],
        "B_w2": _B_in["w2"],
    }

def reference(A_x, A_k_cache, A_v_cache, A_wq, A_wo, B_x, B_w1, B_w2):
    def _A_ref(x, k_cache, v_cache, wq, wo):
        B, Sq, D = x.shape
        Hq, Dh = 32, 192
        Hkv = k_cache.shape[1]
        rep = Hq // Hkv
        q = (lambda x, *d: x.permute(*d))((x @ wq).reshape(B, Sq, Hq, Dh), 0, 2, 1, 3)
        k = (lambda x, n, axis: torch.repeat_interleave(x, n, dim=axis))(k_cache, rep, axis=1)
        v = (lambda x, n, axis: torch.repeat_interleave(x, n, dim=axis))(v_cache, rep, axis=1)
        scores = torch.einsum("bhqd,bhkd->bhqk", q, k) * (Dh ** -0.5)
        p = _softmax(scores, axis=-1)
        o = torch.einsum("bhqk,bhkd->bhqd", p, v)
        return (lambda x, *d: x.permute(*d))(o, 0, 2, 1, 3).reshape(B, Sq, Hq * Dh) @ wo

    def _B_ref(x, w1, w2):
        h = torch.einsum("bsd,df->bsf", x, w1)
        zero = torch.zeros_like(h)
        h = torch.maximum(h, zero)
        return torch.einsum("bsf,fd->bsd", h, w2)

    x = A_x
    xn = _layernorm(x, axis=-1)
    s = _A_ref(xn, A_k_cache, A_v_cache, A_wq, A_wo)
    g = _silu(_B_ref(xn, B_w1, B_w2))
    return x + s * g
```

```python
from dsl import *
import struct, math

WS_XF = 0
WS_WF = 0x300000
WS_OF = 0x1000000
XF_BLK = 81920
OF_BLK = 983040
WF_BLK = 1228800

def f2u(x): return struct.unpack("<I", struct.pack("<f", x))[0]
def hx(x): return f"0x{x & 0xffffffff:x}"

def kernel_head(name):
    return [".text", f".globl {name}", ".p2align 8", f".type {name},@function", f"{name}:"]

def kernel_desc(name, nv, acc, ns=102):
    return ['.section .rodata,"a"', ".p2align 6", f".amdhsa_kernel {name}",
            f"  .amdhsa_next_free_vgpr {nv}", f"  .amdhsa_next_free_sgpr {ns}", f"  .amdhsa_accum_offset {acc}",
            "  .amdhsa_group_segment_fixed_size 0", "  .amdhsa_kernarg_size 88", "  .amdhsa_user_sgpr_count 2",
            "  .amdhsa_user_sgpr_kernarg_segment_ptr 1", "  .amdhsa_system_sgpr_workgroup_id_x 1",
            "  .amdhsa_float_denorm_mode_32 3", ".end_amdhsa_kernel"]

def srd(d, base_lo, base_hi, size, off=None):
    L = []
    if off is None:
        L += [f"s_mov_b32 s{d}, s{base_lo}", f"s_mov_b32 s{d+1}, s{base_hi}"]
    else:
        o = hx(off) if isinstance(off, int) else off
        L += [f"s_add_u32 s{d}, s{base_lo}, {o}", f"s_addc_u32 s{d+1}, s{base_hi}, 0"]
    L += [f"s_mov_b32 s{d+2}, {hx(size) if isinstance(size,int) else size}", f"s_mov_b32 s{d+3}, 0x20000"]
    return L

def wave_id(sreg, vtmp="v1"):
    return [f"v_lshrrev_b32 {vtmp}, 6, v0", "s_nop 0", f"v_readfirstlane_b32 {sreg}, {vtmp}", "v_and_b32 v0, 63, v0", "s_nop 3"]
```

```python
import re

def v(i, n=1):
    return f"v{i}" if n == 1 else f"v[{i}:{i+n-1}]"
def a(i, n=1):
    return f"a{i}" if n == 1 else f"a[{i}:{i+n-1}]"
def s(i, n=1):
    return f"s{i}" if n == 1 else f"s[{i}:{i+n-1}]"

class R:
    def __init__(self, f, i): self.f, self.i = f, i
    def __call__(self, n=1, off=0):
        j = self.i + off
        return f"{self.f}{j}" if n == 1 else f"{self.f}[{j}:{j+n-1}]"
    def __add__(self, k): return R(self.f, self.i + k)

_reg = re.compile(r"^-?\|?([vas])(\d+)\|?$")
_rng = re.compile(r"^([vas])\[(\d+):(\d+)\]$")
def regs_of(op):
    op = op.strip()
    if op == "vcc": return [("s", "vcc")]
    if op == "exec": return [("s", "exec")]
    if op == "m0": return [("s", "m0")]
    m = _reg.match(op)
    if m: return [(m.group(1), int(m.group(2)))]
    m = _rng.match(op)
    if m: return [(m.group(1), k) for k in range(int(m.group(2)), int(m.group(3)) + 1)]
    return []

TRANS = ("v_exp_f32", "v_log_f32", "v_rcp_f32", "v_rsq_f32", "v_sqrt_f32", "v_sin_f32", "v_cos_f32")
class Ins:
    def __init__(self, text):
        self.text = text
        t = text.split(";")[0].strip()
        self.label = t.endswith(":")
        self.directive = t.startswith(".")
        self.mn = ""; self.dst = []; self.src = []; self.kind = "none"; self.states = 1
        if not t or self.label or self.directive:
            self.states = 0; return
        parts = t.split(None, 1)
        mn = self.mn = parts[0]
        rest = parts[1] if len(parts) > 1 else ""
        ops = [x.strip() for x in rest.split(",")] if rest else []
        mods = ""
        if ops:
            last = ops[-1].split(None, 1)
            ops[-1] = last[0]
            mods = last[1] if len(last) > 1 else ""
        self.ops, self.mods = ops, mods
        R_ = [regs_of(o) for o in ops]
        flat = lambda L: [x for l in L for x in l]
        if mn.startswith("v_mfma"):
            self.kind = "mfma"; self.dst = R_[0]; self.srcab = R_[1] + R_[2]; self.srcc = R_[3]; self.src = self.srcab + self.srcc
            self.passes = 4 if "16x16x32" in mn else 8
        elif mn.startswith("v_"):
            self.kind = "valu"
            if mn.startswith("v_permlane") or mn.startswith("v_swap"):
                self.dst = R_[0] + R_[1]; self.src = R_[0] + R_[1]
            elif mn.startswith(("v_fmac", "v_dot2c", "v_writelane")):
                self.dst = R_[0]; self.src = flat(R_)
            elif mn.startswith("v_cmp"):
                self.dst = R_[0]; self.src = flat(R_[1:])
            elif mn.startswith(("v_add_co", "v_addc_co", "v_sub_co")):
                self.dst = R_[0] + R_[1]; self.src = flat(R_[2:])
            else:
                self.dst = R_[0]; self.src = flat(R_[1:])
            self.trans = mn.replace("_e32", "").replace("_e64", "") in TRANS
            self.dpp = ("row_" in mods) or ("quad_perm" in mods)
            if self.dpp and "bound_ctrl" not in mods: self.src = self.src + []
        elif mn.startswith("ds_"):
            self.kind = "ds"
            if mn.startswith(("ds_read", "ds_bpermute", "ds_permute", "ds_swizzle")):
                self.dst = R_[0]; self.src = flat(R_[1:])
            else:
                self.src = flat(R_)
        elif mn.startswith(("buffer_", "global_")):
            self.kind = "vmem"
            self.lds = bool(re.search(r"\blds\b", mods))
            if mn.startswith(("buffer_wbl2", "buffer_inv")):
                pass
            elif "load" in mn and not self.lds:
                self.dst = R_[0]; self.src = flat(R_[1:])
            elif "atomic" in mn and "sc0" in mods.split():
                self.dst = R_[0]; self.src = flat(R_)
            else:
                self.src = flat(R_)
                if self.lds: self.src = self.src + [("s", "m0")]
            self.store = ("store" in mn) or ("atomic" in mn)
            self.wide = mn.endswith(("x3", "x4"))
            self.data = R_[0] if self.store else []
        elif mn.startswith("s_"):
            self.kind = "salu"
            if mn == "s_nop": self.states = int(ops[0], 0) + 1; self.kind = "nop"
            elif mn == "s_waitcnt": self.kind = "wait"; self.wait = dict((k, int(x)) for k, x in re.findall(r"(vmcnt|lgkmcnt|expcnt)\((\d+)\)", rest))
            elif mn.startswith(("s_load", "s_memtime", "s_memrealtime", "s_getreg")):
                self.kind = "smem" if not mn.startswith("s_getreg") else "salu"; self.dst = R_[0]; self.src = flat(R_[1:])
            elif mn.startswith(("s_cmp", "s_bitcmp", "s_cbranch", "s_branch", "s_barrier", "s_endpgm", "s_setprio", "s_sleep", "s_setpc")):
                self.src = flat(R_)
                if "vcc" in mn: self.src = [("s", "vcc")]
            else:
                self.dst = R_[0]; self.src = flat(R_[1:])
        else:
            raise ValueError("unknown instruction " + text)

def check(lines, name="", verbose=True):
    ins = [Ins(l) for l in lines]
    ins = [i for i in ins if i.states > 0]
    errs = []
    pos = 0
    lastw = {}
    lastc = {}
    lastst = {}
    lg = []; vm = []
    pend_l = {}; pend_v = {}
    def dist(p): return pos - p - 1 + 0
    for I in ins:
        def need(reg, n, why):
            errs.append(f"[{name}] {why}: need {n} states on {reg}: `{W.text}` -> `{I.text}` (have {d})")
        for r in set(I.src):
            if r in pend_l: errs.append(f"[{name}] read of {r} before lgkm wait: `{I.text}` (load `{pend_l[r].text}`)")
            if r in pend_v: errs.append(f"[{name}] read of {r} before vm wait: `{I.text}` (load `{pend_v[r].text}`)")
            if r not in lastw: continue
            p, W = lastw[r]; d = pos - p
            if W.kind == "valu" and r[0] in "va":
                if I.kind == "mfma" and d < 2: need(r, 2, "VALU->MFMA")
                if I.kind == "valu":
                    if W.trans and not I.trans and d < 1: need(r, 1, "trans->VALU")
                    if I.mn.startswith("v_permlane") and d < 2: need(r, 2, "VALU->permlane")
                    if I.dpp and d < 2: need(r, 2, "VALU->DPP")
                    if I.mn.startswith(("v_readfirstlane", "v_readlane")) and d < 1: need(r, 1, "VALU->readlane")
            if W.kind == "valu" and r[0] == "s":
                if I.kind == "valu" and d < 2: need(r, 2, "VALU sgpr->VALU")
                if I.kind == "vmem" and d < 5: need(r, 5, "VALU sgpr->VMEM")
            if W.kind == "salu" and r == ("s", "m0") and I.kind == "vmem" and d < 1: need(r, 1, "M0->DMA")
            if W.kind == "mfma":
                n = {4: 8, 8: 12}[W.passes]
                if I.kind == "mfma":
                    if r in I.srcab and d < n: need(r, n, "MFMA D->srcAB")
                    elif r in I.srcc:
                        if I.srcc == W.dst and I.passes == W.passes: pass
                        elif d < n - 2: need(r, n - 2, "MFMA D->srcC overlap")
                elif d < n: need(r, n, "MFMA D->read")
        for r in set(I.dst):
            if r in pend_l and I.kind != "ds": errs.append(f"[{name}] write of {r} while DS load pending: `{I.text}`")
            if r in pend_v and I.kind != "vmem": errs.append(f"[{name}] write of {r} while VM load pending: `{I.text}`")
            if r in lastw:
                p, W = lastw[r]; d = pos - p
                if W.kind == "mfma" and I.kind in ("valu", "ds", "vmem"):
                    n = {4: 8, 8: 12}[W.passes]
                    if d < n: need(r, n, "MFMA D->write")
                if W.kind == "mfma" and I.kind == "mfma" and not (I.srcc == W.dst):
                    n = {4: 6, 8: 10}[W.passes]
                    if d < n: need(r, n, "MFMA D->MFMA D (WAW)")
            if r in lastc and I.kind == "valu":
                p, W = lastc[r]; d = pos - p; n = {4: 3, 8: 7}[W.passes]
                if d < n: need(r, n, "MFMA srcC->VALU write")
            if r in lastst:
                p, W = lastst[r]; d = pos - p; n = 2 if I.kind == "valu" else 1
                if d < n: need(r, n, "wide store data WAR")
        pos += I.states
        for r in I.dst: lastw[r] = (pos, I)
        if I.kind == "mfma":
            for r in I.srcc: lastc[r] = (pos, I)
        if I.kind == "vmem" and I.store and I.wide:
            for r in I.data: lastst[r] = (pos, I)
        if I.kind in ("ds", "smem"):
            lg.append(I)
            for r in I.dst: pend_l[r] = I
        if I.kind == "vmem" and not I.mn.startswith(("buffer_wbl2", "buffer_inv")):
            vm.append(I)
            if len(vm) > 63: errs.append(f"[{name}] more than 63 vm ops outstanding at `{I.text}`")
            for r in I.dst: pend_v[r] = I
        if I.kind == "wait":
            if "lgkmcnt" in I.wait:
                n = I.wait["lgkmcnt"]
                if n > 0 and any(x.kind == "smem" for x in lg): errs.append(f"[{name}] counted lgkm wait with SMEM outstanding")
                while len(lg) > n:
                    x = lg.pop(0)
                    for r in x.dst:
                        if pend_l.get(r) is x: del pend_l[r]
            if "vmcnt" in I.wait:
                n = I.wait["vmcnt"]
                while len(vm) > n:
                    x = vm.pop(0)
                    for r in x.dst:
                        if pend_v.get(r) is x: del pend_v[r]
    if verbose:
        seen = set()
        for e in errs:
            if e not in seen:
                if len(seen) < 12: print("HAZARD", e)
                seen.add(e)
        if len(seen) > 12: print("HAZARD ...", len(seen), "in total")
    return errs
```

```python
from common import *
NAME = "prep_kernel"
def gen():
    L = kernel_head(NAME)
    T = []
    def e(*x):
        for y in x:
            if isinstance(y, list): L.extend(y)
            else: L.append(y)
    e("s_cmp_ge_u32 s2, 256", "s_cbranch_scc1 K1_END")
    e("s_load_dwordx2 s[4:5], s[0:1], 0", "s_load_dwordx2 s[6:7], s[0:1], 32", "s_load_dwordx2 s[8:9], s[0:1], 56", "s_load_dwordx2 s[10:11], s[0:1], 80")
    e(wave_id("s33"))
    e("v_lshrrev_b32 v2, 4, v0",
      "v_and_b32 v3, 15, v0")
    e("s_waitcnt lgkmcnt(0)")
    e("s_cmp_ge_u32 s33, 2", "s_cbranch_scc1 K1_NOLN1")
    e("s_lshl_b32 s34, s2, 3", "s_lshl_b32 s35, s33, 2", "s_add_u32 s34, s34, s35", "s_mul_i32 s34, s34, 1280")
    e(srd(12, 4, 5, 5120, "s34"))
    e("v_mul_u32_u24 v4, 1280, v2", "v_lshl_add_u32 v4, v3, 4, v4")
    for m in range(5):
        e(f"buffer_load_dwordx4 {v(16+4*m,4)}, v4, s[12:15], 0 offen offset:{256*m}")
    e("K1_NOLN1:")
    e("s_cmp_lt_u32 s2, 192", "s_cselect_b32 s16, s6, s8", "s_cselect_b32 s17, s7, s9", "s_cselect_b32 s34, 0, 192",
      "s_sub_u32 s34, s2, s34", "s_mul_i32 s34, s34, 40960",
      "s_add_u32 s16, s16, s34", "s_addc_u32 s17, s17, 0",
      "s_cmp_lt_u32 s2, 240", "s_cselect_b32 s18, 40960, 0", "s_mov_b32 s19, 0x20000")
    e("s_mul_i32 s35, s33, 640", "v_add_u32 v5, s35, v0", "s_mul_i32 s36, s33, 10240", "s_mov_b32 s37, 52429")
    for t in range(10):
        e(f"v_add_u32 v6, {64*t}, v5",
          "v_mul_u32_u24 v7, s37, v6", "v_lshrrev_b32 v7, 22, v7",
          "v_mul_u32_u24 v8, 80, v7", "v_sub_u32 v8, v6, v8",
          "v_and_b32 v9, 7, v7", "v_lshlrev_b32 v9, 1, v9", "v_xor_b32 v8, v8, v9",
          "v_mul_u32_u24 v7, 1280, v7", "v_lshl_add_u32 v7, v8, 4, v7",
          f"s_add_u32 m0, s36, {1024*t}", "s_nop 0",
          "buffer_load_dwordx4 v7, s[16:19], 0 offen lds")
    e("s_cmp_ge_u32 s33, 2", "s_cbranch_scc1 K1_NOLN2")
    X = 40
    e("s_waitcnt vmcnt(10)")
    for i in range(20):
        e(f"v_lshlrev_b32 v{X+2*i}, 16, v{16+i}", f"v_and_b32 v{X+2*i+1}, 0xffff0000, v{16+i}")
    def reduce16(r, t):
        o = []
        for sh in (8, 4, 2, 1):
            o += ["s_nop 1", f"v_add_f32_dpp {r}, {r}, {r} row_ror:{sh} row_mask:0xf bank_mask:0xf"]
        return o
    e(f"v_add_f32 v10, v{X}, v{X+1}", f"v_add_f32 v11, v{X+2}, v{X+3}")
    for i in range(4, 40, 2):
        e(f"v_add_f32 v10, v10, v{X+i}", f"v_add_f32 v11, v11, v{X+i+1}")
    e("v_add_f32 v10, v10, v11")
    e(reduce16("v10", "v11"))
    e(f"s_mov_b32 s38, {hx(f2u(1.0/640))}", "v_mul_f32 v10, s38, v10")
    e("v_mov_b32 v11, 0", "v_mov_b32 v12, 0")
    for i in range(0, 40, 2):
        e(f"v_sub_f32 v13, v{X+i}, v10", f"v_sub_f32 v14, v{X+i+1}, v10", "v_fmac_f32 v11, v13, v13", "v_fmac_f32 v12, v14, v14")
    e("v_add_f32 v11, v11, v12")
    e(reduce16("v11", "v12"))
    e("v_mul_f32 v11, s38, v11")
    e("v_cvt_pk_bf16_f32 v10, v10, v11", "v_and_b32 v11, 0xffff0000, v10", "v_lshlrev_b32 v10, 16, v10")
    e(f"v_add_f32 v11, {hx(f2u(1e-5))}, v11", "v_cvt_pk_bf16_f32 v11, v11, v11", "v_lshlrev_b32 v11, 16, v11",
      "v_sqrt_f32 v11, v11", "s_nop 0", "v_cvt_pk_bf16_f32 v11, v11, v11", "v_lshlrev_b32 v11, 16, v11",
      "v_rcp_f32 v11, v11", "s_nop 0")
    for i in range(20):
        a0, a1 = X+2*i, X+2*i+1
        e(f"v_sub_f32 v{a0}, v{a0}, v10", f"v_sub_f32 v{a1}, v{a1}, v10", f"v_cvt_pk_bf16_f32 v13, v{a0}, v{a1}",
          f"v_lshlrev_b32 v{a0}, 16, v13", f"v_and_b32 v{a1}, 0xffff0000, v13",
          f"v_mul_f32 v{a0}, v{a0}, v11", f"v_mul_f32 v{a1}, v{a1}, v11", f"v_cvt_pk_bf16_f32 v{16+i}, v{a0}, v{a1}")
    e("s_lshr_b32 s34, s2, 3", f"s_mul_i32 s34, s34, {XF_BLK}",
      "s_and_b32 s35, s2, 7", "s_lshr_b32 s35, s35, 1", "s_lshl_b32 s35, s35, 10",
      "s_and_b32 s38, s2, 1", "s_lshl_b32 s38, s38, 7", "s_lshl_b32 s39, s33, 6", "s_add_u32 s38, s38, s39",
      "s_add_u32 s35, s35, s38", "s_add_u32 s34, s34, s35")
    if WS_XF: e(f"s_add_u32 s34, s34, {hx(WS_XF)}")
    e(f"s_sub_u32 s35, {XF_BLK}, s35")
    e(srd(20, 10, 11, "s35", "s34"))
    e("v_lshrrev_b32 v4, 2, v3", "v_lshlrev_b32 v4, 12, v4", "v_and_b32 v13, 3, v0", "v_lshl_add_u32 v4, v13, 8, v4", "v_lshl_add_u32 v4, v2, 4, v4")
    for m in range(5):
        e(f"s_mov_b32 s38, {16384*m}", f"buffer_store_dwordx4 {v(16+4*m,4)}, v4, s[20:23], s38 offen")
    e("s_waitcnt vmcnt(5)", "s_branch K1_SYNC")
    e("K1_NOLN2:", "s_waitcnt vmcnt(0)", "K1_SYNC:", "s_barrier")
    e("s_mul_i32 s34, s2, 5120", f"s_add_u32 s38, s34, {hx(WS_WF)}", f"s_sub_u32 s35, {8*WF_BLK}, s34",
      "s_cmp_lt_u32 s2, 240", "s_cselect_b32 s35, s35, 0", f"s_cselect_b32 s38, s38, {hx(WS_WF)}")
    e(srd(24, 10, 11, "s35", "s38"))
    e(f"s_mul_i32 s40, s33, {2*WF_BLK}", f"s_add_u32 s41, s40, {WF_BLK}", "s_add_u32 s42, s40, 4096", "s_add_u32 s43, s41, 4096")
    e("v_lshrrev_b32 v4, 2, v0",
      "v_mul_u32_u24 v5, 1280, v4", "v_and_b32 v6, 3, v0", "v_lshl_add_u32 v5, v6, 3, v5",
      "v_and_b32 v4, 7, v4", "v_lshlrev_b32 v4, 5, v4",
      "v_lshlrev_b32 v6, 4, v0", "s_mul_i32 s44, s33, 320")
    for t in range(10):
        e(f"s_add_u32 s45, s44, {32*t}", "v_xor_b32 v7, s45, v4", "v_add_u32 v7, v7, v5",
          f"ds_read_b64_tr_b16 {v(80+4*t,2)}, v7", f"ds_read_b64_tr_b16 {v(82+4*t,2)}, v7 offset:20480")
    for t in range(10):
        nt = t % 5
        so = (40 + (t >= 5)) if nt < 4 else (42 + (t >= 5))
        e(f"s_waitcnt lgkmcnt({min(15, 2*(9-t))})", f"buffer_store_dwordx4 {v(80+4*t,4)}, v6, s[24:27], s{so} offen offset:{(nt%4)*1024}")
    e("K1_END:", "s_endpgm")
    tr = []
    skip = False
    for l in L:
        if l == "K1_NOLN2:": skip = True
        if l == "K1_SYNC:": skip = False
        if not skip: tr.append(l)
    check(tr, "k1")
    return L, kernel_desc(NAME, 128, 128), f"; @launch kernel={NAME} grid=(256,1,1) block=(256,1,1) lds=40960"
if __name__ == "__main__":
    L, D, H = gen(); print(len(L))
```

```python
from common import *
NAME = "attn_kernel"
KR, VR, WR = 0, 49152, 98304
CSCALE = math.log2(math.e) / math.sqrt(192.0)
THR = 2.0 ** 30
sK_SRD, sV_SRD, sWQ_SRD, sW1_SRD, sXF_SRD, sOF_SRD = 12, 16, 20, 24, 28, 32
sWAVE, sHEAD, sM64 = 36, 37, 38
sKo, sVo = 39, 63
sMK, sMV, sMW = 40, 44, 48
sWq, sW1, sX, sCNT = 52, 53, 54, 55
sC, sTHR, sH, sO = 56, 58, 59, 62
sRET = 64
sTMP = 66
QV, NM, S0, S1, P, KF, VF, ET, T_, L_ = 16, 48, 64, 96, 112, 144, 168, 192, 200, 204
AK, AV, DK, DV, CK, LX = 208, 210, 214, 217, 220, 221
AW, AH, DW, DH, AF = 222, 226, 229, 232, 192
def srdn(b): return f"s[{b}:{b+3}]"
def Qf(f): return a(192 + 4*f, 4) if f < 16 else v(QV + 4*(f-16), 4)
def Oacc(dt, qt): return (dt*4 + qt)*4
def qacc(ds, tb, qt):
    n = (ds*2 + tb)*4 + qt
    return R("a", 4*n) if n < 24 else R("v", 48 + 4*(n-24))
def hacc(tt, qt): return R("v", 144 + 4*(tt*4 + qt))
def BF(buf, qt): return a(96 + 16*buf + 4*qt, 4)
MF = "v_mfma_f32_16x16x32_bf16"

def setup():
    L = []
    e = lambda *x: [L.extend(y) if isinstance(y, list) else L.append(y) for y in x]
    e("s_load_dwordx4 s[4:7], s[0:1], 8", "s_load_dwordx2 s[8:9], s[0:1], 24", "s_load_dwordx2 s[10:11], s[0:1], 48",
      "s_load_dwordx2 s[68:69], s[0:1], 80")
    e(wave_id(f"s{sWAVE}"))
    e("s_and_b32 s66, s2, 7", "s_lshl_b32 s66, s66, 2", "s_lshr_b32 s67, s2, 3", "s_and_b32 s67, s67, 3", f"s_add_u32 s{sHEAD}, s66, s67",
      "s_lshr_b32 s66, s2, 5", "s_lshl_b32 s66, s66, 2", f"s_add_u32 s{sM64}, s66, s{sWAVE}")
    e("s_waitcnt lgkmcnt(0)")
    e(f"s_mul_i32 s66, s{sM64}, {XF_BLK}")
    if WS_XF: e(f"s_add_u32 s66, s66, {hx(WS_XF)}")
    e(srd(sXF_SRD, 68, 69, XF_BLK, "s66"))
    e(f"s_mul_i32 s66, s{sHEAD}, 384", "s_sub_u32 s67, 7864320, s66"); e(srd(sWQ_SRD, 8, 9, "s67", "s66"))
    e(f"s_mul_i32 s66, s{sHEAD}, 96", "s_sub_u32 s67, 1969152, s66", "s_sub_u32 s10, s10, 3072", "s_subb_u32 s11, s11, 0")
    e(srd(sW1_SRD, 10, 11, "s67", "s66"))
    e(f"v_lshlrev_b32 v{LX}, 4, v0")
    e("v_lshrrev_b32 v1, 3, v0", "v_and_b32 v2, 7, v0",
      f"s_lshl_b32 s66, s{sWAVE}, 3",
      f"s_and_b32 s67, s{sWAVE}, 1", "s_lshl_b32 s67, s67, 2",
      f"s_mul_i32 s70, s{sWAVE}, 3072", f"s_lshl_b32 s71, s{sWAVE}, 2", "s_mov_b32 s72, 12288")
    for t in range(3):
        e(f"v_add_u32 v3, {8*t}, v1", "v_mul_u32_u24 v4, 171, v3", "v_lshrrev_b32 v4, 9, v4",
          "v_mul_u32_u24 v5, 3, v4", "v_sub_u32 v5, v3, v5",
          "v_and_b32 v6, 2, v4", "v_or_b32 v6, s67, v6", "v_xor_b32 v6, v2, v6",
          "v_add_u32 v7, s66, v4", "v_mul_lo_u32 v7, v7, s72", "v_lshl_add_u32 v7, v5, 7, v7", "v_lshl_add_u32 v7, v6, 4, v7",
          f"v_subrev_u32 v{DW+t}, {1024*t}, v7")
        e("v_lshrrev_b32 v5, 1, v4", "v_add_u32 v6, s71, v5", "v_and_b32 v6, 7, v6", "v_xor_b32 v6, v2, v6",
          "v_lshlrev_b32 v7, 7, v1", "v_add_u32 v7, s70, v7", f"v_lshl_add_u32 v{DK+t}, v6, 4, v7",
          "v_and_b32 v5, 3, v5", "v_lshlrev_b32 v5, 1, v5", "v_xor_b32 v5, v2, v5", f"v_lshl_add_u32 v{DV+t}, v5, 4, v7")
    e("v_and_b32 v6, 2, v1", "v_or_b32 v6, s67, v6", "v_xor_b32 v6, v2, v6",
      "v_add_u32 v7, s66, v1", "v_mul_u32_u24 v7, 3072, v7", "v_lshl_add_u32 v7, v6, 4, v7",
      "v_cmp_gt_u32 vcc, 6, v6", "v_bfrev_b32 v8, 1", "s_nop 0", f"v_cndmask_b32 v{DH}, v8, v7, vcc")
    e(f"s_lshl_b32 s66, s{sWAVE}, 12")
    for i in range(4): e(f"s_add_u32 s{sMW+i}, s66, {WR + 16384*i}")
    for i in range(4): e(f"s_add_u32 s{sMK+i}, s70, {KR + 12288*i}", f"s_add_u32 s{sMV+i}, s70, {VR + 12288*i}")
    e(f"s_mov_b32 s{sWq}, 0", f"s_mov_b32 s{sW1}, 0", f"s_mov_b32 s{sX}, 0")
    return L

def ldB(buf): return [f"buffer_load_dwordx4 {BF(buf,qt)}, v{LX}, {srdn(sXF_SRD)}, s{sX} offen offset:{1024*qt}" for qt in range(4)]
def dmaW(): return [f"buffer_load_dwordx4 v{DW+t}, {srdn(sWQ_SRD)}, s{sWq} offen offset:{1024*t} lds" for t in range(3)] + \
                   [f"buffer_load_dwordx4 v{DH}, {srdn(sW1_SRD)}, s{sW1} offen offset:3072 lds"]
advW = [f"s_add_u32 s{sWq}, s{sWq}, 393216", f"s_add_u32 s{sW1}, s{sW1}, 98304"]
advX = [f"s_add_u32 s{sX}, s{sX}, 4096"]
def dmaK(t): return f"buffer_load_dwordx4 v{DK+t}, {srdn(sK_SRD)}, s{sKo} offen offset:{1024*t} lds"
def dmaV(t): return f"buffer_load_dwordx4 v{DV+t}, {srdn(sV_SRD)}, s{sVo} offen offset:{1024*t} lds"

def setup2():
    L = []
    e = lambda *x: [L.extend(y) if isinstance(y, list) else L.append(y) for y in x]
    for k in range(3):
        e(ldB(k), advX, f"s_mov_b32 m0, s{sMW+k}", "s_nop 0", dmaW(), advW)
    e(f"s_mul_i32 s66, s{sHEAD}, 786432"); e(srd(sK_SRD, 4, 5, 786432, "s66")); e(srd(sV_SRD, 6, 7, 786432, "s66"))
    e(f"s_mul_i32 s66, s{sM64}, {OF_BLK}", f"s_add_u32 s66, s66, {hx(WS_OF)}"); e(srd(sOF_SRD, 68, 69, OF_BLK, "s66"))
    e(f"s_mov_b32 s{sC}, {hx(f2u(CSCALE))}", f"s_mov_b32 s{sC+1}, {hx(f2u(CSCALE))}", f"s_mov_b32 s{sTHR}, {hx(f2u(THR))}")
    e(f"s_mul_i32 s{sO}, s{sHEAD}, 24576")
    for tt in range(3):
        e(f"s_mul_i32 s66, s{sHEAD}, 3", f"s_add_u32 s66, s66, {tt}", "s_and_b32 s67, s66, 1", "s_lshl_b32 s67, s67, 3",
          "s_lshr_b32 s66, s66, 1", "s_add_u32 s66, s66, 192", "s_lshl_b32 s66, s66, 12", f"s_add_u32 s{sH+tt}, s66, s67")
    e("v_lshrrev_b32 v1, 4, v0", "v_lshrrev_b32 v2, 2, v0", "v_and_b32 v2, 3, v2", "v_and_b32 v3, 3, v0",
      "v_and_b32 v4, 2, v2", "v_and_b32 v5, 1, v1", "v_lshl_or_b32 v4, v5, 2, v4",
      "v_lshlrev_b32 v5, 12, v1", f"v_add_u32 v5, {WR}, v5",
      "v_mul_u32_u24 v6, 384, v2", "v_add_u32 v6, v5, v6", "v_lshrrev_b32 v7, 1, v3")
    for b in range(2):
        for tb in range(2):
            e(f"v_or_b32 v8, {4*b}, v3", "v_xor_b32 v8, v8, v4", "v_lshl_add_u32 v8, v8, 4, v6",
              f"v_xor_b32 v9, {tb}, v7", f"v_lshl_add_u32 v{AW+2*b+tb}, v9, 3, v8")
    e("v_lshl_add_u32 v6, v2, 7, v5", "v_add_u32 v6, 3072, v6", "v_lshl_add_u32 v6, v3, 3, v6")
    for tt in range(3):
        e(f"v_xor_b32 v8, {2*tt}, v4", f"v_lshl_add_u32 v{AH+tt}, v8, 4, v6")
    e("v_lshrrev_b32 v5, 2, v0", "v_mul_u32_u24 v6, 384, v5", f"v_add_u32 v6, {VR}, v6", "v_lshl_add_u32 v6, v3, 3, v6",
      "v_lshrrev_b32 v5, 1, v5", "v_and_b32 v5, 3, v5", "v_lshlrev_b32 v5, 1, v5")
    for sg in range(4):
        e(f"v_xor_b32 v8, {2*sg}, v5", f"v_lshl_add_u32 v{AV+sg}, v8, 4, v6")
    e("v_and_b32 v2, 15, v0", "v_mul_u32_u24 v6, 384, v2", "v_lshrrev_b32 v2, 1, v2", "v_xor_b32 v2, v2, v1")
    if KR: e(f"v_add_u32 v6, {KR}, v6")
    e(f"v_lshl_add_u32 v{AK}, v2, 4, v6", "v_xor_b32 v2, 4, v2", f"v_lshl_add_u32 v{AK+1}, v2, 4, v6")
    for i in range(96): e(f"v_accvgpr_write_b32 a{i}, 0")
    for i in range(48, 192): e(f"v_mov_b32 v{i}, 0")
    return L

def rdA(ks, T, u):
    n = 15*ks + T
    dst = v(AF + 4*(n % 4) + 2*u, 2)
    sl = (ks % 4) * 16384
    if T < 12:
        ds, tb = T >> 1, T & 1
        return f"ds_read_b64_tr_b16 {dst}, v{AW + 2*(ds&1) + tb} offset:{sl + u*1536 + (ds>>1)*128}"
    return f"ds_read_b64_tr_b16 {dst}, v{AH + T-12} offset:{sl + u*512}"

def qstep(ks, last=20, extra=None, vmw=12, barrier=True):
    extra = extra or {}
    L = []
    for T in range(15):
        for qt in range(4):
            gi = 4*T + qt
            n = 15*ks + T
            acc = (qacc(T >> 1, T & 1, qt) if T < 12 else hacc(T-12, qt))(4)
            L.append(f"{MF} {acc}, {v(AF + 4*(n%4), 4)}, {BF(ks%4, qt)}, {acc}")
            ks2, T2 = ks + (T+3)//15, (T+3) % 15
            if qt < 2:
                if ks2 < last: L.append(rdA(ks2, T2, qt))
                if qt == 1:
                    nleft = 15*last - 1 - n
                    if nleft >= 1: L.append(f"s_waitcnt lgkmcnt({2*min(2, nleft-1)})")
            pre = ks + 3 < last
            if pre:
                if gi in (6, 7, 10, 11): L.append(ldB((ks+3) % 4)[(6, 7, 10, 11).index(gi)])
                if gi == 14: L += advX
                if gi == 46: L.append(f"s_mov_b32 m0, s{sMW + (ks+3)%4}")
                if gi in (50, 51, 54, 55): L.append(dmaW()[(50, 51, 54, 55).index(gi)])
                if gi in (58, 59): L.append(advW[gi-58])
            if gi == 47 and barrier: L += [f"s_waitcnt vmcnt({vmw})", "s_barrier"]
            L += extra.get(gi, [])
    return L

def convert():
    L = []
    e = lambda *x: [L.extend(y) if isinstance(y, list) else L.append(y) for y in x]
    e("s_nop 7")
    k = 0
    for tt in range(3):
        for qt in range(4):
            h = hacc(tt, qt); d = 2 + 2*(k % 6); k += 1
            e(f"v_cvt_pk_bf16_f32 v{d}, {h(1,0)}, {h(1,1)}", f"v_cvt_pk_bf16_f32 v{d+1}, {h(1,2)}, {h(1,3)}",
              f"v_pk_max_i16 v{d}, v{d}, 0", f"v_pk_max_i16 v{d+1}, v{d+1}, 0",
              f"buffer_store_dwordx2 {v(d,2)}, v{LX}, {srdn(sOF_SRD)}, s{sH+tt} offen offset:{1024*qt}")
    for ds in (3, 4, 5, 0, 1, 2):
        dsts = []
        for qt in range(4):
            f = ds*4 + qt
            X, Y = qacc(ds, 0, qt), qacc(ds, 1, qt)
            if X.f == "a":
                tx, ty = R("v", 144 + 8*qt), R("v", 148 + 8*qt)
                for r in range(4): e(f"v_accvgpr_read_b32 {tx(1,r)}, {X(1,r)}")
                for r in range(4): e(f"v_accvgpr_read_b32 {ty(1,r)}, {Y(1,r)}")
                X, Y = tx, ty
            d = QV + 4*(f-16) if f >= 16 else 176 + 4*qt
            dsts.append(d)
            for Z in (X, Y):
                for r in (0, 2): e(f"v_pk_mul_f32 {Z(2,r)}, {Z(2,r)}, s[{sC}:{sC+1}]")
            e(f"v_cvt_pk_bf16_f32 v{d}, {X(1,0)}, {X(1,1)}", f"v_cvt_pk_bf16_f32 v{d+1}, {X(1,2)}, {X(1,3)}",
              f"v_cvt_pk_bf16_f32 v{d+2}, {Y(1,0)}, {Y(1,1)}", f"v_cvt_pk_bf16_f32 v{d+3}, {Y(1,2)}, {Y(1,3)}")
        e("s_mov_b32 exec_lo, 0")
        for d in dsts: e(f"v_swap_b32 v{d}, v{d+2}", f"v_swap_b32 v{d+1}, v{d+3}")
        e("s_mov_b32 exec_lo, -1")
        if ds < 4:
            for qt in range(4):
                for r in range(4): e(f"v_accvgpr_write_b32 a{192 + 4*(ds*4+qt) + r}, v{dsts[qt]+r}")
    return L

def rdK(slot, kt, ds, dst=KF): return f"ds_read_b128 {v(dst+4*ds,4)}, v{AK+(ds&1)} offset:{slot*12288 + kt*6144 + (ds>>1)*128}"
def rdV(slot, dt, u, dst=VF): return f"ds_read_b64_tr_b16 {v(dst+4*(dt%6)+2*u,2)}, v{AV+(dt&3)} offset:{slot*12288 + u*6144 + (dt>>2)*128}"
def qk(dst, src=KF, czero=False):
    o = []
    for qt in range(4):
        for ds in range(6):
            d = v(dst+4*qt, 4)
            c = ("0" if czero else v(NM+4*qt, 4)) if ds == 0 else d
            o.append(f"{MF} {d}, {v(src+4*ds,4)}, {Qf(ds*4+qt)}, {c}")
    return o
def pv(h, Pb, czero=False, src=VF):
    o = []
    for dt in range(6):
        for qt in range(4):
            acc = a(Oacc(h*6+dt, qt), 4)
            o.append(f"{MF} {acc}, {v(src+4*dt,4)}, {v(Pb+4*qt,4)}, {'0' if czero else acc}")
    return o
def sm(src, qts, Pb, kt):
    E, Sx = [], []
    k = 0
    for qt in qts:
        for pr in range(2):
            t0 = ET + 2*k; t1 = t0 + 1; k += 1
            E += [f"v_exp_f32 v{t0}, v{src+4*qt+2*pr}", f"v_exp_f32 v{t1}, v{src+4*qt+2*pr+1}"]
            n = len(E)
            if kt == 0 and pr == 0: Sx.append((n, f"v_add_f32 v{T_+qt}, v{t0}, v{t1}"))
            else: Sx += [(n-1, f"v_add_f32 v{T_+qt}, v{T_+qt}, v{t0}"), (n, f"v_add_f32 v{T_+qt}, v{T_+qt}, v{t1}")]
            Sx.append((n, f"v_cvt_pk_bf16_f32 v{Pb+4*qt+2*kt+pr}, v{t0}, v{t1}"))
    return E, Sx
def quarter(mf, pat, E, Sx, D, B, salu):
    assert len(pat) == len(mf) == 24, (pat, len(pat))
    out = []; ei = si = di = bi = 0
    for gi, m in enumerate(mf):
        out.append(m); ty = pat[gi]
        sc = salu.get(gi, [])
        def take(n):
            nonlocal si
            r = []
            while n > 0 and si < len(Sx) and Sx[si][0] <= ei: r.append(Sx[si][1]); si += 1; n -= 1
            return r
        if ty == "e": out += sc + [E[ei]]; ei += 1
        elif ty == "d": out += [D[di]] + take(1) + sc; di += 1
        elif ty == "a": out += sc + take(2)
        elif ty == "1": out += sc + take(1)
        elif ty == "b": out += sc + [B[bi]]; bi += 1
        elif ty == "-": out += sc
        else: raise ValueError(ty)
    assert ei == len(E) and si == len(Sx) and di == len(D) and bi == len(B), (pat, ei, len(E), si, len(Sx), di, len(D), bi, len(B))
    return out
P1 = "ee" + "de"*6 + "d"*6 + "a1b-"
P2 = "de"*6 + "ee" + "baabaa" + "----"
P3 = "ed"*8 + "dddd" + "b---"
P4 = "ebeb" + "de"*6 + "aaa" + "-----"
CHK = [f"v_max3_f32 v{CK}, v{T_}, v{T_+1}, v{T_+2}", f"v_max_f32 v{CK}, v{CK}, v{T_+3}", f"v_cmp_lt_f32 vcc, s{sTHR}, v{CK}"]
LADD = [f"v_add_f32 v{L_+q}, v{L_+q}, v{T_+q}" for q in range(4)]
sites = []
def callsite(par):
    k = len(sites); sites.append(par)
    return [f"s_cbranch_vccnz K2_TR{k}", f"K2_BK{k}:"]

def step(i, first=False, vmw=12, tail=()):
    par, slot = i & 1, i % 4
    S0n = S0 + 16*(1-par); Pc = P + 16*par; Pn = P + 16*(1-par)
    L = []
    E, Sx = sm(S1, [2, 3], Pc, 1)
    L += quarter(qk(S0n), P1, E, Sx + [(8, x) for x in CHK], [rdV(slot, dt, u) for dt in range(6) for u in range(2)], [dmaK(2)],
                 {23: ["s_waitcnt lgkmcnt(6)"]})
    L += callsite(par)
    E, Sx = sm(S0n, [0, 1], Pn, 0)
    L += quarter(pv(0, Pc, first), P2, E, [(0, x) for x in LADD] + Sx, [rdK((slot+1) % 4, 1, ds) for ds in range(6)], [dmaV(0), dmaV(1)],
                 {11: ["s_waitcnt lgkmcnt(6)"], 13: [f"s_mov_b32 m0, s{sMV + (slot+3)%4}"], 23: ["s_waitcnt lgkmcnt(0)"],
                  21: [f"s_add_u32 s{sKo}, s{sKo}, 12288"]})
    E, Sx = sm(S0n, [2, 3], Pn, 0)
    L += quarter(qk(S1), P3, E, Sx, [rdV(slot, 6+dt, u) for dt in range(6) for u in range(2)], [dmaV(2)],
                 {21: [f"s_add_u32 s{sVo}, s{sVo}, 12288"], 23: [f"s_waitcnt vmcnt({vmw}) lgkmcnt(0)", "s_barrier"]})
    E, Sx = sm(S1, [0, 1], Pn, 1)
    sal = {0: [f"s_mov_b32 m0, s{sMK + (slot+1)%4}"], 22: ["s_waitcnt lgkmcnt(0)"]}
    tail = list(tail)
    if tail:
        sal[19] = tail[:1]; sal[20] = tail[1:2]; sal[23] = tail[2:]
    L += quarter(pv(1, Pc, first), P4, E, Sx, [rdK((slot+2) % 4, 0, ds) for ds in range(6)], [dmaK(0), dmaK(1)], sal)
    return L

def rowmax(dst, srcs, tmp):
    L = []
    for qt in range(4):
        r = srcs(qt); d = dst + qt
        L += [f"v_max3_f32 v{d}, v{r[0]}, v{r[1]}, v{r[2]}", f"v_max3_f32 v{d}, v{d}, v{r[3]}, v{r[4]}",
              f"v_max3_f32 v{d}, v{d}, v{r[5]}, v{r[6]}", f"v_max_f32 v{d}, v{d}, v{r[7]}"]
    return L + xlane("v_max_f32", dst, tmp)
def xlane(op, dst, tmp):
    L = []
    for sw in ("v_permlane16_swap_b32", "v_permlane32_swap_b32"):
        L += [f"v_mov_b32 v{tmp+qt}, v{dst+qt}" for qt in range(4)] + ["s_nop 1"]
        L += [f"{sw} v{dst+qt}, v{tmp+qt}" for qt in range(4)]
        L += [f"{op} v{dst+qt}, v{dst+qt}, v{tmp+qt}" for qt in range(4)]
    return L

def init():
    L = []
    e = lambda *x: [L.extend(y) if isinstance(y, list) else L.append(y) for y in x]
    e("s_waitcnt vmcnt(30)", "s_barrier")
    for ds in range(6): e(rdK(0, 0, ds))
    for ds in range(6): e(rdK(0, 1, ds, VF))
    e(f"s_mov_b32 s{sKo}, {4*12288}", f"s_mov_b32 s{sVo}, {3*12288}")
    for q in range(4): e(f"v_mov_b32 v{L_+q}, 0")
    e("s_waitcnt lgkmcnt(6)", qk(S0, KF, True), "s_waitcnt vmcnt(24) lgkmcnt(0)", "s_barrier")
    m = qk(S1, VF, True)
    rd = [rdK(1, 0, ds) for ds in range(6)]
    for i, x in enumerate(m):
        e(x)
        if i < 6: e(rd[i])
        if i == 7: e(f"s_mov_b32 m0, s{sMK}")
        if i in (8, 10): e(dmaK((i-8)//2))
    e("s_nop 7")
    D, TM = 2, 6
    e(rowmax(D, lambda qt: [S0+4*qt+r for r in range(4)] + [S1+4*qt+r for r in range(4)], TM))
    for qt in range(4): e(f"v_ceil_f32 v{D+qt}, v{D+qt}")
    for qt in range(4):
        for r in range(4):
            e(f"v_sub_f32 v{NM+4*qt+r}, 0, v{D+qt}", f"v_sub_f32 v{S0+4*qt+r}, v{S0+4*qt+r}, v{D+qt}", f"v_sub_f32 v{S1+4*qt+r}, v{S1+4*qt+r}, v{D+qt}")
    for src, qts, kt in ((S0, [0, 1], 0), (S0, [2, 3], 0), (S1, [0, 1], 1)):
        E, Sx = sm(src, qts, P, kt)
        e(E, [x for _, x in Sx])
    e("s_waitcnt lgkmcnt(0)")
    return L

def slow(par):
    S0c = S0 + 16*par; S0n = S0 + 16*(1-par); Pc = P + 16*par
    L = [f"K2_SLOW{par}:", "s_nop 7", "s_nop 7"]
    e = lambda *x: [L.extend(y) if isinstance(y, list) else L.append(y) for y in x]
    D, TM = 2, 6
    e(rowmax(D, lambda qt: [S0c+4*qt+r for r in range(4)] + [S1+4*qt+r for r in range(4)], TM))
    for qt in range(4): e(f"v_max_f32 v{D+qt}, 0, v{D+qt}", f"v_ceil_f32 v{D+qt}, v{D+qt}", f"v_sub_f32 v{TM+qt}, 0, v{D+qt}", f"v_cvt_i32_f32 v{TM+qt}, v{TM+qt}")
    for qt in range(4):
        e(f"v_ldexp_f32 v{L_+qt}, v{L_+qt}, v{TM+qt}")
        for base in (NM, S0c, S1, S0n):
            for r in range(4): e(f"v_sub_f32 v{base+4*qt+r}, v{base+4*qt+r}, v{D+qt}")
    for dt in range(12):
        for qt in range(4):
            b = Oacc(dt, qt)
            for r in range(4): e(f"v_accvgpr_read_b32 v{10+r}, a{b+r}")
            for r in range(4): e(f"v_ldexp_f32 v{10+r}, v{10+r}, v{TM+qt}")
            for r in range(4): e(f"v_accvgpr_write_b32 a{b+r}, v{10+r}")
    for src, qts, kt in ((S0c, [0, 1], 0), (S0c, [2, 3], 0), (S1, [0, 1], 1), (S1, [2, 3], 1)):
        E, Sx = sm(src, qts, Pc, kt)
        e(E, [x for _, x in Sx])
    e("s_nop 1", f"s_setpc_b64 s[{sRET}:{sRET+1}]")
    return L

def laststep(i=63):
    par, slot = i & 1, i % 4
    Pc = P + 16*par
    L = []
    e = lambda *x: [L.extend(y) if isinstance(y, list) else L.append(y) for y in x]
    for dt in range(6):
        for u in range(2): e(rdV(slot, dt, u))
    E, Sx = sm(S1, [2, 3], Pc, 1)
    e(E)
    for dt in range(6):
        for u in range(2): e(rdV(slot, 6+dt, u, KF))
    e([x for _, x in Sx], CHK, "s_waitcnt lgkmcnt(12)", callsite(par), LADD, "s_nop 0")
    m = pv(0, Pc)
    e(m[:20], "s_waitcnt lgkmcnt(0)", m[20:])
    m = pv(1, Pc, src=KF)
    X = xlane("v_add_f32", L_, 2)
    for k, x in enumerate(m):
        e(x)
        if X: e(X.pop(0))
        if X and k % 2: e(X.pop(0))
    e(X)
    RI = 8
    for qt in range(4): e(f"v_rcp_f32 v{RI+2*qt}, v{L_+qt}")
    e("s_nop 7")
    k = 0
    for j in range(6):
        e(f"s_add_u32 s{sTMP}, s{sO}, {4096*j}")
        for qt in range(4):
            t = 64 + 8*(k % 4); d = 112 + 4*(k % 6); k += 1
            for hh in range(2):
                b = Oacc(2*j+hh, qt)
                for r in range(4): e(f"v_accvgpr_read_b32 v{t+4*hh+r}, a{b+r}")
            for r in range(0, 8, 2): e(f"v_pk_mul_f32 {v(t+r,2)}, {v(t+r,2)}, {v(RI+2*qt,2)} op_sel_hi:[1,0]")
            for r in range(4): e(f"v_cvt_pk_bf16_f32 v{d+r}, v{t+2*r}, v{t+2*r+1}")
            e(f"buffer_store_dwordx4 {v(d,4)}, v{LX}, {srdn(sOF_SRD)}, s{sTMP} offen offset:{1024*qt}")
    return L

def gen():
    sites.clear()
    L = kernel_head(NAME)
    e = lambda *x: [L.extend(y) if isinstance(y, list) else L.append(y) for y in x]
    e("s_cmp_ge_u32 s2, 256", "s_cbranch_scc1 K2_END")
    pro = setup() + setup2() + ["s_waitcnt vmcnt(16)", "s_barrier"] + [rdA(0, T, u) for T in range(3) for u in range(2)] + \
          [f"s_mov_b32 s{sCNT}, 0", "s_waitcnt lgkmcnt(4)"]
    qloop = []
    for k in range(4): qloop += qstep(k)
    qctl = [f"s_add_u32 s{sCNT}, s{sCNT}, 1", f"s_cmp_lt_u32 s{sCNT}, 4", "s_cbranch_scc1 K2_QL"]
    groups = [("K", 0), ("K", 1), ("V", 0), ("K", 2), ("V", 1), ("K", 3), ("V", 2)]
    ex = {17: {}, 18: {}, 19: {}}
    slots = [(17, 2), (17, 18), (17, 50), (18, 2), (18, 18), (18, 50), (19, 2)]
    nkv = 0
    before = {}
    for (kind, j), (ks, g0) in zip(groups, slots):
        so = sKo if kind == "K" else sVo
        ex[ks].setdefault(g0, []).extend([f"s_mov_b32 m0, s{(sMK if kind=='K' else sMV) + j}", f"s_mov_b32 s{so}, {12288*j}"])
        for t, dg in enumerate((1, 4, 5)):
            ex[ks].setdefault(g0 + dg, []).append(dmaK(t) if kind == "K" else dmaV(t))
        if g0 < 47: before[ks] = before.get(ks, 0) + 3
    n17 = before[17]; n18 = 9 + before[18]
    qtail = qstep(16) + qstep(17, extra=ex[17], vmw=8 + n17) + qstep(18, extra=ex[18], vmw=n18) + qstep(19, extra=ex[19], barrier=False)
    conv = convert(); ini = init()
    s0 = step(0, first=True, vmw=24)
    ctl_mid = [f"s_add_u32 s{sCNT}, s{sCNT}, 1", f"s_cmp_eq_u32 s{sCNT}, 20", "s_cbranch_scc1 K2_LAST"]
    ctl_end = ["s_nop 0", "s_nop 0", "s_branch K2_AL"]
    body = [step(1), step(2, tail=ctl_mid), step(3), step(4, tail=ctl_end)]
    last = laststep()
    e(pro, ".p2align 6", "K2_QL:", qloop, qctl, qtail, conv, ini, s0, ".p2align 6", "K2_AL:", *body, "K2_LAST:", last, "K2_END:", "s_endpgm")
    for k, par in enumerate(sites):
        e(f"K2_TR{k}:", f"s_call_b64 s[{sRET}:{sRET+1}], K2_SLOW{par}", f"s_branch K2_BK{k}")
    e(slow(0), slow(1))
    flat = lambda X: [y for x in X for y in x]
    tr = pro + qloop + qctl + qloop + qctl + qtail + conv + ini + s0 + flat(body) + flat(body[:2]) + last
    check(tr, "k2")
    for par in range(2):
        b = body[1] if par == 0 else body[0]
        idx = [i for i, x in enumerate(b) if x.startswith("K2_BK")][0]
        prev = body[0] if par == 0 else body[3]
        check(prev + b[:idx] + slow(par) + b[idx:] + (body[2] if par == 0 else body[1]), f"k2slow{par}")
    return L, kernel_desc(NAME, 512, 256), f"; @launch kernel={NAME} grid=(256,1,1) block=(256,1,1) lds=163840"
if __name__ == "__main__":
    L, D_, H = gen(); print(len(L))
```

```python
from common import *
NAME = "outproj_kernel"
D = 6
def gen(mapping=0):
    L = kernel_head(NAME)
    def e(*x):
        for y in x:
            if isinstance(y, list): L.extend(y)
            else: L.append(y)
    e("s_cmp_ge_u32 s2, 256", "s_cbranch_scc1 K3_END")
    e("s_load_dwordx2 s[4:5], s[0:1], 0", "s_load_dwordx2 s[6:7], s[0:1], 64", "s_load_dwordx2 s[10:11], s[0:1], 80")
    e(wave_id("s33"))
    e("s_and_b32 s34, s2, 7", "s_lshr_b32 s35, s2, 3")
    if mapping == 0:
        e("s_and_b32 s36, s35, 3", "s_lshl_b32 s37, s34, 2", "s_add_u32 s36, s36, s37", "s_lshr_b32 s37, s35, 2")
    else:
        e("s_and_b32 s36, s35, 7", "s_lshr_b32 s37, s34, 1", "s_lshl_b32 s37, s37, 3", "s_add_u32 s36, s36, s37",
          "s_and_b32 s37, s34, 1", "s_lshl_b32 s37, s37, 2", "s_lshr_b32 s38, s35, 3", "s_add_u32 s37, s37, s38")
    e("v_lshlrev_b32 v1, 4, v0", "v_add_u32 v2, 4096, v1")
    e("s_waitcnt lgkmcnt(0)")
    e(f"s_mul_i32 s38, s36, {OF_BLK}", f"s_add_u32 s38, s38, {hx(WS_OF)}")
    e(srd(12, 10, 11, OF_BLK, "s38"))
    e(f"s_mul_i32 s38, s37, {WF_BLK}", f"s_add_u32 s38, s38, {hx(WS_WF)}")
    e(srd(16, 10, 11, WF_BLK, "s38"))
    e("s_mul_i32 s42, s33, 48", "s_lshl_b32 s40, s42, 12", "s_mul_i32 s41, s42, 5120")
    e("s_mul_i32 s42, s33, 12", "s_add_u32 s42, s42, 192", "s_lshl_b32 s43, s42, 12", "s_mul_i32 s44, s42, 5120")
    def A(j, nt): return 16 + 36*j + 4*nt
    def B(j, qt): return 16 + 36*j + 20 + 4*qt
    def ldA(j, nt): return f"buffer_load_dwordx4 {v(A(j,nt),4)}, v{1 if nt<4 else 2}, s[16:19], s41 offen offset:{(nt%4)*1024}"
    def ldB(j, qt): return f"buffer_load_dwordx4 {v(B(j,qt),4)}, v1, s[12:15], s40 offen offset:{qt*1024}"
    adv = ["s_add_u32 s40, s40, 4096", "s_add_u32 s41, s41, 5120"]
    for j in range(D):
        for nt in range(5): e(ldA(j, nt))
        for qt in range(4): e(ldB(j, qt))
        e(adv)
    e("s_lshl_b32 s38, s36, 6", "s_lshl_b32 s39, s33, 4", "s_add_u32 s38, s38, s39", "s_mul_i32 s38, s38, 1280",
      "s_mul_i32 s39, s37, 160", "s_add_u32 s38, s38, s39")
    e("s_sub_u32 s39, 2621440, s38")
    e(srd(20, 4, 5, "s39", "s38")); e(srd(24, 6, 7, "s39", "s38"))
    e("v_and_b32 v3, 15, v0", "v_mul_u32_u24 v3, 1280, v3", "v_lshrrev_b32 v4, 4, v0", "v_lshl_add_u32 v3, v4, 3, v3")
    for nt in range(5):
        e(f"buffer_load_dwordx2 {v(232+2*nt,2)}, v3, s[20:23], 0 offen offset:{32*nt}")
    for i in range(160): e(f"v_accvgpr_write_b32 a{i}, 0")
    def body(accbase, first_extra=0):
        o = []
        for j in range(D):
            o.append(f"s_waitcnt vmcnt({9*(D-1) + (first_extra if False else 0)})")
            for nt in range(5):
                for qt in range(4):
                    acc = a(accbase + (nt*4+qt)*4, 4)
                    o.append(f"v_mfma_f32_16x16x32_bf16 {acc}, {v(A(j,nt),4)}, {v(B(j,qt),4)}, {acc}")
                o.append(ldA(j, nt))
            for qt in range(4): o.append(ldB(j, qt))
            o += adv
        return o
    pre = list(L)
    bs = body(0); bg = body(80)
    sw_s = ["s_cmp_eq_u32 s45, 6", "s_cselect_b32 s40, s43, s40", "s_cselect_b32 s41, s44, s41"]
    e("s_mov_b32 s45, 0", ".p2align 6", "K3_LS:")
    ctl_s = sw_s + ["s_add_u32 s45, s45, 1", "s_cmp_lt_u32 s45, 8", "s_cbranch_scc1 K3_LS"]
    e(bs, ctl_s)
    sw_g = ["s_cmp_eq_u32 s45, 8", "s_cselect_b32 s40, 0x10000000, s40", "s_cselect_b32 s41, 0x10000000, s41"]
    ctl_g = sw_g + ["s_add_u32 s45, s45, 1", "s_cmp_lt_u32 s45, 10", "s_cbranch_scc1 K3_LG"]
    e("K3_LG:", bg, ctl_g)
    post0 = len(L)
    e("s_mul_i32 s38, s33, 40960", "v_add_u32 v4, s38, v1", "s_nop 4")
    for i in range(40):
        e(f"ds_write_b128 v4, {a(4*i,4)} offset:{1024*i}")
    e("s_waitcnt lgkmcnt(0)", "s_barrier")
    e("s_lshl_b32 s38, s33, 10", "v_add_u32 v4, s38, v1", "v_add_u32 v5, 40960, v4", "v_add_u32 v6, 40960, v5", "v_add_u32 v7, 40960, v6")
    e("s_waitcnt vmcnt(0)")
    for i in range(10):
        for src in range(4):
            e(f"ds_read_b128 {v(16+16*i+4*src,4)}, v{4+src} offset:{i*4096}")
    e("s_waitcnt lgkmcnt(0)")
    for i in range(10):
        b = 16 + 16*i
        for r in range(4):
            e(f"v_add_f32 v{b+r}, v{b+r}, v{b+4+r}", f"v_add_f32 v{b+8+r}, v{b+8+r}, v{b+12+r}")
        for r in range(4):
            e(f"v_add_f32 v{b+r}, v{b+r}, v{b+8+r}")
    e(f"s_mov_b32 s38, {hx(f2u(-math.log2(math.e)))}")
    for nt in range(5):
        S = 16 + 16*nt; G = 16 + 16*(5+nt); X = 232 + 2*nt
        t = S + 4
        e(f"v_cvt_pk_bf16_f32 v{t}, v{S}, v{S+1}", f"v_cvt_pk_bf16_f32 v{t+1}, v{S+2}, v{S+3}",
          f"v_cvt_pk_bf16_f32 v{t+2}, v{G}, v{G+1}", f"v_cvt_pk_bf16_f32 v{t+3}, v{G+2}, v{G+3}")
        for k in range(2):
            e(f"v_lshlrev_b32 v{S+2*k}, 16, v{t+k}", f"v_and_b32 v{S+2*k+1}, 0xffff0000, v{t+k}",
              f"v_lshlrev_b32 v{G+2*k}, 16, v{t+2+k}", f"v_and_b32 v{G+2*k+1}, 0xffff0000, v{t+2+k}")
        for r in range(4): e(f"v_mul_f32 v{t+4+r}, s38, v{G+r}")
        for r in range(4): e(f"v_exp_f32 v{t+4+r}, v{t+4+r}")
        for r in range(4): e(f"v_add_f32 v{t+4+r}, 1.0, v{t+4+r}")
        for r in range(4): e(f"v_rcp_f32 v{t+4+r}, v{t+4+r}")
        for r in range(4): e(f"v_mul_f32 v{G+r}, v{G+r}, v{t+4+r}")
        e(f"v_cvt_pk_bf16_f32 v{t+2}, v{G}, v{G+1}", f"v_cvt_pk_bf16_f32 v{t+3}, v{G+2}, v{G+3}")
        for k in range(2):
            e(f"v_lshlrev_b32 v{G+2*k}, 16, v{t+2+k}", f"v_and_b32 v{G+2*k+1}, 0xffff0000, v{t+2+k}")
        for r in range(4): e(f"v_mul_f32 v{S+r}, v{S+r}, v{G+r}")
        e(f"v_cvt_pk_bf16_f32 v{t}, v{S}, v{S+1}", f"v_cvt_pk_bf16_f32 v{t+1}, v{S+2}, v{S+3}")
        for k in range(2):
            e(f"v_lshlrev_b32 v{S+2*k}, 16, v{t+k}", f"v_and_b32 v{S+2*k+1}, 0xffff0000, v{t+k}",
              f"v_lshlrev_b32 v{G+2*k}, 16, v{X+k}", f"v_and_b32 v{G+2*k+1}, 0xffff0000, v{X+k}")
        for r in range(4): e(f"v_add_f32 v{S+r}, v{S+r}, v{G+r}")
        e(f"v_cvt_pk_bf16_f32 v{t}, v{S}, v{S+1}", f"v_cvt_pk_bf16_f32 v{t+1}, v{S+2}, v{S+3}")
        e(f"buffer_store_dwordx2 {v(t,2)}, v3, s[24:27], 0 offen offset:{32*nt}")
    e("K3_END:", "s_endpgm")
    tr = pre + bs + ctl_s + bs + ctl_s + bg + ctl_g + bg + ctl_g + L[post0:]
    check(tr, "k3")
    return L, kernel_desc(NAME, 416, 256), f"; @launch kernel={NAME} grid=(256,1,1) block=(256,1,1) lds=163840"
if __name__ == "__main__":
    L, D_, H = gen(); print(len(L))
```

```python
import sys, k1, k2, k3
HDR = open("recurrent_scan__gqa_block_cached__dense_activation_relu__prompt.s.ref").read().split("; Override launch")[0]
def build(path, **kw):
    parts = [k1.gen(), k2.gen(**kw.get("k2", {})), k3.gen(**kw.get("k3", {}))]
    out = HDR + "\n".join(p[2] for p in parts) + "\n" + '.amdgcn_target "amdgcn-amd-amdhsa--gfx950"\n'
    for L, D, H in parts: out += "\n".join(L) + "\n"
    for L, D, H in parts: out += "\n".join(D) + "\n"
    open(path, "w").write(out)
if __name__ == "__main__":
    build(sys.argv[1] if len(sys.argv) > 1 else "recurrent_scan__gqa_block_cached__dense_activation_relu__prompt.s")
```

```python
from dsl import *
import struct, math

WS_XF = 0
WS_WF = 0x300000
WS_OF = 0x1000000
WS_PB = 0x5000000
WS_FL = 0x2f0000
WF160 = 240 * 10240
XF_BLK = 81920
OF_BLK = 983040
WF_BLK = 1228800

def f2u(x): return struct.unpack("<I", struct.pack("<f", x))[0]
def hx(x): return f"0x{x & 0xffffffff:x}"

def kernel_head(name):
    return [".text", f".globl {name}", ".p2align 8", f".type {name},@function", f"{name}:"]

def kernel_desc(name, nv, acc, ns=102):
    return ['.section .rodata,"a"', ".p2align 6", f".amdhsa_kernel {name}",
            f"  .amdhsa_next_free_vgpr {nv}", f"  .amdhsa_next_free_sgpr {ns}", f"  .amdhsa_accum_offset {acc}",
            "  .amdhsa_group_segment_fixed_size 0", "  .amdhsa_kernarg_size 88", "  .amdhsa_user_sgpr_count 2",
            "  .amdhsa_user_sgpr_kernarg_segment_ptr 1", "  .amdhsa_system_sgpr_workgroup_id_x 1",
            "  .amdhsa_float_denorm_mode_32 3", ".end_amdhsa_kernel"]

def srd(d, base_lo, base_hi, size, off=None):
    L = []
    if off is None:
        L += [f"s_mov_b32 s{d}, s{base_lo}", f"s_mov_b32 s{d+1}, s{base_hi}"]
    else:
        o = hx(off) if isinstance(off, int) else off
        L += [f"s_add_u32 s{d}, s{base_lo}, {o}", f"s_addc_u32 s{d+1}, s{base_hi}, 0"]
    L += [f"s_mov_b32 s{d+2}, {hx(size) if isinstance(size,int) else size}", f"s_mov_b32 s{d+3}, 0x20000"]
    return L

def wave_id(sreg, vtmp="v1"):
    return [f"v_lshrrev_b32 {vtmp}, 6, v0", "s_nop 0", f"v_readfirstlane_b32 {sreg}, {vtmp}", "v_and_b32 v0, 63, v0", "s_nop 3"]

WS_TS = 0x4000000
OPT = {"ts": False}
def fstamp(i, mode="front"):
    if OPT.get("mode") != mode: return []
    return ["s_memrealtime s[86:87]", "s_waitcnt lgkmcnt(0)", f"s_mov_b32 s{88+i}, s86"]
def stamp(i):
    if not OPT["ts"] or (OPT.get("mode") and i not in (0, 13)): return []
    return ["s_memrealtime s[86:87]", "s_waitcnt lgkmcnt(0)", f"s_mov_b32 s{88+i}, s86"]
def cstamp(i):
    if not OPT["ts"] or OPT.get("mode"): return []
    return ["s_memtime s[86:87]", "s_waitcnt lgkmcnt(0)", f"s_mov_b32 s{88+i}, s86"]
def stamp_flush(kidx, n, wslo, wave, tmp=12):
    if not OPT["ts"]: return []
    L = ["s_waitcnt vmcnt(0) lgkmcnt(0)"] + stamp(n) + [
         f"s_cmp_lg_u32 {wave}, 0", f"s_cbranch_scc1 TS_SKIP{kidx}",
         f"s_add_u32 s86, s2, {kidx*256}", "s_lshl_b32 s86, s86, 6", f"s_add_u32 s86, s86, {hx(WS_TS)}",
         f"s_add_u32 s{tmp}, s{wslo}, s86", f"s_addc_u32 s{tmp+1}, s{wslo+1}, 0", f"s_mov_b32 s{tmp+2}, 64", f"s_mov_b32 s{tmp+3}, 0x20000",
         "v_mov_b32 v1, 0"]
    for i in range(14):
        L += [f"v_mov_b32 v2, s{88+i}", f"buffer_store_dword v2, v1, s[{tmp}:{tmp+3}], 0 offen offset:{4*i}"]
    L += [f"TS_SKIP{kidx}:"]
    return L

import re as _re
def resolve(lines, queue):
    q = list(queue); out = []
    for l in lines:
        m = _re.search(r"vmcnt\((@[^)]*)\)", l)
        if m:
            tags = [t.strip()[1:] for t in m.group(1).split(",")]
            idx = [i for i, x in enumerate(q) if x in tags]
            assert idx, (l, q)
            n = len(q) - 1 - max(idx)
            l = l.replace(m.group(0), f"vmcnt({n})")
        if l.startswith(("buffer_load", "buffer_store", "buffer_atomic")):
            t = _re.search(r"; @(\S+)", l)
            q.append(t.group(1) if t else "-")
        out.append(l)
    return out
```

```python
from common import *
import re, sys

NAME = "recurrent_scan__gqa_block_cached__dense_activation_relu__prompt_kernel"
MF = "v_mfma_f32_16x16x32_bf16"
EXP = [""]
def X(flag): return flag in EXP[0].split()

KR, VR = 0, 49152
WA, WB = 65536, 114688
ST = 122880
OWN = 81920
pX, pK, pV, pWQ, pWO, pWS, pW1, pW2, pOUT, pDBG = 4, 6, 8, 10, 68, 70, 72, 74, 76, 78
sK_SRD, sV_SRD, sWQ_SRD, sW1_SRD, sXF_SRD, sOF_SRD, sFL = 12, 16, 20, 24, 28, 32, 80
sWAVE, sHEAD, sM64, sKo = 36, 37, 38, 39
sMK, sMV, sMW = 40, 44, 48
sWq, sW1, sX, sCNT, sC, sTHR, sO, sVo, sRET = 54, 55, 56, 57, 58, 60, 61, 63, 64
sH = [6, 7, 62]
sTMP, sU, sT, sQB = 66, 67, 84, 85
sRSRC, sRDST, sRM, sRS = 8, 20, 24, 25
QV, NM, S0, S1, P, KF, VF, ET, T_, L_ = 16, 48, 64, 96, 112, 176, 200, 224, 232, 236
AK, AV, DK, DV, CK, LX, RLV = 240, 242, 246, 249, 252, 253, 254
AF, DA, DB, DH, AWA, AWB, AH, LXB, LX8, LXB2 = 16, 40, 44, 46, 192, 200, 204, 207, 208, 209
CSCALE = math.log2(math.e) / math.sqrt(192.0)
THR = 2.0 ** 30
SPIN = 1 << 18

def srdn(b): return f"s[{b}:{b+3}]"
class E(list):
    def __call__(self, *x):
        for y in x:
            if isinstance(y, list): self.extend(y)
            else: self.append(y)
        return self
lab = [0]
def newlab(p):
    lab[0] += 1; return f"F_{p}{lab[0]}"
def wave0(body):
    l = newlab("W")
    return E()(f"s_cmp_lg_u32 s{sWAVE}, 0", f"s_cbranch_scc1 {l}", body, f"{l}:")

def poll(phase, mask, soff, wide=False, vaddr="v2"):
    l, d = newlab("P"), newlab("D")
    e = E()
    e(f"s_mov_b32 exec_lo, {mask[0]}", f"s_mov_b32 exec_hi, {mask[1]}", f"s_add_u32 s{sTMP}, s{sT}, {phase}", f"s_mov_b32 s{sU}, 0", f"{l}:")
    if wide:
        e(f"buffer_load_dwordx4 v[4:7], {vaddr}, {srdn(sFL)}, {soff} offen sc1", "s_waitcnt vmcnt(0)")
        for r in range(4): e(f"v_subrev_u32 v{4+r}, s{sTMP}, v{4+r}")
        e("v_max3_u32 v4, v4, v5, v6", "v_max_u32 v4, v4, v7")
    else:
        e(f"buffer_load_dword v4, {vaddr}, {srdn(sFL)}, {soff} offen sc1", "s_waitcnt vmcnt(0)", f"v_subrev_u32 v4, s{sTMP}, v4")
    e(f"v_cmp_lt_u32 vcc, {4-phase}, v4", f"s_add_u32 s{sU}, s{sU}, 1", f"s_cmp_gt_u32 s{sU}, {SPIN}", f"s_cbranch_scc1 {d}",
      f"s_cbranch_vccnz {l}", f"{d}:", "s_mov_b64 exec, -1")
    return e
def signal(phase):
    return E()(f"s_add_u32 s{sTMP}, s{sT}, {phase}", f"s_lshl_b32 s{sU}, s{sQB}, 5", f"s_add_u32 s{sU}, s{sU}, s{sHEAD}", f"s_lshl_b32 s{sU}, s{sU}, 2",
               f"v_mov_b32 v4, s{sTMP}", "v_mov_b32 v5, 0", "s_mov_b64 exec, 1",
               f"buffer_store_dword v4, v5, {srdn(sFL)}, s{sU} offen sc1", "s_mov_b64 exec, -1")

def qacc(ds, tb, qt):
    n = (ds*2 + tb)*4 + qt
    return R("a", 4*n) if n < 24 else R("v", 48 + 4*(n-24))
def hacc(tt, qt): return R("v", 144 + 4*(tt*4 + qt))
def BF(s, kk, qt): return a(96 + 32*(s % 3) + 16*kk + 4*qt, 4)
def ldB(s): return [f"buffer_load_dwordx4 {BF(s,kk,qt)}, v{LXB2 if kk else LXB}, {srdn(sXF_SRD)}, s{sX} offen offset:{1024*qt} sc1 ; @B{s}" for kk in range(2) for qt in range(4)]
advX = [f"s_add_u32 s{sX}, s{sX}, 8192"]
advW = [f"s_add_u32 s{sWq}, s{sWq}, 786432", f"s_add_u32 s{sW1}, s{sW1}, 196608"]
def dmaW(u):
    if u % 2 == 0: return [f"buffer_load_dwordx4 v{DA+t}, {srdn(sWQ_SRD)}, s{sWq} offen offset:{1024*t} lds ; @W{u}" for t in range(4)]
    return [f"buffer_load_dwordx4 v{DB+t}, {srdn(sWQ_SRD)}, s{sWq} offen offset:{1024*t} lds ; @W{u}" for t in range(2)] + \
           [f"buffer_load_dwordx4 v{DH+t}, {srdn(sW1_SRD)}, s{sW1} offen offset:{1024*(t+2)} lds ; @W{u}" for t in range(2)]
TCH, TCD = 210, 212
sTq, sT1 = 64, 65
def touch(): return [f"buffer_load_dword v{TCD}, v{TCH}, {srdn(sWQ_SRD)}, s{sTq} offen ; @T", f"buffer_load_dword v{TCD}, v{TCH+1}, {srdn(sW1_SRD)}, s{sT1} offen offset:3072 ; @T"]
advT = [f"s_add_u32 s{sTq}, s{sTq}, {3*786432}", f"s_add_u32 s{sT1}, s{sT1}, {3*196608}"]
def touch_addr(nst):
    return E()("v_mul_u32_u24 v1, 171, v0", "v_lshrrev_b32 v1, 9, v1", "v_mul_u32_u24 v2, 3, v1", "v_sub_u32 v2, v0, v2",
               "v_lshrrev_b32 v3, 1, v1", "v_and_b32 v1, 1, v1", "v_lshl_add_u32 v1, v3, 6, v1", f"v_add_u32 v1, s66, v1",
               "v_mul_lo_u32 v1, v1, s67", "v_lshl_add_u32 v1, v2, 7, v1", f"v_cmp_gt_u32 vcc, {6*nst}, v0", "v_bfrev_b32 v8, 1",
               "v_lshrrev_b32 v3, 2, v0", "v_bfe_u32 v2, v0, 1, 1", f"v_cndmask_b32 v{TCH}, v8, v1, vcc",
               "v_lshl_add_u32 v3, v3, 6, v2", "v_add_u32 v3, s66, v3", f"v_cmp_gt_u32 vcc, {4*nst}, v0", "v_mul_u32_u24 v3, 3072, v3",
               "v_and_b32 v2, 1, v0", "v_mul_u32_u24 v2, 92, v2", "v_add_u32 v3, v3, v2", f"v_cndmask_b32 v{TCH+1}, v8, v3, vcc")
def m0W(u): return f"s_mov_b32 m0, s{sMW + u % 6}"
def qtiles(u): return list(range(8)) if u % 2 == 0 else list(range(8, 15))
def qrd(s, T, kk, uu):
    dst = v(AF + 8*(T % 3) + 4*kk + 2*uu, 2)
    if T < 8: return f"ds_read_b64_tr_b16 {dst}, v{AWA + T} offset:{(s % 3)*16384 + kk*8192 + uu*1024}"
    reg = AWB + T - 8 if T < 12 else AH + T - 12
    return f"ds_read_b64_tr_b16 {dst}, v{reg} offset:{(s % 3)*16384 + kk*8192 + uu*512}"
def qsub(u, last=20, extra=None, vmw=None):
    extra = extra or {}
    s = u >> 1; TL = qtiles(u); nT = len(TL)
    L = []
    lb = ldB(s + 2) if (u % 2 == 0 and s + 2 < last//2) else []
    dw = dmaW(u + 5) if u + 5 < last else []
    for ti, T in enumerate(TL):
        for p in range(4):
            qt = p if T % 2 == 0 else 3 - p
            acc = (qacc(T >> 1, T & 1, qt) if T < 12 else hacc(T-12, qt))(4)
            for kk in range(2):
                g = 2*p + kk; gi = 8*ti + g
                L.append(f"{MF} {acc}, {v(AF + 8*(T % 3) + 4*kk, 4)}, {BF(s, kk, qt)}, {acc}")
                s2, T2 = s + (T+2)//15, (T+2) % 15
                if g < 4:
                    if 2*s2 < last: L.append(qrd(s2, T2, g >> 1, g & 1))
                    if g == 3:
                        left = 15*(last//2) - 1 - (15*s + T)
                        if left >= 1: L.append(f"s_waitcnt lgkmcnt({4 if left >= 2 else 0})")
                if lb and ti < 4 and g in (4, 6): L.append(lb[2*ti + (g-4)//2])
                if lb and ti == 4 and g == 4: L += advX
                if u % 6 == 0 and last > 20 and not X("notouch"):
                    if ti == 4 and g == 6: L.append(touch()[0])
                    if ti == 5 and g == 4: L.append(touch()[1])
                    if ti == 5 and g == 5: L += advT
                if ti == nT-3 and g == 6 and dw: L.append(m0W(u+5))
                if ti == nT-3 and g == 7 and vmw is not None: L += [f"s_waitcnt vmcnt({vmw})", "s_barrier"]
                if dw and ti >= nT-2 and g in (4, 6): L.append(dw[2*(ti-nT+2) + (g-4)//2])
                if dw and u % 2 == 0 and ti == nT-1 and g == 7: L += advW
                L += extra.get(gi, [])
    return L
def qcounts():
    q = [] if X("allW") else ["B1"]*8 + ["W2"]*4 + ["W3"]*4 + ["W4"]*4
    out = {}
    for u in range(18):
        for l in qsub(u, last=40, vmw="?"):
            if "vmcnt(?)" in l:
                need = ["W%d" % (u+1)] + (["B%d" % ((u+1)//2)] if u % 2 else [])
                idx = [i for i, x in enumerate(q) if x in need]
                if idx: out[u % 6] = min(out.get(u % 6, 63), len(q) - 1 - max(idx))
            if l.startswith("buffer_"): q.append(re.search(r"@(\S+)", l).group(1))
    return out, q

def convert():
    e = E()("s_nop 7")
    k = 0
    for tt in range(3):
        for qt in range(4):
            h = hacc(tt, qt); d = 2 + 2*(k % 6); k += 1
            e(f"v_cvt_pk_bf16_f32 v{d}, {h(1,0)}, {h(1,1)}", f"v_cvt_pk_bf16_f32 v{d+1}, {h(1,2)}, {h(1,3)}",
              f"v_pk_max_i16 v{d}, v{d}, 0", f"v_pk_max_i16 v{d+1}, v{d+1}, 0",
              f"buffer_store_dwordx2 {v(d,2)}, v{LX8}, {srdn(sOF_SRD)}, s{sH[tt]} offen offset:{1024*qt} sc1")
    for ds in (3, 4, 5, 0, 1, 2):
        dsts = []
        for qt in range(4):
            f = ds*4 + qt
            Xr, Yr = qacc(ds, 0, qt), qacc(ds, 1, qt)
            if Xr.f == "a":
                tx, ty = R("v", 144 + 8*qt), R("v", 148 + 8*qt)
                for r in range(4): e(f"v_accvgpr_read_b32 {tx(1,r)}, {Xr(1,r)}")
                for r in range(4): e(f"v_accvgpr_read_b32 {ty(1,r)}, {Yr(1,r)}")
                Xr, Yr = tx, ty
            d = QV + 4*(f-16) if f >= 16 else 176 + 4*qt
            dsts.append(d)
            for Z in (Xr, Yr):
                for r in (0, 2): e(f"v_pk_mul_f32 {Z(2,r)}, {Z(2,r)}, s[{sC}:{sC+1}]")
            e(f"v_cvt_pk_bf16_f32 v{d}, {Xr(1,0)}, {Xr(1,1)}", f"v_cvt_pk_bf16_f32 v{d+1}, {Xr(1,2)}, {Xr(1,3)}",
              f"v_cvt_pk_bf16_f32 v{d+2}, {Yr(1,0)}, {Yr(1,1)}", f"v_cvt_pk_bf16_f32 v{d+3}, {Yr(1,2)}, {Yr(1,3)}")
        e("s_mov_b32 exec_lo, 0")
        for d in dsts: e(f"v_swap_b32 v{d}, v{d+2}", f"v_swap_b32 v{d+1}, v{d+3}")
        e("s_mov_b32 exec_lo, -1")
        if ds < 4:
            for qt in range(4):
                for r in range(4): e(f"v_accvgpr_write_b32 a{192 + 4*(ds*4+qt) + r}, v{dsts[qt]+r}")
    return e

def Qf(f): return a(192 + 4*f, 4) if f < 16 else v(QV + 4*(f-16), 4)
def Oacc(dt, qt): return (dt*4 + qt)*4
def dmaK(t): return f"buffer_load_dwordx4 v{DK+t}, {srdn(sK_SRD)}, s{sKo} offen offset:{1024*t} lds"
def dmaV(t): return f"buffer_load_dwordx4 v{DV+t}, {srdn(sV_SRD)}, s{sVo} offen offset:{1024*t} lds"
def kvgroup(kind, j):
    so = sKo if kind == "K" else sVo
    return [f"s_mov_b32 m0, s{(sMK if kind=='K' else sMV) + j}", f"s_mov_b32 s{so}, {12288*j}"], [(dmaK(t) if kind == "K" else dmaV(t)) + f" ; @{kind}{j}" for t in range(3)]
def rdK(slot, kt, ds, dst=KF): return f"ds_read_b128 {v(dst+4*ds,4)}, v{AK+(ds&1)} offset:{slot*12288 + kt*6144 + (ds>>1)*128}"
def rdV(slot, dt, u, dst=VF): return f"ds_read_b64_tr_b16 {v(dst+4*(dt%6)+2*u,2)}, v{AV+(dt&3)} offset:{slot*12288 + u*6144 + (dt>>2)*128}"
def qk(dst, src=KF, czero=False):
    o = []
    for qt in range(4):
        for ds in range(6):
            d = v(dst+4*qt, 4)
            c = ("0" if czero else v(NM+4*qt, 4)) if ds == 0 else d
            o.append(f"{MF} {d}, {v(src+4*ds,4)}, {Qf(ds*4+qt)}, {c}")
    return o
def pv(h, Pb, czero=False, src=VF):
    o = []
    for dt in range(6):
        for p in range(4):
            qt = p if dt % 2 == 0 else 3 - p
            acc = a(Oacc(h*6+dt, qt), 4)
            o.append(f"{MF} {acc}, {v(src+4*dt,4)}, {v(Pb+4*qt,4)}, {'0' if czero else acc}")
    return o
def sm(src, qts, Pb, kt):
    Ex, Sx = [], []
    k = 0
    for qt in qts:
        for pr in range(2):
            t0 = ET + 2*k; t1 = t0 + 1; k += 1
            Ex += [f"v_exp_f32 v{t0}, v{src+4*qt+2*pr}", f"v_exp_f32 v{t1}, v{src+4*qt+2*pr+1}"]
            n = len(Ex)
            if kt == 0 and pr == 0: Sx.append((n, f"v_add_f32 v{T_+qt}, v{t0}, v{t1}"))
            else: Sx += [(n-1, f"v_add_f32 v{T_+qt}, v{T_+qt}, v{t0}"), (n, f"v_add_f32 v{T_+qt}, v{T_+qt}, v{t1}")]
            Sx.append((n, f"v_cvt_pk_bf16_f32 v{Pb+4*qt+2*kt+pr}, v{t0}, v{t1}"))
    return Ex, Sx
def quarter(mf, pat, Ex, Sx, D, B, salu):
    assert len(pat) == len(mf) == 24, (pat, len(pat))
    out = []; ei = si = di = bi = 0
    for gi, m in enumerate(mf):
        out.append(m); ty = pat[gi]
        sc = salu.get(gi, [])
        def take(n):
            nonlocal si
            r = []
            while n > 0 and si < len(Sx) and Sx[si][0] <= ei: r.append(Sx[si][1]); si += 1; n -= 1
            return r
        if ty == "e": out += sc + [Ex[ei]]; ei += 1
        elif ty == "d": out += [D[di]] + take(1) + sc; di += 1
        elif ty == "a": out += sc + take(2)
        elif ty == "1": out += sc + take(1)
        elif ty == "b": out += sc + [B[bi]]; bi += 1
        elif ty == "-": out += sc
        else: raise ValueError(ty)
    assert ei == len(Ex) and si == len(Sx) and di == len(D) and bi == len(B), (pat, ei, len(Ex), si, len(Sx), di, len(D), bi, len(B))
    return out
P1 = "ee" + "de"*6 + "d"*6 + "a1b-"
P2 = "de"*6 + "ee" + "baabaa" + "----"
P3 = "ed"*8 + "dddd" + "b---"
P4 = "ebeb" + "de"*6 + "aaa" + "-----"
CHK = [f"v_max3_f32 v{CK}, v{T_}, v{T_+1}, v{T_+2}", f"v_max_f32 v{CK}, v{CK}, v{T_+3}", f"v_cmp_lt_f32 vcc, s{sTHR}, v{CK}"]
LADD = [f"v_add_f32 v{L_+q}, v{L_+q}, v{T_+q}" for q in range(4)]
sites = []
def callsite(par):
    k = len(sites); sites.append(par)
    return [f"s_cbranch_vccnz F_TR{k}", f"F_BK{k}:"]
def step(i, first=False, vmw=12, tail=(), rl=None):
    par, slot = i & 1, i % 4
    S0n = S0 + 16*(1-par); Pc = P + 16*par; Pn = P + 16*(1-par)
    L = []
    Ex, Sx = sm(S1, [2, 3], Pc, 1)
    L += quarter(qk(S0n), P1, Ex, Sx + [(8, x) for x in CHK], [rdV(slot, dt, u) for dt in range(6) for u in range(2)], [dmaK(2) + " ; @G"],
                 {23: ["s_waitcnt lgkmcnt(6)"]})
    L += callsite(par)
    Ex, Sx = sm(S0n, [0, 1], Pn, 0)
    mV = f"s_mov_b32 m0, s{sMV + (slot+3)%4}"
    pat = P2; D = [rdK((slot+1) % 4, 1, ds) for ds in range(6)]; B = [dmaV(0) + " ; @G", dmaV(1) + " ; @G"]
    sal = {11: ["s_waitcnt lgkmcnt(6)"], 13: [mV], 23: ["s_waitcnt lgkmcnt(0)"], 21: [f"s_add_u32 s{sKo}, s{sKo}, 12288"]}
    if rl == "dma":
        pat = P2[:20] + "b---"; B.append(rl_dma() + " ; @R")
        sal.update({18: [f"s_cmp_lt_u32 s{sCNT}, 12"], 19: [f"s_mov_b32 m0, s{sRM}"],
                    21: [f"s_cselect_b32 s{sTMP}, 128, s3", f"s_add_u32 s{sKo}, s{sKo}, 12288"],
                    22: [mV, f"s_add_u32 s{sRS}, s{sRS}, s{sTMP}"], 23: ["s_waitcnt lgkmcnt(0)", f"s_add_u32 s{sRM}, s{sRM}, 1024"]})
    if rl in ("tk", "tv"):
        pat = P2[:20] + "b---"
        B.append(f"buffer_load_dword v1, v{KVT}, {srdn(sK_SRD if rl == 'tk' else sV_SRD)}, s{sKT} offen ; @T")
        if rl == "tv": sal[22] = [f"s_add_u32 s{sKT}, s{sKT}, 49152"]
    if rl == "out":
        pat = P2[:20] + "dd--"; D += [rl_rd(0), rl_rd(1)]; sal[23] = ["s_waitcnt lgkmcnt(2)"]
        sal[22] = sal.pop(21)
    L += quarter(pv(0, Pc, first), pat, Ex, [(0, x) for x in LADD] + Sx, D, B, sal)
    Ex, Sx = sm(S0n, [2, 3], Pn, 0)
    sal = {21: [f"s_add_u32 s{sVo}, s{sVo}, 12288"], 23: [f"s_waitcnt vmcnt({vmw}) lgkmcnt(0)", "s_barrier"]}
    L += quarter(qk(S1), P3, Ex, Sx, [rdV(slot, 6+dt, u) for dt in range(6) for u in range(2)], [dmaV(2) + " ; @G"], sal)
    Ex, Sx = sm(S1, [0, 1], Pn, 1)
    sal = {0: [f"s_mov_b32 m0, s{sMK + (slot+1)%4}"], 22: ["s_waitcnt lgkmcnt(0)"]}
    pat = P4; B = [dmaK(0) + " ; @G", dmaK(1) + " ; @G"]
    tail = list(tail)
    if tail:
        sal[19] = tail[:1]; sal[20] = tail[1:2]; sal[23] = tail[2:]
    if rl == "out":
        pat = P4[:19] + "b1---"; B.append(rl_st() + " ; @S")
        sal.update({5: [f"s_cmp_lt_u32 s{sCNT}, 14"], 7: [f"s_cselect_b32 s{sRJ}, 1024, 0"], 9: [f"s_sub_u32 s{sTMP}, s{sCNT}, 5"],
                    11: [f"s_cmp_lt_u32 s{sTMP}, 10"], 13: [f"s_cselect_b32 s{sTMP}, s{sRO}, s3"], 15: [f"s_cselect_b32 s{sRI}, 4096, 0"],
                    16: [f"s_add_u32 s{sRO}, s{sRO}, s{sRI}"], 17: [f"s_lshr_b32 s{sRI}, s{sRI}, 10"], 18: [f"s_add_u32 s{sRR}, s{sRR}, s{sRI}"],
                    20: [f"s_cmp_gt_u32 s{sRR}, 9"], 21: [f"s_cselect_b32 s{sRI}, {WF160 - 10240}, 0", f"s_cselect_b32 s{sTMP}, 10, 0"],
                    22: ["s_waitcnt lgkmcnt(0)", f"s_add_u32 s{sRO}, s{sRO}, s{sRI}"], 23: [f"s_sub_u32 s{sRR}, s{sRR}, s{sTMP}"]})
        Sx = Sx + [(8, f"v_add_u32 v{RTV}, s{sRJ}, v{RTV}")]
    L += quarter(pv(1, Pc, first), pat, Ex, Sx, [rdK((slot+2) % 4, 0, ds) for ds in range(6)], B, sal)
    return L
sRJ, sKT, KVT = 59, 58, 175
def kv_touch_addr(D):
    return E()(f"s_lshl_b32 s66, s{sQB}, 2", f"s_add_u32 s66, s66, s{sWAVE}", "s_mul_i32 s66, s66, 1536", "v_lshlrev_b32 v1, 7, v0", "v_add_u32 v1, s66, v1",
               "v_cmp_gt_u32 vcc, 12, v0", "v_bfrev_b32 v2, 1", f"s_mov_b32 s{sKT}, {D*12288}", f"v_cndmask_b32 v{KVT}, v2, v1, vcc")
def xlane(op, dst, tmp):
    L = []
    for sw in ("v_permlane16_swap_b32", "v_permlane32_swap_b32"):
        L += [f"v_mov_b32 v{tmp+qt}, v{dst+qt}" for qt in range(4)] + ["s_nop 1"]
        L += [f"{sw} v{dst+qt}, v{tmp+qt}" for qt in range(4)]
        L += [f"{op} v{dst+qt}, v{dst+qt}, v{tmp+qt}" for qt in range(4)]
    return L
def rowmax(dst, srcs, tmp):
    L = []
    for qt in range(4):
        r = srcs(qt); d = dst + qt
        L += [f"v_max3_f32 v{d}, v{r[0]}, v{r[1]}, v{r[2]}", f"v_max3_f32 v{d}, v{d}, v{r[3]}, v{r[4]}",
              f"v_max3_f32 v{d}, v{d}, v{r[5]}, v{r[6]}", f"v_max_f32 v{d}, v{d}, v{r[7]}"]
    return L + xlane("v_max_f32", dst, tmp)
def init():
    e = E()("s_waitcnt vmcnt(@K0)", "s_barrier")
    for ds in range(6): e(rdK(0, 0, ds))
    for ds in range(6): e(rdK(0, 1, ds, VF))
    for j in (1, 2):
        m, d = kvgroup("V", j); e(m, d)
    e(f"s_mov_b32 s{sKo}, {4*12288}", f"s_mov_b32 s{sVo}, {3*12288}")
    for q in range(4): e(f"v_mov_b32 v{L_+q}, 0")
    e("s_waitcnt lgkmcnt(6)", qk(S0, KF, True), "s_waitcnt vmcnt(@K1,@V0) lgkmcnt(0)", "s_barrier")
    m = qk(S1, VF, True)
    rd = [rdK(1, 0, ds) for ds in range(6)]
    for i, x in enumerate(m):
        e(x)
        if i < 6: e(rd[i])
        if i == 7: e(f"s_mov_b32 m0, s{sMK}")
        if i in (8, 10): e(dmaK((i-8)//2))
    e("s_nop 7")
    D, TM = 2, 6
    e(rowmax(D, lambda qt: [S0+4*qt+r for r in range(4)] + [S1+4*qt+r for r in range(4)], TM))
    for qt in range(4): e(f"v_ceil_f32 v{D+qt}, v{D+qt}")
    for qt in range(4):
        for r in range(4):
            e(f"v_sub_f32 v{NM+4*qt+r}, 0, v{D+qt}", f"v_sub_f32 v{S0+4*qt+r}, v{S0+4*qt+r}, v{D+qt}", f"v_sub_f32 v{S1+4*qt+r}, v{S1+4*qt+r}, v{D+qt}")
    for src, qts, kt in ((S0, [0, 1], 0), (S0, [2, 3], 0), (S1, [0, 1], 1)):
        Ex, Sx = sm(src, qts, P, kt)
        e(Ex, [x for _, x in Sx])
    e("s_waitcnt lgkmcnt(0)")
    return e
def slow(par):
    S0c = S0 + 16*par; S0n = S0 + 16*(1-par); Pc = P + 16*par
    e = E()(f"F_SLOW{par}:", "s_nop 7", "s_nop 7")
    D, TM = 2, 6
    e(rowmax(D, lambda qt: [S0c+4*qt+r for r in range(4)] + [S1+4*qt+r for r in range(4)], TM))
    for qt in range(4): e(f"v_max_f32 v{D+qt}, 0, v{D+qt}", f"v_ceil_f32 v{D+qt}, v{D+qt}", f"v_sub_f32 v{TM+qt}, 0, v{D+qt}", f"v_cvt_i32_f32 v{TM+qt}, v{TM+qt}")
    for qt in range(4):
        e(f"v_ldexp_f32 v{L_+qt}, v{L_+qt}, v{TM+qt}")
        for base in (NM, S0c, S1, S0n):
            for r in range(4): e(f"v_sub_f32 v{base+4*qt+r}, v{base+4*qt+r}, v{D+qt}")
    for dt in range(12):
        for qt in range(4):
            b = Oacc(dt, qt)
            for r in range(4): e(f"v_accvgpr_read_b32 v{10+r}, a{b+r}")
            for r in range(4): e(f"v_ldexp_f32 v{10+r}, v{10+r}, v{TM+qt}")
            for r in range(4): e(f"v_accvgpr_write_b32 a{b+r}, v{10+r}")
    for src, qts, kt in ((S0c, [0, 1], 0), (S0c, [2, 3], 0), (S1, [0, 1], 1), (S1, [2, 3], 1)):
        Ex, Sx = sm(src, qts, Pc, kt)
        e(Ex, [x for _, x in Sx])
    e("s_nop 1", f"s_setpc_b64 s[{sRET}:{sRET+1}]")
    return e

def relayout_src():
    return E()("s_cmp_lt_u32 s2, 192", f"s_cselect_b32 s{sRSRC}, s{pWO}, s{pW2}", f"s_cselect_b32 s{sRSRC+1}, s{pWO+1}, s{pW2+1}", "s_cselect_b32 s66, 0, 192",
               "s_sub_u32 s66, s2, s66", "s_mul_i32 s66, s66, 40960", f"s_add_u32 s{sRSRC}, s{sRSRC}, s66", f"s_addc_u32 s{sRSRC+1}, s{sRSRC+1}, 0",
               "s_cmp_lt_u32 s2, 240", f"s_cselect_b32 s{sRSRC+2}, 40960, 0", f"s_mov_b32 s{sRSRC+3}, 0x20000")
def relayout_dst():
    return E()("s_mul_i32 s66, s2, 10240", f"s_add_u32 s67, s66, {hx(WS_WF)}", f"s_sub_u32 s{sRDST+2}, {4*WF160}, s66",
               "s_cmp_lt_u32 s2, 240", f"s_cselect_b32 s{sRDST+2}, s{sRDST+2}, 0", f"s_cselect_b32 s67, s67, {hx(WS_WF)}",
               f"s_add_u32 s{sRDST}, s{pWS}, s67", f"s_addc_u32 s{sRDST+1}, s{pWS+1}, 0", f"s_mov_b32 s{sRDST+3}, 0x20000",
               f"s_mul_i32 s{sRM}, s{sWAVE}, 10240", f"s_add_u32 s{sRM}, s{sRM}, {ST}", f"s_mov_b32 s{sRS}, 0",
               f"s_lshl_b32 s{sRO}, s{sWAVE}, 10", f"s_mov_b32 s{sRR}, s{sWAVE}")
RTV, RTD = 255, 12
sRO, sRR, sRI = 26, 27, 62
def relayout_vaddr():
    return E()("v_lshrrev_b32 v1, 2, v0", "v_and_b32 v1, 7, v1", "v_lshlrev_b32 v2, 7, v1", "v_lshrrev_b32 v3, 5, v0", "v_mul_u32_u24 v3, 10240, v3", "v_add_u32 v2, v2, v3",
               "v_and_b32 v3, 3, v0", "v_lshl_add_u32 v2, v3, 3, v2", f"v_add_u32 v2, {ST - 1024}, v2", "v_lshrrev_b32 v1, 1, v1", "v_lshlrev_b32 v1, 5, v1",
               f"s_lshl_b32 s66, s{sWAVE}, 5", "v_xor_b32 v1, s66, v1", f"v_add_u32 v{RTV}, v1, v2")
def rl_dma(): return f"buffer_load_dwordx4 v{RLV}, {srdn(sRSRC)}, s{sRS} offen lds"
def rl_rd(u): return f"ds_read_b64_tr_b16 {v(RTD+2*u,2)}, v{RTV} offset:{20480*u}"
def rl_st(): return f"buffer_store_dwordx4 {v(RTD,4)}, v{LX}, {srdn(sRDST)}, s{sTMP} offen sc1"

def front():
    e = E()
    e("s_load_dwordx8 s[4:11], s[0:1], 0", f"s_load_dwordx2 s[{pWO}:{pWO+1}], s[0:1], 32", f"s_load_dwordx4 s[{pW1}:{pW1+3}], s[0:1], 48",
      f"s_load_dwordx4 s[{pOUT}:{pOUT+3}], s[0:1], 64", f"s_load_dwordx2 s[{pWS}:{pWS+1}], s[0:1], 80")
    e(wave_id(f"s{sWAVE}"), stamp(0), "s_mov_b32 s3, 0x10000000")
    e("s_and_b32 s66, s2, 7", "s_lshl_b32 s66, s66, 2", "s_lshr_b32 s67, s2, 3", "s_and_b32 s67, s67, 3", f"s_add_u32 s{sHEAD}, s66, s67",
      f"s_lshr_b32 s{sQB}, s2, 5", f"s_lshl_b32 s66, s{sQB}, 2", f"s_add_u32 s{sM64}, s66, s{sWAVE}")
    e(f"s_lshl_b32 s66, s{sQB}, 5", f"s_add_u32 s66, s66, s{sHEAD}", "s_lshl_b32 s66, s66, 2", f"s_add_u32 s66, s66, s{sWAVE}", "s_lshl_b32 s62, s66, 1",
      "s_mul_i32 s66, s62, 1280",
      "v_lshrrev_b32 v1, 5, v0", "v_and_b32 v2, 31, v0", "v_mul_u32_u24 v3, 1280, v1", "v_lshl_add_u32 v3, v2, 3, v3",
      f"v_lshlrev_b32 v{LX}, 4, v0", f"s_or_b32 s{sKo}, s2, s{sWAVE}")
    e("s_waitcnt lgkmcnt(0)", fstamp(1))
    e(srd(12, pX, pX+1, 2560, "s66"))
    XR, XX = 64, 80
    for m in range(5): e(f"buffer_load_dwordx2 {v(XR+2*m,2)}, v3, s[12:15], 0 offen offset:{256*m}")
    e(srd(sFL, pWS, pWS+1, 1024, WS_FL), f"s_cmp_eq_u32 s{sKo}, 0", f"s_cselect_b32 s{sFL+2}, 1024, 0",
      f"buffer_load_dwordx4 v[76:79], v{LX}, {srdn(sFL)}, 0 offen sc1", f"s_mov_b32 s{sFL+2}, 1024")
    e("s_lshr_b32 s66, s62, 6", f"s_mul_i32 s66, s66, {XF_BLK}", "s_and_b32 s67, s62, 63", "s_lshl_b32 s67, s67, 6", "s_add_u32 s66, s66, s67",
      f"s_sub_u32 s67, {XF_BLK}, s67")
    e(srd(16, pWS, pWS+1, "s67", "s66"))
    e("v_lshrrev_b32 v13, 3, v2", "v_lshlrev_b32 v13, 12, v13", "v_lshl_add_u32 v13, v1, 6, v13", "v_and_b32 v3, 7, v0", "v_lshl_add_u32 v13, v3, 3, v13")
    e(f"s_mul_i32 s66, s{sHEAD}, 384", "s_sub_u32 s67, 7864320, s66"); e(srd(sWQ_SRD, pWQ, pWQ+1, "s67", "s66"))
    e(f"s_mul_i32 s66, s{sHEAD}, 96", "s_sub_u32 s67, 1969152, s66", f"s_sub_u32 s{pW1}, s{pW1}, 3072", f"s_subb_u32 s{pW1+1}, s{pW1+1}, 0")
    e(srd(sW1_SRD, pW1, pW1+1, "s67", "s66"))
    e(f"s_lshl_b32 s66, s{sWAVE}, 4", "s_mov_b32 s67, 12288")
    e("v_lshrrev_b32 v1, 4, v0", "v_and_b32 v2, 15, v0", "v_lshlrev_b32 v3, 1, v1", "v_xor_b32 v2, v2, v3", "v_add_u32 v3, s66, v1", "v_mul_lo_u32 v3, v3, s67",
      f"v_lshl_add_u32 v{DA}, v2, 4, v3", f"v_add_u32 v{DA+1}, {4*12288 - 1024}, v{DA}", "v_xor_b32 v2, 8, v2", "v_lshl_add_u32 v3, v2, 4, v3",
      f"v_add_u32 v{DA+2}, {8*12288 - 2048}, v3", f"v_add_u32 v{DA+3}, {12*12288 - 3072}, v3")
    e("v_lshrrev_b32 v1, 3, v0", "v_and_b32 v2, 7, v0", "v_and_b32 v3, 2, v1", "v_xor_b32 v2, v2, v3", "v_add_u32 v3, s66, v1", "v_mul_lo_u32 v4, v3, s67",
      "v_add_u32 v4, 256, v4", f"v_lshl_add_u32 v{DB}, v2, 4, v4", "v_xor_b32 v5, 4, v2", "v_lshl_add_u32 v4, v5, 4, v4", f"v_add_u32 v{DB+1}, {8*12288 - 1024}, v4",
      "v_mul_u32_u24 v3, 3072, v3", "v_bfrev_b32 v8, 1", "v_cmp_gt_u32 vcc, 6, v2", "v_lshl_add_u32 v6, v2, 4, v3", "v_add_u32 v6, 1024, v6",
      f"v_cndmask_b32 v{DH}, v8, v6, vcc", "v_cmp_gt_u32 vcc, 6, v5", "v_lshl_add_u32 v6, v5, 4, v3", f"v_add_u32 v6, {8*3072}, v6",
      f"v_cndmask_b32 v{DH+1}, v8, v6, vcc")
    e(f"s_lshl_b32 s66, s{sWAVE}, 12")
    for u in range(6): e(f"s_add_u32 s{sMW+u}, s66, {(WB if u % 2 else WA) + 16384*(u >> 1)}")
    e(f"s_mov_b32 s{sWq}, 0", f"s_mov_b32 s{sW1}, 0")
    NE = 5 if X("allW") else 2
    def wgrp(lo, hi):
        o = E()
        for u in range(lo, hi):
            o(m0W(u), "s_nop 0", dmaW(u))
            if u % 2: o(advW)
        return o
    e(wgrp(0, NE))
    NT = 0 if X("notouch") else 2
    if NT:
        e(f"s_lshl_b32 s66, s{sQB}, 3", f"s_lshl_b32 s67, s{sWAVE}, 1", "s_add_u32 s66, s66, s67", "s_mov_b32 s67, 12288", touch_addr(4),
          f"s_mov_b32 s{sTq}, 786432", f"s_mov_b32 s{sT1}, 196608", touch())
    e(fstamp(2), f"s_waitcnt vmcnt({4*NE + NT})", stamp(1), fstamp(3))
    l1 = newlab("T")
    e(srd(12, pDBG, pDBG+1, 4), "v_mov_b32 v27, 0", f"s_cmp_lg_u32 s{sKo}, 0", f"s_cbranch_scc1 {l1}")
    e("v_and_b32 v1, 15, v0", "v_lshlrev_b32 v1, 2, v1", "ds_write_b32 v1, v27")
    for r in range(4):
        e(f"v_bfe_u32 v{4+r}, v{76+r}, 3, 9", f"v_lshrrev_b32 v{8+r}, 5, v{4+r}", f"v_lshlrev_b32 v{8+r}, 2, v{8+r}",
          f"v_and_b32 v{4+r}, 31, v{4+r}", f"v_lshlrev_b32_e64 v{4+r}, v{4+r}, 1")
    for r in range(4): e(f"ds_or_b32 v{8+r}, v{4+r}")
    e("ds_read_b32 v2, v1", "s_waitcnt lgkmcnt(0)", "v_not_b32 v2, v2", "v_ffbl_b32 v2, v2", "v_cmp_ne_u32 vcc, -1, v2",
      "s_nop 4", "s_ff1_i32_b64 s66, vcc", "s_nop 1", "v_readlane_b32 s67, v2, s66", "s_nop 4", "s_lshl_b32 s66, s66, 5", "s_add_u32 s66, s66, s67",
      "s_lshl_b32 s66, s66, 3", "s_or_b32 s66, s66, 0x40000000", "v_mov_b32 v26, s66",
      "s_mov_b64 exec, 1", "buffer_store_dword v26, v27, s[12:15], 0 offen sc1", "s_mov_b64 exec, -1", f"{l1}:")
    for i in range(10): e(f"v_lshlrev_b32 v{XX+2*i}, 16, v{XR+i}", f"v_and_b32 v{XX+2*i+1}, 0xffff0000, v{XR+i}")
    def reduce32(r, t):
        o = []
        for sh in (8, 4, 2, 1): o += ["s_nop 1", f"v_add_f32_dpp {r}, {r}, {r} row_ror:{sh} row_mask:0xf bank_mask:0xf"]
        return o + [f"v_mov_b32 {t}, {r}", "s_nop 1", f"v_permlane16_swap_b32 {r}, {t}", f"v_add_f32 {r}, {r}, {t}"]
    e(f"v_add_f32 v10, v{XX}, v{XX+1}", f"v_add_f32 v11, v{XX+2}, v{XX+3}")
    for i in range(4, 20, 2): e(f"v_add_f32 v10, v10, v{XX+i}", f"v_add_f32 v11, v11, v{XX+i+1}")
    e("v_add_f32 v10, v10, v11", reduce32("v10", "v11"))
    e(f"s_mov_b32 s66, {hx(f2u(1.0/640))}", "v_mul_f32 v10, s66, v10", "v_mov_b32 v11, 0", "v_mov_b32 v12, 0")
    for i in range(0, 20, 2):
        e(f"v_sub_f32 v1, v{XX+i}, v10", f"v_sub_f32 v2, v{XX+i+1}, v10", "v_fmac_f32 v11, v1, v1", "v_fmac_f32 v12, v2, v2")
    e("v_add_f32 v11, v11, v12", reduce32("v11", "v12"), "v_mul_f32 v11, s66, v11")
    e("v_cvt_pk_bf16_f32 v10, v10, v11", "v_and_b32 v11, 0xffff0000, v10", "v_lshlrev_b32 v10, 16, v10")
    e(f"v_add_f32 v11, {hx(f2u(1e-5))}, v11", "v_cvt_pk_bf16_f32 v11, v11, v11", "v_lshlrev_b32 v11, 16, v11",
      "v_sqrt_f32 v11, v11", "s_nop 0", "v_cvt_pk_bf16_f32 v11, v11, v11", "v_lshlrev_b32 v11, 16, v11", "v_rcp_f32 v11, v11", "s_nop 0")
    for i in range(10):
        a0, a1 = XX+2*i, XX+2*i+1
        e(f"v_sub_f32 v{a0}, v{a0}, v10", f"v_sub_f32 v{a1}, v{a1}, v10", f"v_cvt_pk_bf16_f32 v1, v{a0}, v{a1}",
          f"v_lshlrev_b32 v{a0}, 16, v1", f"v_and_b32 v{a1}, 0xffff0000, v1",
          f"v_mul_f32 v{a0}, v{a0}, v11", f"v_mul_f32 v{a1}, v{a1}, v11", f"v_cvt_pk_bf16_f32 v{XR+i}, v{a0}, v{a1}")
        if i % 2: e(f"s_mov_b32 s66, {16384*(i//2)}", f"buffer_store_dwordx2 {v(XR+i-1,2)}, v13, s[16:19], s66 offen sc1")
    e(stamp(2), fstamp(4))
    e("v_lshrrev_b32 v1, 4, v0", "v_lshrrev_b32 v2, 2, v0", "v_and_b32 v2, 3, v2", "v_and_b32 v3, 3, v0",
      "v_and_b32 v5, 1, v1", "v_lshlrev_b32 v4, 1, v2", "v_lshl_or_b32 v4, v5, 3, v4",
      "v_lshl_add_u32 v6, v1, 3, v2", "v_lshlrev_b32 v6, 8, v6", f"v_add_u32 v6, {WA}, v6", "v_lshrrev_b32 v7, 1, v3")
    for T in range(8):
        e(f"v_or_b32 v8, {4*(T >> 1)}, v3", "v_xor_b32 v8, v8, v4", "v_lshl_add_u32 v8, v8, 4, v6", f"v_xor_b32 v9, {T & 1}, v7", f"v_lshl_add_u32 v{AWA+T}, v9, 3, v8")
    e("v_and_b32 v4, 2, v2", "v_lshl_or_b32 v4, v5, 2, v4",
      "v_lshl_add_u32 v6, v5, 3, v2", "v_lshlrev_b32 v6, 7, v6", "v_lshrrev_b32 v8, 1, v1", "v_lshl_add_u32 v6, v8, 12, v6", f"v_add_u32 v6, {WB}, v6")
    for T in range(4):
        e(f"v_or_b32 v8, {4*(T >> 1)}, v3", "v_xor_b32 v8, v8, v4", "v_lshl_add_u32 v8, v8, 4, v6", f"v_xor_b32 v9, {T & 1}, v7", f"v_lshl_add_u32 v{AWB+T}, v9, 3, v8")
    e("v_add_u32 v6, 2048, v6", "v_lshl_add_u32 v6, v3, 3, v6")
    for tt in range(3): e(f"v_xor_b32 v8, {2*tt}, v4", f"v_lshl_add_u32 v{AH+tt}, v8, 4, v6")
    e(fstamp(5))
    lp, ld = newlab("P"), newlab("D")
    tagpoll = E()(f"s_mov_b32 s{sU}, 0", f"{lp}:", "buffer_load_dword v26, v27, s[12:15], 0 offen sc1", "s_waitcnt vmcnt(0)", f"v_readfirstlane_b32 s{sT}, v26",
                  f"s_add_u32 s{sU}, s{sU}, 1", f"s_cmp_gt_u32 s{sU}, {SPIN}", f"s_cbranch_scc1 {ld}",
                  f"s_cmp_eq_u32 s{sT}, 0", f"s_cbranch_scc1 {lp}", f"{ld}:")
    e(wave0(tagpoll), "s_waitcnt vmcnt(0)", fstamp(6), "s_barrier", stamp(3), fstamp(7))
    e(wave0(signal(1)), fstamp(8))
    e("v_lshrrev_b32 v1, 3, v0", "v_and_b32 v2, 7, v0", f"s_mul_i32 s62, s{sWAVE}, 3072", f"s_lshl_b32 s66, s{sWAVE}, 2")
    for t in range(3):
        e(f"v_add_u32 v3, {8*t}, v1", "v_mul_u32_u24 v4, 171, v3", "v_lshrrev_b32 v4, 9, v4",
          "v_lshrrev_b32 v5, 1, v4", "v_add_u32 v6, s66, v5", "v_and_b32 v6, 7, v6", "v_xor_b32 v6, v2, v6",
          "v_lshlrev_b32 v7, 7, v1", "v_add_u32 v7, s62, v7", f"v_lshl_add_u32 v{DK+t}, v6, 4, v7",
          "v_and_b32 v5, 3, v5", "v_lshlrev_b32 v5, 1, v5", "v_xor_b32 v5, v2, v5", f"v_lshl_add_u32 v{DV+t}, v5, 4, v7")
    for i in range(4): e(f"s_add_u32 s{sMK+i}, s62, {KR + 12288*i}", f"s_add_u32 s{sMV+i}, s62, {VR + 12288*i}")
    e("v_and_b32 v3, 6, v1", "v_xor_b32 v3, v2, v3", "v_mul_u32_u24 v4, 1280, v1", "v_lshl_add_u32 v4, v3, 4, v4", f"s_mul_i32 s66, s{sWAVE}, 10240", f"v_add_u32 v{RLV}, s66, v4")
    e(f"s_mul_i32 s66, s{sM64}, {XF_BLK}")
    if WS_XF: e(f"s_add_u32 s66, s66, {hx(WS_XF)}")
    e(srd(sXF_SRD, pWS, pWS+1, XF_BLK, "s66"))
    e("v_and_b32 v1, 15, v0", "v_lshrrev_b32 v2, 4, v0", "v_lshlrev_b32 v1, 6, v1", f"v_lshl_add_u32 v{LXB}, v2, 4, v1", f"v_add_u32 v{LXB2}, 4096, v{LXB}",
      f"v_lshlrev_b32 v{LX8}, 3, v0", f"s_mov_b32 s{sX}, 0")
    e(f"s_mul_i32 s66, s{sHEAD}, 786432"); e(srd(sK_SRD, pK, pK+1, 786432, "s66"), srd(sV_SRD, pV, pV+1, 786432, "s66"), relayout_src())
    e(f"s_mul_i32 s66, s{sM64}, {OF_BLK}", f"s_add_u32 s66, s66, {hx(WS_OF)}"); e(srd(sOF_SRD, pWS, pWS+1, OF_BLK, "s66"))
    e(f"s_mov_b32 s{sC}, {hx(f2u(CSCALE))}", f"s_mov_b32 s{sC+1}, {hx(f2u(CSCALE))}", f"s_mov_b32 s{sTHR}, {hx(f2u(THR))}")
    e(f"s_mul_i32 s{sO}, s{sHEAD}, 24576")
    for tt in range(3):
        e(f"s_mul_i32 s66, s{sHEAD}, 3", f"s_add_u32 s66, s66, {tt}", "s_and_b32 s67, s66, 1", "s_lshl_b32 s67, s67, 9",
          "s_lshr_b32 s66, s66, 1", "s_add_u32 s66, s66, 192", "s_lshl_b32 s66, s66, 12", f"s_add_u32 s{sH[tt]}, s66, s67")
    e("v_lshrrev_b32 v1, 4, v0", "v_and_b32 v3, 3, v0",
      "v_lshrrev_b32 v5, 2, v0", "v_mul_u32_u24 v6, 384, v5", f"v_add_u32 v6, {VR}, v6", "v_lshl_add_u32 v6, v3, 3, v6",
      "v_lshrrev_b32 v5, 1, v5", "v_and_b32 v5, 3, v5", "v_lshlrev_b32 v5, 1, v5")
    for sg in range(4): e(f"v_xor_b32 v8, {2*sg}, v5", f"v_lshl_add_u32 v{AV+sg}, v8, 4, v6")
    e("v_and_b32 v2, 15, v0", "v_mul_u32_u24 v6, 384, v2", "v_lshrrev_b32 v2, 1, v2", "v_xor_b32 v2, v2, v1")
    e(f"v_lshl_add_u32 v{AK}, v2, 4, v6", "v_xor_b32 v2, 4, v2", f"v_lshl_add_u32 v{AK+1}, v2, 4, v6", relayout_vaddr(), fstamp(9))
    if NT:
        e(f"s_lshl_b32 s66, s{sQB}, 3", f"s_lshl_b32 s67, s{sWAVE}, 1", "s_add_u32 s66, s66, s67", "s_mov_b32 s67, 12288", touch_addr(3),
          f"s_mov_b32 s{sTq}, {5*786432}", f"s_mov_b32 s{sT1}, {5*196608}")
    for i in range(96): e(f"v_accvgpr_write_b32 a{i}, 0")
    for i in range(48, 192): e(f"v_mov_b32 v{i}, 0")
    e(wave0([f"v_lshlrev_b32 v2, 2, v0", f"s_lshl_b32 s{sCNT}, s{sQB}, 7"] + poll(1, ("-1", "0"), f"s{sCNT}")))
    e("s_barrier", fstamp(10))
    for k in range(2): e(ldB(k), advX)
    e([qrd(0, T, kk, uu) for T in range(2) for kk in range(2) for uu in range(2)], wgrp(NE, 5))
    e(f"s_mov_b32 s{sCNT}, 0", fstamp(11), f"s_waitcnt vmcnt({8 + 4*(5-NE) if NE == 2 else 0}) lgkmcnt(4)", stamp(5), fstamp(12))
    return e

TB, TA, TAD, TD, TB8 = 16, 96, 160, 162, 164
sTW, sTB, sMT, sSP = 39, 58, 40, 54
LEAD = 3
def tacc(nt, qt): return (nt*2 + qt)*4
def t_rd(st, nt, kk, dst):
    slot = st % 4
    return f"ds_read_b128 {v(dst, 4)}, v{TAD + slot//3} offset:{(slot%3)*20480 + (kk*10 + nt)*1024}"
def t_A(st, nt, kk): return TA + 8*((10*st + nt) % 4) + 4*kk
def t_B(st, kk, qt): return TB + 16*(st % 4) + 8*kk + 4*qt
def t_ldB(st, g):
    if not g: return [f"buffer_load_dwordx4 {v(t_B(st,kk,qt), 4)}, v{LX}, s[16:19], s{sTB + kk} offen offset:{1024*qt} sc1 ; @B{st}" for kk in range(2) for qt in range(2)]
    return [f"buffer_load_dwordx2 {v(t_B(st,kk,qt) + 2*h, 2)}, v{TB8}, s[16:19], s{sTB + kk} offen offset:{1024*qt + 512*h} sc1 ; @B{st}" for kk in range(2) for qt in range(2) for h in range(2)]
t_advB = [f"s_add_u32 s{sTB}, s{sTB}, 8192", f"s_add_u32 s{sTB+1}, s{sTB+1}, 8192"]
def t_dmaW(st, t): return f"buffer_load_dwordx4 v{TD + (t == 4)}, s[12:15], s{sTW} offen offset:{1024*(t%4)} lds ; @W{st}"
def t_m0(st, t): return f"s_add_u32 m0, s{sMT}, {(st%4)*20480 + (4096 if t == 4 else 0)}"
t_advW = [f"s_add_u32 s{sTW}, s{sTW}, 20480"]
def tplan(g):
    if g: pl = {2: ("W", LEAD-1, 3), 3: ("B", 0), 6: ("B", 1), 7: ("B", 2), 11: ("W", LEAD-1, 4), 10: ("B", 3), 14: ("B", 4), 15: ("B", 5), 19: ("B", 6), 22: ("B", 7)}
    else: pl = {2: ("W", LEAD-1, 3), 6: ("B", 0), 11: ("W", LEAD-1, 4), 15: ("B", 1), 19: ("B", 2), 23: ("B", 3)}
    pl.update({30: ("W", LEAD, 0), 34: ("W", LEAD, 1), 38: ("W", LEAD, 2)})
    return pl
def tstage(st, g, vmw, last=1 << 30, nextA=None):
    L = []
    pl = tplan(g)
    ldb = t_ldB(st + LEAD, g)
    for p in range(20):
        nt = p >> 1; qt = (p & 1) ^ (nt & 1)
        for kk in range(2):
            gi = 2*p + kk
            acc = a(tacc(nt, qt), 4)
            L.append(f"{MF} {acc}, {v(t_A(st,nt,kk), 4)}, {v(t_B(st,kk,qt), 4)}, {acc}")
            if gi % 4 < 2:
                st2, nt2 = st + (nt+3)//10, (nt+3) % 10
                if st2 == st or nextA is None: L.append(t_rd(st2, nt2, gi % 4, t_A(st2, nt2, gi % 4)))
                else: L.append(nextA[2*nt2 + gi % 4])
                if gi % 4 == 1: L.append("s_waitcnt lgkmcnt(4)")
                if gi == 28 and st + LEAD < last: L.append(t_m0(st + LEAD, 0))
                if gi == 4 and st + LEAD - 1 < last: L.append(t_m0(st + LEAD - 1, 4))
                if gi == 12 and st + LEAD - 1 < last: L += t_advW
                if gi == 24 and st + LEAD < last: L.append(t_advB[0])
                if gi == 32 and st + LEAD < last: L.append(t_advB[1])
            if gi in pl:
                x = pl[gi]
                if x[0] == "W":
                    if st + x[1] < last: L.append(t_dmaW(st + x[1], x[2]))
                elif st + LEAD < last: L.append(ldb[x[1]])
            if gi == 27: L += [f"s_waitcnt vmcnt({vmw})", "s_barrier"]
    return L
def tpre(g):
    e = E()
    for st in range(LEAD-1):
        e(t_m0(st, 0), "s_nop 0", [t_dmaW(st, t) for t in range(4)], t_m0(st, 4), "s_nop 0", t_dmaW(st, 4), t_advW, t_ldB(st, g), t_advB)
    e(t_ldB(LEAD-1, g), t_advB, t_m0(LEAD-1, 0), "s_nop 0", [t_dmaW(LEAD-1, t) for t in range(3)])
    return e
def tcount(g):
    L = tpre(g)
    for st in range(12): L = L + tstage(st, g, f"@W{st+1},@B{st+1}")
    c = [int(re.search(r"vmcnt\((\d+)\)", l).group(1)) for l in resolve(L, []) if "vmcnt" in l]
    assert len(set(c[4:])) == 1
    return min(c)
def tloop(g):
    nb = 8 if g else 4
    cnt = tcount(g)
    pre = E()(resolve(tpre(g) + ["s_waitcnt vmcnt(@W0,@B0)"], []))
    pre("s_barrier", [t_rd(0, nt, kk, t_A(0, nt, kk)) for nt in range(3) for kk in range(2)], f"s_mov_b32 s{sCNT}, 0", "s_waitcnt lgkmcnt(4)")
    body = []
    for st in range(4): body += tstage(st, g, cnt)
    l = "F_TLG" if g else "F_TLS"
    ctl = [f"s_add_u32 s{sCNT}, s{sCNT}, 1", f"s_cmp_lt_u32 s{sCNT}, {6 if g else 7}", f"s_cbranch_scc1 {l}"]
    return pre, body, ctl, cnt
def pb_off(): return E()(f"s_lshl_b32 s41, s{sWAVE}, 2", f"s_add_u32 s41, s41, s{sSP}", "s_mul_i32 s41, s41, 20480",
                         f"s_cmp_eq_u32 s{sWAVE}, s{sSP}", "s_cselect_b32 s41, 0x10000000, s41")
def own_write():
    l = newlab("O")
    e = E()(f"s_cmp_lg_u32 s{sWAVE}, s{sSP}", f"s_cbranch_scc1 {l}", f"v_add_u32 v4, {OWN}, v{LX}")
    for i in range(20): e(f"ds_write_b128 v4, {a(tacc(i % 10, i // 10), 4)} offset:{1024*i}")
    return e(f"{l}:")
def tfinal(cnt):
    FA = lambda nt, k: TA + 16*(nt % 4) + 4*k
    frd = lambda nt, k: t_rd(30 + (k >> 1), nt, k & 1, FA(nt, k))
    e = E()
    for l in tstage(28, False, "@W29,@B29", last=32):
        e(l)
        if l.startswith("buffer_load") and l.endswith("@W31") and "offset:2048" in l:
            e.last = len(e)
    tail = e[e.last:]; del e[e.last:]
    k = [i for i, l in enumerate(tail) if l.startswith(MF)]
    assert len(k) == 1
    e(t_dmaW(31, 3), tail[k[0]], t_m0(31, 4), "s_nop 0", t_dmaW(31, 4))
    n = 0
    for l in tstage(29, False, "0", last=31):
        if l.startswith("ds_read"):
            n += 1
            if n > 14: continue
        if l == "s_waitcnt lgkmcnt(4)" and n > 14: l = "s_waitcnt lgkmcnt(0)"
        if l.startswith("s_waitcnt vmcnt") or l == "s_barrier": continue
        e(l)
    e("s_waitcnt vmcnt(@W30,@B30,@W31,@B31)", "s_barrier")
    e([frd(0, k) for k in range(4)], [frd(1, k) for k in range(4)], pb_off(), "s_waitcnt lgkmcnt(4)")
    pend = []
    for nt in range(10):
        for qt in range(2):
            for k in range(4):
                g = 4*qt + k
                acc = a(tacc(nt, qt), 4)
                e(f"{MF} {acc}, {v(FA(nt,k),4)}, {v(t_B(30 + (k >> 1), k & 1, qt),4)}, {acc}")
                if g < 4 and nt + 2 < 10: e(frd(nt+2, g))
                if g == 3 and nt + 1 < 10: e(f"s_waitcnt lgkmcnt({4 if nt + 2 < 10 else 0})")
                if g in (4, 6) and nt > 0:
                    q2 = (g-4)//2; i = q2*10 + nt-1
                    e(f"buffer_store_dwordx4 {a(tacc(nt-1,q2),4)}, v{LX}, s[20:23], s{42+q2} offen sc1")
                if g in (1, 2) and nt > 0:
                    q2 = g - 1; e(f"s_add_u32 s{42+q2}, s41, {1024*(q2*10 + nt-1)}")
    e("s_add_u32 s42, s41, 9216", "s_add_u32 s43, s41, 19456", "s_nop 5")
    for q2 in range(2): e(f"buffer_store_dwordx4 {a(tacc(9,q2),4)}, v{LX}, s[20:23], s{42+q2} offen sc1")
    e(own_write())
    return e
def gfinal():
    e = E()(pb_off(), "s_waitcnt vmcnt(0) lgkmcnt(0)", "s_nop 1")
    for i in range(20):
        b = tacc(i % 10, i // 10); d = 16 + 6*(i % 8)
        for r in range(4): e(f"v_accvgpr_read_b32 v{d+r}, a{b+r}")
        e(f"v_cvt_pk_bf16_f32 v{d+4}, v{d}, v{d+1}", f"v_cvt_pk_bf16_f32 v{d+5}, v{d+2}, v{d+3}")
        if i % 8 == 0: e(f"s_add_u32 s42, s41, {512*i}")
        e(f"buffer_store_dwordx2 {v(d+4,2)}, v{TB8}, s[20:23], s42 offen offset:{512*(i%8)} sc1")
    e(own_write())
    return e
def tail_setup():
    e = E()
    e(f"s_lshr_b32 s{sSP}, s{sHEAD}, 3", f"s_lshr_b32 s55, s{sHEAD}, 2", "s_and_b32 s55, s55, 1", f"s_and_b32 s56, s{sHEAD}, 3")
    e(f"s_cmp_eq_u32 s{sSP}, 3", "s_cselect_b32 s66, 48, 64", f"s_lshl_b32 s67, s{sSP}, 6",
      f"s_mul_i32 s41, s56, {WF160}", "s_mul_i32 s42, s67, 10240", "s_add_u32 s41, s41, s42", f"s_add_u32 s41, s41, {hx(WS_WF)}", "s_mul_i32 s42, s66, 10240")
    e(srd(12, pWS, pWS+1, "s42", "s41"))
    e(f"s_lshl_b32 s41, s{sQB}, 2", "s_lshl_b32 s42, s55, 1", "s_add_u32 s41, s41, s42", f"s_lshr_b32 s42, s{sWAVE}, 1", "s_add_u32 s41, s41, s42",
      f"s_mul_i32 s41, s41, {OF_BLK}", "s_lshl_b32 s42, s67, 12", "s_add_u32 s41, s41, s42",
      f"s_and_b32 s42, s{sWAVE}, 1", "s_lshl_b32 s42, s42, 11", "s_add_u32 s41, s41, s42", f"s_add_u32 s41, s41, {hx(WS_OF)}",
      "s_lshl_b32 s43, s66, 12", "s_sub_u32 s43, s43, s42")
    e(srd(16, pWS, pWS+1, "s43", "s41"))
    e(f"s_mov_b32 s{sTB}, 0", f"s_mov_b32 s{sTB+1}, 4096", f"s_mov_b32 s{sTW}, 0", f"s_mul_i32 s{sMT}, s{sWAVE}, 5120")
    e(f"s_lshl_b32 s41, s{sQB}, 1", "s_add_u32 s41, s41, s55", "s_lshl_b32 s41, s41, 2", "s_add_u32 s41, s41, s56", "s_mul_i32 s41, s41, 327680",
      f"s_add_u32 s41, s41, {hx(WS_PB)}")
    e(srd(20, pWS, pWS+1, 327680, "s41"))
    e(f"s_lshl_b32 s41, s{sQB}, 3", "s_lshl_b32 s42, s55, 2", "s_add_u32 s41, s41, s42", f"s_add_u32 s41, s41, s{sSP}", "s_lshl_b32 s41, s41, 1",
      f"s_and_b32 s42, s{sWAVE}, 1", "s_add_u32 s41, s41, s42", "s_mul_i32 s41, s41, 20480",
      "s_mul_i32 s42, s56, 320", "s_add_u32 s41, s41, s42", f"s_lshr_b32 s42, s{sWAVE}, 1", "s_mul_i32 s42, s42, 160", "s_add_u32 s41, s41, s42",
      "s_sub_u32 s42, 2621440, s41")
    e(srd(24, pX, pX+1, "s42", "s41")); e(srd(28, pOUT, pOUT+1, "s42", "s41"))
    e(f"s_cmp_eq_u32 s{sSP}, 0", "s_mov_b32 s44, 0xffe00000", "s_cselect_b32 s44, 0x7ff, s44", f"s_cmp_eq_u32 s{sSP}, 1", "s_cselect_b32 s44, 0x3ffc00, s44",
      f"s_and_b32 s41, s{sHEAD}, 7", "s_lshl_b32 s46, 0x01010101, s41", f"s_lshl_b32 s48, s{sQB}, 7")
    return e
def tail_vsetup():
    return E()(f"v_add_u32 v{TD}, s{sMT}, v{LX}", f"v_add_u32 v{TD+1}, 4096, v{TD}", f"v_mov_b32 v{TAD}, v{LX}", f"v_add_u32 v{TAD+1}, 61440, v{LX}",
               f"v_lshlrev_b32 v{TB8}, 3, v0", [f"v_accvgpr_write_b32 a{i}, 0" for i in range(80)])

def laststep(i=63):
    par, slot = i & 1, i % 4
    Pc = P + 16*par
    e = E()
    for dt in range(6):
        for u in range(2): e(rdV(slot, dt, u))
    e(wave0([f"buffer_load_dwordx4 v[144:147], v{LX}, {srdn(sFL)}, 0 offen sc1"]))
    Ex, Sx = sm(S1, [2, 3], Pc, 1)
    e(Ex)
    for dt in range(6):
        for u in range(2): e(rdV(slot, 6+dt, u, KF))
    e([x for _, x in Sx], CHK, "s_waitcnt lgkmcnt(12)", callsite(par), LADD, "s_nop 0")
    ts = tail_setup()
    m = pv(0, Pc)
    for k, x in enumerate(m):
        if k == 20: e("s_waitcnt lgkmcnt(0)")
        e(x, ts[:3]); del ts[:3]
    m = pv(1, Pc, src=KF)
    Xl = xlane("v_add_f32", L_, 2)
    for k, x in enumerate(m):
        e(x)
        if ts: e(ts[:2]); del ts[:2]
        elif Xl:
            e(Xl.pop(0))
            if Xl and k % 2: e(Xl.pop(0))
    e(ts, Xl)
    RI = 8
    for qt in range(4): e(f"v_rcp_f32 v{RI+2*qt}, v{L_+qt}")
    ok = newlab("K")
    chk = E()("s_waitcnt vmcnt(0)", f"s_add_u32 s{sTMP}, s{sT}, 2")
    for r in range(4): chk(f"v_subrev_u32 v{144+r}, s{sTMP}, v{144+r}")
    chk("v_max3_u32 v144, v144, v145, v146", "v_max_u32 v144, v144, v147", "v_cmp_lt_u32 vcc, 2, v144", "s_nop 1", f"s_cbranch_vccz {ok}",
        f"v_mov_b32 v2, v{LX}", poll(2, ("-1", "-1"), "0", wide=True), f"{ok}:")
    e(wave0(chk), "s_nop 3")
    k = 0
    for j in range(6):
        e(f"s_add_u32 s{sTMP}, s{sO}, {4096*j}")
        for qt in range(4):
            t = 64 + 8*(k % 4); d = 144 + 4*(k % 6); k += 1
            for hh in range(2):
                b = Oacc(2*j+hh, qt)
                for r in range(4): e(f"v_accvgpr_read_b32 v{t+4*hh+r}, a{b+r}")
            for r in range(0, 8, 2): e(f"v_pk_mul_f32 {v(t+r,2)}, {v(t+r,2)}, {v(RI+2*qt,2)} op_sel_hi:[1,0]")
            for r in range(4): e(f"v_cvt_pk_bf16_f32 v{d+r}, v{t+2*r}, v{t+2*r+1}")
            e(f"buffer_store_dwordx4 {v(d,4)}, v{LX}, {srdn(sOF_SRD)}, s{sTMP} offen offset:{1024*qt} sc1")
    return e

def tail_end():
    e = E()
    XV = 232
    e("v_and_b32 v3, 15, v0", "v_mul_u32_u24 v3, 1280, v3", "v_lshrrev_b32 v4, 4, v0", "v_lshl_add_u32 v3, v4, 3, v3", fstamp(7, "tail"))
    e("s_waitcnt vmcnt(0) lgkmcnt(0)", fstamp(8, "tail"), "s_barrier", fstamp(9, "tail"), wave0(signal(4)))
    for nt in range(5): e(f"buffer_load_dwordx2 {v(XV+2*nt,2)}, v3, s[24:27], 0 offen offset:{32*nt}")
    e(f"s_and_b32 s42, s{sWAVE}, 1", "s_mul_i32 s42, s42, 10240", f"s_lshr_b32 s43, s{sWAVE}, 1", "s_mul_i32 s43, s43, 5120", "s_add_u32 s42, s42, s43",
      f"s_add_u32 s43, s42, {OWN}", f"v_add_u32 v5, s43, v{LX}")
    for i in range(5): e(f"ds_read_b128 {v(176+4*i,4)}, v5 offset:{1024*i}")
    e(f"s_mul_i32 s41, s{sSP}, 81920", "s_add_u32 s50, s41, s42", "s_add_u32 s51, s50, 20480", "s_add_u32 s52, s50, 40960",
      "s_lshr_b32 s42, s42, 1", "s_add_u32 s53, s41, s42", "s_add_u32 s53, s53, 61440")
    for src in range(4): e(f"s_cmp_eq_u32 s{sSP}, {src}", f"s_cselect_b32 s{50+src}, 0x10000000, s{50+src}")
    e(f"s_cmp_eq_u32 s{sSP}, 3", "s_cselect_b32 s56, 0, 1.0", "s_cselect_b32 s57, 1.0, 0", f"v_add_u32 v5, 4096, v{LX}", f"s_mov_b32 s38, {hx(f2u(-math.log2(math.e)))}")
    e(wave0(["v_lshlrev_b32 v2, 2, v0"] + poll(4, ("s46", "0"), "s48")), "s_barrier", stamp(4), fstamp(10, "tail"))
    for i in range(5):
        for src in range(3):
            e(f"buffer_load_dwordx4 {v(16+16*i+4*src,4)}, v{LX if i < 4 else 5}, s[20:23], s{50+src} offen offset:{1024*(i%4)} sc1")
        e(f"buffer_load_dwordx2 {v(16+16*i+12,2)}, v{TB8}, s[20:23], s53 offen offset:{512*i} sc1")
    e("s_waitcnt lgkmcnt(0)")
    for nt in range(5):
        S = 16 + 16*nt; G = S + 12; Xr = XV + 2*nt; t = 112 + 12*nt; W = 176 + 4*nt
        e(f"s_waitcnt vmcnt({4*(4-nt) + nt})", fstamp(11, "tail") if nt == 0 else [])
        e(f"v_lshlrev_b32 v{t}, 16, v{G}", f"v_and_b32 v{t+1}, 0xffff0000, v{G}", f"v_lshlrev_b32 v{t+2}, 16, v{G+1}", f"v_and_b32 v{t+3}, 0xffff0000, v{G+1}")
        for r in range(4): e(f"v_add_f32 v{S+r}, v{S+r}, v{S+4+r}")
        for r in range(4): e(f"v_fma_f32 v{G+r}, v{W+r}, s57, v{t+r}")
        for r in range(4): e(f"v_add_f32 v{S+r}, v{S+r}, v{S+8+r}")
        for r in range(4): e(f"v_fmac_f32 v{S+r}, s56, v{W+r}")
        e(f"v_cvt_pk_bf16_f32 v{t+2}, v{G}, v{G+1}", f"v_cvt_pk_bf16_f32 v{t+3}, v{G+2}, v{G+3}",
          f"v_cvt_pk_bf16_f32 v{t}, v{S}, v{S+1}", f"v_cvt_pk_bf16_f32 v{t+1}, v{S+2}, v{S+3}")
        for k in range(2):
            e(f"v_lshlrev_b32 v{G+2*k}, 16, v{t+2+k}", f"v_and_b32 v{G+2*k+1}, 0xffff0000, v{t+2+k}",
              f"v_lshlrev_b32 v{S+2*k}, 16, v{t+k}", f"v_and_b32 v{S+2*k+1}, 0xffff0000, v{t+k}")
        for r in range(4): e(f"v_mul_f32 v{t+4+r}, s38, v{G+r}")
        for r in range(4): e(f"v_exp_f32 v{t+4+r}, v{t+4+r}")
        for r in range(4): e(f"v_add_f32 v{t+4+r}, 1.0, v{t+4+r}")
        for r in range(4): e(f"v_rcp_f32 v{t+4+r}, v{t+4+r}")
        for r in range(4): e(f"v_mul_f32 v{G+r}, v{G+r}, v{t+4+r}")
        e(f"v_cvt_pk_bf16_f32 v{t+2}, v{G}, v{G+1}", f"v_cvt_pk_bf16_f32 v{t+3}, v{G+2}, v{G+3}")
        for k in range(2): e(f"v_lshlrev_b32 v{G+2*k}, 16, v{t+2+k}", f"v_and_b32 v{G+2*k+1}, 0xffff0000, v{t+2+k}")
        for r in range(4): e(f"v_mul_f32 v{S+r}, v{S+r}, v{G+r}")
        e(f"v_cvt_pk_bf16_f32 v{t}, v{S}, v{S+1}", f"v_cvt_pk_bf16_f32 v{t+1}, v{S+2}, v{S+3}")
        for k in range(2):
            e(f"v_lshlrev_b32 v{S+2*k}, 16, v{t+k}", f"v_and_b32 v{S+2*k+1}, 0xffff0000, v{t+k}",
              f"v_lshlrev_b32 v{G+2*k}, 16, v{Xr+k}", f"v_and_b32 v{G+2*k+1}, 0xffff0000, v{Xr+k}")
        for r in range(4): e(f"v_add_f32 v{S+r}, v{S+r}, v{G+r}")
        e(f"v_cvt_pk_bf16_f32 v{t+8}, v{S}, v{S+1}", f"v_cvt_pk_bf16_f32 v{t+9}, v{S+2}, v{S+3}")
        e(f"buffer_store_dwordx2 {v(t+8,2)}, v3, s[28:31], 0 offen offset:{32*nt}" + (" sc1" if X("outsc1") else "") + (" nt" if X("outnt") else ""))
    e(fstamp(12, "tail"))
    return e

def gen(exp=""):
    sites.clear(); lab[0] = 0; EXP[0] = exp
    L = E()(kernel_head(NAME))
    L("s_cmp_ge_u32 s2, 256", "s_cbranch_scc1 F_END")
    pro = front() + (cstamp(8) if X("qcyc") else [])
    qc, q18 = qcounts()
    qloop = []
    for u in range(6): qloop += qsub(u, last=40, vmw=qc[u])
    qctl = [f"s_add_u32 s{sCNT}, s{sCNT}, 1", f"s_cmp_lt_u32 s{sCNT}, 3", "s_cbranch_scc1 F_QL"]
    ex = {18: {}, 19: {}}
    for (kind, j), (u, g0) in zip([("K", 0), ("K", 1), ("V", 0), ("K", 2), ("K", 3)], [(18, 4), (18, 20), (18, 36), (19, 4), (19, 20)]):
        m, d = kvgroup(kind, j)
        ex[u].setdefault(g0, []).extend(m)
        for t, dg in enumerate((1, 2, 3)): ex[u].setdefault(g0 + dg, []).append(d[t])
    rd = relayout_dst()
    for k, g in enumerate((36, 37, 38, 39, 44, 45, 46)): ex[19].setdefault(g, []).extend(rd[2*k:2*k+2])
    mid = qsub(18, extra=ex[18], vmw="@W19") + qsub(19, extra=ex[19]) + stamp(6) + (cstamp(9) if X("qcyc") else []) + convert() + init() + stamp(7) + (cstamp(8) if not (X("tcyc") or X("qcyc")) else [])
    mid = resolve(mid, q18)
    ctl_mid = [f"s_add_u32 s{sCNT}, s{sCNT}, 1", f"s_cmp_eq_u32 s{sCNT}, 19", "s_cbranch_scc1 F_LAST"]
    ctl_end = ["s_nop 0", f"s_cmp_lg_u32 s{sCNT}, 15", "s_cbranch_scc1 F_AL"]
    rlk = {1: "dma", 3: "out"} if not X("norl") else {}
    TD_ = [int(x[3:]) for x in exp.split() if x.startswith("kvt")] or [12]
    if TD_: rlk.update({2: "tk", 4: "tv"}); mid = mid + kv_touch_addr(TD_[0])
    def mk(i, w): return step(i, first=(i == 0), vmw=w, tail={2: ctl_mid, 4: ctl_end}.get(i, ()), rl=rlk.get(i))
    q = ["V1"]*3 + ["V2"]*3 + ["G0"]*2; ng = 2; cnts = {}
    for n in range(21):
        i = 0 if n == 0 else (n-1) % 4 + 1
        for l in mk(i, "?"):
            if "vmcnt(?)" in l:
                need = "V1" if n == 0 else "V2" if n == 1 else f"G{n-2}"
                c = len(q) - 1 - max(k for k, x in enumerate(q) if x == need)
                cnts[i] = min(cnts.get(i, 63), c)
            if l.startswith("buffer_"):
                t = re.search(r"@(\S+)", l).group(1)
                if t == "G": t = f"G{ng//6}"; ng += 1
                q.append(t)
    sites.clear()
    s0 = mk(0, cnts[0])
    body = [mk(i, cnts[i]) for i in range(1, 5)]
    if X("showcnt"): print("step counts", cnts, "q counts", qc)
    hooks = E()(wave0(signal(2)), "s_branch F_AL")
    last = (cstamp(9) if not (X("tcyc") or X("qcyc")) else []) + laststep()
    h1 = E()(stamp(10), fstamp(1, "tail"), tail_vsetup(), "s_waitcnt vmcnt(0)", fstamp(2, "tail"), "s_barrier", wave0(signal(3)), fstamp(3, "tail"))
    preS, bodyS, ctlS, cS = tloop(False)
    preG, bodyG, ctlG, cG = tloop(True)
    hS = E()(wave0(["v_lshlrev_b32 v2, 2, v0"] + poll(3, ("s44", "0"), "s48")), "s_barrier", stamp(11), fstamp(4, "tail"), preS, cstamp(8) if X("tcyc") else [])
    hG = E()(stamp(11), fstamp(4, "tail"), preG, cstamp(8) if X("tcyc") else [])
    sim = tpre(False) + [x for st in range(28) for x in tstage(st, False, cS)]
    q28 = [re.search(r"@(\S+)", l).group(1) for l in sim if l.startswith("buffer_")][-24:]
    finS = E()(resolve(tfinal(cS), q28), stamp(12), fstamp(6, "tail"), cstamp(9) if X("tcyc") else [])
    finG = E()(stamp(12), fstamp(6, "tail"), cstamp(9) if X("tcyc") else [], gfinal())
    end = tail_end()
    L(pro, ".p2align 6", "F_QL:", qloop, qctl, mid, s0, ".p2align 6", "F_AL:", *body, hooks, "F_LAST:", last,
      h1, f"s_cmp_eq_u32 s{sSP}, 3", "s_cbranch_scc1 F_TG", hS, ".p2align 6", "F_TLS:", bodyS, ctlS, finS, "s_branch F_TE",
      "F_TG:", hG, ".p2align 6", "F_TLG:", bodyG, ctlG, finG, "F_TE:", end, stamp_flush(0, 13, pWS, f"s{sWAVE}"), "F_END:", "s_endpgm")
    for k, par in enumerate(sites):
        L(f"F_TR{k}:", f"s_call_b64 s[{sRET}:{sRET+1}], F_SLOW{par}", f"s_branch F_BK{k}")
    L(slow(0), slow(1))
    flat = lambda Z: [y for x in Z for y in x]
    tr = pro + (qloop + qctl)*3 + mid + s0 + flat(body) + flat(body) + flat(body[:2]) + last + h1
    check(tr + hS + (bodyS + ctlS)*7 + finS + end, "S")
    check(last + h1 + hG + (bodyG + ctlG)*6 + finG + end, "G")
    for par in range(2):
        b = body[1] if par == 0 else body[0]
        idx = [i for i, x in enumerate(b) if x.startswith("F_BK")][0]
        prev = body[0] if par == 0 else body[3]
        check(prev + b[:idx] + slow(par) + b[idx:] + (body[2] if par == 0 else body[1]), f"slow{par}")
    return L, kernel_desc(NAME, 512, 256), "; @launch grid=(256,1,1) block=(256,1,1) lds=163840"

def build(path, **kw):
    HDR = open("recurrent_scan__gqa_block_cached__dense_activation_relu__prompt.s.ref").read().split("; Override launch")[0]
    L, D, H = gen(**kw)
    L = [re.sub(r"\s*; @\S+$", "", l) for l in L]
    open(path, "w").write(HDR + H + "\n" + '.amdgcn_target "amdgcn-amd-amdhsa--gfx950"\n' + "\n".join(L) + "\n" + "\n".join(D) + "\n")
if __name__ == "__main__":
    for flag, mode in (("--ts", None), ("--tail", "tail"), ("--front", "front")):
        if flag in sys.argv:
            OPT["ts"] = True; OPT["mode"] = mode; sys.argv.remove(flag)
    build(sys.argv[1], exp=" ".join(sys.argv[2:]))
```

```python
from common import *
import re, sys

NAME = "recurrent_scan__gqa_block_cached__dense_activation_relu__prompt_kernel"
MF = "v_mfma_f32_16x16x32_bf16"
EXP = [""]
def X(flag): return flag in EXP[0].split()

KR, VR = 0, 49152
WA, WB = 65536, 114688
ST = 122880
OWN = 81920
pX, pK, pV, pWQ, pWO, pWS, pW1, pW2, pOUT, pDBG = 4, 6, 8, 10, 68, 70, 72, 74, 76, 78
sK_SRD, sV_SRD, sWQ_SRD, sW1_SRD, sXF_SRD, sOF_SRD, sFL = 12, 16, 20, 24, 28, 32, 80
sWAVE, sHEAD, sM64, sKo = 36, 37, 38, 39
sMK, sMV, sMW = 40, 44, 48
sWq, sW1, sX, sCNT, sC, sTHR, sO, sVo, sRET = 54, 55, 56, 57, 58, 60, 61, 63, 64
sH = [6, 7, 62]
sTMP, sU, sT, sQB = 66, 67, 84, 85
sRSRC, sRDST, sRM, sRS = 8, 20, 24, 25
QV, NM, S0, S1, P, KF, VF, ET, T_, L_ = 16, 48, 64, 96, 112, 176, 200, 224, 232, 236
AK, AV, DK, DV, CK, LX, RLV = 240, 242, 246, 249, 224, 253, 254
AF, DA, DB, DH, AWA, AWB, AH, LXB, LX8, LXB2 = 16, 40, 44, 46, 192, 200, 204, 207, 208, 209
CSCALE = math.log2(math.e) / math.sqrt(192.0)
THR = 2.0 ** 30
SPIN = 1 << 18

def srdn(b): return f"s[{b}:{b+3}]"
class E(list):
    def __call__(self, *x):
        for y in x:
            if isinstance(y, list): self.extend(y)
            else: self.append(y)
        return self
lab = [0]
def newlab(p):
    lab[0] += 1; return f"F_{p}{lab[0]}"
def wave0(body):
    l = newlab("W")
    return E()(f"s_cmp_lg_u32 s{sWAVE}, 0", f"s_cbranch_scc1 {l}", body, f"{l}:")

def poll(phase, mask, soff, wide=False, vaddr="v2"):
    l, d = newlab("P"), newlab("D")
    e = E()
    e(f"s_mov_b32 exec_lo, {mask[0]}", f"s_mov_b32 exec_hi, {mask[1]}", f"s_add_u32 s{sTMP}, s{sT}, {phase}", f"s_mov_b32 s{sU}, 0", f"{l}:")
    if wide:
        e(f"buffer_load_dwordx4 v[4:7], {vaddr}, {srdn(sFL)}, {soff} offen sc1", "s_waitcnt vmcnt(0)")
        for r in range(4): e(f"v_subrev_u32 v{4+r}, s{sTMP}, v{4+r}")
        e("v_max3_u32 v4, v4, v5, v6", "v_max_u32 v4, v4, v7")
    else:
        e(f"buffer_load_dword v4, {vaddr}, {srdn(sFL)}, {soff} offen sc1", "s_waitcnt vmcnt(0)", f"v_subrev_u32 v4, s{sTMP}, v4")
    e(f"v_cmp_lt_u32 vcc, {4-phase}, v4", f"s_add_u32 s{sU}, s{sU}, 1", f"s_cmp_gt_u32 s{sU}, {SPIN}", f"s_cbranch_scc1 {d}",
      f"s_cbranch_vccnz {l}", f"{d}:", "s_mov_b64 exec, -1")
    return e
def signal(phase):
    return E()(f"s_add_u32 s{sTMP}, s{sT}, {phase}", f"s_lshl_b32 s{sU}, s{sQB}, 5", f"s_add_u32 s{sU}, s{sU}, s{sHEAD}", f"s_lshl_b32 s{sU}, s{sU}, 2",
               f"v_mov_b32 v4, s{sTMP}", "v_mov_b32 v5, 0", "s_mov_b64 exec, 1",
               f"buffer_store_dword v4, v5, {srdn(sFL)}, s{sU} offen sc1", "s_mov_b64 exec, -1")

def qacc(ds, tb, qt):
    n = (ds*2 + tb)*4 + qt
    return R("a", 4*n) if n < 24 else R("v", 48 + 4*(n-24))
def hacc(tt, qt): return R("v", 144 + 4*(tt*4 + qt))
def BF(s, kk, qt): return a(96 + 32*(s % 3) + 16*kk + 4*qt, 4)
def ldB(s): return [f"buffer_load_dwordx4 {BF(s,kk,qt)}, v{LXB2 if kk else LXB}, {srdn(sXF_SRD)}, s{sX} offen offset:{1024*qt} sc1 ; @B{s}" for kk in range(2) for qt in range(4)]
advX = [f"s_add_u32 s{sX}, s{sX}, 8192"]
advW = [f"s_add_u32 s{sWq}, s{sWq}, 786432", f"s_add_u32 s{sW1}, s{sW1}, 196608"]
def dmaW(u):
    if u % 2 == 0: return [f"buffer_load_dwordx4 v{DA+t}, {srdn(sWQ_SRD)}, s{sWq} offen offset:{1024*t} lds ; @W{u}" for t in range(4)]
    return [f"buffer_load_dwordx4 v{DB+t}, {srdn(sWQ_SRD)}, s{sWq} offen offset:{1024*t} lds ; @W{u}" for t in range(2)] + \
           [f"buffer_load_dwordx4 v{DH+t}, {srdn(sW1_SRD)}, s{sW1} offen offset:{1024*(t+2)} lds ; @W{u}" for t in range(2)]
TCH, TCD = 210, 212
sTq, sT1 = 64, 65
def touch(): return [f"buffer_load_dword v{TCD}, v{TCH}, {srdn(sWQ_SRD)}, s{sTq} offen ; @T", f"buffer_load_dword v{TCD}, v{TCH+1}, {srdn(sW1_SRD)}, s{sT1} offen offset:3072 ; @T"]
advT = [f"s_add_u32 s{sTq}, s{sTq}, {3*786432}", f"s_add_u32 s{sT1}, s{sT1}, {3*196608}"]
def touch_addr(nst):
    return E()("v_mul_u32_u24 v1, 171, v0", "v_lshrrev_b32 v1, 9, v1", "v_mul_u32_u24 v2, 3, v1", "v_sub_u32 v2, v0, v2",
               "v_lshrrev_b32 v3, 1, v1", "v_and_b32 v1, 1, v1", "v_lshl_add_u32 v1, v3, 6, v1", f"v_add_u32 v1, s66, v1",
               "v_mul_lo_u32 v1, v1, s67", "v_lshl_add_u32 v1, v2, 7, v1", f"v_cmp_gt_u32 vcc, {6*nst}, v0", "v_bfrev_b32 v8, 1",
               "v_lshrrev_b32 v3, 2, v0", "v_bfe_u32 v2, v0, 1, 1", f"v_cndmask_b32 v{TCH}, v8, v1, vcc",
               "v_lshl_add_u32 v3, v3, 6, v2", "v_add_u32 v3, s66, v3", f"v_cmp_gt_u32 vcc, {4*nst}, v0", "v_mul_u32_u24 v3, 3072, v3",
               "v_and_b32 v2, 1, v0", "v_mul_u32_u24 v2, 92, v2", "v_add_u32 v3, v3, v2", f"v_cndmask_b32 v{TCH+1}, v8, v3, vcc")
def m0W(u): return f"s_mov_b32 m0, s{sMW + u % 6}"
def qtiles(u): return list(range(8)) if u % 2 == 0 else list(range(8, 15))
def qrd(s, T, kk, uu):
    dst = v(AF + 8*(T % 3) + 4*kk + 2*uu, 2)
    if T < 8: return f"ds_read_b64_tr_b16 {dst}, v{AWA + T} offset:{(s % 3)*16384 + kk*8192 + uu*1024}"
    reg = AWB + T - 8 if T < 12 else AH + T - 12
    return f"ds_read_b64_tr_b16 {dst}, v{reg} offset:{(s % 3)*16384 + kk*8192 + uu*512}"
def qsub(u, last=20, extra=None, vmw=None):
    extra = extra or {}
    s = u >> 1; TL = qtiles(u); nT = len(TL)
    L = []
    lb = ldB(s + 2) if (u % 2 == 0 and s + 2 < last//2) else []
    dw = dmaW(u + 5) if u + 5 < last else []
    for ti, T in enumerate(TL):
        for p in range(4):
            qt = p if T % 2 == 0 else 3 - p
            acc = (qacc(T >> 1, T & 1, qt) if T < 12 else hacc(T-12, qt))(4)
            for kk in range(2):
                g = 2*p + kk; gi = 8*ti + g
                L.append(f"{MF} {acc}, {v(AF + 8*(T % 3) + 4*kk, 4)}, {BF(s, kk, qt)}, {acc}")
                s2, T2 = s + (T+2)//15, (T+2) % 15
                if g < 4:
                    if 2*s2 < last: L.append(qrd(s2, T2, g >> 1, g & 1))
                    if g == 3:
                        left = 15*(last//2) - 1 - (15*s + T)
                        if left >= 1: L.append(f"s_waitcnt lgkmcnt({4 if left >= 2 else 0})")
                if lb and ti < 4 and g in (4, 6): L.append(lb[2*ti + (g-4)//2])
                if lb and ti == 4 and g == 4: L += advX
                if u % 6 == 0 and last > 20 and not X("notouch"):
                    if ti == 4 and g == 6: L.append(touch()[0])
                    if ti == 5 and g == 4: L.append(touch()[1])
                    if ti == 5 and g == 5: L += advT
                if ti == nT-3 and g == 6 and dw: L.append(m0W(u+5))
                if ti == nT-3 and g == 7 and vmw is not None: L += [f"s_waitcnt vmcnt({vmw})", "s_barrier"]
                if dw and ti >= nT-2 and g in (4, 6): L.append(dw[2*(ti-nT+2) + (g-4)//2])
                if dw and u % 2 == 0 and ti == nT-1 and g == 7: L += advW
                L += extra.get(gi, [])
    return L
def qcounts():
    q = [] if X("allW") else ["B1"]*8 + ["W2"]*4 + ["W3"]*4 + ["W4"]*4
    out = {}
    for u in range(18):
        for l in qsub(u, last=40, vmw="?"):
            if "vmcnt(?)" in l:
                need = ["W%d" % (u+1)] + (["B%d" % ((u+1)//2)] if u % 2 else [])
                idx = [i for i, x in enumerate(q) if x in need]
                if idx: out[u % 6] = min(out.get(u % 6, 63), len(q) - 1 - max(idx))
            if l.startswith("buffer_"): q.append(re.search(r"@(\S+)", l).group(1))
    return out, q

def convert():
    e = E()("s_nop 7")
    k = 0
    for tt in range(3):
        for qt in range(4):
            h = hacc(tt, qt); d = 2 + 2*(k % 6); k += 1
            e(f"v_cvt_pk_bf16_f32 v{d}, {h(1,0)}, {h(1,1)}", f"v_cvt_pk_bf16_f32 v{d+1}, {h(1,2)}, {h(1,3)}",
              f"v_pk_max_i16 v{d}, v{d}, 0", f"v_pk_max_i16 v{d+1}, v{d+1}, 0",
              f"buffer_store_dwordx2 {v(d,2)}, v{LX8}, {srdn(sOF_SRD)}, s{sH[tt]} offen offset:{1024*qt} sc1")
    for ds in (3, 4, 5, 0, 1, 2):
        dsts = []
        for qt in range(4):
            f = ds*4 + qt
            Xr, Yr = qacc(ds, 0, qt), qacc(ds, 1, qt)
            if Xr.f == "a":
                tx, ty = R("v", 144 + 8*qt), R("v", 148 + 8*qt)
                for r in range(4): e(f"v_accvgpr_read_b32 {tx(1,r)}, {Xr(1,r)}")
                for r in range(4): e(f"v_accvgpr_read_b32 {ty(1,r)}, {Yr(1,r)}")
                Xr, Yr = tx, ty
            d = QV + 4*(f-16) if f >= 16 else 176 + 4*qt
            dsts.append(d)
            for Z in (Xr, Yr):
                for r in (0, 2): e(f"v_pk_mul_f32 {Z(2,r)}, {Z(2,r)}, s[{sC}:{sC+1}]")
            e(f"v_cvt_pk_bf16_f32 v{d}, {Xr(1,0)}, {Xr(1,1)}", f"v_cvt_pk_bf16_f32 v{d+1}, {Xr(1,2)}, {Xr(1,3)}",
              f"v_cvt_pk_bf16_f32 v{d+2}, {Yr(1,0)}, {Yr(1,1)}", f"v_cvt_pk_bf16_f32 v{d+3}, {Yr(1,2)}, {Yr(1,3)}")
        e("s_mov_b32 exec_lo, 0")
        for d in dsts: e(f"v_swap_b32 v{d}, v{d+2}", f"v_swap_b32 v{d+1}, v{d+3}")
        e("s_mov_b32 exec_lo, -1")
        if ds < 4:
            for qt in range(4):
                for r in range(4): e(f"v_accvgpr_write_b32 a{192 + 4*(ds*4+qt) + r}, v{dsts[qt]+r}")
    return e

def Qf(f): return a(192 + 4*f, 4) if f < 16 else v(QV + 4*(f-16), 4)
def Oacc(dt, qt): return (dt*4 + qt)*4
def dmaK(t): return f"buffer_load_dwordx4 v{DK+t}, {srdn(sK_SRD)}, s{sKo} offen offset:{1024*t} lds"
def dmaV(t): return f"buffer_load_dwordx4 v{DV+t}, {srdn(sV_SRD)}, s{sVo} offen offset:{1024*t} lds"
def kvgroup(kind, j):
    so = sKo if kind == "K" else sVo
    return [f"s_mov_b32 m0, s{(sMK if kind=='K' else sMV) + j}", f"s_mov_b32 s{so}, {12288*j}"], [(dmaK(t) if kind == "K" else dmaV(t)) + f" ; @{kind}{j}" for t in range(3)]
def rdK(slot, kt, ds, dst=KF): return f"ds_read_b128 {v(dst+4*ds,4)}, v{AK+(ds&1)} offset:{slot*12288 + kt*6144 + (ds>>1)*128}"
def Pb(t): return P + 16*(t % 4)
def rdVp(m2, part, dst=VF):
    return [f"ds_read_b64_tr_b16 {v(dst + 8*dl + 4*tl + 2*u, 2)}, v{AV + ((3*part+dl) & 3)} offset:{((m2+tl) % 4)*12288 + u*6144 + ((3*part+dl) >> 2)*128}"
            for dl in range(3) for tl in range(2) for u in range(2)]
def qk(dst, src=KF, czero=False):
    o = []
    for qt in range(4):
        for ds in range(6):
            d = v(dst+4*qt, 4)
            c = ("0" if czero else v(NM+4*qt, 4)) if ds == 0 else d
            o.append(f"{MF} {d}, {v(src+4*ds,4)}, {Qf(ds*4+qt)}, {c}")
    return o
def pv(m2, part, czero=False, src=VF):
    o = []
    for dl in range(3):
        for p in range(4):
            qt = p if (3*part + dl) % 2 == 0 else 3 - p
            acc = a(Oacc(3*part+dl, qt), 4)
            for tl in range(2):
                o.append(f"{MF} {acc}, {v(src + 8*dl + 4*tl, 4)}, {v(Pb(m2+tl) + 4*qt, 4)}, {'0' if czero and tl == 0 else acc}")
    return o
def sm(src, qts, Pb, kt):
    Ex, Sx = [], []
    k = 0
    for qt in qts:
        for pr in range(2):
            t0 = ET + 2*k; t1 = t0 + 1; k += 1
            Ex += [f"v_exp_f32 v{t0}, v{src+4*qt+2*pr}", f"v_exp_f32 v{t1}, v{src+4*qt+2*pr+1}"]
            n = len(Ex)
            if kt == 0 and pr == 0: Sx.append((n, f"v_add_f32 v{T_+qt}, v{t0}, v{t1}"))
            else: Sx += [(n-1, f"v_add_f32 v{T_+qt}, v{T_+qt}, v{t0}"), (n, f"v_add_f32 v{T_+qt}, v{T_+qt}, v{t1}")]
            Sx.append((n, f"v_cvt_pk_bf16_f32 v{Pb+4*qt+2*kt+pr}, v{t0}, v{t1}"))
    return Ex, Sx
def quarter(mf, pat, Ex, Sx, D, B, salu):
    assert len(pat) == len(mf) == 24, (pat, len(pat))
    out = []; ei = si = di = bi = 0
    for gi, m in enumerate(mf):
        out.append(m); ty = pat[gi]
        sc = salu.get(gi, [])
        def take(n):
            nonlocal si
            r = []
            while n > 0 and si < len(Sx) and Sx[si][0] <= ei: r.append(Sx[si][1]); si += 1; n -= 1
            return r
        if ty == "e": out += sc + [Ex[ei]]; ei += 1
        elif ty == "d": out += [D[di]] + take(1) + sc; di += 1
        elif ty == "a": out += sc + take(2)
        elif ty == "1": out += sc + take(1)
        elif ty == "b": out += sc + [B[bi]]; bi += 1
        elif ty == "-": out += sc
        else: raise ValueError(ty)
    assert ei == len(Ex) and si == len(Sx) and di == len(D) and bi == len(B), (pat, ei, len(Ex), si, len(Sx), di, len(D), bi, len(B))
    return out
P1 = "ee" + "de"*6 + "d"*6 + "a1b-"
P2 = "de"*6 + "ee" + "baabaa" + "----"
P3 = "ed"*8 + "dddd" + "b---"
P4 = "ebeb" + "de"*6 + "aaa" + "-----"
CHK = [f"v_max3_f32 v{CK}, v{T_}, v{T_+1}, v{T_+2}", f"v_max_f32 v{CK}, v{CK}, v{T_+3}", f"v_cmp_lt_f32 vcc, s{sTHR}, v{CK}"]
LADD = [f"v_add_f32 v{L_+q}, v{L_+q}, v{T_+q}" for q in range(4)]
sites = []
def callsite(par):
    k = len(sites); sites.append(par)
    return [f"s_cbranch_vccnz F_TR{k}", f"F_BK{k}:"]
def step(i, vmw=12, tail=(), rl=None):
    par, slot = i & 1, i % 4
    S0n = S0 + 16*(1-par); Pc = Pb(i); Pn = Pb(i+1)
    m2 = i-1 if par else i-2
    p0 = 0 if par else 2
    nopv = i == 0; cz = i in (1, 2)
    mK = lambda j: f"s_mov_b32 m0, s{sMK + j % 4}"
    mV = lambda j: f"s_mov_b32 m0, s{sMV + j % 4}"
    aK = f"s_add_u32 s{sKo}, s{sKo}, 12288"; aV = f"s_add_u32 s{sVo}, s{sVo}, 12288"
    if par:
        B1 = [dmaV(2) + f" ; @V{i+1}"]; B2 = [dmaV(0) + f" ; @V{i+2}", dmaV(1) + f" ; @V{i+2}"]; B3 = [dmaV(2) + f" ; @V{i+2}"]
        B4 = [dmaK(0) + f" ; @K{i+4}", dmaK(1) + f" ; @K{i+4}"]; m2_, a2, a3, m4 = mV(i+2), aV, aV, mK(i+4)
    else:
        B1 = [dmaK(2) + f" ; @K{i+3}"]; B2 = [dmaK(0) + f" ; @K{i+4}", dmaK(1) + f" ; @K{i+4}"]; B3 = [dmaK(2) + f" ; @K{i+4}"]
        B4 = [dmaV(0) + f" ; @V{i+2}", dmaV(1) + f" ; @V{i+2}"]; m2_, a2, a3, m4 = mK(i+4), aK, aK, mV(i+2)
    L = []
    def emit(mf, pat, Ex, Sx, D, B, sal):
        if mf is None:
            sc = [x for g in sorted(sal) for x in sal[g] if not x.startswith("s_waitcnt")]
            return D + sc + ["s_nop 3"] + B + Ex + [x for _, x in Sx] + ["s_waitcnt lgkmcnt(0)"]
        return quarter(mf, pat, Ex, Sx, D, B, sal)
    Ex, Sx = sm(S1, [2, 3], Pc, 1)
    D1 = rdVp(m2, p0) if not nopv else []
    L += quarter(qk(S0n), P1 if D1 else P1.replace("d", "1"), Ex, Sx + [(8, x) for x in CHK], D1, B1, {23: ["s_waitcnt lgkmcnt(6)"]} if D1 else {})
    L += callsite(i % 4)
    Ex, Sx = sm(S0n, [0, 1], Pn, 0)
    pat = P2; D = [rdK((slot+1) % 4, 1, ds) for ds in range(6)]; B = B2
    sal = {3: [a2], 7: ["s_waitcnt lgkmcnt(4)"], 13: [m2_], 23: ["s_waitcnt lgkmcnt(0)"]}
    if rl == "dma":
        pat = P2[:20] + "b---"; B = B + [rl_dma() + " ; @R"]
        sal.update({18: [f"s_cmp_lt_u32 s{sCNT}, 9"], 19: [f"s_mov_b32 m0, s{sRM}"], 21: [f"s_cselect_b32 s{sTMP}, 128, s3"],
                    22: [m2_, f"s_add_u32 s{sRS}, s{sRS}, s{sTMP}"], 23: ["s_waitcnt lgkmcnt(0)", f"s_add_u32 s{sRM}, s{sRM}, 1024"]})
    if rl in ("tk", "tv"):
        pat = P2[:20] + "b---"
        B = B + [f"buffer_load_dword v1, v{KVT}, {srdn(sK_SRD if rl == 'tk' else sV_SRD)}, s{sKT} offen ; @T"]
        if rl == "tk": sal[22] = [f"s_add_u32 s{sKT}, s{sKT}, 49152"]
    if rl == "out":
        pat = P2[:20] + "dd--"; D = D + [rl_rd(0), rl_rd(1)]; sal[23] = ["s_waitcnt lgkmcnt(2)"]
    L += emit(None if nopv else pv(m2, p0, cz), pat, Ex, [(0, x) for x in LADD] + Sx, D, B, sal)
    Ex, Sx = sm(S0n, [2, 3], Pn, 0)
    D3 = rdVp(m2, p0+1) if not nopv else []
    sal = {21: [a3], 23: [f"s_waitcnt vmcnt({vmw}) lgkmcnt(0)", "s_barrier"]}
    L += quarter(qk(S1), P3 if D3 else P3.replace("d", "1"), Ex, Sx, D3, B3, sal)
    Ex, Sx = sm(S1, [0, 1], Pn, 1)
    sal = {0: [m4], 22: ["s_waitcnt lgkmcnt(0)"]}
    pat = P4; B = B4
    tail = list(tail)
    if tail:
        sal[19] = tail[:1]; sal[20] = tail[1:2]; sal[23] = tail[2:]
    if rl == "out":
        pat = P4[:19] + "b1---"; B = B + [rl_st() + " ; @S"]
        sal.update({5: [f"s_cmp_lt_u32 s{sCNT}, 10"], 7: [f"s_cselect_b32 s{sRJ}, 1024, 0"], 9: [f"s_sub_u32 s{sTMP}, s{sCNT}, 1"],
                    11: [f"s_cmp_lt_u32 s{sTMP}, 10"], 13: [f"s_cselect_b32 s{sTMP}, s{sRO}, s3"], 15: [f"s_cselect_b32 s{sRI}, 4096, 0"],
                    16: [f"s_add_u32 s{sRO}, s{sRO}, s{sRI}"], 17: [f"s_lshr_b32 s{sRI}, s{sRI}, 10"], 18: [f"s_add_u32 s{sRR}, s{sRR}, s{sRI}"],
                    20: [f"s_cmp_gt_u32 s{sRR}, 9"], 21: [f"s_cselect_b32 s{sRI}, {WF160 - 10240}, 0", f"s_cselect_b32 s{sTMP}, 10, 0"],
                    22: ["s_waitcnt lgkmcnt(0)", f"s_add_u32 s{sRO}, s{sRO}, s{sRI}"], 23: [f"s_sub_u32 s{sRR}, s{sRR}, s{sTMP}"]})
        Sx = Sx + [(8, f"v_add_u32 v{RTV}, s{sRJ}, v{RTV}")]
    L += emit(None if nopv else pv(m2, p0+1, cz), pat, Ex, Sx, [rdK((slot+2) % 4, 0, ds) for ds in range(6)], B, sal)
    return L
sRJ, sKT, KVT = 59, 58, 252
def kv_touch_addr(D):
    return E()(f"s_lshl_b32 s66, s{sQB}, 2", f"s_add_u32 s66, s66, s{sWAVE}", "s_mul_i32 s66, s66, 1536", "v_lshlrev_b32 v3, 7, v0", "v_add_u32 v3, s66, v3",
               "v_cmp_gt_u32 vcc, 12, v0", "v_bfrev_b32 v2, 1", f"s_mov_b32 s{sKT}, {D*12288}", f"v_cndmask_b32 v{KVT}, v2, v3, vcc")
def xlane(op, dst, tmp):
    L = []
    for sw in ("v_permlane16_swap_b32", "v_permlane32_swap_b32"):
        L += [f"v_mov_b32 v{tmp+qt}, v{dst+qt}" for qt in range(4)] + ["s_nop 1"]
        L += [f"{sw} v{dst+qt}, v{tmp+qt}" for qt in range(4)]
        L += [f"{op} v{dst+qt}, v{dst+qt}, v{tmp+qt}" for qt in range(4)]
    return L
def rowmax(dst, srcs, tmp):
    L = []
    for qt in range(4):
        r = srcs(qt); d = dst + qt
        L += [f"v_max3_f32 v{d}, v{r[0]}, v{r[1]}, v{r[2]}", f"v_max3_f32 v{d}, v{d}, v{r[3]}, v{r[4]}",
              f"v_max3_f32 v{d}, v{d}, v{r[5]}, v{r[6]}", f"v_max_f32 v{d}, v{d}, v{r[7]}"]
    return L + xlane("v_max_f32", dst, tmp)
def init():
    e = E()("s_waitcnt vmcnt(@K0)", "s_barrier", fstamp(3, "conv"))
    for ds in range(6): e(rdK(0, 0, ds))
    for ds in range(6): e(rdK(0, 1, ds, VF))
    m, d = kvgroup("V", 1); e(m, d)
    m, d = kvgroup("K", 3); e(m, d[:2])
    e(kv_touch_addr(4))
    for _ in range(2):
        e(f"buffer_load_dword v1, v{KVT}, {srdn(sK_SRD)}, s{sKT} offen ; @T", f"buffer_load_dword v1, v{KVT}, {srdn(sV_SRD)}, s{sKT} offen ; @T", f"s_add_u32 s{sKT}, s{sKT}, 49152")
    e(f"s_mov_b32 s{sVo}, {2*12288}")
    for q in range(4): e(f"v_mov_b32 v{L_+q}, 0")
    e(fstamp(4, "conv"), "s_waitcnt lgkmcnt(6)", qk(S0, KF, True), "s_waitcnt vmcnt(@K1) lgkmcnt(0)", "s_barrier", fstamp(5, "conv"))
    m = qk(S1, VF, True)
    rd = [rdK(1, 0, ds) for ds in range(6)]
    for i, x in enumerate(m):
        e(x)
        if i < 6: e(rd[i])
    e("s_nop 7", fstamp(6, "conv"))
    D, TM = 2, 6
    e(rowmax(D, lambda qt: [S0+4*qt+r for r in range(4)] + [S1+4*qt+r for r in range(4)], TM))
    for qt in range(4): e(f"v_ceil_f32 v{D+qt}, v{D+qt}")
    for qt in range(4):
        for r in range(4):
            e(f"v_sub_f32 v{NM+4*qt+r}, 0, v{D+qt}", f"v_sub_f32 v{S0+4*qt+r}, v{S0+4*qt+r}, v{D+qt}", f"v_sub_f32 v{S1+4*qt+r}, v{S1+4*qt+r}, v{D+qt}")
    for src, qts, kt in ((S0, [0, 1], 0), (S0, [2, 3], 0), (S1, [0, 1], 1)):
        Ex, Sx = sm(src, qts, Pb(0), kt)
        e(Ex, [x for _, x in Sx])
    e("s_waitcnt lgkmcnt(0)")
    return e
def slow(k):
    par = k & 1
    S0c = S0 + 16*par; S0n = S0 + 16*(1-par)
    e = E()(f"F_SLOW{k}:", "s_nop 7", "s_nop 7")
    D, TM = 2, 6
    e(rowmax(D, lambda qt: [S0c+4*qt+r for r in range(4)] + [S1+4*qt+r for r in range(4)], TM))
    for qt in range(4): e(f"v_max_f32 v{D+qt}, 0, v{D+qt}", f"v_ceil_f32 v{D+qt}, v{D+qt}", f"v_sub_f32 v{TM+qt}, 0, v{D+qt}", f"v_cvt_i32_f32 v{TM+qt}, v{TM+qt}")
    for qt in range(4):
        e(f"v_ldexp_f32 v{L_+qt}, v{L_+qt}, v{TM+qt}")
        for base in (NM, S0c, S1, S0n):
            for r in range(4): e(f"v_sub_f32 v{base+4*qt+r}, v{base+4*qt+r}, v{D+qt}")
    for t in ([k-1] if par else [k-1, k-2]):
        for qt in range(4):
            for r in range(4):
                p = Pb(t) + 4*qt + r
                e(f"v_lshlrev_b32 v10, 16, v{p}", f"v_and_b32 v11, 0xffff0000, v{p}", f"v_ldexp_f32 v10, v10, v{TM+qt}", f"v_ldexp_f32 v11, v11, v{TM+qt}",
                  f"v_cvt_pk_bf16_f32 v{p}, v10, v11")
    for dt in range(12):
        for qt in range(4):
            b = Oacc(dt, qt)
            for r in range(2):
                e(f"v_accvgpr_read_b32 v10, a{b+2*r}", f"v_accvgpr_read_b32 v11, a{b+2*r+1}", f"v_ldexp_f32 v10, v10, v{TM+qt}", f"v_ldexp_f32 v11, v11, v{TM+qt}",
                  f"v_accvgpr_write_b32 a{b+2*r}, v10", f"v_accvgpr_write_b32 a{b+2*r+1}, v11")
    for src, qts, kt in ((S0c, [0, 1], 0), (S0c, [2, 3], 0), (S1, [0, 1], 1), (S1, [2, 3], 1)):
        Ex, Sx = sm(src, qts, Pb(k), kt)
        e(Ex, [x for _, x in Sx])
    e("s_nop 1", f"s_setpc_b64 s[{sRET}:{sRET+1}]")
    return e

def relayout_src():
    return E()("s_cmp_lt_u32 s2, 192", f"s_cselect_b32 s{sRSRC}, s{pWO}, s{pW2}", f"s_cselect_b32 s{sRSRC+1}, s{pWO+1}, s{pW2+1}", "s_cselect_b32 s66, 0, 192",
               "s_sub_u32 s66, s2, s66", "s_mul_i32 s66, s66, 40960", f"s_add_u32 s{sRSRC}, s{sRSRC}, s66", f"s_addc_u32 s{sRSRC+1}, s{sRSRC+1}, 0",
               "s_cmp_lt_u32 s2, 240", f"s_cselect_b32 s{sRSRC+2}, 40960, 0", f"s_mov_b32 s{sRSRC+3}, 0x20000")
def relayout_dst():
    return E()("s_mul_i32 s66, s2, 10240", f"s_add_u32 s67, s66, {hx(WS_WF)}", f"s_sub_u32 s{sRDST+2}, {4*WF160}, s66",
               "s_cmp_lt_u32 s2, 240", f"s_cselect_b32 s{sRDST+2}, s{sRDST+2}, 0", f"s_cselect_b32 s67, s67, {hx(WS_WF)}",
               f"s_add_u32 s{sRDST}, s{pWS}, s67", f"s_addc_u32 s{sRDST+1}, s{pWS+1}, 0", f"s_mov_b32 s{sRDST+3}, 0x20000",
               f"s_mul_i32 s{sRM}, s{sWAVE}, 10240", f"s_add_u32 s{sRM}, s{sRM}, {ST}", f"s_mov_b32 s{sRS}, 0",
               f"s_lshl_b32 s{sRO}, s{sWAVE}, 10", f"s_mov_b32 s{sRR}, s{sWAVE}")
RTV, RTD = 255, 12
sRO, sRR, sRI = 26, 27, 62
def relayout_vaddr():
    return E()("v_lshrrev_b32 v1, 2, v0", "v_and_b32 v1, 7, v1", "v_lshlrev_b32 v2, 7, v1", "v_lshrrev_b32 v3, 5, v0", "v_mul_u32_u24 v3, 10240, v3", "v_add_u32 v2, v2, v3",
               "v_and_b32 v3, 3, v0", "v_lshl_add_u32 v2, v3, 3, v2", f"v_add_u32 v2, {ST - 1024}, v2", "v_lshrrev_b32 v1, 1, v1", "v_lshlrev_b32 v1, 5, v1",
               f"s_lshl_b32 s66, s{sWAVE}, 5", "v_xor_b32 v1, s66, v1", f"v_add_u32 v{RTV}, v1, v2")
def rl_dma(): return f"buffer_load_dwordx4 v{RLV}, {srdn(sRSRC)}, s{sRS} offen lds"
def rl_rd(u): return f"ds_read_b64_tr_b16 {v(RTD+2*u,2)}, v{RTV} offset:{20480*u}"
def rl_st(): return f"buffer_store_dwordx4 {v(RTD,4)}, v{LX}, {srdn(sRDST)}, s{sTMP} offen sc1"

def front():
    e = E()
    e("s_load_dwordx8 s[4:11], s[0:1], 0", f"s_load_dwordx2 s[{pWO}:{pWO+1}], s[0:1], 32", f"s_load_dwordx4 s[{pW1}:{pW1+3}], s[0:1], 48",
      f"s_load_dwordx4 s[{pOUT}:{pOUT+3}], s[0:1], 64", f"s_load_dwordx2 s[{pWS}:{pWS+1}], s[0:1], 80")
    if not X("nopf"):
        e("s_getpc_b64 s[66:67]", "F_PC:", "v_lshrrev_b32 v1, 6, v0", "s_lshr_b32 s62, s2, 3", "s_mul_i32 s62, s62, 1536", "s_add_u32 s62, s62, 8192 - 512",
          "v_and_b32 v2, 63, v0", "v_lshlrev_b32 v4, 7, v2", "v_and_b32 v2, 3, v0", "v_lshl_add_u32 v2, v1, 2, v2", "v_lshlrev_b32 v2, 7, v2", "v_add_u32 v2, s62, v2",
          "v_cmp_eq_u32 vcc, 0, v1", "v_mov_b32 v5, s67", "s_nop 0", "v_cndmask_b32 v4, v2, v4, vcc", "v_min_u32 v4, F_END-F_PC, v4",
          "v_add_co_u32 v4, vcc, s66, v4", "s_nop 1", "v_addc_co_u32 v5, vcc, 0, v5, vcc", f"global_load_dword v{TCD+1}, v[4:5], off")
    e(wave_id(f"s{sWAVE}"), stamp(0), "s_mov_b32 s3, 0x10000000")
    e("s_and_b32 s66, s2, 7", "s_lshl_b32 s66, s66, 2", "s_lshr_b32 s67, s2, 3", "s_and_b32 s67, s67, 3", f"s_add_u32 s{sHEAD}, s66, s67",
      f"s_lshr_b32 s{sQB}, s2, 5", f"s_lshl_b32 s66, s{sQB}, 2", f"s_add_u32 s{sM64}, s66, s{sWAVE}")
    e(f"s_lshl_b32 s66, s{sQB}, 5", f"s_add_u32 s66, s66, s{sHEAD}", "s_lshl_b32 s66, s66, 2", f"s_add_u32 s66, s66, s{sWAVE}", "s_lshl_b32 s62, s66, 1",
      "s_mul_i32 s66, s62, 1280",
      "v_lshrrev_b32 v1, 5, v0", "v_and_b32 v2, 31, v0", "v_mul_u32_u24 v3, 1280, v1", "v_lshl_add_u32 v3, v2, 3, v3",
      f"v_lshlrev_b32 v{LX}, 4, v0", f"s_or_b32 s{sKo}, s2, s{sWAVE}")
    e("s_waitcnt lgkmcnt(0)", fstamp(1))
    e(srd(12, pX, pX+1, 2560, "s66"))
    XR, XX = 64, 80
    for m in range(5): e(f"buffer_load_dwordx2 {v(XR+2*m,2)}, v3, s[12:15], 0 offen offset:{256*m}")
    e(srd(sFL, pWS, pWS+1, 1024, WS_FL), f"s_cmp_eq_u32 s{sKo}, 0", f"s_cselect_b32 s{sFL+2}, 1024, 0",
      f"buffer_load_dwordx4 v[76:79], v{LX}, {srdn(sFL)}, 0 offen sc1", f"s_mov_b32 s{sFL+2}, 1024")
    e("s_lshr_b32 s66, s62, 6", f"s_mul_i32 s66, s66, {XF_BLK}", "s_and_b32 s67, s62, 63", "s_lshl_b32 s67, s67, 6", "s_add_u32 s66, s66, s67",
      f"s_sub_u32 s67, {XF_BLK}, s67")
    e(srd(16, pWS, pWS+1, "s67", "s66"))
    e("v_lshrrev_b32 v13, 3, v2", "v_lshlrev_b32 v13, 12, v13", "v_lshl_add_u32 v13, v1, 6, v13", "v_and_b32 v3, 7, v0", "v_lshl_add_u32 v13, v3, 3, v13")
    e(f"s_mul_i32 s66, s{sHEAD}, 384", "s_sub_u32 s67, 7864320, s66"); e(srd(sWQ_SRD, pWQ, pWQ+1, "s67", "s66"))
    e(f"s_mul_i32 s66, s{sHEAD}, 96", "s_sub_u32 s67, 1969152, s66", f"s_sub_u32 s{pW1}, s{pW1}, 3072", f"s_subb_u32 s{pW1+1}, s{pW1+1}, 0")
    e(srd(sW1_SRD, pW1, pW1+1, "s67", "s66"))
    e(f"s_lshl_b32 s66, s{sWAVE}, 4", "s_mov_b32 s67, 12288")
    e("v_lshrrev_b32 v1, 4, v0", "v_and_b32 v2, 15, v0", "v_lshlrev_b32 v3, 1, v1", "v_xor_b32 v2, v2, v3", "v_add_u32 v3, s66, v1", "v_mul_lo_u32 v3, v3, s67",
      f"v_lshl_add_u32 v{DA}, v2, 4, v3", f"v_add_u32 v{DA+1}, {4*12288 - 1024}, v{DA}", "v_xor_b32 v2, 8, v2", "v_lshl_add_u32 v3, v2, 4, v3",
      f"v_add_u32 v{DA+2}, {8*12288 - 2048}, v3", f"v_add_u32 v{DA+3}, {12*12288 - 3072}, v3")
    e("v_lshrrev_b32 v1, 3, v0", "v_and_b32 v2, 7, v0", "v_and_b32 v3, 2, v1", "v_xor_b32 v2, v2, v3", "v_add_u32 v3, s66, v1", "v_mul_lo_u32 v4, v3, s67",
      "v_add_u32 v4, 256, v4", f"v_lshl_add_u32 v{DB}, v2, 4, v4", "v_xor_b32 v5, 4, v2", "v_lshl_add_u32 v4, v5, 4, v4", f"v_add_u32 v{DB+1}, {8*12288 - 1024}, v4",
      "v_mul_u32_u24 v3, 3072, v3", "v_bfrev_b32 v8, 1", "v_cmp_gt_u32 vcc, 6, v2", "v_lshl_add_u32 v6, v2, 4, v3", "v_add_u32 v6, 1024, v6",
      f"v_cndmask_b32 v{DH}, v8, v6, vcc", "v_cmp_gt_u32 vcc, 6, v5", "v_lshl_add_u32 v6, v5, 4, v3", f"v_add_u32 v6, {8*3072}, v6",
      f"v_cndmask_b32 v{DH+1}, v8, v6, vcc")
    e(f"s_lshl_b32 s66, s{sWAVE}, 12")
    for u in range(6): e(f"s_add_u32 s{sMW+u}, s66, {(WB if u % 2 else WA) + 16384*(u >> 1)}")
    e(f"s_mov_b32 s{sWq}, 0", f"s_mov_b32 s{sW1}, 0")
    NE = 5 if X("allW") else 2
    def wgrp(lo, hi):
        o = E()
        for u in range(lo, hi):
            o(m0W(u), "s_nop 0", dmaW(u))
            if u % 2: o(advW)
        return o
    e(wgrp(0, NE))
    NT = 0 if X("notouch") else 2
    if NT:
        e(f"s_lshl_b32 s66, s{sQB}, 3", f"s_lshl_b32 s67, s{sWAVE}, 1", "s_add_u32 s66, s66, s67", "s_mov_b32 s67, 12288", touch_addr(4),
          f"s_mov_b32 s{sTq}, 786432", f"s_mov_b32 s{sT1}, 196608", touch())
    e(fstamp(2), f"s_waitcnt vmcnt({4*NE + NT})", stamp(1), fstamp(3))
    l1 = newlab("T")
    e(srd(12, pDBG, pDBG+1, 4), "v_mov_b32 v27, 0", f"s_cmp_lg_u32 s{sKo}, 0", f"s_cbranch_scc1 {l1}")
    e("v_and_b32 v1, 15, v0", "v_lshlrev_b32 v1, 2, v1", "ds_write_b32 v1, v27")
    for r in range(4):
        e(f"v_bfe_u32 v{4+r}, v{76+r}, 3, 9", f"v_lshrrev_b32 v{8+r}, 5, v{4+r}", f"v_lshlrev_b32 v{8+r}, 2, v{8+r}",
          f"v_and_b32 v{4+r}, 31, v{4+r}", f"v_lshlrev_b32_e64 v{4+r}, v{4+r}, 1")
    for r in range(4): e(f"ds_or_b32 v{8+r}, v{4+r}")
    e("ds_read_b32 v2, v1", "s_waitcnt lgkmcnt(0)", "v_not_b32 v2, v2", "v_ffbl_b32 v2, v2", "v_cmp_ne_u32 vcc, -1, v2",
      "s_nop 4", "s_ff1_i32_b64 s66, vcc", "s_nop 1", "v_readlane_b32 s67, v2, s66", "s_nop 4", "s_lshl_b32 s66, s66, 5", "s_add_u32 s66, s66, s67",
      "s_lshl_b32 s66, s66, 3", "s_or_b32 s66, s66, 0x40000000", "v_mov_b32 v26, s66",
      "s_mov_b64 exec, 1", "buffer_store_dword v26, v27, s[12:15], 0 offen sc1", "s_mov_b64 exec, -1", f"{l1}:")
    for i in range(10): e(f"v_lshlrev_b32 v{XX+2*i}, 16, v{XR+i}", f"v_and_b32 v{XX+2*i+1}, 0xffff0000, v{XR+i}")
    def reduce32(r, t):
        o = []
        for sh in (8, 4, 2, 1): o += ["s_nop 1", f"v_add_f32_dpp {r}, {r}, {r} row_ror:{sh} row_mask:0xf bank_mask:0xf"]
        return o + [f"v_mov_b32 {t}, {r}", "s_nop 1", f"v_permlane16_swap_b32 {r}, {t}", f"v_add_f32 {r}, {r}, {t}"]
    e(f"v_add_f32 v10, v{XX}, v{XX+1}", f"v_add_f32 v11, v{XX+2}, v{XX+3}")
    for i in range(4, 20, 2): e(f"v_add_f32 v10, v10, v{XX+i}", f"v_add_f32 v11, v11, v{XX+i+1}")
    e("v_add_f32 v10, v10, v11", reduce32("v10", "v11"))
    e(f"s_mov_b32 s66, {hx(f2u(1.0/640))}", "v_mul_f32 v10, s66, v10", "v_mov_b32 v11, 0", "v_mov_b32 v12, 0")
    for i in range(0, 20, 2):
        e(f"v_sub_f32 v1, v{XX+i}, v10", f"v_sub_f32 v2, v{XX+i+1}, v10", "v_fmac_f32 v11, v1, v1", "v_fmac_f32 v12, v2, v2")
    e("v_add_f32 v11, v11, v12", reduce32("v11", "v12"), "v_mul_f32 v11, s66, v11")
    e("v_cvt_pk_bf16_f32 v10, v10, v11", "v_and_b32 v11, 0xffff0000, v10", "v_lshlrev_b32 v10, 16, v10")
    e(f"v_add_f32 v11, {hx(f2u(1e-5))}, v11", "v_cvt_pk_bf16_f32 v11, v11, v11", "v_lshlrev_b32 v11, 16, v11",
      "v_sqrt_f32 v11, v11", "s_nop 0", "v_cvt_pk_bf16_f32 v11, v11, v11", "v_lshlrev_b32 v11, 16, v11", "v_rcp_f32 v11, v11", "s_nop 0")
    for i in range(10):
        a0, a1 = XX+2*i, XX+2*i+1
        e(f"v_sub_f32 v{a0}, v{a0}, v10", f"v_sub_f32 v{a1}, v{a1}, v10", f"v_cvt_pk_bf16_f32 v1, v{a0}, v{a1}",
          f"v_lshlrev_b32 v{a0}, 16, v1", f"v_and_b32 v{a1}, 0xffff0000, v1",
          f"v_mul_f32 v{a0}, v{a0}, v11", f"v_mul_f32 v{a1}, v{a1}, v11", f"v_cvt_pk_bf16_f32 v{XR+i}, v{a0}, v{a1}")
        if i % 2: e(f"s_mov_b32 s66, {16384*(i//2)}", f"buffer_store_dwordx2 {v(XR+i-1,2)}, v13, s[16:19], s66 offen sc1")
    e(stamp(2), fstamp(4))
    e("v_lshrrev_b32 v1, 4, v0", "v_lshrrev_b32 v2, 2, v0", "v_and_b32 v2, 3, v2", "v_and_b32 v3, 3, v0",
      "v_and_b32 v5, 1, v1", "v_lshlrev_b32 v4, 1, v2", "v_lshl_or_b32 v4, v5, 3, v4",
      "v_lshl_add_u32 v6, v1, 3, v2", "v_lshlrev_b32 v6, 8, v6", f"v_add_u32 v6, {WA}, v6", "v_lshrrev_b32 v7, 1, v3")
    for T in range(8):
        e(f"v_or_b32 v8, {4*(T >> 1)}, v3", "v_xor_b32 v8, v8, v4", "v_lshl_add_u32 v8, v8, 4, v6", f"v_xor_b32 v9, {T & 1}, v7", f"v_lshl_add_u32 v{AWA+T}, v9, 3, v8")
    e("v_and_b32 v4, 2, v2", "v_lshl_or_b32 v4, v5, 2, v4",
      "v_lshl_add_u32 v6, v5, 3, v2", "v_lshlrev_b32 v6, 7, v6", "v_lshrrev_b32 v8, 1, v1", "v_lshl_add_u32 v6, v8, 12, v6", f"v_add_u32 v6, {WB}, v6")
    for T in range(4):
        e(f"v_or_b32 v8, {4*(T >> 1)}, v3", "v_xor_b32 v8, v8, v4", "v_lshl_add_u32 v8, v8, 4, v6", f"v_xor_b32 v9, {T & 1}, v7", f"v_lshl_add_u32 v{AWB+T}, v9, 3, v8")
    e("v_add_u32 v6, 2048, v6", "v_lshl_add_u32 v6, v3, 3, v6")
    for tt in range(3): e(f"v_xor_b32 v8, {2*tt}, v4", f"v_lshl_add_u32 v{AH+tt}, v8, 4, v6")
    e(fstamp(5))
    lp, ld = newlab("P"), newlab("D")
    tagpoll = E()(f"s_mov_b32 s{sU}, 0", f"{lp}:", "buffer_load_dword v26, v27, s[12:15], 0 offen sc1", "s_waitcnt vmcnt(0)", f"v_readfirstlane_b32 s{sT}, v26",
                  f"s_add_u32 s{sU}, s{sU}, 1", f"s_cmp_gt_u32 s{sU}, {SPIN}", f"s_cbranch_scc1 {ld}",
                  f"s_cmp_eq_u32 s{sT}, 0", f"s_cbranch_scc1 {lp}", f"{ld}:")
    e(wave0(tagpoll), "s_waitcnt vmcnt(0)", fstamp(6), "s_barrier", stamp(3), fstamp(7))
    e(wave0(signal(1)), fstamp(8))
    e("v_lshrrev_b32 v1, 3, v0", "v_and_b32 v2, 7, v0", f"s_mul_i32 s62, s{sWAVE}, 3072", f"s_lshl_b32 s66, s{sWAVE}, 2")
    for t in range(3):
        e(f"v_add_u32 v3, {8*t}, v1", "v_mul_u32_u24 v4, 171, v3", "v_lshrrev_b32 v4, 9, v4",
          "v_lshrrev_b32 v5, 1, v4", "v_add_u32 v6, s66, v5", "v_and_b32 v6, 7, v6", "v_xor_b32 v6, v2, v6",
          "v_lshlrev_b32 v7, 7, v1", "v_add_u32 v7, s62, v7", f"v_lshl_add_u32 v{DK+t}, v6, 4, v7",
          "v_and_b32 v5, 3, v5", "v_lshlrev_b32 v5, 1, v5", "v_xor_b32 v5, v2, v5", f"v_lshl_add_u32 v{DV+t}, v5, 4, v7")
    for i in range(4): e(f"s_add_u32 s{sMK+i}, s62, {KR + 12288*i}", f"s_add_u32 s{sMV+i}, s62, {VR + 12288*i}")
    e("v_and_b32 v3, 6, v1", "v_xor_b32 v3, v2, v3", "v_mul_u32_u24 v4, 1280, v1", "v_lshl_add_u32 v4, v3, 4, v4", f"s_mul_i32 s66, s{sWAVE}, 10240", f"v_add_u32 v{RLV}, s66, v4")
    e(f"s_mul_i32 s66, s{sM64}, {XF_BLK}")
    if WS_XF: e(f"s_add_u32 s66, s66, {hx(WS_XF)}")
    e(srd(sXF_SRD, pWS, pWS+1, XF_BLK, "s66"))
    e("v_and_b32 v1, 15, v0", "v_lshrrev_b32 v2, 4, v0", "v_lshlrev_b32 v1, 6, v1", f"v_lshl_add_u32 v{LXB}, v2, 4, v1", f"v_add_u32 v{LXB2}, 4096, v{LXB}",
      f"v_lshlrev_b32 v{LX8}, 3, v0", f"s_mov_b32 s{sX}, 0")
    e(f"s_mul_i32 s66, s{sHEAD}, 786432"); e(srd(sK_SRD, pK, pK+1, 786432, "s66"), srd(sV_SRD, pV, pV+1, 786432, "s66"), relayout_src())
    e(f"s_mul_i32 s66, s{sM64}, {OF_BLK}", f"s_add_u32 s66, s66, {hx(WS_OF)}"); e(srd(sOF_SRD, pWS, pWS+1, OF_BLK, "s66"))
    e(f"s_mov_b32 s{sC}, {hx(f2u(CSCALE))}", f"s_mov_b32 s{sC+1}, {hx(f2u(CSCALE))}", f"s_mov_b32 s{sTHR}, {hx(f2u(THR))}")
    e(f"s_mul_i32 s{sO}, s{sHEAD}, 24576")
    for tt in range(3):
        e(f"s_mul_i32 s66, s{sHEAD}, 3", f"s_add_u32 s66, s66, {tt}", "s_and_b32 s67, s66, 1", "s_lshl_b32 s67, s67, 9",
          "s_lshr_b32 s66, s66, 1", "s_add_u32 s66, s66, 192", "s_lshl_b32 s66, s66, 12", f"s_add_u32 s{sH[tt]}, s66, s67")
    e("v_lshrrev_b32 v1, 4, v0", "v_and_b32 v3, 3, v0",
      "v_lshrrev_b32 v5, 2, v0", "v_mul_u32_u24 v6, 384, v5", f"v_add_u32 v6, {VR}, v6", "v_lshl_add_u32 v6, v3, 3, v6",
      "v_lshrrev_b32 v5, 1, v5", "v_and_b32 v5, 3, v5", "v_lshlrev_b32 v5, 1, v5")
    for sg in range(4): e(f"v_xor_b32 v8, {2*sg}, v5", f"v_lshl_add_u32 v{AV+sg}, v8, 4, v6")
    e("v_and_b32 v2, 15, v0", "v_mul_u32_u24 v6, 384, v2", "v_lshrrev_b32 v2, 1, v2", "v_xor_b32 v2, v2, v1")
    e(f"v_lshl_add_u32 v{AK}, v2, 4, v6", "v_xor_b32 v2, 4, v2", f"v_lshl_add_u32 v{AK+1}, v2, 4, v6", relayout_vaddr(), fstamp(9))
    if NT:
        e(f"s_lshl_b32 s66, s{sQB}, 3", f"s_lshl_b32 s67, s{sWAVE}, 1", "s_add_u32 s66, s66, s67", "s_mov_b32 s67, 12288", touch_addr(3),
          f"s_mov_b32 s{sTq}, {5*786432}", f"s_mov_b32 s{sT1}, {5*196608}")
    for i in range(96): e(f"v_accvgpr_write_b32 a{i}, 0")
    for i in range(48, 192): e(f"v_mov_b32 v{i}, 0")
    e(wave0([f"v_lshlrev_b32 v2, 2, v0", f"s_lshl_b32 s{sCNT}, s{sQB}, 7"] + poll(1, ("-1", "0"), f"s{sCNT}")))
    e("s_barrier", fstamp(10))
    for k in range(2): e(ldB(k), advX)
    e([qrd(0, T, kk, uu) for T in range(2) for kk in range(2) for uu in range(2)], wgrp(NE, 5))
    e(f"s_mov_b32 s{sCNT}, 0", fstamp(11), f"s_waitcnt vmcnt({8 + 4*(5-NE) if NE == 2 else 0}) lgkmcnt(4)", stamp(5), fstamp(12))
    return e

TB, TA, TAD, TD, TB8 = 16, 96, 160, 162, 164
sTW, sTB, sMT, sSP = 39, 58, 40, 54
LEAD = 3
def tacc(nt, qt): return (nt*2 + qt)*4
def t_rd(st, nt, kk, dst):
    slot = st % 4
    return f"ds_read_b128 {v(dst, 4)}, v{TAD + slot//3} offset:{(slot%3)*20480 + (kk*10 + nt)*1024}"
def t_A(st, nt, kk): return TA + 8*((10*st + nt) % 4) + 4*kk
def t_B(st, kk, qt): return TB + 16*(st % 4) + 8*kk + 4*qt
def t_ldB(st, g):
    if not g: return [f"buffer_load_dwordx4 {v(t_B(st,kk,qt), 4)}, v{LX}, s[16:19], s{sTB + kk} offen offset:{1024*qt} sc1 ; @B{st}" for kk in range(2) for qt in range(2)]
    return [f"buffer_load_dwordx2 {v(t_B(st,kk,qt) + 2*h, 2)}, v{TB8}, s[16:19], s{sTB + kk} offen offset:{1024*qt + 512*h} sc1 ; @B{st}" for kk in range(2) for qt in range(2) for h in range(2)]
t_advB = [f"s_add_u32 s{sTB}, s{sTB}, 8192", f"s_add_u32 s{sTB+1}, s{sTB+1}, 8192"]
def t_dmaW(st, t): return f"buffer_load_dwordx4 v{TD + (t == 4)}, s[12:15], s{sTW} offen offset:{1024*(t%4)} lds ; @W{st}"
def t_m0(st, t): return f"s_add_u32 m0, s{sMT}, {(st%4)*20480 + (4096 if t == 4 else 0)}"
t_advW = [f"s_add_u32 s{sTW}, s{sTW}, 20480"]
def tplan(g):
    if g: pl = {2: ("W", LEAD-1, 3), 3: ("B", 0), 6: ("B", 1), 7: ("B", 2), 11: ("W", LEAD-1, 4), 10: ("B", 3), 14: ("B", 4), 15: ("B", 5), 19: ("B", 6), 22: ("B", 7)}
    else: pl = {2: ("W", LEAD-1, 3), 6: ("B", 0), 11: ("W", LEAD-1, 4), 15: ("B", 1), 19: ("B", 2), 23: ("B", 3)}
    pl.update({30: ("W", LEAD, 0), 34: ("W", LEAD, 1), 38: ("W", LEAD, 2)})
    return pl
sIT, sCP, sNW, sNB, sNF, sDA, sDB, FV, FA_ = 50, 52, 53, 49, 47, 45, 43, 166, 165
def decode():
    return [f"s_and_b32 s{sDA}, s{sIT}, 7", f"s_lshl_b32 s{sDA}, s{sDA}, 2", f"s_lshr_b32 s{sDA}, s{sCP}, s{sDA}", f"s_and_b32 s{sDA}, s{sDA}, 7",
            f"s_bfe_u32 s{sDB}, s{sIT}, 0x20003", f"s_lshl_b32 s{sNF}, s{sDA}, 4", f"s_add_u32 s{sNF}, s{sNF}, s48",
            f"s_mul_i32 s{sDA}, s{sDA}, 3", f"s_add_u32 s{sDA}, s{sDA}, s{sDB}", f"s_mul_i32 s{sNW}, s{sDA}, 81920", f"s_lshl_b32 s{sNB}, s{sDA}, 15"]
shiftIT = f"s_lshr_b64 s[{sIT}:{sIT+1}], s[{sIT}:{sIT+1}], 5"
def flagld(): return f"buffer_load_dword v{FV}, v{FA_}, {srdn(sFL)}, s{sNF} offen sc1 ; @F"
def flagchk(): return [f"v_subrev_u32 v{FV}, s{sT}, v{FV}", f"v_subrev_u32 v{FV}, 3, v{FV}", f"v_cmp_lt_u32 vcc, 1, v{FV}"]
def flagspin(entry, back):
    l = newlab("S")
    return E()(f"{entry}:", f"s_mov_b32 s{sU}, 0", f"{l}:", flagld(), "s_waitcnt vmcnt(0)", flagchk(), f"s_add_u32 s{sU}, s{sU}, 1", f"s_cmp_gt_u32 s{sU}, {SPIN}",
               f"s_cbranch_scc1 {back}", f"s_cbranch_vccnz {l}", f"s_branch {back}")
def tstage(st, g, vmw, last=1 << 30, nextA=None):
    L = []
    pl = tplan(g)
    ldb = t_ldB(st + LEAD, g)
    for p in range(20):
        nt = p >> 1; qt = (p & 1) ^ (nt & 1)
        for kk in range(2):
            gi = 2*p + kk
            acc = a(tacc(nt, qt), 4)
            L.append(f"{MF} {acc}, {v(t_A(st,nt,kk), 4)}, {v(t_B(st,kk,qt), 4)}, {acc}")
            if gi % 4 < 2:
                st2, nt2 = st + (nt+3)//10, (nt+3) % 10
                if st2 == st or nextA is None: L.append(t_rd(st2, nt2, gi % 4, t_A(st2, nt2, gi % 4)))
                else: L.append(nextA[2*nt2 + gi % 4])
                if gi % 4 == 1: L.append("s_waitcnt lgkmcnt(4)")
                if gi == 28 and st + LEAD < last: L.append(t_m0(st + LEAD, 0))
                if gi == 4 and st + LEAD - 1 < last: L.append(t_m0(st + LEAD - 1, 4))
                dyn = not g and last > 32
                if gi == 12 and st + LEAD - 1 < last: L += [f"s_mov_b32 s{sTW}, s{sNW}"] if dyn and st % 4 == 1 else t_advW
                if gi == 24 and st + LEAD < last: L.append(f"s_mov_b32 s{sTB}, s{sNB}" if dyn and st % 4 == 0 else t_advB[0])
                if gi == 32 and st + LEAD < last: L.append(f"s_add_u32 s{sTB+1}, s{sNB}, 4096" if dyn and st % 4 == 0 else t_advB[1])
            if not g and last > 32:
                if st % 4 == 2:
                    dc = [shiftIT] + decode()
                    pos = {0: dc[0:1], 3: dc[1:3], 7: dc[3:5], 8: dc[5:6], 10: dc[6:8], 14: dc[8:10], 16: dc[10:11], 18: dc[11:12]}
                    L += pos.get(gi, [])
                    if gi == 26: L.append(flagld())
                if st % 4 == 0:
                    fc = flagchk()
                    if gi == 31: L += fc[:2]
                    if gi == 35: L += fc[2:]
                    if gi == 39: L += ["s_cbranch_vccnz F_TSP", "F_TSB:"]
            if gi in pl:
                x = pl[gi]
                if x[0] == "W":
                    if st + x[1] < last: L.append(t_dmaW(st + x[1], x[2]))
                elif st + LEAD < last: L.append(ldb[x[1]])
            if gi == 27: L += [f"s_waitcnt vmcnt({vmw})", "s_barrier"]
    return L
def tpre(g):
    e = E()
    for st in range(LEAD-1):
        e(t_m0(st, 0), "s_nop 0", [t_dmaW(st, t) for t in range(4)], t_m0(st, 4), "s_nop 0", t_dmaW(st, 4), t_advW, t_ldB(st, g), t_advB)
    e(t_ldB(LEAD-1, g), t_advB, t_m0(LEAD-1, 0), "s_nop 0", [t_dmaW(LEAD-1, t) for t in range(3)])
    return e
def tcount(g):
    L = tpre(g)
    for st in range(12): L = L + tstage(st, g, f"@W{st+1},@B{st+1}")
    L = [l for l in L if not l.startswith(("s_cbranch", "F_"))]
    c = [int(re.search(r"vmcnt\((\d+)\)", l).group(1)) for l in resolve(L, []) if "vmcnt" in l]
    return min(c)
def tloop(g):
    nb = 8 if g else 4
    cnt = tcount(g)
    pre = E()(resolve(tpre(g) + ["s_waitcnt vmcnt(@W0,@B0)"], []))
    pre("s_barrier", [t_rd(0, nt, kk, t_A(0, nt, kk)) for nt in range(3) for kk in range(2)], f"s_mov_b32 s{sCNT}, 0", "s_waitcnt lgkmcnt(4)", fstamp(10, "last"), fstamp(5, "tail"))
    body = []
    for st in range(4): body += tstage(st, g, cnt)
    l = "F_TLG" if g else "F_TLS"
    ctl = [f"s_add_u32 s{sCNT}, s{sCNT}, 1", f"s_cmp_lt_u32 s{sCNT}, {'6' if g else 's46'}", f"s_cbranch_scc1 {l}"]
    if not g:
        first = E()(decode(), flagspin("F_T0", "F_T0B"), "F_T0B:", stamp(11), fstamp(4, "tail"), fstamp(9, "last"),
                    f"s_mov_b32 s{sTW}, s{sNW}", f"s_mov_b32 s{sTB}, s{sNB}", f"s_add_u32 s{sTB+1}, s{sNB}, 4096", shiftIT, decode(), flagld())
        pre = first + pre
    return pre, body, ctl, cnt
def pb_off(): return E()(f"s_lshl_b32 s41, s{sWAVE}, 2", f"s_add_u32 s41, s41, s{sSP}", "s_mul_i32 s41, s41, 20480",
                         f"s_cmp_eq_u32 s{sWAVE}, s{sSP}", "s_cselect_b32 s41, 0x10000000, s41")
def own_write():
    l = newlab("O")
    e = E()(f"s_cmp_lg_u32 s{sWAVE}, s{sSP}", f"s_cbranch_scc1 {l}", f"v_add_u32 v4, {OWN}, v{LX}")
    for i in range(20): e(f"ds_write_b128 v4, {a(tacc(i % 10, i // 10), 4)} offset:{1024*i}")
    return e(f"{l}:")
def tfinal(cnt):
    FA = lambda nt, k: TA + 16*(nt % 4) + 4*k
    frd = lambda nt, k: t_rd(30 + (k >> 1), nt, k & 1, FA(nt, k))
    e = E()
    for l in tstage(28, False, "@W29,@B29", last=32):
        e(l)
        if l.startswith("buffer_load") and l.endswith("@W31") and "offset:2048" in l:
            e.last = len(e)
    tail = e[e.last:]; del e[e.last:]
    k = [i for i, l in enumerate(tail) if l.startswith(MF)]
    assert len(k) == 1
    e(t_dmaW(31, 3), tail[k[0]], t_m0(31, 4), "s_nop 0", t_dmaW(31, 4))
    n = 0
    for l in tstage(29, False, "0", last=31):
        if l.startswith("ds_read"):
            n += 1
            if n > 14: continue
        if l == "s_waitcnt lgkmcnt(4)" and n > 14: l = "s_waitcnt lgkmcnt(0)"
        if l.startswith("s_waitcnt vmcnt") or l == "s_barrier": continue
        e(l)
    e("s_waitcnt vmcnt(@W30,@B30,@W31,@B31)", "s_barrier")
    e([frd(0, k) for k in range(4)], [frd(1, k) for k in range(4)], pb_off(), "s_waitcnt lgkmcnt(4)")
    pend = []
    for nt in range(10):
        for qt in range(2):
            for k in range(4):
                g = 4*qt + k
                acc = a(tacc(nt, qt), 4)
                e(f"{MF} {acc}, {v(FA(nt,k),4)}, {v(t_B(30 + (k >> 1), k & 1, qt),4)}, {acc}")
                if g < 4 and nt + 2 < 10: e(frd(nt+2, g))
                if g == 3 and nt + 1 < 10: e(f"s_waitcnt lgkmcnt({4 if nt + 2 < 10 else 0})")
                if g in (4, 6) and nt > 0:
                    q2 = (g-4)//2; i = q2*10 + nt-1
                    e(f"buffer_store_dwordx4 {a(tacc(nt-1,q2),4)}, v{LX}, s[20:23], s{42+q2} offen sc1")
                if g in (1, 2) and nt > 0:
                    q2 = g - 1; e(f"s_add_u32 s{42+q2}, s41, {1024*(q2*10 + nt-1)}")
    e("s_add_u32 s42, s41, 9216", "s_add_u32 s43, s41, 19456", "s_nop 5")
    for q2 in range(2): e(f"buffer_store_dwordx4 {a(tacc(9,q2),4)}, v{LX}, s[20:23], s{42+q2} offen sc1")
    e(own_write())
    return e
def gfinal():
    e = E()(pb_off(), "s_waitcnt vmcnt(0) lgkmcnt(0)", "s_nop 1")
    for i in range(20):
        b = tacc(i % 10, i // 10); d = 16 + 6*(i % 8)
        for r in range(4): e(f"v_accvgpr_read_b32 v{d+r}, a{b+r}")
        e(f"v_cvt_pk_bf16_f32 v{d+4}, v{d}, v{d+1}", f"v_cvt_pk_bf16_f32 v{d+5}, v{d+2}, v{d+3}")
        if i % 8 == 0: e(f"s_add_u32 s42, s41, {512*i}")
        e(f"buffer_store_dwordx2 {v(d+4,2)}, v{TB8}, s[20:23], s42 offen offset:{512*(i%8)} sc1")
    e(own_write())
    return e
def items(lst):
    x = 0
    for k, (rb, th) in enumerate(lst): x |= (rb | th << 3) << (5*k)
    return x
def blk(*rbs): return [(rb, th) for rb in rbs for th in range(3)]
PATTERNS = {"B": [blk(0, 2, 4), blk(1, 3, 5), blk(6, 7)],
            "C": [blk(0, 2, 4) + [(5, 0)], blk(1, 3) + [(5, 1), (5, 2)], blk(6, 7)],
            "A": [blk(0, 3) + [(6, 0), (6, 1)], blk(1, 4) + [(6, 2), (7, 0)], blk(2, 5) + [(7, 1), (7, 2)]]}
DV_ = 136
def roles():
    e = E()
    l, d = newlab("R"), newlab("D")
    e(f"s_mov_b32 s{sU}, 0", f"{l}:", f"v_cmp_eq_u32 vcc, 0, v{DV_}", f"s_add_u32 s{sU}, s{sU}, 1", "s_nop 2", "s_and_b32 s41, vcc_lo, 0xff00", f"s_cbranch_scc0 {d}",
      f"s_cmp_gt_u32 s{sU}, {SPIN}", f"s_cbranch_scc1 {d}", f"buffer_load_dword v{DV_}, v{DV_+1}, s[28:31], 0 offen sc1", "s_waitcnt vmcnt(0)", f"s_branch {l}", f"{d}:")
    e(f"v_readlane_b32 s{sT}, v{DV_}, 0", f"s_mov_b32 s{sCP}, 0", "s_and_b32 s41, s2, 7", "s_add_u32 s41, s41, 8", f"v_readlane_b32 s42, v{DV_}, s41")
    e([f"v_readlane_b32 s{12+c}, v{DV_}, {8+c}" for c in range(8)], "s_nop 3")
    for c in range(1, 8):
        e(f"s_sub_u32 s41, s{12+c}, 1", "s_and_b32 s41, s41, 7", "s_lshl_b32 s41, s41, 2", f"s_lshl_b32 s41, {c}, s41", f"s_or_b32 s{sCP}, s{sCP}, s41")
    e("s_sub_u32 s42, s42, 1", "s_and_b32 s42, s42, 7")
    if X("static"): e("s_and_b32 s42, s2, 7", f"s_mov_b32 s{sCP}, 0x76543210")
    e(f"s_lshr_b32 s{sSP}, s42, 1", "s_add_u32 s55, s42, 1", "s_lshr_b32 s55, s55, 1", "s_and_b32 s55, s55, 1", f"s_and_b32 s56, s{sHEAD}, 3")
    pat = PATTERNS[[x[3:] for x in EXP[0].split() if x.startswith("pat")][0] if "pat" in EXP[0] else "B"]
    for m in (2, 1, 0):
        x = items(pat[m])
        if m == 2: e(f"s_mov_b32 s{sIT}, {hx(x)}", f"s_mov_b32 s{sIT+1}, {hx(x >> 32)}", f"s_mov_b32 s46, {len(pat[m]) - 1}")
        else: e(f"s_cmp_eq_u32 s{sSP}, {m}", f"s_cselect_b32 s{sIT}, {hx(x)}, s{sIT}", f"s_cselect_b32 s{sIT+1}, {hx(x >> 32)}, s{sIT+1}", f"s_cselect_b32 s46, {len(pat[m]) - 1}, s46")
    return e
def tail_setup():
    e = E()
    e(f"s_cmp_eq_u32 s{sSP}, 3", "s_cselect_b32 s66, 48, 192", "s_cselect_b32 s67, 192, 0",
      f"s_mul_i32 s41, s56, {WF160}", "s_mul_i32 s42, s67, 10240", "s_add_u32 s41, s41, s42", f"s_add_u32 s41, s41, {hx(WS_WF)}", "s_mul_i32 s42, s66, 10240")
    e(srd(12, pWS, pWS+1, "s42", "s41"))
    e(f"s_lshl_b32 s41, s{sQB}, 2", "s_lshl_b32 s42, s55, 1", "s_add_u32 s41, s41, s42", f"s_lshr_b32 s42, s{sWAVE}, 1", "s_add_u32 s41, s41, s42",
      f"s_mul_i32 s41, s41, {OF_BLK}", "s_lshl_b32 s42, s67, 12", "s_add_u32 s41, s41, s42",
      f"s_and_b32 s42, s{sWAVE}, 1", "s_lshl_b32 s42, s42, 11", "s_add_u32 s41, s41, s42", f"s_add_u32 s41, s41, {hx(WS_OF)}",
      "s_lshl_b32 s43, s66, 12", "s_sub_u32 s43, s43, s42")
    e(srd(16, pWS, pWS+1, "s43", "s41"))
    e(f"s_mov_b32 s{sTB}, 0", f"s_mov_b32 s{sTB+1}, 4096", f"s_mov_b32 s{sTW}, 0", f"s_mul_i32 s{sMT}, s{sWAVE}, 5120")
    e(f"s_lshl_b32 s41, s{sQB}, 1", "s_add_u32 s41, s41, s55", "s_lshl_b32 s41, s41, 2", "s_add_u32 s41, s41, s56", "s_mul_i32 s41, s41, 327680",
      f"s_add_u32 s41, s41, {hx(WS_PB)}")
    e(srd(20, pWS, pWS+1, 327680, "s41"))
    e(f"s_lshl_b32 s41, s{sQB}, 3", "s_lshl_b32 s42, s55, 2", "s_add_u32 s41, s41, s42", f"s_add_u32 s41, s41, s{sSP}", "s_lshl_b32 s41, s41, 1",
      f"s_and_b32 s42, s{sWAVE}, 1", "s_add_u32 s41, s41, s42", "s_mul_i32 s41, s41, 20480",
      "s_mul_i32 s42, s56, 320", "s_add_u32 s41, s41, s42", f"s_lshr_b32 s42, s{sWAVE}, 1", "s_mul_i32 s42, s42, 160", "s_add_u32 s41, s41, s42",
      "s_sub_u32 s42, 2621440, s41")
    e(srd(24, pX, pX+1, "s42", "s41")); e(srd(28, pOUT, pOUT+1, "s42", "s41"))
    e("s_lshl_b32 s44, 0x11111111, s56", f"s_lshl_b32 s48, s{sQB}, 7")
    return e
def tail_vsetup():
    return E()(f"v_add_u32 v{TD}, s{sMT}, v{LX}", f"v_add_u32 v{TD+1}, 4096, v{TD}", f"v_mov_b32 v{TAD}, v{LX}", f"v_add_u32 v{TAD+1}, 61440, v{LX}",
               f"v_lshlrev_b32 v{TB8}, 3, v0", "v_and_b32 v1, 3, v0", f"v_lshlrev_b32 v{FA_}, 2, v1", [f"v_accvgpr_write_b32 a{i}, 0" for i in range(80)])

def laststep(i=63):
    Pc = Pb(i)
    e = E()
    e(rdVp(62, 0))
    e(wave0([f"buffer_load_dwordx4 v[140:143], v{LX}, {srdn(sFL)}, 0 offen sc1"]))
    e(srd(28, pDBG, pDBG+1, 64), "v_and_b32 v138, 15, v0", f"v_lshlrev_b32 v{DV_+1}, 2, v138", f"buffer_load_dword v{DV_}, v{DV_+1}, s[28:31], 0 offen sc1")
    Ex, Sx = sm(S1, [2, 3], Pc, 1)
    e(Ex, rdVp(62, 1, KF))
    e([x for _, x in Sx], CHK, "s_waitcnt lgkmcnt(12)", callsite(i % 4), LADD, "s_nop 0", fstamp(2, "last"))
    RI = 8
    Xl = xlane("v_add_f32", L_, 2) + [f"v_rcp_f32 v{RI+2*qt}, v{L_+qt}" for qt in range(4)]
    def mix(m, fill, per=1):
        for x in m:
            e(x)
            for _ in range(per):
                if fill: e(fill.pop(0))
    r2, r3 = rdVp(62, 2), rdVp(62, 3, KF)
    mix(pv(62, 0), Xl, 2); e(Xl)
    e("s_waitcnt lgkmcnt(0)"); mix(pv(62, 1, src=KF), r2)
    e("s_waitcnt lgkmcnt(0)"); mix(pv(62, 2), r3)
    ok = newlab("K")
    chk = E()("s_waitcnt vmcnt(0)", f"s_add_u32 s{sTMP}, s{sT}, 2")
    for r in range(4): chk(f"v_subrev_u32 v{140+r}, s{sTMP}, v{140+r}")
    chk("v_max3_u32 v140, v140, v141, v142", "v_max_u32 v140, v140, v143", "v_cmp_lt_u32 vcc, 2, v140", "s_nop 1", f"s_cbranch_vccz {ok}",
        f"v_mov_b32 v2, v{LX}", poll(2, ("-1", "-1"), "0", wide=True), f"{ok}:")
    def norm(j):
        o = E()(f"s_add_u32 s{sTMP}, s{sO}, {4096*j}")
        for qt in range(4):
            k = 4*j + qt
            t = 64 + 8*(k % 4); d = 112 + 4*(k % 6)
            for hh in range(2):
                b = Oacc(2*j+hh, qt)
                for r in range(4): o(f"v_accvgpr_read_b32 v{t+4*hh+r}, a{b+r}")
            for r in range(0, 8, 2): o(f"v_pk_mul_f32 {v(t+r,2)}, {v(t+r,2)}, {v(RI+2*qt,2)} op_sel_hi:[1,0]")
            for r in range(4): o(f"v_cvt_pk_bf16_f32 v{d+r}, v{t+2*r}, v{t+2*r+1}")
            o(f"buffer_store_dwordx4 {v(d,4)}, v{LX}, {srdn(sOF_SRD)}, s{sTMP} offen offset:{1024*qt} sc1")
        return o
    e(fstamp(3, "last"), wave0(chk), fstamp(4, "last"))
    e(norm(0), norm(1), "s_waitcnt lgkmcnt(0)", pv(62, 3, src=KF), norm(2), norm(3), norm(4), norm(5))
    return e

def tail_end():
    e = E()
    XV = 232
    e("v_and_b32 v3, 15, v0", "v_mul_u32_u24 v3, 1280, v3", "v_lshrrev_b32 v4, 4, v0", "v_lshl_add_u32 v3, v4, 3, v3", fstamp(7, "tail"))
    e("s_waitcnt vmcnt(0) lgkmcnt(0)", fstamp(8, "tail"), "s_barrier", fstamp(9, "tail"), wave0(signal(4)))
    for nt in range(5): e(f"buffer_load_dwordx2 {v(XV+2*nt,2)}, v3, s[24:27], 0 offen offset:{32*nt}")
    e(f"s_and_b32 s42, s{sWAVE}, 1", "s_mul_i32 s42, s42, 10240", f"s_lshr_b32 s43, s{sWAVE}, 1", "s_mul_i32 s43, s43, 5120", "s_add_u32 s42, s42, s43",
      f"s_add_u32 s43, s42, {OWN}", f"v_add_u32 v5, s43, v{LX}")
    for i in range(5): e(f"ds_read_b128 {v(176+4*i,4)}, v5 offset:{1024*i}")
    e(f"s_mul_i32 s41, s{sSP}, 81920", "s_add_u32 s50, s41, s42", "s_add_u32 s51, s50, 20480", "s_add_u32 s52, s50, 40960",
      "s_lshr_b32 s42, s42, 1", "s_add_u32 s53, s41, s42", "s_add_u32 s53, s53, 61440")
    for src in range(4): e(f"s_cmp_eq_u32 s{sSP}, {src}", f"s_cselect_b32 s{50+src}, 0x10000000, s{50+src}")
    e(f"s_cmp_eq_u32 s{sSP}, 3", "s_cselect_b32 s56, 0, 1.0", "s_cselect_b32 s57, 1.0, 0", f"v_add_u32 v5, 4096, v{LX}", f"s_mov_b32 s38, {hx(f2u(-math.log2(math.e)))}")
    e(wave0(["v_lshlrev_b32 v2, 2, v0"] + poll(4, ("s44", "0"), "s48")), "s_barrier", stamp(4), fstamp(10, "tail"))
    for i in range(5):
        for src in range(3):
            e(f"buffer_load_dwordx4 {v(16+16*i+4*src,4)}, v{LX if i < 4 else 5}, s[20:23], s{50+src} offen offset:{1024*(i%4)} sc1")
        e(f"buffer_load_dwordx2 {v(16+16*i+12,2)}, v{TB8}, s[20:23], s53 offen offset:{512*i} sc1")
    e("s_waitcnt lgkmcnt(0)")
    for nt in range(5):
        S = 16 + 16*nt; G = S + 12; Xr = XV + 2*nt; t = 112 + 12*nt; W = 176 + 4*nt
        e(f"s_waitcnt vmcnt({4*(4-nt) + nt})", fstamp(11, "tail") if nt == 0 else [])
        e(f"v_lshlrev_b32 v{t}, 16, v{G}", f"v_and_b32 v{t+1}, 0xffff0000, v{G}", f"v_lshlrev_b32 v{t+2}, 16, v{G+1}", f"v_and_b32 v{t+3}, 0xffff0000, v{G+1}")
        for r in range(4): e(f"v_add_f32 v{S+r}, v{S+r}, v{S+4+r}")
        for r in range(4): e(f"v_fma_f32 v{G+r}, v{W+r}, s57, v{t+r}")
        for r in range(4): e(f"v_add_f32 v{S+r}, v{S+r}, v{S+8+r}")
        for r in range(4): e(f"v_fmac_f32 v{S+r}, s56, v{W+r}")
        e(f"v_cvt_pk_bf16_f32 v{t+2}, v{G}, v{G+1}", f"v_cvt_pk_bf16_f32 v{t+3}, v{G+2}, v{G+3}",
          f"v_cvt_pk_bf16_f32 v{t}, v{S}, v{S+1}", f"v_cvt_pk_bf16_f32 v{t+1}, v{S+2}, v{S+3}")
        for k in range(2):
            e(f"v_lshlrev_b32 v{G+2*k}, 16, v{t+2+k}", f"v_and_b32 v{G+2*k+1}, 0xffff0000, v{t+2+k}",
              f"v_lshlrev_b32 v{S+2*k}, 16, v{t+k}", f"v_and_b32 v{S+2*k+1}, 0xffff0000, v{t+k}")
        for r in range(4): e(f"v_mul_f32 v{t+4+r}, s38, v{G+r}")
        for r in range(4): e(f"v_exp_f32 v{t+4+r}, v{t+4+r}")
        for r in range(4): e(f"v_add_f32 v{t+4+r}, 1.0, v{t+4+r}")
        for r in range(4): e(f"v_rcp_f32 v{t+4+r}, v{t+4+r}")
        for r in range(4): e(f"v_mul_f32 v{G+r}, v{G+r}, v{t+4+r}")
        e(f"v_cvt_pk_bf16_f32 v{t+2}, v{G}, v{G+1}", f"v_cvt_pk_bf16_f32 v{t+3}, v{G+2}, v{G+3}")
        for k in range(2): e(f"v_lshlrev_b32 v{G+2*k}, 16, v{t+2+k}", f"v_and_b32 v{G+2*k+1}, 0xffff0000, v{t+2+k}")
        for r in range(4): e(f"v_mul_f32 v{S+r}, v{S+r}, v{G+r}")
        e(f"v_cvt_pk_bf16_f32 v{t}, v{S}, v{S+1}", f"v_cvt_pk_bf16_f32 v{t+1}, v{S+2}, v{S+3}")
        for k in range(2):
            e(f"v_lshlrev_b32 v{S+2*k}, 16, v{t+k}", f"v_and_b32 v{S+2*k+1}, 0xffff0000, v{t+k}",
              f"v_lshlrev_b32 v{G+2*k}, 16, v{Xr+k}", f"v_and_b32 v{G+2*k+1}, 0xffff0000, v{Xr+k}")
        for r in range(4): e(f"v_add_f32 v{S+r}, v{S+r}, v{G+r}")
        e(f"v_cvt_pk_bf16_f32 v{t+8}, v{S}, v{S+1}", f"v_cvt_pk_bf16_f32 v{t+9}, v{S+2}, v{S+3}")
        e(f"buffer_store_dwordx2 {v(t+8,2)}, v3, s[28:31], 0 offen offset:{32*nt}" + (" sc1" if X("outsc1") else "") + (" nt" if X("outnt") else ""))
    e(fstamp(12, "tail"))
    return e

def gen(exp=""):
    sites.clear(); lab[0] = 0; EXP[0] = exp
    L = E()(kernel_head(NAME))
    L("s_cmp_ge_u32 s2, 256", "s_cbranch_scc1 F_END")
    pro = front() + (cstamp(8) if X("qcyc") else [])
    qc, q18 = qcounts()
    qloop = []
    for u in range(6): qloop += qsub(u, last=40, vmw=qc[u])
    qctl = [f"s_add_u32 s{sCNT}, s{sCNT}, 1", f"s_cmp_lt_u32 s{sCNT}, 3", "s_cbranch_scc1 F_QL"]
    ex = {18: {}, 19: {}}
    for (kind, j), (u, g0) in zip([("K", 0), ("K", 1), ("V", 0), ("K", 2)], [(18, 4), (18, 20), (18, 36), (19, 4)]):
        m, d = kvgroup(kind, j)
        ex[u].setdefault(g0, []).extend(m)
        for t, dg in enumerate((1, 2, 3)): ex[u].setdefault(g0 + dg, []).append(d[t])
    rd = relayout_dst()
    for k, g in enumerate((36, 37, 38, 39, 44, 45, 46)): ex[19].setdefault(g, []).extend(rd[2*k:2*k+2])
    mid = qsub(18, extra=ex[18], vmw="@W19") + qsub(19, extra=ex[19]) + stamp(6) + fstamp(1, "conv") + (cstamp(9) if X("qcyc") else []) + convert() + fstamp(2, "conv") + init() + fstamp(7, "conv") + stamp(7) + (cstamp(8) if not (X("tcyc") or X("qcyc")) else [])
    keep = mid
    mid = [l + (" ; " + re.search(r"@\S+", k).group(0) if k.startswith("buffer_") and "@" in k and "@" not in l else "") for l, k in zip(resolve(mid, q18), keep)]
    ctl = [f"s_add_u32 s{sCNT}, s{sCNT}, 1", f"s_bitcmp1_b32 {hx(1 << 11 | 1 << 12 | 1 << 15)}, s{sCNT}", "s_cbranch_scc0 F_AL"]
    rlk = {1: "dma", 3: "out"} if not X("norl") else {}
    rlk.update({2: "tk", 0: "tv"}); mid = mid + [f"s_mov_b32 s{sCNT}, 0"]
    def mk(i, w): return step(i, vmw=w, tail=ctl if (i >= 3 and i % 4 == 2) else (), rl=rlk.get(i % 4) if i >= 3 else None)
    q = [re.search(r"@(\S+)", l).group(1) if "@" in l else "-" for l in mid if l.startswith("buffer_")]; cnts = {}
    for i in range(23):
        key = i if i < 3 else 3 + (i-3) % 4
        for l in mk(i, "?"):
            if "vmcnt(?)" in l:
                need = [f"K{i+2}"] + ([f"V{i}", f"V{i+1}"] if i % 2 == 0 else []) + (["R"] if i % 4 == 2 else [])
                c = len(q) - 1 - max(k for k, x in enumerate(q) if x in need)
                cnts[key] = min(cnts.get(key, 63), c)
            if l.startswith("buffer_"): q.append(re.search(r"@(\S+)", l).group(1))
    sites.clear()
    s0 = mk(0, cnts[0]) + mk(1, cnts[1]) + mk(2, cnts[2])
    body = [mk(i, cnts[i]) for i in range(3, 7)]
    if X("showcnt"): print("step counts", cnts, "q counts", qc)
    hooks = E()(f"s_cmp_eq_u32 s{sCNT}, 15", "s_cbranch_scc1 F_LAST", f"s_cmp_lg_u32 s{sWAVE}, 0", "s_cbranch_scc1 F_AL",
                f"s_cmp_eq_u32 s{sCNT}, 12", "s_cbranch_scc1 F_H1", signal(2), "s_mov_b32 s66, 4",
                "s_cmp_ge_u32 s2, 8", "s_cbranch_scc1 F_AL", srd(28, pDBG, pDBG+1, 64), "s_mov_b64 exec, 1",
                f"v_mov_b32 v{RLV}, 1", f"buffer_atomic_add v{RLV}, off, s[28:31], s66 sc0 sc1", "s_mov_b64 exec, -1", "s_branch F_AL",
                "F_H1:", "s_cmp_ge_u32 s2, 8", "s_cbranch_scc1 F_AL", "s_lshl_b32 s66, s2, 2", "s_add_u32 s66, s66, 32", "s_mov_b64 exec, 1",
                f"v_add_u32 v{RLV}, 1, v{RLV}", f"buffer_store_dword v{RLV}, off, s[28:31], s66 sc1", "s_mov_b64 exec, -1", "s_branch F_AL")
    last = (cstamp(9) if not (X("tcyc") or X("qcyc")) else []) + fstamp(1, "last") + laststep()
    h1 = E()(stamp(10), fstamp(1, "tail"), fstamp(5, "last"), "s_waitcnt vmcnt(24)", roles(), fstamp(6, "last"), tail_setup(), tail_vsetup(), fstamp(7, "last"), "s_waitcnt vmcnt(0)", fstamp(8, "last"), fstamp(2, "tail"), "s_barrier", wave0(signal(3)), fstamp(3, "tail"))
    preS, bodyS, ctlS, cS = tloop(False)
    preG, bodyG, ctlG, cG = tloop(True)
    hS = E()(preS, cstamp(8) if X("tcyc") else [])
    hG = E()(stamp(11), fstamp(4, "tail"), preG, cstamp(8) if X("tcyc") else [])
    sim = tpre(False) + [x for st in range(28) for x in tstage(st, False, cS)]
    q28 = [re.search(r"@(\S+)", l).group(1) for l in sim if l.startswith("buffer_")][-24:]
    finS = E()(resolve(tfinal(cS), q28), stamp(12), fstamp(6, "tail"), cstamp(9) if X("tcyc") else [])
    finG = E()(stamp(12), fstamp(6, "tail"), cstamp(9) if X("tcyc") else [], gfinal())
    end = tail_end()
    L(pro, ".p2align 6", "F_QL:", qloop, qctl, mid, s0, ".p2align 6", "F_AL:", *body, hooks, "F_LAST:", last,
      h1, f"s_cmp_eq_u32 s{sSP}, 3", "s_cbranch_scc1 F_TG", hS, ".p2align 6", "F_TLS:", bodyS, ctlS, finS, "s_branch F_TE",
      "F_TG:", hG, ".p2align 6", "F_TLG:", bodyG, ctlG, finG, "F_TE:", end, stamp_flush(0, 13, pWS, f"s{sWAVE}"), "F_END:", "s_endpgm")
    for k, par in enumerate(sites):
        L(f"F_TR{k}:", f"s_call_b64 s[{sRET}:{sRET+1}], F_SLOW{par}", f"s_branch F_BK{k}")
    L(flagspin("F_TSP", "F_TSB"), slow(0), slow(1), slow(2), slow(3))
    flat = lambda Z: [y for x in Z for y in x]
    tr = pro + (qloop + qctl)*3 + mid + s0 + flat(body) + flat(body) + last + h1
    check(tr + hS + (bodyS + ctlS)*7 + finS + end, "S")
    check(flagspin("A", "B") + bodyS, "spin")
    check(last + h1 + hG + (bodyG + ctlG)*6 + finG + end, "G")
    for n in range(4):
        b = body[n]
        idx = [i for i, x in enumerate(b) if x.startswith("F_BK")][0]
        check(body[(n-1) % 4] + b[:idx] + slow((3+n) % 4) + b[idx:] + body[(n+1) % 4], f"slow{n}")
    return L, kernel_desc(NAME, 512, 256), "; @launch grid=(256,1,1) block=(256,1,1) lds=163840"

def build(path, **kw):
    HDR = open("recurrent_scan__gqa_block_cached__dense_activation_relu__prompt.s.ref").read().split("; Override launch")[0]
    L, D, H = gen(**kw)
    L = [re.sub(r"\s*; @\S+$", "", l) for l in L]
    open(path, "w").write(HDR + H + "\n" + '.amdgcn_target "amdgcn-amd-amdhsa--gfx950"\n' + "\n".join(L) + "\n" + "\n".join(D) + "\n")
if __name__ == "__main__":
    for flag, mode in (("--ts", None), ("--tail", "tail"), ("--front", "front"), ("--last", "last"), ("--conv", "conv")):
        if flag in sys.argv:
            OPT["ts"] = True; OPT["mode"] = mode; sys.argv.remove(flag)
    build(sys.argv[1], exp=" ".join(sys.argv[2:]))
```

```python
from common import *
import re, sys

NAME = "recurrent_scan__gqa_block_cached__dense_activation_relu__prompt_kernel"
MF = "v_mfma_f32_16x16x32_bf16"
EXP = [""]
def X(flag): return flag in EXP[0].split()

KR, VR = 0, 49152
WA, WB = 65536, 114688
ST = 122880
OWN = 81920
pX, pK, pV, pWQ, pWO, pWS, pW1, pW2, pOUT, pDBG = 4, 6, 8, 10, 68, 70, 72, 74, 76, 78
sK_SRD, sV_SRD, sWQ_SRD, sW1_SRD, sXF_SRD, sOF_SRD, sFL = 12, 16, 20, 24, 28, 32, 80
sWAVE, sHEAD, sM64, sKo = 36, 37, 38, 39
sMK, sMV, sMW = 40, 44, 48
sWq, sW1, sX, sCNT, sC, sTHR, sO, sVo, sRET = 54, 55, 56, 57, 58, 60, 61, 63, 64
sH = [6, 7, 62]
sTMP, sU, sT, sQB = 66, 67, 84, 85
sRSRC, sRDST, sRM, sRS = 8, 20, 24, 25
QV, NM, S0, S1, P, KF, VF, ET, T_, L_ = 16, 48, 64, 96, 112, 176, 200, 224, 232, 236
AK, AV, DK, DV, CK, LX, RLV = 240, 242, 246, 249, 224, 253, 254
AF, DA, DB, DH, AWA, AWB, AH, LXB, LX8, LXB2 = 16, 40, 44, 46, 192, 200, 204, 207, 208, 209
CSCALE = math.log2(math.e) / math.sqrt(192.0)
THR = 2.0 ** 30
SPIN = 1 << 18

def srdn(b): return f"s[{b}:{b+3}]"
class E(list):
    def __call__(self, *x):
        for y in x:
            if isinstance(y, list): self.extend(y)
            else: self.append(y)
        return self
lab = [0]
def newlab(p):
    lab[0] += 1; return f"F_{p}{lab[0]}"
def wave0(body):
    l = newlab("W")
    return E()(f"s_cmp_lg_u32 s{sWAVE}, 0", f"s_cbranch_scc1 {l}", body, f"{l}:")

def poll(phase, mask, soff, wide=False, vaddr="v2"):
    l, d = newlab("P"), newlab("D")
    e = E()
    e(f"s_mov_b32 exec_lo, {mask[0]}", f"s_mov_b32 exec_hi, {mask[1]}", f"s_add_u32 s{sTMP}, s{sT}, {phase}", f"s_mov_b32 s{sU}, 0", f"{l}:")
    if wide:
        e(f"buffer_load_dwordx4 v[4:7], {vaddr}, {srdn(sFL)}, {soff} offen sc1", "s_waitcnt vmcnt(0)")
        for r in range(4): e(f"v_subrev_u32 v{4+r}, s{sTMP}, v{4+r}")
        e("v_max3_u32 v4, v4, v5, v6", "v_max_u32 v4, v4, v7")
    else:
        e(f"buffer_load_dword v4, {vaddr}, {srdn(sFL)}, {soff} offen sc1", "s_waitcnt vmcnt(0)", f"v_subrev_u32 v4, s{sTMP}, v4")
    e(f"v_cmp_lt_u32 vcc, {4-phase}, v4", f"s_add_u32 s{sU}, s{sU}, 1", f"s_cmp_gt_u32 s{sU}, {SPIN}", f"s_cbranch_scc1 {d}",
      f"s_cbranch_vccnz {l}", f"{d}:", "s_mov_b64 exec, -1")
    return e
def signal(phase):
    return E()(f"s_add_u32 s{sTMP}, s{sT}, {phase}", f"s_lshl_b32 s{sU}, s{sQB}, 5", f"s_add_u32 s{sU}, s{sU}, s{sHEAD}", f"s_lshl_b32 s{sU}, s{sU}, 2",
               f"v_mov_b32 v4, s{sTMP}", "v_mov_b32 v5, 0", "s_mov_b64 exec, 1",
               f"buffer_store_dword v4, v5, {srdn(sFL)}, s{sU} offen sc1", "s_mov_b64 exec, -1")

def qacc(ds, tb, qt):
    n = (ds*2 + tb)*4 + qt
    return R("a", 4*n) if n < 24 else R("v", 48 + 4*(n-24))
def hacc(tt, qt): return R("v", 144 + 4*(tt*4 + qt))
def BF(s, kk, qt): return a(96 + 32*(s % 3) + 16*kk + 4*qt, 4)
def ldB(s): return [f"buffer_load_dwordx4 {BF(s,kk,qt)}, v{LXB2 if kk else LXB}, {srdn(sXF_SRD)}, s{sX} offen offset:{1024*qt} sc1 ; @B{s}" for kk in range(2) for qt in range(4)]
advX = [f"s_add_u32 s{sX}, s{sX}, 8192"]
advW = [f"s_add_u32 s{sWq}, s{sWq}, 786432", f"s_add_u32 s{sW1}, s{sW1}, 196608"]
def dmaW(u):
    if u % 2 == 0: return [f"buffer_load_dwordx4 v{DA+t}, {srdn(sWQ_SRD)}, s{sWq} offen offset:{1024*t} lds ; @W{u}" for t in range(4)]
    return [f"buffer_load_dwordx4 v{DB+t}, {srdn(sWQ_SRD)}, s{sWq} offen offset:{1024*t} lds ; @W{u}" for t in range(2)] + \
           [f"buffer_load_dwordx4 v{DH+t}, {srdn(sW1_SRD)}, s{sW1} offen offset:{1024*(t+2)} lds ; @W{u}" for t in range(2)]
TCH, TCD = 210, 212
sTq, sT1 = 64, 65
def touch(): return [f"buffer_load_dword v{TCD}, v{TCH}, {srdn(sWQ_SRD)}, s{sTq} offen ; @T", f"buffer_load_dword v{TCD}, v{TCH+1}, {srdn(sW1_SRD)}, s{sT1} offen offset:3072 ; @T"]
advT = [f"s_add_u32 s{sTq}, s{sTq}, {3*786432}", f"s_add_u32 s{sT1}, s{sT1}, {3*196608}"]
def touch_addr(nst):
    return E()("v_mul_u32_u24 v1, 171, v0", "v_lshrrev_b32 v1, 9, v1", "v_mul_u32_u24 v2, 3, v1", "v_sub_u32 v2, v0, v2",
               "v_lshrrev_b32 v3, 1, v1", "v_and_b32 v1, 1, v1", "v_lshl_add_u32 v1, v3, 6, v1", f"v_add_u32 v1, s66, v1",
               "v_mul_lo_u32 v1, v1, s67", "v_lshl_add_u32 v1, v2, 7, v1", f"v_cmp_gt_u32 vcc, {6*nst}, v0", "v_bfrev_b32 v8, 1",
               "v_lshrrev_b32 v3, 2, v0", "v_bfe_u32 v2, v0, 1, 1", f"v_cndmask_b32 v{TCH}, v8, v1, vcc",
               "v_lshl_add_u32 v3, v3, 6, v2", "v_add_u32 v3, s66, v3", f"v_cmp_gt_u32 vcc, {4*nst}, v0", "v_mul_u32_u24 v3, 3072, v3",
               "v_and_b32 v2, 1, v0", "v_mul_u32_u24 v2, 92, v2", "v_add_u32 v3, v3, v2", f"v_cndmask_b32 v{TCH+1}, v8, v3, vcc")
def m0W(u): return f"s_mov_b32 m0, s{sMW + u % 6}"
def qtiles(u): return list(range(8)) if u % 2 == 0 else list(range(8, 15))
def qrd(s, T, kk, uu):
    dst = v(AF + 8*(T % 3) + 4*kk + 2*uu, 2)
    if T < 8: return f"ds_read_b64_tr_b16 {dst}, v{AWA + T} offset:{(s % 3)*16384 + kk*8192 + uu*1024}"
    reg = AWB + T - 8 if T < 12 else AH + T - 12
    return f"ds_read_b64_tr_b16 {dst}, v{reg} offset:{(s % 3)*16384 + kk*8192 + uu*512}"
def qsub(u, last=20, extra=None, vmw=None):
    extra = extra or {}
    s = u >> 1; TL = qtiles(u); nT = len(TL)
    L = []
    lb = ldB(s + 2) if (u % 2 == 0 and s + 2 < last//2) else []
    dw = dmaW(u + 5) if u + 5 < last else []
    for ti, T in enumerate(TL):
        for p in range(4):
            qt = p if T % 2 == 0 else 3 - p
            acc = (qacc(T >> 1, T & 1, qt) if T < 12 else hacc(T-12, qt))(4)
            for kk in range(2):
                g = 2*p + kk; gi = 8*ti + g
                L.append(f"{MF} {acc}, {v(AF + 8*(T % 3) + 4*kk, 4)}, {BF(s, kk, qt)}, {acc}")
                s2, T2 = s + (T+2)//15, (T+2) % 15
                if g < 4:
                    if 2*s2 < last: L.append(qrd(s2, T2, g >> 1, g & 1))
                    if g == 3:
                        left = 15*(last//2) - 1 - (15*s + T)
                        if left >= 1: L.append(f"s_waitcnt lgkmcnt({4 if left >= 2 else 0})")
                if lb and ti < 4 and g in (4, 6): L.append(lb[2*ti + (g-4)//2])
                if lb and ti == 4 and g == 4: L += advX
                if u % 6 == 0 and last > 20 and not X("notouch"):
                    if ti == 4 and g == 6: L.append(touch()[0])
                    if ti == 5 and g == 4: L.append(touch()[1])
                    if ti == 5 and g == 5: L += advT
                if ti == nT-3 and g == 6 and dw: L.append(m0W(u+5))
                if ti == nT-3 and g == 7 and vmw is not None: L += [f"s_waitcnt vmcnt({vmw})", "s_barrier"]
                if dw and ti >= nT-2 and g in (4, 6): L.append(dw[2*(ti-nT+2) + (g-4)//2])
                if dw and u % 2 == 0 and ti == nT-1 and g == 7: L += advW
                L += extra.get(gi, [])
    return L
def qcounts():
    q = [] if X("allW") else ["B1"]*8 + ["W2"]*4 + ["W3"]*4 + ["W4"]*4
    out = {}
    for u in range(18):
        for l in qsub(u, last=40, vmw="?"):
            if "vmcnt(?)" in l:
                need = ["W%d" % (u+1)] + (["B%d" % ((u+1)//2)] if u % 2 else [])
                idx = [i for i, x in enumerate(q) if x in need]
                if idx: out[u % 6] = min(out.get(u % 6, 63), len(q) - 1 - max(idx))
            if l.startswith("buffer_"): q.append(re.search(r"@(\S+)", l).group(1))
    return out, q

def convert():
    e = E()("s_nop 7")
    k = 0
    for tt in range(3):
        for qt in range(4):
            h = hacc(tt, qt); d = 2 + 2*(k % 6); k += 1
            e(f"v_cvt_pk_bf16_f32 v{d}, {h(1,0)}, {h(1,1)}", f"v_cvt_pk_bf16_f32 v{d+1}, {h(1,2)}, {h(1,3)}",
              f"v_pk_max_i16 v{d}, v{d}, 0", f"v_pk_max_i16 v{d+1}, v{d+1}, 0",
              f"buffer_store_dwordx2 {v(d,2)}, v{LX8}, {srdn(sOF_SRD)}, s{sH[tt]} offen offset:{1024*qt} sc1")
    for ds in (3, 4, 5, 0, 1, 2):
        dsts = []
        for qt in range(4):
            f = ds*4 + qt
            Xr, Yr = qacc(ds, 0, qt), qacc(ds, 1, qt)
            if Xr.f == "a":
                tx, ty = R("v", 144 + 8*qt), R("v", 148 + 8*qt)
                for r in range(4): e(f"v_accvgpr_read_b32 {tx(1,r)}, {Xr(1,r)}")
                for r in range(4): e(f"v_accvgpr_read_b32 {ty(1,r)}, {Yr(1,r)}")
                Xr, Yr = tx, ty
            d = QV + 4*(f-16) if f >= 16 else 176 + 4*qt
            dsts.append(d)
            for Z in (Xr, Yr):
                for r in (0, 2): e(f"v_pk_mul_f32 {Z(2,r)}, {Z(2,r)}, s[{sC}:{sC+1}]")
            e(f"v_cvt_pk_bf16_f32 v{d}, {Xr(1,0)}, {Xr(1,1)}", f"v_cvt_pk_bf16_f32 v{d+1}, {Xr(1,2)}, {Xr(1,3)}",
              f"v_cvt_pk_bf16_f32 v{d+2}, {Yr(1,0)}, {Yr(1,1)}", f"v_cvt_pk_bf16_f32 v{d+3}, {Yr(1,2)}, {Yr(1,3)}")
        e("s_mov_b32 exec_lo, 0")
        for d in dsts: e(f"v_swap_b32 v{d}, v{d+2}", f"v_swap_b32 v{d+1}, v{d+3}")
        e("s_mov_b32 exec_lo, -1")
        if ds < 4:
            for qt in range(4):
                for r in range(4): e(f"v_accvgpr_write_b32 a{192 + 4*(ds*4+qt) + r}, v{dsts[qt]+r}")
    return e

def Qf(f): return a(192 + 4*f, 4) if f < 16 else v(QV + 4*(f-16), 4)
def Oacc(dt, qt): return (dt*4 + qt)*4
def dmaK(t): return f"buffer_load_dwordx4 v{DK+t}, {srdn(sK_SRD)}, s{sKo} offen offset:{1024*t} lds"
def dmaV(t): return f"buffer_load_dwordx4 v{DV+t}, {srdn(sV_SRD)}, s{sVo} offen offset:{1024*t} lds"
def kvgroup(kind, j):
    so = sKo if kind == "K" else sVo
    return [f"s_mov_b32 m0, s{(sMK if kind=='K' else sMV) + j}", f"s_mov_b32 s{so}, {12288*j}"], [(dmaK(t) if kind == "K" else dmaV(t)) + f" ; @{kind}{j}" for t in range(3)]
def rdK(slot, kt, ds, dst=KF): return f"ds_read_b128 {v(dst+4*ds,4)}, v{AK+(ds&1)} offset:{slot*12288 + kt*6144 + (ds>>1)*128}"
def Pb(t): return P + 16*(t % 4)
def rdVp(m2, part, dst=VF):
    return [f"ds_read_b64_tr_b16 {v(dst + 8*dl + 4*tl + 2*u, 2)}, v{AV + ((3*part+dl) & 3)} offset:{((m2+tl) % 4)*12288 + u*6144 + ((3*part+dl) >> 2)*128}"
            for dl in range(3) for tl in range(2) for u in range(2)]
def qk(dst, src=KF, czero=False):
    o = []
    for qt in range(4):
        for ds in range(6):
            d = v(dst+4*qt, 4)
            c = ("0" if czero else v(NM+4*qt, 4)) if ds == 0 else d
            o.append(f"{MF} {d}, {v(src+4*ds,4)}, {Qf(ds*4+qt)}, {c}")
    return o
def pv(m2, part, czero=False, src=VF):
    o = []
    for dl in range(3):
        for p in range(4):
            qt = p if (3*part + dl) % 2 == 0 else 3 - p
            acc = a(Oacc(3*part+dl, qt), 4)
            for tl in range(2):
                o.append(f"{MF} {acc}, {v(src + 8*dl + 4*tl, 4)}, {v(Pb(m2+tl) + 4*qt, 4)}, {'0' if czero and tl == 0 else acc}")
    return o
def sm(src, qts, Pb, kt):
    Ex, Sx = [], []
    k = 0
    for qt in qts:
        for pr in range(2):
            t0 = ET + 2*k; t1 = t0 + 1; k += 1
            Ex += [f"v_exp_f32 v{t0}, v{src+4*qt+2*pr}", f"v_exp_f32 v{t1}, v{src+4*qt+2*pr+1}"]
            n = len(Ex)
            if kt == 0 and pr == 0: Sx.append((n, f"v_add_f32 v{T_+qt}, v{t0}, v{t1}"))
            else: Sx += [(n-1, f"v_add_f32 v{T_+qt}, v{T_+qt}, v{t0}"), (n, f"v_add_f32 v{T_+qt}, v{T_+qt}, v{t1}")]
            Sx.append((n, f"v_cvt_pk_bf16_f32 v{Pb+4*qt+2*kt+pr}, v{t0}, v{t1}"))
    return Ex, Sx
def quarter(mf, pat, Ex, Sx, D, B, salu):
    assert len(pat) == len(mf) == 24, (pat, len(pat))
    out = []; ei = si = di = bi = 0
    for gi, m in enumerate(mf):
        out.append(m); ty = pat[gi]
        sc = salu.get(gi, [])
        def take(n):
            nonlocal si
            r = []
            while n > 0 and si < len(Sx) and Sx[si][0] <= ei: r.append(Sx[si][1]); si += 1; n -= 1
            return r
        if ty == "e": out += sc + [Ex[ei]]; ei += 1
        elif ty == "d": out += [D[di]] + take(1) + sc; di += 1
        elif ty == "a": out += sc + take(2)
        elif ty == "1": out += sc + take(1)
        elif ty == "b": out += sc + [B[bi]]; bi += 1
        elif ty == "-": out += sc
        else: raise ValueError(ty)
    assert ei == len(Ex) and si == len(Sx) and di == len(D) and bi == len(B), (pat, ei, len(Ex), si, len(Sx), di, len(D), bi, len(B))
    return out
P1 = "ee" + "de"*6 + "d"*6 + "a1b-"
P2 = "de"*6 + "ee" + "baabaa" + "----"
P3 = "ed"*8 + "dddd" + "b---"
P4 = "ebeb" + "de"*6 + "aaa" + "-----"
CHK = [f"v_max3_f32 v{CK}, v{T_}, v{T_+1}, v{T_+2}", f"v_max_f32 v{CK}, v{CK}, v{T_+3}", f"v_cmp_lt_f32 vcc, s{sTHR}, v{CK}"]
LADD = [f"v_add_f32 v{L_+q}, v{L_+q}, v{T_+q}" for q in range(4)]
sites = []
def callsite(par):
    k = len(sites); sites.append(par)
    return [f"s_cbranch_vccnz F_TR{k}", f"F_BK{k}:"]
def step(i, vmw=12, tail=(), rl=None):
    par, slot = i & 1, i % 4
    S0n = S0 + 16*(1-par); Pc = Pb(i); Pn = Pb(i+1)
    m2 = i-1 if par else i-2
    p0 = 0 if par else 2
    nopv = i == 0; cz = i in (1, 2)
    mK = lambda j: f"s_mov_b32 m0, s{sMK + j % 4}"
    mV = lambda j: f"s_mov_b32 m0, s{sMV + j % 4}"
    aK = f"s_add_u32 s{sKo}, s{sKo}, 12288"; aV = f"s_add_u32 s{sVo}, s{sVo}, 12288"
    if par:
        B1 = [dmaV(2) + f" ; @V{i+1}"]; B2 = [dmaV(0) + f" ; @V{i+2}", dmaV(1) + f" ; @V{i+2}"]; B3 = [dmaV(2) + f" ; @V{i+2}"]
        B4 = [dmaK(0) + f" ; @K{i+4}", dmaK(1) + f" ; @K{i+4}"]; m2_, a2, a3, m4 = mV(i+2), aV, aV, mK(i+4)
    else:
        B1 = [dmaK(2) + f" ; @K{i+3}"]; B2 = [dmaK(0) + f" ; @K{i+4}", dmaK(1) + f" ; @K{i+4}"]; B3 = [dmaK(2) + f" ; @K{i+4}"]
        B4 = [dmaV(0) + f" ; @V{i+2}", dmaV(1) + f" ; @V{i+2}"]; m2_, a2, a3, m4 = mK(i+4), aK, aK, mV(i+2)
    L = []
    def emit(mf, pat, Ex, Sx, D, B, sal):
        if mf is None:
            sc = [x for g in sorted(sal) for x in sal[g] if not x.startswith("s_waitcnt")]
            return D + sc + ["s_nop 3"] + B + Ex + [x for _, x in Sx] + ["s_waitcnt lgkmcnt(0)"]
        return quarter(mf, pat, Ex, Sx, D, B, sal)
    Ex, Sx = sm(S1, [2, 3], Pc, 1)
    D1 = rdVp(m2, p0) if not nopv else []
    L += quarter(qk(S0n), P1 if D1 else P1.replace("d", "1"), Ex, Sx + [(8, x) for x in CHK], D1, B1, {23: ["s_waitcnt lgkmcnt(6)"]} if D1 else {})
    L += callsite(i % 4)
    Ex, Sx = sm(S0n, [0, 1], Pn, 0)
    pat = P2; D = [rdK((slot+1) % 4, 1, ds) for ds in range(6)]; B = B2
    sal = {3: [a2], 7: ["s_waitcnt lgkmcnt(4)"], 13: [m2_], 23: ["s_waitcnt lgkmcnt(0)"]}
    if rl == "dma":
        pat = P2[:20] + "b---"; B = B + [rl_dma() + " ; @R"]
        sal.update({18: [f"s_cmp_lt_u32 s{sCNT}, 9"], 19: [f"s_mov_b32 m0, s{sRM}"], 21: [f"s_cselect_b32 s{sTMP}, 128, s3"],
                    22: [m2_, f"s_add_u32 s{sRS}, s{sRS}, s{sTMP}"], 23: ["s_waitcnt lgkmcnt(0)", f"s_add_u32 s{sRM}, s{sRM}, 1024"]})
    if rl in ("tk", "tv"):
        pat = P2[:20] + "b---"
        B = B + [f"buffer_load_dword v1, v{KVT}, {srdn(sK_SRD if rl == 'tk' else sV_SRD)}, s{sKT} offen ; @T"]
        if rl == "tk": sal[22] = [f"s_add_u32 s{sKT}, s{sKT}, 49152"]
    if rl == "out":
        pat = P2[:20] + "dd--"; D = D + [rl_rd(0), rl_rd(1)]; sal[23] = ["s_waitcnt lgkmcnt(2)"]
    L += emit(None if nopv else pv(m2, p0, cz), pat, Ex, [(0, x) for x in LADD] + Sx, D, B, sal)
    Ex, Sx = sm(S0n, [2, 3], Pn, 0)
    D3 = rdVp(m2, p0+1) if not nopv else []
    sal = {21: [a3], 23: [f"s_waitcnt vmcnt({vmw}) lgkmcnt(0)", "s_barrier"]}
    L += quarter(qk(S1), P3 if D3 else P3.replace("d", "1"), Ex, Sx, D3, B3, sal)
    Ex, Sx = sm(S1, [0, 1], Pn, 1)
    sal = {0: [m4], 22: ["s_waitcnt lgkmcnt(0)"]}
    pat = P4; B = B4
    tail = list(tail)
    if tail:
        sal[19] = tail[:1]; sal[20] = tail[1:2]; sal[23] = tail[2:]
    if rl == "out":
        pat = P4[:19] + "b1---"; B = B + [rl_st() + " ; @S"]
        sal.update({5: [f"s_cmp_lt_u32 s{sCNT}, 10"], 7: [f"s_cselect_b32 s{sRJ}, 1024, 0"], 9: [f"s_sub_u32 s{sTMP}, s{sCNT}, 1"],
                    11: [f"s_cmp_lt_u32 s{sTMP}, 10"], 13: [f"s_cselect_b32 s{sTMP}, s{sRO}, s3"], 15: [f"s_cselect_b32 s{sRI}, 4096, 0"],
                    16: [f"s_add_u32 s{sRO}, s{sRO}, s{sRI}"], 17: [f"s_lshr_b32 s{sRI}, s{sRI}, 10"], 18: [f"s_add_u32 s{sRR}, s{sRR}, s{sRI}"],
                    20: [f"s_cmp_gt_u32 s{sRR}, 9"], 21: [f"s_cselect_b32 s{sRI}, {WF160 - 10240}, 0", f"s_cselect_b32 s{sTMP}, 10, 0"],
                    22: ["s_waitcnt lgkmcnt(0)", f"s_add_u32 s{sRO}, s{sRO}, s{sRI}"], 23: [f"s_sub_u32 s{sRR}, s{sRR}, s{sTMP}"]})
        Sx = Sx + [(8, f"v_add_u32 v{RTV}, s{sRJ}, v{RTV}")]
    L += emit(None if nopv else pv(m2, p0+1, cz), pat, Ex, Sx, [rdK((slot+2) % 4, 0, ds) for ds in range(6)], B, sal)
    return L
sRJ, sKT, KVT = 59, 58, 252
def kv_touch_addr(D):
    return E()(f"s_lshl_b32 s66, s{sQB}, 2", f"s_add_u32 s66, s66, s{sWAVE}", "s_mul_i32 s66, s66, 1536", "v_lshlrev_b32 v3, 7, v0", "v_add_u32 v3, s66, v3",
               "v_cmp_gt_u32 vcc, 12, v0", "v_bfrev_b32 v2, 1", f"s_mov_b32 s{sKT}, {D*12288}", f"v_cndmask_b32 v{KVT}, v2, v3, vcc")
def xlane(op, dst, tmp):
    L = []
    for sw in ("v_permlane16_swap_b32", "v_permlane32_swap_b32"):
        L += [f"v_mov_b32 v{tmp+qt}, v{dst+qt}" for qt in range(4)] + ["s_nop 1"]
        L += [f"{sw} v{dst+qt}, v{tmp+qt}" for qt in range(4)]
        L += [f"{op} v{dst+qt}, v{dst+qt}, v{tmp+qt}" for qt in range(4)]
    return L
def rowmax(dst, srcs, tmp):
    L = []
    for qt in range(4):
        r = srcs(qt); d = dst + qt
        L += [f"v_max3_f32 v{d}, v{r[0]}, v{r[1]}, v{r[2]}", f"v_max3_f32 v{d}, v{d}, v{r[3]}, v{r[4]}",
              f"v_max3_f32 v{d}, v{d}, v{r[5]}, v{r[6]}", f"v_max_f32 v{d}, v{d}, v{r[7]}"]
    return L + xlane("v_max_f32", dst, tmp)
def init():
    e = E()("s_waitcnt vmcnt(@K0)", "s_barrier", fstamp(3, "conv"))
    for ds in range(6): e(rdK(0, 0, ds))
    for ds in range(6): e(rdK(0, 1, ds, VF))
    m, d = kvgroup("V", 1); e(m, d)
    m, d = kvgroup("K", 3); e(m, d[:2])
    e(kv_touch_addr(4))
    for _ in range(2):
        e(f"buffer_load_dword v1, v{KVT}, {srdn(sK_SRD)}, s{sKT} offen ; @T", f"buffer_load_dword v1, v{KVT}, {srdn(sV_SRD)}, s{sKT} offen ; @T", f"s_add_u32 s{sKT}, s{sKT}, 49152")
    e(f"s_mov_b32 s{sVo}, {2*12288}")
    for q in range(4): e(f"v_mov_b32 v{L_+q}, 0")
    e(fstamp(4, "conv"), "s_waitcnt lgkmcnt(6)", qk(S0, KF, True), "s_waitcnt vmcnt(@K1) lgkmcnt(0)", "s_barrier", fstamp(5, "conv"))
    m = qk(S1, VF, True)
    rd = [rdK(1, 0, ds) for ds in range(6)]
    for i, x in enumerate(m):
        e(x)
        if i < 6: e(rd[i])
    e("s_nop 7", fstamp(6, "conv"))
    D, TM = 2, 6
    e(rowmax(D, lambda qt: [S0+4*qt+r for r in range(4)] + [S1+4*qt+r for r in range(4)], TM))
    for qt in range(4): e(f"v_ceil_f32 v{D+qt}, v{D+qt}")
    for qt in range(4):
        for r in range(4):
            e(f"v_sub_f32 v{NM+4*qt+r}, 0, v{D+qt}", f"v_sub_f32 v{S0+4*qt+r}, v{S0+4*qt+r}, v{D+qt}", f"v_sub_f32 v{S1+4*qt+r}, v{S1+4*qt+r}, v{D+qt}")
    for src, qts, kt in ((S0, [0, 1], 0), (S0, [2, 3], 0), (S1, [0, 1], 1)):
        Ex, Sx = sm(src, qts, Pb(0), kt)
        e(Ex, [x for _, x in Sx])
    e("s_waitcnt lgkmcnt(0)")
    return e
def slow(k):
    par = k & 1
    S0c = S0 + 16*par; S0n = S0 + 16*(1-par)
    e = E()(f"F_SLOW{k}:", "s_nop 7", "s_nop 7")
    D, TM = 2, 6
    e(rowmax(D, lambda qt: [S0c+4*qt+r for r in range(4)] + [S1+4*qt+r for r in range(4)], TM))
    for qt in range(4): e(f"v_max_f32 v{D+qt}, 0, v{D+qt}", f"v_ceil_f32 v{D+qt}, v{D+qt}", f"v_sub_f32 v{TM+qt}, 0, v{D+qt}", f"v_cvt_i32_f32 v{TM+qt}, v{TM+qt}")
    for qt in range(4):
        e(f"v_ldexp_f32 v{L_+qt}, v{L_+qt}, v{TM+qt}")
        for base in (NM, S0c, S1, S0n):
            for r in range(4): e(f"v_sub_f32 v{base+4*qt+r}, v{base+4*qt+r}, v{D+qt}")
    for t in ([k-1] if par else [k-1, k-2]):
        for qt in range(4):
            for r in range(4):
                p = Pb(t) + 4*qt + r
                e(f"v_lshlrev_b32 v10, 16, v{p}", f"v_and_b32 v11, 0xffff0000, v{p}", f"v_ldexp_f32 v10, v10, v{TM+qt}", f"v_ldexp_f32 v11, v11, v{TM+qt}",
                  f"v_cvt_pk_bf16_f32 v{p}, v10, v11")
    for dt in range(12):
        for qt in range(4):
            b = Oacc(dt, qt)
            for r in range(2):
                e(f"v_accvgpr_read_b32 v10, a{b+2*r}", f"v_accvgpr_read_b32 v11, a{b+2*r+1}", f"v_ldexp_f32 v10, v10, v{TM+qt}", f"v_ldexp_f32 v11, v11, v{TM+qt}",
                  f"v_accvgpr_write_b32 a{b+2*r}, v10", f"v_accvgpr_write_b32 a{b+2*r+1}, v11")
    for src, qts, kt in ((S0c, [0, 1], 0), (S0c, [2, 3], 0), (S1, [0, 1], 1), (S1, [2, 3], 1)):
        Ex, Sx = sm(src, qts, Pb(k), kt)
        e(Ex, [x for _, x in Sx])
    e("s_nop 1", f"s_setpc_b64 s[{sRET}:{sRET+1}]")
    return e

def relayout_src():
    return E()("s_cmp_lt_u32 s2, 192", f"s_cselect_b32 s{sRSRC}, s{pWO}, s{pW2}", f"s_cselect_b32 s{sRSRC+1}, s{pWO+1}, s{pW2+1}", "s_cselect_b32 s66, 0, 192",
               "s_sub_u32 s66, s2, s66", "s_mul_i32 s66, s66, 40960", f"s_add_u32 s{sRSRC}, s{sRSRC}, s66", f"s_addc_u32 s{sRSRC+1}, s{sRSRC+1}, 0",
               "s_cmp_lt_u32 s2, 240", f"s_cselect_b32 s{sRSRC+2}, 40960, 0", f"s_mov_b32 s{sRSRC+3}, 0x20000")
def relayout_dst():
    return E()("s_mul_i32 s66, s2, 10240", f"s_add_u32 s67, s66, {hx(WS_WF)}", f"s_sub_u32 s{sRDST+2}, {4*WF160}, s66",
               "s_cmp_lt_u32 s2, 240", f"s_cselect_b32 s{sRDST+2}, s{sRDST+2}, 0", f"s_cselect_b32 s67, s67, {hx(WS_WF)}",
               f"s_add_u32 s{sRDST}, s{pWS}, s67", f"s_addc_u32 s{sRDST+1}, s{pWS+1}, 0", f"s_mov_b32 s{sRDST+3}, 0x20000",
               f"s_mul_i32 s{sRM}, s{sWAVE}, 10240", f"s_add_u32 s{sRM}, s{sRM}, {ST}", f"s_mov_b32 s{sRS}, 0",
               f"s_lshl_b32 s{sRO}, s{sWAVE}, 10", f"s_mov_b32 s{sRR}, s{sWAVE}")
RTV, RTD = 255, 12
sRO, sRR, sRI = 26, 27, 62
def relayout_vaddr():
    return E()("v_lshrrev_b32 v1, 2, v0", "v_and_b32 v1, 7, v1", "v_lshlrev_b32 v2, 7, v1", "v_lshrrev_b32 v3, 5, v0", "v_mul_u32_u24 v3, 10240, v3", "v_add_u32 v2, v2, v3",
               "v_and_b32 v3, 3, v0", "v_lshl_add_u32 v2, v3, 3, v2", f"v_add_u32 v2, {ST - 1024}, v2", "v_lshrrev_b32 v1, 1, v1", "v_lshlrev_b32 v1, 5, v1",
               f"s_lshl_b32 s66, s{sWAVE}, 5", "v_xor_b32 v1, s66, v1", f"v_add_u32 v{RTV}, v1, v2")
def rl_dma(): return f"buffer_load_dwordx4 v{RLV}, {srdn(sRSRC)}, s{sRS} offen lds"
def rl_rd(u): return f"ds_read_b64_tr_b16 {v(RTD+2*u,2)}, v{RTV} offset:{20480*u}"
def rl_st(): return f"buffer_store_dwordx4 {v(RTD,4)}, v{LX}, {srdn(sRDST)}, s{sTMP} offen sc1"

def front():
    e = E()
    e("s_load_dwordx8 s[4:11], s[0:1], 0", f"s_load_dwordx2 s[{pWO}:{pWO+1}], s[0:1], 32", f"s_load_dwordx4 s[{pW1}:{pW1+3}], s[0:1], 48",
      f"s_load_dwordx4 s[{pOUT}:{pOUT+3}], s[0:1], 64", f"s_load_dwordx2 s[{pWS}:{pWS+1}], s[0:1], 80")
    if not X("nopf"):
        e("s_getpc_b64 s[66:67]", "F_PC:", "v_lshrrev_b32 v1, 6, v0", "s_lshr_b32 s62, s2, 3", "s_mul_i32 s62, s62, 1536", "s_add_u32 s62, s62, 8192 - 512",
          "v_and_b32 v2, 63, v0", "v_lshlrev_b32 v4, 7, v2", "v_and_b32 v2, 3, v0", "v_lshl_add_u32 v2, v1, 2, v2", "v_lshlrev_b32 v2, 7, v2", "v_add_u32 v2, s62, v2",
          "v_cmp_eq_u32 vcc, 0, v1", "v_mov_b32 v5, s67", "s_nop 0", "v_cndmask_b32 v4, v2, v4, vcc", "v_min_u32 v4, F_END-F_PC, v4",
          "v_add_co_u32 v4, vcc, s66, v4", "s_nop 1", "v_addc_co_u32 v5, vcc, 0, v5, vcc", f"global_load_dword v{TCD+1}, v[4:5], off")
    e(wave_id(f"s{sWAVE}"), stamp(0), "s_mov_b32 s3, 0x10000000")
    if X("early0"): e("s_mov_b32 s88, s100")
    e("s_and_b32 s66, s2, 7", "s_lshl_b32 s66, s66, 2", "s_lshr_b32 s67, s2, 3", "s_and_b32 s67, s67, 3", f"s_add_u32 s{sHEAD}, s66, s67",
      f"s_lshr_b32 s{sQB}, s2, 5", f"s_lshl_b32 s66, s{sQB}, 2", f"s_add_u32 s{sM64}, s66, s{sWAVE}")
    e(f"s_lshl_b32 s66, s{sQB}, 5", f"s_add_u32 s66, s66, s{sHEAD}", "s_lshl_b32 s66, s66, 2", f"s_add_u32 s66, s66, s{sWAVE}", "s_lshl_b32 s62, s66, 1",
      "s_mul_i32 s66, s62, 1280",
      "v_lshrrev_b32 v1, 5, v0", "v_and_b32 v2, 31, v0", "v_mul_u32_u24 v3, 1280, v1", "v_lshl_add_u32 v3, v2, 3, v3",
      f"v_lshlrev_b32 v{LX}, 4, v0", f"s_or_b32 s{sKo}, s2, s{sWAVE}")
    e("s_waitcnt lgkmcnt(0)", fstamp(1))
    e(srd(12, pX, pX+1, 2560, "s66"))
    XR, XX = 64, 80
    for m in range(5): e(f"buffer_load_dwordx2 {v(XR+2*m,2)}, v3, s[12:15], 0 offen offset:{256*m}")
    e(srd(sFL, pWS, pWS+1, 1024, WS_FL), f"s_cmp_eq_u32 s{sKo}, 0", f"s_cselect_b32 s{sFL+2}, 1024, 0",
      f"buffer_load_dwordx4 v[76:79], v{LX}, {srdn(sFL)}, 0 offen sc1", f"s_mov_b32 s{sFL+2}, 1024")
    e("s_lshr_b32 s66, s62, 6", f"s_mul_i32 s66, s66, {XF_BLK}", "s_and_b32 s67, s62, 63", "s_lshl_b32 s67, s67, 6", "s_add_u32 s66, s66, s67",
      f"s_sub_u32 s67, {XF_BLK}, s67")
    e(srd(16, pWS, pWS+1, "s67", "s66"))
    e("v_lshrrev_b32 v13, 3, v2", "v_lshlrev_b32 v13, 12, v13", "v_lshl_add_u32 v13, v1, 6, v13", "v_and_b32 v3, 7, v0", "v_lshl_add_u32 v13, v3, 3, v13")
    e(f"s_mul_i32 s66, s{sHEAD}, 384", "s_sub_u32 s67, 7864320, s66"); e(srd(sWQ_SRD, pWQ, pWQ+1, "s67", "s66"))
    e(f"s_mul_i32 s66, s{sHEAD}, 96", "s_sub_u32 s67, 1969152, s66", f"s_sub_u32 s{pW1}, s{pW1}, 3072", f"s_subb_u32 s{pW1+1}, s{pW1+1}, 0")
    e(srd(sW1_SRD, pW1, pW1+1, "s67", "s66"))
    e(f"s_lshl_b32 s66, s{sWAVE}, 4", "s_mov_b32 s67, 12288")
    e("v_lshrrev_b32 v1, 4, v0", "v_and_b32 v2, 15, v0", "v_lshlrev_b32 v3, 1, v1", "v_xor_b32 v2, v2, v3", "v_add_u32 v3, s66, v1", "v_mul_lo_u32 v3, v3, s67",
      f"v_lshl_add_u32 v{DA}, v2, 4, v3", f"v_add_u32 v{DA+1}, {4*12288 - 1024}, v{DA}", "v_xor_b32 v2, 8, v2", "v_lshl_add_u32 v3, v2, 4, v3",
      f"v_add_u32 v{DA+2}, {8*12288 - 2048}, v3", f"v_add_u32 v{DA+3}, {12*12288 - 3072}, v3")
    e("v_lshrrev_b32 v1, 3, v0", "v_and_b32 v2, 7, v0", "v_and_b32 v3, 2, v1", "v_xor_b32 v2, v2, v3", "v_add_u32 v3, s66, v1", "v_mul_lo_u32 v4, v3, s67",
      "v_add_u32 v4, 256, v4", f"v_lshl_add_u32 v{DB}, v2, 4, v4", "v_xor_b32 v5, 4, v2", "v_lshl_add_u32 v4, v5, 4, v4", f"v_add_u32 v{DB+1}, {8*12288 - 1024}, v4",
      "v_mul_u32_u24 v3, 3072, v3", "v_bfrev_b32 v8, 1", "v_cmp_gt_u32 vcc, 6, v2", "v_lshl_add_u32 v6, v2, 4, v3", "v_add_u32 v6, 1024, v6",
      f"v_cndmask_b32 v{DH}, v8, v6, vcc", "v_cmp_gt_u32 vcc, 6, v5", "v_lshl_add_u32 v6, v5, 4, v3", f"v_add_u32 v6, {8*3072}, v6",
      f"v_cndmask_b32 v{DH+1}, v8, v6, vcc")
    e(f"s_lshl_b32 s66, s{sWAVE}, 12")
    for u in range(6): e(f"s_add_u32 s{sMW+u}, s66, {(WB if u % 2 else WA) + 16384*(u >> 1)}")
    e(f"s_mov_b32 s{sWq}, 0", f"s_mov_b32 s{sW1}, 0")
    NE = 5 if X("allW") else 2
    def wgrp(lo, hi):
        o = E()
        for u in range(lo, hi):
            o(m0W(u), "s_nop 0", dmaW(u))
            if u % 2: o(advW)
        return o
    e(wgrp(0, NE))
    NT = 0 if X("notouch") else 2
    if NT:
        e(f"s_lshl_b32 s66, s{sQB}, 3", f"s_lshl_b32 s67, s{sWAVE}, 1", "s_add_u32 s66, s66, s67", "s_mov_b32 s67, 12288", touch_addr(4),
          f"s_mov_b32 s{sTq}, 786432", f"s_mov_b32 s{sT1}, 196608", touch())
    e(fstamp(2), f"s_waitcnt vmcnt({4*NE + NT})", stamp(1), fstamp(3))
    l1 = newlab("T")
    e(srd(12, pDBG, pDBG+1, 4), "v_mov_b32 v27, 0", f"s_cmp_lg_u32 s{sKo}, 0", f"s_cbranch_scc1 {l1}")
    e("v_and_b32 v1, 15, v0", "v_lshlrev_b32 v1, 2, v1", "ds_write_b32 v1, v27")
    for r in range(4):
        e(f"v_bfe_u32 v{4+r}, v{76+r}, 3, 9", f"v_lshrrev_b32 v{8+r}, 5, v{4+r}", f"v_lshlrev_b32 v{8+r}, 2, v{8+r}",
          f"v_and_b32 v{4+r}, 31, v{4+r}", f"v_lshlrev_b32_e64 v{4+r}, v{4+r}, 1")
    for r in range(4): e(f"ds_or_b32 v{8+r}, v{4+r}")
    e("ds_read_b32 v2, v1", "s_waitcnt lgkmcnt(0)", "v_not_b32 v2, v2", "v_ffbl_b32 v2, v2", "v_cmp_ne_u32 vcc, -1, v2",
      "s_nop 4", "s_ff1_i32_b64 s66, vcc", "s_nop 1", "v_readlane_b32 s67, v2, s66", "s_nop 4", "s_lshl_b32 s66, s66, 5", "s_add_u32 s66, s66, s67",
      "s_lshl_b32 s66, s66, 3", "s_or_b32 s66, s66, 0x40000000", "v_mov_b32 v26, s66",
      "s_mov_b64 exec, 1", "buffer_store_dword v26, v27, s[12:15], 0 offen sc1", "s_mov_b64 exec, -1", f"{l1}:")
    for i in range(10): e(f"v_lshlrev_b32 v{XX+2*i}, 16, v{XR+i}", f"v_and_b32 v{XX+2*i+1}, 0xffff0000, v{XR+i}")
    def reduce32(r, t):
        o = []
        for sh in (8, 4, 2, 1): o += ["s_nop 1", f"v_add_f32_dpp {r}, {r}, {r} row_ror:{sh} row_mask:0xf bank_mask:0xf"]
        return o + [f"v_mov_b32 {t}, {r}", "s_nop 1", f"v_permlane16_swap_b32 {r}, {t}", f"v_add_f32 {r}, {r}, {t}"]
    e(f"v_add_f32 v10, v{XX}, v{XX+1}", f"v_add_f32 v11, v{XX+2}, v{XX+3}")
    for i in range(4, 20, 2): e(f"v_add_f32 v10, v10, v{XX+i}", f"v_add_f32 v11, v11, v{XX+i+1}")
    e("v_add_f32 v10, v10, v11", reduce32("v10", "v11"))
    e(f"s_mov_b32 s66, {hx(f2u(1.0/640))}", "v_mul_f32 v10, s66, v10", "v_mov_b32 v11, 0", "v_mov_b32 v12, 0")
    for i in range(0, 20, 2):
        e(f"v_sub_f32 v1, v{XX+i}, v10", f"v_sub_f32 v2, v{XX+i+1}, v10", "v_fmac_f32 v11, v1, v1", "v_fmac_f32 v12, v2, v2")
    e("v_add_f32 v11, v11, v12", reduce32("v11", "v12"), "v_mul_f32 v11, s66, v11")
    e("v_cvt_pk_bf16_f32 v10, v10, v11", "v_and_b32 v11, 0xffff0000, v10", "v_lshlrev_b32 v10, 16, v10")
    e(f"v_add_f32 v11, {hx(f2u(1e-5))}, v11", "v_cvt_pk_bf16_f32 v11, v11, v11", "v_lshlrev_b32 v11, 16, v11",
      "v_sqrt_f32 v11, v11", "s_nop 0", "v_cvt_pk_bf16_f32 v11, v11, v11", "v_lshlrev_b32 v11, 16, v11", "v_rcp_f32 v11, v11", "s_nop 0")
    for i in range(10):
        a0, a1 = XX+2*i, XX+2*i+1
        e(f"v_sub_f32 v{a0}, v{a0}, v10", f"v_sub_f32 v{a1}, v{a1}, v10", f"v_cvt_pk_bf16_f32 v1, v{a0}, v{a1}",
          f"v_lshlrev_b32 v{a0}, 16, v1", f"v_and_b32 v{a1}, 0xffff0000, v1",
          f"v_mul_f32 v{a0}, v{a0}, v11", f"v_mul_f32 v{a1}, v{a1}, v11", f"v_cvt_pk_bf16_f32 v{XR+i}, v{a0}, v{a1}")
        if i % 2: e(f"s_mov_b32 s66, {16384*(i//2)}", f"buffer_store_dwordx2 {v(XR+i-1,2)}, v13, s[16:19], s66 offen sc1")
    e(stamp(2), fstamp(4))
    e("v_lshrrev_b32 v1, 4, v0", "v_lshrrev_b32 v2, 2, v0", "v_and_b32 v2, 3, v2", "v_and_b32 v3, 3, v0",
      "v_and_b32 v5, 1, v1", "v_lshlrev_b32 v4, 1, v2", "v_lshl_or_b32 v4, v5, 3, v4",
      "v_lshl_add_u32 v6, v1, 3, v2", "v_lshlrev_b32 v6, 8, v6", f"v_add_u32 v6, {WA}, v6", "v_lshrrev_b32 v7, 1, v3")
    for T in range(8):
        e(f"v_or_b32 v8, {4*(T >> 1)}, v3", "v_xor_b32 v8, v8, v4", "v_lshl_add_u32 v8, v8, 4, v6", f"v_xor_b32 v9, {T & 1}, v7", f"v_lshl_add_u32 v{AWA+T}, v9, 3, v8")
    e("v_and_b32 v4, 2, v2", "v_lshl_or_b32 v4, v5, 2, v4",
      "v_lshl_add_u32 v6, v5, 3, v2", "v_lshlrev_b32 v6, 7, v6", "v_lshrrev_b32 v8, 1, v1", "v_lshl_add_u32 v6, v8, 12, v6", f"v_add_u32 v6, {WB}, v6")
    for T in range(4):
        e(f"v_or_b32 v8, {4*(T >> 1)}, v3", "v_xor_b32 v8, v8, v4", "v_lshl_add_u32 v8, v8, 4, v6", f"v_xor_b32 v9, {T & 1}, v7", f"v_lshl_add_u32 v{AWB+T}, v9, 3, v8")
    e("v_add_u32 v6, 2048, v6", "v_lshl_add_u32 v6, v3, 3, v6")
    for tt in range(3): e(f"v_xor_b32 v8, {2*tt}, v4", f"v_lshl_add_u32 v{AH+tt}, v8, 4, v6")
    e(fstamp(5))
    lp, ld = newlab("P"), newlab("D")
    tagpoll = E()(f"s_mov_b32 s{sU}, 0", f"{lp}:", "buffer_load_dword v26, v27, s[12:15], 0 offen sc1", "s_waitcnt vmcnt(0)", f"v_readfirstlane_b32 s{sT}, v26",
                  f"s_add_u32 s{sU}, s{sU}, 1", f"s_cmp_gt_u32 s{sU}, {SPIN}", f"s_cbranch_scc1 {ld}",
                  f"s_cmp_eq_u32 s{sT}, 0", f"s_cbranch_scc1 {lp}", f"{ld}:")
    e(wave0(tagpoll), "s_waitcnt vmcnt(0)", fstamp(6), "s_barrier", stamp(3), fstamp(7))
    e(wave0(signal(1)), fstamp(8))
    e("v_lshrrev_b32 v1, 3, v0", "v_and_b32 v2, 7, v0", f"s_mul_i32 s62, s{sWAVE}, 3072", f"s_lshl_b32 s66, s{sWAVE}, 2")
    for t in range(3):
        e(f"v_add_u32 v3, {8*t}, v1", "v_mul_u32_u24 v4, 171, v3", "v_lshrrev_b32 v4, 9, v4",
          "v_lshrrev_b32 v5, 1, v4", "v_add_u32 v6, s66, v5", "v_and_b32 v6, 7, v6", "v_xor_b32 v6, v2, v6",
          "v_lshlrev_b32 v7, 7, v1", "v_add_u32 v7, s62, v7", f"v_lshl_add_u32 v{DK+t}, v6, 4, v7",
          "v_and_b32 v5, 3, v5", "v_lshlrev_b32 v5, 1, v5", "v_xor_b32 v5, v2, v5", f"v_lshl_add_u32 v{DV+t}, v5, 4, v7")
    for i in range(4): e(f"s_add_u32 s{sMK+i}, s62, {KR + 12288*i}", f"s_add_u32 s{sMV+i}, s62, {VR + 12288*i}")
    e("v_and_b32 v3, 6, v1", "v_xor_b32 v3, v2, v3", "v_mul_u32_u24 v4, 1280, v1", "v_lshl_add_u32 v4, v3, 4, v4", f"s_mul_i32 s66, s{sWAVE}, 10240", f"v_add_u32 v{RLV}, s66, v4")
    e(f"s_mul_i32 s66, s{sM64}, {XF_BLK}")
    if WS_XF: e(f"s_add_u32 s66, s66, {hx(WS_XF)}")
    e(srd(sXF_SRD, pWS, pWS+1, XF_BLK, "s66"))
    e("v_and_b32 v1, 15, v0", "v_lshrrev_b32 v2, 4, v0", "v_lshlrev_b32 v1, 6, v1", f"v_lshl_add_u32 v{LXB}, v2, 4, v1", f"v_add_u32 v{LXB2}, 4096, v{LXB}",
      f"v_lshlrev_b32 v{LX8}, 3, v0", f"s_mov_b32 s{sX}, 0")
    e(f"s_mul_i32 s66, s{sHEAD}, 786432"); e(srd(sK_SRD, pK, pK+1, 786432, "s66"), srd(sV_SRD, pV, pV+1, 786432, "s66"), relayout_src())
    e(f"s_mul_i32 s66, s{sM64}, {OF_BLK}", f"s_add_u32 s66, s66, {hx(WS_OF)}"); e(srd(sOF_SRD, pWS, pWS+1, OF_BLK, "s66"))
    e(f"s_mov_b32 s{sC}, {hx(f2u(CSCALE))}", f"s_mov_b32 s{sC+1}, {hx(f2u(CSCALE))}", f"s_mov_b32 s{sTHR}, {hx(f2u(THR))}")
    e(f"s_mul_i32 s{sO}, s{sHEAD}, 24576")
    for tt in range(3):
        e(f"s_mul_i32 s66, s{sHEAD}, 3", f"s_add_u32 s66, s66, {tt}", "s_and_b32 s67, s66, 1", "s_lshl_b32 s67, s67, 9",
          "s_lshr_b32 s66, s66, 1", "s_add_u32 s66, s66, 192", "s_lshl_b32 s66, s66, 12", f"s_add_u32 s{sH[tt]}, s66, s67")
    e("v_lshrrev_b32 v1, 4, v0", "v_and_b32 v3, 3, v0",
      "v_lshrrev_b32 v5, 2, v0", "v_mul_u32_u24 v6, 384, v5", f"v_add_u32 v6, {VR}, v6", "v_lshl_add_u32 v6, v3, 3, v6",
      "v_lshrrev_b32 v5, 1, v5", "v_and_b32 v5, 3, v5", "v_lshlrev_b32 v5, 1, v5")
    for sg in range(4): e(f"v_xor_b32 v8, {2*sg}, v5", f"v_lshl_add_u32 v{AV+sg}, v8, 4, v6")
    e("v_and_b32 v2, 15, v0", "v_mul_u32_u24 v6, 384, v2", "v_lshrrev_b32 v2, 1, v2", "v_xor_b32 v2, v2, v1")
    e(f"v_lshl_add_u32 v{AK}, v2, 4, v6", "v_xor_b32 v2, 4, v2", f"v_lshl_add_u32 v{AK+1}, v2, 4, v6", relayout_vaddr(), fstamp(9))
    if NT:
        e(f"s_lshl_b32 s66, s{sQB}, 3", f"s_lshl_b32 s67, s{sWAVE}, 1", "s_add_u32 s66, s66, s67", "s_mov_b32 s67, 12288", touch_addr(3),
          f"s_mov_b32 s{sTq}, {5*786432}", f"s_mov_b32 s{sT1}, {5*196608}")
    for i in range(96): e(f"v_accvgpr_write_b32 a{i}, 0")
    for i in range(48, 192): e(f"v_mov_b32 v{i}, 0")
    e(wave0([f"v_lshlrev_b32 v2, 2, v0", f"s_lshl_b32 s{sCNT}, s{sQB}, 7"] + poll(1, ("-1", "0"), f"s{sCNT}")))
    e("s_barrier", fstamp(10))
    for k in range(2): e(ldB(k), advX)
    e([qrd(0, T, kk, uu) for T in range(2) for kk in range(2) for uu in range(2)], wgrp(NE, 5))
    e(f"s_mov_b32 s{sCNT}, 0", fstamp(11), f"s_waitcnt vmcnt({8 + 4*(5-NE) if NE == 2 else 0}) lgkmcnt(4)", stamp(5), fstamp(12))
    return e

TB, TA, TAD, TD, TB8 = 16, 96, 160, 162, 164
sTW, sTB, sMT, sSP = 39, 58, 40, 54
LEAD = 3
def tacc(nt, qt): return (nt*2 + qt)*4
def t_rd(st, nt, kk, dst):
    slot = st % 4
    return f"ds_read_b128 {v(dst, 4)}, v{TAD + slot//3} offset:{(slot%3)*20480 + (kk*10 + nt)*1024}"
def t_A(st, nt, kk): return TA + 8*((10*st + nt) % 4) + 4*kk
def t_B(st, kk, qt): return TB + 16*(st % 4) + 8*kk + 4*qt
def t_ldB(st, g):
    if not g: return [f"buffer_load_dwordx4 {v(t_B(st,kk,qt), 4)}, v{LX}, s[16:19], s{sTB + kk} offen offset:{1024*qt} sc1 ; @B{st}" for kk in range(2) for qt in range(2)]
    return [f"buffer_load_dwordx2 {v(t_B(st,kk,qt) + 2*h, 2)}, v{TB8}, s[16:19], s{sTB + kk} offen offset:{1024*qt + 512*h} sc1 ; @B{st}" for kk in range(2) for qt in range(2) for h in range(2)]
t_advB = [f"s_add_u32 s{sTB}, s{sTB}, 8192", f"s_add_u32 s{sTB+1}, s{sTB+1}, 8192"]
def t_dmaW(st, t): return f"buffer_load_dwordx4 v{TD + (t == 4)}, s[12:15], s{sTW} offen offset:{1024*(t%4)} lds ; @W{st}"
def t_m0(st, t): return f"s_add_u32 m0, s{sMT}, {(st%4)*20480 + (4096 if t == 4 else 0)}"
t_advW = [f"s_add_u32 s{sTW}, s{sTW}, 20480"]
def tplan(g):
    if g: pl = {2: ("W", LEAD-1, 3), 3: ("B", 0), 6: ("B", 1), 7: ("B", 2), 11: ("W", LEAD-1, 4), 10: ("B", 3), 14: ("B", 4), 15: ("B", 5), 19: ("B", 6), 22: ("B", 7)}
    else: pl = {2: ("W", LEAD-1, 3), 6: ("B", 0), 11: ("W", LEAD-1, 4), 15: ("B", 1), 19: ("B", 2), 23: ("B", 3)}
    pl.update({30: ("W", LEAD, 0), 34: ("W", LEAD, 1), 38: ("W", LEAD, 2)})
    return pl
sIT, sCP, sNW, sNB, sNF, sDA, sDB, FV, FA_ = 50, 52, 53, 49, 47, 45, 43, 166, 165
def decode():
    return [f"s_and_b32 s{sDA}, s{sIT}, 7", f"s_lshl_b32 s{sDA}, s{sDA}, 2", f"s_lshr_b32 s{sDA}, s{sCP}, s{sDA}", f"s_and_b32 s{sDA}, s{sDA}, 7",
            f"s_bfe_u32 s{sDB}, s{sIT}, 0x20003", f"s_lshl_b32 s{sNF}, s{sDA}, 4", f"s_add_u32 s{sNF}, s{sNF}, s48",
            f"s_mul_i32 s{sDA}, s{sDA}, 3", f"s_add_u32 s{sDA}, s{sDA}, s{sDB}", f"s_mul_i32 s{sNW}, s{sDA}, 81920", f"s_lshl_b32 s{sNB}, s{sDA}, 15"]
shiftIT = f"s_lshr_b64 s[{sIT}:{sIT+1}], s[{sIT}:{sIT+1}], 5"
def flagld(): return f"buffer_load_dword v{FV}, v{FA_}, {srdn(sFL)}, s{sNF} offen sc1 ; @F"
def flagchk(): return [f"v_subrev_u32 v{FV}, s{sT}, v{FV}", f"v_subrev_u32 v{FV}, 3, v{FV}", f"v_cmp_lt_u32 vcc, 1, v{FV}"]
def flagspin(entry, back):
    l = newlab("S")
    return E()(f"{entry}:", f"s_mov_b32 s{sU}, 0", f"{l}:", flagld(), "s_waitcnt vmcnt(0)", flagchk(), f"s_add_u32 s{sU}, s{sU}, 1", f"s_cmp_gt_u32 s{sU}, {SPIN}",
               f"s_cbranch_scc1 {back}", f"s_cbranch_vccnz {l}", f"s_branch {back}")
def tstage(st, g, vmw, last=1 << 30, nextA=None):
    L = []
    pl = tplan(g)
    ldb = t_ldB(st + LEAD, g)
    for p in range(20):
        nt = p >> 1; qt = (p & 1) ^ (nt & 1)
        for kk in range(2):
            gi = 2*p + kk
            acc = a(tacc(nt, qt), 4)
            L.append(f"{MF} {acc}, {v(t_A(st,nt,kk), 4)}, {v(t_B(st,kk,qt), 4)}, {acc}")
            if gi % 4 < 2:
                st2, nt2 = st + (nt+3)//10, (nt+3) % 10
                if st2 == st or nextA is None: L.append(t_rd(st2, nt2, gi % 4, t_A(st2, nt2, gi % 4)))
                else: L.append(nextA[2*nt2 + gi % 4])
                if gi % 4 == 1: L.append("s_waitcnt lgkmcnt(4)")
                if gi == 28 and st + LEAD < last: L.append(t_m0(st + LEAD, 0))
                if gi == 4 and st + LEAD - 1 < last: L.append(t_m0(st + LEAD - 1, 4))
                dyn = not g and last > 32
                if gi == 12 and st + LEAD - 1 < last: L += [f"s_mov_b32 s{sTW}, s{sNW}"] if dyn and st % 4 == 1 else t_advW
                if gi == 24 and st + LEAD < last: L.append(f"s_mov_b32 s{sTB}, s{sNB}" if dyn and st % 4 == 0 else t_advB[0])
                if gi == 32 and st + LEAD < last: L.append(f"s_add_u32 s{sTB+1}, s{sNB}, 4096" if dyn and st % 4 == 0 else t_advB[1])
            if not g and last > 32:
                if st % 4 == 2:
                    dc = [shiftIT] + decode()
                    pos = {0: dc[0:1], 3: dc[1:3], 7: dc[3:5], 8: dc[5:6], 10: dc[6:8], 14: dc[8:10], 16: dc[10:11], 18: dc[11:12]}
                    L += pos.get(gi, [])
                    if gi == 26: L.append(flagld())
                if st % 4 == 0:
                    fc = flagchk()
                    if gi == 31: L += fc[:2]
                    if gi == 35: L += fc[2:]
                    if gi == 39: L += ["s_cbranch_vccnz F_TSP", "F_TSB:"]
            if gi in pl:
                x = pl[gi]
                if x[0] == "W":
                    if st + x[1] < last: L.append(t_dmaW(st + x[1], x[2]))
                elif st + LEAD < last: L.append(ldb[x[1]])
            if gi == 27: L += [f"s_waitcnt vmcnt({vmw})", "s_barrier"]
    return L
def tpre(g):
    e = E()
    for st in range(LEAD-1):
        e(t_m0(st, 0), "s_nop 0", [t_dmaW(st, t) for t in range(4)], t_m0(st, 4), "s_nop 0", t_dmaW(st, 4), t_advW, t_ldB(st, g), t_advB)
    e(t_ldB(LEAD-1, g), t_advB, t_m0(LEAD-1, 0), "s_nop 0", [t_dmaW(LEAD-1, t) for t in range(3)])
    return e
def tcount(g):
    L = tpre(g)
    for st in range(12): L = L + tstage(st, g, f"@W{st+1},@B{st+1}")
    L = [l for l in L if not l.startswith(("s_cbranch", "F_"))]
    c = [int(re.search(r"vmcnt\((\d+)\)", l).group(1)) for l in resolve(L, []) if "vmcnt" in l]
    return min(c)
def tloop(g):
    nb = 8 if g else 4
    cnt = tcount(g)
    pre = E()(resolve(tpre(g) + ["s_waitcnt vmcnt(@W0,@B0)"], []))
    pre("s_barrier", [t_rd(0, nt, kk, t_A(0, nt, kk)) for nt in range(3) for kk in range(2)], f"s_mov_b32 s{sCNT}, 0", "s_waitcnt lgkmcnt(4)", fstamp(10, "last"), fstamp(5, "tail"))
    body = []
    for st in range(4): body += tstage(st, g, cnt)
    l = "F_TLG" if g else "F_TLS"
    ctl = [f"s_add_u32 s{sCNT}, s{sCNT}, 1", f"s_cmp_lt_u32 s{sCNT}, {'6' if g else 's46'}", f"s_cbranch_scc1 {l}"]
    if not g:
        first = E()(decode(), flagspin("F_T0", "F_T0B"), "F_T0B:", stamp(11), fstamp(4, "tail"), fstamp(9, "last"),
                    f"s_mov_b32 s{sTW}, s{sNW}", f"s_mov_b32 s{sTB}, s{sNB}", f"s_add_u32 s{sTB+1}, s{sNB}, 4096", shiftIT, decode(), flagld())
        pre = first + pre
    return pre, body, ctl, cnt
def pb_off(): return E()(f"s_lshl_b32 s41, s{sWAVE}, 2", f"s_add_u32 s41, s41, s{sSP}", "s_mul_i32 s41, s41, 20480",
                         f"s_cmp_eq_u32 s{sWAVE}, s{sSP}", "s_cselect_b32 s41, 0x10000000, s41")
def own_write():
    l = newlab("O")
    e = E()(f"s_cmp_lg_u32 s{sWAVE}, s{sSP}", f"s_cbranch_scc1 {l}", f"v_add_u32 v4, {OWN}, v{LX}")
    for i in range(20): e(f"ds_write_b128 v4, {a(tacc(i % 10, i // 10), 4)} offset:{1024*i}")
    return e(f"{l}:")
def tfinal(cnt):
    FA = lambda nt, k: TA + 16*(nt % 4) + 4*k
    frd = lambda nt, k: t_rd(30 + (k >> 1), nt, k & 1, FA(nt, k))
    e = E()
    for l in tstage(28, False, "@W29,@B29", last=32):
        e(l)
        if l.startswith("buffer_load") and l.endswith("@W31") and "offset:2048" in l:
            e.last = len(e)
    tail = e[e.last:]; del e[e.last:]
    k = [i for i, l in enumerate(tail) if l.startswith(MF)]
    assert len(k) == 1
    e(t_dmaW(31, 3), tail[k[0]], t_m0(31, 4), "s_nop 0", t_dmaW(31, 4))
    n = 0
    for l in tstage(29, False, "0", last=31):
        if l.startswith("ds_read"):
            n += 1
            if n > 14: continue
        if l == "s_waitcnt lgkmcnt(4)" and n > 14: l = "s_waitcnt lgkmcnt(0)"
        if l.startswith("s_waitcnt vmcnt") or l == "s_barrier": continue
        e(l)
    e("s_waitcnt vmcnt(@W30,@B30,@W31,@B31)", "s_barrier")
    e([frd(0, k) for k in range(4)], [frd(1, k) for k in range(4)], pb_off(), "s_waitcnt lgkmcnt(4)")
    pend = []
    for nt in range(10):
        for qt in range(2):
            for k in range(4):
                g = 4*qt + k
                acc = a(tacc(nt, qt), 4)
                e(f"{MF} {acc}, {v(FA(nt,k),4)}, {v(t_B(30 + (k >> 1), k & 1, qt),4)}, {acc}")
                if g < 4 and nt + 2 < 10: e(frd(nt+2, g))
                if g == 3 and nt + 1 < 10: e(f"s_waitcnt lgkmcnt({4 if nt + 2 < 10 else 0})")
                if g in (4, 6) and nt > 0:
                    q2 = (g-4)//2; i = q2*10 + nt-1
                    e(f"buffer_store_dwordx4 {a(tacc(nt-1,q2),4)}, v{LX}, s[20:23], s{42+q2} offen sc1")
                if g in (1, 2) and nt > 0:
                    q2 = g - 1; e(f"s_add_u32 s{42+q2}, s41, {1024*(q2*10 + nt-1)}")
    e("s_add_u32 s42, s41, 9216", "s_add_u32 s43, s41, 19456", "s_nop 5")
    for q2 in range(2): e(f"buffer_store_dwordx4 {a(tacc(9,q2),4)}, v{LX}, s[20:23], s{42+q2} offen sc1")
    e(own_write())
    return e
def gfinal():
    e = E()(pb_off(), "s_waitcnt vmcnt(0) lgkmcnt(0)", "s_nop 1")
    for i in range(20):
        b = tacc(i % 10, i // 10); d = 16 + 6*(i % 8)
        for r in range(4): e(f"v_accvgpr_read_b32 v{d+r}, a{b+r}")
        e(f"v_cvt_pk_bf16_f32 v{d+4}, v{d}, v{d+1}", f"v_cvt_pk_bf16_f32 v{d+5}, v{d+2}, v{d+3}")
        if i % 8 == 0: e(f"s_add_u32 s42, s41, {512*i}")
        e(f"buffer_store_dwordx2 {v(d+4,2)}, v{TB8}, s[20:23], s42 offen offset:{512*(i%8)} sc1")
    e(own_write())
    return e
def items(lst):
    x = 0
    for k, (rb, th) in enumerate(lst): x |= (rb | th << 3) << (5*k)
    return x
def blk(*rbs): return [(rb, th) for rb in rbs for th in range(3)]
PATTERNS = {"B": [blk(0, 2, 4), blk(1, 3, 5), blk(6, 7)],
            "C": [blk(0, 2, 4) + [(5, 0)], blk(1, 3) + [(5, 1), (5, 2)], blk(6, 7)],
            "A": [blk(0, 3) + [(6, 0), (6, 1)], blk(1, 4) + [(6, 2), (7, 0)], blk(2, 5) + [(7, 1), (7, 2)]]}
DV_ = 136
def roles():
    e = E()
    l, d = newlab("R"), newlab("D")
    e(f"s_mov_b32 s{sU}, 0", f"{l}:", f"v_cmp_eq_u32 vcc, 0, v{DV_}", f"s_add_u32 s{sU}, s{sU}, 1", "s_nop 2", "s_and_b32 s41, vcc_lo, 0xff00", f"s_cbranch_scc0 {d}",
      f"s_cmp_gt_u32 s{sU}, {SPIN}", f"s_cbranch_scc1 {d}", f"buffer_load_dword v{DV_}, v{DV_+1}, s[28:31], 0 offen sc1", "s_waitcnt vmcnt(0)", f"s_branch {l}", f"{d}:")
    e(f"v_readlane_b32 s{sT}, v{DV_}, 0", f"s_mov_b32 s{sCP}, 0", "s_and_b32 s41, s2, 7", "s_add_u32 s41, s41, 8", f"v_readlane_b32 s42, v{DV_}, s41")
    e([f"v_readlane_b32 s{12+c}, v{DV_}, {8+c}" for c in range(8)], "s_nop 3")
    for c in range(1, 8):
        e(f"s_sub_u32 s41, s{12+c}, 1", "s_and_b32 s41, s41, 7", "s_lshl_b32 s41, s41, 2", f"s_lshl_b32 s41, {c}, s41", f"s_or_b32 s{sCP}, s{sCP}, s41")
    e("s_sub_u32 s42, s42, 1", "s_and_b32 s42, s42, 7")
    if X("static"): e("s_and_b32 s42, s2, 7", f"s_mov_b32 s{sCP}, 0x76543210")
    e(f"s_lshr_b32 s{sSP}, s42, 1", "s_add_u32 s55, s42, 1", "s_lshr_b32 s55, s55, 1", "s_and_b32 s55, s55, 1", f"s_and_b32 s56, s{sHEAD}, 3")
    pat = PATTERNS[[x[3:] for x in EXP[0].split() if x.startswith("pat")][0] if "pat" in EXP[0] else "B"]
    for m in (2, 1, 0):
        x = items(pat[m])
        if m == 2: e(f"s_mov_b32 s{sIT}, {hx(x)}", f"s_mov_b32 s{sIT+1}, {hx(x >> 32)}", f"s_mov_b32 s46, {len(pat[m]) - 1}")
        else: e(f"s_cmp_eq_u32 s{sSP}, {m}", f"s_cselect_b32 s{sIT}, {hx(x)}, s{sIT}", f"s_cselect_b32 s{sIT+1}, {hx(x >> 32)}, s{sIT+1}", f"s_cselect_b32 s46, {len(pat[m]) - 1}, s46")
    return e
def tail_setup():
    e = E()
    e(f"s_cmp_eq_u32 s{sSP}, 3", "s_cselect_b32 s66, 48, 192", "s_cselect_b32 s67, 192, 0",
      f"s_mul_i32 s41, s56, {WF160}", "s_mul_i32 s42, s67, 10240", "s_add_u32 s41, s41, s42", f"s_add_u32 s41, s41, {hx(WS_WF)}", "s_mul_i32 s42, s66, 10240")
    e(srd(12, pWS, pWS+1, "s42", "s41"))
    e(f"s_lshl_b32 s41, s{sQB}, 2", "s_lshl_b32 s42, s55, 1", "s_add_u32 s41, s41, s42", f"s_lshr_b32 s42, s{sWAVE}, 1", "s_add_u32 s41, s41, s42",
      f"s_mul_i32 s41, s41, {OF_BLK}", "s_lshl_b32 s42, s67, 12", "s_add_u32 s41, s41, s42",
      f"s_and_b32 s42, s{sWAVE}, 1", "s_lshl_b32 s42, s42, 11", "s_add_u32 s41, s41, s42", f"s_add_u32 s41, s41, {hx(WS_OF)}",
      "s_lshl_b32 s43, s66, 12", "s_sub_u32 s43, s43, s42")
    e(srd(16, pWS, pWS+1, "s43", "s41"))
    e(f"s_mov_b32 s{sTB}, 0", f"s_mov_b32 s{sTB+1}, 4096", f"s_mov_b32 s{sTW}, 0", f"s_mul_i32 s{sMT}, s{sWAVE}, 5120")
    e(f"s_lshl_b32 s41, s{sQB}, 1", "s_add_u32 s41, s41, s55", "s_lshl_b32 s41, s41, 2", "s_add_u32 s41, s41, s56", "s_mul_i32 s41, s41, 327680",
      f"s_add_u32 s41, s41, {hx(WS_PB)}")
    e(srd(20, pWS, pWS+1, 327680, "s41"))
    e(f"s_lshl_b32 s41, s{sQB}, 3", "s_lshl_b32 s42, s55, 2", "s_add_u32 s41, s41, s42", f"s_add_u32 s41, s41, s{sSP}", "s_lshl_b32 s41, s41, 1",
      f"s_and_b32 s42, s{sWAVE}, 1", "s_add_u32 s41, s41, s42", "s_mul_i32 s41, s41, 20480",
      "s_mul_i32 s42, s56, 320", "s_add_u32 s41, s41, s42", f"s_lshr_b32 s42, s{sWAVE}, 1", "s_mul_i32 s42, s42, 160", "s_add_u32 s41, s41, s42",
      "s_sub_u32 s42, 2621440, s41")
    e(srd(24, pX, pX+1, "s42", "s41")); e(srd(28, pOUT, pOUT+1, "s42", "s41"))
    e("s_lshl_b32 s44, 0x11111111, s56", f"s_lshl_b32 s48, s{sQB}, 7")
    return e
def tail_vsetup():
    return E()(f"v_add_u32 v{TD}, s{sMT}, v{LX}", f"v_add_u32 v{TD+1}, 4096, v{TD}", f"v_mov_b32 v{TAD}, v{LX}", f"v_add_u32 v{TAD+1}, 61440, v{LX}",
               f"v_lshlrev_b32 v{TB8}, 3, v0", "v_and_b32 v1, 3, v0", f"v_lshlrev_b32 v{FA_}, 2, v1", [f"v_accvgpr_write_b32 a{i}, 0" for i in range(80)])

def laststep(i=63):
    Pc = Pb(i)
    e = E()
    e(rdVp(62, 0))
    e(wave0([f"buffer_load_dwordx4 v[140:143], v{LX}, {srdn(sFL)}, 0 offen sc1"]))
    e(srd(28, pDBG, pDBG+1, 64), "v_and_b32 v138, 15, v0", f"v_lshlrev_b32 v{DV_+1}, 2, v138", f"buffer_load_dword v{DV_}, v{DV_+1}, s[28:31], 0 offen sc1")
    Ex, Sx = sm(S1, [2, 3], Pc, 1)
    e(Ex, rdVp(62, 1, KF))
    e([x for _, x in Sx], CHK, "s_waitcnt lgkmcnt(12)", callsite(i % 4), LADD, "s_nop 0", fstamp(2, "last"))
    RI = 8
    Xl = xlane("v_add_f32", L_, 2) + [f"v_rcp_f32 v{RI+2*qt}, v{L_+qt}" for qt in range(4)]
    def mix(m, fill, per=1):
        for x in m:
            e(x)
            for _ in range(per):
                if fill: e(fill.pop(0))
    r2, r3 = rdVp(62, 2), rdVp(62, 3, KF)
    mix(pv(62, 0), Xl, 2); e(Xl)
    e("s_waitcnt lgkmcnt(0)"); mix(pv(62, 1, src=KF), r2)
    e("s_waitcnt lgkmcnt(0)"); mix(pv(62, 2), r3)
    ok = newlab("K")
    chk = E()("s_waitcnt vmcnt(0)", f"s_add_u32 s{sTMP}, s{sT}, 2")
    for r in range(4): chk(f"v_subrev_u32 v{140+r}, s{sTMP}, v{140+r}")
    chk("v_max3_u32 v140, v140, v141, v142", "v_max_u32 v140, v140, v143", "v_cmp_lt_u32 vcc, 2, v140", "s_nop 1", f"s_cbranch_vccz {ok}",
        f"v_mov_b32 v2, v{LX}", poll(2, ("-1", "-1"), "0", wide=True), f"{ok}:")
    def norm(j):
        o = E()(f"s_add_u32 s{sTMP}, s{sO}, {4096*j}")
        for qt in range(4):
            k = 4*j + qt
            t = 64 + 8*(k % 4); d = 112 + 4*(k % 6)
            for hh in range(2):
                b = Oacc(2*j+hh, qt)
                for r in range(4): o(f"v_accvgpr_read_b32 v{t+4*hh+r}, a{b+r}")
            for r in range(0, 8, 2): o(f"v_pk_mul_f32 {v(t+r,2)}, {v(t+r,2)}, {v(RI+2*qt,2)} op_sel_hi:[1,0]")
            for r in range(4): o(f"v_cvt_pk_bf16_f32 v{d+r}, v{t+2*r}, v{t+2*r+1}")
            o(f"buffer_store_dwordx4 {v(d,4)}, v{LX}, {srdn(sOF_SRD)}, s{sTMP} offen offset:{1024*qt} sc1")
        return o
    e(fstamp(3, "last"), wave0(chk), fstamp(4, "last"))
    e(norm(0), norm(1), "s_waitcnt lgkmcnt(0)", pv(62, 3, src=KF), norm(2), norm(3), norm(4), norm(5))
    return e

def tail_end():
    e = E()
    XV = 232
    e("v_and_b32 v3, 15, v0", "v_mul_u32_u24 v3, 1280, v3", "v_lshrrev_b32 v4, 4, v0", "v_lshl_add_u32 v3, v4, 3, v3", fstamp(7, "tail"))
    e("s_waitcnt vmcnt(0) lgkmcnt(0)", fstamp(8, "tail"), "s_barrier", fstamp(9, "tail"), wave0(signal(4)))
    for nt in range(5): e(f"buffer_load_dwordx2 {v(XV+2*nt,2)}, v3, s[24:27], 0 offen offset:{32*nt}")
    e(f"s_and_b32 s42, s{sWAVE}, 1", "s_mul_i32 s42, s42, 10240", f"s_lshr_b32 s43, s{sWAVE}, 1", "s_mul_i32 s43, s43, 5120", "s_add_u32 s42, s42, s43",
      f"s_add_u32 s43, s42, {OWN}", f"v_add_u32 v5, s43, v{LX}")
    for i in range(5): e(f"ds_read_b128 {v(176+4*i,4)}, v5 offset:{1024*i}")
    e(f"s_mul_i32 s41, s{sSP}, 81920", "s_add_u32 s50, s41, s42", "s_add_u32 s51, s50, 20480", "s_add_u32 s52, s50, 40960",
      "s_lshr_b32 s42, s42, 1", "s_add_u32 s53, s41, s42", "s_add_u32 s53, s53, 61440")
    for src in range(4): e(f"s_cmp_eq_u32 s{sSP}, {src}", f"s_cselect_b32 s{50+src}, 0x10000000, s{50+src}")
    e(f"s_cmp_eq_u32 s{sSP}, 3", "s_cselect_b32 s56, 0, 1.0", "s_cselect_b32 s57, 1.0, 0", f"v_add_u32 v5, 4096, v{LX}", f"s_mov_b32 s38, {hx(f2u(-math.log2(math.e)))}")
    e(wave0(["v_lshlrev_b32 v2, 2, v0"] + poll(4, ("s44", "0"), "s48")), "s_barrier", stamp(4), fstamp(10, "tail"))
    for i in range(5):
        for src in range(3):
            e(f"buffer_load_dwordx4 {v(16+16*i+4*src,4)}, v{LX if i < 4 else 5}, s[20:23], s{50+src} offen offset:{1024*(i%4)} sc1")
        e(f"buffer_load_dwordx2 {v(16+16*i+12,2)}, v{TB8}, s[20:23], s53 offen offset:{512*i} sc1")
    e("s_waitcnt lgkmcnt(0)")
    for nt in range(5):
        S = 16 + 16*nt; G = S + 12; Xr = XV + 2*nt; t = 112 + 12*nt; W = 176 + 4*nt
        e(f"s_waitcnt vmcnt({4*(4-nt) + nt})", fstamp(11, "tail") if nt == 0 else [])
        e(f"v_lshlrev_b32 v{t}, 16, v{G}", f"v_and_b32 v{t+1}, 0xffff0000, v{G}", f"v_lshlrev_b32 v{t+2}, 16, v{G+1}", f"v_and_b32 v{t+3}, 0xffff0000, v{G+1}")
        for r in range(4): e(f"v_add_f32 v{S+r}, v{S+r}, v{S+4+r}")
        for r in range(4): e(f"v_fma_f32 v{G+r}, v{W+r}, s57, v{t+r}")
        for r in range(4): e(f"v_add_f32 v{S+r}, v{S+r}, v{S+8+r}")
        for r in range(4): e(f"v_fmac_f32 v{S+r}, s56, v{W+r}")
        e(f"v_cvt_pk_bf16_f32 v{t+2}, v{G}, v{G+1}", f"v_cvt_pk_bf16_f32 v{t+3}, v{G+2}, v{G+3}",
          f"v_cvt_pk_bf16_f32 v{t}, v{S}, v{S+1}", f"v_cvt_pk_bf16_f32 v{t+1}, v{S+2}, v{S+3}")
        for k in range(2):
            e(f"v_lshlrev_b32 v{G+2*k}, 16, v{t+2+k}", f"v_and_b32 v{G+2*k+1}, 0xffff0000, v{t+2+k}",
              f"v_lshlrev_b32 v{S+2*k}, 16, v{t+k}", f"v_and_b32 v{S+2*k+1}, 0xffff0000, v{t+k}")
        for r in range(4): e(f"v_mul_f32 v{t+4+r}, s38, v{G+r}")
        for r in range(4): e(f"v_exp_f32 v{t+4+r}, v{t+4+r}")
        for r in range(4): e(f"v_add_f32 v{t+4+r}, 1.0, v{t+4+r}")
        for r in range(4): e(f"v_rcp_f32 v{t+4+r}, v{t+4+r}")
        for r in range(4): e(f"v_mul_f32 v{G+r}, v{G+r}, v{t+4+r}")
        e(f"v_cvt_pk_bf16_f32 v{t+2}, v{G}, v{G+1}", f"v_cvt_pk_bf16_f32 v{t+3}, v{G+2}, v{G+3}")
        for k in range(2): e(f"v_lshlrev_b32 v{G+2*k}, 16, v{t+2+k}", f"v_and_b32 v{G+2*k+1}, 0xffff0000, v{t+2+k}")
        for r in range(4): e(f"v_mul_f32 v{S+r}, v{S+r}, v{G+r}")
        e(f"v_cvt_pk_bf16_f32 v{t}, v{S}, v{S+1}", f"v_cvt_pk_bf16_f32 v{t+1}, v{S+2}, v{S+3}")
        for k in range(2):
            e(f"v_lshlrev_b32 v{S+2*k}, 16, v{t+k}", f"v_and_b32 v{S+2*k+1}, 0xffff0000, v{t+k}",
              f"v_lshlrev_b32 v{G+2*k}, 16, v{Xr+k}", f"v_and_b32 v{G+2*k+1}, 0xffff0000, v{Xr+k}")
        for r in range(4): e(f"v_add_f32 v{S+r}, v{S+r}, v{G+r}")
        e(f"v_cvt_pk_bf16_f32 v{t+8}, v{S}, v{S+1}", f"v_cvt_pk_bf16_f32 v{t+9}, v{S+2}, v{S+3}")
        e(f"buffer_store_dwordx2 {v(t+8,2)}, v3, s[28:31], 0 offen offset:{32*nt}" + (" sc1" if X("outsc1") else "") + (" nt" if X("outnt") else ""))
    e(fstamp(12, "tail"))
    return e

def encode():
    en = [x for x in EXP[0].split() if x.startswith("enc:")]
    if not en: return []
    _, i, j, mult, W = en[0].split(":")
    return E()(f"s_cmp_lg_u32 s2, {W}", "s_cbranch_scc1 F_END", f"s_sub_u32 s66, s{88+int(j)}, s{88+int(i)}", f"s_mul_i32 s66, s66, {mult}", "s_add_u32 s66, s66, 15000",
               "F_ENC:", "s_memrealtime s[86:87]", "s_waitcnt lgkmcnt(0)", "s_sub_u32 s67, s86, s88", "s_cmp_lt_u32 s67, s66", "s_cbranch_scc1 F_ENC")

def gen(exp=""):
    sites.clear(); lab[0] = 0; EXP[0] = exp
    L = E()(kernel_head(NAME))
    if X("early0"): L("s_memrealtime s[100:101]")
    L("s_cmp_ge_u32 s2, 256", "s_cbranch_scc1 F_END")
    pro = front() + (cstamp(8) if X("qcyc") else [])
    qc, q18 = qcounts()
    qloop = []
    for u in range(6): qloop += qsub(u, last=40, vmw=qc[u])
    qctl = [f"s_add_u32 s{sCNT}, s{sCNT}, 1", f"s_cmp_lt_u32 s{sCNT}, 3", "s_cbranch_scc1 F_QL"]
    ex = {18: {}, 19: {}}
    for (kind, j), (u, g0) in zip([("K", 0), ("K", 1), ("V", 0), ("K", 2)], [(18, 4), (18, 20), (18, 36), (19, 4)]):
        m, d = kvgroup(kind, j)
        ex[u].setdefault(g0, []).extend(m)
        for t, dg in enumerate((1, 2, 3)): ex[u].setdefault(g0 + dg, []).append(d[t])
    rd = relayout_dst()
    for k, g in enumerate((36, 37, 38, 39, 44, 45, 46)): ex[19].setdefault(g, []).extend(rd[2*k:2*k+2])
    mid = qsub(18, extra=ex[18], vmw="@W19") + qsub(19, extra=ex[19]) + stamp(6) + fstamp(1, "conv") + (cstamp(9) if X("qcyc") else []) + convert() + fstamp(2, "conv") + init() + fstamp(7, "conv") + stamp(7) + (cstamp(8) if not (X("tcyc") or X("qcyc")) else [])
    keep = mid
    mid = [l + (" ; " + re.search(r"@\S+", k).group(0) if k.startswith("buffer_") and "@" in k and "@" not in l else "") for l, k in zip(resolve(mid, q18), keep)]
    ctl = [f"s_add_u32 s{sCNT}, s{sCNT}, 1", f"s_bitcmp1_b32 {hx(1 << 11 | 1 << 12 | 1 << 15)}, s{sCNT}", "s_cbranch_scc0 F_AL"]
    rlk = {1: "dma", 3: "out"} if not X("norl") else {}
    rlk.update({2: "tk", 0: "tv"}); mid = mid + [f"s_mov_b32 s{sCNT}, 0"]
    def mk(i, w): return step(i, vmw=w, tail=ctl if (i >= 3 and i % 4 == 2) else (), rl=rlk.get(i % 4) if i >= 3 else None)
    q = [re.search(r"@(\S+)", l).group(1) if "@" in l else "-" for l in mid if l.startswith("buffer_")]; cnts = {}
    for i in range(23):
        key = i if i < 3 else 3 + (i-3) % 4
        for l in mk(i, "?"):
            if "vmcnt(?)" in l:
                need = [f"K{i+2}"] + ([f"V{i}", f"V{i+1}"] if i % 2 == 0 else []) + (["R"] if i % 4 == 2 else [])
                c = len(q) - 1 - max(k for k, x in enumerate(q) if x in need)
                cnts[key] = min(cnts.get(key, 63), c)
            if l.startswith("buffer_"): q.append(re.search(r"@(\S+)", l).group(1))
    sites.clear()
    s0 = mk(0, cnts[0]) + mk(1, cnts[1]) + mk(2, cnts[2])
    body = [mk(i, cnts[i]) for i in range(3, 7)]
    if X("showcnt"): print("step counts", cnts, "q counts", qc)
    hooks = E()(f"s_cmp_eq_u32 s{sCNT}, 15", "s_cbranch_scc1 F_LAST", f"s_cmp_lg_u32 s{sWAVE}, 0", "s_cbranch_scc1 F_AL",
                f"s_cmp_eq_u32 s{sCNT}, 12", "s_cbranch_scc1 F_H1", signal(2), "s_mov_b32 s66, 4",
                "s_cmp_ge_u32 s2, 8", "s_cbranch_scc1 F_AL", srd(28, pDBG, pDBG+1, 64), "s_mov_b64 exec, 1",
                f"v_mov_b32 v{RLV}, 1", f"buffer_atomic_add v{RLV}, off, s[28:31], s66 sc0 sc1", "s_mov_b64 exec, -1", "s_branch F_AL",
                "F_H1:", "s_cmp_ge_u32 s2, 8", "s_cbranch_scc1 F_AL", "s_lshl_b32 s66, s2, 2", "s_add_u32 s66, s66, 32", "s_mov_b64 exec, 1",
                f"v_add_u32 v{RLV}, 1, v{RLV}", f"buffer_store_dword v{RLV}, off, s[28:31], s66 sc1", "s_mov_b64 exec, -1", "s_branch F_AL")
    last = (cstamp(9) if not (X("tcyc") or X("qcyc")) else []) + fstamp(1, "last") + laststep()
    h1 = E()(stamp(10), fstamp(1, "tail"), fstamp(5, "last"), "s_waitcnt vmcnt(24)", roles(), fstamp(6, "last"), tail_setup(), tail_vsetup(), fstamp(7, "last"), "s_waitcnt vmcnt(0)", fstamp(8, "last"), fstamp(2, "tail"), "s_barrier", wave0(signal(3)), fstamp(3, "tail"))
    preS, bodyS, ctlS, cS = tloop(False)
    preG, bodyG, ctlG, cG = tloop(True)
    hS = E()(preS, cstamp(8) if X("tcyc") else [])
    hG = E()(stamp(11), fstamp(4, "tail"), preG, cstamp(8) if X("tcyc") else [])
    sim = tpre(False) + [x for st in range(28) for x in tstage(st, False, cS)]
    q28 = [re.search(r"@(\S+)", l).group(1) for l in sim if l.startswith("buffer_")][-24:]
    finS = E()(resolve(tfinal(cS), q28), stamp(12), fstamp(6, "tail"), cstamp(9) if X("tcyc") else [])
    finG = E()(stamp(12), fstamp(6, "tail"), cstamp(9) if X("tcyc") else [], gfinal())
    end = tail_end()
    L(pro, ".p2align 6", "F_QL:", qloop, qctl, mid, s0, ".p2align 6", "F_AL:", *body, hooks, "F_LAST:", last,
      h1, f"s_cmp_eq_u32 s{sSP}, 3", "s_cbranch_scc1 F_TG", hS, ".p2align 6", "F_TLS:", bodyS, ctlS, finS, "s_branch F_TE",
      "F_TG:", hG, ".p2align 6", "F_TLG:", bodyG, ctlG, finG, "F_TE:", end, stamp_flush(0, 13, pWS, f"s{sWAVE}"), encode(), "F_END:", "s_endpgm")
    for k, par in enumerate(sites):
        L(f"F_TR{k}:", f"s_call_b64 s[{sRET}:{sRET+1}], F_SLOW{par}", f"s_branch F_BK{k}")
    L(flagspin("F_TSP", "F_TSB"), slow(0), slow(1), slow(2), slow(3))
    flat = lambda Z: [y for x in Z for y in x]
    tr = pro + (qloop + qctl)*3 + mid + s0 + flat(body) + flat(body) + last + h1
    check(tr + hS + (bodyS + ctlS)*7 + finS + end, "S")
    check(flagspin("A", "B") + bodyS, "spin")
    check(last + h1 + hG + (bodyG + ctlG)*6 + finG + end, "G")
    for n in range(4):
        b = body[n]
        idx = [i for i, x in enumerate(b) if x.startswith("F_BK")][0]
        check(body[(n-1) % 4] + b[:idx] + slow((3+n) % 4) + b[idx:] + body[(n+1) % 4], f"slow{n}")
    return L, kernel_desc(NAME, 512, 256), "; @launch grid=(256,1,1) block=(256,1,1) lds=163840"

def build(path, **kw):
    HDR = open("recurrent_scan__gqa_block_cached__dense_activation_relu__prompt.s.ref").read().split("; Override launch")[0]
    L, D, H = gen(**kw)
    L = [re.sub(r"\s*; @\S+$", "", l) for l in L]
    open(path, "w").write(HDR + H + "\n" + '.amdgcn_target "amdgcn-amd-amdhsa--gfx950"\n' + "\n".join(L) + "\n" + "\n".join(D) + "\n")
if __name__ == "__main__":
    for flag, mode in (("--ts", None), ("--tail", "tail"), ("--front", "front"), ("--last", "last"), ("--conv", "conv")):
        if flag in sys.argv:
            OPT["ts"] = True; OPT["mode"] = mode; sys.argv.remove(flag)
    build(sys.argv[1], exp=" ".join(sys.argv[2:]))
```

```python
from common import *
import re, sys

NAME = "recurrent_scan__gqa_block_cached__dense_activation_relu__prompt_kernel"
MF = "v_mfma_f32_16x16x32_bf16"
EXP = [""]
DEFAULTS = ["poll1", "touch3"]
def X(flag): return flag in EXP[0].split() or (flag in DEFAULTS and "no_" + flag not in EXP[0].split())

KR, VR = 0, 49152
WA, WB = 65536, 114688
ST = 122880
OWN = 81920
pX, pK, pV, pWQ, pWO, pWS, pW1, pW2, pOUT, pDBG = 4, 6, 8, 10, 68, 70, 72, 74, 76, 78
sK_SRD, sV_SRD, sWQ_SRD, sW1_SRD, sXF_SRD, sOF_SRD, sFL = 12, 16, 20, 24, 28, 32, 80
sWAVE, sHEAD, sM64, sKo = 36, 37, 38, 39
sMK, sMV, sMW = 40, 44, 48
sWq, sW1, sX, sCNT, sC, sTHR, sO, sVo, sRET = 54, 55, 56, 57, 58, 60, 61, 63, 64
sH = [6, 7, 62]
sTMP, sU, sT, sQB = 66, 67, 84, 85
sRSRC, sRDST, sRM, sRS = 8, 20, 24, 25
QV, NM, S0, S1, P, KF, VF, ET, T_, L_ = 16, 48, 64, 96, 112, 176, 200, 224, 232, 236
AK, AV, DK, DV, CK, LX, RLV = 240, 242, 246, 249, 224, 253, 254
AF, DA, DB, DH, AWA, AWB, AH, LXB, LX8, LXB2 = 16, 40, 44, 46, 192, 200, 204, 207, 208, 209
CSCALE = math.log2(math.e) / math.sqrt(192.0)
THR = 2.0 ** 30
SPIN = 1 << 18

def srdn(b): return f"s[{b}:{b+3}]"
class E(list):
    def __call__(self, *x):
        for y in x:
            if isinstance(y, list): self.extend(y)
            else: self.append(y)
        return self
lab = [0]
def newlab(p):
    lab[0] += 1; return f"F_{p}{lab[0]}"
def wave0(body):
    l = newlab("W")
    return E()(f"s_cmp_lg_u32 s{sWAVE}, 0", f"s_cbranch_scc1 {l}", body, f"{l}:")

def poll(phase, mask, soff, wide=False, vaddr="v2"):
    l, d = newlab("P"), newlab("D")
    e = E()
    e(f"s_mov_b32 exec_lo, {mask[0]}", f"s_mov_b32 exec_hi, {mask[1]}", f"s_add_u32 s{sTMP}, s{sT}, {phase}", f"s_mov_b32 s{sU}, 0")
    if wide:
        e(f"{l}:", f"buffer_load_dwordx4 v[4:7], {vaddr}, {srdn(sFL)}, {soff} offen sc1", "s_waitcnt vmcnt(0)")
        for r in range(4): e(f"v_subrev_u32 v{4+r}, s{sTMP}, v{4+r}")
        e("v_max3_u32 v4, v4, v5, v6", "v_max_u32 v4, v4, v7")
        e(f"v_cmp_lt_u32 vcc, {4-phase}, v4", f"s_add_u32 s{sU}, s{sU}, 1", f"s_cmp_gt_u32 s{sU}, {SPIN}", f"s_cbranch_scc1 {d}", f"s_cbranch_vccnz {l}")
    elif X("poll1"):
        e(f"{l}:", f"buffer_load_dword v4, {vaddr}, {srdn(sFL)}, {soff} offen sc1", "s_waitcnt vmcnt(0)", f"v_subrev_u32 v4, s{sTMP}, v4")
        e(f"v_cmp_lt_u32 vcc, {4-phase}, v4", f"s_add_u32 s{sU}, s{sU}, 1", f"s_cmp_gt_u32 s{sU}, {SPIN}", f"s_cbranch_scc1 {d}", f"s_cbranch_vccnz {l}")
    else:
        ld = lambda r: f"buffer_load_dword v{r}, {vaddr}, {srdn(sFL)}, {soff} offen sc1"
        e(ld(8), "s_sleep 4", ld(9), "s_sleep 4", ld(10), f"{l}:")
        for r in (8, 9, 10):
            e("s_waitcnt vmcnt(2)", f"v_subrev_u32 v11, s{sTMP}, v{r}", f"v_cmp_lt_u32 vcc, {4-phase}, v11", f"s_add_u32 s{sU}, s{sU}, 1", ld(r), "s_nop 0", f"s_cbranch_vccz {d}")
        e(f"s_cmp_le_u32 s{sU}, {SPIN}", f"s_cbranch_scc1 {l}")
    e(f"{d}:", "s_mov_b64 exec, -1")
    return e
def signal(phase):
    return E()(f"s_add_u32 s{sTMP}, s{sT}, {phase}", f"s_lshl_b32 s{sU}, s{sQB}, 5", f"s_add_u32 s{sU}, s{sU}, s{sHEAD}", f"s_lshl_b32 s{sU}, s{sU}, 2",
               f"v_mov_b32 v4, s{sTMP}", "v_mov_b32 v5, 0", "s_mov_b64 exec, 1",
               f"buffer_store_dword v4, v5, {srdn(sFL)}, s{sU} offen sc1", "s_mov_b64 exec, -1")

def qacc(ds, tb, qt):
    n = (ds*2 + tb)*4 + qt
    return R("a", 4*n) if n < 24 else R("v", 48 + 4*(n-24))
def hacc(tt, qt): return R("v", 144 + 4*(tt*4 + qt))
def BF(s, kk, qt): return a(96 + 32*(s % 3) + 16*kk + 4*qt, 4)
def ldB(s): return [f"buffer_load_dwordx4 {BF(s,kk,qt)}, v{LXB2 if kk else LXB}, {srdn(sXF_SRD)}, s{sX} offen offset:{1024*qt} sc1 ; @B{s}" for kk in range(2) for qt in range(4)]
advX = [f"s_add_u32 s{sX}, s{sX}, 8192"]
advW = [f"s_add_u32 s{sWq}, s{sWq}, 786432", f"s_add_u32 s{sW1}, s{sW1}, 196608"]
def dmaW(u):
    if u % 2 == 0: return [f"buffer_load_dwordx4 v{DA+t}, {srdn(sWQ_SRD)}, s{sWq} offen offset:{1024*t} lds ; @W{u}" for t in range(4)]
    return [f"buffer_load_dwordx4 v{DB+t}, {srdn(sWQ_SRD)}, s{sWq} offen offset:{1024*t} lds ; @W{u}" for t in range(2)] + \
           [f"buffer_load_dwordx4 v{DH+t}, {srdn(sW1_SRD)}, s{sW1} offen offset:{1024*(t+2)} lds ; @W{u}" for t in range(2)]
TCH, TCD = 210, 212
sTq, sT1 = 64, 65
def touch(): return [f"buffer_load_dword v{TCD}, v{TCH}, {srdn(sWQ_SRD)}, s{sTq} offen ; @T", f"buffer_load_dword v{TCD}, v{TCH+1}, {srdn(sW1_SRD)}, s{sT1} offen offset:3072 ; @T"]
advT = [f"s_add_u32 s{sTq}, s{sTq}, {3*786432}", f"s_add_u32 s{sT1}, s{sT1}, {3*196608}"]
def touch_addr(nst):
    return E()("v_mul_u32_u24 v1, 171, v0", "v_lshrrev_b32 v1, 9, v1", "v_mul_u32_u24 v2, 3, v1", "v_sub_u32 v2, v0, v2",
               "v_lshrrev_b32 v3, 1, v1", "v_and_b32 v1, 1, v1", "v_lshl_add_u32 v1, v3, 6, v1", f"v_add_u32 v1, s66, v1",
               "v_mul_lo_u32 v1, v1, s67", "v_lshl_add_u32 v1, v2, 7, v1", f"v_cmp_gt_u32 vcc, {6*nst}, v0", "v_bfrev_b32 v8, 1",
               "v_lshrrev_b32 v3, 2, v0", "v_bfe_u32 v2, v0, 1, 1", f"v_cndmask_b32 v{TCH}, v8, v1, vcc",
               "v_lshl_add_u32 v3, v3, 6, v2", "v_add_u32 v3, s66, v3", f"v_cmp_gt_u32 vcc, {4*nst}, v0", "v_mul_u32_u24 v3, 3072, v3",
               "v_and_b32 v2, 1, v0", "v_mul_u32_u24 v2, 92, v2", "v_add_u32 v3, v3, v2", f"v_cndmask_b32 v{TCH+1}, v8, v3, vcc")
def m0W(u): return f"s_mov_b32 m0, s{sMW + u % 6}"
def qtiles(u): return list(range(8)) if u % 2 == 0 else list(range(8, 15))
def qrd(s, T, kk, uu):
    dst = v(AF + 8*(T % 3) + 4*kk + 2*uu, 2)
    if T < 8: return f"ds_read_b64_tr_b16 {dst}, v{AWA + T} offset:{(s % 3)*16384 + kk*8192 + uu*1024}"
    reg = AWB + T - 8 if T < 12 else AH + T - 12
    return f"ds_read_b64_tr_b16 {dst}, v{reg} offset:{(s % 3)*16384 + kk*8192 + uu*512}"
def qsub(u, last=20, extra=None, vmw=None):
    extra = extra or {}
    s = u >> 1; TL = qtiles(u); nT = len(TL)
    L = []
    lb = ldB(s + 2) if (u % 2 == 0 and s + 2 < last//2) else []
    dw = dmaW(u + 5) if u + 5 < last else []
    for ti, T in enumerate(TL):
        for p in range(4):
            qt = p if T % 2 == 0 else 3 - p
            acc = (qacc(T >> 1, T & 1, qt) if T < 12 else hacc(T-12, qt))(4)
            for kk in range(2):
                g = 2*p + kk; gi = 8*ti + g
                L.append(f"{MF} {acc}, {v(AF + 8*(T % 3) + 4*kk, 4)}, {BF(s, kk, qt)}, {acc}")
                s2, T2 = s + (T+2)//15, (T+2) % 15
                if g < 4:
                    if 2*s2 < last: L.append(qrd(s2, T2, g >> 1, g & 1))
                    if g == 3:
                        left = 15*(last//2) - 1 - (15*s + T)
                        if left >= 1: L.append(f"s_waitcnt lgkmcnt({4 if left >= 2 else 0})")
                if lb and ti < 4 and g in (4, 6): L.append(lb[2*ti + (g-4)//2])
                if lb and ti == 4 and g == 4: L += advX
                if u % 6 == 0 and last > 20 and not X("notouch"):
                    if ti == 4 and g == 6: L.append(touch()[0])
                    if ti == 5 and g == 4: L.append(touch()[1])
                    if ti == 5 and g == 5: L += advT
                if ti == nT-3 and g == 6 and dw: L.append(m0W(u+5))
                if ti == nT-3 and g == 7 and vmw is not None: L += [f"s_waitcnt vmcnt({vmw})", "s_barrier"]
                if dw and ti >= nT-2 and g in (4, 6): L.append(dw[2*(ti-nT+2) + (g-4)//2])
                if dw and u % 2 == 0 and ti == nT-1 and g == 7: L += advW
                L += extra.get(gi, [])
    return L
def qcounts():
    q = ["B1"]*8 + (["W2"]*4 + ["W3"]*4 + ["W4"]*4 if X("lateW") else [])
    out = {}; first = {}
    for u in range(18):
        for l in qsub(u, last=40, vmw="?"):
            if "vmcnt(?)" in l:
                need = ["W%d" % (u+1)] + (["B%d" % ((u+1)//2)] if u % 2 else [])
                idx = [i for i, x in enumerate(q) if x in need]
                if idx:
                    c = len(q) - 1 - max(idx)
                    if u < 6: first[u] = c
                    else: out[u % 6] = min(out.get(u % 6, 63), c)
            if l.startswith("buffer_"): q.append(re.search(r"@(\S+)", l).group(1))
    return out, {u: c for u, c in first.items() if c < out[u]}, q

def convert():
    e = E()("s_nop 7")
    early = X("earlyk")
    k = 0
    for tt in range(3):
        for qt in range(4):
            h = hacc(tt, qt); d = 2 + 2*(k % 6); k += 1
            e(f"v_cvt_pk_bf16_f32 v{d}, {h(1,0)}, {h(1,1)}", f"v_cvt_pk_bf16_f32 v{d+1}, {h(1,2)}, {h(1,3)}",
              f"v_pk_max_i16 v{d}, v{d}, 0", f"v_pk_max_i16 v{d+1}, v{d+1}, 0",
              f"buffer_store_dwordx2 {v(d,2)}, v{LX8}, {srdn(sOF_SRD)}, s{sH[tt]} offen offset:{1024*qt} sc1")
    if early:
        e("s_waitcnt vmcnt(@K0)", "s_barrier", [rdK(0, 0, ds) for ds in range(6)], [rdK(0, 1, ds, VF) for ds in range(6)])
        m, d = kvgroup("V", 1); e(m, d)
        m, d = kvgroup("K", 3); e(m, d[:2])
    for ds in (3, 4, 5, 0, 1, 2):
        dsts = []
        for qt in range(4):
            f = ds*4 + qt
            Xr, Yr = qacc(ds, 0, qt), qacc(ds, 1, qt)
            if Xr.f == "a":
                tx, ty = R("v", 144 + 8*qt), R("v", 148 + 8*qt)
                for r in range(4): e(f"v_accvgpr_read_b32 {tx(1,r)}, {Xr(1,r)}")
                for r in range(4): e(f"v_accvgpr_read_b32 {ty(1,r)}, {Yr(1,r)}")
                Xr, Yr = tx, ty
            d = QV + 4*(f-16) if f >= 16 else (224 if early else 176) + 4*qt
            dsts.append(d)
            for Z in (Xr, Yr):
                for r in (0, 2): e(f"v_pk_mul_f32 {Z(2,r)}, {Z(2,r)}, s[{sC}:{sC+1}]")
            e(f"v_cvt_pk_bf16_f32 v{d}, {Xr(1,0)}, {Xr(1,1)}", f"v_cvt_pk_bf16_f32 v{d+1}, {Xr(1,2)}, {Xr(1,3)}",
              f"v_cvt_pk_bf16_f32 v{d+2}, {Yr(1,0)}, {Yr(1,1)}", f"v_cvt_pk_bf16_f32 v{d+3}, {Yr(1,2)}, {Yr(1,3)}")
        e("s_mov_b32 exec_lo, 0")
        for d in dsts: e(f"v_swap_b32 v{d}, v{d+2}", f"v_swap_b32 v{d+1}, v{d+3}")
        e("s_mov_b32 exec_lo, -1")
        if ds < 4:
            for qt in range(4):
                for r in range(4): e(f"v_accvgpr_write_b32 a{192 + 4*(ds*4+qt) + r}, v{dsts[qt]+r}")
    return e

def Qf(f): return a(192 + 4*f, 4) if f < 16 else v(QV + 4*(f-16), 4)
def Oacc(dt, qt): return (dt*4 + qt)*4
def dmaK(t): return f"buffer_load_dwordx4 v{DK+t}, {srdn(sK_SRD)}, s{sKo} offen offset:{1024*t} lds"
def dmaV(t): return f"buffer_load_dwordx4 v{DV+t}, {srdn(sV_SRD)}, s{sVo} offen offset:{1024*t} lds"
def kvgroup(kind, j):
    so = sKo if kind == "K" else sVo
    return [f"s_mov_b32 m0, s{(sMK if kind=='K' else sMV) + j}", f"s_mov_b32 s{so}, {12288*j}"], [(dmaK(t) if kind == "K" else dmaV(t)) + f" ; @{kind}{j}" for t in range(3)]
def rdK(slot, kt, ds, dst=KF): return f"ds_read_b128 {v(dst+4*ds,4)}, v{AK+(ds&1)} offset:{slot*12288 + kt*6144 + (ds>>1)*128}"
def Pb(t): return P + 16*(t % 4)
def rdVp(m2, part, dst=VF):
    return [f"ds_read_b64_tr_b16 {v(dst + 8*dl + 4*tl + 2*u, 2)}, v{AV + ((3*part+dl) & 3)} offset:{((m2+tl) % 4)*12288 + u*6144 + ((3*part+dl) >> 2)*128}"
            for dl in range(3) for tl in range(2) for u in range(2)]
def qk(dst, src=KF, czero=False):
    o = []
    for qt in range(4):
        for ds in range(6):
            d = v(dst+4*qt, 4)
            c = ("0" if czero else v(NM+4*qt, 4)) if ds == 0 else d
            o.append(f"{MF} {d}, {v(src+4*ds,4)}, {Qf(ds*4+qt)}, {c}")
    return o
def pv(m2, part, czero=False, src=VF):
    o = []
    for dl in range(3):
        for p in range(4):
            qt = p if (3*part + dl) % 2 == 0 else 3 - p
            acc = a(Oacc(3*part+dl, qt), 4)
            for tl in range(2):
                o.append(f"{MF} {acc}, {v(src + 8*dl + 4*tl, 4)}, {v(Pb(m2+tl) + 4*qt, 4)}, {'0' if czero and tl == 0 else acc}")
    return o
def sm(src, qts, Pb, kt):
    Ex, Sx = [], []
    k = 0
    for qt in qts:
        for pr in range(2):
            t0 = ET + 2*k; t1 = t0 + 1; k += 1
            Ex += [f"v_exp_f32 v{t0}, v{src+4*qt+2*pr}", f"v_exp_f32 v{t1}, v{src+4*qt+2*pr+1}"]
            n = len(Ex)
            if kt == 0 and pr == 0: Sx.append((n, f"v_add_f32 v{T_+qt}, v{t0}, v{t1}"))
            else: Sx += [(n-1, f"v_add_f32 v{T_+qt}, v{T_+qt}, v{t0}"), (n, f"v_add_f32 v{T_+qt}, v{T_+qt}, v{t1}")]
            Sx.append((n, f"v_cvt_pk_bf16_f32 v{Pb+4*qt+2*kt+pr}, v{t0}, v{t1}"))
    return Ex, Sx
def quarter(mf, pat, Ex, Sx, D, B, salu):
    assert len(pat) == len(mf) == 24, (pat, len(pat))
    out = []; ei = si = di = bi = 0
    for gi, m in enumerate(mf):
        out.append(m); ty = pat[gi]
        sc = salu.get(gi, [])
        def take(n):
            nonlocal si
            r = []
            while n > 0 and si < len(Sx) and Sx[si][0] <= ei: r.append(Sx[si][1]); si += 1; n -= 1
            return r
        if ty == "e": out += sc + [Ex[ei]]; ei += 1
        elif ty == "d": out += [D[di]] + take(1) + sc; di += 1
        elif ty == "a": out += sc + take(2)
        elif ty == "1": out += sc + take(1)
        elif ty == "b": out += sc + [B[bi]]; bi += 1
        elif ty == "-": out += sc
        else: raise ValueError(ty)
    assert ei == len(Ex) and si == len(Sx) and di == len(D) and bi == len(B), (pat, ei, len(Ex), si, len(Sx), di, len(D), bi, len(B))
    return out
P1 = "ee" + "de"*6 + "d"*6 + "a1b-"
P2 = "de"*6 + "ee" + "baabaa" + "----"
P3 = "ed"*8 + "dddd" + "b---"
P4 = "ebeb" + "de"*6 + "aaa" + "-----"
CHK = [f"v_max3_f32 v{CK}, v{T_}, v{T_+1}, v{T_+2}", f"v_max_f32 v{CK}, v{CK}, v{T_+3}", f"v_cmp_lt_f32 vcc, s{sTHR}, v{CK}"]
LADD = [f"v_add_f32 v{L_+q}, v{L_+q}, v{T_+q}" for q in range(4)]
sites = []
def callsite(par):
    k = len(sites); sites.append(par)
    return [f"s_cbranch_vccnz F_TR{k}", f"F_BK{k}:"]
def step(i, vmw=12, tail=(), rl=None):
    par, slot = i & 1, i % 4
    S0n = S0 + 16*(1-par); Pc = Pb(i); Pn = Pb(i+1)
    m2 = i-1 if par else i-2
    p0 = 0 if par else 2
    nopv = i == 0; cz = i in (1, 2)
    mK = lambda j: f"s_mov_b32 m0, s{sMK + j % 4}"
    mV = lambda j: f"s_mov_b32 m0, s{sMV + j % 4}"
    aK = f"s_add_u32 s{sKo}, s{sKo}, 12288"; aV = f"s_add_u32 s{sVo}, s{sVo}, 12288"
    if par:
        B1 = [dmaV(2) + f" ; @V{i+1}"]; B2 = [dmaV(0) + f" ; @V{i+2}", dmaV(1) + f" ; @V{i+2}"]; B3 = [dmaV(2) + f" ; @V{i+2}"]
        B4 = [dmaK(0) + f" ; @K{i+4}", dmaK(1) + f" ; @K{i+4}"]; m2_, a2, a3, m4 = mV(i+2), aV, aV, mK(i+4)
    else:
        B1 = [dmaK(2) + f" ; @K{i+3}"]; B2 = [dmaK(0) + f" ; @K{i+4}", dmaK(1) + f" ; @K{i+4}"]; B3 = [dmaK(2) + f" ; @K{i+4}"]
        B4 = [dmaV(0) + f" ; @V{i+2}", dmaV(1) + f" ; @V{i+2}"]; m2_, a2, a3, m4 = mK(i+4), aK, aK, mV(i+2)
    L = []
    def emit(mf, pat, Ex, Sx, D, B, sal):
        if mf is None:
            sc = [x for g in sorted(sal) for x in sal[g] if not x.startswith("s_waitcnt")]
            return D + sc + ["s_nop 3"] + B + Ex + [x for _, x in Sx] + ["s_waitcnt lgkmcnt(0)"]
        return quarter(mf, pat, Ex, Sx, D, B, sal)
    Ex, Sx = sm(S1, [2, 3], Pc, 1)
    D1 = rdVp(m2, p0) if not nopv else []
    L += quarter(qk(S0n), P1 if D1 else P1.replace("d", "1"), Ex, Sx + [(8, x) for x in CHK], D1, B1, {23: ["s_waitcnt lgkmcnt(6)"]} if D1 else {})
    L += callsite(i % 4)
    Ex, Sx = sm(S0n, [0, 1], Pn, 0)
    pat = P2; D = [rdK((slot+1) % 4, 1, ds) for ds in range(6)]; B = B2
    sal = {3: [a2], 7: ["s_waitcnt lgkmcnt(4)"], 13: [m2_], 23: ["s_waitcnt lgkmcnt(0)"]}
    if rl == "dma":
        pat = P2[:20] + "b---"; B = B + [rl_dma() + " ; @R"]
        sal.update({18: [f"s_cmp_lt_u32 s{sCNT}, 9"], 19: [f"s_mov_b32 m0, s{sRM}"], 21: [f"s_cselect_b32 s{sTMP}, 128, s3", f"s_cselect_b32 s{sRI}, 1024, 0"],
                    22: [m2_, f"s_add_u32 s{sRS}, s{sRS}, s{sTMP}"], 23: ["s_waitcnt lgkmcnt(0)", f"s_add_u32 s{sRM}, s{sRM}, s{sRI}"]})
    if rl in ("tk", "tv"):
        pat = P2[:20] + "b---"
        B = B + [f"buffer_load_dword v1, v{KVT}, {srdn(sK_SRD if rl == 'tk' else sV_SRD)}, s{sKT} offen ; @T"]
        if rl == "tk": sal[22] = [f"s_add_u32 s{sKT}, s{sKT}, 49152"]
    if rl == "out":
        pat = P2[:20] + "dd--"; D = D + [rl_rd(0), rl_rd(1)]; sal[23] = ["s_waitcnt lgkmcnt(2)"]
    L += emit(None if nopv else pv(m2, p0, cz), pat, Ex, [(0, x) for x in LADD] + Sx, D, B, sal)
    Ex, Sx = sm(S0n, [2, 3], Pn, 0)
    D3 = rdVp(m2, p0+1) if not nopv else []
    sal = {21: [a3], 23: [f"s_waitcnt vmcnt({vmw}) lgkmcnt(0)", "s_barrier"]}
    L += quarter(qk(S1), P3 if D3 else P3.replace("d", "1"), Ex, Sx, D3, B3, sal)
    Ex, Sx = sm(S1, [0, 1], Pn, 1)
    sal = {0: [m4], 22: ["s_waitcnt lgkmcnt(0)"]}
    pat = P4; B = B4
    tail = list(tail)
    if tail:
        sal[19] = tail[:1]; sal[20] = tail[1:2]; sal[23] = tail[2:]
    if rl == "out":
        pat = P4[:19] + "b1---"; B = B + [rl_st() + " ; @S"]
        sal.update({5: [f"s_cmp_lt_u32 s{sCNT}, 10"], 7: [f"s_cselect_b32 s{sRJ}, 1024, 0"], 9: [f"s_sub_u32 s{sTMP}, s{sCNT}, 1"],
                    11: [f"s_cmp_lt_u32 s{sTMP}, 10"], 13: [f"s_cselect_b32 s{sTMP}, s{sRO}, s3"], 15: [f"s_cselect_b32 s{sRI}, 4096, 0"],
                    16: [f"s_add_u32 s{sRO}, s{sRO}, s{sRI}"], 17: [f"s_lshr_b32 s{sRI}, s{sRI}, 10"], 18: [f"s_add_u32 s{sRR}, s{sRR}, s{sRI}"],
                    20: [f"s_cmp_gt_u32 s{sRR}, 9"], 21: [f"s_cselect_b32 s{sRI}, {WF160 - 10240}, 0", f"s_cselect_b32 s{sTMP}, 10, 0"],
                    22: ["s_waitcnt lgkmcnt(0)", f"s_add_u32 s{sRO}, s{sRO}, s{sRI}"], 23: [f"s_sub_u32 s{sRR}, s{sRR}, s{sTMP}"]})
        Sx = Sx + [(8, f"v_add_u32 v{RTV}, s{sRJ}, v{RTV}")]
    L += emit(None if nopv else pv(m2, p0+1, cz), pat, Ex, Sx, [rdK((slot+2) % 4, 0, ds) for ds in range(6)], B, sal)
    return L
sRJ, sKT, KVT = 59, 58, 252
def kv_touch_addr(D):
    return E()(f"s_lshl_b32 s66, s{sQB}, 2", f"s_add_u32 s66, s66, s{sWAVE}", "s_mul_i32 s66, s66, 1536", "v_lshlrev_b32 v3, 7, v0", "v_add_u32 v3, s66, v3",
               "v_cmp_gt_u32 vcc, 12, v0", "v_bfrev_b32 v2, 1", f"s_mov_b32 s{sKT}, {D*12288}", f"v_cndmask_b32 v{KVT}, v2, v3, vcc")
def xlane(op, dst, tmp):
    L = []
    for sw in ("v_permlane16_swap_b32", "v_permlane32_swap_b32"):
        L += [f"v_mov_b32 v{tmp+qt}, v{dst+qt}" for qt in range(4)] + ["s_nop 1"]
        L += [f"{sw} v{dst+qt}, v{tmp+qt}" for qt in range(4)]
        L += [f"{op} v{dst+qt}, v{dst+qt}, v{tmp+qt}" for qt in range(4)]
    return L
def rowmax(dst, srcs, tmp):
    L = []
    for qt in range(4):
        r = srcs(qt); d = dst + qt
        L += [f"v_max3_f32 v{d}, v{r[0]}, v{r[1]}, v{r[2]}", f"v_max3_f32 v{d}, v{d}, v{r[3]}, v{r[4]}",
              f"v_max3_f32 v{d}, v{d}, v{r[5]}, v{r[6]}", f"v_max_f32 v{d}, v{d}, v{r[7]}"]
    return L + xlane("v_max_f32", dst, tmp)
def init():
    e = E()
    if not X("earlyk"):
        e("s_waitcnt vmcnt(@K0)", "s_barrier", fstamp(3, "conv"))
        for ds in range(6): e(rdK(0, 0, ds))
        for ds in range(6): e(rdK(0, 1, ds, VF))
        m, d = kvgroup("V", 1); e(m, d)
        m, d = kvgroup("K", 3); e(m, d[:2])
    e(kv_touch_addr(4))
    for _ in range(2):
        e(f"buffer_load_dword v1, v{KVT}, {srdn(sK_SRD)}, s{sKT} offen ; @T", f"buffer_load_dword v1, v{KVT}, {srdn(sV_SRD)}, s{sKT} offen ; @T", f"s_add_u32 s{sKT}, s{sKT}, 49152")
    e(f"s_mov_b32 s{sVo}, {2*12288}")
    for q in range(4): e(f"v_mov_b32 v{L_+q}, 0")
    e(fstamp(4, "conv"), "s_waitcnt lgkmcnt(6)", qk(S0, KF, True), "s_waitcnt vmcnt(@K1) lgkmcnt(0)", "s_barrier", fstamp(5, "conv"))
    m = qk(S1, VF, True)
    rd = [rdK(1, 0, ds) for ds in range(6)]
    for i, x in enumerate(m):
        e(x)
        if i < 6: e(rd[i])
    e("s_nop 7", fstamp(6, "conv"))
    D, TM = 2, 6
    e(rowmax(D, lambda qt: [S0+4*qt+r for r in range(4)] + [S1+4*qt+r for r in range(4)], TM))
    for qt in range(4): e(f"v_ceil_f32 v{D+qt}, v{D+qt}")
    for qt in range(4):
        for r in range(4):
            e(f"v_sub_f32 v{NM+4*qt+r}, 0, v{D+qt}", f"v_sub_f32 v{S0+4*qt+r}, v{S0+4*qt+r}, v{D+qt}", f"v_sub_f32 v{S1+4*qt+r}, v{S1+4*qt+r}, v{D+qt}")
    for src, qts, kt in ((S0, [0, 1], 0), (S0, [2, 3], 0), (S1, [0, 1], 1)):
        Ex, Sx = sm(src, qts, Pb(0), kt)
        e(Ex, [x for _, x in Sx])
    e("s_waitcnt lgkmcnt(0)")
    return e
def slow(k):
    par = k & 1
    S0c = S0 + 16*par; S0n = S0 + 16*(1-par)
    e = E()(f"F_SLOW{k}:", "s_nop 7", "s_nop 7")
    D, TM = 2, 6
    e(rowmax(D, lambda qt: [S0c+4*qt+r for r in range(4)] + [S1+4*qt+r for r in range(4)], TM))
    for qt in range(4): e(f"v_max_f32 v{D+qt}, 0, v{D+qt}", f"v_ceil_f32 v{D+qt}, v{D+qt}", f"v_sub_f32 v{TM+qt}, 0, v{D+qt}", f"v_cvt_i32_f32 v{TM+qt}, v{TM+qt}")
    for qt in range(4):
        e(f"v_ldexp_f32 v{L_+qt}, v{L_+qt}, v{TM+qt}")
        for base in (NM, S0c, S1, S0n):
            for r in range(4): e(f"v_sub_f32 v{base+4*qt+r}, v{base+4*qt+r}, v{D+qt}")
    for t in ([k-1] if par else [k-1, k-2]):
        for qt in range(4):
            for r in range(4):
                p = Pb(t) + 4*qt + r
                e(f"v_lshlrev_b32 v10, 16, v{p}", f"v_and_b32 v11, 0xffff0000, v{p}", f"v_ldexp_f32 v10, v10, v{TM+qt}", f"v_ldexp_f32 v11, v11, v{TM+qt}",
                  f"v_cvt_pk_bf16_f32 v{p}, v10, v11")
    for dt in range(12):
        for qt in range(4):
            b = Oacc(dt, qt)
            for r in range(2):
                e(f"v_accvgpr_read_b32 v10, a{b+2*r}", f"v_accvgpr_read_b32 v11, a{b+2*r+1}", f"v_ldexp_f32 v10, v10, v{TM+qt}", f"v_ldexp_f32 v11, v11, v{TM+qt}",
                  f"v_accvgpr_write_b32 a{b+2*r}, v10", f"v_accvgpr_write_b32 a{b+2*r+1}, v11")
    for src, qts, kt in ((S0c, [0, 1], 0), (S0c, [2, 3], 0), (S1, [0, 1], 1), (S1, [2, 3], 1)):
        Ex, Sx = sm(src, qts, Pb(k), kt)
        e(Ex, [x for _, x in Sx])
    e("s_nop 1", f"s_setpc_b64 s[{sRET}:{sRET+1}]")
    return e

def relayout_src():
    return E()("s_cmp_lt_u32 s2, 192", f"s_cselect_b32 s{sRSRC}, s{pWO}, s{pW2}", f"s_cselect_b32 s{sRSRC+1}, s{pWO+1}, s{pW2+1}", "s_cselect_b32 s66, 0, 192",
               "s_sub_u32 s66, s2, s66", "s_mul_i32 s66, s66, 40960", f"s_add_u32 s{sRSRC}, s{sRSRC}, s66", f"s_addc_u32 s{sRSRC+1}, s{sRSRC+1}, 0",
               "s_cmp_lt_u32 s2, 240", f"s_cselect_b32 s{sRSRC+2}, 40960, 0", f"s_mov_b32 s{sRSRC+3}, 0x20000")
def relayout_dst():
    return E()("s_mul_i32 s66, s2, 10240", f"s_add_u32 s67, s66, {hx(WS_WF)}", f"s_sub_u32 s{sRDST+2}, {4*WF160}, s66",
               "s_cmp_lt_u32 s2, 240", f"s_cselect_b32 s{sRDST+2}, s{sRDST+2}, 0", f"s_cselect_b32 s67, s67, {hx(WS_WF)}",
               f"s_add_u32 s{sRDST}, s{pWS}, s67", f"s_addc_u32 s{sRDST+1}, s{pWS+1}, 0", f"s_mov_b32 s{sRDST+3}, 0x20000",
               f"s_mul_i32 s{sRM}, s{sWAVE}, 10240", f"s_add_u32 s{sRM}, s{sRM}, {ST}", f"s_mov_b32 s{sRS}, 0",
               f"s_lshl_b32 s{sRO}, s{sWAVE}, 10", f"s_mov_b32 s{sRR}, s{sWAVE}")
RTV, RTD = 255, 12
sRO, sRR, sRI = 26, 27, 62
def relayout_vaddr():
    return E()("v_lshrrev_b32 v1, 2, v0", "v_and_b32 v1, 7, v1", "v_lshlrev_b32 v2, 7, v1", "v_lshrrev_b32 v3, 5, v0", "v_mul_u32_u24 v3, 10240, v3", "v_add_u32 v2, v2, v3",
               "v_and_b32 v3, 3, v0", "v_lshl_add_u32 v2, v3, 3, v2", f"v_add_u32 v2, {ST - 1024}, v2", "v_lshrrev_b32 v1, 1, v1", "v_lshlrev_b32 v1, 5, v1",
               f"s_lshl_b32 s66, s{sWAVE}, 5", "v_xor_b32 v1, s66, v1", f"v_add_u32 v{RTV}, v1, v2")
def rl_dma(): return f"buffer_load_dwordx4 v{RLV}, {srdn(sRSRC)}, s{sRS} offen lds"
def rl_rd(u): return f"ds_read_b64_tr_b16 {v(RTD+2*u,2)}, v{RTV} offset:{20480*u}"
def rl_st(): return f"buffer_store_dwordx4 {v(RTD,4)}, v{LX}, {srdn(sRDST)}, s{sTMP} offen sc1"

def front():
    e = E()
    e("s_load_dwordx8 s[4:11], s[0:1], 0", f"s_load_dwordx2 s[{pWO}:{pWO+1}], s[0:1], 32", f"s_load_dwordx4 s[{pW1}:{pW1+3}], s[0:1], 48",
      f"s_load_dwordx4 s[{pOUT}:{pOUT+3}], s[0:1], 64", f"s_load_dwordx2 s[{pWS}:{pWS+1}], s[0:1], 80")
    if not X("nopf"):
        e("s_getpc_b64 s[66:67]", "F_PC:", "v_lshrrev_b32 v1, 6, v0", "s_lshr_b32 s62, s2, 3", "s_mul_i32 s62, s62, 1536", "s_add_u32 s62, s62, 8192 - 512",
          "v_and_b32 v2, 63, v0", "v_lshlrev_b32 v4, 7, v2", "v_and_b32 v2, 3, v0", "v_lshl_add_u32 v2, v1, 2, v2", "v_lshlrev_b32 v2, 7, v2", "v_add_u32 v2, s62, v2",
          "v_cmp_eq_u32 vcc, 0, v1", "v_mov_b32 v5, s67", "s_nop 0", "v_cndmask_b32 v4, v2, v4, vcc", "v_min_u32 v4, F_END-F_PC, v4",
          "v_add_co_u32 v4, vcc, s66, v4", "s_nop 1", "v_addc_co_u32 v5, vcc, 0, v5, vcc", f"global_load_dword v{TCD+1}, v[4:5], off")
    e(wave_id(f"s{sWAVE}"), stamp(0), "s_mov_b32 s3, 0x10000000")
    if X("early0"): e("s_mov_b32 s88, s100")
    e("s_and_b32 s66, s2, 7", "s_lshl_b32 s66, s66, 2", "s_lshr_b32 s67, s2, 3", "s_and_b32 s67, s67, 3", f"s_add_u32 s{sHEAD}, s66, s67",
      f"s_lshr_b32 s{sQB}, s2, 5", f"s_lshl_b32 s66, s{sQB}, 2", f"s_add_u32 s{sM64}, s66, s{sWAVE}")
    e(f"s_lshl_b32 s66, s{sQB}, 5", f"s_add_u32 s66, s66, s{sHEAD}", "s_lshl_b32 s66, s66, 2", f"s_add_u32 s66, s66, s{sWAVE}", "s_lshl_b32 s62, s66, 1",
      "s_mul_i32 s66, s62, 1280",
      "v_lshrrev_b32 v1, 5, v0", "v_and_b32 v2, 31, v0", "v_mul_u32_u24 v3, 1280, v1", "v_lshl_add_u32 v3, v2, 3, v3",
      f"v_lshlrev_b32 v{LX}, 4, v0", f"s_or_b32 s{sKo}, s2, s{sWAVE}")
    e("s_waitcnt lgkmcnt(0)", fstamp(1))
    e(srd(12, pX, pX+1, 2560, "s66"))
    XR, XX = 64, 80
    for m in range(5): e(f"buffer_load_dwordx2 {v(XR+2*m,2)}, v3, s[12:15], 0 offen offset:{256*m}")
    e(srd(sFL, pWS, pWS+1, 1024, WS_FL), f"s_cmp_eq_u32 s{sKo}, 0", f"s_cselect_b32 s{sFL+2}, 1024, 0",
      f"buffer_load_dwordx4 v[76:79], v{LX}, {srdn(sFL)}, 0 offen sc1", f"s_mov_b32 s{sFL+2}, 1024")
    e("s_lshr_b32 s66, s62, 6", f"s_mul_i32 s66, s66, {XF_BLK}", "s_and_b32 s67, s62, 63", "s_lshl_b32 s67, s67, 6", "s_add_u32 s66, s66, s67",
      f"s_sub_u32 s67, {XF_BLK}, s67")
    e(srd(16, pWS, pWS+1, "s67", "s66"))
    e("v_lshrrev_b32 v13, 3, v2", "v_lshlrev_b32 v13, 12, v13", "v_lshl_add_u32 v13, v1, 6, v13", "v_and_b32 v3, 7, v0", "v_lshl_add_u32 v13, v3, 3, v13")
    e(f"s_mul_i32 s66, s{sHEAD}, 384", "s_sub_u32 s67, 7864320, s66"); e(srd(sWQ_SRD, pWQ, pWQ+1, "s67", "s66"))
    e(f"s_mul_i32 s66, s{sHEAD}, 96", "s_sub_u32 s67, 1969152, s66", f"s_sub_u32 s{pW1}, s{pW1}, 3072", f"s_subb_u32 s{pW1+1}, s{pW1+1}, 0")
    e(srd(sW1_SRD, pW1, pW1+1, "s67", "s66"))
    e(f"s_lshl_b32 s66, s{sWAVE}, 4", "s_mov_b32 s67, 12288")
    e("v_lshrrev_b32 v1, 4, v0", "v_and_b32 v2, 15, v0", "v_lshlrev_b32 v3, 1, v1", "v_xor_b32 v2, v2, v3", "v_add_u32 v3, s66, v1", "v_mul_lo_u32 v3, v3, s67",
      f"v_lshl_add_u32 v{DA}, v2, 4, v3", f"v_add_u32 v{DA+1}, {4*12288 - 1024}, v{DA}", "v_xor_b32 v2, 8, v2", "v_lshl_add_u32 v3, v2, 4, v3",
      f"v_add_u32 v{DA+2}, {8*12288 - 2048}, v3", f"v_add_u32 v{DA+3}, {12*12288 - 3072}, v3")
    e("v_lshrrev_b32 v1, 3, v0", "v_and_b32 v2, 7, v0", "v_and_b32 v3, 2, v1", "v_xor_b32 v2, v2, v3", "v_add_u32 v3, s66, v1", "v_mul_lo_u32 v4, v3, s67",
      "v_add_u32 v4, 256, v4", f"v_lshl_add_u32 v{DB}, v2, 4, v4", "v_xor_b32 v5, 4, v2", "v_lshl_add_u32 v4, v5, 4, v4", f"v_add_u32 v{DB+1}, {8*12288 - 1024}, v4",
      "v_mul_u32_u24 v3, 3072, v3", "v_bfrev_b32 v8, 1", "v_cmp_gt_u32 vcc, 6, v2", "v_lshl_add_u32 v6, v2, 4, v3", "v_add_u32 v6, 1024, v6",
      f"v_cndmask_b32 v{DH}, v8, v6, vcc", "v_cmp_gt_u32 vcc, 6, v5", "v_lshl_add_u32 v6, v5, 4, v3", f"v_add_u32 v6, {8*3072}, v6",
      f"v_cndmask_b32 v{DH+1}, v8, v6, vcc")
    e(f"s_lshl_b32 s66, s{sWAVE}, 12")
    for u in range(6): e(f"s_add_u32 s{sMW+u}, s66, {(WB if u % 2 else WA) + 16384*(u >> 1)}")
    e(f"s_mov_b32 s{sWq}, 0", f"s_mov_b32 s{sW1}, 0")
    NE = 5 if X("allW") else 2
    def wgrp(lo, hi):
        o = E()
        for u in range(lo, hi):
            o(m0W(u), "s_nop 0", dmaW(u))
            if u % 2: o(advW)
        return o
    e(wgrp(0, NE))
    NT = 0 if X("notouch") else 2
    if NT:
        e(f"s_lshl_b32 s66, s{sQB}, 3", f"s_lshl_b32 s67, s{sWAVE}, 1", "s_add_u32 s66, s66, s67", "s_mov_b32 s67, 12288", touch_addr(4),
          f"s_mov_b32 s{sTq}, 786432", f"s_mov_b32 s{sT1}, 196608")
        tch = touch()
        if X("touch2") or X("touch3") or X("touch4"): NT = 0
        else: e(tch)
    e(fstamp(2), f"s_waitcnt vmcnt({4*NE + NT})", stamp(1), fstamp(3))
    l1 = newlab("T")
    e(srd(12, pDBG, pDBG+1, 4), "v_mov_b32 v27, 0", f"s_cmp_lg_u32 s{sKo}, 0", f"s_cbranch_scc1 {l1}")
    e("v_and_b32 v1, 15, v0", "v_lshlrev_b32 v1, 2, v1", "ds_write_b32 v1, v27")
    for r in range(4):
        e(f"v_bfe_u32 v{4+r}, v{76+r}, 3, 9", f"v_lshrrev_b32 v{8+r}, 5, v{4+r}", f"v_lshlrev_b32 v{8+r}, 2, v{8+r}",
          f"v_and_b32 v{4+r}, 31, v{4+r}", f"v_lshlrev_b32_e64 v{4+r}, v{4+r}, 1")
    for r in range(4): e(f"ds_or_b32 v{8+r}, v{4+r}")
    e("ds_read_b32 v2, v1", "s_waitcnt lgkmcnt(0)", "v_not_b32 v2, v2", "v_ffbl_b32 v2, v2", "v_cmp_ne_u32 vcc, -1, v2",
      "s_nop 4", "s_ff1_i32_b64 s66, vcc", "s_nop 1", "v_readlane_b32 s67, v2, s66", "s_nop 4", "s_lshl_b32 s66, s66, 5", "s_add_u32 s66, s66, s67",
      "s_lshl_b32 s66, s66, 3", "s_or_b32 s66, s66, 0x40000000", "v_mov_b32 v26, s66",
      "s_mov_b64 exec, 1", "buffer_store_dword v26, v27, s[12:15], 0 offen sc1", "s_mov_b64 exec, -1", f"{l1}:")
    for i in range(10): e(f"v_lshlrev_b32 v{XX+2*i}, 16, v{XR+i}", f"v_and_b32 v{XX+2*i+1}, 0xffff0000, v{XR+i}")
    def reduce32(r, t):
        o = []
        for sh in (8, 4, 2, 1): o += ["s_nop 1", f"v_add_f32_dpp {r}, {r}, {r} row_ror:{sh} row_mask:0xf bank_mask:0xf"]
        return o + [f"v_mov_b32 {t}, {r}", "s_nop 1", f"v_permlane16_swap_b32 {r}, {t}", f"v_add_f32 {r}, {r}, {t}"]
    e(f"v_add_f32 v10, v{XX}, v{XX+1}", f"v_add_f32 v11, v{XX+2}, v{XX+3}")
    for i in range(4, 20, 2): e(f"v_add_f32 v10, v10, v{XX+i}", f"v_add_f32 v11, v11, v{XX+i+1}")
    e("v_add_f32 v10, v10, v11", reduce32("v10", "v11"))
    e(f"s_mov_b32 s66, {hx(f2u(1.0/640))}", "v_mul_f32 v10, s66, v10", "v_mov_b32 v11, 0", "v_mov_b32 v12, 0")
    for i in range(0, 20, 2):
        e(f"v_sub_f32 v1, v{XX+i}, v10", f"v_sub_f32 v2, v{XX+i+1}, v10", "v_fmac_f32 v11, v1, v1", "v_fmac_f32 v12, v2, v2")
    e("v_add_f32 v11, v11, v12", reduce32("v11", "v12"), "v_mul_f32 v11, s66, v11")
    e("v_cvt_pk_bf16_f32 v10, v10, v11", "v_and_b32 v11, 0xffff0000, v10", "v_lshlrev_b32 v10, 16, v10")
    e(f"v_add_f32 v11, {hx(f2u(1e-5))}, v11", "v_cvt_pk_bf16_f32 v11, v11, v11", "v_lshlrev_b32 v11, 16, v11",
      "v_sqrt_f32 v11, v11", "s_nop 0", "v_cvt_pk_bf16_f32 v11, v11, v11", "v_lshlrev_b32 v11, 16, v11", "v_rcp_f32 v11, v11", "s_nop 0")
    for i in range(10):
        a0, a1 = XX+2*i, XX+2*i+1
        e(f"v_sub_f32 v{a0}, v{a0}, v10", f"v_sub_f32 v{a1}, v{a1}, v10", f"v_cvt_pk_bf16_f32 v1, v{a0}, v{a1}",
          f"v_lshlrev_b32 v{a0}, 16, v1", f"v_and_b32 v{a1}, 0xffff0000, v1",
          f"v_mul_f32 v{a0}, v{a0}, v11", f"v_mul_f32 v{a1}, v{a1}, v11", f"v_cvt_pk_bf16_f32 v{XR+i}, v{a0}, v{a1}")
        if i % 2: e(f"s_mov_b32 s66, {16384*(i//2)}", f"buffer_store_dwordx2 {v(XR+i-1,2)}, v13, s[16:19], s66 offen sc1")
    e(stamp(2), fstamp(4))
    e("v_lshrrev_b32 v1, 4, v0", "v_lshrrev_b32 v2, 2, v0", "v_and_b32 v2, 3, v2", "v_and_b32 v3, 3, v0",
      "v_and_b32 v5, 1, v1", "v_lshlrev_b32 v4, 1, v2", "v_lshl_or_b32 v4, v5, 3, v4",
      "v_lshl_add_u32 v6, v1, 3, v2", "v_lshlrev_b32 v6, 8, v6", f"v_add_u32 v6, {WA}, v6", "v_lshrrev_b32 v7, 1, v3")
    for T in range(8):
        e(f"v_or_b32 v8, {4*(T >> 1)}, v3", "v_xor_b32 v8, v8, v4", "v_lshl_add_u32 v8, v8, 4, v6", f"v_xor_b32 v9, {T & 1}, v7", f"v_lshl_add_u32 v{AWA+T}, v9, 3, v8")
    e("v_and_b32 v4, 2, v2", "v_lshl_or_b32 v4, v5, 2, v4",
      "v_lshl_add_u32 v6, v5, 3, v2", "v_lshlrev_b32 v6, 7, v6", "v_lshrrev_b32 v8, 1, v1", "v_lshl_add_u32 v6, v8, 12, v6", f"v_add_u32 v6, {WB}, v6")
    for T in range(4):
        e(f"v_or_b32 v8, {4*(T >> 1)}, v3", "v_xor_b32 v8, v8, v4", "v_lshl_add_u32 v8, v8, 4, v6", f"v_xor_b32 v9, {T & 1}, v7", f"v_lshl_add_u32 v{AWB+T}, v9, 3, v8")
    e("v_add_u32 v6, 2048, v6", "v_lshl_add_u32 v6, v3, 3, v6")
    for tt in range(3): e(f"v_xor_b32 v8, {2*tt}, v4", f"v_lshl_add_u32 v{AH+tt}, v8, 4, v6")
    e(fstamp(5))
    lp, ld = newlab("P"), newlab("D")
    tagpoll = E()(f"s_mov_b32 s{sU}, 0", f"{lp}:", "buffer_load_dword v26, v27, s[12:15], 0 offen sc1", "s_waitcnt vmcnt(0)", f"v_readfirstlane_b32 s{sT}, v26",
                  f"s_add_u32 s{sU}, s{sU}, 1", f"s_cmp_gt_u32 s{sU}, {SPIN}", f"s_cbranch_scc1 {ld}",
                  f"s_cmp_eq_u32 s{sT}, 0", f"s_cbranch_scc1 {lp}", f"{ld}:")
    e(wave0(tagpoll), "s_waitcnt vmcnt(0)", fstamp(6), "s_barrier", stamp(3), fstamp(7))
    e(wave0(signal(1)), fstamp(8))
    if not X("allW") and not X("lateW"): e(wgrp(NE, 5))
    if X("touch2"): e(tch)
    e("v_lshrrev_b32 v1, 3, v0", "v_and_b32 v2, 7, v0", f"s_mul_i32 s62, s{sWAVE}, 3072", f"s_lshl_b32 s66, s{sWAVE}, 2")
    for t in range(3):
        e(f"v_add_u32 v3, {8*t}, v1", "v_mul_u32_u24 v4, 171, v3", "v_lshrrev_b32 v4, 9, v4",
          "v_lshrrev_b32 v5, 1, v4", "v_add_u32 v6, s66, v5", "v_and_b32 v6, 7, v6", "v_xor_b32 v6, v2, v6",
          "v_lshlrev_b32 v7, 7, v1", "v_add_u32 v7, s62, v7", f"v_lshl_add_u32 v{DK+t}, v6, 4, v7",
          "v_and_b32 v5, 3, v5", "v_lshlrev_b32 v5, 1, v5", "v_xor_b32 v5, v2, v5", f"v_lshl_add_u32 v{DV+t}, v5, 4, v7")
    for i in range(4): e(f"s_add_u32 s{sMK+i}, s62, {KR + 12288*i}", f"s_add_u32 s{sMV+i}, s62, {VR + 12288*i}")
    e("v_and_b32 v3, 6, v1", "v_xor_b32 v3, v2, v3", "v_mul_u32_u24 v4, 1280, v1", "v_lshl_add_u32 v4, v3, 4, v4", f"s_mul_i32 s66, s{sWAVE}, 10240", f"v_add_u32 v{RLV}, s66, v4")
    e(f"s_mul_i32 s66, s{sM64}, {XF_BLK}")
    if WS_XF: e(f"s_add_u32 s66, s66, {hx(WS_XF)}")
    e(srd(sXF_SRD, pWS, pWS+1, XF_BLK, "s66"))
    e("v_and_b32 v1, 15, v0", "v_lshrrev_b32 v2, 4, v0", "v_lshlrev_b32 v1, 6, v1", f"v_lshl_add_u32 v{LXB}, v2, 4, v1", f"v_add_u32 v{LXB2}, 4096, v{LXB}",
      f"v_lshlrev_b32 v{LX8}, 3, v0", f"s_mov_b32 s{sX}, 0")
    e(f"s_mul_i32 s66, s{sHEAD}, 786432"); e(srd(sK_SRD, pK, pK+1, 786432, "s66"), srd(sV_SRD, pV, pV+1, 786432, "s66"), relayout_src())
    e(f"s_mul_i32 s66, s{sM64}, {OF_BLK}", f"s_add_u32 s66, s66, {hx(WS_OF)}"); e(srd(sOF_SRD, pWS, pWS+1, OF_BLK, "s66"))
    e(f"s_mov_b32 s{sC}, {hx(f2u(CSCALE))}", f"s_mov_b32 s{sC+1}, {hx(f2u(CSCALE))}", f"s_mov_b32 s{sTHR}, {hx(f2u(THR))}")
    e(f"s_mul_i32 s{sO}, s{sHEAD}, 24576")
    for tt in range(3):
        e(f"s_mul_i32 s66, s{sHEAD}, 3", f"s_add_u32 s66, s66, {tt}", "s_and_b32 s67, s66, 1", "s_lshl_b32 s67, s67, 9",
          "s_lshr_b32 s66, s66, 1", "s_add_u32 s66, s66, 192", "s_lshl_b32 s66, s66, 12", f"s_add_u32 s{sH[tt]}, s66, s67")
    e("v_lshrrev_b32 v1, 4, v0", "v_and_b32 v3, 3, v0",
      "v_lshrrev_b32 v5, 2, v0", "v_mul_u32_u24 v6, 384, v5", f"v_add_u32 v6, {VR}, v6", "v_lshl_add_u32 v6, v3, 3, v6",
      "v_lshrrev_b32 v5, 1, v5", "v_and_b32 v5, 3, v5", "v_lshlrev_b32 v5, 1, v5")
    for sg in range(4): e(f"v_xor_b32 v8, {2*sg}, v5", f"v_lshl_add_u32 v{AV+sg}, v8, 4, v6")
    e("v_and_b32 v2, 15, v0", "v_mul_u32_u24 v6, 384, v2", "v_lshrrev_b32 v2, 1, v2", "v_xor_b32 v2, v2, v1")
    e(f"v_lshl_add_u32 v{AK}, v2, 4, v6", "v_xor_b32 v2, 4, v2", f"v_lshl_add_u32 v{AK+1}, v2, 4, v6", relayout_vaddr(), fstamp(9))
    if not X("notouch"):
        e(f"s_lshl_b32 s66, s{sQB}, 3", f"s_lshl_b32 s67, s{sWAVE}, 1", "s_add_u32 s66, s66, s67", "s_mov_b32 s67, 12288", touch_addr(3),
          f"s_mov_b32 s{sTq}, {(3 if X('touch3') else 4 if X('touch4') else 5)*786432}", f"s_mov_b32 s{sT1}, {(3 if X('touch3') else 4 if X('touch4') else 5)*196608}")
    for i in range(96): e(f"v_accvgpr_write_b32 a{i}, 0")
    for i in range(48, 192): e(f"v_mov_b32 v{i}, 0")
    e("s_waitcnt vmcnt(0)")
    e(wave0([f"v_lshlrev_b32 v2, 2, v0", f"s_lshl_b32 s{sCNT}, s{sQB}, 7"] + poll(1, ("-1", "0"), f"s{sCNT}")))
    e("s_barrier", fstamp(10))
    for k in range(2): e(ldB(k), advX)
    e([qrd(0, T, kk, uu) for T in range(2) for kk in range(2) for uu in range(2)], wgrp(NE, 5) if X("lateW") else [])
    e(f"s_mov_b32 s{sCNT}, 0", fstamp(11), f"s_waitcnt vmcnt({20 if X('lateW') else 8}) lgkmcnt(4)", stamp(5), fstamp(12))
    return e

TB, TA, TAD, TD, TB8 = 16, 96, 160, 162, 164
sTW, sTB, sMT, sSP = 39, 58, 40, 54
LEAD = 3
def tacc(nt, qt): return (nt*2 + qt)*4
def t_rd(st, nt, kk, dst):
    slot = st % 4
    return f"ds_read_b128 {v(dst, 4)}, v{TAD + slot//3} offset:{(slot%3)*20480 + (kk*10 + nt)*1024}"
def t_A(st, nt, kk): return TA + 8*((10*st + nt) % 4) + 4*kk
def t_B(st, kk, qt): return TB + 16*(st % 4) + 8*kk + 4*qt
def t_ldB(st, g):
    if not g: return [f"buffer_load_dwordx4 {v(t_B(st,kk,qt), 4)}, v{LX}, s[16:19], s{sTB + kk} offen offset:{1024*qt} sc1 ; @B{st}" for kk in range(2) for qt in range(2)]
    return [f"buffer_load_dwordx2 {v(t_B(st,kk,qt) + 2*h, 2)}, v{TB8}, s[16:19], s{sTB + kk} offen offset:{1024*qt + 512*h} sc1 ; @B{st}" for kk in range(2) for qt in range(2) for h in range(2)]
t_advB = [f"s_add_u32 s{sTB}, s{sTB}, 8192", f"s_add_u32 s{sTB+1}, s{sTB+1}, 8192"]
def t_dmaW(st, t): return f"buffer_load_dwordx4 v{TD + (t == 4)}, s[12:15], s{sTW} offen offset:{1024*(t%4)} {'' if X('wplain') else 'sc1 '}lds ; @W{st}"
def t_m0(st, t): return f"s_add_u32 m0, s{sMT}, {(st%4)*20480 + (4096 if t == 4 else 0)}"
t_advW = [f"s_add_u32 s{sTW}, s{sTW}, 20480"]
def tplan(g):
    if g: pl = {2: ("W", LEAD-1, 3), 3: ("B", 0), 6: ("B", 1), 7: ("B", 2), 11: ("W", LEAD-1, 4), 10: ("B", 3), 14: ("B", 4), 15: ("B", 5), 19: ("B", 6), 22: ("B", 7)}
    else: pl = {2: ("W", LEAD-1, 3), 6: ("B", 0), 11: ("W", LEAD-1, 4), 15: ("B", 1), 19: ("B", 2), 23: ("B", 3)}
    pl.update({30: ("W", LEAD, 0), 34: ("W", LEAD, 1), 38: ("W", LEAD, 2)})
    return pl
sIT, sCP, sNW, sNB, sNF, sDA, sDB, FV, FA_ = 50, 52, 53, 49, 47, 45, 43, 166, 165
def decode():
    return [f"s_and_b32 s{sDA}, s{sIT}, 7", f"s_lshl_b32 s{sDA}, s{sDA}, 2", f"s_lshr_b32 s{sDA}, s{sCP}, s{sDA}", f"s_and_b32 s{sDA}, s{sDA}, 7",
            f"s_bfe_u32 s{sDB}, s{sIT}, 0x20003", f"s_lshl_b32 s{sNF}, s{sDA}, 4", f"s_add_u32 s{sNF}, s{sNF}, s48",
            f"s_mul_i32 s{sDA}, s{sDA}, 3", f"s_add_u32 s{sDA}, s{sDA}, s{sDB}", f"s_mul_i32 s{sNW}, s{sDA}, 81920", f"s_lshl_b32 s{sNB}, s{sDA}, 15"]
shiftIT = f"s_lshr_b64 s[{sIT}:{sIT+1}], s[{sIT}:{sIT+1}], 5"
def flagld(): return f"buffer_load_dword v{FV}, v{FA_}, {srdn(sFL)}, s{sNF} offen sc1 ; @F"
def flagchk(): return [f"v_subrev_u32 v{FV}, s{sT}, v{FV}", f"v_subrev_u32 v{FV}, 3, v{FV}", f"v_cmp_lt_u32 vcc, 1, v{FV}"]
def flagspin(entry, back):
    l = newlab("S")
    return E()(f"{entry}:", f"s_mov_b32 s{sU}, 0", f"{l}:", flagld(), "s_waitcnt vmcnt(0)", flagchk(), f"s_add_u32 s{sU}, s{sU}, 1", f"s_cmp_gt_u32 s{sU}, {SPIN}",
               f"s_cbranch_scc1 {back}", f"s_cbranch_vccnz {l}", f"s_branch {back}")
def tstage(st, g, vmw, last=1 << 30, nextA=None):
    L = []
    pl = tplan(g)
    ldb = t_ldB(st + LEAD, g)
    for p in range(20):
        nt = p >> 1; qt = (p & 1) ^ (nt & 1)
        for kk in range(2):
            gi = 2*p + kk
            acc = a(tacc(nt, qt), 4)
            L.append(f"{MF} {acc}, {v(t_A(st,nt,kk), 4)}, {v(t_B(st,kk,qt), 4)}, {acc}")
            if gi % 4 < 2:
                st2, nt2 = st + (nt+3)//10, (nt+3) % 10
                if st2 == st or nextA is None: L.append(t_rd(st2, nt2, gi % 4, t_A(st2, nt2, gi % 4)))
                else: L.append(nextA[2*nt2 + gi % 4])
                if gi % 4 == 1: L.append("s_waitcnt lgkmcnt(4)")
                if gi == 28 and st + LEAD < last: L.append(t_m0(st + LEAD, 0))
                if gi == 4 and st + LEAD - 1 < last: L.append(t_m0(st + LEAD - 1, 4))
                dyn = not g and last > 32
                if gi == 12 and st + LEAD - 1 < last: L += [f"s_mov_b32 s{sTW}, s{sNW}"] if dyn and st % 4 == 1 else t_advW
                if gi == 24 and st + LEAD < last: L.append(f"s_mov_b32 s{sTB}, s{sNB}" if dyn and st % 4 == 0 else t_advB[0])
                if gi == 32 and st + LEAD < last: L.append(f"s_add_u32 s{sTB+1}, s{sNB}, 4096" if dyn and st % 4 == 0 else t_advB[1])
            if not g and last > 32:
                if st % 4 == 2:
                    dc = [shiftIT] + decode()
                    pos = {0: dc[0:1], 3: dc[1:3], 7: dc[3:5], 8: dc[5:6], 10: dc[6:8], 14: dc[8:10], 16: dc[10:11], 18: dc[11:12]}
                    L += pos.get(gi, [])
                    if gi == 26: L.append(flagld())
                if st % 4 == 0:
                    fc = flagchk()
                    if gi == 31: L += fc[:2]
                    if gi == 35: L += fc[2:]
                    if gi == 39: L += ["s_cbranch_vccnz F_TSP", "F_TSB:"]
            if gi in pl:
                x = pl[gi]
                if x[0] == "W":
                    if st + x[1] < last: L.append(t_dmaW(st + x[1], x[2]))
                elif st + LEAD < last: L.append(ldb[x[1]])
            if gi == 27: L += [f"s_waitcnt vmcnt({vmw})", "s_barrier"]
    return L
def tpre(g):
    e = E()
    for st in range(LEAD-1):
        e(t_m0(st, 0), "s_nop 0", [t_dmaW(st, t) for t in range(4)], t_m0(st, 4), "s_nop 0", t_dmaW(st, 4), t_advW, t_ldB(st, g), t_advB)
    e(t_ldB(LEAD-1, g), t_advB, t_m0(LEAD-1, 0), "s_nop 0", [t_dmaW(LEAD-1, t) for t in range(3)])
    return e
def tcount(g):
    L = tpre(g)
    for st in range(12): L = L + tstage(st, g, f"@W{st+1},@B{st+1}")
    L = [l for l in L if not l.startswith(("s_cbranch", "F_"))]
    c = [int(re.search(r"vmcnt\((\d+)\)", l).group(1)) for l in resolve(L, []) if "vmcnt" in l]
    return min(c)
def tloop(g):
    nb = 8 if g else 4
    cnt = tcount(g)
    pre = E()(resolve(tpre(g) + ["s_waitcnt vmcnt(@W0,@B0)"], []))
    pre("s_barrier", [t_rd(0, nt, kk, t_A(0, nt, kk)) for nt in range(3) for kk in range(2)], f"s_mov_b32 s{sCNT}, 0", "s_waitcnt lgkmcnt(4)", fstamp(10, "last"), fstamp(5, "tail"))
    body = []
    for st in range(4): body += tstage(st, g, cnt)
    l = "F_TLG" if g else "F_TLS"
    ctl = [f"s_add_u32 s{sCNT}, s{sCNT}, 1", f"s_cmp_lt_u32 s{sCNT}, {'6' if g else 's46'}", f"s_cbranch_scc1 {l}"]
    if not g:
        l0 = newlab("Z"); ld = lambda r: f"buffer_load_dword v{r}, v{FA_}, {srdn(sFL)}, s{sNF} offen sc1"
        sp = E()(f"s_add_u32 s{sTMP}, s{sT}, 3", f"s_mov_b32 s{sU}, 0", ld(8), "s_sleep 4", ld(9), "s_sleep 4", ld(10), f"{l0}:")
        for r in (8, 9, 10):
            sp("s_waitcnt vmcnt(2)", f"v_subrev_u32 v11, s{sTMP}, v{r}", "v_cmp_lt_u32 vcc, 1, v11", f"s_add_u32 s{sU}, s{sU}, 1", ld(r), "s_nop 0", "s_cbranch_vccz F_T0B")
        sp(f"s_cmp_le_u32 s{sU}, {SPIN}", f"s_cbranch_scc1 {l0}")
        first = E()(decode(), sp if not X("poll1") else flagspin("F_T0", "F_T0B"), "F_T0B:", stamp(11), fstamp(4, "tail"), fstamp(9, "last"),
                    f"s_mov_b32 s{sTW}, s{sNW}", f"s_mov_b32 s{sTB}, s{sNB}", f"s_add_u32 s{sTB+1}, s{sNB}, 4096", shiftIT, decode(), flagld())
        pre = first + pre
    return pre, body, ctl, cnt
def pb_off(): return E()(f"s_lshl_b32 s41, s{sWAVE}, 2", f"s_add_u32 s41, s41, s{sSP}", "s_mul_i32 s41, s41, 20480",
                         f"s_cmp_eq_u32 s{sWAVE}, s{sSP}", "s_cselect_b32 s41, 0x10000000, s41")
def own_write():
    l = newlab("O")
    e = E()(f"s_cmp_lg_u32 s{sWAVE}, s{sSP}", f"s_cbranch_scc1 {l}", f"v_add_u32 v4, {OWN}, v{LX}")
    for i in range(20): e(f"ds_write_b128 v4, {a(tacc(i % 10, i // 10), 4)} offset:{1024*i}")
    return e(f"{l}:")
def tfinal(cnt):
    FA = lambda nt, k: TA + 16*(nt % 4) + 4*k
    frd = lambda nt, k: t_rd(30 + (k >> 1), nt, k & 1, FA(nt, k))
    e = E()
    for l in tstage(28, False, "@W29,@B29", last=32):
        e(l)
        if l.startswith("buffer_load") and l.endswith("@W31") and "offset:2048" in l:
            e.last = len(e)
    tail = e[e.last:]; del e[e.last:]
    k = [i for i, l in enumerate(tail) if l.startswith(MF)]
    assert len(k) == 1
    e(t_dmaW(31, 3), tail[k[0]], t_m0(31, 4), "s_nop 0", t_dmaW(31, 4))
    n = 0
    for l in tstage(29, False, "0", last=31):
        if l.startswith("ds_read"):
            n += 1
            if n > 14: continue
        if l == "s_waitcnt lgkmcnt(4)" and n > 14: l = "s_waitcnt lgkmcnt(0)"
        if l.startswith("s_waitcnt vmcnt") or l == "s_barrier": continue
        e(l)
    e("s_waitcnt vmcnt(@W30,@B30,@W31,@B31)", "s_barrier")
    e([frd(0, k) for k in range(4)], [frd(1, k) for k in range(4)], pb_off(), "s_waitcnt lgkmcnt(4)")
    pend = []
    for nt in range(10):
        for qt in range(2):
            for k in range(4):
                g = 4*qt + k
                acc = a(tacc(nt, qt), 4)
                e(f"{MF} {acc}, {v(FA(nt,k),4)}, {v(t_B(30 + (k >> 1), k & 1, qt),4)}, {acc}")
                if g < 4 and nt + 2 < 10: e(frd(nt+2, g))
                if g == 3 and nt + 1 < 10: e(f"s_waitcnt lgkmcnt({4 if nt + 2 < 10 else 0})")
                if g in (4, 6) and nt > 0:
                    q2 = (g-4)//2; i = q2*10 + nt-1
                    e(f"buffer_store_dwordx4 {a(tacc(nt-1,q2),4)}, v{LX}, s[20:23], s{42+q2} offen sc1")
                if g in (1, 2) and nt > 0:
                    q2 = g - 1; e(f"s_add_u32 s{42+q2}, s41, {1024*(q2*10 + nt-1)}")
    e("s_add_u32 s42, s41, 9216", "s_add_u32 s43, s41, 19456", "s_nop 5")
    for q2 in range(2): e(f"buffer_store_dwordx4 {a(tacc(9,q2),4)}, v{LX}, s[20:23], s{42+q2} offen sc1")
    e(own_write())
    return e
def gfinal():
    e = E()(pb_off(), "s_waitcnt vmcnt(0) lgkmcnt(0)", "s_nop 1")
    for i in range(20):
        b = tacc(i % 10, i // 10); d = 16 + 6*(i % 8)
        for r in range(4): e(f"v_accvgpr_read_b32 v{d+r}, a{b+r}")
        e(f"v_cvt_pk_bf16_f32 v{d+4}, v{d}, v{d+1}", f"v_cvt_pk_bf16_f32 v{d+5}, v{d+2}, v{d+3}")
        if i % 8 == 0: e(f"s_add_u32 s42, s41, {512*i}")
        e(f"buffer_store_dwordx2 {v(d+4,2)}, v{TB8}, s[20:23], s42 offen offset:{512*(i%8)} sc1")
    e(own_write())
    return e
def items(lst):
    x = 0
    for k, (rb, th) in enumerate(lst): x |= (rb | th << 3) << (5*k)
    return x
def blk(*rbs): return [(rb, th) for rb in rbs for th in range(3)]
PATTERNS = {"B": [blk(0, 2, 4), blk(1, 3, 5), blk(6, 7)],
            "C": [blk(0, 2, 4) + [(5, 0)], blk(1, 3) + [(5, 1), (5, 2)], blk(6, 7)],
            "D": [blk(0, 2, 4), blk(1, 3) + [(5, 0), (5, 1)], [(5, 2)] + blk(6, 7)],
            "E": [blk(0, 2, 4) + [(5, 0)], blk(1, 3) + [(5, 1)], [(5, 2)] + blk(6, 7)],
            "A": [blk(0, 3) + [(6, 0), (6, 1)], blk(1, 4) + [(6, 2), (7, 0)], blk(2, 5) + [(7, 1), (7, 2)]]}
DV_ = 136
def roles():
    e = E()
    l, d = newlab("R"), newlab("D")
    e(f"s_mov_b32 s{sU}, 0", f"{l}:", f"v_cmp_eq_u32 vcc, 0, v{DV_}", f"s_add_u32 s{sU}, s{sU}, 1", "s_nop 2", "s_and_b32 s41, vcc_lo, 0xff00", f"s_cbranch_scc0 {d}",
      f"s_cmp_gt_u32 s{sU}, {SPIN}", f"s_cbranch_scc1 {d}", f"buffer_load_dword v{DV_}, v{DV_+1}, s[28:31], 0 offen sc1", "s_waitcnt vmcnt(0)", f"s_branch {l}", f"{d}:")
    e(f"v_readlane_b32 s{sT}, v{DV_}, 0", f"s_mov_b32 s{sCP}, 0", "s_and_b32 s41, s2, 7", "s_add_u32 s41, s41, 8", f"v_readlane_b32 s42, v{DV_}, s41")
    e([f"v_readlane_b32 s{12+c}, v{DV_}, {8+c}" for c in range(8)], "s_nop 3")
    for c in range(1, 8):
        e(f"s_sub_u32 s41, s{12+c}, 1", "s_and_b32 s41, s41, 7", "s_lshl_b32 s41, s41, 2", f"s_lshl_b32 s41, {c}, s41", f"s_or_b32 s{sCP}, s{sCP}, s41")
    e("s_sub_u32 s42, s42, 1", "s_and_b32 s42, s42, 7")
    if X("static"): e("s_and_b32 s42, s2, 7", f"s_mov_b32 s{sCP}, 0x76543210")
    e(f"s_lshr_b32 s{sSP}, s42, 1", "s_add_u32 s55, s42, 1", "s_lshr_b32 s55, s55, 1", "s_and_b32 s55, s55, 1", f"s_and_b32 s56, s{sHEAD}, 3")
    pat = PATTERNS[[x[3:] for x in EXP[0].split() if x.startswith("pat")][0] if "pat" in EXP[0] else "D"]
    for m in (2, 1, 0):
        x = items(pat[m])
        if m == 2: e(f"s_mov_b32 s{sIT}, {hx(x)}", f"s_mov_b32 s{sIT+1}, {hx(x >> 32)}", f"s_mov_b32 s46, {len(pat[m]) - 1}")
        else: e(f"s_cmp_eq_u32 s{sSP}, {m}", f"s_cselect_b32 s{sIT}, {hx(x)}, s{sIT}", f"s_cselect_b32 s{sIT+1}, {hx(x >> 32)}, s{sIT+1}", f"s_cselect_b32 s46, {len(pat[m]) - 1}, s46")
    return e
def tail_setup():
    e = E()
    e(f"s_cmp_eq_u32 s{sSP}, 3", "s_cselect_b32 s66, 48, 192", "s_cselect_b32 s67, 192, 0",
      f"s_mul_i32 s41, s56, {WF160}", "s_mul_i32 s42, s67, 10240", "s_add_u32 s41, s41, s42", f"s_add_u32 s41, s41, {hx(WS_WF)}", "s_mul_i32 s42, s66, 10240")
    e(srd(12, pWS, pWS+1, "s42", "s41"))
    e(f"s_lshl_b32 s41, s{sQB}, 2", "s_lshl_b32 s42, s55, 1", "s_add_u32 s41, s41, s42", f"s_lshr_b32 s42, s{sWAVE}, 1", "s_add_u32 s41, s41, s42",
      f"s_mul_i32 s41, s41, {OF_BLK}", "s_lshl_b32 s42, s67, 12", "s_add_u32 s41, s41, s42",
      f"s_and_b32 s42, s{sWAVE}, 1", "s_lshl_b32 s42, s42, 11", "s_add_u32 s41, s41, s42", f"s_add_u32 s41, s41, {hx(WS_OF)}",
      "s_lshl_b32 s43, s66, 12", "s_sub_u32 s43, s43, s42")
    e(srd(16, pWS, pWS+1, "s43", "s41"))
    e(f"s_mov_b32 s{sTB}, 0", f"s_mov_b32 s{sTB+1}, 4096", f"s_mov_b32 s{sTW}, 0", f"s_mul_i32 s{sMT}, s{sWAVE}, 5120")
    e(f"s_lshl_b32 s41, s{sQB}, 1", "s_add_u32 s41, s41, s55", "s_lshl_b32 s41, s41, 2", "s_add_u32 s41, s41, s56", "s_mul_i32 s41, s41, 327680",
      f"s_add_u32 s41, s41, {hx(WS_PB)}")
    e(srd(20, pWS, pWS+1, 327680, "s41"))
    e(f"s_lshl_b32 s41, s{sQB}, 3", "s_lshl_b32 s42, s55, 2", "s_add_u32 s41, s41, s42", f"s_add_u32 s41, s41, s{sSP}", "s_lshl_b32 s41, s41, 1",
      f"s_and_b32 s42, s{sWAVE}, 1", "s_add_u32 s41, s41, s42", "s_mul_i32 s41, s41, 20480",
      "s_mul_i32 s42, s56, 320", "s_add_u32 s41, s41, s42", f"s_lshr_b32 s42, s{sWAVE}, 1", "s_mul_i32 s42, s42, 160", "s_add_u32 s41, s41, s42",
      "s_sub_u32 s42, 2621440, s41")
    e(srd(24, pX, pX+1, "s42", "s41")); e(srd(28, pOUT, pOUT+1, "s42", "s41"))
    e("s_lshl_b32 s44, 0x11111111, s56", f"s_lshl_b32 s48, s{sQB}, 7")
    return e
def tail_vsetup():
    return E()(f"v_add_u32 v{TD}, s{sMT}, v{LX}", f"v_add_u32 v{TD+1}, 4096, v{TD}", f"v_mov_b32 v{TAD}, v{LX}", f"v_add_u32 v{TAD+1}, 61440, v{LX}",
               f"v_lshlrev_b32 v{TB8}, 3, v0", "v_and_b32 v1, 3, v0", f"v_lshlrev_b32 v{FA_}, 2, v1", [f"v_accvgpr_write_b32 a{i}, 0" for i in range(80)])

def laststep(i=63):
    Pc = Pb(i)
    e = E()
    e(rdVp(62, 0))
    e(wave0([f"buffer_load_dwordx4 v[140:143], v{LX}, {srdn(sFL)}, 0 offen sc1"]))
    e(srd(28, pDBG, pDBG+1, 64), "v_and_b32 v138, 15, v0", f"v_lshlrev_b32 v{DV_+1}, 2, v138", f"buffer_load_dword v{DV_}, v{DV_+1}, s[28:31], 0 offen sc1")
    Ex, Sx = sm(S1, [2, 3], Pc, 1)
    e(Ex, rdVp(62, 1, KF))
    e([x for _, x in Sx], CHK, "s_waitcnt lgkmcnt(12)", callsite(i % 4), LADD, "s_nop 0", fstamp(2, "last"))
    RI = 8
    Xl = xlane("v_add_f32", L_, 2) + [f"v_rcp_f32 v{RI+2*qt}, v{L_+qt}" for qt in range(4)]
    def mix(m, fill, per=1):
        for x in m:
            e(x)
            for _ in range(per):
                if fill: e(fill.pop(0))
    r2, r3 = rdVp(62, 2), rdVp(62, 3, KF)
    ok = newlab("K")
    chk = E()(f"s_add_u32 s{sTMP}, s{sT}, 2")
    for r in range(4): chk(f"v_subrev_u32 v{140+r}, s{sTMP}, v{140+r}")
    chk("v_max3_u32 v140, v140, v141, v142", "v_max_u32 v140, v140, v143", "v_cmp_lt_u32 vcc, 2, v140", "s_nop 1", f"s_cbranch_vccz {ok}",
        f"v_mov_b32 v2, v{LX}", poll(2, ("-1", "-1"), "0", wide=True), f"{ok}:")
    def norm(j):
        o = E()(f"s_add_u32 s{sTMP}, s{sO}, {4096*j}")
        for qt in range(4):
            k = 4*j + qt
            t = 64 + 8*(k % 4); d = 112 + 4*(k % 6)
            for hh in range(2):
                b = Oacc(2*j+hh, qt)
                for r in range(4): o(f"v_accvgpr_read_b32 v{t+4*hh+r}, a{b+r}")
            for r in range(0, 8, 2): o(f"v_pk_mul_f32 {v(t+r,2)}, {v(t+r,2)}, {v(RI+2*qt,2)} op_sel_hi:[1,0]")
            for r in range(4): o(f"v_cvt_pk_bf16_f32 v{d+r}, v{t+2*r}, v{t+2*r+1}")
            o(f"buffer_store_dwordx4 {v(d,4)}, v{LX}, {srdn(sOF_SRD)}, s{sTMP} offen offset:{1024*qt} sc1")
        return o
    mix(pv(62, 0), Xl, 2); e(Xl, "s_waitcnt lgkmcnt(0)", fstamp(3, "last"))
    if X("oldlast"):
        mix(pv(62, 1, src=KF), r2); e("s_waitcnt lgkmcnt(0)"); mix(pv(62, 2), r3)
        e(norm(0), norm(1), "s_waitcnt lgkmcnt(0)", pv(62, 3, src=KF), norm(2), norm(3), norm(4), norm(5))
    else:
        mix(pv(62, 1, src=KF), r2); e(norm(0), "s_waitcnt lgkmcnt(0)")
        mix(pv(62, 2), r3); e(norm(1), norm(2), "s_waitcnt lgkmcnt(0)", pv(62, 3, src=KF), norm(3), norm(4), norm(5))
    CHK2[:] = wave0(chk)
    return e
CHK2 = []

def tail_end():
    e = E()
    XV = 232
    e("v_and_b32 v3, 15, v0", "v_mul_u32_u24 v3, 1280, v3", "v_lshrrev_b32 v4, 4, v0", "v_lshl_add_u32 v3, v4, 3, v3", fstamp(7, "tail"))
    e("s_waitcnt vmcnt(0) lgkmcnt(0)", fstamp(8, "tail"), "s_barrier", fstamp(9, "tail"), wave0(signal(4)))
    for nt in range(5): e(f"buffer_load_dwordx2 {v(XV+2*nt,2)}, v3, s[24:27], 0 offen offset:{32*nt}")
    e(f"s_and_b32 s42, s{sWAVE}, 1", "s_mul_i32 s42, s42, 10240", f"s_lshr_b32 s43, s{sWAVE}, 1", "s_mul_i32 s43, s43, 5120", "s_add_u32 s42, s42, s43",
      f"s_add_u32 s43, s42, {OWN}", f"v_add_u32 v5, s43, v{LX}")
    for i in range(5): e(f"ds_read_b128 {v(176+4*i,4)}, v5 offset:{1024*i}")
    e(f"s_mul_i32 s41, s{sSP}, 81920", "s_add_u32 s50, s41, s42", "s_add_u32 s51, s50, 20480", "s_add_u32 s52, s50, 40960",
      "s_lshr_b32 s42, s42, 1", "s_add_u32 s53, s41, s42", "s_add_u32 s53, s53, 61440")
    for src in range(4): e(f"s_cmp_eq_u32 s{sSP}, {src}", f"s_cselect_b32 s{50+src}, 0x10000000, s{50+src}")
    e(f"s_cmp_eq_u32 s{sSP}, 3", "s_cselect_b32 s56, 0, 1.0", "s_cselect_b32 s57, 1.0, 0", f"v_add_u32 v5, 4096, v{LX}", f"s_mov_b32 s38, {hx(f2u(-math.log2(math.e)))}")
    e(wave0(["v_lshlrev_b32 v2, 2, v0"] + poll(4, ("s44", "0"), "s48")), "s_barrier", stamp(4), fstamp(10, "tail"))
    def ldp(i):
        return [f"buffer_load_dwordx4 {v(16+16*i+4*src,4)}, v{LX if i < 4 else 5}, s[20:23], s{50+src} offen offset:{1024*(i%4)} sc1 ; @P{i}" for src in range(3)] + \
               [f"buffer_load_dwordx2 {v(16+16*i+12,2)}, v{TB8}, s[20:23], s53 offen offset:{512*i} sc1 ; @P{i}"]
    AH_ = 5 if X("noil") else 2
    k0 = len(e)
    for i in range(AH_): e(ldp(i))
    e("s_waitcnt lgkmcnt(0)")
    for nt in range(5):
        S = 16 + 16*nt; G = S + 12; Xr = XV + 2*nt; t = 112 + 12*nt; W = 176 + 4*nt
        if nt + AH_ < 5: e(ldp(nt + AH_))
        e(f"s_waitcnt vmcnt(@P{nt})", fstamp(11, "tail") if nt == 0 else [])
        e(f"v_lshlrev_b32 v{t}, 16, v{G}", f"v_and_b32 v{t+1}, 0xffff0000, v{G}", f"v_lshlrev_b32 v{t+2}, 16, v{G+1}", f"v_and_b32 v{t+3}, 0xffff0000, v{G+1}")
        for r in range(4): e(f"v_add_f32 v{S+r}, v{S+r}, v{S+4+r}")
        for r in range(4): e(f"v_fma_f32 v{G+r}, v{W+r}, s57, v{t+r}")
        for r in range(4): e(f"v_add_f32 v{S+r}, v{S+r}, v{S+8+r}")
        for r in range(4): e(f"v_fmac_f32 v{S+r}, s56, v{W+r}")
        e(f"v_cvt_pk_bf16_f32 v{t+2}, v{G}, v{G+1}", f"v_cvt_pk_bf16_f32 v{t+3}, v{G+2}, v{G+3}",
          f"v_cvt_pk_bf16_f32 v{t}, v{S}, v{S+1}", f"v_cvt_pk_bf16_f32 v{t+1}, v{S+2}, v{S+3}")
        for k in range(2):
            e(f"v_lshlrev_b32 v{G+2*k}, 16, v{t+2+k}", f"v_and_b32 v{G+2*k+1}, 0xffff0000, v{t+2+k}",
              f"v_lshlrev_b32 v{S+2*k}, 16, v{t+k}", f"v_and_b32 v{S+2*k+1}, 0xffff0000, v{t+k}")
        for r in range(4): e(f"v_mul_f32 v{t+4+r}, s38, v{G+r}")
        for r in range(4): e(f"v_exp_f32 v{t+4+r}, v{t+4+r}")
        for r in range(4): e(f"v_add_f32 v{t+4+r}, 1.0, v{t+4+r}")
        for r in range(4): e(f"v_rcp_f32 v{t+4+r}, v{t+4+r}")
        for r in range(4): e(f"v_mul_f32 v{G+r}, v{G+r}, v{t+4+r}")
        e(f"v_cvt_pk_bf16_f32 v{t+2}, v{G}, v{G+1}", f"v_cvt_pk_bf16_f32 v{t+3}, v{G+2}, v{G+3}")
        for k in range(2): e(f"v_lshlrev_b32 v{G+2*k}, 16, v{t+2+k}", f"v_and_b32 v{G+2*k+1}, 0xffff0000, v{t+2+k}")
        for r in range(4): e(f"v_mul_f32 v{S+r}, v{S+r}, v{G+r}")
        e(f"v_cvt_pk_bf16_f32 v{t}, v{S}, v{S+1}", f"v_cvt_pk_bf16_f32 v{t+1}, v{S+2}, v{S+3}")
        for k in range(2):
            e(f"v_lshlrev_b32 v{S+2*k}, 16, v{t+k}", f"v_and_b32 v{S+2*k+1}, 0xffff0000, v{t+k}",
              f"v_lshlrev_b32 v{G+2*k}, 16, v{Xr+k}", f"v_and_b32 v{G+2*k+1}, 0xffff0000, v{Xr+k}")
        for r in range(4): e(f"v_add_f32 v{S+r}, v{S+r}, v{G+r}")
        e(f"v_cvt_pk_bf16_f32 v{t+8}, v{S}, v{S+1}", f"v_cvt_pk_bf16_f32 v{t+9}, v{S+2}, v{S+3}")
        e(f"buffer_store_dwordx2 {v(t+8,2)}, v3, s[28:31], 0 offen offset:{32*nt}" + (" sc1" if X("outsc1") else "") + (" nt" if X("outnt") else ""))
    e[k0:] = resolve(e[k0:], [])
    e(fstamp(12, "tail"))
    return e

def encode():
    en = [x for x in EXP[0].split() if x.startswith("enc:")]
    if not en: return []
    _, i, j, mult, W = en[0].split(":")
    return E()(f"s_cmp_lg_u32 s2, {W}", "s_cbranch_scc1 F_END", f"s_sub_u32 s66, s{88+int(j)}, s{88+int(i)}", f"s_mul_i32 s66, s66, {mult}", "s_add_u32 s66, s66, 15000",
               "F_ENC:", "s_memrealtime s[86:87]", "s_waitcnt lgkmcnt(0)", "s_sub_u32 s67, s86, s88", "s_cmp_lt_u32 s67, s66", "s_cbranch_scc1 F_ENC")

def gen(exp=""):
    sites.clear(); lab[0] = 0; EXP[0] = exp
    L = E()(kernel_head(NAME))
    if X("early0"): L("s_memrealtime s[100:101]")
    L("s_cmp_ge_u32 s2, 256", "s_cbranch_scc1 F_END")
    pro = front() + (cstamp(8) if X("qcyc") else [])
    qc, qfirst, q18 = qcounts()
    qloop = []; qfp = []; stubs = E()
    for u in range(6):
        b = qsub(u, last=40, vmw=qc[u])
        if u in qfirst:
            k = b.index(f"s_waitcnt vmcnt({qc[u]})")
            qfp += b[:k] + [f"s_waitcnt vmcnt({qfirst[u]})"] + b[k+1:]
            j = max(i for i in range(k) if b[i].startswith(MF))
            j = max(i for i in range(j) if b[i].startswith(MF))
            b = b[:j+1] + [f"s_cmp_eq_u32 s{sCNT}, 0"] + b[j+1:k] + [f"s_cbranch_scc1 F_QS{u}", b[k], f"F_QB{u}:"] + b[k+1:]
            stubs(f"F_QS{u}:", f"s_waitcnt vmcnt({qfirst[u]})", f"s_branch F_QB{u}")
        else: qfp += b
        qloop += b
    qctl = [f"s_add_u32 s{sCNT}, s{sCNT}, 1", f"s_cmp_lt_u32 s{sCNT}, 3", "s_cbranch_scc1 F_QL"]
    ex = {18: {}, 19: {}}
    for (kind, j), (u, g0) in zip([("K", 0), ("K", 1), ("V", 0), ("K", 2)], [(18, 4), (18, 20), (18, 36), (19, 4)]):
        m, d = kvgroup(kind, j)
        ex[u].setdefault(g0, []).extend(m)
        for t, dg in enumerate((1, 2, 3)): ex[u].setdefault(g0 + dg, []).append(d[t])
    rd = relayout_dst()
    for k, g in enumerate((36, 37, 38, 39, 44, 45, 46)): ex[19].setdefault(g, []).extend(rd[2*k:2*k+2])
    mid = qsub(18, extra=ex[18], vmw="@W19") + qsub(19, extra=ex[19]) + stamp(6) + fstamp(1, "conv") + (cstamp(9) if X("qcyc") else []) + convert() + fstamp(2, "conv") + init() + fstamp(7, "conv") + stamp(7) + (cstamp(8) if not (X("tcyc") or X("qcyc")) else [])
    keep = mid
    mid = [l + (" ; " + re.search(r"@\S+", k).group(0) if k.startswith("buffer_") and "@" in k and "@" not in l else "") for l, k in zip(resolve(mid, q18), keep)]
    ctl = [f"s_add_u32 s{sCNT}, s{sCNT}, 1", f"s_bitcmp1_b32 {hx(1 << 11 | 1 << 12 | 1 << 15)}, s{sCNT}", "s_cbranch_scc0 F_AL"]
    rlk = {1: "dma", 3: "out"} if not X("norl") else {}
    rlk.update({2: "tk", 0: "tv"}); mid = mid + [f"s_mov_b32 s{sCNT}, 0"]
    def mk(i, w): return step(i, vmw=w, tail=ctl if (i >= 3 and i % 4 == 2) else (), rl=rlk.get(i % 4) if i >= 3 else None)
    q = [re.search(r"@(\S+)", l).group(1) if "@" in l else "-" for l in mid if l.startswith("buffer_")]; cnts = {}
    for i in range(23):
        key = i if i < 3 else 3 + (i-3) % 4
        for l in mk(i, "?"):
            if "vmcnt(?)" in l:
                need = [f"K{i+2}"] + ([f"V{i}", f"V{i+1}"] if i % 2 == 0 else []) + (["R"] if i % 4 == 2 else [])
                c = len(q) - 1 - max(k for k, x in enumerate(q) if x in need)
                cnts[key] = min(cnts.get(key, 63), c)
            if l.startswith("buffer_"): q.append(re.search(r"@(\S+)", l).group(1))
    sites.clear()
    s0 = mk(0, cnts[0]) + mk(1, cnts[1]) + mk(2, cnts[2])
    body = [mk(i, cnts[i]) for i in range(3, 7)]
    def drop(pred):
        for k in range(4): body[k] = [l for l in body[k] if not pred(l)]
    if X("x_nobar"): drop(lambda l: l == "s_barrier")
    if X("x_nodma"): drop(lambda l: l.startswith("buffer_"))
    if X("x_nochk"): drop(lambda l: l.startswith("s_cbranch_vccnz"))
    if X("x_nolgkm"):
        for k in range(4): body[k] = [re.sub(r" lgkmcnt\(\d+\)", "", l) for l in body[k] if not l.startswith("s_waitcnt lgkmcnt")]
    if X("x_nods"): drop(lambda l: l.startswith("ds_"))
    if X("showcnt"): print("step counts", cnts, "q counts", qc)
    hooks = E()(f"s_cmp_eq_u32 s{sCNT}, 15", "s_cbranch_scc1 F_LAST", f"s_cmp_lg_u32 s{sWAVE}, 0", "s_cbranch_scc1 F_AL",
                f"s_cmp_eq_u32 s{sCNT}, 12", "s_cbranch_scc1 F_H1", signal(2), "s_mov_b32 s66, 4",
                "s_cmp_ge_u32 s2, 8", "s_cbranch_scc1 F_AL", srd(28, pDBG, pDBG+1, 64), "s_mov_b64 exec, 1",
                f"v_mov_b32 v{RLV}, 1", f"buffer_atomic_add v{RLV}, off, s[28:31], s66 sc0 sc1", "s_mov_b64 exec, -1", "s_branch F_AL",
                "F_H1:", "s_cmp_ge_u32 s2, 8", "s_cbranch_scc1 F_AL", "s_lshl_b32 s66, s2, 2", "s_add_u32 s66, s66, 32", "s_mov_b64 exec, 1",
                f"v_add_u32 v{RLV}, 1, v{RLV}", f"buffer_store_dword v{RLV}, off, s[28:31], s66 sc1", "s_mov_b64 exec, -1", "s_branch F_AL")
    last = (cstamp(9) if not (X("tcyc") or X("qcyc")) else []) + fstamp(1, "last") + laststep()
    h1 = E()(stamp(10), fstamp(1, "tail"), fstamp(5, "last"), "s_waitcnt vmcnt(24)", CHK2, roles(), fstamp(6, "last"), tail_setup(), tail_vsetup(), fstamp(7, "last"), "s_waitcnt vmcnt(0)", fstamp(8, "last"), fstamp(2, "tail"), "s_barrier", wave0(signal(3)), fstamp(3, "tail"))
    preS, bodyS, ctlS, cS = tloop(False)
    preG, bodyG, ctlG, cG = tloop(True)
    hS = E()(preS, cstamp(8) if X("tcyc") else [])
    hG = E()(stamp(11), fstamp(4, "tail"), preG, cstamp(8) if X("tcyc") else [])
    sim = tpre(False) + [x for st in range(28) for x in tstage(st, False, cS)]
    q28 = [re.search(r"@(\S+)", l).group(1) for l in sim if l.startswith("buffer_")][-24:]
    finS = E()(resolve(tfinal(cS), q28), stamp(12), fstamp(6, "tail"), cstamp(9) if X("tcyc") else [])
    finG = E()(stamp(12), fstamp(6, "tail"), cstamp(9) if X("tcyc") else [], gfinal())
    end = tail_end()
    L(pro, ".p2align 6", "F_QL:", qloop, qctl, mid, s0, ".p2align 6", "F_AL:", *body, hooks, "F_LAST:", last,
      h1, f"s_cmp_eq_u32 s{sSP}, 3", "s_cbranch_scc1 F_TG", hS, ".p2align 6", "F_TLS:", bodyS, ctlS, finS, "s_branch F_TE",
      "F_TG:", hG, ".p2align 6", "F_TLG:", bodyG, ctlG, finG, "F_TE:", end, stamp_flush(0, 13, pWS, f"s{sWAVE}"), encode(), "F_END:", "s_endpgm")
    for k, par in enumerate(sites):
        L(f"F_TR{k}:", f"s_call_b64 s[{sRET}:{sRET+1}], F_SLOW{par}", f"s_branch F_BK{k}")
    L(stubs, flagspin("F_TSP", "F_TSB"), slow(0), slow(1), slow(2), slow(3))
    flat = lambda Z: [y for x in Z for y in x]
    tr = pro + qfp + qctl + (qloop + qctl)*2 + mid + s0 + flat(body) + flat(body) + last + h1
    if "x_" in exp: return L, kernel_desc(NAME, 512, 256), "; @launch grid=(256,1,1) block=(256,1,1) lds=163840"
    check(tr + hS + (bodyS + ctlS)*7 + finS + end, "S")
    check(flagspin("A", "B") + bodyS, "spin")
    check(last + h1 + hG + (bodyG + ctlG)*6 + finG + end, "G")
    for n in range(4):
        b = body[n]
        idx = [i for i, x in enumerate(b) if x.startswith("F_BK")][0]
        check(body[(n-1) % 4] + b[:idx] + slow((3+n) % 4) + b[idx:] + body[(n+1) % 4], f"slow{n}")
    return L, kernel_desc(NAME, 512, 256), "; @launch grid=(256,1,1) block=(256,1,1) lds=163840"

def build(path, **kw):
    HDR = open("recurrent_scan__gqa_block_cached__dense_activation_relu__prompt.s.ref").read().split("; Override launch")[0]
    L, D, H = gen(**kw)
    L = [re.sub(r"\s*; @\S+$", "", l) for l in L]
    open(path, "w").write(HDR + H + "\n" + '.amdgcn_target "amdgcn-amd-amdhsa--gfx950"\n' + "\n".join(L) + "\n" + "\n".join(D) + "\n")
if __name__ == "__main__":
    for flag, mode in (("--ts", None), ("--tail", "tail"), ("--front", "front"), ("--last", "last"), ("--conv", "conv")):
        if flag in sys.argv:
            OPT["ts"] = True; OPT["mode"] = mode; sys.argv.remove(flag)
    build(sys.argv[1], exp=" ".join(sys.argv[2:]))
```

```python
from common import *
import re, sys

NAME = "recurrent_scan__gqa_block_cached__dense_activation_relu__prompt_kernel"
MF = "v_mfma_f32_16x16x32_bf16"
EXP = [""]
DEFAULTS = ["poll1", "touch3", "hfirst"]
def X(flag): return flag in EXP[0].split() or (flag in DEFAULTS and "no_" + flag not in EXP[0].split())

KR, VR = 0, 49152
WA, WB = 65536, 114688
ST = 122880
OWN = 81920
pX, pK, pV, pWQ, pWO, pWS, pW1, pW2, pOUT, pDBG = 4, 6, 8, 10, 68, 70, 72, 74, 76, 78
sK_SRD, sV_SRD, sWQ_SRD, sW1_SRD, sXF_SRD, sOF_SRD, sFL = 12, 16, 20, 24, 28, 32, 80
sWAVE, sHEAD, sM64, sKo = 36, 37, 38, 39
sMK, sMV, sMW = 40, 44, 48
sWq, sW1, sX, sCNT, sC, sTHR, sO, sVo, sRET = 54, 55, 56, 57, 58, 60, 61, 63, 64
sH = [6, 7, 62]
sTMP, sU, sT, sQB = 66, 67, 84, 85
sRSRC, sRDST, sRM, sRS = 8, 20, 24, 25
QV, NM, S0, S1, P, KF, VF, ET, T_, L_ = 16, 48, 64, 96, 112, 176, 200, 224, 232, 236
AK, AV, DK, DV, CK, LX, RLV = 240, 242, 246, 249, 224, 253, 254
AF, DA, DB, DH, AWA, AWB, AH, LXB, LX8, LXB2 = 16, 40, 44, 46, 192, 200, 204, 207, 208, 209
CSCALE = math.log2(math.e) / math.sqrt(192.0)
THR = 2.0 ** 30
SPIN = 1 << 18

def srdn(b): return f"s[{b}:{b+3}]"
class E(list):
    def __call__(self, *x):
        for y in x:
            if isinstance(y, list): self.extend(y)
            else: self.append(y)
        return self
lab = [0]
def newlab(p):
    lab[0] += 1; return f"F_{p}{lab[0]}"
def wave0(body):
    l = newlab("W")
    return E()(f"s_cmp_lg_u32 s{sWAVE}, 0", f"s_cbranch_scc1 {l}", body, f"{l}:")

def poll(phase, mask, soff, wide=False, vaddr="v2"):
    l, d = newlab("P"), newlab("D")
    e = E()
    e(f"s_mov_b32 exec_lo, {mask[0]}", f"s_mov_b32 exec_hi, {mask[1]}", f"s_add_u32 s{sTMP}, s{sT}, {phase}", f"s_mov_b32 s{sU}, 0")
    if wide:
        e(f"{l}:", f"buffer_load_dwordx4 v[4:7], {vaddr}, {srdn(sFL)}, {soff} offen sc1", "s_waitcnt vmcnt(0)")
        for r in range(4): e(f"v_subrev_u32 v{4+r}, s{sTMP}, v{4+r}")
        e("v_max3_u32 v4, v4, v5, v6", "v_max_u32 v4, v4, v7")
        e(f"v_cmp_lt_u32 vcc, {4-phase}, v4", f"s_add_u32 s{sU}, s{sU}, 1", f"s_cmp_gt_u32 s{sU}, {SPIN}", f"s_cbranch_scc1 {d}", f"s_cbranch_vccnz {l}")
    elif X("poll1"):
        e(f"{l}:", f"buffer_load_dword v4, {vaddr}, {srdn(sFL)}, {soff} offen sc1", "s_waitcnt vmcnt(0)", f"v_subrev_u32 v4, s{sTMP}, v4")
        e(f"v_cmp_lt_u32 vcc, {4-phase}, v4", f"s_add_u32 s{sU}, s{sU}, 1", f"s_cmp_gt_u32 s{sU}, {SPIN}", f"s_cbranch_scc1 {d}", f"s_cbranch_vccnz {l}")
    else:
        ld = lambda r: f"buffer_load_dword v{r}, {vaddr}, {srdn(sFL)}, {soff} offen sc1"
        e(ld(8), "s_sleep 4", ld(9), "s_sleep 4", ld(10), f"{l}:")
        for r in (8, 9, 10):
            e("s_waitcnt vmcnt(2)", f"v_subrev_u32 v11, s{sTMP}, v{r}", f"v_cmp_lt_u32 vcc, {4-phase}, v11", f"s_add_u32 s{sU}, s{sU}, 1", ld(r), "s_nop 0", f"s_cbranch_vccz {d}")
        e(f"s_cmp_le_u32 s{sU}, {SPIN}", f"s_cbranch_scc1 {l}")
    e(f"{d}:", "s_mov_b64 exec, -1")
    return e
def signal(phase):
    return E()(f"s_add_u32 s{sTMP}, s{sT}, {phase}", f"s_lshl_b32 s{sU}, s{sQB}, 5", f"s_add_u32 s{sU}, s{sU}, s{sHEAD}", f"s_lshl_b32 s{sU}, s{sU}, 2",
               f"v_mov_b32 v4, s{sTMP}", "v_mov_b32 v5, 0", "s_mov_b64 exec, 1",
               f"buffer_store_dword v4, v5, {srdn(sFL)}, s{sU} offen sc1", "s_mov_b64 exec, -1")

def qacc(ds, tb, qt):
    n = (ds*2 + tb)*4 + qt
    return R("a", 4*n) if n < 24 else R("v", 48 + 4*(n-24))
def hacc(tt, qt): return R("v", 144 + 4*(tt*4 + qt))
def BF(s, kk, qt): return a(96 + 32*(s % 3) + 16*kk + 4*qt, 4)
def ldB(s): return [f"buffer_load_dwordx4 {BF(s,kk,qt)}, v{LXB2 if kk else LXB}, {srdn(sXF_SRD)}, s{sX} offen offset:{1024*qt} sc1 ; @B{s}" for kk in range(2) for qt in range(4)]
advX = [f"s_add_u32 s{sX}, s{sX}, 8192"]
advW = [f"s_add_u32 s{sWq}, s{sWq}, 786432", f"s_add_u32 s{sW1}, s{sW1}, 196608"]
def dmaW(u):
    if u % 2 == 0: return [f"buffer_load_dwordx4 v{DA+t}, {srdn(sWQ_SRD)}, s{sWq} offen offset:{1024*t} lds ; @W{u}" for t in range(4)]
    return [f"buffer_load_dwordx4 v{DB+t}, {srdn(sWQ_SRD)}, s{sWq} offen offset:{1024*t} lds ; @W{u}" for t in range(2)] + \
           [f"buffer_load_dwordx4 v{DH+t}, {srdn(sW1_SRD)}, s{sW1} offen offset:{1024*(t+2)} lds ; @W{u}" for t in range(2)]
TCH, TCD = 210, 212
sTq, sT1 = 64, 65
def touch(): return [f"buffer_load_dword v{TCD}, v{TCH}, {srdn(sWQ_SRD)}, s{sTq} offen ; @T", f"buffer_load_dword v{TCD}, v{TCH+1}, {srdn(sW1_SRD)}, s{sT1} offen offset:3072 ; @T"]
advT = [f"s_add_u32 s{sTq}, s{sTq}, {3*786432}", f"s_add_u32 s{sT1}, s{sT1}, {3*196608}"]
def touch_addr(nst):
    return E()("v_mul_u32_u24 v1, 171, v0", "v_lshrrev_b32 v1, 9, v1", "v_mul_u32_u24 v2, 3, v1", "v_sub_u32 v2, v0, v2",
               "v_lshrrev_b32 v3, 1, v1", "v_and_b32 v1, 1, v1", "v_lshl_add_u32 v1, v3, 6, v1", f"v_add_u32 v1, s66, v1",
               "v_mul_lo_u32 v1, v1, s67", "v_lshl_add_u32 v1, v2, 7, v1", f"v_cmp_gt_u32 vcc, {6*nst}, v0", "v_bfrev_b32 v8, 1",
               "v_lshrrev_b32 v3, 2, v0", "v_bfe_u32 v2, v0, 1, 1", f"v_cndmask_b32 v{TCH}, v8, v1, vcc",
               "v_lshl_add_u32 v3, v3, 6, v2", "v_add_u32 v3, s66, v3", f"v_cmp_gt_u32 vcc, {4*nst}, v0", "v_mul_u32_u24 v3, 3072, v3",
               "v_and_b32 v2, 1, v0", "v_mul_u32_u24 v2, 92, v2", "v_add_u32 v3, v3, v2", f"v_cndmask_b32 v{TCH+1}, v8, v3, vcc")
def m0W(u): return f"s_mov_b32 m0, s{sMW + u % 6}"
def qorder(s): return list(range(8)) + ([12, 13, 14, 8, 9, 10, 11] if s == 9 and X("hfirst") else list(range(8, 15)))
def qrd(s, pos, kk, uu):
    T = qorder(s)[pos]
    dst = v(AF + 8*(pos % 3) + 4*kk + 2*uu, 2)
    if T < 8: return f"ds_read_b64_tr_b16 {dst}, v{AWA + T} offset:{(s % 3)*16384 + kk*8192 + uu*1024}"
    reg = AWB + T - 8 if T < 12 else AH + T - 12
    return f"ds_read_b64_tr_b16 {dst}, v{reg} offset:{(s % 3)*16384 + kk*8192 + uu*512}"
def qsub(u, last=20, extra=None, vmw=None):
    extra = extra or {}
    s = u >> 1; TL = list(range(8)) if u % 2 == 0 else list(range(8, 15)); nT = len(TL)
    L = []
    lb = ldB(s + 2) if (u % 2 == 0 and s + 2 < last//2) else []
    dw = dmaW(u + 5) if u + 5 < last else []
    for ti, T in enumerate(TL):
        for p in range(4):
            qt = p if T % 2 == 0 else 3 - p
            TT = qorder(s)[T]
            acc = (qacc(TT >> 1, TT & 1, qt) if TT < 12 else hacc(TT-12, qt))(4)
            for kk in range(2):
                g = 2*p + kk; gi = 8*ti + g
                L.append(f"{MF} {acc}, {v(AF + 8*(T % 3) + 4*kk, 4)}, {BF(s, kk, qt)}, {acc}")
                s2, T2 = s + (T+2)//15, (T+2) % 15
                if g < 4:
                    if 2*s2 < last: L.append(qrd(s2, T2, g >> 1, g & 1))
                    if g == 3:
                        left = 15*(last//2) - 1 - (15*s + T)
                        if left >= 1: L.append(f"s_waitcnt lgkmcnt({4 if left >= 2 else 0})")
                if lb and ti < 4 and g in (4, 6): L.append(lb[2*ti + (g-4)//2])
                if lb and ti == 4 and g == 4: L += advX
                if u % 6 == 2 and last > 20 and X("kvq"):
                    if ti == 4 and g == 5: L += [f"s_cmp_eq_u32 s{sCNT}, 1", "s_cselect_b32 s66, 0, s3"]
                    if ti == 4 and g == 6: L.append(f"buffer_load_dword v{TCD}, v{KVT}, {srdn(sK_SRD)}, s66 offen ; @T")
                    if ti == 5 and g == 4: L.append(f"buffer_load_dword v{TCD}, v{KVT}, {srdn(sV_SRD)}, s66 offen ; @T")
                if u % 6 == 0 and last > 20 and not X("notouch"):
                    if ti == 4 and g == 6: L.append(touch()[0])
                    if ti == 5 and g == 4: L.append(touch()[1])
                    if ti == 5 and g == 5: L += advT
                if ti == nT-3 and g == 6 and dw: L.append(m0W(u+5))
                if ti == nT-3 and g == 7 and vmw is not None: L += [f"s_waitcnt vmcnt({vmw})", "s_barrier"]
                if dw and ti >= nT-2 and g in (4, 6): L.append(dw[2*(ti-nT+2) + (g-4)//2])
                if dw and u % 2 == 0 and ti == nT-1 and g == 7: L += advW
                L += extra.get(gi, [])
    return L
def qcounts():
    q = ["B1"]*8 + (["W2"]*4 + ["W3"]*4 + ["W4"]*4 if X("lateW") else [])
    out = {}; first = {}
    for u in range(18):
        for l in qsub(u, last=40, vmw="?"):
            if "vmcnt(?)" in l:
                need = ["W%d" % (u+1)] + (["B%d" % ((u+1)//2)] if u % 2 else [])
                idx = [i for i, x in enumerate(q) if x in need]
                if idx:
                    c = len(q) - 1 - max(idx)
                    if u < 6: first[u] = c
                    else: out[u % 6] = min(out.get(u % 6, 63), c)
            if l.startswith("buffer_"): q.append(re.search(r"@(\S+)", l).group(1))
    return out, {u: c for u, c in first.items() if c < out[u]}, q

def fill(L, ops):
    gaps = []
    for l in L:
        if l.startswith(MF) or not gaps: gaps.append([l])
        else: gaps[-1].append(l)
    ops = list(ops)
    for gi, g in enumerate(gaps):
        rest = [x for x in g[1:] if not x.endswith(":")]
        ds = any(x.startswith("ds_") for x in rest); vm = any(x.startswith("buffer_") for x in rest)
        nv = sum(x.startswith("v_") for x in rest); ns = len(rest) - nv - ds - vm
        if vm or "s_barrier" in rest: continue
        free = (1 - nv - ns) if ds else (2 - nv - max(0, ns - 1))
        while ops and ops[0][0] <= gi and free > 0:
            if ops[0][1] == "m":
                if ds or rest or len(g) > 1: break
                g.append(ops.pop(0)[2]); free = 0
            else: g.append(ops.pop(0)[2]); free -= 1
    return [x for g in gaps for x in g] , [x[2] for x in ops]
def hops():
    o = []
    for tt in range(3):
        for p in range(4):
            qt = p if (8 + tt) % 2 == 0 else 3 - p
            h = hacc(tt, qt); d = 2 + 2*((4*tt + p) % 6); g0 = 8*tt + 2*p + 1 + 6
            o += [(g0, "a", f"v_cvt_pk_bf16_f32 v{d}, {h(1,0)}, {h(1,1)}"), (g0, "a", f"v_cvt_pk_bf16_f32 v{d+1}, {h(1,2)}, {h(1,3)}"),
                  (g0, "a", f"v_pk_max_i16 v{d}, v{d}, 0"), (g0, "a", f"v_pk_max_i16 v{d+1}, v{d+1}, 0"),
                  (g0, "m", f"buffer_store_dwordx2 {v(d,2)}, v{LX8}, {srdn(sOF_SRD)}, s{sH[tt]} offen offset:{1024*qt} sc1")]
    return o
def convert():
    e = E()("s_nop 7")
    early = X("earlyk")
    k = 0
    late = X("lateh")
    if late: e(f"v_mov_b32 v14, v{LX8}")
    for tt in range(3 if not X("hfirst") else 0):
        for qt in range(4):
            h = hacc(tt, qt); d = 144 + 2*k if late else 2 + 2*(k % 6); k += 1
            e(f"v_cvt_pk_bf16_f32 v{d}, {h(1,0)}, {h(1,1)}", f"v_cvt_pk_bf16_f32 v{d+1}, {h(1,2)}, {h(1,3)}",
              f"v_pk_max_i16 v{d}, v{d}, 0", f"v_pk_max_i16 v{d+1}, v{d+1}, 0")
            if not late and not X("x_nohst"): e(f"buffer_store_dwordx2 {v(d,2)}, v{LX8}, {srdn(sOF_SRD)}, s{sH[tt]} offen offset:{1024*qt} sc1")
    if early:
        e("s_waitcnt vmcnt(@K0)", "s_barrier", [rdK(0, 0, ds) for ds in range(6)], [rdK(0, 1, ds, VF) for ds in range(6)])
        m, d = kvgroup("V", 1); e(m, d)
        m, d = kvgroup("K", 3); e(m, d[:2])
    for ds in (3, 4, 5, 0, 1, 2):
        dsts = []
        for qt in range(4):
            f = ds*4 + qt
            Xr, Yr = qacc(ds, 0, qt), qacc(ds, 1, qt)
            if Xr.f == "a":
                tx, ty = R("v", (192 if late else 144) + 8*qt), R("v", (196 if late else 148) + 8*qt)
                for r in range(4): e(f"v_accvgpr_read_b32 {tx(1,r)}, {Xr(1,r)}")
                for r in range(4): e(f"v_accvgpr_read_b32 {ty(1,r)}, {Yr(1,r)}")
                Xr, Yr = tx, ty
            d = QV + 4*(f-16) if f >= 16 else (224 if early else 176) + 4*qt
            dsts.append(d)
            for Z in (Xr, Yr):
                if X("nopk"):
                    for r in range(4): e(f"v_mul_f32 {Z(1,r)}, s{sC}, {Z(1,r)}")
                else:
                    for r in (0, 2): e(f"v_pk_mul_f32 {Z(2,r)}, {Z(2,r)}, s[{sC}:{sC+1}]")
            e(f"v_cvt_pk_bf16_f32 v{d}, {Xr(1,0)}, {Xr(1,1)}", f"v_cvt_pk_bf16_f32 v{d+1}, {Xr(1,2)}, {Xr(1,3)}",
              f"v_cvt_pk_bf16_f32 v{d+2}, {Yr(1,0)}, {Yr(1,1)}", f"v_cvt_pk_bf16_f32 v{d+3}, {Yr(1,2)}, {Yr(1,3)}")
        e("s_mov_b32 exec_lo, 0")
        for d in dsts: e(f"v_swap_b32 v{d}, v{d+2}", f"v_swap_b32 v{d+1}, v{d+3}")
        e("s_mov_b32 exec_lo, -1")
        if ds < 4:
            for qt in range(4):
                for r in range(4): e(f"v_accvgpr_write_b32 a{192 + 4*(ds*4+qt) + r}, v{dsts[qt]+r}")
    return e

def hstores(): return [f"buffer_store_dwordx2 {v(144 + 2*k, 2)}, v14, {srdn(sOF_SRD)}, s{sH[k//4]} offen offset:{1024*(k%4)} sc1 ; @H" for k in range(12)]

def Qf(f): return a(192 + 4*f, 4) if f < 16 else v(QV + 4*(f-16), 4)
def Oacc(dt, qt): return (dt*4 + qt)*4
def dmaK(t): return f"buffer_load_dwordx4 v{DK+t}, {srdn(sK_SRD)}, s{sKo} offen offset:{1024*t} lds"
def dmaV(t): return f"buffer_load_dwordx4 v{DV+t}, {srdn(sV_SRD)}, s{sVo} offen offset:{1024*t} lds"
def kvgroup(kind, j):
    so = sKo if kind == "K" else sVo
    return [f"s_mov_b32 m0, s{(sMK if kind=='K' else sMV) + j}", f"s_mov_b32 s{so}, {12288*j}"], [(dmaK(t) if kind == "K" else dmaV(t)) + f" ; @{kind}{j}" for t in range(3)]
def rdK(slot, kt, ds, dst=KF): return f"ds_read_b128 {v(dst+4*ds,4)}, v{AK+(ds&1)} offset:{slot*12288 + kt*6144 + (ds>>1)*128}"
def Pb(t): return P + 16*(t % 4)
def rdVp(m2, part, dst=VF):
    return [f"ds_read_b64_tr_b16 {v(dst + 8*dl + 4*tl + 2*u, 2)}, v{AV + ((3*part+dl) & 3)} offset:{((m2+tl) % 4)*12288 + u*6144 + ((3*part+dl) >> 2)*128}"
            for dl in range(3) for tl in range(2) for u in range(2)]
def qk(dst, src=KF, czero=False):
    o = []
    for qt in range(4):
        for ds in range(6):
            d = v(dst+4*qt, 4)
            c = ("0" if czero else v(NM+4*qt, 4)) if ds == 0 else d
            o.append(f"{MF} {d}, {v(src+4*ds,4)}, {Qf(ds*4+qt)}, {c}")
    return o
def pv(m2, part, czero=False, src=VF):
    o = []
    for dl in range(3):
        for p in range(4):
            qt = p if (3*part + dl) % 2 == 0 else 3 - p
            acc = a(Oacc(3*part+dl, qt), 4)
            for tl in range(2):
                o.append(f"{MF} {acc}, {v(src + 8*dl + 4*tl, 4)}, {v(Pb(m2+tl) + 4*qt, 4)}, {'0' if czero and tl == 0 else acc}")
    return o
def sm(src, qts, Pb, kt):
    Ex, Sx = [], []
    k = 0
    for qt in qts:
        for pr in range(2):
            t0 = ET + 2*k; t1 = t0 + 1; k += 1
            Ex += [f"v_exp_f32 v{t0}, v{src+4*qt+2*pr}", f"v_exp_f32 v{t1}, v{src+4*qt+2*pr+1}"]
            n = len(Ex)
            if kt == 0 and pr == 0: Sx.append((n, f"v_add_f32 v{T_+qt}, v{t0}, v{t1}"))
            else: Sx += [(n-1, f"v_add_f32 v{T_+qt}, v{T_+qt}, v{t0}"), (n, f"v_add_f32 v{T_+qt}, v{T_+qt}, v{t1}")]
            Sx.append((n, f"v_cvt_pk_bf16_f32 v{Pb+4*qt+2*kt+pr}, v{t0}, v{t1}"))
    return Ex, Sx
def quarter(mf, pat, Ex, Sx, D, B, salu):
    assert len(pat) == len(mf) == 24, (pat, len(pat))
    out = []; ei = si = di = bi = 0
    for gi, m in enumerate(mf):
        out.append(m); ty = pat[gi]
        sc = salu.get(gi, [])
        def take(n):
            nonlocal si
            r = []
            while n > 0 and si < len(Sx) and Sx[si][0] <= ei: r.append(Sx[si][1]); si += 1; n -= 1
            return r
        if ty == "e": out += sc + [Ex[ei]]; ei += 1
        elif ty == "d": out += [D[di]] + take(1) + sc; di += 1
        elif ty == "a": out += sc + take(2)
        elif ty == "1": out += sc + take(1)
        elif ty == "b": out += sc + [B[bi]]; bi += 1
        elif ty == "-": out += sc
        else: raise ValueError(ty)
    assert ei == len(Ex) and si == len(Sx) and di == len(D) and bi == len(B), (pat, ei, len(Ex), si, len(Sx), di, len(D), bi, len(B))
    return out
P1 = "ee" + "de"*6 + "d"*6 + "a1b-"
P2 = "de"*6 + "ee" + "baabaa" + "----"
P3 = "ed"*8 + "dddd" + "b---"
P4 = "ebeb" + "de"*6 + "aaa" + "-----"
CHK = [f"v_max3_f32 v{CK}, v{T_}, v{T_+1}, v{T_+2}", f"v_max_f32 v{CK}, v{CK}, v{T_+3}", f"v_cmp_lt_f32 vcc, s{sTHR}, v{CK}"]
LADD = [f"v_add_f32 v{L_+q}, v{L_+q}, v{T_+q}" for q in range(4)]
sites = []
def callsite(par):
    k = len(sites); sites.append(par)
    return [f"s_cbranch_vccnz F_TR{k}", f"F_BK{k}:"]
def step(i, vmw=12, tail=(), rl=None):
    par, slot = i & 1, i % 4
    S0n = S0 + 16*(1-par); Pc = Pb(i); Pn = Pb(i+1)
    m2 = i-1 if par else i-2
    p0 = 0 if par else 2
    nopv = i == 0; cz = i in (1, 2)
    mK = lambda j: f"s_mov_b32 m0, s{sMK + j % 4}"
    mV = lambda j: f"s_mov_b32 m0, s{sMV + j % 4}"
    aK = f"s_add_u32 s{sKo}, s{sKo}, 12288"; aV = f"s_add_u32 s{sVo}, s{sVo}, 12288"
    if par:
        B1 = [dmaV(2) + f" ; @V{i+1}"]; B2 = [dmaV(0) + f" ; @V{i+2}", dmaV(1) + f" ; @V{i+2}"]; B3 = [dmaV(2) + f" ; @V{i+2}"]
        B4 = [dmaK(0) + f" ; @K{i+4}", dmaK(1) + f" ; @K{i+4}"]; m2_, a2, a3, m4 = mV(i+2), aV, aV, mK(i+4)
    else:
        B1 = [dmaK(2) + f" ; @K{i+3}"]; B2 = [dmaK(0) + f" ; @K{i+4}", dmaK(1) + f" ; @K{i+4}"]; B3 = [dmaK(2) + f" ; @K{i+4}"]
        B4 = [dmaV(0) + f" ; @V{i+2}", dmaV(1) + f" ; @V{i+2}"]; m2_, a2, a3, m4 = mK(i+4), aK, aK, mV(i+2)
    L = []
    def emit(mf, pat, Ex, Sx, D, B, sal):
        if mf is None:
            sc = [x for g in sorted(sal) for x in sal[g] if not x.startswith("s_waitcnt")]
            hs = hstores()[6*emit.n:6*emit.n+6] if X("lateh") else []; emit.n += 1
            mixed = []
            for k, x in enumerate(Ex):
                mixed.append(x)
                if k < len(hs): mixed.append(hs[k])
            return D + sc + ["s_nop 3"] + B + mixed + [x for _, x in Sx] + ["s_waitcnt lgkmcnt(0)"]
        return quarter(mf, pat, Ex, Sx, D, B, sal)
    emit.n = 0
    Ex, Sx = sm(S1, [2, 3], Pc, 1)
    D1 = rdVp(m2, p0) if not nopv else []
    L += quarter(qk(S0n), P1 if D1 else P1.replace("d", "1"), Ex, Sx + [(8, x) for x in CHK], D1, B1, {23: ["s_waitcnt lgkmcnt(6)"]} if D1 else {})
    L += callsite(i % 4)
    Ex, Sx = sm(S0n, [0, 1], Pn, 0)
    pat = P2; D = [rdK((slot+1) % 4, 1, ds) for ds in range(6)]; B = B2
    sal = {3: [a2], 7: ["s_waitcnt lgkmcnt(4)"], 13: [m2_], 23: ["s_waitcnt lgkmcnt(0)"]}
    if rl == "dma":
        pat = P2[:20] + "b---"; B = B + [rl_dma() + " ; @R"]
        sal.update({18: [f"s_cmp_lt_u32 s{sCNT}, 9"], 19: [f"s_mov_b32 m0, s{sRM}"], 21: [f"s_cselect_b32 s{sTMP}, 128, s3", f"s_cselect_b32 s{sRI}, 1024, 0"],
                    22: [m2_, f"s_add_u32 s{sRS}, s{sRS}, s{sTMP}"], 23: ["s_waitcnt lgkmcnt(0)", f"s_add_u32 s{sRM}, s{sRM}, s{sRI}"]})
    if rl in ("tk", "tv"):
        pat = P2[:20] + "b---"
        B = B + [f"buffer_load_dword v1, v{KVT}, {srdn(sK_SRD if rl == 'tk' else sV_SRD)}, s{sKT} offen ; @T"]
        if rl == "tk": sal[22] = [f"s_add_u32 s{sKT}, s{sKT}, 49152"]
    if rl == "out":
        pat = P2[:20] + "dad-"; D = D + [rl_rd(0), rl_rd(1)]; sal[23] = ["s_waitcnt lgkmcnt(2)"]
        xs = [(8, f"v_xor_b32 v{RTD+2}, s{sRX}, v{RTV}"), (8, f"v_add_u32 v{RTD+2}, s{sRU}, v{RTD+2}")]
    if rl == "out":
        q = quarter(pv(m2, p0, cz), pat.replace("dad-", "d-d-"), Ex, [(0, x) for x in LADD] + Sx, D, B, sal)
        k = q.index(rl_rd(0)); L += q[:k+2] + [x for _, x in xs] + q[k+2:]
    else: L += emit(None if nopv else pv(m2, p0, cz), pat, Ex, [(0, x) for x in LADD] + Sx, D, B, sal)
    Ex, Sx = sm(S0n, [2, 3], Pn, 0)
    D3 = rdVp(m2, p0+1) if not nopv else []
    sal = {21: [a3], 23: [f"s_waitcnt vmcnt({vmw}) lgkmcnt(0)", "s_barrier"]}
    L += quarter(qk(S1), P3 if D3 else P3.replace("d", "1"), Ex, Sx, D3, B3, sal)
    Ex, Sx = sm(S1, [0, 1], Pn, 1)
    sal = {0: [m4], 22: ["s_waitcnt lgkmcnt(0)"]}
    pat = P4; B = B4
    tail = list(tail)
    if tail:
        sal[19] = tail[:1]; sal[20] = tail[1:2]; sal[23] = tail[2:]
    if rl == "out":
        pat = P4[:19] + "b1---"; B = B + [rl_st() + " ; @S"]
        sal.update({5: [f"s_cmp_lt_u32 s{sCNT}, 10"], 7: [f"s_cselect_b32 s{sRJ}, 1024, 0"], 9: [f"s_sub_u32 s{sTMP}, s{sCNT}, 1"],
                    11: [f"s_cmp_lt_u32 s{sTMP}, 10"], 13: [f"s_cselect_b32 s{sTMP}, s{sRO}, s3"], 15: [f"s_cselect_b32 s{sRI}, 4096, 0"],
                    16: [f"s_add_u32 s{sRO}, s{sRO}, s{sRI}"], 17: [f"s_lshr_b32 s{sRI}, s{sRI}, 10"], 18: [f"s_add_u32 s{sRR}, s{sRR}, s{sRI}"],
                    20: [f"s_cmp_gt_u32 s{sRR}, 9"], 21: [f"s_cselect_b32 s{sRI}, {WF160 - 10240}, 0", f"s_cselect_b32 s{sTMP}, 10, 0"],
                    22: ["s_waitcnt lgkmcnt(0)", f"s_add_u32 s{sRO}, s{sRO}, s{sRI}"], 23: [f"s_sub_u32 s{sRR}, s{sRR}, s{sTMP}"]})
        Sx = Sx + [(8, f"v_add_u32 v{RTV}, s{sRJ}, v{RTV}")]
    L += emit(None if nopv else pv(m2, p0+1, cz), pat, Ex, Sx, [rdK((slot+2) % 4, 0, ds) for ds in range(6)], B, sal)
    return L
sRJ, sKT, KVT = 59, 58, 252
def kv_touch_addr(D):
    return E()(f"s_lshl_b32 s66, s{sQB}, 2", f"s_add_u32 s66, s66, s{sWAVE}", "s_mul_i32 s66, s66, 1536", "v_lshlrev_b32 v3, 7, v0", "v_add_u32 v3, s66, v3",
               "v_cmp_gt_u32 vcc, 12, v0", "v_bfrev_b32 v2, 1", "s_nop 0", f"v_cndmask_b32 v{KVT}, v2, v3, vcc")
def xlane(op, dst, tmp):
    L = []
    for sw in ("v_permlane16_swap_b32", "v_permlane32_swap_b32"):
        L += [f"v_mov_b32 v{tmp+qt}, v{dst+qt}" for qt in range(4)] + ["s_nop 1"]
        L += [f"{sw} v{dst+qt}, v{tmp+qt}" for qt in range(4)]
        L += [f"{op} v{dst+qt}, v{dst+qt}, v{tmp+qt}" for qt in range(4)]
    return L
def rowmax(dst, srcs, tmp):
    L = []
    for qt in range(4):
        r = srcs(qt); d = dst + qt
        L += [f"v_max3_f32 v{d}, v{r[0]}, v{r[1]}, v{r[2]}", f"v_max3_f32 v{d}, v{d}, v{r[3]}, v{r[4]}",
              f"v_max3_f32 v{d}, v{d}, v{r[5]}, v{r[6]}", f"v_max_f32 v{d}, v{d}, v{r[7]}"]
    return L + xlane("v_max_f32", dst, tmp)
def init():
    e = E()
    if not X("earlyk"):
        e("s_waitcnt vmcnt(@K0)", "s_barrier", fstamp(3, "conv"))
        for ds in range(6): e(rdK(0, 0, ds))
        for ds in range(6): e(rdK(0, 1, ds, VF))
        m, d = kvgroup("V", 1); e(m, d)
        m, d = kvgroup("K", 3); e(m, d[:2])
    e(f"s_mov_b32 s{sKT}, {4*12288}")
    for _ in range(2):
        e(f"buffer_load_dword v1, v{KVT}, {srdn(sK_SRD)}, s{sKT} offen ; @T", f"buffer_load_dword v1, v{KVT}, {srdn(sV_SRD)}, s{sKT} offen ; @T", f"s_add_u32 s{sKT}, s{sKT}, 49152")
    e(f"s_mov_b32 s{sVo}, {2*12288}")
    for q in range(4): e(f"v_mov_b32 v{L_+q}, 0")
    e(fstamp(4, "conv"), "s_waitcnt lgkmcnt(6)", qk(S0, KF, True), "s_waitcnt vmcnt(@K1) lgkmcnt(0)", "s_barrier", fstamp(5, "conv"))
    m = qk(S1, VF, True)
    rd = [rdK(1, 0, ds) for ds in range(6)]
    for i, x in enumerate(m):
        e(x)
        if i < 6: e(rd[i])
    e("s_nop 7", fstamp(6, "conv"))
    D, TM = 2, 6
    e(rowmax(D, lambda qt: [S0+4*qt+r for r in range(4)] + [S1+4*qt+r for r in range(4)], TM))
    for qt in range(4): e(f"v_ceil_f32 v{D+qt}, v{D+qt}")
    for qt in range(4):
        for r in range(4):
            e(f"v_sub_f32 v{NM+4*qt+r}, 0, v{D+qt}", f"v_sub_f32 v{S0+4*qt+r}, v{S0+4*qt+r}, v{D+qt}", f"v_sub_f32 v{S1+4*qt+r}, v{S1+4*qt+r}, v{D+qt}")
    for src, qts, kt in ((S0, [0, 1], 0), (S0, [2, 3], 0), (S1, [0, 1], 1)):
        Ex, Sx = sm(src, qts, Pb(0), kt)
        e(Ex, [x for _, x in Sx])
    e("s_waitcnt lgkmcnt(0)")
    return e
def slow(k):
    par = k & 1
    S0c = S0 + 16*par; S0n = S0 + 16*(1-par)
    e = E()(f"F_SLOW{k}:", "s_nop 7", "s_nop 7")
    D, TM = 2, 6
    e(rowmax(D, lambda qt: [S0c+4*qt+r for r in range(4)] + [S1+4*qt+r for r in range(4)], TM))
    for qt in range(4): e(f"v_max_f32 v{D+qt}, 0, v{D+qt}", f"v_ceil_f32 v{D+qt}, v{D+qt}", f"v_sub_f32 v{TM+qt}, 0, v{D+qt}", f"v_cvt_i32_f32 v{TM+qt}, v{TM+qt}")
    for qt in range(4):
        e(f"v_ldexp_f32 v{L_+qt}, v{L_+qt}, v{TM+qt}")
        for base in (NM, S0c, S1, S0n):
            for r in range(4): e(f"v_sub_f32 v{base+4*qt+r}, v{base+4*qt+r}, v{D+qt}")
    for t in ([k-1] if par else [k-1, k-2]):
        for qt in range(4):
            for r in range(4):
                p = Pb(t) + 4*qt + r
                e(f"v_lshlrev_b32 v10, 16, v{p}", f"v_and_b32 v11, 0xffff0000, v{p}", f"v_ldexp_f32 v10, v10, v{TM+qt}", f"v_ldexp_f32 v11, v11, v{TM+qt}",
                  f"v_cvt_pk_bf16_f32 v{p}, v10, v11")
    for dt in range(12):
        for qt in range(4):
            b = Oacc(dt, qt)
            for r in range(2):
                e(f"v_accvgpr_read_b32 v10, a{b+2*r}", f"v_accvgpr_read_b32 v11, a{b+2*r+1}", f"v_ldexp_f32 v10, v10, v{TM+qt}", f"v_ldexp_f32 v11, v11, v{TM+qt}",
                  f"v_accvgpr_write_b32 a{b+2*r}, v10", f"v_accvgpr_write_b32 a{b+2*r+1}, v11")
    for src, qts, kt in ((S0c, [0, 1], 0), (S0c, [2, 3], 0), (S1, [0, 1], 1), (S1, [2, 3], 1)):
        Ex, Sx = sm(src, qts, Pb(k), kt)
        e(Ex, [x for _, x in Sx])
    e("s_nop 1", f"s_setpc_b64 s[{sRET}:{sRET+1}]")
    return e

def relayout_src():
    return E()("s_cmp_lt_u32 s2, 192", f"s_cselect_b32 s{sRSRC}, s{pWO}, s{pW2}", f"s_cselect_b32 s{sRSRC+1}, s{pWO+1}, s{pW2+1}", "s_cselect_b32 s66, 0, 192",
               "s_sub_u32 s66, s2, s66", "s_mul_i32 s66, s66, 40960", f"s_add_u32 s{sRSRC}, s{sRSRC}, s66", f"s_addc_u32 s{sRSRC+1}, s{sRSRC+1}, 0",
               "s_cmp_lt_u32 s2, 240", f"s_cselect_b32 s{sRSRC+2}, 40960, 0", f"s_mov_b32 s{sRSRC+3}, 0x20000")
def relayout_dst():
    return E()("s_mul_i32 s66, s2, 10240", f"s_add_u32 s67, s66, {hx(WS_WF)}", f"s_sub_u32 s{sRDST+2}, {4*WF160}, s66",
               "s_cmp_lt_u32 s2, 240", f"s_cselect_b32 s{sRDST+2}, s{sRDST+2}, 0", f"s_cselect_b32 s67, s67, {hx(WS_WF)}",
               f"s_add_u32 s{sRDST}, s{pWS}, s67", f"s_addc_u32 s{sRDST+1}, s{pWS+1}, 0", f"s_mov_b32 s{sRDST+3}, 0x20000",
               f"s_mul_i32 s{sRM}, s{sWAVE}, 10240", f"s_add_u32 s{sRM}, s{sRM}, {ST}", f"s_mov_b32 s{sRS}, 0",
               f"s_lshl_b32 s{sRO}, s{sWAVE}, 10", f"s_mov_b32 s{sRR}, s{sWAVE}",
               "s_cmp_lt_u32 s2, 192", f"s_cselect_b32 s{sRX}, 0, 64", f"s_mov_b32 s{sRU}, 512", f"s_cselect_b32 s{sRU}, 20480, s{sRU}")
RTV, RTD = 255, 12
sRO, sRR, sRI = 26, 27, 62
def relayout_vaddr():
    return E()(f"s_mov_b32 s67, {ST - 1024}", _relayout_vaddr())
def _relayout_vaddr():
    return E()("v_lshrrev_b32 v1, 2, v0", "v_and_b32 v1, 7, v1", "v_lshlrev_b32 v2, 7, v1", "v_lshrrev_b32 v3, 5, v0", "v_mul_u32_u24 v3, 10240, v3", "v_add_u32 v2, v2, v3",
               "v_and_b32 v3, 3, v0", "v_lshl_add_u32 v2, v3, 3, v2", f"v_add_u32 v2, {ST - 1024}, v2", "v_lshrrev_b32 v1, 1, v1", "v_lshlrev_b32 v1, 5, v1",
               f"s_lshl_b32 s66, s{sWAVE}, 5", "v_xor_b32 v1, s66, v1", "v_add_u32 v4, v1, v2",
               "v_lshrrev_b32 v1, 4, v0", "v_mul_u32_u24 v1, 10240, v1", "v_bfe_u32 v2, v0, 2, 2", "v_lshl_add_u32 v1, v2, 7, v1", "v_lshl_add_u32 v1, v3, 3, v1",
               "v_lshrrev_b32 v2, 1, v2", "v_lshlrev_b32 v2, 5, v2", "v_xor_b32 v2, s66, v2", f"v_add3_u32 v1, v1, v2, s67",
               "s_cmp_lt_u32 s2, 192", "s_cselect_b64 vcc, -1, 0", f"v_cndmask_b32 v{RTV}, v1, v4, vcc")
def rl_dma(): return f"buffer_load_dwordx4 v{RLV}, {srdn(sRSRC)}, s{sRS} offen lds"
sRX, sRU = 48, 49
def rl_rd(u): return f"ds_read_b64_tr_b16 {v(RTD+2*u,2)}, v{RTV if u == 0 else RTD+2}"
def rl_st(): return f"buffer_store_dwordx4 {v(RTD,4)}, v{LX}, {srdn(sRDST)}, s{sTMP} offen sc1"

def front():
    e = E()
    e("s_load_dwordx8 s[4:11], s[0:1], 0", f"s_load_dwordx2 s[{pWO}:{pWO+1}], s[0:1], 32", f"s_load_dwordx4 s[{pW1}:{pW1+3}], s[0:1], 48",
      f"s_load_dwordx4 s[{pOUT}:{pOUT+3}], s[0:1], 64", f"s_load_dwordx2 s[{pWS}:{pWS+1}], s[0:1], 80")
    if not X("nopf"):
        e("s_getpc_b64 s[66:67]", "F_PC:", "v_lshrrev_b32 v1, 6, v0", "s_lshr_b32 s62, s2, 3", "s_mul_i32 s62, s62, 1536", "s_add_u32 s62, s62, 8192 - 512",
          "v_and_b32 v2, 63, v0", "v_lshlrev_b32 v4, 7, v2", "v_and_b32 v2, 3, v0", "v_lshl_add_u32 v2, v1, 2, v2", "v_lshlrev_b32 v2, 7, v2", "v_add_u32 v2, s62, v2",
          "v_cmp_eq_u32 vcc, 0, v1", "v_mov_b32 v5, s67", "s_nop 0", "v_cndmask_b32 v4, v2, v4, vcc", "v_min_u32 v4, F_END-F_PC, v4",
          "v_add_co_u32 v4, vcc, s66, v4", "s_nop 1", "v_addc_co_u32 v5, vcc, 0, v5, vcc", f"global_load_dword v{TCD+1}, v[4:5], off")
    e(wave_id(f"s{sWAVE}"), stamp(0), "s_mov_b32 s3, 0x10000000")
    if X("early0"): e("s_mov_b32 s88, s100")
    e("s_and_b32 s66, s2, 7", "s_lshl_b32 s66, s66, 2", "s_lshr_b32 s67, s2, 3", "s_and_b32 s67, s67, 3", f"s_add_u32 s{sHEAD}, s66, s67",
      f"s_lshr_b32 s{sQB}, s2, 5", f"s_lshl_b32 s66, s{sQB}, 2", f"s_add_u32 s{sM64}, s66, s{sWAVE}")
    e(f"s_lshl_b32 s66, s{sQB}, 5", f"s_add_u32 s66, s66, s{sHEAD}", "s_lshl_b32 s66, s66, 2", f"s_add_u32 s66, s66, s{sWAVE}", "s_lshl_b32 s62, s66, 1",
      "s_mul_i32 s66, s62, 1280",
      "v_lshrrev_b32 v1, 5, v0", "v_and_b32 v2, 31, v0", "v_mul_u32_u24 v3, 1280, v1", "v_lshl_add_u32 v3, v2, 3, v3",
      f"v_lshlrev_b32 v{LX}, 4, v0", f"s_or_b32 s{sKo}, s2, s{sWAVE}")
    e("s_waitcnt lgkmcnt(0)", fstamp(1))
    e(srd(12, pX, pX+1, 2560, "s66"))
    XR, XX = 64, 80
    for m in range(5): e(f"buffer_load_dwordx2 {v(XR+2*m,2)}, v3, s[12:15], 0 offen offset:{256*m}")
    e(srd(sFL, pWS, pWS+1, 1024, WS_FL), f"s_cmp_eq_u32 s{sKo}, 0", f"s_cselect_b32 s{sFL+2}, 1024, 0",
      f"buffer_load_dwordx4 v[76:79], v{LX}, {srdn(sFL)}, 0 offen sc1", f"s_mov_b32 s{sFL+2}, 1024")
    e("s_lshr_b32 s66, s62, 6", f"s_mul_i32 s66, s66, {XF_BLK}", "s_and_b32 s67, s62, 63", "s_lshl_b32 s67, s67, 6", "s_add_u32 s66, s66, s67",
      f"s_sub_u32 s67, {XF_BLK}, s67")
    e(srd(16, pWS, pWS+1, "s67", "s66"))
    e("v_lshrrev_b32 v13, 3, v2", "v_lshlrev_b32 v13, 12, v13", "v_lshl_add_u32 v13, v1, 6, v13", "v_and_b32 v3, 7, v0", "v_lshl_add_u32 v13, v3, 3, v13")
    e(f"s_mul_i32 s66, s{sHEAD}, 384", "s_sub_u32 s67, 7864320, s66"); e(srd(sWQ_SRD, pWQ, pWQ+1, "s67", "s66"))
    e(f"s_mul_i32 s66, s{sHEAD}, 96", "s_sub_u32 s67, 1969152, s66", f"s_sub_u32 s{pW1}, s{pW1}, 3072", f"s_subb_u32 s{pW1+1}, s{pW1+1}, 0")
    e(srd(sW1_SRD, pW1, pW1+1, "s67", "s66"))
    e(f"s_lshl_b32 s66, s{sWAVE}, 4", "s_mov_b32 s67, 12288")
    e("v_lshrrev_b32 v1, 4, v0", "v_and_b32 v2, 15, v0", "v_lshlrev_b32 v3, 1, v1", "v_xor_b32 v2, v2, v3", "v_add_u32 v3, s66, v1", "v_mul_lo_u32 v3, v3, s67",
      f"v_lshl_add_u32 v{DA}, v2, 4, v3", f"v_add_u32 v{DA+1}, {4*12288 - 1024}, v{DA}", "v_xor_b32 v2, 8, v2", "v_lshl_add_u32 v3, v2, 4, v3",
      f"v_add_u32 v{DA+2}, {8*12288 - 2048}, v3", f"v_add_u32 v{DA+3}, {12*12288 - 3072}, v3")
    e("v_lshrrev_b32 v1, 3, v0", "v_and_b32 v2, 7, v0", "v_and_b32 v3, 2, v1", "v_xor_b32 v2, v2, v3", "v_add_u32 v3, s66, v1", "v_mul_lo_u32 v4, v3, s67",
      "v_add_u32 v4, 256, v4", f"v_lshl_add_u32 v{DB}, v2, 4, v4", "v_xor_b32 v5, 4, v2", "v_lshl_add_u32 v4, v5, 4, v4", f"v_add_u32 v{DB+1}, {8*12288 - 1024}, v4",
      "v_mul_u32_u24 v3, 3072, v3", "v_bfrev_b32 v8, 1", "v_cmp_gt_u32 vcc, 6, v2", "v_lshl_add_u32 v6, v2, 4, v3", "v_add_u32 v6, 1024, v6",
      f"v_cndmask_b32 v{DH}, v8, v6, vcc", "v_cmp_gt_u32 vcc, 6, v5", "v_lshl_add_u32 v6, v5, 4, v3", f"v_add_u32 v6, {8*3072}, v6",
      f"v_cndmask_b32 v{DH+1}, v8, v6, vcc")
    e(f"s_lshl_b32 s66, s{sWAVE}, 12")
    for u in range(6): e(f"s_add_u32 s{sMW+u}, s66, {(WB if u % 2 else WA) + 16384*(u >> 1)}")
    e(f"s_mov_b32 s{sWq}, 0", f"s_mov_b32 s{sW1}, 0")
    NE = 5 if X("allW") else 2
    def wgrp(lo, hi):
        o = E()
        for u in range(lo, hi):
            o(m0W(u), "s_nop 0", dmaW(u))
            if u % 2: o(advW)
        return o
    e(wgrp(0, NE))
    NT = 0 if X("notouch") else 2
    if NT:
        e(f"s_lshl_b32 s66, s{sQB}, 3", f"s_lshl_b32 s67, s{sWAVE}, 1", "s_add_u32 s66, s66, s67", "s_mov_b32 s67, 12288", touch_addr(4),
          f"s_mov_b32 s{sTq}, 786432", f"s_mov_b32 s{sT1}, 196608")
        tch = touch()
        if X("touch2") or X("touch3") or X("touch4"): NT = 0
        else: e(tch)
    e(fstamp(2), f"s_waitcnt vmcnt({4*NE + NT})", stamp(1), fstamp(3))
    l1 = newlab("T")
    e(srd(12, pDBG, pDBG+1, 4), "v_mov_b32 v27, 0", f"s_cmp_lg_u32 s{sKo}, 0", f"s_cbranch_scc1 {l1}")
    e("v_and_b32 v1, 15, v0", "v_lshlrev_b32 v1, 2, v1", "ds_write_b32 v1, v27")
    for r in range(4):
        e(f"v_bfe_u32 v{4+r}, v{76+r}, 3, 9", f"v_lshrrev_b32 v{8+r}, 5, v{4+r}", f"v_lshlrev_b32 v{8+r}, 2, v{8+r}",
          f"v_and_b32 v{4+r}, 31, v{4+r}", f"v_lshlrev_b32_e64 v{4+r}, v{4+r}, 1")
    for r in range(4): e(f"ds_or_b32 v{8+r}, v{4+r}")
    e("ds_read_b32 v2, v1", "s_waitcnt lgkmcnt(0)", "v_not_b32 v2, v2", "v_ffbl_b32 v2, v2", "v_cmp_ne_u32 vcc, -1, v2",
      "s_nop 4", "s_ff1_i32_b64 s66, vcc", "s_nop 1", "v_readlane_b32 s67, v2, s66", "s_nop 4", "s_lshl_b32 s66, s66, 5", "s_add_u32 s66, s66, s67",
      "s_lshl_b32 s66, s66, 3", "s_or_b32 s66, s66, 0x40000000", "v_mov_b32 v26, s66",
      "s_mov_b64 exec, 1", "buffer_store_dword v26, v27, s[12:15], 0 offen sc1", "s_mov_b64 exec, -1", f"{l1}:")
    for i in range(10): e(f"v_lshlrev_b32 v{XX+2*i}, 16, v{XR+i}", f"v_and_b32 v{XX+2*i+1}, 0xffff0000, v{XR+i}")
    def reduce32(r, t):
        o = []
        for sh in (8, 4, 2, 1): o += ["s_nop 1", f"v_add_f32_dpp {r}, {r}, {r} row_ror:{sh} row_mask:0xf bank_mask:0xf"]
        return o + [f"v_mov_b32 {t}, {r}", "s_nop 1", f"v_permlane16_swap_b32 {r}, {t}", f"v_add_f32 {r}, {r}, {t}"]
    e(f"v_add_f32 v10, v{XX}, v{XX+1}", f"v_add_f32 v11, v{XX+2}, v{XX+3}")
    for i in range(4, 20, 2): e(f"v_add_f32 v10, v10, v{XX+i}", f"v_add_f32 v11, v11, v{XX+i+1}")
    e("v_add_f32 v10, v10, v11", reduce32("v10", "v11"))
    e(f"s_mov_b32 s66, {hx(f2u(1.0/640))}", "v_mul_f32 v10, s66, v10", "v_mov_b32 v11, 0", "v_mov_b32 v12, 0")
    for i in range(0, 20, 2):
        e(f"v_sub_f32 v1, v{XX+i}, v10", f"v_sub_f32 v2, v{XX+i+1}, v10", "v_fmac_f32 v11, v1, v1", "v_fmac_f32 v12, v2, v2")
    e("v_add_f32 v11, v11, v12", reduce32("v11", "v12"), "v_mul_f32 v11, s66, v11")
    e("v_cvt_pk_bf16_f32 v10, v10, v11", "v_and_b32 v11, 0xffff0000, v10", "v_lshlrev_b32 v10, 16, v10")
    e(f"v_add_f32 v11, {hx(f2u(1e-5))}, v11", "v_cvt_pk_bf16_f32 v11, v11, v11", "v_lshlrev_b32 v11, 16, v11",
      "v_sqrt_f32 v11, v11", "s_nop 0", "v_cvt_pk_bf16_f32 v11, v11, v11", "v_lshlrev_b32 v11, 16, v11", "v_rcp_f32 v11, v11", "s_nop 0")
    for i in range(10):
        a0, a1 = XX+2*i, XX+2*i+1
        e(f"v_sub_f32 v{a0}, v{a0}, v10", f"v_sub_f32 v{a1}, v{a1}, v10", f"v_cvt_pk_bf16_f32 v1, v{a0}, v{a1}",
          f"v_lshlrev_b32 v{a0}, 16, v1", f"v_and_b32 v{a1}, 0xffff0000, v1",
          f"v_mul_f32 v{a0}, v{a0}, v11", f"v_mul_f32 v{a1}, v{a1}, v11", f"v_cvt_pk_bf16_f32 v{XR+i}, v{a0}, v{a1}")
        if i % 2: e(f"s_mov_b32 s66, {16384*(i//2)}", f"buffer_store_dwordx2 {v(XR+i-1,2)}, v13, s[16:19], s66 offen sc1")
    e(stamp(2), fstamp(4))
    e("v_lshrrev_b32 v1, 4, v0", "v_lshrrev_b32 v2, 2, v0", "v_and_b32 v2, 3, v2", "v_and_b32 v3, 3, v0",
      "v_and_b32 v5, 1, v1", "v_lshlrev_b32 v4, 1, v2", "v_lshl_or_b32 v4, v5, 3, v4",
      "v_lshl_add_u32 v6, v1, 3, v2", "v_lshlrev_b32 v6, 8, v6", f"v_add_u32 v6, {WA}, v6", "v_lshrrev_b32 v7, 1, v3")
    for T in range(8):
        e(f"v_or_b32 v8, {4*(T >> 1)}, v3", "v_xor_b32 v8, v8, v4", "v_lshl_add_u32 v8, v8, 4, v6", f"v_xor_b32 v9, {T & 1}, v7", f"v_lshl_add_u32 v{AWA+T}, v9, 3, v8")
    e("v_and_b32 v4, 2, v2", "v_lshl_or_b32 v4, v5, 2, v4",
      "v_lshl_add_u32 v6, v5, 3, v2", "v_lshlrev_b32 v6, 7, v6", "v_lshrrev_b32 v8, 1, v1", "v_lshl_add_u32 v6, v8, 12, v6", f"v_add_u32 v6, {WB}, v6")
    for T in range(4):
        e(f"v_or_b32 v8, {4*(T >> 1)}, v3", "v_xor_b32 v8, v8, v4", "v_lshl_add_u32 v8, v8, 4, v6", f"v_xor_b32 v9, {T & 1}, v7", f"v_lshl_add_u32 v{AWB+T}, v9, 3, v8")
    e("v_add_u32 v6, 2048, v6", "v_lshl_add_u32 v6, v3, 3, v6")
    for tt in range(3): e(f"v_xor_b32 v8, {2*tt}, v4", f"v_lshl_add_u32 v{AH+tt}, v8, 4, v6")
    e(fstamp(5))
    lp, ld = newlab("P"), newlab("D")
    tagpoll = E()(f"s_mov_b32 s{sU}, 0", f"{lp}:", "buffer_load_dword v26, v27, s[12:15], 0 offen sc1", "s_waitcnt vmcnt(0)", f"v_readfirstlane_b32 s{sT}, v26",
                  f"s_add_u32 s{sU}, s{sU}, 1", f"s_cmp_gt_u32 s{sU}, {SPIN}", f"s_cbranch_scc1 {ld}",
                  f"s_cmp_eq_u32 s{sT}, 0", f"s_cbranch_scc1 {lp}", f"{ld}:")
    e(wave0(tagpoll), "s_waitcnt vmcnt(0)", fstamp(6), "s_barrier", stamp(3), fstamp(7))
    e(wave0(signal(1)), fstamp(8))
    if not X("allW") and not X("lateW"): e(wgrp(NE, 5))
    if X("touch2"): e(tch)
    e("v_lshrrev_b32 v1, 3, v0", "v_and_b32 v2, 7, v0", f"s_mul_i32 s62, s{sWAVE}, 3072", f"s_lshl_b32 s66, s{sWAVE}, 2")
    for t in range(3):
        e(f"v_add_u32 v3, {8*t}, v1", "v_mul_u32_u24 v4, 171, v3", "v_lshrrev_b32 v4, 9, v4",
          "v_lshrrev_b32 v5, 1, v4", "v_add_u32 v6, s66, v5", "v_and_b32 v6, 7, v6", "v_xor_b32 v6, v2, v6",
          "v_lshlrev_b32 v7, 7, v1", "v_add_u32 v7, s62, v7", f"v_lshl_add_u32 v{DK+t}, v6, 4, v7",
          "v_and_b32 v5, 3, v5", "v_lshlrev_b32 v5, 1, v5", "v_xor_b32 v5, v2, v5", f"v_lshl_add_u32 v{DV+t}, v5, 4, v7")
    for i in range(4): e(f"s_add_u32 s{sMK+i}, s62, {KR + 12288*i}", f"s_add_u32 s{sMV+i}, s62, {VR + 12288*i}")
    e("v_and_b32 v3, 6, v1", "v_xor_b32 v3, v2, v3", "v_mul_u32_u24 v4, 1280, v1", "v_lshl_add_u32 v4, v3, 4, v4", f"s_mul_i32 s66, s{sWAVE}, 10240", f"v_add_u32 v{RLV}, s66, v4")
    e(f"s_mul_i32 s66, s{sM64}, {XF_BLK}")
    if WS_XF: e(f"s_add_u32 s66, s66, {hx(WS_XF)}")
    e(srd(sXF_SRD, pWS, pWS+1, XF_BLK, "s66"))
    e("v_and_b32 v1, 15, v0", "v_lshrrev_b32 v2, 4, v0", "v_lshlrev_b32 v1, 6, v1", f"v_lshl_add_u32 v{LXB}, v2, 4, v1", f"v_add_u32 v{LXB2}, 4096, v{LXB}",
      "v_lshrrev_b32 v3, 1, v2", "v_and_b32 v2, 1, v2", "v_lshrrev_b32 v1, 2, v1", "v_lshl_add_u32 v1, v3, 8, v1", f"v_lshl_add_u32 v{LX8}, v2, 3, v1",
      f"s_mov_b32 s{sX}, 0")
    e(f"s_mul_i32 s66, s{sHEAD}, 786432"); e(srd(sK_SRD, pK, pK+1, 786432, "s66"), srd(sV_SRD, pV, pV+1, 786432, "s66"), relayout_src())
    e(f"s_mul_i32 s66, s{sM64}, {OF_BLK}", f"s_add_u32 s66, s66, {hx(WS_OF)}"); e(srd(sOF_SRD, pWS, pWS+1, OF_BLK, "s66"))
    e(f"s_mov_b32 s{sC}, {hx(f2u(CSCALE))}", f"s_mov_b32 s{sC+1}, {hx(f2u(CSCALE))}", f"s_mov_b32 s{sTHR}, {hx(f2u(THR))}")
    e(f"s_mul_i32 s{sO}, s{sHEAD}, 24576")
    for tt in range(3):
        e(f"s_mul_i32 s66, s{sHEAD}, 3", f"s_add_u32 s66, s66, {tt}", "s_and_b32 s67, s66, 1", "s_lshl_b32 s67, s67, 9",
          "s_lshr_b32 s66, s66, 1", "s_add_u32 s66, s66, 192", "s_lshl_b32 s66, s66, 12", f"s_add_u32 s{sH[tt]}, s66, s67")
    e("v_lshrrev_b32 v1, 4, v0", "v_and_b32 v3, 3, v0",
      "v_lshrrev_b32 v5, 2, v0", "v_mul_u32_u24 v6, 384, v5", f"v_add_u32 v6, {VR}, v6", "v_lshl_add_u32 v6, v3, 3, v6",
      "v_lshrrev_b32 v5, 1, v5", "v_and_b32 v5, 3, v5", "v_lshlrev_b32 v5, 1, v5")
    for sg in range(4): e(f"v_xor_b32 v8, {2*sg}, v5", f"v_lshl_add_u32 v{AV+sg}, v8, 4, v6")
    e("v_and_b32 v2, 15, v0", "v_mul_u32_u24 v6, 384, v2", "v_lshrrev_b32 v2, 1, v2", "v_xor_b32 v2, v2, v1")
    e(f"v_lshl_add_u32 v{AK}, v2, 4, v6", "v_xor_b32 v2, 4, v2", f"v_lshl_add_u32 v{AK+1}, v2, 4, v6", relayout_vaddr(), kv_touch_addr(None), fstamp(9))
    if not X("notouch"):
        e(f"s_lshl_b32 s66, s{sQB}, 3", f"s_lshl_b32 s67, s{sWAVE}, 1", "s_add_u32 s66, s66, s67", "s_mov_b32 s67, 12288", touch_addr(3),
          f"s_mov_b32 s{sTq}, {(3 if X('touch3') else 4 if X('touch4') else 5)*786432}", f"s_mov_b32 s{sT1}, {(3 if X('touch3') else 4 if X('touch4') else 5)*196608}")
    for i in range(96): e(f"v_accvgpr_write_b32 a{i}, 0")
    for i in range(48, 192): e(f"v_mov_b32 v{i}, 0")
    e("s_waitcnt vmcnt(0)")
    e(wave0([f"v_lshlrev_b32 v2, 2, v0", f"s_lshl_b32 s{sCNT}, s{sQB}, 7"] + poll(1, ("-1", "0"), f"s{sCNT}")))
    e("s_barrier", fstamp(10))
    for k in range(2): e(ldB(k), advX)
    e([qrd(0, T, kk, uu) for T in range(2) for kk in range(2) for uu in range(2)], wgrp(NE, 5) if X("lateW") else [])
    e(f"s_mov_b32 s{sCNT}, 0", fstamp(11), f"s_waitcnt vmcnt({20 if X('lateW') else 8}) lgkmcnt(4)", stamp(5), fstamp(12))
    return e

TB, TA, TAD, TD, TB8 = 16, 96, 160, 162, 164
sTW, sTB, sMT, sSP = 39, 58, 40, 54
LEAD = 3
def tacc(nt, qt): return (nt*2 + qt)*4
def t_rd(st, nt, kk, dst):
    slot = st % 4
    return f"ds_read_b128 {v(dst, 4)}, v{TAD + slot//3} offset:{(slot%3)*20480 + (kk*10 + nt)*1024}"
def t_A(st, nt, kk): return TA + 8*((10*st + nt) % 4) + 4*kk
def t_B(st, kk, qt): return TB + 16*(st % 4) + 8*kk + 4*qt
def t_ldB(st, g):
    if not g: return [f"buffer_load_dwordx4 {v(t_B(st,kk,qt), 4)}, v{LX}, s[16:19], s{sTB + kk} offen offset:{1024*qt} sc1 ; @B{st}" for kk in range(2) for qt in range(2)]
    return [f"buffer_load_dwordx2 {v(t_B(st,kk,qt) + 2*h, 2)}, v{TB8}, s[16:19], s{sTB + kk} offen offset:{1024*qt + 512*h} sc1 ; @B{st}" for kk in range(2) for qt in range(2) for h in range(2)]
t_advB = [f"s_add_u32 s{sTB}, s{sTB}, 8192", f"s_add_u32 s{sTB+1}, s{sTB+1}, 8192"]
def t_dmaW(st, t): return f"buffer_load_dwordx4 v{TD + (t == 4)}, s[12:15], s{sTW} offen offset:{1024*(t%4)} {'' if X('wplain') else 'sc1 '}lds ; @W{st}"
def t_m0(st, t): return f"s_add_u32 m0, s{sMT}, {(st%4)*20480 + (4096 if t == 4 else 0)}"
t_advW = [f"s_add_u32 s{sTW}, s{sTW}, 20480"]
def tplan(g):
    if g: pl = {2: ("W", LEAD-1, 3), 3: ("B", 0), 6: ("B", 1), 7: ("B", 2), 11: ("W", LEAD-1, 4), 10: ("B", 3), 14: ("B", 4), 15: ("B", 5), 19: ("B", 6), 22: ("B", 7)}
    else: pl = {2: ("W", LEAD-1, 3), 6: ("B", 0), 11: ("W", LEAD-1, 4), 15: ("B", 1), 19: ("B", 2), 23: ("B", 3)}
    pl.update({30: ("W", LEAD, 0), 34: ("W", LEAD, 1), 38: ("W", LEAD, 2)})
    return pl
sIT, sCP, sNW, sNB, sNF, sDA, sDB, FV, FA_ = 50, 52, 53, 49, 47, 45, 43, 166, 165
sFM, sFB = 60, 62
def decode():
    return [f"s_and_b32 s{sDA}, s{sIT}, 7", f"s_lshl_b32 s{sDA}, s{sDA}, 2", f"s_lshr_b32 s{sDA}, s{sCP}, s{sDA}", f"s_and_b32 s{sDA}, s{sDA}, 15",
            f"s_bfe_u32 s{sDB}, s{sIT}, 0x20003", f"s_mul_i32 s{sNF}, s{sDA}, s{sFM}", f"s_add_u32 s{sNF}, s{sNF}, s{sFB}",
            f"s_mul_i32 s{sDA}, s{sDA}, 3", f"s_add_u32 s{sDA}, s{sDA}, s{sDB}", f"s_mul_i32 s{sNW}, s{sDA}, 81920", f"s_lshl_b32 s{sNB}, s{sDA}, 15"]
shiftIT = f"s_lshr_b64 s[{sIT}:{sIT+1}], s[{sIT}:{sIT+1}], 5"
def flagld(): return f"buffer_load_dword v{FV}, v{FA_}, {srdn(sFL)}, s{sNF} offen sc1 ; @F"
def flagchk(): return [f"v_subrev_u32 v{FV}, s{sT}, v{FV}", f"v_subrev_u32 v{FV}, 3, v{FV}", f"v_cmp_lt_u32 vcc, 1, v{FV}"]
def flagspin(entry, back):
    l = newlab("S")
    return E()(f"{entry}:", f"s_mov_b32 s{sU}, 0", f"{l}:", flagld(), "s_waitcnt vmcnt(0)", flagchk(), f"s_add_u32 s{sU}, s{sU}, 1", f"s_cmp_gt_u32 s{sU}, {SPIN}",
               f"s_cbranch_scc1 {back}", f"s_cbranch_vccnz {l}", f"s_branch {back}")
def tstage(st, g, vmw, last=1 << 30, nextA=None):
    L = []
    pl = tplan(g)
    ldb = t_ldB(st + LEAD, g)
    for p in range(20):
        nt = p >> 1; qt = (p & 1) ^ (nt & 1)
        for kk in range(2):
            gi = 2*p + kk
            acc = a(tacc(nt, qt), 4)
            L.append(f"{MF} {acc}, {v(t_A(st,nt,kk), 4)}, {v(t_B(st,kk,qt), 4)}, {acc}")
            if gi % 4 < 2:
                st2, nt2 = st + (nt+3)//10, (nt+3) % 10
                if st2 == st or nextA is None: L.append(t_rd(st2, nt2, gi % 4, t_A(st2, nt2, gi % 4)))
                else: L.append(nextA[2*nt2 + gi % 4])
                if gi % 4 == 1: L.append("s_waitcnt lgkmcnt(4)")
                if gi == 28 and st + LEAD < last: L.append(t_m0(st + LEAD, 0))
                if gi == 4 and st + LEAD - 1 < last: L.append(t_m0(st + LEAD - 1, 4))
                dyn = not g and last > 32
                if gi == 12 and st + LEAD - 1 < last: L += [f"s_mov_b32 s{sTW}, s{sNW}"] if dyn and st % 4 == 1 else t_advW
                if gi == 24 and st + LEAD < last: L.append(f"s_mov_b32 s{sTB}, s{sNB}" if dyn and st % 4 == 0 else t_advB[0])
                if gi == 32 and st + LEAD < last: L.append(f"s_add_u32 s{sTB+1}, s{sNB}, 4096" if dyn and st % 4 == 0 else t_advB[1])
            if not g and last > 32:
                if st % 4 == 2:
                    dc = [shiftIT] + decode()
                    pos = {0: dc[0:1], 3: dc[1:3], 7: dc[3:5], 8: dc[5:6], 10: dc[6:8], 14: dc[8:10], 16: dc[10:11], 18: dc[11:12]}
                    L += pos.get(gi, [])
                    if gi == 26: L.append(flagld())
                if st % 4 == 0:
                    fc = flagchk()
                    if gi == 31: L += fc[:2]
                    if gi == 35: L += fc[2:]
                    if gi == 39: L += ["s_cbranch_vccnz F_TSP", "F_TSB:"]
            if gi in pl:
                x = pl[gi]
                if x[0] == "W":
                    if st + x[1] < last: L.append(t_dmaW(st + x[1], x[2]))
                elif st + LEAD < last: L.append(ldb[x[1]])
            if gi == 27: L += [f"s_waitcnt vmcnt({vmw})", "s_barrier"]
    return L
def tpre(g):
    e = E()
    for st in range(LEAD-1):
        e(t_m0(st, 0), "s_nop 0", [t_dmaW(st, t) for t in range(4)], t_m0(st, 4), "s_nop 0", t_dmaW(st, 4), t_advW, t_ldB(st, g), t_advB)
    e(t_ldB(LEAD-1, g), t_advB, t_m0(LEAD-1, 0), "s_nop 0", [t_dmaW(LEAD-1, t) for t in range(3)])
    return e
def tcount(g):
    L = tpre(g)
    for st in range(12): L = L + tstage(st, g, f"@W{st+1},@B{st+1}")
    L = [l for l in L if not l.startswith(("s_cbranch", "F_"))]
    c = [int(re.search(r"vmcnt\((\d+)\)", l).group(1)) for l in resolve(L, []) if "vmcnt" in l]
    return min(c)
def tloop(g):
    nb = 8 if g else 4
    cnt = tcount(g)
    pre = E()(resolve(tpre(g) + ["s_waitcnt vmcnt(@W0,@B0)"], []))
    pre("s_barrier", [t_rd(0, nt, kk, t_A(0, nt, kk)) for nt in range(3) for kk in range(2)], f"s_mov_b32 s{sCNT}, 0", "s_waitcnt lgkmcnt(4)", fstamp(10, "last"), fstamp(5, "tail"))
    body = []
    for st in range(4): body += tstage(st, g, cnt)
    l = "F_TLG" if g else "F_TLS"
    ctl = [f"s_add_u32 s{sCNT}, s{sCNT}, 1", f"s_cmp_lt_u32 s{sCNT}, {'6' if g else 's46'}", f"s_cbranch_scc1 {l}"]
    if not g:
        l0 = newlab("Z"); ld = lambda r: f"buffer_load_dword v{r}, v{FA_}, {srdn(sFL)}, s{sNF} offen sc1"
        sp = E()(f"s_add_u32 s{sTMP}, s{sT}, 3", f"s_mov_b32 s{sU}, 0", ld(8), "s_sleep 4", ld(9), "s_sleep 4", ld(10), f"{l0}:")
        for r in (8, 9, 10):
            sp("s_waitcnt vmcnt(2)", f"v_subrev_u32 v11, s{sTMP}, v{r}", "v_cmp_lt_u32 vcc, 1, v11", f"s_add_u32 s{sU}, s{sU}, 1", ld(r), "s_nop 0", "s_cbranch_vccz F_T0B")
        sp(f"s_cmp_le_u32 s{sU}, {SPIN}", f"s_cbranch_scc1 {l0}")
        first = E()(decode(), f"s_cmp_eq_u32 s{sSP}, 3", "s_cbranch_scc1 F_T0B", sp if not X("poll1") else flagspin("F_T0", "F_T0B"), "F_T0B:", stamp(11), fstamp(4, "tail"), fstamp(9, "last"),
                    f"s_mov_b32 s{sTW}, s{sNW}", f"s_mov_b32 s{sTB}, s{sNB}", f"s_add_u32 s{sTB+1}, s{sNB}, 4096", shiftIT, decode(), flagld())
        pre = first + pre
    return pre, body, ctl, cnt
def pb_off(): return E()(f"s_lshl_b32 s41, s{sWAVE}, 2", f"s_add_u32 s41, s41, s{sSP}", "s_mul_i32 s41, s41, 20480",
                         f"s_cmp_eq_u32 s{sWAVE}, s{sSP}", "s_cselect_b32 s41, 0x10000000, s41")
def own_write():
    l = newlab("O")
    e = E()(f"s_cmp_lg_u32 s{sWAVE}, s{sSP}", f"s_cbranch_scc1 {l}", f"v_add_u32 v4, {OWN}, v{LX}")
    for i in range(20): e(f"ds_write_b128 v4, {a(tacc(i % 10, i // 10), 4)} offset:{1024*i}")
    return e(f"{l}:")
def tfinal(cnt):
    FA = lambda nt, k: TA + 16*(nt % 4) + 4*k
    frd = lambda nt, k: t_rd(30 + (k >> 1), nt, k & 1, FA(nt, k))
    e = E()
    for l in tstage(28, False, "@W29,@B29", last=32):
        e(l)
        if l.startswith("buffer_load") and l.endswith("@W31") and "offset:2048" in l:
            e.last = len(e)
    tail = e[e.last:]; del e[e.last:]
    k = [i for i, l in enumerate(tail) if l.startswith(MF)]
    assert len(k) == 1
    e(t_dmaW(31, 3), tail[k[0]], t_m0(31, 4), "s_nop 0", t_dmaW(31, 4))
    n = 0
    for l in tstage(29, False, "0", last=31):
        if l.startswith("ds_read"):
            n += 1
            if n > 14: continue
        if l == "s_waitcnt lgkmcnt(4)" and n > 14: l = "s_waitcnt lgkmcnt(0)"
        if l.startswith("s_waitcnt vmcnt") or l == "s_barrier": continue
        e(l)
    e("s_waitcnt vmcnt(@W30,@B30,@W31,@B31)", "s_barrier")
    e([frd(0, k) for k in range(4)], [frd(1, k) for k in range(4)], pb_off(), "s_waitcnt lgkmcnt(4)")
    pend = []
    for nt in range(10):
        for qt in range(2):
            for k in range(4):
                g = 4*qt + k
                acc = a(tacc(nt, qt), 4)
                e(f"{MF} {acc}, {v(FA(nt,k),4)}, {v(t_B(30 + (k >> 1), k & 1, qt),4)}, {acc}")
                if g < 4 and nt + 2 < 10: e(frd(nt+2, g))
                if g == 3 and nt + 1 < 10: e(f"s_waitcnt lgkmcnt({4 if nt + 2 < 10 else 0})")
                if g in (4, 6) and nt > 0:
                    q2 = (g-4)//2; i = q2*10 + nt-1
                    e(f"buffer_store_dwordx4 {a(tacc(nt-1,q2),4)}, v{LX}, s[20:23], s{42+q2} offen sc1")
                if g in (1, 2) and nt > 0:
                    q2 = g - 1; e(f"s_add_u32 s{42+q2}, s41, {1024*(q2*10 + nt-1)}")
    e("s_add_u32 s42, s41, 9216", "s_add_u32 s43, s41, 19456", "s_nop 5")
    for q2 in range(2): e(f"buffer_store_dwordx4 {a(tacc(9,q2),4)}, v{LX}, s[20:23], s{42+q2} offen sc1")
    e(own_write())
    return e
def gfinal():
    e = E()(pb_off(), "s_waitcnt vmcnt(0) lgkmcnt(0)", "s_nop 1")
    for i in range(20):
        b = tacc(i % 10, i // 10); d = 16 + 6*(i % 8)
        for r in range(4): e(f"v_accvgpr_read_b32 v{d+r}, a{b+r}")
        e(f"v_cvt_pk_bf16_f32 v{d+4}, v{d}, v{d+1}", f"v_cvt_pk_bf16_f32 v{d+5}, v{d+2}, v{d+3}")
        if i % 8 == 0: e(f"s_add_u32 s42, s41, {512*i}")
        e(f"buffer_store_dwordx2 {v(d+4,2)}, v{TB8}, s[20:23], s42 offen offset:{512*(i%8)} sc1")
    e(own_write())
    return e
def items(lst):
    x = 0
    for k, (rb, th) in enumerate(lst): x |= (rb | th << 3) << (5*k)
    return x
def blk(*rbs): return [(rb, th) for rb in rbs for th in range(3)]
PATTERNS = {"B": [blk(0, 2, 4), blk(1, 3, 5), blk(6, 7)],
            "C": [blk(0, 2, 4) + [(5, 0)], blk(1, 3) + [(5, 1), (5, 2)], blk(6, 7)],
            "D": [blk(0, 2, 4), blk(1, 3) + [(5, 0), (5, 1)], [(5, 2)] + blk(6, 7)],
            "E": [blk(0, 2, 4) + [(5, 0)], blk(1, 3) + [(5, 1)], [(5, 2)] + blk(6, 7)],
            "A": [blk(0, 3) + [(6, 0), (6, 1)], blk(1, 4) + [(6, 2), (7, 0)], blk(2, 5) + [(7, 1), (7, 2)]]}
DV_ = 136
def roles():
    e = E()
    l, d = newlab("R"), newlab("D")
    e(f"s_mov_b32 s{sU}, 0", f"{l}:", f"v_cmp_eq_u32 vcc, 0, v{DV_}", f"s_add_u32 s{sU}, s{sU}, 1", "s_nop 2", "s_and_b32 s41, vcc_lo, 0xff00", f"s_cbranch_scc0 {d}",
      f"s_cmp_gt_u32 s{sU}, {SPIN}", f"s_cbranch_scc1 {d}", f"buffer_load_dword v{DV_}, v{DV_+1}, s[28:31], 0 offen sc1", "s_waitcnt vmcnt(0)", f"s_branch {l}", f"{d}:")
    e(f"v_readlane_b32 s{sT}, v{DV_}, 0", f"s_mov_b32 s{sCP}, 0", "s_and_b32 s41, s2, 7", "s_add_u32 s41, s41, 8", f"v_readlane_b32 s42, v{DV_}, s41")
    e([f"v_readlane_b32 s{12+c}, v{DV_}, {8+c}" for c in range(8)], "s_nop 3")
    for c in range(1, 8):
        e(f"s_sub_u32 s41, s{12+c}, 1", "s_and_b32 s41, s41, 7", "s_lshl_b32 s41, s41, 2", f"s_lshl_b32 s41, {c}, s41", f"s_or_b32 s{sCP}, s{sCP}, s41")
    e("s_sub_u32 s42, s42, 1", "s_and_b32 s42, s42, 7")
    if X("static"): e("s_and_b32 s42, s2, 7", f"s_mov_b32 s{sCP}, 0x76543210")
    e(f"s_lshr_b32 s{sSP}, s42, 1", "s_add_u32 s55, s42, 1", "s_lshr_b32 s55, s55, 1", "s_and_b32 s55, s55, 1", f"s_and_b32 s56, s{sHEAD}, 3")
    pat = PATTERNS[[x[3:] for x in EXP[0].split() if x.startswith("pat")][0] if "pat" in EXP[0] else "D"]
    pat = pat + [blk(0, 1)]
    for m in (3, 2, 1, 0):
        x = items(pat[m])
        if m == 3: e(f"s_mov_b32 s{sIT}, {hx(x)}", f"s_mov_b32 s{sIT+1}, {hx(x >> 32)}", f"s_mov_b32 s46, {len(pat[m]) - 1}")
        else: e(f"s_cmp_eq_u32 s{sSP}, {m}", f"s_cselect_b32 s{sIT}, {hx(x)}, s{sIT}", f"s_cselect_b32 s{sIT+1}, {hx(x >> 32)}, s{sIT+1}", f"s_cselect_b32 s46, {len(pat[m]) - 1}, s46")
    e(f"s_lshl_b32 s41, s{sQB}, 7", f"s_lshl_b32 s42, s{sHEAD}, 2", "s_add_u32 s42, s42, s41", f"s_cmp_eq_u32 s{sSP}, 3", f"s_cselect_b32 s{sCP}, 0x98, s{sCP}",
      f"s_cselect_b32 s{sFM}, 0, 16", f"s_cselect_b32 s{sFB}, s42, s41", "s_cselect_b32 s40, 0, 3")
    return e
def tail_setup():
    e = E()
    e("v_and_b32 v1, s40, v0", f"v_lshlrev_b32 v{FA_}, 2, v1")
    e(f"s_mul_i32 s41, s56, {WF160}", f"s_add_u32 s41, s41, {hx(WS_WF)}")
    e(srd(12, pWS, pWS+1, WF160, "s41"))
    e(f"s_lshl_b32 s41, s{sQB}, 2", "s_lshl_b32 s42, s55, 1", "s_add_u32 s41, s41, s42", f"s_lshr_b32 s42, s{sWAVE}, 1", "s_add_u32 s41, s41, s42",
      f"s_mul_i32 s41, s41, {OF_BLK}",
      f"s_and_b32 s42, s{sWAVE}, 1", "s_lshl_b32 s42, s42, 11", "s_add_u32 s41, s41, s42", f"s_add_u32 s41, s41, {hx(WS_OF)}",
      f"s_sub_u32 s43, {OF_BLK}, s42")
    e(srd(16, pWS, pWS+1, "s43", "s41"))
    e(f"s_mov_b32 s{sTB}, 0", f"s_mov_b32 s{sTB+1}, 4096", f"s_mov_b32 s{sTW}, 0", f"s_mul_i32 s{sMT}, s{sWAVE}, 5120")
    e(f"s_lshl_b32 s41, s{sQB}, 1", "s_add_u32 s41, s41, s55", "s_lshl_b32 s41, s41, 2", "s_add_u32 s41, s41, s56", "s_mul_i32 s41, s41, 327680",
      f"s_add_u32 s41, s41, {hx(WS_PB)}")
    e(srd(20, pWS, pWS+1, 327680, "s41"))
    e(f"s_lshl_b32 s41, s{sQB}, 3", "s_lshl_b32 s42, s55, 2", "s_add_u32 s41, s41, s42", f"s_add_u32 s41, s41, s{sSP}", "s_lshl_b32 s41, s41, 1",
      f"s_and_b32 s42, s{sWAVE}, 1", "s_add_u32 s41, s41, s42", "s_mul_i32 s41, s41, 20480",
      "s_mul_i32 s42, s56, 320", "s_add_u32 s41, s41, s42", f"s_lshr_b32 s42, s{sWAVE}, 1", "s_mul_i32 s42, s42, 160", "s_add_u32 s41, s41, s42",
      "s_sub_u32 s42, 2621440, s41")
    e(srd(24, pX, pX+1, "s42", "s41")); e(srd(28, pOUT, pOUT+1, "s42", "s41"))
    e("s_lshl_b32 s44, 0x11111111, s56", f"s_lshl_b32 s48, s{sQB}, 7")
    return e
def tail_vsetup():
    return E()(f"v_add_u32 v{TD}, s{sMT}, v{LX}", f"v_add_u32 v{TD+1}, 4096, v{TD}", f"v_mov_b32 v{TAD}, v{LX}", f"v_add_u32 v{TAD+1}, 61440, v{LX}",
               [f"v_accvgpr_write_b32 a{i}, 0" for i in range(80)])

def laststep(i=63):
    Pc = Pb(i)
    e = E()
    e(rdVp(62, 0))
    e(wave0([f"buffer_load_dwordx4 v[140:143], v{LX}, {srdn(sFL)}, 0 offen sc1"]))
    e(srd(28, pDBG, pDBG+1, 64), "v_and_b32 v138, 15, v0", f"v_lshlrev_b32 v{DV_+1}, 2, v138", f"buffer_load_dword v{DV_}, v{DV_+1}, s[28:31], 0 offen sc1")
    Ex, Sx = sm(S1, [2, 3], Pc, 1)
    e(Ex, rdVp(62, 1, KF))
    e([x for _, x in Sx], CHK, "s_waitcnt lgkmcnt(12)", callsite(i % 4), LADD, "s_nop 0", fstamp(2, "last"))
    RI = 8
    Xl = xlane("v_add_f32", L_, 2) + [f"v_rcp_f32 v{RI+2*qt}, v{L_+qt}" for qt in range(4)]
    def mix(m, fill, per=1):
        for x in m:
            e(x)
            for _ in range(per):
                if fill: e(fill.pop(0))
    r2, r3 = rdVp(62, 2), rdVp(62, 3, KF)
    ok = newlab("K")
    chk = E()(f"s_add_u32 s{sTMP}, s{sT}, 2")
    for r in range(4): chk(f"v_subrev_u32 v{140+r}, s{sTMP}, v{140+r}")
    chk("v_max3_u32 v140, v140, v141, v142", "v_max_u32 v140, v140, v143", "v_cmp_lt_u32 vcc, 2, v140", "s_nop 1", f"s_cbranch_vccz {ok}",
        f"v_mov_b32 v2, v{LX}", poll(2, ("-1", "-1"), "0", wide=True), f"{ok}:")
    def norm(j):
        o = E()(f"s_add_u32 s{sTMP}, s{sO}, {4096*j}")
        for qt in range(4):
            k = 4*j + qt
            t = 64 + 8*(k % 4); d = 112 + 4*(k % 6)
            for hh in range(2):
                b = Oacc(2*j+hh, qt)
                for r in range(4): o(f"v_accvgpr_read_b32 v{t+4*hh+r}, a{b+r}")
            for r in range(0, 8, 2): o(f"v_pk_mul_f32 {v(t+r,2)}, {v(t+r,2)}, {v(RI+2*qt,2)} op_sel_hi:[1,0]")
            for r in range(4): o(f"v_cvt_pk_bf16_f32 v{d+r}, v{t+2*r}, v{t+2*r+1}")
            o(f"buffer_store_dwordx4 {v(d,4)}, v{LX}, {srdn(sOF_SRD)}, s{sTMP} offen offset:{1024*qt} sc1")
        return o
    mix(pv(62, 0), Xl, 2); e(Xl, "s_waitcnt lgkmcnt(0)", fstamp(3, "last"))
    if X("oldlast"):
        mix(pv(62, 1, src=KF), r2); e("s_waitcnt lgkmcnt(0)"); mix(pv(62, 2), r3)
        e(norm(0), norm(1), "s_waitcnt lgkmcnt(0)", pv(62, 3, src=KF), norm(2), norm(3), norm(4), norm(5))
    else:
        mix(pv(62, 1, src=KF), r2); e(norm(0), "s_waitcnt lgkmcnt(0)")
        mix(pv(62, 2), r3); e(norm(1), norm(2), "s_waitcnt lgkmcnt(0)", pv(62, 3, src=KF), norm(3), norm(4), norm(5))
    CHK2[:] = wave0(chk)
    return e
CHK2 = []

def tail_end():
    e = E()
    XV = 232
    e("v_and_b32 v3, 15, v0", "v_mul_u32_u24 v3, 1280, v3", "v_lshrrev_b32 v4, 4, v0", "v_lshl_add_u32 v3, v4, 3, v3", fstamp(7, "tail"))
    e("s_waitcnt vmcnt(0) lgkmcnt(0)", fstamp(8, "tail"), "s_barrier", fstamp(9, "tail"), wave0(signal(4)))
    for nt in range(5): e(f"buffer_load_dwordx2 {v(XV+2*nt,2)}, v3, s[24:27], 0 offen offset:{32*nt}")
    e(f"s_and_b32 s42, s{sWAVE}, 1", "s_mul_i32 s42, s42, 10240", f"s_lshr_b32 s43, s{sWAVE}, 1", "s_mul_i32 s43, s43, 5120", "s_add_u32 s42, s42, s43",
      f"s_add_u32 s43, s42, {OWN}", f"v_add_u32 v5, s43, v{LX}")
    for i in range(5): e(f"ds_read_b128 {v(176+4*i,4)}, v5 offset:{1024*i}")
    e(f"s_mul_i32 s41, s{sSP}, 81920", "s_add_u32 s50, s41, s42", "s_add_u32 s51, s50, 20480", "s_add_u32 s52, s50, 40960", "s_add_u32 s53, s50, 61440")
    for src in range(4): e(f"s_cmp_eq_u32 s{sSP}, {src}", f"s_cselect_b32 s{50+src}, 0x10000000, s{50+src}")
    e(f"s_cmp_eq_u32 s{sSP}, 3", "s_cselect_b32 s56, 0, 1.0", "s_cselect_b32 s57, 1.0, 0", f"v_add_u32 v5, 4096, v{LX}", f"s_mov_b32 s38, {hx(f2u(-math.log2(math.e)))}")
    e(wave0(["v_lshlrev_b32 v2, 2, v0"] + poll(4, ("s44", "0"), "s48")), "s_barrier", stamp(4), fstamp(10, "tail"))
    def ldp(i):
        return [f"buffer_load_dwordx4 {v(16+16*i+4*src,4)}, v{LX if i < 4 else 5}, s[20:23], s{50+src} offen offset:{1024*(i%4)} sc1 ; @P{i}" for src in range(4)]
    AH_ = 5 if X("noil") else 2
    k0 = len(e)
    for i in range(AH_): e(ldp(i))
    e("s_waitcnt lgkmcnt(0)")
    for nt in range(5):
        S = 16 + 16*nt; G = S + 12; Xr = XV + 2*nt; t = 112 + 12*nt; W = 176 + 4*nt
        if nt + AH_ < 5: e(ldp(nt + AH_))
        e(f"s_waitcnt vmcnt(@P{nt})", fstamp(11, "tail") if nt == 0 else [])
        for r in range(4): e(f"v_add_f32 v{S+r}, v{S+r}, v{S+4+r}")
        for r in range(4): e(f"v_fmac_f32 v{G+r}, s57, v{W+r}")
        for r in range(4): e(f"v_add_f32 v{S+r}, v{S+r}, v{S+8+r}")
        for r in range(4): e(f"v_fmac_f32 v{S+r}, s56, v{W+r}")
        e(f"v_cvt_pk_bf16_f32 v{t+2}, v{G}, v{G+1}", f"v_cvt_pk_bf16_f32 v{t+3}, v{G+2}, v{G+3}",
          f"v_cvt_pk_bf16_f32 v{t}, v{S}, v{S+1}", f"v_cvt_pk_bf16_f32 v{t+1}, v{S+2}, v{S+3}")
        for k in range(2):
            e(f"v_lshlrev_b32 v{G+2*k}, 16, v{t+2+k}", f"v_and_b32 v{G+2*k+1}, 0xffff0000, v{t+2+k}",
              f"v_lshlrev_b32 v{S+2*k}, 16, v{t+k}", f"v_and_b32 v{S+2*k+1}, 0xffff0000, v{t+k}")
        for r in range(4): e(f"v_mul_f32 v{t+4+r}, s38, v{G+r}")
        for r in range(4): e(f"v_exp_f32 v{t+4+r}, v{t+4+r}")
        for r in range(4): e(f"v_add_f32 v{t+4+r}, 1.0, v{t+4+r}")
        for r in range(4): e(f"v_rcp_f32 v{t+4+r}, v{t+4+r}")
        for r in range(4): e(f"v_mul_f32 v{G+r}, v{G+r}, v{t+4+r}")
        e(f"v_cvt_pk_bf16_f32 v{t+2}, v{G}, v{G+1}", f"v_cvt_pk_bf16_f32 v{t+3}, v{G+2}, v{G+3}")
        for k in range(2): e(f"v_lshlrev_b32 v{G+2*k}, 16, v{t+2+k}", f"v_and_b32 v{G+2*k+1}, 0xffff0000, v{t+2+k}")
        for r in range(4): e(f"v_mul_f32 v{S+r}, v{S+r}, v{G+r}")
        e(f"v_cvt_pk_bf16_f32 v{t}, v{S}, v{S+1}", f"v_cvt_pk_bf16_f32 v{t+1}, v{S+2}, v{S+3}")
        for k in range(2):
            e(f"v_lshlrev_b32 v{S+2*k}, 16, v{t+k}", f"v_and_b32 v{S+2*k+1}, 0xffff0000, v{t+k}",
              f"v_lshlrev_b32 v{G+2*k}, 16, v{Xr+k}", f"v_and_b32 v{G+2*k+1}, 0xffff0000, v{Xr+k}")
        for r in range(4): e(f"v_add_f32 v{S+r}, v{S+r}, v{G+r}")
        e(f"v_cvt_pk_bf16_f32 v{t+8}, v{S}, v{S+1}", f"v_cvt_pk_bf16_f32 v{t+9}, v{S+2}, v{S+3}")
        e(f"buffer_store_dwordx2 {v(t+8,2)}, v3, s[28:31], 0 offen offset:{32*nt}" + (" sc1" if X("outsc1") else "") + (" nt" if X("outnt") else ""))
    e[k0:] = resolve(e[k0:], [])
    e(fstamp(12, "tail"))
    return e

def encode():
    en = [x for x in EXP[0].split() if x.startswith("enc:")]
    if not en: return []
    _, i, j, mult, W = en[0].split(":")
    return E()(f"s_cmp_lg_u32 s2, {W}", "s_cbranch_scc1 F_END", f"s_sub_u32 s66, s{88+int(j)}, s{88+int(i)}", f"s_mul_i32 s66, s66, {mult}", "s_add_u32 s66, s66, 15000",
               "F_ENC:", "s_memrealtime s[86:87]", "s_waitcnt lgkmcnt(0)", "s_sub_u32 s67, s86, s88", "s_cmp_lt_u32 s67, s66", "s_cbranch_scc1 F_ENC")

def gen(exp=""):
    sites.clear(); lab[0] = 0; EXP[0] = exp
    L = E()(kernel_head(NAME))
    if X("early0"): L("s_memrealtime s[100:101]")
    L("s_cmp_ge_u32 s2, 256", "s_cbranch_scc1 F_END")
    pro = front() + (cstamp(8) if X("qcyc") else [])
    qc, qfirst, q18 = qcounts()
    qloop = []; qfp = []; stubs = E()
    for u in range(6):
        b = qsub(u, last=40, vmw=qc[u])
        if u in qfirst:
            k = b.index(f"s_waitcnt vmcnt({qc[u]})")
            qfp += b[:k] + [f"s_waitcnt vmcnt({qfirst[u]})"] + b[k+1:]
            j = max(i for i in range(k) if b[i].startswith(MF))
            j = max(i for i in range(j) if b[i].startswith(MF))
            b = b[:j+1] + [f"s_cmp_eq_u32 s{sCNT}, 0"] + b[j+1:k] + [f"s_cbranch_scc1 F_QS{u}", b[k], f"F_QB{u}:"] + b[k+1:]
            stubs(f"F_QS{u}:", f"s_waitcnt vmcnt({qfirst[u]})", f"s_branch F_QB{u}")
        else: qfp += b
        qloop += b
    qctl = [f"s_add_u32 s{sCNT}, s{sCNT}, 1", f"s_cmp_lt_u32 s{sCNT}, 3", "s_cbranch_scc1 F_QL"]
    ex = {18: {}, 19: {}}
    for (kind, j), (u, g0) in zip([("K", 0), ("K", 1), ("V", 0), ("K", 2)], [(18, 4), (18, 20), (18, 36), (19, 4)]):
        m, d = kvgroup(kind, j)
        ex[u].setdefault(g0, []).extend(m)
        for t, dg in enumerate((1, 2, 3)): ex[u].setdefault(g0 + dg, []).append(d[t])
    rd = relayout_dst()
    if X("hfirst"):
        for k, g in enumerate(8*a_ + b_ for a_ in range(6) for b_ in range(3)): ex[18].setdefault(g, []).append(rd[k])
    else:
        for k, g in enumerate((36, 37, 38, 39, 44, 45, 46, 47, 52)): ex[19].setdefault(g, []).extend(rd[2*k:2*k+2])
    q19 = qsub(19, extra=ex[19])
    if X("hfirst"):
        q19, left = fill(q19, hops())
        if X("showcnt"): print("h ops left over:", len(left))
        q19 += left
    mid = qsub(18, extra=ex[18], vmw="@W19") + q19 + stamp(6) + fstamp(1, "conv") + (cstamp(9) if X("qcyc") else []) + convert() + fstamp(2, "conv") + init() + fstamp(7, "conv") + stamp(7) + (cstamp(8) if not (X("tcyc") or X("qcyc")) else [])
    keep = mid
    mid = [l + (" ; " + re.search(r"@\S+", k).group(0) if k.startswith("buffer_") and "@" in k and "@" not in l else "") for l, k in zip(resolve(mid, q18), keep)]
    ctl = [f"s_add_u32 s{sCNT}, s{sCNT}, 1", f"s_bitcmp1_b32 {hx(1 << 11 | 1 << 12 | 1 << 15)}, s{sCNT}", "s_cbranch_scc0 F_AL"]
    rlk = {1: "dma", 3: "out"} if not X("norl") else {}
    rlk.update({2: "tk", 0: "tv"}); mid = mid + [f"s_mov_b32 s{sCNT}, 0"]
    def mk(i, w): return step(i, vmw=w, tail=ctl if (i >= 3 and i % 4 == 2) else (), rl=rlk.get(i % 4) if i >= 3 else None)
    q = [re.search(r"@(\S+)", l).group(1) if "@" in l else "-" for l in mid if l.startswith("buffer_")]; cnts = {}
    for i in range(23):
        key = i if i < 3 else 3 + (i-3) % 4
        for l in mk(i, "?"):
            if "vmcnt(?)" in l:
                need = [f"K{i+2}"] + ([f"V{i}", f"V{i+1}"] if i % 2 == 0 else []) + (["R"] if i % 4 == 2 else [])
                c = len(q) - 1 - max(k for k, x in enumerate(q) if x in need)
                cnts[key] = min(cnts.get(key, 63), c)
            if l.startswith("buffer_"): q.append(re.search(r"@(\S+)", l).group(1))
    sites.clear()
    s0 = mk(0, cnts[0]) + mk(1, cnts[1]) + mk(2, cnts[2])
    body = [mk(i, cnts[i]) for i in range(3, 7)]
    def drop(pred):
        for k in range(4): body[k] = [l for l in body[k] if not pred(l)]
    if X("x_nobar"): drop(lambda l: l == "s_barrier")
    if X("x_nodma"): drop(lambda l: l.startswith("buffer_"))
    if X("x_nochk"): drop(lambda l: l.startswith("s_cbranch_vccnz"))
    if X("x_nolgkm"):
        for k in range(4): body[k] = [re.sub(r" lgkmcnt\(\d+\)", "", l) for l in body[k] if not l.startswith("s_waitcnt lgkmcnt")]
    if X("x_nods"): drop(lambda l: l.startswith("ds_"))
    if X("showcnt"): print("step counts", cnts, "q counts", qc)
    hooks = E()(f"s_cmp_eq_u32 s{sCNT}, 15", "s_cbranch_scc1 F_LAST", f"s_cmp_lg_u32 s{sWAVE}, 0", "s_cbranch_scc1 F_AL",
                f"s_cmp_eq_u32 s{sCNT}, 12", "s_cbranch_scc1 F_H1", signal(2), "s_mov_b32 s66, 4",
                "s_cmp_ge_u32 s2, 8", "s_cbranch_scc1 F_AL", srd(28, pDBG, pDBG+1, 64), "s_mov_b64 exec, 1",
                f"v_mov_b32 v{RLV}, 1", f"buffer_atomic_add v{RLV}, off, s[28:31], s66 sc0 sc1", "s_mov_b64 exec, -1", "s_branch F_AL",
                "F_H1:", "s_cmp_ge_u32 s2, 8", "s_cbranch_scc1 F_AL", "s_lshl_b32 s66, s2, 2", "s_add_u32 s66, s66, 32", "s_mov_b64 exec, 1",
                f"v_add_u32 v{RLV}, 1, v{RLV}", f"buffer_store_dword v{RLV}, off, s[28:31], s66 sc1", "s_mov_b64 exec, -1", "s_branch F_AL")
    last = (cstamp(9) if not (X("tcyc") or X("qcyc")) else []) + fstamp(1, "last") + laststep()
    h1 = E()(stamp(10), fstamp(1, "tail"), fstamp(5, "last"), "s_waitcnt vmcnt(24)", CHK2, roles(), fstamp(6, "last"), tail_setup(), tail_vsetup(), fstamp(7, "last"), "s_waitcnt vmcnt(0)", fstamp(8, "last"), fstamp(2, "tail"), "s_barrier", wave0(signal(3)), fstamp(3, "tail"))
    preS, bodyS, ctlS, cS = tloop(False)
    hS = E()(preS, cstamp(8) if X("tcyc") else [])
    sim = tpre(False) + [x for st in range(28) for x in tstage(st, False, cS)]
    q28 = [re.search(r"@(\S+)", l).group(1) for l in sim if l.startswith("buffer_")][-24:]
    finS = E()(resolve(tfinal(cS), q28), stamp(12), fstamp(6, "tail"), cstamp(9) if X("tcyc") else [])
    end = tail_end()
    L(pro, ".p2align 6", "F_QL:", qloop, qctl, mid, s0, ".p2align 6", "F_AL:", *body, hooks, "F_LAST:", last,
      h1, hS, ".p2align 6", "F_TLS:", bodyS, ctlS, finS, "F_TE:", end, stamp_flush(0, 13, pWS, f"s{sWAVE}"), encode(), "F_END:", "s_endpgm")
    for k, par in enumerate(sites):
        L(f"F_TR{k}:", f"s_call_b64 s[{sRET}:{sRET+1}], F_SLOW{par}", f"s_branch F_BK{k}")
    L(stubs, flagspin("F_TSP", "F_TSB"), slow(0), slow(1), slow(2), slow(3))
    flat = lambda Z: [y for x in Z for y in x]
    tr = pro + qfp + qctl + (qloop + qctl)*2 + mid + s0 + flat(body) + flat(body) + last + h1
    if "x_" in exp: return L, kernel_desc(NAME, 512, 256), "; @launch grid=(256,1,1) block=(256,1,1) lds=163840"
    check(tr + hS + (bodyS + ctlS)*7 + finS + end, "S")
    check(flagspin("A", "B") + bodyS, "spin")
    for n in range(4):
        b = body[n]
        idx = [i for i, x in enumerate(b) if x.startswith("F_BK")][0]
        check(body[(n-1) % 4] + b[:idx] + slow((3+n) % 4) + b[idx:] + body[(n+1) % 4], f"slow{n}")
    return L, kernel_desc(NAME, 512, 256), "; @launch grid=(256,1,1) block=(256,1,1) lds=163840"

def build(path, **kw):
    HDR = open("recurrent_scan__gqa_block_cached__dense_activation_relu__prompt.s.ref").read().split("; Override launch")[0]
    L, D, H = gen(**kw)
    L = [re.sub(r"\s*; @\S+$", "", l) for l in L]
    open(path, "w").write(HDR + H + "\n" + '.amdgcn_target "amdgcn-amd-amdhsa--gfx950"\n' + "\n".join(L) + "\n" + "\n".join(D) + "\n")
if __name__ == "__main__":
    for flag, mode in (("--ts", None), ("--tail", "tail"), ("--front", "front"), ("--last", "last"), ("--conv", "conv")):
        if flag in sys.argv:
            OPT["ts"] = True; OPT["mode"] = mode; sys.argv.remove(flag)
    build(sys.argv[1], exp=" ".join(sys.argv[2:]))
```

```python
from common import *
import re, sys

NAME = "recurrent_scan__gqa_block_cached__dense_activation_relu__prompt_kernel"
MF = "v_mfma_f32_16x16x32_bf16"
EXP = [""]
DEFAULTS = ["poll1", "touch3", "hfirst", "wfirst"]
def X(flag): return flag in EXP[0].split() or (flag in DEFAULTS and "no_" + flag not in EXP[0].split())

KR, VR = 0, 49152
WA, WB = 65536, 114688
ST = 122880
OWN = 81920
pX, pK, pV, pWQ, pWO, pWS, pW1, pW2, pOUT, pDBG = 4, 6, 8, 10, 68, 70, 72, 74, 76, 78
sK_SRD, sV_SRD, sWQ_SRD, sW1_SRD, sXF_SRD, sOF_SRD, sFL = 12, 16, 20, 24, 28, 32, 80
sWAVE, sHEAD, sM64, sKo = 36, 37, 38, 39
sMK, sMV, sMW = 40, 44, 48
sWq, sW1, sX, sCNT, sC, sTHR, sO, sVo, sRET = 54, 55, 56, 57, 58, 60, 61, 63, 64
sH = [6, 7, 62]
sTMP, sU, sT, sQB = 66, 67, 84, 85
sRSRC, sRDST, sRM, sRS = 8, 20, 24, 25
QV, NM, S0, S1, P, KF, VF, ET, T_, L_ = 16, 48, 64, 96, 112, 176, 200, 224, 232, 236
AK, AV, DK, DV, CK, LX, RLV = 240, 242, 246, 249, 224, 253, 254
AF, DA, DB, DH, AWA, AWB, AH, LXB, LX8, LXB2 = 16, 40, 44, 46, 192, 200, 204, 207, 208, 209
CSCALE = math.log2(math.e) / math.sqrt(192.0)
THR = 2.0 ** 30
SPIN = 1 << 18

def srdn(b): return f"s[{b}:{b+3}]"
class E(list):
    def __call__(self, *x):
        for y in x:
            if isinstance(y, list): self.extend(y)
            else: self.append(y)
        return self
lab = [0]
def newlab(p):
    lab[0] += 1; return f"F_{p}{lab[0]}"
def wave0(body):
    l = newlab("W")
    return E()(f"s_cmp_lg_u32 s{sWAVE}, 0", f"s_cbranch_scc1 {l}", body, f"{l}:")

def poll(phase, mask, soff, wide=False, vaddr="v2"):
    l, d = newlab("P"), newlab("D")
    e = E()
    e(f"s_mov_b32 exec_lo, {mask[0]}", f"s_mov_b32 exec_hi, {mask[1]}", f"s_add_u32 s{sTMP}, s{sT}, {phase}", f"s_mov_b32 s{sU}, 0")
    if wide:
        e(f"{l}:", f"buffer_load_dwordx4 v[4:7], {vaddr}, {srdn(sFL)}, {soff} offen sc1", "s_waitcnt vmcnt(0)")
        for r in range(4): e(f"v_subrev_u32 v{4+r}, s{sTMP}, v{4+r}")
        e("v_max3_u32 v4, v4, v5, v6", "v_max_u32 v4, v4, v7")
        e(f"v_cmp_lt_u32 vcc, {4-phase}, v4", f"s_add_u32 s{sU}, s{sU}, 1", f"s_cmp_gt_u32 s{sU}, {SPIN}", f"s_cbranch_scc1 {d}", f"s_cbranch_vccnz {l}")
    elif X("poll1"):
        e(f"{l}:", f"buffer_load_dword v4, {vaddr}, {srdn(sFL)}, {soff} offen sc1", "s_waitcnt vmcnt(0)", f"v_subrev_u32 v4, s{sTMP}, v4")
        e(f"v_cmp_lt_u32 vcc, {4-phase}, v4", f"s_add_u32 s{sU}, s{sU}, 1", f"s_cmp_gt_u32 s{sU}, {SPIN}", f"s_cbranch_scc1 {d}", f"s_cbranch_vccnz {l}")
    else:
        ld = lambda r: f"buffer_load_dword v{r}, {vaddr}, {srdn(sFL)}, {soff} offen sc1"
        e(ld(8), "s_sleep 4", ld(9), "s_sleep 4", ld(10), f"{l}:")
        for r in (8, 9, 10):
            e("s_waitcnt vmcnt(2)", f"v_subrev_u32 v11, s{sTMP}, v{r}", f"v_cmp_lt_u32 vcc, {4-phase}, v11", f"s_add_u32 s{sU}, s{sU}, 1", ld(r), "s_nop 0", f"s_cbranch_vccz {d}")
        e(f"s_cmp_le_u32 s{sU}, {SPIN}", f"s_cbranch_scc1 {l}")
    e(f"{d}:", "s_mov_b64 exec, -1")
    return e
def signal(phase):
    return E()(f"s_add_u32 s{sTMP}, s{sT}, {phase}", f"s_lshl_b32 s{sU}, s{sQB}, 5", f"s_add_u32 s{sU}, s{sU}, s{sHEAD}", f"s_lshl_b32 s{sU}, s{sU}, 2",
               f"v_mov_b32 v4, s{sTMP}", "v_mov_b32 v5, 0", "s_mov_b64 exec, 1",
               f"buffer_store_dword v4, v5, {srdn(sFL)}, s{sU} offen sc1", "s_mov_b64 exec, -1")

def qacc(ds, tb, qt):
    n = (ds*2 + tb)*4 + qt
    return R("a", 4*n) if n < 24 else R("v", 48 + 4*(n-24))
def hacc(tt, qt): return R("v", 144 + 4*(tt*4 + qt))
def BF(s, kk, qt): return a(96 + 32*(s % 3) + 16*kk + 4*qt, 4)
def ldB(s): return [f"buffer_load_dwordx4 {BF(s,kk,qt)}, v{LXB2 if kk else LXB}, {srdn(sXF_SRD)}, s{sX} offen offset:{1024*qt} sc1 ; @B{s}" for kk in range(2) for qt in range(4)]
advX = [f"s_add_u32 s{sX}, s{sX}, 8192"]
advW = [f"s_add_u32 s{sWq}, s{sWq}, 786432", f"s_add_u32 s{sW1}, s{sW1}, 196608"]
def dmaW(u):
    if u % 2 == 0: return [f"buffer_load_dwordx4 v{DA+t}, {srdn(sWQ_SRD)}, s{sWq} offen offset:{1024*t} lds ; @W{u}" for t in range(4)]
    return [f"buffer_load_dwordx4 v{DB+t}, {srdn(sWQ_SRD)}, s{sWq} offen offset:{1024*t} lds ; @W{u}" for t in range(2)] + \
           [f"buffer_load_dwordx4 v{DH+t}, {srdn(sW1_SRD)}, s{sW1} offen offset:{1024*(t+2)} lds ; @W{u}" for t in range(2)]
TCH, TCD = 210, 212
sTq, sT1 = 64, 65
def touch(): return [f"buffer_load_dword v{TCD}, v{TCH}, {srdn(sWQ_SRD)}, s{sTq} offen ; @T", f"buffer_load_dword v{TCD}, v{TCH+1}, {srdn(sW1_SRD)}, s{sT1} offen offset:3072 ; @T"]
def TPS(): return [int(x[3:]) for x in EXP[0].split() if x.startswith("tps")] or ([] if X("notps") else [3])
def advT_():
    n = 1 if TPS() else 3
    return [f"s_add_u32 s{sTq}, s{sTq}, {n*786432}", f"s_add_u32 s{sT1}, s{sT1}, {n*196608}"]
def touch_addr(nst):
    return E()("v_mul_u32_u24 v1, 171, v0", "v_lshrrev_b32 v1, 9, v1", "v_mul_u32_u24 v2, 3, v1", "v_sub_u32 v2, v0, v2",
               "v_lshrrev_b32 v3, 1, v1", "v_and_b32 v1, 1, v1", "v_lshl_add_u32 v1, v3, 6, v1", f"v_add_u32 v1, s66, v1",
               "v_mul_lo_u32 v1, v1, s67", "v_lshl_add_u32 v1, v2, 7, v1", f"v_cmp_gt_u32 vcc, {6*nst}, v0", "v_bfrev_b32 v8, 1",
               "v_lshrrev_b32 v3, 2, v0", "v_bfe_u32 v2, v0, 1, 1", f"v_cndmask_b32 v{TCH}, v8, v1, vcc",
               "v_lshl_add_u32 v3, v3, 6, v2", "v_add_u32 v3, s66, v3", f"v_cmp_gt_u32 vcc, {4*nst}, v0", "v_mul_u32_u24 v3, 3072, v3",
               "v_and_b32 v2, 1, v0", "v_mul_u32_u24 v2, 92, v2", "v_add_u32 v3, v3, v2", f"v_cndmask_b32 v{TCH+1}, v8, v3, vcc")
def m0W(u): return f"s_mov_b32 m0, s{sMW + u % 6}"
def qorder(s): return list(range(8)) + ([12, 13, 14, 8, 9, 10, 11] if s == 9 and X("hfirst") else list(range(8, 15)))
def qrd(s, pos, kk, uu):
    T = qorder(s)[pos]
    dst = v(AF + 8*(pos % 3) + 4*kk + 2*uu, 2)
    if T < 8: return f"ds_read_b64_tr_b16 {dst}, v{AWA + T} offset:{(s % 3)*16384 + kk*8192 + uu*1024}"
    reg = AWB + T - 8 if T < 12 else AH + T - 12
    return f"ds_read_b64_tr_b16 {dst}, v{reg} offset:{(s % 3)*16384 + kk*8192 + uu*512}"
def qsub(u, last=20, extra=None, vmw=None):
    extra = extra or {}
    s = u >> 1; TL = list(range(8)) if u % 2 == 0 else list(range(8, 15)); nT = len(TL)
    L = []
    lb = ldB(s + 2) if (u % 2 == 0 and s + 2 < last//2) else []
    dw = dmaW(u + 5) if u + 5 < last else []
    for ti, T in enumerate(TL):
        for p in range(4):
            qt = p if T % 2 == 0 else 3 - p
            TT = qorder(s)[T]
            acc = (qacc(TT >> 1, TT & 1, qt) if TT < 12 else hacc(TT-12, qt))(4)
            for kk in range(2):
                g = 2*p + kk; gi = 8*ti + g
                L.append(f"{MF} {acc}, {v(AF + 8*(T % 3) + 4*kk, 4)}, {BF(s, kk, qt)}, {acc}")
                s2, T2 = s + (T+2)//15, (T+2) % 15
                if g < 4:
                    if 2*s2 < last: L.append(qrd(s2, T2, g >> 1, g & 1))
                    if g == 3:
                        left = 15*(last//2) - 1 - (15*s + T)
                        if left >= 1: L.append(f"s_waitcnt lgkmcnt({4 if left >= 2 else 0})")
                if lb and ti < 4 and g in (4, 6): L.append(lb[2*ti + (g-4)//2])
                if lb and ti == 4 and g == 4: L += advX
                if u % 6 == 2 and last > 20 and X("kvq"):
                    if ti == 4 and g == 5: L += [f"s_cmp_eq_u32 s{sCNT}, 1", "s_cselect_b32 s66, 0, s3"]
                    if ti == 4 and g == 6: L.append(f"buffer_load_dword v{TCD}, v{KVT}, {srdn(sK_SRD)}, s66 offen ; @T")
                    if ti == 5 and g == 4: L.append(f"buffer_load_dword v{TCD}, v{KVT}, {srdn(sV_SRD)}, s66 offen ; @T")
                if u % (2 if TPS() else 6) == 0 and last > 20 and not X("notouch"):
                    if ti == 4 and g == 6: L.append(touch()[0])
                    if ti == 5 and g == 4: L.append(touch()[1])
                    if ti == 5 and g == 5: L += advT_()
                if ti == nT-3 and g == 6 and dw: L.append(m0W(u+5))
                if ti == nT-3 and g == 7 and vmw is not None: L += [f"s_waitcnt vmcnt({vmw})", "s_barrier"]
                if dw and ti >= nT-2 and g in (4, 6): L.append(dw[2*(ti-nT+2) + (g-4)//2])
                if dw and u % 2 == 0 and ti == nT-1 and g == 7: L += advW
                L += extra.get(gi, [])
    return L
def qcounts():
    q = ["B1"]*8 + (["W2"]*4 + ["W3"]*4 + ["W4"]*4 if X("lateW") else [])
    out = {}; first = {}
    for u in range(18):
        for l in qsub(u, last=40, vmw="?"):
            if "vmcnt(?)" in l:
                need = ["W%d" % (u+1)] + (["B%d" % ((u+1)//2)] if u % 2 else [])
                idx = [i for i, x in enumerate(q) if x in need]
                if idx:
                    c = len(q) - 1 - max(idx)
                    if u < 6: first[u] = c
                    else: out[u % 6] = min(out.get(u % 6, 63), c)
            if l.startswith("buffer_"): q.append(re.search(r"@(\S+)", l).group(1))
    return out, {u: c for u, c in first.items() if c < out[u]}, q

def fill(L, ops):
    gaps = []
    for l in L:
        if l.startswith(MF) or not gaps: gaps.append([l])
        else: gaps[-1].append(l)
    ops = list(ops)
    for gi, g in enumerate(gaps):
        rest = [x for x in g[1:] if not x.endswith(":")]
        ds = any(x.startswith("ds_") for x in rest); vm = any(x.startswith("buffer_") for x in rest)
        nv = sum(x.startswith("v_") for x in rest); ns = len(rest) - nv - ds - vm
        if vm or "s_barrier" in rest: continue
        free = (1 - nv - ns) if ds else (2 - nv - max(0, ns - 1))
        while ops and ops[0][0] <= gi and free > 0:
            if ops[0][1] == "m":
                if ds or rest or len(g) > 1: break
                g.append(ops.pop(0)[2]); free = 0
            else: g.append(ops.pop(0)[2]); free -= 1
    return [x for g in gaps for x in g] , [x[2] for x in ops]
def hops():
    o = []
    for tt in range(3):
        for p in range(4):
            qt = p if (8 + tt) % 2 == 0 else 3 - p
            h = hacc(tt, qt); d = 2 + 2*((4*tt + p) % 6); g0 = 8*tt + 2*p + 1 + 6
            o += [(g0, "a", f"v_cvt_pk_bf16_f32 v{d}, {h(1,0)}, {h(1,1)}"), (g0, "a", f"v_cvt_pk_bf16_f32 v{d+1}, {h(1,2)}, {h(1,3)}"),
                  (g0, "a", f"v_pk_max_i16 v{d}, v{d}, 0"), (g0, "a", f"v_pk_max_i16 v{d+1}, v{d+1}, 0"),
                  (g0, "m", f"buffer_store_dwordx2 {v(d,2)}, v{LX8}, {srdn(sOF_SRD)}, s{sH[tt]} offen offset:{1024*qt} sc1")]
    return o
def convert():
    e = E()("s_nop 7")
    early = X("earlyk")
    k = 0
    late = X("lateh")
    if late: e(f"v_mov_b32 v14, v{LX8}")
    for tt in range(3 if not X("hfirst") else 0):
        for qt in range(4):
            h = hacc(tt, qt); d = 144 + 2*k if late else 2 + 2*(k % 6); k += 1
            e(f"v_cvt_pk_bf16_f32 v{d}, {h(1,0)}, {h(1,1)}", f"v_cvt_pk_bf16_f32 v{d+1}, {h(1,2)}, {h(1,3)}",
              f"v_pk_max_i16 v{d}, v{d}, 0", f"v_pk_max_i16 v{d+1}, v{d+1}, 0")
            if not late and not X("x_nohst"): e(f"buffer_store_dwordx2 {v(d,2)}, v{LX8}, {srdn(sOF_SRD)}, s{sH[tt]} offen offset:{1024*qt} sc1")
    if early:
        e("s_waitcnt vmcnt(@K0)", "s_barrier", [rdK(0, 0, ds) for ds in range(6)], [rdK(0, 1, ds, VF) for ds in range(6)])
        m, d = kvgroup("V", 1); e(m, d)
        m, d = kvgroup("K", 3); e(m, d[:2])
    for ds in (3, 4, 5, 0, 1, 2):
        dsts = []
        for qt in range(4):
            f = ds*4 + qt
            Xr, Yr = qacc(ds, 0, qt), qacc(ds, 1, qt)
            if Xr.f == "a":
                tx, ty = R("v", (192 if late else 144) + 8*qt), R("v", (196 if late else 148) + 8*qt)
                for r in range(4): e(f"v_accvgpr_read_b32 {tx(1,r)}, {Xr(1,r)}")
                for r in range(4): e(f"v_accvgpr_read_b32 {ty(1,r)}, {Yr(1,r)}")
                Xr, Yr = tx, ty
            d = QV + 4*(f-16) if f >= 16 else (224 if early else 176) + 4*qt
            dsts.append(d)
            for Z in (Xr, Yr):
                if X("nopk"):
                    for r in range(4): e(f"v_mul_f32 {Z(1,r)}, s{sC}, {Z(1,r)}")
                else:
                    for r in (0, 2): e(f"v_pk_mul_f32 {Z(2,r)}, {Z(2,r)}, s[{sC}:{sC+1}]")
            e(f"v_cvt_pk_bf16_f32 v{d}, {Xr(1,0)}, {Xr(1,1)}", f"v_cvt_pk_bf16_f32 v{d+1}, {Xr(1,2)}, {Xr(1,3)}",
              f"v_cvt_pk_bf16_f32 v{d+2}, {Yr(1,0)}, {Yr(1,1)}", f"v_cvt_pk_bf16_f32 v{d+3}, {Yr(1,2)}, {Yr(1,3)}")
        e("s_mov_b32 exec_lo, 0")
        for d in dsts: e(f"v_swap_b32 v{d}, v{d+2}", f"v_swap_b32 v{d+1}, v{d+3}")
        e("s_mov_b32 exec_lo, -1")
        if ds < 4:
            for qt in range(4):
                for r in range(4): e(f"v_accvgpr_write_b32 a{192 + 4*(ds*4+qt) + r}, v{dsts[qt]+r}")
    return e

def hstores(): return [f"buffer_store_dwordx2 {v(144 + 2*k, 2)}, v14, {srdn(sOF_SRD)}, s{sH[k//4]} offen offset:{1024*(k%4)} sc1 ; @H" for k in range(12)]

def Qf(f): return a(192 + 4*f, 4) if f < 16 else v(QV + 4*(f-16), 4)
def Oacc(dt, qt): return (dt*4 + qt)*4
def dmaK(t): return f"buffer_load_dwordx4 v{DK+t}, {srdn(sK_SRD)}, s{sKo} offen offset:{1024*t} lds"
def dmaV(t): return f"buffer_load_dwordx4 v{DV+t}, {srdn(sV_SRD)}, s{sVo} offen offset:{1024*t} lds"
def kvgroup(kind, j):
    so = sKo if kind == "K" else sVo
    return [f"s_mov_b32 m0, s{(sMK if kind=='K' else sMV) + j}", f"s_mov_b32 s{so}, {12288*j}"], [(dmaK(t) if kind == "K" else dmaV(t)) + f" ; @{kind}{j}" for t in range(3)]
def rdK(slot, kt, ds, dst=KF): return f"ds_read_b128 {v(dst+4*ds,4)}, v{AK+(ds&1)} offset:{slot*12288 + kt*6144 + (ds>>1)*128}"
def Pb(t): return P + 16*(t % 4)
def rdVp(m2, part, dst=VF):
    return [f"ds_read_b64_tr_b16 {v(dst + 8*dl + 4*tl + 2*u, 2)}, v{AV + ((3*part+dl) & 3)} offset:{((m2+tl) % 4)*12288 + u*6144 + ((3*part+dl) >> 2)*128}"
            for dl in range(3) for tl in range(2) for u in range(2)]
def qk(dst, src=KF, czero=False):
    o = []
    for qt in range(4):
        for ds in range(6):
            d = v(dst+4*qt, 4)
            c = ("0" if czero else v(NM+4*qt, 4)) if ds == 0 else d
            o.append(f"{MF} {d}, {v(src+4*ds,4)}, {Qf(ds*4+qt)}, {c}")
    return o
def pv(m2, part, czero=False, src=VF):
    o = []
    for dl in range(3):
        for p in range(4):
            qt = p if (3*part + dl) % 2 == 0 else 3 - p
            acc = a(Oacc(3*part+dl, qt), 4)
            for tl in range(2):
                o.append(f"{MF} {acc}, {v(src + 8*dl + 4*tl, 4)}, {v(Pb(m2+tl) + 4*qt, 4)}, {'0' if czero and tl == 0 else acc}")
    return o
def sm(src, qts, Pb, kt):
    Ex, Sx = [], []
    k = 0
    for qt in qts:
        for pr in range(2):
            t0 = ET + 2*k; t1 = t0 + 1; k += 1
            Ex += [f"v_exp_f32 v{t0}, v{src+4*qt+2*pr}", f"v_exp_f32 v{t1}, v{src+4*qt+2*pr+1}"]
            n = len(Ex)
            if kt == 0 and pr == 0: Sx.append((n, f"v_add_f32 v{T_+qt}, v{t0}, v{t1}"))
            else: Sx += [(n-1, f"v_add_f32 v{T_+qt}, v{T_+qt}, v{t0}"), (n, f"v_add_f32 v{T_+qt}, v{T_+qt}, v{t1}")]
            Sx.append((n, f"v_cvt_pk_bf16_f32 v{Pb+4*qt+2*kt+pr}, v{t0}, v{t1}"))
    return Ex, Sx
def quarter(mf, pat, Ex, Sx, D, B, salu):
    assert len(pat) == len(mf) == 24, (pat, len(pat))
    out = []; ei = si = di = bi = 0
    for gi, m in enumerate(mf):
        out.append(m); ty = pat[gi]
        sc = salu.get(gi, [])
        def take(n):
            nonlocal si
            r = []
            while n > 0 and si < len(Sx) and Sx[si][0] <= ei: r.append(Sx[si][1]); si += 1; n -= 1
            return r
        if ty == "e": out += sc + [Ex[ei]]; ei += 1
        elif ty == "d": out += [D[di]] + take(1) + sc; di += 1
        elif ty == "a": out += sc + take(2)
        elif ty == "1": out += sc + take(1)
        elif ty == "b": out += sc + [B[bi]]; bi += 1
        elif ty == "-": out += sc
        else: raise ValueError(ty)
    assert ei == len(Ex) and si == len(Sx) and di == len(D) and bi == len(B), (pat, ei, len(Ex), si, len(Sx), di, len(D), bi, len(B))
    return out
P1 = "ee" + "de"*6 + "d"*6 + "a1b-"
P2 = "de"*6 + "ee" + "baabaa" + "----"
P3 = "ed"*8 + "dddd" + "b---"
P4 = "ebeb" + "de"*6 + "aaa" + "-----"
CHK = [f"v_max3_f32 v{CK}, v{T_}, v{T_+1}, v{T_+2}", f"v_max_f32 v{CK}, v{CK}, v{T_+3}", f"v_cmp_lt_f32 vcc, s{sTHR}, v{CK}"]
LADD = [f"v_add_f32 v{L_+q}, v{L_+q}, v{T_+q}" for q in range(4)]
sites = []
def callsite(par):
    k = len(sites); sites.append(par)
    return [f"s_cbranch_vccnz F_TR{k}", f"F_BK{k}:"]
def step(i, vmw=12, tail=(), rl=None):
    par, slot = i & 1, i % 4
    S0n = S0 + 16*(1-par); Pc = Pb(i); Pn = Pb(i+1)
    m2 = i-1 if par else i-2
    p0 = 0 if par else 2
    nopv = i == 0; cz = i in (1, 2)
    mK = lambda j: f"s_mov_b32 m0, s{sMK + j % 4}"
    mV = lambda j: f"s_mov_b32 m0, s{sMV + j % 4}"
    aK = f"s_add_u32 s{sKo}, s{sKo}, 12288"; aV = f"s_add_u32 s{sVo}, s{sVo}, 12288"
    if par:
        B1 = [dmaV(2) + f" ; @V{i+1}"]; B2 = [dmaV(0) + f" ; @V{i+2}", dmaV(1) + f" ; @V{i+2}"]; B3 = [dmaV(2) + f" ; @V{i+2}"]
        B4 = [dmaK(0) + f" ; @K{i+4}", dmaK(1) + f" ; @K{i+4}"]; m2_, a2, a3, m4 = mV(i+2), aV, aV, mK(i+4)
    else:
        B1 = [dmaK(2) + f" ; @K{i+3}"]; B2 = [dmaK(0) + f" ; @K{i+4}", dmaK(1) + f" ; @K{i+4}"]; B3 = [dmaK(2) + f" ; @K{i+4}"]
        B4 = [dmaV(0) + f" ; @V{i+2}", dmaV(1) + f" ; @V{i+2}"]; m2_, a2, a3, m4 = mK(i+4), aK, aK, mV(i+2)
    L = []
    def emit(mf, pat, Ex, Sx, D, B, sal):
        if mf is None:
            sc = [x for g in sorted(sal) for x in sal[g] if not x.startswith("s_waitcnt")]
            hs = hstores()[6*emit.n:6*emit.n+6] if X("lateh") else []; emit.n += 1
            mixed = []
            for k, x in enumerate(Ex):
                mixed.append(x)
                if k < len(hs): mixed.append(hs[k])
            return D + sc + ["s_nop 3"] + B + mixed + [x for _, x in Sx] + ["s_waitcnt lgkmcnt(0)"]
        return quarter(mf, pat, Ex, Sx, D, B, sal)
    emit.n = 0
    Ex, Sx = sm(S1, [2, 3], Pc, 1)
    D1 = rdVp(m2, p0) if not nopv else []
    L += quarter(qk(S0n), P1 if D1 else P1.replace("d", "1"), Ex, Sx + [(8, x) for x in CHK], D1, B1, {23: ["s_waitcnt lgkmcnt(6)"]} if D1 else {})
    L += callsite(i % 4)
    Ex, Sx = sm(S0n, [0, 1], Pn, 0)
    pat = P2; D = [rdK((slot+1) % 4, 1, ds) for ds in range(6)]; B = B2
    sal = {3: [a2], 7: ["s_waitcnt lgkmcnt(4)"], 13: [m2_], 23: ["s_waitcnt lgkmcnt(0)"]}
    if rl == "dma":
        pat = P2[:20] + "b---"; B = B + [rl_dma() + " ; @R"]
        sal.update({18: [f"s_cmp_lt_u32 s{sCNT}, 9"], 19: [f"s_mov_b32 m0, s{sRM}"], 21: [f"s_cselect_b32 s{sTMP}, 128, s3", f"s_cselect_b32 s{sRI}, 1024, 0"],
                    22: [m2_, f"s_add_u32 s{sRS}, s{sRS}, s{sTMP}"], 23: ["s_waitcnt lgkmcnt(0)", f"s_add_u32 s{sRM}, s{sRM}, s{sRI}"]})
    if rl in ("tk", "tv"):
        pat = P2[:20] + "b---"
        B = B + [f"buffer_load_dword v1, v{KVT}, {srdn(sK_SRD if rl == 'tk' else sV_SRD)}, s{sKT} offen ; @T"]
        if rl == "tk": sal[22] = [f"s_add_u32 s{sKT}, s{sKT}, 49152"]
    if rl == "out":
        pat = P2[:20] + "dad-"; D = D + [rl_rd(0), rl_rd(1)]; sal[23] = ["s_waitcnt lgkmcnt(2)"]
        xs = [(8, f"v_xor_b32 v{RTD+2}, s{sRX}, v{RTV}"), (8, f"v_add_u32 v{RTD+2}, s{sRU}, v{RTD+2}")]
    if rl == "out":
        q = quarter(pv(m2, p0, cz), pat.replace("dad-", "d-d-"), Ex, [(0, x) for x in LADD] + Sx, D, B, sal)
        k = q.index(rl_rd(0)); L += q[:k+2] + [x for _, x in xs] + q[k+2:]
    else: L += emit(None if nopv else pv(m2, p0, cz), pat, Ex, [(0, x) for x in LADD] + Sx, D, B, sal)
    Ex, Sx = sm(S0n, [2, 3], Pn, 0)
    D3 = rdVp(m2, p0+1) if not nopv else []
    sal = {21: [a3], 23: [f"s_waitcnt vmcnt({vmw}) lgkmcnt(0)", "s_barrier"]}
    L += quarter(qk(S1), P3 if D3 else P3.replace("d", "1"), Ex, Sx, D3, B3, sal)
    Ex, Sx = sm(S1, [0, 1], Pn, 1)
    sal = {0: [m4], 22: ["s_waitcnt lgkmcnt(0)"]}
    pat = P4; B = B4
    tail = list(tail)
    if tail:
        sal[19] = tail[:1]; sal[20] = tail[1:2]; sal[23] = tail[2:]
    if rl == "out":
        pat = P4[:19] + "b1---"; B = B + [rl_st() + " ; @S"]
        sal.update({5: [f"s_cmp_lt_u32 s{sCNT}, 10"], 7: [f"s_cselect_b32 s{sRJ}, 1024, 0"], 9: [f"s_sub_u32 s{sTMP}, s{sCNT}, 1"],
                    11: [f"s_cmp_lt_u32 s{sTMP}, 10"], 13: [f"s_cselect_b32 s{sTMP}, s{sRO}, s3"], 15: [f"s_cselect_b32 s{sRI}, 4096, 0"],
                    16: [f"s_add_u32 s{sRO}, s{sRO}, s{sRI}"], 17: [f"s_lshr_b32 s{sRI}, s{sRI}, 10"], 18: [f"s_add_u32 s{sRR}, s{sRR}, s{sRI}"],
                    20: [f"s_cmp_gt_u32 s{sRR}, 9"], 21: [f"s_cselect_b32 s{sRI}, {WF160 - 10240}, 0", f"s_cselect_b32 s{sTMP}, 10, 0"],
                    22: ["s_waitcnt lgkmcnt(0)", f"s_add_u32 s{sRO}, s{sRO}, s{sRI}"], 23: [f"s_sub_u32 s{sRR}, s{sRR}, s{sTMP}"]})
        Sx = Sx + [(8, f"v_add_u32 v{RTV}, s{sRJ}, v{RTV}")]
    L += emit(None if nopv else pv(m2, p0+1, cz), pat, Ex, Sx, [rdK((slot+2) % 4, 0, ds) for ds in range(6)], B, sal)
    return L
sRJ, sKT, KVT = 59, 58, 252
def kv_touch_addr(D):
    return E()(f"s_lshl_b32 s66, s{sQB}, 2", f"s_add_u32 s66, s66, s{sWAVE}", "s_mul_i32 s66, s66, 1536", "v_lshlrev_b32 v3, 7, v0", "v_add_u32 v3, s66, v3",
               "v_cmp_gt_u32 vcc, 12, v0", "v_bfrev_b32 v2, 1", "s_nop 0", f"v_cndmask_b32 v{KVT}, v2, v3, vcc")
def xlane(op, dst, tmp):
    L = []
    for sw in ("v_permlane16_swap_b32", "v_permlane32_swap_b32"):
        L += [f"v_mov_b32 v{tmp+qt}, v{dst+qt}" for qt in range(4)] + ["s_nop 1"]
        L += [f"{sw} v{dst+qt}, v{tmp+qt}" for qt in range(4)]
        L += [f"{op} v{dst+qt}, v{dst+qt}, v{tmp+qt}" for qt in range(4)]
    return L
def rowmax(dst, srcs, tmp):
    L = []
    for qt in range(4):
        r = srcs(qt); d = dst + qt
        L += [f"v_max3_f32 v{d}, v{r[0]}, v{r[1]}, v{r[2]}", f"v_max3_f32 v{d}, v{d}, v{r[3]}, v{r[4]}",
              f"v_max3_f32 v{d}, v{d}, v{r[5]}, v{r[6]}", f"v_max_f32 v{d}, v{d}, v{r[7]}"]
    return L + xlane("v_max_f32", dst, tmp)
def init():
    e = E()
    if not X("earlyk"):
        e("s_waitcnt vmcnt(@K0)", "s_barrier", fstamp(3, "conv"))
        for ds in range(6): e(rdK(0, 0, ds))
        for ds in range(6): e(rdK(0, 1, ds, VF))
        m, d = kvgroup("V", 1); e(m, d)
        m, d = kvgroup("K", 3); e(m, d[:2])
    e(f"s_mov_b32 s{sKT}, {4*12288}")
    for _ in range(2):
        e(f"buffer_load_dword v1, v{KVT}, {srdn(sK_SRD)}, s{sKT} offen ; @T", f"buffer_load_dword v1, v{KVT}, {srdn(sV_SRD)}, s{sKT} offen ; @T", f"s_add_u32 s{sKT}, s{sKT}, 49152")
    e(f"s_mov_b32 s{sVo}, {2*12288}")
    for q in range(4): e(f"v_mov_b32 v{L_+q}, 0")
    e(fstamp(4, "conv"), "s_waitcnt lgkmcnt(6)", qk(S0, KF, True), "s_waitcnt vmcnt(@K1) lgkmcnt(0)", "s_barrier", fstamp(5, "conv"))
    m = qk(S1, VF, True)
    rd = [rdK(1, 0, ds) for ds in range(6)]
    for i, x in enumerate(m):
        e(x)
        if i < 6: e(rd[i])
    e("s_nop 7", fstamp(6, "conv"))
    D, TM = 2, 6
    e(rowmax(D, lambda qt: [S0+4*qt+r for r in range(4)] + [S1+4*qt+r for r in range(4)], TM))
    for qt in range(4): e(f"v_ceil_f32 v{D+qt}, v{D+qt}")
    for qt in range(4):
        for r in range(4):
            e(f"v_sub_f32 v{NM+4*qt+r}, 0, v{D+qt}", f"v_sub_f32 v{S0+4*qt+r}, v{S0+4*qt+r}, v{D+qt}", f"v_sub_f32 v{S1+4*qt+r}, v{S1+4*qt+r}, v{D+qt}")
    for src, qts, kt in ((S0, [0, 1], 0), (S0, [2, 3], 0), (S1, [0, 1], 1)):
        Ex, Sx = sm(src, qts, Pb(0), kt)
        e(Ex, [x for _, x in Sx])
    e("s_waitcnt lgkmcnt(0)")
    return e
def slow(k):
    par = k & 1
    S0c = S0 + 16*par; S0n = S0 + 16*(1-par)
    e = E()(f"F_SLOW{k}:", "s_nop 7", "s_nop 7")
    D, TM = 2, 6
    e(rowmax(D, lambda qt: [S0c+4*qt+r for r in range(4)] + [S1+4*qt+r for r in range(4)], TM))
    for qt in range(4): e(f"v_max_f32 v{D+qt}, 0, v{D+qt}", f"v_ceil_f32 v{D+qt}, v{D+qt}", f"v_sub_f32 v{TM+qt}, 0, v{D+qt}", f"v_cvt_i32_f32 v{TM+qt}, v{TM+qt}")
    for qt in range(4):
        e(f"v_ldexp_f32 v{L_+qt}, v{L_+qt}, v{TM+qt}")
        for base in (NM, S0c, S1, S0n):
            for r in range(4): e(f"v_sub_f32 v{base+4*qt+r}, v{base+4*qt+r}, v{D+qt}")
    for t in ([k-1] if par else [k-1, k-2]):
        for qt in range(4):
            for r in range(4):
                p = Pb(t) + 4*qt + r
                e(f"v_lshlrev_b32 v10, 16, v{p}", f"v_and_b32 v11, 0xffff0000, v{p}", f"v_ldexp_f32 v10, v10, v{TM+qt}", f"v_ldexp_f32 v11, v11, v{TM+qt}",
                  f"v_cvt_pk_bf16_f32 v{p}, v10, v11")
    for dt in range(12):
        for qt in range(4):
            b = Oacc(dt, qt)
            for r in range(2):
                e(f"v_accvgpr_read_b32 v10, a{b+2*r}", f"v_accvgpr_read_b32 v11, a{b+2*r+1}", f"v_ldexp_f32 v10, v10, v{TM+qt}", f"v_ldexp_f32 v11, v11, v{TM+qt}",
                  f"v_accvgpr_write_b32 a{b+2*r}, v10", f"v_accvgpr_write_b32 a{b+2*r+1}, v11")
    for src, qts, kt in ((S0c, [0, 1], 0), (S0c, [2, 3], 0), (S1, [0, 1], 1), (S1, [2, 3], 1)):
        Ex, Sx = sm(src, qts, Pb(k), kt)
        e(Ex, [x for _, x in Sx])
    e("s_nop 1", f"s_setpc_b64 s[{sRET}:{sRET+1}]")
    return e

def relayout_src():
    return E()("s_cmp_lt_u32 s2, 192", f"s_cselect_b32 s{sRSRC}, s{pWO}, s{pW2}", f"s_cselect_b32 s{sRSRC+1}, s{pWO+1}, s{pW2+1}", "s_cselect_b32 s66, 0, 192",
               "s_sub_u32 s66, s2, s66", "s_mul_i32 s66, s66, 40960", f"s_add_u32 s{sRSRC}, s{sRSRC}, s66", f"s_addc_u32 s{sRSRC+1}, s{sRSRC+1}, 0",
               "s_cmp_lt_u32 s2, 240", f"s_cselect_b32 s{sRSRC+2}, 40960, 0", f"s_mov_b32 s{sRSRC+3}, 0x20000")
def relayout_dst():
    return E()("s_mul_i32 s66, s2, 10240", f"s_add_u32 s67, s66, {hx(WS_WF)}", f"s_sub_u32 s{sRDST+2}, {4*WF160}, s66",
               "s_cmp_lt_u32 s2, 240", f"s_cselect_b32 s{sRDST+2}, s{sRDST+2}, 0", f"s_cselect_b32 s67, s67, {hx(WS_WF)}",
               f"s_add_u32 s{sRDST}, s{pWS}, s67", f"s_addc_u32 s{sRDST+1}, s{pWS+1}, 0", f"s_mov_b32 s{sRDST+3}, 0x20000",
               f"s_mul_i32 s{sRM}, s{sWAVE}, 10240", f"s_add_u32 s{sRM}, s{sRM}, {ST}", f"s_mov_b32 s{sRS}, 0",
               f"s_lshl_b32 s{sRO}, s{sWAVE}, 10", f"s_mov_b32 s{sRR}, s{sWAVE}",
               "s_cmp_lt_u32 s2, 192", f"s_cselect_b32 s{sRX}, 0, 64", f"s_mov_b32 s{sRU}, 512", f"s_cselect_b32 s{sRU}, 20480, s{sRU}")
RTV, RTD = 255, 12
sRO, sRR, sRI = 26, 27, 62
def relayout_vaddr():
    return E()(f"s_mov_b32 s67, {ST - 1024}", _relayout_vaddr())
def _relayout_vaddr():
    return E()("v_lshrrev_b32 v1, 2, v0", "v_and_b32 v1, 7, v1", "v_lshlrev_b32 v2, 7, v1", "v_lshrrev_b32 v3, 5, v0", "v_mul_u32_u24 v3, 10240, v3", "v_add_u32 v2, v2, v3",
               "v_and_b32 v3, 3, v0", "v_lshl_add_u32 v2, v3, 3, v2", f"v_add_u32 v2, {ST - 1024}, v2", "v_lshrrev_b32 v1, 1, v1", "v_lshlrev_b32 v1, 5, v1",
               f"s_lshl_b32 s66, s{sWAVE}, 5", "v_xor_b32 v1, s66, v1", "v_add_u32 v4, v1, v2",
               "v_lshrrev_b32 v1, 4, v0", "v_mul_u32_u24 v1, 10240, v1", "v_bfe_u32 v2, v0, 2, 2", "v_lshl_add_u32 v1, v2, 7, v1", "v_lshl_add_u32 v1, v3, 3, v1",
               "v_lshrrev_b32 v2, 1, v2", "v_lshlrev_b32 v2, 5, v2", "v_xor_b32 v2, s66, v2", f"v_add3_u32 v1, v1, v2, s67",
               "s_cmp_lt_u32 s2, 192", "s_cselect_b64 vcc, -1, 0", f"v_cndmask_b32 v{RTV}, v1, v4, vcc")
def rl_dma(): return f"buffer_load_dwordx4 v{RLV}, {srdn(sRSRC)}, s{sRS} offen lds"
sRX, sRU = 48, 49
def rl_rd(u): return f"ds_read_b64_tr_b16 {v(RTD+2*u,2)}, v{RTV if u == 0 else RTD+2}"
def rl_st(): return f"buffer_store_dwordx4 {v(RTD,4)}, v{LX}, {srdn(sRDST)}, s{sTMP} offen sc1"

def front():
    e = E()
    e("s_load_dwordx8 s[4:11], s[0:1], 0", f"s_load_dwordx2 s[{pWO}:{pWO+1}], s[0:1], 32", f"s_load_dwordx4 s[{pW1}:{pW1+3}], s[0:1], 48",
      f"s_load_dwordx4 s[{pOUT}:{pOUT+3}], s[0:1], 64", f"s_load_dwordx2 s[{pWS}:{pWS+1}], s[0:1], 80")
    if not X("nopf"):
        e("s_getpc_b64 s[66:67]", "F_PC:", "v_lshrrev_b32 v1, 6, v0", "s_lshr_b32 s62, s2, 3", "s_mul_i32 s62, s62, 1536", "s_add_u32 s62, s62, 8192 - 512",
          "v_and_b32 v2, 63, v0", "v_lshlrev_b32 v4, 7, v2", "v_and_b32 v2, 3, v0", "v_lshl_add_u32 v2, v1, 2, v2", "v_lshlrev_b32 v2, 7, v2", "v_add_u32 v2, s62, v2",
          "v_cmp_eq_u32 vcc, 0, v1", "v_mov_b32 v5, s67", "s_nop 0", "v_cndmask_b32 v4, v2, v4, vcc", "v_min_u32 v4, F_END-F_PC, v4",
          "v_add_co_u32 v4, vcc, s66, v4", "s_nop 1", "v_addc_co_u32 v5, vcc, 0, v5, vcc", f"global_load_dword v{TCD+1}, v[4:5], off")
    e(wave_id(f"s{sWAVE}"), stamp(0), "s_mov_b32 s3, 0x10000000")
    if X("early0"): e("s_mov_b32 s88, s100")
    e("s_and_b32 s66, s2, 7", "s_lshl_b32 s66, s66, 2", "s_lshr_b32 s67, s2, 3", "s_and_b32 s67, s67, 3", f"s_add_u32 s{sHEAD}, s66, s67",
      f"s_lshr_b32 s{sQB}, s2, 5", f"s_lshl_b32 s66, s{sQB}, 2", f"s_add_u32 s{sM64}, s66, s{sWAVE}")
    e(f"s_lshl_b32 s66, s{sQB}, 5", f"s_add_u32 s66, s66, s{sHEAD}", "s_lshl_b32 s66, s66, 2", f"s_add_u32 s66, s66, s{sWAVE}", "s_lshl_b32 s62, s66, 1",
      "s_mul_i32 s66, s62, 1280",
      "v_lshrrev_b32 v1, 5, v0", "v_and_b32 v2, 31, v0", "v_mul_u32_u24 v3, 1280, v1", "v_lshl_add_u32 v3, v2, 3, v3",
      f"v_lshlrev_b32 v{LX}, 4, v0", f"s_or_b32 s{sKo}, s2, s{sWAVE}")
    e("s_waitcnt lgkmcnt(0)", fstamp(1))
    e(srd(12, pX, pX+1, 2560, "s66"))
    XR, XX = 64, 80
    for m in range(5): e(f"buffer_load_dwordx2 {v(XR+2*m,2)}, v3, s[12:15], 0 offen offset:{256*m}")
    e(srd(sFL, pWS, pWS+1, 1024, WS_FL), f"s_cmp_eq_u32 s{sKo}, 0", f"s_cselect_b32 s{sFL+2}, 1024, 0",
      f"buffer_load_dwordx4 v[76:79], v{LX}, {srdn(sFL)}, 0 offen sc1", f"s_mov_b32 s{sFL+2}, 1024")
    e("s_lshr_b32 s66, s62, 6", f"s_mul_i32 s66, s66, {XF_BLK}", "s_and_b32 s67, s62, 63", "s_lshl_b32 s67, s67, 6", "s_add_u32 s66, s66, s67",
      f"s_sub_u32 s67, {XF_BLK}, s67")
    e(srd(16, pWS, pWS+1, "s67", "s66"))
    e("v_lshrrev_b32 v13, 3, v2", "v_lshlrev_b32 v13, 12, v13", "v_lshl_add_u32 v13, v1, 6, v13", "v_and_b32 v3, 7, v0", "v_lshl_add_u32 v13, v3, 3, v13")
    e(f"s_mul_i32 s66, s{sHEAD}, 384", "s_sub_u32 s67, 7864320, s66"); e(srd(sWQ_SRD, pWQ, pWQ+1, "s67", "s66"))
    e(f"s_mul_i32 s66, s{sHEAD}, 96", "s_sub_u32 s67, 1969152, s66", f"s_sub_u32 s{pW1}, s{pW1}, 3072", f"s_subb_u32 s{pW1+1}, s{pW1+1}, 0")
    e(srd(sW1_SRD, pW1, pW1+1, "s67", "s66"))
    e(f"s_lshl_b32 s66, s{sWAVE}, 4", "s_mov_b32 s67, 12288")
    e("v_lshrrev_b32 v1, 4, v0", "v_and_b32 v2, 15, v0", "v_lshlrev_b32 v3, 1, v1", "v_xor_b32 v2, v2, v3", "v_add_u32 v3, s66, v1", "v_mul_lo_u32 v3, v3, s67",
      f"v_lshl_add_u32 v{DA}, v2, 4, v3", f"v_add_u32 v{DA+1}, {4*12288 - 1024}, v{DA}", "v_xor_b32 v2, 8, v2", "v_lshl_add_u32 v3, v2, 4, v3",
      f"v_add_u32 v{DA+2}, {8*12288 - 2048}, v3", f"v_add_u32 v{DA+3}, {12*12288 - 3072}, v3")
    e("v_lshrrev_b32 v1, 3, v0", "v_and_b32 v2, 7, v0", "v_and_b32 v3, 2, v1", "v_xor_b32 v2, v2, v3", "v_add_u32 v3, s66, v1", "v_mul_lo_u32 v4, v3, s67",
      "v_add_u32 v4, 256, v4", f"v_lshl_add_u32 v{DB}, v2, 4, v4", "v_xor_b32 v5, 4, v2", "v_lshl_add_u32 v4, v5, 4, v4", f"v_add_u32 v{DB+1}, {8*12288 - 1024}, v4",
      "v_mul_u32_u24 v3, 3072, v3", "v_bfrev_b32 v8, 1", "v_cmp_gt_u32 vcc, 6, v2", "v_lshl_add_u32 v6, v2, 4, v3", "v_add_u32 v6, 1024, v6",
      f"v_cndmask_b32 v{DH}, v8, v6, vcc", "v_cmp_gt_u32 vcc, 6, v5", "v_lshl_add_u32 v6, v5, 4, v3", f"v_add_u32 v6, {8*3072}, v6",
      f"v_cndmask_b32 v{DH+1}, v8, v6, vcc")
    e(f"s_lshl_b32 s66, s{sWAVE}, 12")
    for u in range(6): e(f"s_add_u32 s{sMW+u}, s66, {(WB if u % 2 else WA) + 16384*(u >> 1)}")
    e(f"s_mov_b32 s{sWq}, 0", f"s_mov_b32 s{sW1}, 0")
    NE = 5 if X("allW") else 2
    def wgrp(lo, hi):
        o = E()
        for u in range(lo, hi):
            o(m0W(u), "s_nop 0", dmaW(u))
            if u % 2: o(advW)
        return o
    e(wgrp(0, NE))
    NT = 0 if X("notouch") else 2
    if NT:
        e(f"s_lshl_b32 s66, s{sQB}, 3", f"s_lshl_b32 s67, s{sWAVE}, 1", "s_add_u32 s66, s66, s67", "s_mov_b32 s67, 12288", touch_addr(4),
          f"s_mov_b32 s{sTq}, 786432", f"s_mov_b32 s{sT1}, 196608")
        tch = touch()
        if X("touch2") or X("touch3") or X("touch4"): NT = 0
        else: e(tch)
    e(fstamp(2), f"s_waitcnt vmcnt({4*NE + NT})", stamp(1), fstamp(3))
    l1 = newlab("T")
    e(srd(12, pDBG, pDBG+1, 4), "v_mov_b32 v27, 0", f"s_cmp_lg_u32 s{sKo}, 0", f"s_cbranch_scc1 {l1}")
    e("v_and_b32 v1, 15, v0", "v_lshlrev_b32 v1, 2, v1", "ds_write_b32 v1, v27")
    for r in range(4):
        e(f"v_bfe_u32 v{4+r}, v{76+r}, 3, 9", f"v_lshrrev_b32 v{8+r}, 5, v{4+r}", f"v_lshlrev_b32 v{8+r}, 2, v{8+r}",
          f"v_and_b32 v{4+r}, 31, v{4+r}", f"v_lshlrev_b32_e64 v{4+r}, v{4+r}, 1")
    for r in range(4): e(f"ds_or_b32 v{8+r}, v{4+r}")
    e("ds_read_b32 v2, v1", "s_waitcnt lgkmcnt(0)", "v_not_b32 v2, v2", "v_ffbl_b32 v2, v2", "v_cmp_ne_u32 vcc, -1, v2",
      "s_nop 4", "s_ff1_i32_b64 s66, vcc", "s_nop 1", "v_readlane_b32 s67, v2, s66", "s_nop 4", "s_lshl_b32 s66, s66, 5", "s_add_u32 s66, s66, s67",
      "s_lshl_b32 s66, s66, 3", "s_or_b32 s66, s66, 0x40000000", "v_mov_b32 v26, s66",
      "s_mov_b64 exec, 1", "buffer_store_dword v26, v27, s[12:15], 0 offen sc1", "s_mov_b64 exec, -1", f"{l1}:")
    for i in range(10): e(f"v_lshlrev_b32 v{XX+2*i}, 16, v{XR+i}", f"v_and_b32 v{XX+2*i+1}, 0xffff0000, v{XR+i}")
    def reduce32(r, t):
        o = []
        for sh in (8, 4, 2, 1): o += ["s_nop 1", f"v_add_f32_dpp {r}, {r}, {r} row_ror:{sh} row_mask:0xf bank_mask:0xf"]
        return o + [f"v_mov_b32 {t}, {r}", "s_nop 1", f"v_permlane16_swap_b32 {r}, {t}", f"v_add_f32 {r}, {r}, {t}"]
    e(f"v_add_f32 v10, v{XX}, v{XX+1}", f"v_add_f32 v11, v{XX+2}, v{XX+3}")
    for i in range(4, 20, 2): e(f"v_add_f32 v10, v10, v{XX+i}", f"v_add_f32 v11, v11, v{XX+i+1}")
    e("v_add_f32 v10, v10, v11", reduce32("v10", "v11"))
    e(f"s_mov_b32 s66, {hx(f2u(1.0/640))}", "v_mul_f32 v10, s66, v10", "v_mov_b32 v11, 0", "v_mov_b32 v12, 0")
    for i in range(0, 20, 2):
        e(f"v_sub_f32 v1, v{XX+i}, v10", f"v_sub_f32 v2, v{XX+i+1}, v10", "v_fmac_f32 v11, v1, v1", "v_fmac_f32 v12, v2, v2")
    e("v_add_f32 v11, v11, v12", reduce32("v11", "v12"), "v_mul_f32 v11, s66, v11")
    e("v_cvt_pk_bf16_f32 v10, v10, v11", "v_and_b32 v11, 0xffff0000, v10", "v_lshlrev_b32 v10, 16, v10")
    e(f"v_add_f32 v11, {hx(f2u(1e-5))}, v11", "v_cvt_pk_bf16_f32 v11, v11, v11", "v_lshlrev_b32 v11, 16, v11",
      "v_sqrt_f32 v11, v11", "s_nop 0", "v_cvt_pk_bf16_f32 v11, v11, v11", "v_lshlrev_b32 v11, 16, v11", "v_rcp_f32 v11, v11", "s_nop 0")
    for i in range(10):
        a0, a1 = XX+2*i, XX+2*i+1
        e(f"v_sub_f32 v{a0}, v{a0}, v10", f"v_sub_f32 v{a1}, v{a1}, v10", f"v_cvt_pk_bf16_f32 v1, v{a0}, v{a1}",
          f"v_lshlrev_b32 v{a0}, 16, v1", f"v_and_b32 v{a1}, 0xffff0000, v1",
          f"v_mul_f32 v{a0}, v{a0}, v11", f"v_mul_f32 v{a1}, v{a1}, v11", f"v_cvt_pk_bf16_f32 v{XR+i}, v{a0}, v{a1}")
        if i % 2: e(f"s_mov_b32 s66, {16384*(i//2)}", f"buffer_store_dwordx2 {v(XR+i-1,2)}, v13, s[16:19], s66 offen sc1")
    e(stamp(2), fstamp(4))
    e("v_lshrrev_b32 v1, 4, v0", "v_lshrrev_b32 v2, 2, v0", "v_and_b32 v2, 3, v2", "v_and_b32 v3, 3, v0",
      "v_and_b32 v5, 1, v1", "v_lshlrev_b32 v4, 1, v2", "v_lshl_or_b32 v4, v5, 3, v4",
      "v_lshl_add_u32 v6, v1, 3, v2", "v_lshlrev_b32 v6, 8, v6", f"v_add_u32 v6, {WA}, v6", "v_lshrrev_b32 v7, 1, v3")
    for T in range(8):
        e(f"v_or_b32 v8, {4*(T >> 1)}, v3", "v_xor_b32 v8, v8, v4", "v_lshl_add_u32 v8, v8, 4, v6", f"v_xor_b32 v9, {T & 1}, v7", f"v_lshl_add_u32 v{AWA+T}, v9, 3, v8")
    e("v_and_b32 v4, 2, v2", "v_lshl_or_b32 v4, v5, 2, v4",
      "v_lshl_add_u32 v6, v5, 3, v2", "v_lshlrev_b32 v6, 7, v6", "v_lshrrev_b32 v8, 1, v1", "v_lshl_add_u32 v6, v8, 12, v6", f"v_add_u32 v6, {WB}, v6")
    for T in range(4):
        e(f"v_or_b32 v8, {4*(T >> 1)}, v3", "v_xor_b32 v8, v8, v4", "v_lshl_add_u32 v8, v8, 4, v6", f"v_xor_b32 v9, {T & 1}, v7", f"v_lshl_add_u32 v{AWB+T}, v9, 3, v8")
    e("v_add_u32 v6, 2048, v6", "v_lshl_add_u32 v6, v3, 3, v6")
    for tt in range(3): e(f"v_xor_b32 v8, {2*tt}, v4", f"v_lshl_add_u32 v{AH+tt}, v8, 4, v6")
    e(fstamp(5))
    lp, ld = newlab("P"), newlab("D")
    tagpoll = E()(f"s_mov_b32 s{sU}, 0", f"{lp}:", "buffer_load_dword v26, v27, s[12:15], 0 offen sc1", "s_waitcnt vmcnt(0)", f"v_readfirstlane_b32 s{sT}, v26",
                  f"s_add_u32 s{sU}, s{sU}, 1", f"s_cmp_gt_u32 s{sU}, {SPIN}", f"s_cbranch_scc1 {ld}",
                  f"s_cmp_eq_u32 s{sT}, 0", f"s_cbranch_scc1 {lp}", f"{ld}:")
    e(wave0(tagpoll), "s_waitcnt vmcnt(0)", fstamp(6), "s_barrier", stamp(3), fstamp(7))
    e(wave0(signal(1)), fstamp(8))
    if not X("allW") and not X("lateW"): e(wgrp(NE, 5))
    if X("touch2"): e(tch)
    e("v_lshrrev_b32 v1, 3, v0", "v_and_b32 v2, 7, v0", f"s_mul_i32 s62, s{sWAVE}, 3072", f"s_lshl_b32 s66, s{sWAVE}, 2")
    for t in range(3):
        e(f"v_add_u32 v3, {8*t}, v1", "v_mul_u32_u24 v4, 171, v3", "v_lshrrev_b32 v4, 9, v4",
          "v_lshrrev_b32 v5, 1, v4", "v_add_u32 v6, s66, v5", "v_and_b32 v6, 7, v6", "v_xor_b32 v6, v2, v6",
          "v_lshlrev_b32 v7, 7, v1", "v_add_u32 v7, s62, v7", f"v_lshl_add_u32 v{DK+t}, v6, 4, v7",
          "v_and_b32 v5, 3, v5", "v_lshlrev_b32 v5, 1, v5", "v_xor_b32 v5, v2, v5", f"v_lshl_add_u32 v{DV+t}, v5, 4, v7")
    for i in range(4): e(f"s_add_u32 s{sMK+i}, s62, {KR + 12288*i}", f"s_add_u32 s{sMV+i}, s62, {VR + 12288*i}")
    e("v_and_b32 v3, 6, v1", "v_xor_b32 v3, v2, v3", "v_mul_u32_u24 v4, 1280, v1", "v_lshl_add_u32 v4, v3, 4, v4", f"s_mul_i32 s66, s{sWAVE}, 10240", f"v_add_u32 v{RLV}, s66, v4")
    e(f"s_mul_i32 s66, s{sM64}, {XF_BLK}")
    if WS_XF: e(f"s_add_u32 s66, s66, {hx(WS_XF)}")
    e(srd(sXF_SRD, pWS, pWS+1, XF_BLK, "s66"))
    e("v_and_b32 v1, 15, v0", "v_lshrrev_b32 v2, 4, v0", "v_lshlrev_b32 v1, 6, v1", f"v_lshl_add_u32 v{LXB}, v2, 4, v1", f"v_add_u32 v{LXB2}, 4096, v{LXB}",
      "v_lshrrev_b32 v3, 1, v2", "v_and_b32 v2, 1, v2", "v_lshrrev_b32 v1, 2, v1", "v_lshl_add_u32 v1, v3, 8, v1", f"v_lshl_add_u32 v{LX8}, v2, 3, v1",
      f"s_mov_b32 s{sX}, 0")
    e(f"s_mul_i32 s66, s{sHEAD}, 786432"); e(srd(sK_SRD, pK, pK+1, 786432, "s66"), srd(sV_SRD, pV, pV+1, 786432, "s66"), relayout_src())
    e(f"s_mul_i32 s66, s{sM64}, {OF_BLK}", f"s_add_u32 s66, s66, {hx(WS_OF)}"); e(srd(sOF_SRD, pWS, pWS+1, OF_BLK, "s66"))
    e(f"s_mov_b32 s{sC}, {hx(f2u(CSCALE))}", f"s_mov_b32 s{sC+1}, {hx(f2u(CSCALE))}", f"s_mov_b32 s{sTHR}, {hx(f2u(THR))}")
    e(f"s_mul_i32 s{sO}, s{sHEAD}, 24576")
    for tt in range(3):
        e(f"s_mul_i32 s66, s{sHEAD}, 3", f"s_add_u32 s66, s66, {tt}", "s_and_b32 s67, s66, 1", "s_lshl_b32 s67, s67, 9",
          "s_lshr_b32 s66, s66, 1", "s_add_u32 s66, s66, 192", "s_lshl_b32 s66, s66, 12", f"s_add_u32 s{sH[tt]}, s66, s67")
    e("v_lshrrev_b32 v1, 4, v0", "v_and_b32 v3, 3, v0",
      "v_lshrrev_b32 v5, 2, v0", "v_mul_u32_u24 v6, 384, v5", f"v_add_u32 v6, {VR}, v6", "v_lshl_add_u32 v6, v3, 3, v6",
      "v_lshrrev_b32 v5, 1, v5", "v_and_b32 v5, 3, v5", "v_lshlrev_b32 v5, 1, v5")
    for sg in range(4): e(f"v_xor_b32 v8, {2*sg}, v5", f"v_lshl_add_u32 v{AV+sg}, v8, 4, v6")
    e("v_and_b32 v2, 15, v0", "v_mul_u32_u24 v6, 384, v2", "v_lshrrev_b32 v2, 1, v2", "v_xor_b32 v2, v2, v1")
    e(f"v_lshl_add_u32 v{AK}, v2, 4, v6", "v_xor_b32 v2, 4, v2", f"v_lshl_add_u32 v{AK+1}, v2, 4, v6", relayout_vaddr(), kv_touch_addr(None), fstamp(9))
    if not X("notouch"):
        e(f"s_lshl_b32 s66, s{sQB}, 3", f"s_lshl_b32 s67, s{sWAVE}, 1", "s_add_u32 s66, s66, s67", "s_mov_b32 s67, 12288", touch_addr(1 if TPS() else 3),
          f"s_mov_b32 s{sTq}, {(TPS()[0] if TPS() else 3 if X('touch3') else 5)*786432}", f"s_mov_b32 s{sT1}, {(TPS()[0] if TPS() else 3 if X('touch3') else 5)*196608}")
    if X("pre2"): e(f"s_mov_b32 s{sTq}, {2*786432}", f"s_mov_b32 s{sT1}, {2*196608}", touch(), advT_())
    for i in range(96): e(f"v_accvgpr_write_b32 a{i}, 0")
    for i in range(48, 192): e(f"v_mov_b32 v{i}, 0")
    e("s_waitcnt vmcnt(0)")
    e(wave0([f"v_lshlrev_b32 v2, 2, v0", f"s_lshl_b32 s{sCNT}, s{sQB}, 7"] + poll(1, ("-1", "0"), f"s{sCNT}")))
    e("s_barrier", fstamp(10))
    for k in range(2): e(ldB(k), advX)
    e([qrd(0, T, kk, uu) for T in range(2) for kk in range(2) for uu in range(2)], wgrp(NE, 5) if X("lateW") else [])
    e(f"s_mov_b32 s{sCNT}, 0", fstamp(11), f"s_waitcnt vmcnt({20 if X('lateW') else 8}) lgkmcnt(4)", stamp(5), fstamp(12))
    return e

TB, TA, TAD, TD, TB8 = 16, 96, 160, 162, 164
sTW, sTB, sMT, sSP = 39, 58, 40, 54
LEAD = 3
def tacc(nt, qt): return (nt*2 + qt)*4
def t_rd(st, nt, kk, dst):
    slot = st % 4
    return f"ds_read_b128 {v(dst, 4)}, v{TAD + slot//3} offset:{(slot%3)*20480 + (kk*10 + nt)*1024}"
def t_A(st, nt, kk): return TA + 8*((10*st + nt) % 4) + 4*kk
def t_B(st, kk, qt): return TB + 16*(st % 4) + 8*kk + 4*qt
def t_ldB(st, g):
    if not g: return [f"buffer_load_dwordx4 {v(t_B(st,kk,qt), 4)}, v{LX}, s[16:19], s{sTB + kk} offen offset:{1024*qt} sc1 ; @B{st}" for kk in range(2) for qt in range(2)]
    return [f"buffer_load_dwordx2 {v(t_B(st,kk,qt) + 2*h, 2)}, v{TB8}, s[16:19], s{sTB + kk} offen offset:{1024*qt + 512*h} sc1 ; @B{st}" for kk in range(2) for qt in range(2) for h in range(2)]
t_advB = [f"s_add_u32 s{sTB}, s{sTB}, 8192", f"s_add_u32 s{sTB+1}, s{sTB+1}, 8192"]
def t_dmaW(st, t): return f"buffer_load_dwordx4 v{TD + (t == 4)}, s[12:15], s{sTW} offen offset:{1024*(t%4)} {'' if X('wplain') else 'sc1 '}lds ; @W{st}"
def t_m0(st, t): return f"s_add_u32 m0, s{sMT}, {(st%4)*20480 + (4096 if t == 4 else 0)}"
t_advW = [f"s_add_u32 s{sTW}, s{sTW}, 20480"]
def tplan(g):
    if g: pl = {2: ("W", LEAD-1, 3), 3: ("B", 0), 6: ("B", 1), 7: ("B", 2), 11: ("W", LEAD-1, 4), 10: ("B", 3), 14: ("B", 4), 15: ("B", 5), 19: ("B", 6), 22: ("B", 7)}
    else: pl = {2: ("W", LEAD-1, 3), 6: ("B", 0), 11: ("W", LEAD-1, 4), 15: ("B", 1), 19: ("B", 2), 23: ("B", 3)}
    pl.update({30: ("W", LEAD, 0), 34: ("W", LEAD, 1), 38: ("W", LEAD, 2)})
    return pl
sIT, sCP, sNW, sNB, sNF, sDA, sDB, FV, FA_ = 50, 52, 53, 49, 47, 45, 43, 166, 165
sFM, sFB = 60, 62
def decode():
    return [f"s_and_b32 s{sDA}, s{sIT}, 7", f"s_lshl_b32 s{sDA}, s{sDA}, 2", f"s_lshr_b32 s{sDA}, s{sCP}, s{sDA}", f"s_and_b32 s{sDA}, s{sDA}, 15",
            f"s_bfe_u32 s{sDB}, s{sIT}, 0x20003", f"s_mul_i32 s{sNF}, s{sDA}, s{sFM}", f"s_add_u32 s{sNF}, s{sNF}, s{sFB}",
            f"s_mul_i32 s{sDA}, s{sDA}, 3", f"s_add_u32 s{sDA}, s{sDA}, s{sDB}", f"s_mul_i32 s{sNW}, s{sDA}, 81920", f"s_lshl_b32 s{sNB}, s{sDA}, 15"]
shiftIT = f"s_lshr_b64 s[{sIT}:{sIT+1}], s[{sIT}:{sIT+1}], 5"
def flagld(): return f"buffer_load_dword v{FV}, v{FA_}, {srdn(sFL)}, s{sNF} offen sc1 ; @F"
def flagchk(): return [f"v_subrev_u32 v{FV}, s{sT}, v{FV}", f"v_subrev_u32 v{FV}, 3, v{FV}", f"v_cmp_lt_u32 vcc, 1, v{FV}"]
def flagspin(entry, back):
    l = newlab("S")
    return E()(f"{entry}:", f"s_mov_b32 s{sU}, 0", f"{l}:", flagld(), "s_waitcnt vmcnt(0)", flagchk(), f"s_add_u32 s{sU}, s{sU}, 1", f"s_cmp_gt_u32 s{sU}, {SPIN}",
               f"s_cbranch_scc1 {back}", f"s_cbranch_vccnz {l}", f"s_branch {back}")
def tstage(st, g, vmw, last=1 << 30, nextA=None):
    L = []
    pl = tplan(g)
    ldb = t_ldB(st + LEAD, g)
    for p in range(20):
        nt = p >> 1; qt = (p & 1) ^ (nt & 1)
        for kk in range(2):
            gi = 2*p + kk
            acc = a(tacc(nt, qt), 4)
            L.append(f"{MF} {acc}, {v(t_A(st,nt,kk), 4)}, {v(t_B(st,kk,qt), 4)}, {acc}")
            if gi % 4 < 2:
                st2, nt2 = st + (nt+3)//10, (nt+3) % 10
                if st2 == st or nextA is None: L.append(t_rd(st2, nt2, gi % 4, t_A(st2, nt2, gi % 4)))
                else: L.append(nextA[2*nt2 + gi % 4])
                if gi % 4 == 1: L.append("s_waitcnt lgkmcnt(4)")
                if gi == 28 and st + LEAD < last: L.append(t_m0(st + LEAD, 0))
                if gi == 4 and st + LEAD - 1 < last: L.append(t_m0(st + LEAD - 1, 4))
                dyn = not g and last > 32
                if gi == 12 and st + LEAD - 1 < last: L += [f"s_mov_b32 s{sTW}, s{sNW}"] if dyn and st % 4 == 1 else t_advW
                if gi == 24 and st + LEAD < last: L.append(f"s_mov_b32 s{sTB}, s{sNB}" if dyn and st % 4 == 0 else t_advB[0])
                if gi == 32 and st + LEAD < last: L.append(f"s_add_u32 s{sTB+1}, s{sNB}, 4096" if dyn and st % 4 == 0 else t_advB[1])
            if not g and last > 32:
                if st % 4 == 2:
                    dc = [shiftIT] + decode()
                    pos = {0: dc[0:1], 3: dc[1:3], 7: dc[3:5], 8: dc[5:6], 10: dc[6:8], 14: dc[8:10], 16: dc[10:11], 18: dc[11:12]}
                    L += pos.get(gi, [])
                    if gi == 26: L.append(flagld())
                if st % 4 == 0:
                    fc = flagchk()
                    if gi == 31: L += fc[:2]
                    if gi == 35: L += fc[2:]
                    if gi == 39: L += ["s_cbranch_vccnz F_TSP", "F_TSB:"]
            if gi in pl:
                x = pl[gi]
                if x[0] == "W":
                    if st + x[1] < last: L.append(t_dmaW(st + x[1], x[2]))
                elif st + LEAD < last: L.append(ldb[x[1]])
            if gi == 27: L += [f"s_waitcnt vmcnt({vmw})", "s_barrier"]
    return L
def tpreW():
    e = E()
    for st in range(LEAD-1):
        e(t_m0(st, 0), "s_nop 0", [t_dmaW(st, t) for t in range(4)], t_m0(st, 4), "s_nop 0", t_dmaW(st, 4), t_advW)
    return e(t_m0(LEAD-1, 0), "s_nop 0", [t_dmaW(LEAD-1, t) for t in range(3)])
def tpreB():
    e = E()
    for st in range(LEAD): e(t_ldB(st, False), t_advB)
    return e
def tpre(g=False):
    if X("wfirst"): return tpreW() + tpreB()
    e = E()
    for st in range(LEAD-1):
        e(t_m0(st, 0), "s_nop 0", [t_dmaW(st, t) for t in range(4)], t_m0(st, 4), "s_nop 0", t_dmaW(st, 4), t_advW, t_ldB(st, g), t_advB)
    e(t_ldB(LEAD-1, g), t_advB, t_m0(LEAD-1, 0), "s_nop 0", [t_dmaW(LEAD-1, t) for t in range(3)])
    return e
def tcounts():
    L = tpre()
    for st in range(12): L = L + tstage(st, False, f"@W{st+1},@B{st+1}")
    L = [l for l in L if not l.startswith(("s_cbranch", "F_"))]
    c = [int(re.search(r"vmcnt\((\d+)\)", l).group(1)) for l in resolve(L, []) if "vmcnt" in l]
    steady = [min(c[4+k], c[8+k]) for k in range(4)]
    return steady, {k: c[k] for k in range(4) if c[k] < steady[k]}
tstubs = []
def tloop():
    steady, first = tcounts()
    dec1 = E()(f"s_mov_b32 s{sTW}, s{sNW}", f"s_mov_b32 s{sTB}, s{sNB}", f"s_add_u32 s{sTB+1}, s{sNB}, 4096")
    wait0 = E()(f"s_cmp_eq_u32 s{sSP}, 3", "s_cbranch_scc1 F_T0B", flagspin("F_T0", "F_T0B"), "F_T0B:", stamp(11), fstamp(4, "tail"), fstamp(9, "last"), shiftIT, decode(), flagld())
    if X("wfirst"): pre = E()(decode(), dec1, tpreW(), wait0, resolve(tpreB() + ["s_waitcnt vmcnt(@B0)"], []))
    else: pre = E()(decode(), dec1, wait0, resolve(tpre() + ["s_waitcnt vmcnt(@W0,@B0)"], []))
    pre("s_barrier", [t_rd(0, nt, kk, t_A(0, nt, kk)) for nt in range(3) for kk in range(2)], f"s_mov_b32 s{sCNT}, 0", "s_waitcnt lgkmcnt(4)", fstamp(10, "last"), fstamp(5, "tail"))
    body = []; fp = []; tstubs.clear()
    for st in range(4):
        b = tstage(st, False, steady[st])
        if st in first:
            k = b.index(f"s_waitcnt vmcnt({steady[st]})")
            fp += b[:k] + [f"s_waitcnt vmcnt({first[st]})"] + b[k+1:]
            j = max(i for i in range(k) if b[i].startswith(MF)); j = max(i for i in range(j) if b[i].startswith(MF))
            b = b[:j+1] + [f"s_cmp_eq_u32 s{sCNT}, 0"] + b[j+1:k] + [f"s_cbranch_scc1 F_US{st}", b[k], f"F_UB{st}:"] + b[k+1:]
            tstubs.extend([f"F_US{st}:", f"s_waitcnt vmcnt({first[st]})", f"s_branch F_UB{st}"])
        else: fp += b
        body += b
    ctl = [f"s_add_u32 s{sCNT}, s{sCNT}, 1", f"s_cmp_lt_u32 s{sCNT}, s46", "s_cbranch_scc1 F_TLS"]
    return pre, body, ctl, steady, fp
def pb_off(): return E()(f"s_lshl_b32 s41, s{sWAVE}, 2", f"s_add_u32 s41, s41, s{sSP}", "s_mul_i32 s41, s41, 20480",
                         f"s_cmp_eq_u32 s{sWAVE}, s{sSP}", "s_cselect_b32 s41, 0x10000000, s41")
def own_write():
    l = newlab("O")
    e = E()(f"s_cmp_lg_u32 s{sWAVE}, s{sSP}", f"s_cbranch_scc1 {l}", f"v_add_u32 v4, {OWN}, v{LX}")
    for i in range(20): e(f"ds_write_b128 v4, {a(tacc(i % 10, i // 10), 4)} offset:{1024*i}")
    return e(f"{l}:")
def tfinal(cnt):
    FA = lambda nt, k: TA + 16*(nt % 4) + 4*k
    frd = lambda nt, k: t_rd(30 + (k >> 1), nt, k & 1, FA(nt, k))
    e = E()
    for l in tstage(28, False, "@W29,@B29", last=32):
        e(l)
        if l.startswith("buffer_load") and l.endswith("@W31") and "offset:2048" in l:
            e.last = len(e)
    tail = e[e.last:]; del e[e.last:]
    k = [i for i, l in enumerate(tail) if l.startswith(MF)]
    assert len(k) == 1
    e(t_dmaW(31, 3), tail[k[0]], t_m0(31, 4), "s_nop 0", t_dmaW(31, 4))
    n = 0
    for l in tstage(29, False, "0", last=31):
        if l.startswith("ds_read"):
            n += 1
            if n > 14: continue
        if l == "s_waitcnt lgkmcnt(4)" and n > 14: l = "s_waitcnt lgkmcnt(0)"
        if l.startswith("s_waitcnt vmcnt") or l == "s_barrier": continue
        e(l)
    e("s_waitcnt vmcnt(@W30,@B30,@W31,@B31)", "s_barrier")
    e([frd(0, k) for k in range(4)], [frd(1, k) for k in range(4)], pb_off(), "s_waitcnt lgkmcnt(4)")
    pend = []
    for nt in range(10):
        for qt in range(2):
            for k in range(4):
                g = 4*qt + k
                acc = a(tacc(nt, qt), 4)
                e(f"{MF} {acc}, {v(FA(nt,k),4)}, {v(t_B(30 + (k >> 1), k & 1, qt),4)}, {acc}")
                if g < 4 and nt + 2 < 10: e(frd(nt+2, g))
                if g == 3 and nt + 1 < 10: e(f"s_waitcnt lgkmcnt({4 if nt + 2 < 10 else 0})")
                if g in (4, 6) and nt > 0:
                    q2 = (g-4)//2; i = q2*10 + nt-1
                    e(f"buffer_store_dwordx4 {a(tacc(nt-1,q2),4)}, v{LX}, s[20:23], s{42+q2} offen sc1")
                if g in (1, 2) and nt > 0:
                    q2 = g - 1; e(f"s_add_u32 s{42+q2}, s41, {1024*(q2*10 + nt-1)}")
    e("s_add_u32 s42, s41, 9216", "s_add_u32 s43, s41, 19456", "s_nop 5")
    for q2 in range(2): e(f"buffer_store_dwordx4 {a(tacc(9,q2),4)}, v{LX}, s[20:23], s{42+q2} offen sc1")
    e(own_write())
    return e
def gfinal():
    e = E()(pb_off(), "s_waitcnt vmcnt(0) lgkmcnt(0)", "s_nop 1")
    for i in range(20):
        b = tacc(i % 10, i // 10); d = 16 + 6*(i % 8)
        for r in range(4): e(f"v_accvgpr_read_b32 v{d+r}, a{b+r}")
        e(f"v_cvt_pk_bf16_f32 v{d+4}, v{d}, v{d+1}", f"v_cvt_pk_bf16_f32 v{d+5}, v{d+2}, v{d+3}")
        if i % 8 == 0: e(f"s_add_u32 s42, s41, {512*i}")
        e(f"buffer_store_dwordx2 {v(d+4,2)}, v{TB8}, s[20:23], s42 offen offset:{512*(i%8)} sc1")
    e(own_write())
    return e
def items(lst):
    x = 0
    for k, (rb, th) in enumerate(lst): x |= (rb | th << 3) << (5*k)
    return x
def blk(*rbs): return [(rb, th) for rb in rbs for th in range(3)]
PATTERNS = {"B": [blk(0, 2, 4), blk(1, 3, 5), blk(6, 7)],
            "C": [blk(0, 2, 4) + [(5, 0)], blk(1, 3) + [(5, 1), (5, 2)], blk(6, 7)],
            "D": [blk(0, 2, 4), blk(1, 3) + [(5, 0), (5, 1)], [(5, 2)] + blk(6, 7)],
            "E": [blk(0, 2, 4) + [(5, 0)], blk(1, 3) + [(5, 1)], [(5, 2)] + blk(6, 7)],
            "F": [blk(0, 3) + [(6, 0), (6, 1)], blk(1, 4) + [(6, 2), (7, 0)], blk(2, 5) + [(7, 1), (7, 2)]],
            "G": [blk(0, 2) + [(4, 0), (4, 1)], blk(1, 3) + [(4, 2), (5, 0)], [(5, 1), (5, 2)] + blk(6, 7)],
            "A": [blk(0, 3) + [(6, 0), (6, 1)], blk(1, 4) + [(6, 2), (7, 0)], blk(2, 5) + [(7, 1), (7, 2)]]}
DV_ = 136
def roles():
    e = E()
    l, d = newlab("R"), newlab("D")
    e(f"s_mov_b32 s{sU}, 0", f"{l}:", f"v_cmp_eq_u32 vcc, 0, v{DV_}", f"s_add_u32 s{sU}, s{sU}, 1", "s_nop 2", "s_and_b32 s41, vcc_lo, 0xff00", f"s_cbranch_scc0 {d}",
      f"s_cmp_gt_u32 s{sU}, {SPIN}", f"s_cbranch_scc1 {d}", f"buffer_load_dword v{DV_}, v{DV_+1}, s[28:31], 0 offen sc1", "s_waitcnt vmcnt(0)", f"s_branch {l}", f"{d}:")
    e(f"v_readlane_b32 s{sT}, v{DV_}, 0", f"s_mov_b32 s{sCP}, 0", "s_and_b32 s41, s2, 7", "s_add_u32 s41, s41, 8", f"v_readlane_b32 s42, v{DV_}, s41")
    e([f"v_readlane_b32 s{12+c}, v{DV_}, {8+c}" for c in range(8)], "s_nop 3")
    for c in range(1, 8):
        e(f"s_sub_u32 s41, s{12+c}, 1", "s_and_b32 s41, s41, 7", "s_lshl_b32 s41, s41, 2", f"s_lshl_b32 s41, {c}, s41", f"s_or_b32 s{sCP}, s{sCP}, s41")
    e("s_sub_u32 s42, s42, 1", "s_and_b32 s42, s42, 7")
    if X("static"): e("s_and_b32 s42, s2, 7", f"s_mov_b32 s{sCP}, 0x76543210")
    e(f"s_lshr_b32 s{sSP}, s42, 1", "s_add_u32 s55, s42, 1", "s_lshr_b32 s55, s55, 1", "s_and_b32 s55, s55, 1", f"s_and_b32 s56, s{sHEAD}, 3")
    pat = PATTERNS[[x[3:] for x in EXP[0].split() if x.startswith("pat")][0] if "pat" in EXP[0] else "D"]
    pat = pat + [blk(0, 1)]
    for m in (3, 2, 1, 0):
        x = items(pat[m])
        if m == 3: e(f"s_mov_b32 s{sIT}, {hx(x)}", f"s_mov_b32 s{sIT+1}, {hx(x >> 32)}", f"s_mov_b32 s46, {len(pat[m]) - 1}")
        else: e(f"s_cmp_eq_u32 s{sSP}, {m}", f"s_cselect_b32 s{sIT}, {hx(x)}, s{sIT}", f"s_cselect_b32 s{sIT+1}, {hx(x >> 32)}, s{sIT+1}", f"s_cselect_b32 s46, {len(pat[m]) - 1}, s46")
    e(f"s_lshl_b32 s41, s{sQB}, 7", f"s_lshl_b32 s42, s{sHEAD}, 2", "s_add_u32 s42, s42, s41", f"s_cmp_eq_u32 s{sSP}, 3", f"s_cselect_b32 s{sCP}, 0x98, s{sCP}",
      f"s_cselect_b32 s{sFM}, 0, 16", f"s_cselect_b32 s{sFB}, s42, s41", "s_cselect_b32 s40, 0, 3")
    return e
def tail_setup():
    e = E()
    e("v_and_b32 v1, s40, v0", f"v_lshlrev_b32 v{FA_}, 2, v1")
    e(f"s_mul_i32 s41, s56, {WF160}", f"s_add_u32 s41, s41, {hx(WS_WF)}")
    e(srd(12, pWS, pWS+1, WF160, "s41"))
    e(f"s_lshl_b32 s41, s{sQB}, 2", "s_lshl_b32 s42, s55, 1", "s_add_u32 s41, s41, s42", f"s_lshr_b32 s42, s{sWAVE}, 1", "s_add_u32 s41, s41, s42",
      f"s_mul_i32 s41, s41, {OF_BLK}",
      f"s_and_b32 s42, s{sWAVE}, 1", "s_lshl_b32 s42, s42, 11", "s_add_u32 s41, s41, s42", f"s_add_u32 s41, s41, {hx(WS_OF)}",
      f"s_sub_u32 s43, {OF_BLK}, s42")
    e(srd(16, pWS, pWS+1, "s43", "s41"))
    e(f"s_mov_b32 s{sTB}, 0", f"s_mov_b32 s{sTB+1}, 4096", f"s_mov_b32 s{sTW}, 0", f"s_mul_i32 s{sMT}, s{sWAVE}, 5120")
    e(f"s_lshl_b32 s41, s{sQB}, 1", "s_add_u32 s41, s41, s55", "s_lshl_b32 s41, s41, 2", "s_add_u32 s41, s41, s56", "s_mul_i32 s41, s41, 327680",
      f"s_add_u32 s41, s41, {hx(WS_PB)}")
    e(srd(20, pWS, pWS+1, 327680, "s41"))
    e(f"s_lshl_b32 s41, s{sQB}, 3", "s_lshl_b32 s42, s55, 2", "s_add_u32 s41, s41, s42", f"s_add_u32 s41, s41, s{sSP}", "s_lshl_b32 s41, s41, 1",
      f"s_and_b32 s42, s{sWAVE}, 1", "s_add_u32 s41, s41, s42", "s_mul_i32 s41, s41, 20480",
      "s_mul_i32 s42, s56, 320", "s_add_u32 s41, s41, s42", f"s_lshr_b32 s42, s{sWAVE}, 1", "s_mul_i32 s42, s42, 160", "s_add_u32 s41, s41, s42",
      "s_sub_u32 s42, 2621440, s41")
    e(srd(24, pX, pX+1, "s42", "s41")); e(srd(28, pOUT, pOUT+1, "s42", "s41"))
    e("s_lshl_b32 s44, 0x11111111, s56", f"s_lshl_b32 s48, s{sQB}, 7")
    return e
def tail_vsetup():
    return E()(f"v_add_u32 v{TD}, s{sMT}, v{LX}", f"v_add_u32 v{TD+1}, 4096, v{TD}", f"v_mov_b32 v{TAD}, v{LX}", f"v_add_u32 v{TAD+1}, 61440, v{LX}",
               [f"v_accvgpr_write_b32 a{i}, 0" for i in range(80)])

def laststep(i=63):
    Pc = Pb(i)
    e = E()
    e(rdVp(62, 0))
    e(wave0([f"buffer_load_dwordx4 v[140:143], v{LX}, {srdn(sFL)}, 0 offen sc1"]))
    e(srd(28, pDBG, pDBG+1, 64), "v_and_b32 v138, 15, v0", f"v_lshlrev_b32 v{DV_+1}, 2, v138", f"buffer_load_dword v{DV_}, v{DV_+1}, s[28:31], 0 offen sc1")
    Ex, Sx = sm(S1, [2, 3], Pc, 1)
    e(Ex, rdVp(62, 1, KF))
    e([x for _, x in Sx], CHK, "s_waitcnt lgkmcnt(12)", callsite(i % 4), LADD, "s_nop 0", fstamp(2, "last"))
    RI = 8
    Xl = xlane("v_add_f32", L_, 2) + [f"v_rcp_f32 v{RI+2*qt}, v{L_+qt}" for qt in range(4)]
    def mix(m, fill, per=1):
        for x in m:
            e(x)
            for _ in range(per):
                if fill: e(fill.pop(0))
    r2, r3 = rdVp(62, 2), rdVp(62, 3, KF)
    ok = newlab("K")
    chk = E()(f"s_add_u32 s{sTMP}, s{sT}, 2")
    for r in range(4): chk(f"v_subrev_u32 v{140+r}, s{sTMP}, v{140+r}")
    chk("v_max3_u32 v140, v140, v141, v142", "v_max_u32 v140, v140, v143", "v_cmp_lt_u32 vcc, 2, v140", "s_nop 1", f"s_cbranch_vccz {ok}",
        f"v_mov_b32 v2, v{LX}", poll(2, ("-1", "-1"), "0", wide=True), f"{ok}:")
    def norm(j):
        o = E()(f"s_add_u32 s{sTMP}, s{sO}, {4096*j}")
        for qt in range(4):
            k = 4*j + qt
            t = 64 + 8*(k % 4); d = 112 + 4*(k % 6)
            for hh in range(2):
                b = Oacc(2*j+hh, qt)
                for r in range(4): o(f"v_accvgpr_read_b32 v{t+4*hh+r}, a{b+r}")
            for r in range(0, 8, 2): o(f"v_pk_mul_f32 {v(t+r,2)}, {v(t+r,2)}, {v(RI+2*qt,2)} op_sel_hi:[1,0]")
            for r in range(4): o(f"v_cvt_pk_bf16_f32 v{d+r}, v{t+2*r}, v{t+2*r+1}")
            o(f"buffer_store_dwordx4 {v(d,4)}, v{LX}, {srdn(sOF_SRD)}, s{sTMP} offen offset:{1024*qt} sc1")
        return o
    mix(pv(62, 0), Xl, 2); e(Xl, "s_waitcnt lgkmcnt(0)", fstamp(3, "last"))
    if X("oldlast"):
        mix(pv(62, 1, src=KF), r2); e("s_waitcnt lgkmcnt(0)"); mix(pv(62, 2), r3)
        e(norm(0), norm(1), "s_waitcnt lgkmcnt(0)", pv(62, 3, src=KF), norm(2), norm(3), norm(4), norm(5))
    else:
        mix(pv(62, 1, src=KF), r2); e(norm(0), "s_waitcnt lgkmcnt(0)")
        mix(pv(62, 2), r3); e(norm(1), norm(2), "s_waitcnt lgkmcnt(0)", pv(62, 3, src=KF), norm(3), norm(4), norm(5))
    CHK2[:] = wave0(chk)
    return e
CHK2 = []

def tail_end():
    e = E()
    XV = 232
    e("v_and_b32 v3, 15, v0", "v_mul_u32_u24 v3, 1280, v3", "v_lshrrev_b32 v4, 4, v0", "v_lshl_add_u32 v3, v4, 3, v3", fstamp(7, "tail"))
    e("s_waitcnt vmcnt(0) lgkmcnt(0)", fstamp(8, "tail"), "s_barrier", fstamp(9, "tail"), wave0(signal(4)))
    for nt in range(5): e(f"buffer_load_dwordx2 {v(XV+2*nt,2)}, v3, s[24:27], 0 offen offset:{32*nt}")
    e(f"s_and_b32 s42, s{sWAVE}, 1", "s_mul_i32 s42, s42, 10240", f"s_lshr_b32 s43, s{sWAVE}, 1", "s_mul_i32 s43, s43, 5120", "s_add_u32 s42, s42, s43",
      f"s_add_u32 s43, s42, {OWN}", f"v_add_u32 v5, s43, v{LX}")
    for i in range(5): e(f"ds_read_b128 {v(176+4*i,4)}, v5 offset:{1024*i}")
    e(f"s_mul_i32 s41, s{sSP}, 81920", "s_add_u32 s50, s41, s42", "s_add_u32 s51, s50, 20480", "s_add_u32 s52, s50, 40960", "s_add_u32 s53, s50, 61440")
    for src in range(4): e(f"s_cmp_eq_u32 s{sSP}, {src}", f"s_cselect_b32 s{50+src}, 0x10000000, s{50+src}")
    e(f"s_cmp_eq_u32 s{sSP}, 3", "s_cselect_b32 s56, 0, 1.0", "s_cselect_b32 s57, 1.0, 0", f"v_add_u32 v5, 4096, v{LX}", f"s_mov_b32 s38, {hx(f2u(-math.log2(math.e)))}")
    e(wave0(["v_lshlrev_b32 v2, 2, v0"] + poll(4, ("s44", "0"), "s48")), "s_barrier", stamp(4), fstamp(10, "tail"))
    def ldp(i):
        return [f"buffer_load_dwordx4 {v(16+16*i+4*src,4)}, v{LX if i < 4 else 5}, s[20:23], s{50+src} offen offset:{1024*(i%4)} sc1 ; @P{i}" for src in range(4)]
    AH_ = 5 if X("noil") else 2
    k0 = len(e)
    for i in range(AH_): e(ldp(i))
    e("s_waitcnt lgkmcnt(0)")
    for nt in range(5):
        S = 16 + 16*nt; G = S + 12; Xr = XV + 2*nt; t = 112 + 12*nt; W = 176 + 4*nt
        if nt + AH_ < 5: e(ldp(nt + AH_))
        e(f"s_waitcnt vmcnt(@P{nt})", fstamp(11, "tail") if nt == 0 else [])
        for r in range(4): e(f"v_add_f32 v{S+r}, v{S+r}, v{S+4+r}")
        for r in range(4): e(f"v_fmac_f32 v{G+r}, s57, v{W+r}")
        for r in range(4): e(f"v_add_f32 v{S+r}, v{S+r}, v{S+8+r}")
        for r in range(4): e(f"v_fmac_f32 v{S+r}, s56, v{W+r}")
        e(f"v_cvt_pk_bf16_f32 v{t+2}, v{G}, v{G+1}", f"v_cvt_pk_bf16_f32 v{t+3}, v{G+2}, v{G+3}",
          f"v_cvt_pk_bf16_f32 v{t}, v{S}, v{S+1}", f"v_cvt_pk_bf16_f32 v{t+1}, v{S+2}, v{S+3}")
        for k in range(2):
            e(f"v_lshlrev_b32 v{G+2*k}, 16, v{t+2+k}", f"v_and_b32 v{G+2*k+1}, 0xffff0000, v{t+2+k}",
              f"v_lshlrev_b32 v{S+2*k}, 16, v{t+k}", f"v_and_b32 v{S+2*k+1}, 0xffff0000, v{t+k}")
        for r in range(4): e(f"v_mul_f32 v{t+4+r}, s38, v{G+r}")
        for r in range(4): e(f"v_exp_f32 v{t+4+r}, v{t+4+r}")
        for r in range(4): e(f"v_add_f32 v{t+4+r}, 1.0, v{t+4+r}")
        for r in range(4): e(f"v_rcp_f32 v{t+4+r}, v{t+4+r}")
        for r in range(4): e(f"v_mul_f32 v{G+r}, v{G+r}, v{t+4+r}")
        e(f"v_cvt_pk_bf16_f32 v{t+2}, v{G}, v{G+1}", f"v_cvt_pk_bf16_f32 v{t+3}, v{G+2}, v{G+3}")
        for k in range(2): e(f"v_lshlrev_b32 v{G+2*k}, 16, v{t+2+k}", f"v_and_b32 v{G+2*k+1}, 0xffff0000, v{t+2+k}")
        for r in range(4): e(f"v_mul_f32 v{S+r}, v{S+r}, v{G+r}")
        e(f"v_cvt_pk_bf16_f32 v{t}, v{S}, v{S+1}", f"v_cvt_pk_bf16_f32 v{t+1}, v{S+2}, v{S+3}")
        for k in range(2):
            e(f"v_lshlrev_b32 v{S+2*k}, 16, v{t+k}", f"v_and_b32 v{S+2*k+1}, 0xffff0000, v{t+k}",
              f"v_lshlrev_b32 v{G+2*k}, 16, v{Xr+k}", f"v_and_b32 v{G+2*k+1}, 0xffff0000, v{Xr+k}")
        for r in range(4): e(f"v_add_f32 v{S+r}, v{S+r}, v{G+r}")
        e(f"v_cvt_pk_bf16_f32 v{t+8}, v{S}, v{S+1}", f"v_cvt_pk_bf16_f32 v{t+9}, v{S+2}, v{S+3}")
        e(f"buffer_store_dwordx2 {v(t+8,2)}, v3, s[28:31], 0 offen offset:{32*nt}" + (" sc1" if X("outsc1") else "") + (" nt" if X("outnt") else ""))
    e[k0:] = resolve(e[k0:], [])
    e(fstamp(12, "tail"))
    return e

def encode():
    en = [x for x in EXP[0].split() if x.startswith("enc:")]
    if not en: return []
    _, i, j, mult, W = en[0].split(":")
    return E()(f"s_cmp_lg_u32 s2, {W}", "s_cbranch_scc1 F_END", f"s_sub_u32 s66, s{88+int(j)}, s{88+int(i)}", f"s_mul_i32 s66, s66, {mult}", "s_add_u32 s66, s66, 15000",
               "F_ENC:", "s_memrealtime s[86:87]", "s_waitcnt lgkmcnt(0)", "s_sub_u32 s67, s86, s88", "s_cmp_lt_u32 s67, s66", "s_cbranch_scc1 F_ENC")

def gen(exp=""):
    sites.clear(); lab[0] = 0; EXP[0] = exp
    L = E()(kernel_head(NAME))
    if X("early0"): L("s_memrealtime s[100:101]")
    L("s_cmp_ge_u32 s2, 256", "s_cbranch_scc1 F_END")
    pro = front() + (cstamp(8) if X("qcyc") else [])
    qc, qfirst, q18 = qcounts()
    qloop = []; qfp = []; stubs = E()
    for u in range(6):
        b = qsub(u, last=40, vmw=qc[u])
        if u in qfirst:
            k = b.index(f"s_waitcnt vmcnt({qc[u]})")
            qfp += b[:k] + [f"s_waitcnt vmcnt({qfirst[u]})"] + b[k+1:]
            j = max(i for i in range(k) if b[i].startswith(MF))
            j = max(i for i in range(j) if b[i].startswith(MF))
            b = b[:j+1] + [f"s_cmp_eq_u32 s{sCNT}, 0"] + b[j+1:k] + [f"s_cbranch_scc1 F_QS{u}", b[k], f"F_QB{u}:"] + b[k+1:]
            stubs(f"F_QS{u}:", f"s_waitcnt vmcnt({qfirst[u]})", f"s_branch F_QB{u}")
        else: qfp += b
        qloop += b
    qctl = [f"s_add_u32 s{sCNT}, s{sCNT}, 1", f"s_cmp_lt_u32 s{sCNT}, 3", "s_cbranch_scc1 F_QL"]
    ex = {18: {}, 19: {}}
    for (kind, j), (u, g0) in zip([("K", 0), ("K", 1), ("V", 0), ("K", 2)], [(18, 4), (18, 20), (18, 36), (19, 4)]):
        m, d = kvgroup(kind, j)
        ex[u].setdefault(g0, []).extend(m)
        for t, dg in enumerate((1, 2, 3)): ex[u].setdefault(g0 + dg, []).append(d[t])
    rd = relayout_dst()
    if X("hfirst"):
        for k, g in enumerate(8*a_ + b_ for a_ in range(6) for b_ in range(3)): ex[18].setdefault(g, []).append(rd[k])
    else:
        for k, g in enumerate((36, 37, 38, 39, 44, 45, 46, 47, 52)): ex[19].setdefault(g, []).extend(rd[2*k:2*k+2])
    q19 = qsub(19, extra=ex[19])
    if X("hfirst"):
        q19, left = fill(q19, hops())
        if X("showcnt"): print("h ops left over:", len(left))
        q19 += left
    mid = qsub(18, extra=ex[18], vmw="@W19") + q19 + stamp(6) + fstamp(1, "conv") + (cstamp(9) if X("qcyc") else []) + convert() + fstamp(2, "conv") + init() + fstamp(7, "conv") + stamp(7) + (cstamp(8) if not (X("tcyc") or X("qcyc")) else [])
    keep = mid
    mid = [l + (" ; " + re.search(r"@\S+", k).group(0) if k.startswith("buffer_") and "@" in k and "@" not in l else "") for l, k in zip(resolve(mid, q18), keep)]
    ctl = [f"s_add_u32 s{sCNT}, s{sCNT}, 1", f"s_bitcmp1_b32 {hx(1 << 11 | 1 << 12 | 1 << 15)}, s{sCNT}", "s_cbranch_scc0 F_AL"]
    rlk = {1: "dma", 3: "out"} if not X("norl") else {}
    rlk.update({2: "tk", 0: "tv"}); mid = mid + [f"s_mov_b32 s{sCNT}, 0"]
    def mk(i, w): return step(i, vmw=w, tail=ctl if (i >= 3 and i % 4 == 2) else (), rl=rlk.get(i % 4) if i >= 3 else None)
    q = [re.search(r"@(\S+)", l).group(1) if "@" in l else "-" for l in mid if l.startswith("buffer_")]; cnts = {}
    for i in range(23):
        key = i if i < 3 else 3 + (i-3) % 4
        for l in mk(i, "?"):
            if "vmcnt(?)" in l:
                need = [f"K{i+2}"] + ([f"V{i}", f"V{i+1}"] if i % 2 == 0 else []) + (["R"] if i % 4 == 2 else [])
                c = len(q) - 1 - max(k for k, x in enumerate(q) if x in need)
                cnts[key] = min(cnts.get(key, 63), c)
            if l.startswith("buffer_"): q.append(re.search(r"@(\S+)", l).group(1))
    sites.clear()
    s0 = mk(0, cnts[0]) + mk(1, cnts[1]) + mk(2, cnts[2])
    body = [mk(i, cnts[i]) for i in range(3, 7)]
    def drop(pred):
        for k in range(4): body[k] = [l for l in body[k] if not pred(l)]
    if X("x_nobar"): drop(lambda l: l == "s_barrier")
    if X("x_nodma"): drop(lambda l: l.startswith("buffer_"))
    if X("x_nochk"): drop(lambda l: l.startswith("s_cbranch_vccnz"))
    if X("x_nolgkm"):
        for k in range(4): body[k] = [re.sub(r" lgkmcnt\(\d+\)", "", l) for l in body[k] if not l.startswith("s_waitcnt lgkmcnt")]
    if X("x_nods"): drop(lambda l: l.startswith("ds_"))
    if X("showcnt"): print("step counts", cnts, "q counts", qc)
    hooks = E()(f"s_cmp_eq_u32 s{sCNT}, 15", "s_cbranch_scc1 F_LAST", f"s_cmp_lg_u32 s{sWAVE}, 0", "s_cbranch_scc1 F_AL",
                f"s_cmp_eq_u32 s{sCNT}, 12", "s_cbranch_scc1 F_H1", signal(2), "s_mov_b32 s66, 4",
                "s_cmp_ge_u32 s2, 8", "s_cbranch_scc1 F_AL", srd(28, pDBG, pDBG+1, 64), "s_mov_b64 exec, 1",
                f"v_mov_b32 v{RLV}, 1", f"buffer_atomic_add v{RLV}, off, s[28:31], s66 sc0 sc1", "s_mov_b64 exec, -1", "s_branch F_AL",
                "F_H1:", "s_cmp_ge_u32 s2, 8", "s_cbranch_scc1 F_AL", "s_lshl_b32 s66, s2, 2", "s_add_u32 s66, s66, 32", "s_mov_b64 exec, 1",
                f"v_add_u32 v{RLV}, 1, v{RLV}", f"buffer_store_dword v{RLV}, off, s[28:31], s66 sc1", "s_mov_b64 exec, -1", "s_branch F_AL")
    last = (cstamp(9) if not (X("tcyc") or X("qcyc")) else []) + fstamp(1, "last") + laststep()
    h1 = E()(stamp(10), fstamp(1, "tail"), fstamp(5, "last"), "s_waitcnt vmcnt(24)", CHK2, roles(), fstamp(6, "last"), tail_setup(), tail_vsetup(), fstamp(7, "last"), "s_waitcnt vmcnt(0)", fstamp(8, "last"), fstamp(2, "tail"), "s_barrier", wave0(signal(3)), fstamp(3, "tail"))
    preS, bodyS, ctlS, cS, fpS = tloop()
    hS = E()(preS, cstamp(8) if X("tcyc") else [])
    sim = tpre(False) + [x for st in range(28) for x in tstage(st, False, 0)]
    q28 = [re.search(r"@(\S+)", l).group(1) for l in sim if l.startswith("buffer_")][-24:]
    finS = E()(resolve(tfinal(cS), q28), stamp(12), fstamp(6, "tail"), cstamp(9) if X("tcyc") else [])
    end = tail_end()
    L(pro, ".p2align 6", "F_QL:", qloop, qctl, mid, s0, ".p2align 6", "F_AL:", *body, hooks, "F_LAST:", last,
      h1, hS, ".p2align 6", "F_TLS:", bodyS, ctlS, finS, "F_TE:", end, stamp_flush(0, 13, pWS, f"s{sWAVE}"), encode(), "F_END:", "s_endpgm")
    for k, par in enumerate(sites):
        L(f"F_TR{k}:", f"s_call_b64 s[{sRET}:{sRET+1}], F_SLOW{par}", f"s_branch F_BK{k}")
    L(stubs, tstubs, flagspin("F_TSP", "F_TSB"), slow(0), slow(1), slow(2), slow(3))
    flat = lambda Z: [y for x in Z for y in x]
    tr = pro + qfp + qctl + (qloop + qctl)*2 + mid + s0 + flat(body) + flat(body) + last + h1
    if "x_" in exp: return L, kernel_desc(NAME, 512, 256), "; @launch grid=(256,1,1) block=(256,1,1) lds=163840"
    check(tr + hS + fpS + ctlS + (bodyS + ctlS)*6 + finS + end, "S")
    check(flagspin("A", "B") + bodyS, "spin")
    for n in range(4):
        b = body[n]
        idx = [i for i, x in enumerate(b) if x.startswith("F_BK")][0]
        check(body[(n-1) % 4] + b[:idx] + slow((3+n) % 4) + b[idx:] + body[(n+1) % 4], f"slow{n}")
    return L, kernel_desc(NAME, 512, 256), "; @launch grid=(256,1,1) block=(256,1,1) lds=163840"

def build(path, **kw):
    HDR = open("recurrent_scan__gqa_block_cached__dense_activation_relu__prompt.s.ref").read().split("; Override launch")[0]
    L, D, H = gen(**kw)
    L = [re.sub(r"\s*; @\S+$", "", l) for l in L]
    open(path, "w").write(HDR + H + "\n" + '.amdgcn_target "amdgcn-amd-amdhsa--gfx950"\n' + "\n".join(L) + "\n" + "\n".join(D) + "\n")
if __name__ == "__main__":
    for flag, mode in (("--ts", None), ("--tail", "tail"), ("--front", "front"), ("--last", "last"), ("--conv", "conv")):
        if flag in sys.argv:
            OPT["ts"] = True; OPT["mode"] = mode; sys.argv.remove(flag)
    build(sys.argv[1], exp=" ".join(sys.argv[2:]))
```

```python
from common import *
import re, sys

NAME = "recurrent_scan__gqa_block_cached__dense_activation_relu__prompt_kernel"
MF = "v_mfma_f32_16x16x32_bf16"
EXP = [""]
DEFAULTS = ["poll1", "touch3", "hfirst", "wfirst"]
def X(flag): return flag in EXP[0].split() or (flag in DEFAULTS and "no_" + flag not in EXP[0].split())

KR, VR = 0, 49152
WA, WB = 65536, 114688
ST = 122880
OWN = 81920
pX, pK, pV, pWQ, pWO, pWS, pW1, pW2, pOUT, pDBG = 4, 6, 8, 10, 68, 70, 72, 74, 76, 78
sK_SRD, sV_SRD, sWQ_SRD, sW1_SRD, sXF_SRD, sOF_SRD, sFL = 12, 16, 20, 24, 28, 32, 80
sWAVE, sHEAD, sM64, sKo = 36, 37, 38, 39
sMK, sMV, sMW = 40, 44, 48
sWq, sW1, sX, sCNT, sC, sTHR, sO, sVo, sRET = 54, 55, 56, 57, 58, 60, 61, 63, 64
sH = [6, 7, 62]
sTMP, sU, sT, sQB = 66, 67, 84, 85
sRSRC, sRDST, sRM, sRS = 8, 20, 24, 25
QV, NM, S0, S1, P, KF, VF, ET, T_, L_ = 16, 48, 64, 96, 112, 176, 200, 224, 232, 236
AK, AV, DK, DV, CK, LX, RLV = 240, 242, 246, 249, 224, 253, 254
AF, DA, DB, DH, AWA, AWB, AH, LXB, LX8, LXB2 = 16, 40, 44, 46, 192, 200, 204, 207, 208, 209
CSCALE = math.log2(math.e) / math.sqrt(192.0)
THR = 2.0 ** 30
SPIN = 1 << 18

def srdn(b): return f"s[{b}:{b+3}]"
class E(list):
    def __call__(self, *x):
        for y in x:
            if isinstance(y, list): self.extend(y)
            else: self.append(y)
        return self
lab = [0]
def newlab(p):
    lab[0] += 1; return f"F_{p}{lab[0]}"
def wave0(body):
    l = newlab("W")
    return E()(f"s_cmp_lg_u32 s{sWAVE}, 0", f"s_cbranch_scc1 {l}", body, f"{l}:")

def poll(phase, mask, soff, wide=False, vaddr="v2"):
    l, d = newlab("P"), newlab("D")
    e = E()
    e(f"s_mov_b32 exec_lo, {mask[0]}", f"s_mov_b32 exec_hi, {mask[1]}", f"s_add_u32 s{sTMP}, s{sT}, {phase}", f"s_mov_b32 s{sU}, 0")
    if wide:
        e(f"{l}:", f"buffer_load_dwordx4 v[4:7], {vaddr}, {srdn(sFL)}, {soff} offen sc1", "s_waitcnt vmcnt(0)")
        for r in range(4): e(f"v_subrev_u32 v{4+r}, s{sTMP}, v{4+r}")
        e("v_max3_u32 v4, v4, v5, v6", "v_max_u32 v4, v4, v7")
        e(f"v_cmp_lt_u32 vcc, {4-phase}, v4", f"s_add_u32 s{sU}, s{sU}, 1", f"s_cmp_gt_u32 s{sU}, {SPIN}", f"s_cbranch_scc1 {d}", f"s_cbranch_vccnz {l}")
    elif X("poll1"):
        e(f"{l}:", f"buffer_load_dword v4, {vaddr}, {srdn(sFL)}, {soff} offen sc1", "s_waitcnt vmcnt(0)", f"v_subrev_u32 v4, s{sTMP}, v4")
        e(f"v_cmp_lt_u32 vcc, {4-phase}, v4", f"s_add_u32 s{sU}, s{sU}, 1", f"s_cmp_gt_u32 s{sU}, {SPIN}", f"s_cbranch_scc1 {d}", f"s_cbranch_vccnz {l}")
    else:
        ld = lambda r: f"buffer_load_dword v{r}, {vaddr}, {srdn(sFL)}, {soff} offen sc1"
        e(ld(8), "s_sleep 4", ld(9), "s_sleep 4", ld(10), f"{l}:")
        for r in (8, 9, 10):
            e("s_waitcnt vmcnt(2)", f"v_subrev_u32 v11, s{sTMP}, v{r}", f"v_cmp_lt_u32 vcc, {4-phase}, v11", f"s_add_u32 s{sU}, s{sU}, 1", ld(r), "s_nop 0", f"s_cbranch_vccz {d}")
        e(f"s_cmp_le_u32 s{sU}, {SPIN}", f"s_cbranch_scc1 {l}")
    e(f"{d}:", "s_mov_b64 exec, -1")
    return e
def signal(phase):
    return E()(f"s_add_u32 s{sTMP}, s{sT}, {phase}", f"s_lshl_b32 s{sU}, s{sQB}, 5", f"s_add_u32 s{sU}, s{sU}, s{sHEAD}", f"s_lshl_b32 s{sU}, s{sU}, 2",
               f"v_mov_b32 v4, s{sTMP}", "v_mov_b32 v5, 0", "s_mov_b64 exec, 1",
               f"buffer_store_dword v4, v5, {srdn(sFL)}, s{sU} offen sc1", "s_mov_b64 exec, -1")

def qacc(ds, tb, qt):
    n = (ds*2 + tb)*4 + qt
    return R("a", 4*n) if n < 24 else R("v", 48 + 4*(n-24))
def hacc(tt, qt): return R("v", 144 + 4*(tt*4 + qt))
def BF(s, kk, qt): return a(96 + 32*(s % 3) + 16*kk + 4*qt, 4)
def ldB(s): return [f"buffer_load_dwordx4 {BF(s,kk,qt)}, v{LXB2 if kk else LXB}, {srdn(sXF_SRD)}, s{sX} offen offset:{1024*qt} sc1 ; @B{s}" for kk in range(2) for qt in range(4)]
advX = [f"s_add_u32 s{sX}, s{sX}, 8192"]
advW = [f"s_add_u32 s{sWq}, s{sWq}, 786432", f"s_add_u32 s{sW1}, s{sW1}, 196608"]
def dmaW(u):
    if u % 2 == 0: return [f"buffer_load_dwordx4 v{DA+t}, {srdn(sWQ_SRD)}, s{sWq} offen offset:{1024*t} lds ; @W{u}" for t in range(4)]
    return [f"buffer_load_dwordx4 v{DB+t}, {srdn(sWQ_SRD)}, s{sWq} offen offset:{1024*t} lds ; @W{u}" for t in range(2)] + \
           [f"buffer_load_dwordx4 v{DH+t}, {srdn(sW1_SRD)}, s{sW1} offen offset:{1024*(t+2)} lds ; @W{u}" for t in range(2)]
TCH, TCD = 210, 212
sTq, sT1 = 64, 65
def touch(): return [f"buffer_load_dword v{TCD}, v{TCH}, {srdn(sWQ_SRD)}, s{sTq} offen ; @T", f"buffer_load_dword v{TCD}, v{TCH+1}, {srdn(sW1_SRD)}, s{sT1} offen offset:3072 ; @T"]
def TPS(): return [int(x[3:]) for x in EXP[0].split() if x.startswith("tps")] or ([] if X("notps") else [3])
def advT_():
    n = 1 if TPS() else 3
    return [f"s_add_u32 s{sTq}, s{sTq}, {n*786432}", f"s_add_u32 s{sT1}, s{sT1}, {n*196608}"]
def touch_addr(nst):
    return E()("v_mul_u32_u24 v1, 171, v0", "v_lshrrev_b32 v1, 9, v1", "v_mul_u32_u24 v2, 3, v1", "v_sub_u32 v2, v0, v2",
               "v_lshrrev_b32 v3, 1, v1", "v_and_b32 v1, 1, v1", "v_lshl_add_u32 v1, v3, 6, v1", f"v_add_u32 v1, s66, v1",
               "v_mul_lo_u32 v1, v1, s67", "v_lshl_add_u32 v1, v2, 7, v1", f"v_cmp_gt_u32 vcc, {6*nst}, v0", "v_bfrev_b32 v8, 1",
               "v_lshrrev_b32 v3, 2, v0", "v_bfe_u32 v2, v0, 1, 1", f"v_cndmask_b32 v{TCH}, v8, v1, vcc",
               "v_lshl_add_u32 v3, v3, 6, v2", "v_add_u32 v3, s66, v3", f"v_cmp_gt_u32 vcc, {4*nst}, v0", "v_mul_u32_u24 v3, 3072, v3",
               "v_and_b32 v2, 1, v0", "v_mul_u32_u24 v2, 92, v2", "v_add_u32 v3, v3, v2", f"v_cndmask_b32 v{TCH+1}, v8, v3, vcc")
def m0W(u): return f"s_mov_b32 m0, s{sMW + u % 6}"
def qorder(s): return list(range(8)) + ([12, 13, 14, 8, 9, 10, 11] if s == 9 and X("hfirst") else list(range(8, 15)))
def qrd(s, pos, kk, uu):
    T = qorder(s)[pos]
    dst = v(AF + 8*(pos % 3) + 4*kk + 2*uu, 2)
    if T < 8: return f"ds_read_b64_tr_b16 {dst}, v{AWA + T} offset:{(s % 3)*16384 + kk*8192 + uu*1024}"
    reg = AWB + T - 8 if T < 12 else AH + T - 12
    return f"ds_read_b64_tr_b16 {dst}, v{reg} offset:{(s % 3)*16384 + kk*8192 + uu*512}"
def qsub(u, last=20, extra=None, vmw=None):
    extra = extra or {}
    s = u >> 1; TL = list(range(8)) if u % 2 == 0 else list(range(8, 15)); nT = len(TL)
    L = []
    lb = ldB(s + 2) if (u % 2 == 0 and s + 2 < last//2) else []
    dw = dmaW(u + 5) if u + 5 < last else []
    for ti, T in enumerate(TL):
        for p in range(4):
            qt = p if T % 2 == 0 else 3 - p
            TT = qorder(s)[T]
            acc = (qacc(TT >> 1, TT & 1, qt) if TT < 12 else hacc(TT-12, qt))(4)
            for kk in range(2):
                g = 2*p + kk; gi = 8*ti + g
                L.append(f"{MF} {acc}, {v(AF + 8*(T % 3) + 4*kk, 4)}, {BF(s, kk, qt)}, {acc}")
                s2, T2 = s + (T+2)//15, (T+2) % 15
                if g < 4:
                    if 2*s2 < last: L.append(qrd(s2, T2, g >> 1, g & 1))
                    if g == 3:
                        left = 15*(last//2) - 1 - (15*s + T)
                        if left >= 1: L.append(f"s_waitcnt lgkmcnt({4 if left >= 2 else 0})")
                if lb and ti < 4 and g in (4, 6): L.append(lb[2*ti + (g-4)//2])
                if lb and ti == 4 and g == 4: L += advX
                if u % 6 == 2 and last > 20 and X("kvq"):
                    if ti == 4 and g == 5: L += [f"s_cmp_eq_u32 s{sCNT}, 1", "s_cselect_b32 s66, 0, s3"]
                    if ti == 4 and g == 6: L.append(f"buffer_load_dword v{TCD}, v{KVT}, {srdn(sK_SRD)}, s66 offen ; @T")
                    if ti == 5 and g == 4: L.append(f"buffer_load_dword v{TCD}, v{KVT}, {srdn(sV_SRD)}, s66 offen ; @T")
                if u % (2 if TPS() else 6) == 0 and last > 20 and not X("notouch"):
                    if ti == 4 and g == 6: L.append(touch()[0])
                    if ti == 5 and g == 4: L.append(touch()[1])
                    if ti == 5 and g == 5: L += advT_()
                if ti == nT-3 and g == 6 and dw: L.append(m0W(u+5))
                if ti == nT-3 and g == 7 and vmw is not None: L += [f"s_waitcnt vmcnt({vmw})", "s_barrier"]
                if dw and ti >= nT-2 and g in (4, 6): L.append(dw[2*(ti-nT+2) + (g-4)//2])
                if dw and u % 2 == 0 and ti == nT-1 and g == 7: L += advW
                L += extra.get(gi, [])
    return L
def qcounts():
    q = ["B1"]*8 + (["W2"]*4 + ["W3"]*4 + ["W4"]*4 if X("lateW") else [])
    out = {}; first = {}
    for u in range(18):
        for l in qsub(u, last=40, vmw="?"):
            if "vmcnt(?)" in l:
                need = ["W%d" % (u+1)] + (["B%d" % ((u+1)//2)] if u % 2 else [])
                idx = [i for i, x in enumerate(q) if x in need]
                if idx:
                    c = len(q) - 1 - max(idx)
                    if u < 6: first[u] = c
                    else: out[u % 6] = min(out.get(u % 6, 63), c)
            if l.startswith("buffer_"): q.append(re.search(r"@(\S+)", l).group(1))
    return out, {u: c for u, c in first.items() if c < out[u]}, q

def fill(L, ops):
    gaps = []
    for l in L:
        if l.startswith(MF) or not gaps: gaps.append([l])
        else: gaps[-1].append(l)
    ops = list(ops)
    for gi, g in enumerate(gaps):
        rest = [x for x in g[1:] if not x.endswith(":")]
        ds = any(x.startswith("ds_") for x in rest); vm = any(x.startswith("buffer_") for x in rest)
        nv = sum(x.startswith("v_") for x in rest); ns = len(rest) - nv - ds - vm
        if vm or "s_barrier" in rest: continue
        free = (1 - nv - ns) if ds else (2 - nv - max(0, ns - 1))
        while ops and ops[0][0] <= gi and free > 0:
            if ops[0][1] == "m":
                if ds or rest or len(g) > 1: break
                g.append(ops.pop(0)[2]); free = 0
            else: g.append(ops.pop(0)[2]); free -= 1
    return [x for g in gaps for x in g] , [x[2] for x in ops]
def hops():
    o = []
    for tt in range(3):
        for p in range(4):
            qt = p if (8 + tt) % 2 == 0 else 3 - p
            h = hacc(tt, qt); d = 2 + 2*((4*tt + p) % 6); g0 = 8*tt + 2*p + 1 + 6
            o += [(g0, "a", f"v_cvt_pk_bf16_f32 v{d}, {h(1,0)}, {h(1,1)}"), (g0, "a", f"v_cvt_pk_bf16_f32 v{d+1}, {h(1,2)}, {h(1,3)}"),
                  (g0, "a", f"v_pk_max_i16 v{d}, v{d}, 0"), (g0, "a", f"v_pk_max_i16 v{d+1}, v{d+1}, 0"),
                  (g0, "m", f"buffer_store_dwordx2 {v(d,2)}, v{LX8}, {srdn(sOF_SRD)}, s{sH[tt]} offen offset:{1024*qt} sc1")][:4 if X("x_nohst") else 5]
    return o
def convert():
    e = E()("s_nop 7")
    early = X("earlyk")
    k = 0
    late = X("lateh")
    if late: e(f"v_mov_b32 v14, v{LX8}")
    for tt in range(3 if not X("hfirst") else 0):
        for qt in range(4):
            h = hacc(tt, qt); d = 144 + 2*k if late else 2 + 2*(k % 6); k += 1
            e(f"v_cvt_pk_bf16_f32 v{d}, {h(1,0)}, {h(1,1)}", f"v_cvt_pk_bf16_f32 v{d+1}, {h(1,2)}, {h(1,3)}",
              f"v_pk_max_i16 v{d}, v{d}, 0", f"v_pk_max_i16 v{d+1}, v{d+1}, 0")
            if not late and not X("x_nohst"): e(f"buffer_store_dwordx2 {v(d,2)}, v{LX8}, {srdn(sOF_SRD)}, s{sH[tt]} offen offset:{1024*qt} sc1")
    if early:
        e("s_waitcnt vmcnt(@K0)", "s_barrier", [rdK(0, 0, ds) for ds in range(6)], [rdK(0, 1, ds, VF) for ds in range(6)])
        m, d = kvgroup("V", 1); e(m, d)
        m, d = kvgroup("K", 3); e(m, d[:2])
    for ds in (3, 4, 5, 0, 1, 2):
        dsts = []
        for qt in range(4):
            f = ds*4 + qt
            Xr, Yr = qacc(ds, 0, qt), qacc(ds, 1, qt)
            if Xr.f == "a":
                tx, ty = R("v", (192 if late else 144) + 8*qt), R("v", (196 if late else 148) + 8*qt)
                for r in range(4): e(f"v_accvgpr_read_b32 {tx(1,r)}, {Xr(1,r)}")
                for r in range(4): e(f"v_accvgpr_read_b32 {ty(1,r)}, {Yr(1,r)}")
                Xr, Yr = tx, ty
            d = QV + 4*(f-16) if f >= 16 else (224 if early else 176) + 4*qt
            dsts.append(d)
            for Z in (Xr, Yr):
                if X("nopk"):
                    for r in range(4): e(f"v_mul_f32 {Z(1,r)}, s{sC}, {Z(1,r)}")
                else:
                    for r in (0, 2): e(f"v_pk_mul_f32 {Z(2,r)}, {Z(2,r)}, s[{sC}:{sC+1}]")
            e(f"v_cvt_pk_bf16_f32 v{d}, {Xr(1,0)}, {Xr(1,1)}", f"v_cvt_pk_bf16_f32 v{d+1}, {Xr(1,2)}, {Xr(1,3)}",
              f"v_cvt_pk_bf16_f32 v{d+2}, {Yr(1,0)}, {Yr(1,1)}", f"v_cvt_pk_bf16_f32 v{d+3}, {Yr(1,2)}, {Yr(1,3)}")
        e("s_mov_b32 exec_lo, 0")
        for d in dsts: e(f"v_swap_b32 v{d}, v{d+2}", f"v_swap_b32 v{d+1}, v{d+3}")
        e("s_mov_b32 exec_lo, -1")
        if ds < 4:
            for qt in range(4):
                for r in range(4): e(f"v_accvgpr_write_b32 a{192 + 4*(ds*4+qt) + r}, v{dsts[qt]+r}")
    return e

def hstores(): return [f"buffer_store_dwordx2 {v(144 + 2*k, 2)}, v14, {srdn(sOF_SRD)}, s{sH[k//4]} offen offset:{1024*(k%4)} sc1 ; @H" for k in range(12)]

def Qf(f): return a(192 + 4*f, 4) if f < 16 else v(QV + 4*(f-16), 4)
def Oacc(dt, qt): return (dt*4 + qt)*4
def dmaK(t): return f"buffer_load_dwordx4 v{DK+t}, {srdn(sK_SRD)}, s{sKo} offen offset:{1024*t} lds"
def dmaV(t): return f"buffer_load_dwordx4 v{DV+t}, {srdn(sV_SRD)}, s{sVo} offen offset:{1024*t} lds"
def kvgroup(kind, j):
    so = sKo if kind == "K" else sVo
    return [f"s_mov_b32 m0, s{(sMK if kind=='K' else sMV) + j}", f"s_mov_b32 s{so}, {12288*j}"], [(dmaK(t) if kind == "K" else dmaV(t)) + f" ; @{kind}{j}" for t in range(3)]
def rdK(slot, kt, ds, dst=KF): return f"ds_read_b128 {v(dst+4*ds,4)}, v{AK+(ds&1)} offset:{slot*12288 + kt*6144 + (ds>>1)*128}"
def Pb(t): return P + 16*(t % 4)
def rdVp(m2, part, dst=VF):
    return [f"ds_read_b64_tr_b16 {v(dst + 8*dl + 4*tl + 2*u, 2)}, v{AV + ((3*part+dl) & 3)} offset:{((m2+tl) % 4)*12288 + u*6144 + ((3*part+dl) >> 2)*128}"
            for dl in range(3) for tl in range(2) for u in range(2)]
def qk(dst, src=KF, czero=False):
    o = []
    for qt in range(4):
        for ds in range(6):
            d = v(dst+4*qt, 4)
            c = ("0" if czero else v(NM+4*qt, 4)) if ds == 0 else d
            o.append(f"{MF} {d}, {v(src+4*ds,4)}, {Qf(ds*4+qt)}, {c}")
    return o
def pv(m2, part, czero=False, src=VF):
    o = []
    for dl in range(3):
        for p in range(4):
            qt = p if (3*part + dl) % 2 == 0 else 3 - p
            acc = a(Oacc(3*part+dl, qt), 4)
            for tl in range(2):
                o.append(f"{MF} {acc}, {v(src + 8*dl + 4*tl, 4)}, {v(Pb(m2+tl) + 4*qt, 4)}, {'0' if czero and tl == 0 else acc}")
    return o
def sm(src, qts, Pb, kt):
    Ex, Sx = [], []
    k = 0
    for qt in qts:
        for pr in range(2):
            t0 = ET + 2*k; t1 = t0 + 1; k += 1
            Ex += [f"v_exp_f32 v{t0}, v{src+4*qt+2*pr}", f"v_exp_f32 v{t1}, v{src+4*qt+2*pr+1}"]
            n = len(Ex)
            if kt == 0 and pr == 0: Sx.append((n, f"v_add_f32 v{T_+qt}, v{t0}, v{t1}"))
            else: Sx += [(n-1, f"v_add_f32 v{T_+qt}, v{T_+qt}, v{t0}"), (n, f"v_add_f32 v{T_+qt}, v{T_+qt}, v{t1}")]
            Sx.append((n, f"v_cvt_pk_bf16_f32 v{Pb+4*qt+2*kt+pr}, v{t0}, v{t1}"))
    return Ex, Sx
def quarter(mf, pat, Ex, Sx, D, B, salu):
    assert len(pat) == len(mf) == 24, (pat, len(pat))
    out = []; ei = si = di = bi = 0
    for gi, m in enumerate(mf):
        out.append(m); ty = pat[gi]
        sc = salu.get(gi, [])
        def take(n):
            nonlocal si
            r = []
            while n > 0 and si < len(Sx) and Sx[si][0] <= ei: r.append(Sx[si][1]); si += 1; n -= 1
            return r
        if ty == "e": out += sc + [Ex[ei]]; ei += 1
        elif ty == "d": out += [D[di]] + take(1) + sc; di += 1
        elif ty == "a": out += sc + take(2)
        elif ty == "1": out += sc + take(1)
        elif ty == "b": out += sc + [B[bi]]; bi += 1
        elif ty == "-": out += sc
        else: raise ValueError(ty)
    assert ei == len(Ex) and si == len(Sx) and di == len(D) and bi == len(B), (pat, ei, len(Ex), si, len(Sx), di, len(D), bi, len(B))
    return out
P1 = "ee" + "de"*6 + "d"*6 + "a1b-"
P2 = "de"*6 + "ee" + "baabaa" + "----"
P3 = "ed"*8 + "dddd" + "b---"
P4 = "ebeb" + "de"*6 + "aaa" + "-----"
CHK = [f"v_max3_f32 v{CK}, v{T_}, v{T_+1}, v{T_+2}", f"v_max_f32 v{CK}, v{CK}, v{T_+3}", f"v_cmp_lt_f32 vcc, s{sTHR}, v{CK}"]
LADD = [f"v_add_f32 v{L_+q}, v{L_+q}, v{T_+q}" for q in range(4)]
sites = []
def callsite(par):
    k = len(sites); sites.append(par)
    return [f"s_cbranch_vccnz F_TR{k}", f"F_BK{k}:"]
def step(i, vmw=12, tail=(), rl=None):
    par, slot = i & 1, i % 4
    S0n = S0 + 16*(1-par); Pc = Pb(i); Pn = Pb(i+1)
    m2 = i-1 if par else i-2
    p0 = 0 if par else 2
    nopv = i == 0; cz = i in (1, 2)
    mK = lambda j: f"s_mov_b32 m0, s{sMK + j % 4}"
    mV = lambda j: f"s_mov_b32 m0, s{sMV + j % 4}"
    aK = f"s_add_u32 s{sKo}, s{sKo}, 12288"; aV = f"s_add_u32 s{sVo}, s{sVo}, 12288"
    if par:
        B1 = [dmaV(2) + f" ; @V{i+1}"]; B2 = [dmaV(0) + f" ; @V{i+2}", dmaV(1) + f" ; @V{i+2}"]; B3 = [dmaV(2) + f" ; @V{i+2}"]
        B4 = [dmaK(0) + f" ; @K{i+4}", dmaK(1) + f" ; @K{i+4}"]; m2_, a2, a3, m4 = mV(i+2), aV, aV, mK(i+4)
    else:
        B1 = [dmaK(2) + f" ; @K{i+3}"]; B2 = [dmaK(0) + f" ; @K{i+4}", dmaK(1) + f" ; @K{i+4}"]; B3 = [dmaK(2) + f" ; @K{i+4}"]
        B4 = [dmaV(0) + f" ; @V{i+2}", dmaV(1) + f" ; @V{i+2}"]; m2_, a2, a3, m4 = mK(i+4), aK, aK, mV(i+2)
    L = []
    def emit(mf, pat, Ex, Sx, D, B, sal):
        if mf is None:
            sc = [x for g in sorted(sal) for x in sal[g] if not x.startswith("s_waitcnt")]
            hs = hstores()[6*emit.n:6*emit.n+6] if X("lateh") else []; emit.n += 1
            mixed = []
            for k, x in enumerate(Ex):
                mixed.append(x)
                if k < len(hs): mixed.append(hs[k])
            return D + sc + ["s_nop 3"] + B + mixed + [x for _, x in Sx] + ["s_waitcnt lgkmcnt(0)"]
        return quarter(mf, pat, Ex, Sx, D, B, sal)
    emit.n = 0
    Ex, Sx = sm(S1, [2, 3], Pc, 1)
    D1 = rdVp(m2, p0) if not nopv else []
    L += quarter(qk(S0n), P1 if D1 else P1.replace("d", "1"), Ex, Sx + [(8, x) for x in CHK], D1, B1, {23: ["s_waitcnt lgkmcnt(6)"]} if D1 else {})
    L += callsite(i % 4)
    Ex, Sx = sm(S0n, [0, 1], Pn, 0)
    pat = P2; D = [rdK((slot+1) % 4, 1, ds) for ds in range(6)]; B = B2
    sal = {3: [a2], 7: ["s_waitcnt lgkmcnt(4)"], 13: [m2_], 23: ["s_waitcnt lgkmcnt(0)"]}
    if rl == "dma":
        pat = P2[:20] + "b---"; B = B + [rl_dma() + " ; @R"]
        sal.update({18: [f"s_cmp_lt_u32 s{sCNT}, 9"], 19: [f"s_mov_b32 m0, s{sRM}"], 21: [f"s_cselect_b32 s{sTMP}, 128, s3", f"s_cselect_b32 s{sRI}, 1024, 0"],
                    22: [m2_, f"s_add_u32 s{sRS}, s{sRS}, s{sTMP}"], 23: ["s_waitcnt lgkmcnt(0)", f"s_add_u32 s{sRM}, s{sRM}, s{sRI}"]})
    if rl in ("tk", "tv"):
        pat = P2[:20] + "b---"
        B = B + [f"buffer_load_dword v1, v{KVT}, {srdn(sK_SRD if rl == 'tk' else sV_SRD)}, s{sKT} offen ; @T"]
        if rl == "tk": sal[22] = [f"s_add_u32 s{sKT}, s{sKT}, 49152"]
    if rl == "out":
        pat = P2[:20] + "dad-"; D = D + [rl_rd(0), rl_rd(1)]; sal[23] = ["s_waitcnt lgkmcnt(2)"]
        xs = [(8, f"v_xor_b32 v{RTD+2}, s{sRX}, v{RTV}"), (8, f"v_add_u32 v{RTD+2}, s{sRU}, v{RTD+2}")]
    if rl == "out":
        q = quarter(pv(m2, p0, cz), pat.replace("dad-", "d-d-"), Ex, [(0, x) for x in LADD] + Sx, D, B, sal)
        k = q.index(rl_rd(0)); L += q[:k+2] + [x for _, x in xs] + q[k+2:]
    else: L += emit(None if nopv else pv(m2, p0, cz), pat, Ex, [(0, x) for x in LADD] + Sx, D, B, sal)
    Ex, Sx = sm(S0n, [2, 3], Pn, 0)
    D3 = rdVp(m2, p0+1) if not nopv else []
    sal = {21: [a3], 23: [f"s_waitcnt vmcnt({vmw}) lgkmcnt(0)", "s_barrier"]}
    L += quarter(qk(S1), P3 if D3 else P3.replace("d", "1"), Ex, Sx, D3, B3, sal)
    Ex, Sx = sm(S1, [0, 1], Pn, 1)
    sal = {0: [m4], 22: ["s_waitcnt lgkmcnt(0)"]}
    pat = P4; B = B4
    tail = list(tail)
    if tail:
        sal[19] = tail[:1]; sal[20] = tail[1:2]; sal[23] = tail[2:]
    if rl == "out":
        pat = P4[:19] + "b1---"; B = B + [rl_st() + " ; @S"]
        sal.update({5: [f"s_cmp_lt_u32 s{sCNT}, 10"], 7: [f"s_cselect_b32 s{sRJ}, 1024, 0"], 9: [f"s_sub_u32 s{sTMP}, s{sCNT}, 1"],
                    11: [f"s_cmp_lt_u32 s{sTMP}, 10"], 13: [f"s_cselect_b32 s{sTMP}, s{sRO}, s3"], 15: [f"s_cselect_b32 s{sRI}, 4096, 0"],
                    16: [f"s_add_u32 s{sRO}, s{sRO}, s{sRI}"], 17: [f"s_lshr_b32 s{sRI}, s{sRI}, 10"], 18: [f"s_add_u32 s{sRR}, s{sRR}, s{sRI}"],
                    20: [f"s_cmp_gt_u32 s{sRR}, 9"], 21: [f"s_cselect_b32 s{sRI}, {WF160 - 10240}, 0", f"s_cselect_b32 s{sTMP}, 10, 0"],
                    22: ["s_waitcnt lgkmcnt(0)", f"s_add_u32 s{sRO}, s{sRO}, s{sRI}"], 23: [f"s_sub_u32 s{sRR}, s{sRR}, s{sTMP}"]})
        Sx = Sx + [(8, f"v_add_u32 v{RTV}, s{sRJ}, v{RTV}")]
    L += emit(None if nopv else pv(m2, p0+1, cz), pat, Ex, Sx, [rdK((slot+2) % 4, 0, ds) for ds in range(6)], B, sal)
    return L
sRJ, sKT, KVT = 59, 58, 252
def kv_touch_addr(D):
    return E()(f"s_lshl_b32 s66, s{sQB}, 2", f"s_add_u32 s66, s66, s{sWAVE}", "s_mul_i32 s66, s66, 1536", "v_lshlrev_b32 v3, 7, v0", "v_add_u32 v3, s66, v3",
               "v_cmp_gt_u32 vcc, 12, v0", "v_bfrev_b32 v2, 1", "s_nop 0", f"v_cndmask_b32 v{KVT}, v2, v3, vcc")
def xlane(op, dst, tmp):
    L = []
    for sw in ("v_permlane16_swap_b32", "v_permlane32_swap_b32"):
        L += [f"v_mov_b32 v{tmp+qt}, v{dst+qt}" for qt in range(4)] + ["s_nop 1"]
        L += [f"{sw} v{dst+qt}, v{tmp+qt}" for qt in range(4)]
        L += [f"{op} v{dst+qt}, v{dst+qt}, v{tmp+qt}" for qt in range(4)]
    return L
def rowmax(dst, srcs, tmp):
    L = []
    for qt in range(4):
        r = srcs(qt); d = dst + qt
        L += [f"v_max3_f32 v{d}, v{r[0]}, v{r[1]}, v{r[2]}", f"v_max3_f32 v{d}, v{d}, v{r[3]}, v{r[4]}",
              f"v_max3_f32 v{d}, v{d}, v{r[5]}, v{r[6]}", f"v_max_f32 v{d}, v{d}, v{r[7]}"]
    return L + xlane("v_max_f32", dst, tmp)
def init():
    e = E()
    if not X("earlyk"):
        e("s_waitcnt vmcnt(@K0)", "s_barrier", fstamp(3, "conv"))
        for ds in range(6): e(rdK(0, 0, ds))
        for ds in range(6): e(rdK(0, 1, ds, VF))
        m, d = kvgroup("V", 1); e(m, d)
        m, d = kvgroup("K", 3); e(m, d[:2])
    e(f"s_mov_b32 s{sKT}, {4*12288}")
    for _ in range(2):
        e(f"buffer_load_dword v1, v{KVT}, {srdn(sK_SRD)}, s{sKT} offen ; @T", f"buffer_load_dword v1, v{KVT}, {srdn(sV_SRD)}, s{sKT} offen ; @T", f"s_add_u32 s{sKT}, s{sKT}, 49152")
    e(f"s_mov_b32 s{sVo}, {2*12288}")
    for q in range(4): e(f"v_mov_b32 v{L_+q}, 0")
    e(fstamp(4, "conv"), "s_waitcnt lgkmcnt(6)", qk(S0, KF, True), "s_waitcnt vmcnt(@K1) lgkmcnt(0)", "s_barrier", fstamp(5, "conv"))
    m = qk(S1, VF, True)
    rd = [rdK(1, 0, ds) for ds in range(6)]
    for i, x in enumerate(m):
        e(x)
        if i < 6: e(rd[i])
    e("s_nop 7", fstamp(6, "conv"))
    D, TM = 2, 6
    e(rowmax(D, lambda qt: [S0+4*qt+r for r in range(4)] + [S1+4*qt+r for r in range(4)], TM))
    for qt in range(4): e(f"v_ceil_f32 v{D+qt}, v{D+qt}")
    for qt in range(4):
        for r in range(4):
            e(f"v_sub_f32 v{NM+4*qt+r}, 0, v{D+qt}", f"v_sub_f32 v{S0+4*qt+r}, v{S0+4*qt+r}, v{D+qt}", f"v_sub_f32 v{S1+4*qt+r}, v{S1+4*qt+r}, v{D+qt}")
    for src, qts, kt in ((S0, [0, 1], 0), (S0, [2, 3], 0), (S1, [0, 1], 1)):
        Ex, Sx = sm(src, qts, Pb(0), kt)
        e(Ex, [x for _, x in Sx])
    e("s_waitcnt lgkmcnt(0)")
    return e
def slow(k):
    par = k & 1
    S0c = S0 + 16*par; S0n = S0 + 16*(1-par)
    e = E()(f"F_SLOW{k}:", "s_nop 7", "s_nop 7")
    D, TM = 2, 6
    e(rowmax(D, lambda qt: [S0c+4*qt+r for r in range(4)] + [S1+4*qt+r for r in range(4)], TM))
    for qt in range(4): e(f"v_max_f32 v{D+qt}, 0, v{D+qt}", f"v_ceil_f32 v{D+qt}, v{D+qt}", f"v_sub_f32 v{TM+qt}, 0, v{D+qt}", f"v_cvt_i32_f32 v{TM+qt}, v{TM+qt}")
    for qt in range(4):
        e(f"v_ldexp_f32 v{L_+qt}, v{L_+qt}, v{TM+qt}")
        for base in (NM, S0c, S1, S0n):
            for r in range(4): e(f"v_sub_f32 v{base+4*qt+r}, v{base+4*qt+r}, v{D+qt}")
    for t in ([k-1] if par else [k-1, k-2]):
        for qt in range(4):
            for r in range(4):
                p = Pb(t) + 4*qt + r
                e(f"v_lshlrev_b32 v10, 16, v{p}", f"v_and_b32 v11, 0xffff0000, v{p}", f"v_ldexp_f32 v10, v10, v{TM+qt}", f"v_ldexp_f32 v11, v11, v{TM+qt}",
                  f"v_cvt_pk_bf16_f32 v{p}, v10, v11")
    for dt in range(12):
        for qt in range(4):
            b = Oacc(dt, qt)
            for r in range(2):
                e(f"v_accvgpr_read_b32 v10, a{b+2*r}", f"v_accvgpr_read_b32 v11, a{b+2*r+1}", f"v_ldexp_f32 v10, v10, v{TM+qt}", f"v_ldexp_f32 v11, v11, v{TM+qt}",
                  f"v_accvgpr_write_b32 a{b+2*r}, v10", f"v_accvgpr_write_b32 a{b+2*r+1}, v11")
    for src, qts, kt in ((S0c, [0, 1], 0), (S0c, [2, 3], 0), (S1, [0, 1], 1), (S1, [2, 3], 1)):
        Ex, Sx = sm(src, qts, Pb(k), kt)
        e(Ex, [x for _, x in Sx])
    e("s_nop 1", f"s_setpc_b64 s[{sRET}:{sRET+1}]")
    return e

def relayout_src():
    return E()("s_cmp_lt_u32 s2, 192", f"s_cselect_b32 s{sRSRC}, s{pWO}, s{pW2}", f"s_cselect_b32 s{sRSRC+1}, s{pWO+1}, s{pW2+1}", "s_cselect_b32 s66, 0, 192",
               "s_sub_u32 s66, s2, s66", "s_mul_i32 s66, s66, 40960", f"s_add_u32 s{sRSRC}, s{sRSRC}, s66", f"s_addc_u32 s{sRSRC+1}, s{sRSRC+1}, 0",
               "s_cmp_lt_u32 s2, 240", f"s_cselect_b32 s{sRSRC+2}, 40960, 0", f"s_mov_b32 s{sRSRC+3}, 0x20000")
def relayout_dst():
    return E()("s_mul_i32 s66, s2, 10240", f"s_add_u32 s67, s66, {hx(WS_WF)}", f"s_sub_u32 s{sRDST+2}, {4*WF160}, s66",
               "s_cmp_lt_u32 s2, 240", f"s_cselect_b32 s{sRDST+2}, s{sRDST+2}, 0", f"s_cselect_b32 s67, s67, {hx(WS_WF)}",
               f"s_add_u32 s{sRDST}, s{pWS}, s67", f"s_addc_u32 s{sRDST+1}, s{pWS+1}, 0", f"s_mov_b32 s{sRDST+3}, 0x20000",
               f"s_mul_i32 s{sRM}, s{sWAVE}, 10240", f"s_add_u32 s{sRM}, s{sRM}, {ST}", f"s_mov_b32 s{sRS}, 0",
               f"s_lshl_b32 s{sRO}, s{sWAVE}, 10", f"s_mov_b32 s{sRR}, s{sWAVE}",
               "s_cmp_lt_u32 s2, 192", f"s_cselect_b32 s{sRX}, 0, 64", f"s_mov_b32 s{sRU}, 512", f"s_cselect_b32 s{sRU}, 20480, s{sRU}")
RTV, RTD = 255, 12
sRO, sRR, sRI = 26, 27, 62
def relayout_vaddr():
    return E()(f"s_mov_b32 s67, {ST - 1024}", _relayout_vaddr())
def _relayout_vaddr():
    return E()("v_lshrrev_b32 v1, 2, v0", "v_and_b32 v1, 7, v1", "v_lshlrev_b32 v2, 7, v1", "v_lshrrev_b32 v3, 5, v0", "v_mul_u32_u24 v3, 10240, v3", "v_add_u32 v2, v2, v3",
               "v_and_b32 v3, 3, v0", "v_lshl_add_u32 v2, v3, 3, v2", f"v_add_u32 v2, {ST - 1024}, v2", "v_lshrrev_b32 v1, 1, v1", "v_lshlrev_b32 v1, 5, v1",
               f"s_lshl_b32 s66, s{sWAVE}, 5", "v_xor_b32 v1, s66, v1", "v_add_u32 v4, v1, v2",
               "v_lshrrev_b32 v1, 4, v0", "v_mul_u32_u24 v1, 10240, v1", "v_bfe_u32 v2, v0, 2, 2", "v_lshl_add_u32 v1, v2, 7, v1", "v_lshl_add_u32 v1, v3, 3, v1",
               "v_lshrrev_b32 v2, 1, v2", "v_lshlrev_b32 v2, 5, v2", "v_xor_b32 v2, s66, v2", f"v_add3_u32 v1, v1, v2, s67",
               "s_cmp_lt_u32 s2, 192", "s_cselect_b64 vcc, -1, 0", f"v_cndmask_b32 v{RTV}, v1, v4, vcc")
def rl_dma(): return f"buffer_load_dwordx4 v{RLV}, {srdn(sRSRC)}, s{sRS} offen lds"
sRX, sRU = 48, 49
def rl_rd(u): return f"ds_read_b64_tr_b16 {v(RTD+2*u,2)}, v{RTV if u == 0 else RTD+2}"
def rl_st(): return f"buffer_store_dwordx4 {v(RTD,4)}, v{LX}, {srdn(sRDST)}, s{sTMP} offen sc1"

def front():
    e = E()
    e("s_load_dwordx8 s[4:11], s[0:1], 0", f"s_load_dwordx2 s[{pWO}:{pWO+1}], s[0:1], 32", f"s_load_dwordx4 s[{pW1}:{pW1+3}], s[0:1], 48",
      f"s_load_dwordx4 s[{pOUT}:{pOUT+3}], s[0:1], 64", f"s_load_dwordx2 s[{pWS}:{pWS+1}], s[0:1], 80")
    if not X("nopf"):
        e("s_getpc_b64 s[66:67]", "F_PC:", "v_lshrrev_b32 v1, 6, v0", "s_lshr_b32 s62, s2, 3", "s_mul_i32 s62, s62, 1536", "s_add_u32 s62, s62, 8192 - 512",
          "v_and_b32 v2, 63, v0", "v_lshlrev_b32 v4, 7, v2", "v_and_b32 v2, 3, v0", "v_lshl_add_u32 v2, v1, 2, v2", "v_lshlrev_b32 v2, 7, v2", "v_add_u32 v2, s62, v2",
          "v_cmp_eq_u32 vcc, 0, v1", "v_mov_b32 v5, s67", "s_nop 0", "v_cndmask_b32 v4, v2, v4, vcc", "v_min_u32 v4, F_END-F_PC, v4",
          "v_add_co_u32 v4, vcc, s66, v4", "s_nop 1", "v_addc_co_u32 v5, vcc, 0, v5, vcc", f"global_load_dword v{TCD+1}, v[4:5], off")
    e(wave_id(f"s{sWAVE}"), stamp(0), "s_mov_b32 s3, 0x10000000")
    if X("early0"): e("s_mov_b32 s88, s100")
    e("s_and_b32 s66, s2, 7", "s_lshl_b32 s66, s66, 2", "s_lshr_b32 s67, s2, 3", "s_and_b32 s67, s67, 3", f"s_add_u32 s{sHEAD}, s66, s67",
      f"s_lshr_b32 s{sQB}, s2, 5", f"s_lshl_b32 s66, s{sQB}, 2", f"s_add_u32 s{sM64}, s66, s{sWAVE}")
    e(f"s_lshl_b32 s66, s{sQB}, 5", f"s_add_u32 s66, s66, s{sHEAD}", "s_lshl_b32 s66, s66, 2", f"s_add_u32 s66, s66, s{sWAVE}", "s_lshl_b32 s62, s66, 1",
      "s_mul_i32 s66, s62, 1280",
      "v_lshrrev_b32 v1, 5, v0", "v_and_b32 v2, 31, v0", "v_mul_u32_u24 v3, 1280, v1", "v_lshl_add_u32 v3, v2, 3, v3",
      f"v_lshlrev_b32 v{LX}, 4, v0", f"s_or_b32 s{sKo}, s2, s{sWAVE}")
    e("s_waitcnt lgkmcnt(0)", fstamp(1))
    e(srd(12, pX, pX+1, 2560, "s66"))
    XR, XX = 64, 80
    for m in range(5): e(f"buffer_load_dwordx2 {v(XR+2*m,2)}, v3, s[12:15], 0 offen offset:{256*m}")
    e(srd(sFL, pWS, pWS+1, 1024, WS_FL), f"s_cmp_eq_u32 s{sKo}, 0", f"s_cselect_b32 s{sFL+2}, 1024, 0",
      f"buffer_load_dwordx4 v[76:79], v{LX}, {srdn(sFL)}, 0 offen sc1", f"s_mov_b32 s{sFL+2}, 1024")
    e("s_lshr_b32 s66, s62, 6", f"s_mul_i32 s66, s66, {XF_BLK}", "s_and_b32 s67, s62, 63", "s_lshl_b32 s67, s67, 6", "s_add_u32 s66, s66, s67",
      f"s_sub_u32 s67, {XF_BLK}, s67")
    e(srd(16, pWS, pWS+1, "s67", "s66"))
    e("v_lshrrev_b32 v13, 3, v2", "v_lshlrev_b32 v13, 12, v13", "v_lshl_add_u32 v13, v1, 6, v13", "v_and_b32 v3, 7, v0", "v_lshl_add_u32 v13, v3, 3, v13")
    e(f"s_mul_i32 s66, s{sHEAD}, 384", "s_sub_u32 s67, 7864320, s66"); e(srd(sWQ_SRD, pWQ, pWQ+1, "s67", "s66"))
    e(f"s_mul_i32 s66, s{sHEAD}, 96", "s_sub_u32 s67, 1969152, s66", f"s_sub_u32 s{pW1}, s{pW1}, 3072", f"s_subb_u32 s{pW1+1}, s{pW1+1}, 0")
    e(srd(sW1_SRD, pW1, pW1+1, "s67", "s66"))
    e(f"s_lshl_b32 s66, s{sWAVE}, 4", "s_mov_b32 s67, 12288")
    e("v_lshrrev_b32 v1, 4, v0", "v_and_b32 v2, 15, v0", "v_lshlrev_b32 v3, 1, v1", "v_xor_b32 v2, v2, v3", "v_add_u32 v3, s66, v1", "v_mul_lo_u32 v3, v3, s67",
      f"v_lshl_add_u32 v{DA}, v2, 4, v3", f"v_add_u32 v{DA+1}, {4*12288 - 1024}, v{DA}", "v_xor_b32 v2, 8, v2", "v_lshl_add_u32 v3, v2, 4, v3",
      f"v_add_u32 v{DA+2}, {8*12288 - 2048}, v3", f"v_add_u32 v{DA+3}, {12*12288 - 3072}, v3")
    e("v_lshrrev_b32 v1, 3, v0", "v_and_b32 v2, 7, v0", "v_and_b32 v3, 2, v1", "v_xor_b32 v2, v2, v3", "v_add_u32 v3, s66, v1", "v_mul_lo_u32 v4, v3, s67",
      "v_add_u32 v4, 256, v4", f"v_lshl_add_u32 v{DB}, v2, 4, v4", "v_xor_b32 v5, 4, v2", "v_lshl_add_u32 v4, v5, 4, v4", f"v_add_u32 v{DB+1}, {8*12288 - 1024}, v4",
      "v_mul_u32_u24 v3, 3072, v3", "v_bfrev_b32 v8, 1", "v_cmp_gt_u32 vcc, 6, v2", "v_lshl_add_u32 v6, v2, 4, v3", "v_add_u32 v6, 1024, v6",
      f"v_cndmask_b32 v{DH}, v8, v6, vcc", "v_cmp_gt_u32 vcc, 6, v5", "v_lshl_add_u32 v6, v5, 4, v3", f"v_add_u32 v6, {8*3072}, v6",
      f"v_cndmask_b32 v{DH+1}, v8, v6, vcc")
    e(f"s_lshl_b32 s66, s{sWAVE}, 12")
    for u in range(6): e(f"s_add_u32 s{sMW+u}, s66, {(WB if u % 2 else WA) + 16384*(u >> 1)}")
    e(f"s_mov_b32 s{sWq}, 0", f"s_mov_b32 s{sW1}, 0")
    NE = 5 if X("allW") else 2
    def wgrp(lo, hi):
        o = E()
        for u in range(lo, hi):
            o(m0W(u), "s_nop 0", dmaW(u))
            if u % 2: o(advW)
        return o
    e(wgrp(0, NE))
    NT = 0 if X("notouch") else 2
    if NT:
        e(f"s_lshl_b32 s66, s{sQB}, 3", f"s_lshl_b32 s67, s{sWAVE}, 1", "s_add_u32 s66, s66, s67", "s_mov_b32 s67, 12288", touch_addr(4),
          f"s_mov_b32 s{sTq}, 786432", f"s_mov_b32 s{sT1}, 196608")
        tch = touch()
        if X("touch2") or X("touch3") or X("touch4"): NT = 0
        else: e(tch)
    e(fstamp(2), f"s_waitcnt vmcnt({4*NE + NT})", stamp(1), fstamp(3))
    l1 = newlab("T")
    e(srd(12, pDBG, pDBG+1, 4), "v_mov_b32 v27, 0", f"s_cmp_lg_u32 s{sKo}, 0", f"s_cbranch_scc1 {l1}")
    e("v_and_b32 v1, 15, v0", "v_lshlrev_b32 v1, 2, v1", "ds_write_b32 v1, v27")
    for r in range(4):
        e(f"v_bfe_u32 v{4+r}, v{76+r}, 3, 9", f"v_lshrrev_b32 v{8+r}, 5, v{4+r}", f"v_lshlrev_b32 v{8+r}, 2, v{8+r}",
          f"v_and_b32 v{4+r}, 31, v{4+r}", f"v_lshlrev_b32_e64 v{4+r}, v{4+r}, 1")
    for r in range(4): e(f"ds_or_b32 v{8+r}, v{4+r}")
    e("ds_read_b32 v2, v1", "s_waitcnt lgkmcnt(0)", "v_not_b32 v2, v2", "v_ffbl_b32 v2, v2", "v_cmp_ne_u32 vcc, -1, v2",
      "s_nop 4", "s_ff1_i32_b64 s66, vcc", "s_nop 1", "v_readlane_b32 s67, v2, s66", "s_nop 4", "s_lshl_b32 s66, s66, 5", "s_add_u32 s66, s66, s67",
      "s_lshl_b32 s66, s66, 3", "s_or_b32 s66, s66, 0x40000000", "v_mov_b32 v26, s66",
      "s_mov_b64 exec, 1", "buffer_store_dword v26, v27, s[12:15], 0 offen sc1", "s_mov_b64 exec, -1", f"{l1}:")
    for i in range(10): e(f"v_lshlrev_b32 v{XX+2*i}, 16, v{XR+i}", f"v_and_b32 v{XX+2*i+1}, 0xffff0000, v{XR+i}")
    def reduce32(r, t):
        o = []
        for sh in (8, 4, 2, 1): o += ["s_nop 1", f"v_add_f32_dpp {r}, {r}, {r} row_ror:{sh} row_mask:0xf bank_mask:0xf"]
        return o + [f"v_mov_b32 {t}, {r}", "s_nop 1", f"v_permlane16_swap_b32 {r}, {t}", f"v_add_f32 {r}, {r}, {t}"]
    e(f"v_add_f32 v10, v{XX}, v{XX+1}", f"v_add_f32 v11, v{XX+2}, v{XX+3}")
    for i in range(4, 20, 2): e(f"v_add_f32 v10, v10, v{XX+i}", f"v_add_f32 v11, v11, v{XX+i+1}")
    e("v_add_f32 v10, v10, v11", reduce32("v10", "v11"))
    e(f"s_mov_b32 s66, {hx(f2u(1.0/640))}", "v_mul_f32 v10, s66, v10", "v_mov_b32 v11, 0", "v_mov_b32 v12, 0")
    for i in range(0, 20, 2):
        e(f"v_sub_f32 v1, v{XX+i}, v10", f"v_sub_f32 v2, v{XX+i+1}, v10", "v_fmac_f32 v11, v1, v1", "v_fmac_f32 v12, v2, v2")
    e("v_add_f32 v11, v11, v12", reduce32("v11", "v12"), "v_mul_f32 v11, s66, v11")
    e("v_cvt_pk_bf16_f32 v10, v10, v11", "v_and_b32 v11, 0xffff0000, v10", "v_lshlrev_b32 v10, 16, v10")
    e(f"v_add_f32 v11, {hx(f2u(1e-5))}, v11", "v_cvt_pk_bf16_f32 v11, v11, v11", "v_lshlrev_b32 v11, 16, v11",
      "v_sqrt_f32 v11, v11", "s_nop 0", "v_cvt_pk_bf16_f32 v11, v11, v11", "v_lshlrev_b32 v11, 16, v11", "v_rcp_f32 v11, v11", "s_nop 0")
    for i in range(10):
        a0, a1 = XX+2*i, XX+2*i+1
        e(f"v_sub_f32 v{a0}, v{a0}, v10", f"v_sub_f32 v{a1}, v{a1}, v10", f"v_cvt_pk_bf16_f32 v1, v{a0}, v{a1}",
          f"v_lshlrev_b32 v{a0}, 16, v1", f"v_and_b32 v{a1}, 0xffff0000, v1",
          f"v_mul_f32 v{a0}, v{a0}, v11", f"v_mul_f32 v{a1}, v{a1}, v11", f"v_cvt_pk_bf16_f32 v{XR+i}, v{a0}, v{a1}")
        if i % 2: e(f"s_mov_b32 s66, {16384*(i//2)}", f"buffer_store_dwordx2 {v(XR+i-1,2)}, v13, s[16:19], s66 offen sc1")
    e(stamp(2), fstamp(4))
    e("v_lshrrev_b32 v1, 4, v0", "v_lshrrev_b32 v2, 2, v0", "v_and_b32 v2, 3, v2", "v_and_b32 v3, 3, v0",
      "v_and_b32 v5, 1, v1", "v_lshlrev_b32 v4, 1, v2", "v_lshl_or_b32 v4, v5, 3, v4",
      "v_lshl_add_u32 v6, v1, 3, v2", "v_lshlrev_b32 v6, 8, v6", f"v_add_u32 v6, {WA}, v6", "v_lshrrev_b32 v7, 1, v3")
    for T in range(8):
        e(f"v_or_b32 v8, {4*(T >> 1)}, v3", "v_xor_b32 v8, v8, v4", "v_lshl_add_u32 v8, v8, 4, v6", f"v_xor_b32 v9, {T & 1}, v7", f"v_lshl_add_u32 v{AWA+T}, v9, 3, v8")
    e("v_and_b32 v4, 2, v2", "v_lshl_or_b32 v4, v5, 2, v4",
      "v_lshl_add_u32 v6, v5, 3, v2", "v_lshlrev_b32 v6, 7, v6", "v_lshrrev_b32 v8, 1, v1", "v_lshl_add_u32 v6, v8, 12, v6", f"v_add_u32 v6, {WB}, v6")
    for T in range(4):
        e(f"v_or_b32 v8, {4*(T >> 1)}, v3", "v_xor_b32 v8, v8, v4", "v_lshl_add_u32 v8, v8, 4, v6", f"v_xor_b32 v9, {T & 1}, v7", f"v_lshl_add_u32 v{AWB+T}, v9, 3, v8")
    e("v_add_u32 v6, 2048, v6", "v_lshl_add_u32 v6, v3, 3, v6")
    for tt in range(3): e(f"v_xor_b32 v8, {2*tt}, v4", f"v_lshl_add_u32 v{AH+tt}, v8, 4, v6")
    e(fstamp(5))
    lp, ld = newlab("P"), newlab("D")
    tagpoll = E()(f"s_mov_b32 s{sU}, 0", f"{lp}:", "buffer_load_dword v26, v27, s[12:15], 0 offen sc1", "s_waitcnt vmcnt(0)", f"v_readfirstlane_b32 s{sT}, v26",
                  f"s_add_u32 s{sU}, s{sU}, 1", f"s_cmp_gt_u32 s{sU}, {SPIN}", f"s_cbranch_scc1 {ld}",
                  f"s_cmp_eq_u32 s{sT}, 0", f"s_cbranch_scc1 {lp}", f"{ld}:")
    e(wave0(tagpoll), "s_waitcnt vmcnt(0)", fstamp(6), "s_barrier", stamp(3), fstamp(7))
    e(wave0(signal(1)), fstamp(8))
    if not X("allW") and not X("lateW"): e(wgrp(NE, 5))
    if X("touch2"): e(tch)
    e("v_lshrrev_b32 v1, 3, v0", "v_and_b32 v2, 7, v0", f"s_mul_i32 s62, s{sWAVE}, 3072", f"s_lshl_b32 s66, s{sWAVE}, 2")
    for t in range(3):
        e(f"v_add_u32 v3, {8*t}, v1", "v_mul_u32_u24 v4, 171, v3", "v_lshrrev_b32 v4, 9, v4",
          "v_lshrrev_b32 v5, 1, v4", "v_add_u32 v6, s66, v5", "v_and_b32 v6, 7, v6", "v_xor_b32 v6, v2, v6",
          "v_lshlrev_b32 v7, 7, v1", "v_add_u32 v7, s62, v7", f"v_lshl_add_u32 v{DK+t}, v6, 4, v7",
          "v_and_b32 v5, 3, v5", "v_lshlrev_b32 v5, 1, v5", "v_xor_b32 v5, v2, v5", f"v_lshl_add_u32 v{DV+t}, v5, 4, v7")
    for i in range(4): e(f"s_add_u32 s{sMK+i}, s62, {KR + 12288*i}", f"s_add_u32 s{sMV+i}, s62, {VR + 12288*i}")
    e("v_and_b32 v3, 6, v1", "v_xor_b32 v3, v2, v3", "v_mul_u32_u24 v4, 1280, v1", "v_lshl_add_u32 v4, v3, 4, v4", f"s_mul_i32 s66, s{sWAVE}, 10240", f"v_add_u32 v{RLV}, s66, v4")
    e(f"s_mul_i32 s66, s{sM64}, {XF_BLK}")
    if WS_XF: e(f"s_add_u32 s66, s66, {hx(WS_XF)}")
    e(srd(sXF_SRD, pWS, pWS+1, XF_BLK, "s66"))
    e("v_and_b32 v1, 15, v0", "v_lshrrev_b32 v2, 4, v0", "v_lshlrev_b32 v1, 6, v1", f"v_lshl_add_u32 v{LXB}, v2, 4, v1", f"v_add_u32 v{LXB2}, 4096, v{LXB}",
      "v_lshrrev_b32 v3, 1, v2", "v_and_b32 v2, 1, v2", "v_lshrrev_b32 v1, 2, v1", "v_lshl_add_u32 v1, v3, 8, v1", f"v_lshl_add_u32 v{LX8}, v2, 3, v1",
      f"s_mov_b32 s{sX}, 0")
    e(f"s_mul_i32 s66, s{sHEAD}, 786432"); e(srd(sK_SRD, pK, pK+1, 786432, "s66"), srd(sV_SRD, pV, pV+1, 786432, "s66"), relayout_src())
    e(f"s_mul_i32 s66, s{sM64}, {OF_BLK}", f"s_add_u32 s66, s66, {hx(WS_OF)}"); e(srd(sOF_SRD, pWS, pWS+1, OF_BLK, "s66"))
    e(f"s_mov_b32 s{sC}, {hx(f2u(CSCALE))}", f"s_mov_b32 s{sC+1}, {hx(f2u(CSCALE))}", f"s_mov_b32 s{sTHR}, {hx(f2u(THR))}")
    e(f"s_mul_i32 s{sO}, s{sHEAD}, 24576")
    for tt in range(3):
        e(f"s_mul_i32 s66, s{sHEAD}, 3", f"s_add_u32 s66, s66, {tt}", "s_and_b32 s67, s66, 1", "s_lshl_b32 s67, s67, 9",
          "s_lshr_b32 s66, s66, 1", "s_add_u32 s66, s66, 192", "s_lshl_b32 s66, s66, 12", f"s_add_u32 s{sH[tt]}, s66, s67")
    e("v_lshrrev_b32 v1, 4, v0", "v_and_b32 v3, 3, v0",
      "v_lshrrev_b32 v5, 2, v0", "v_mul_u32_u24 v6, 384, v5", f"v_add_u32 v6, {VR}, v6", "v_lshl_add_u32 v6, v3, 3, v6",
      "v_lshrrev_b32 v5, 1, v5", "v_and_b32 v5, 3, v5", "v_lshlrev_b32 v5, 1, v5")
    for sg in range(4): e(f"v_xor_b32 v8, {2*sg}, v5", f"v_lshl_add_u32 v{AV+sg}, v8, 4, v6")
    e("v_and_b32 v2, 15, v0", "v_mul_u32_u24 v6, 384, v2", "v_lshrrev_b32 v2, 1, v2", "v_xor_b32 v2, v2, v1")
    e(f"v_lshl_add_u32 v{AK}, v2, 4, v6", "v_xor_b32 v2, 4, v2", f"v_lshl_add_u32 v{AK+1}, v2, 4, v6", relayout_vaddr(), kv_touch_addr(None), fstamp(9))
    if not X("notouch"):
        e(f"s_lshl_b32 s66, s{sQB}, 3", f"s_lshl_b32 s67, s{sWAVE}, 1", "s_add_u32 s66, s66, s67", "s_mov_b32 s67, 12288", touch_addr(1 if TPS() else 3),
          f"s_mov_b32 s{sTq}, {(TPS()[0] if TPS() else 3 if X('touch3') else 5)*786432}", f"s_mov_b32 s{sT1}, {(TPS()[0] if TPS() else 3 if X('touch3') else 5)*196608}")
    if X("pre2"): e(f"s_mov_b32 s{sTq}, {2*786432}", f"s_mov_b32 s{sT1}, {2*196608}", touch(), advT_())
    for i in range(96): e(f"v_accvgpr_write_b32 a{i}, 0")
    for i in range(48, 192): e(f"v_mov_b32 v{i}, 0")
    e("s_waitcnt vmcnt(0)")
    e(wave0([f"v_lshlrev_b32 v2, 2, v0", f"s_lshl_b32 s{sCNT}, s{sQB}, 7"] + poll(1, ("-1", "0"), f"s{sCNT}")))
    e("s_barrier", fstamp(10))
    for k in range(2): e(ldB(k), advX)
    e([qrd(0, T, kk, uu) for T in range(2) for kk in range(2) for uu in range(2)], wgrp(NE, 5) if X("lateW") else [])
    e(f"s_mov_b32 s{sCNT}, 0", fstamp(11), f"s_waitcnt vmcnt({20 if X('lateW') else 8}) lgkmcnt(4)", stamp(5), fstamp(12))
    return e

TB, TA, TAD, TD, TB8 = 16, 96, 160, 162, 164
sTW, sTB, sMT, sSP = 39, 58, 40, 54
LEAD = 3
def tacc(nt, qt): return (nt*2 + qt)*4
def t_rd(st, nt, kk, dst):
    slot = st % 4
    return f"ds_read_b128 {v(dst, 4)}, v{TAD + slot//3} offset:{(slot%3)*20480 + (kk*10 + nt)*1024}"
def t_A(st, nt, kk): return TA + 8*((10*st + nt) % 4) + 4*kk
def t_B(st, kk, qt): return TB + 16*(st % 4) + 8*kk + 4*qt
def t_ldB(st, g):
    if not g: return [f"buffer_load_dwordx4 {v(t_B(st,kk,qt), 4)}, v{LX}, s[16:19], s{sTB + kk} offen offset:{1024*qt} sc1 ; @B{st}" for kk in range(2) for qt in range(2)]
    return [f"buffer_load_dwordx2 {v(t_B(st,kk,qt) + 2*h, 2)}, v{TB8}, s[16:19], s{sTB + kk} offen offset:{1024*qt + 512*h} sc1 ; @B{st}" for kk in range(2) for qt in range(2) for h in range(2)]
t_advB = [f"s_add_u32 s{sTB}, s{sTB}, 8192", f"s_add_u32 s{sTB+1}, s{sTB+1}, 8192"]
def t_dmaW(st, t): return f"buffer_load_dwordx4 v{TD + (t == 4)}, s[12:15], s{sTW} offen offset:{1024*(t%4)} {'' if X('wplain') else 'sc1 '}lds ; @W{st}"
def t_m0(st, t): return f"s_add_u32 m0, s{sMT}, {(st%4)*20480 + (4096 if t == 4 else 0)}"
t_advW = [f"s_add_u32 s{sTW}, s{sTW}, 20480"]
def tplan(g):
    if g: pl = {2: ("W", LEAD-1, 3), 3: ("B", 0), 6: ("B", 1), 7: ("B", 2), 11: ("W", LEAD-1, 4), 10: ("B", 3), 14: ("B", 4), 15: ("B", 5), 19: ("B", 6), 22: ("B", 7)}
    else: pl = {2: ("W", LEAD-1, 3), 6: ("B", 0), 11: ("W", LEAD-1, 4), 15: ("B", 1), 19: ("B", 2), 23: ("B", 3)}
    pl.update({30: ("W", LEAD, 0), 34: ("W", LEAD, 1), 38: ("W", LEAD, 2)})
    return pl
sIT, sCP, sNW, sNB, sNF, sDA, sDB, FV, FA_ = 50, 52, 53, 49, 47, 45, 43, 166, 165
sFM, sFB = 60, 62
def decode():
    return [f"s_and_b32 s{sDA}, s{sIT}, 7", f"s_lshl_b32 s{sDA}, s{sDA}, 2", f"s_lshr_b32 s{sDA}, s{sCP}, s{sDA}", f"s_and_b32 s{sDA}, s{sDA}, 15",
            f"s_bfe_u32 s{sDB}, s{sIT}, 0x20003", f"s_mul_i32 s{sNF}, s{sDA}, s{sFM}", f"s_add_u32 s{sNF}, s{sNF}, s{sFB}",
            f"s_mul_i32 s{sDA}, s{sDA}, 3", f"s_add_u32 s{sDA}, s{sDA}, s{sDB}", f"s_mul_i32 s{sNW}, s{sDA}, 81920", f"s_lshl_b32 s{sNB}, s{sDA}, 15"]
shiftIT = f"s_lshr_b64 s[{sIT}:{sIT+1}], s[{sIT}:{sIT+1}], 5"
def flagld(): return f"buffer_load_dword v{FV}, v{FA_}, {srdn(sFL)}, s{sNF} offen sc1 ; @F"
def flagchk(): return [f"v_subrev_u32 v{FV}, s{sT}, v{FV}", f"v_subrev_u32 v{FV}, 3, v{FV}", f"v_cmp_lt_u32 vcc, 1, v{FV}"]
def flagspin(entry, back):
    l = newlab("S")
    return E()(f"{entry}:", f"s_mov_b32 s{sU}, 0", f"{l}:", flagld(), "s_waitcnt vmcnt(0)", flagchk(), f"s_add_u32 s{sU}, s{sU}, 1", f"s_cmp_gt_u32 s{sU}, {SPIN}",
               f"s_cbranch_scc1 {back}", f"s_cbranch_vccnz {l}", f"s_branch {back}")
def tstage(st, g, vmw, last=1 << 30, nextA=None):
    L = []
    pl = tplan(g)
    ldb = t_ldB(st + LEAD, g)
    for p in range(20):
        nt = p >> 1; qt = (p & 1) ^ (nt & 1)
        for kk in range(2):
            gi = 2*p + kk
            acc = a(tacc(nt, qt), 4)
            L.append(f"{MF} {acc}, {v(t_A(st,nt,kk), 4)}, {v(t_B(st,kk,qt), 4)}, {acc}")
            if gi % 4 < 2:
                st2, nt2 = st + (nt+3)//10, (nt+3) % 10
                if st2 == st or nextA is None: L.append(t_rd(st2, nt2, gi % 4, t_A(st2, nt2, gi % 4)))
                else: L.append(nextA[2*nt2 + gi % 4])
                if gi % 4 == 1: L.append("s_waitcnt lgkmcnt(4)")
                if gi == 28 and st + LEAD < last: L.append(t_m0(st + LEAD, 0))
                if gi == 4 and st + LEAD - 1 < last: L.append(t_m0(st + LEAD - 1, 4))
                dyn = not g and last > 32
                if gi == 12 and st + LEAD - 1 < last: L += [f"s_mov_b32 s{sTW}, s{sNW}"] if dyn and st % 4 == 1 else t_advW
                if gi == 24 and st + LEAD < last: L.append(f"s_mov_b32 s{sTB}, s{sNB}" if dyn and st % 4 == 0 else t_advB[0])
                if gi == 32 and st + LEAD < last: L.append(f"s_add_u32 s{sTB+1}, s{sNB}, 4096" if dyn and st % 4 == 0 else t_advB[1])
            if not g and last > 32:
                if st % 4 == 2:
                    dc = [shiftIT] + decode()
                    pos = {0: dc[0:1], 3: dc[1:3], 7: dc[3:5], 8: dc[5:6], 10: dc[6:8], 14: dc[8:10], 16: dc[10:11], 18: dc[11:12]}
                    L += pos.get(gi, [])
                    if gi == 26: L.append(flagld())
                if st % 4 == 0:
                    fc = flagchk()
                    if gi == 31: L += fc[:2]
                    if gi == 35: L += fc[2:]
                    if gi == 39: L += ["s_cbranch_vccnz F_TSP", "F_TSB:"]
            if gi in pl:
                x = pl[gi]
                if x[0] == "W":
                    if st + x[1] < last: L.append(t_dmaW(st + x[1], x[2]))
                elif st + LEAD < last: L.append(ldb[x[1]])
            if gi == 27: L += [f"s_waitcnt vmcnt({vmw})", "s_barrier"]
    return L
def tpreW():
    e = E()
    for st in range(LEAD-1):
        e(t_m0(st, 0), "s_nop 0", [t_dmaW(st, t) for t in range(4)], t_m0(st, 4), "s_nop 0", t_dmaW(st, 4), t_advW)
    return e(t_m0(LEAD-1, 0), "s_nop 0", [t_dmaW(LEAD-1, t) for t in range(3)])
def tpreB():
    e = E()
    for st in range(LEAD): e(t_ldB(st, False), t_advB)
    return e
def tpre(g=False):
    if X("wfirst"): return tpreW() + tpreB()
    e = E()
    for st in range(LEAD-1):
        e(t_m0(st, 0), "s_nop 0", [t_dmaW(st, t) for t in range(4)], t_m0(st, 4), "s_nop 0", t_dmaW(st, 4), t_advW, t_ldB(st, g), t_advB)
    e(t_ldB(LEAD-1, g), t_advB, t_m0(LEAD-1, 0), "s_nop 0", [t_dmaW(LEAD-1, t) for t in range(3)])
    return e
def tcounts():
    L = tpre()
    for st in range(12): L = L + tstage(st, False, f"@W{st+1},@B{st+1}")
    L = [l for l in L if not l.startswith(("s_cbranch", "F_"))]
    c = [int(re.search(r"vmcnt\((\d+)\)", l).group(1)) for l in resolve(L, []) if "vmcnt" in l]
    steady = [min(c[4+k], c[8+k]) for k in range(4)]
    return steady, {k: c[k] for k in range(4) if c[k] < steady[k]}
tstubs = []
def tloop():
    steady, first = tcounts()
    dec1 = E()(f"s_mov_b32 s{sTW}, s{sNW}", f"s_mov_b32 s{sTB}, s{sNB}", f"s_add_u32 s{sTB+1}, s{sNB}, 4096")
    wait0 = E()(f"s_cmp_eq_u32 s{sSP}, 3", "s_cbranch_scc1 F_T0B", flagspin("F_T0", "F_T0B"), "F_T0B:", stamp(11), fstamp(4, "tail"), fstamp(9, "last"), shiftIT, decode(), flagld())
    if X("wfirst"): pre = E()(decode(), dec1, tpreW(), wait0, resolve(tpreB() + ["s_waitcnt vmcnt(@B0)"], []))
    else: pre = E()(decode(), dec1, wait0, resolve(tpre() + ["s_waitcnt vmcnt(@W0,@B0)"], []))
    pre("s_barrier", [t_rd(0, nt, kk, t_A(0, nt, kk)) for nt in range(3) for kk in range(2)], f"s_mov_b32 s{sCNT}, 0", "s_waitcnt lgkmcnt(4)", fstamp(10, "last"), fstamp(5, "tail"))
    body = []; fp = []; tstubs.clear()
    for st in range(4):
        b = tstage(st, False, steady[st])
        if st in first:
            k = b.index(f"s_waitcnt vmcnt({steady[st]})")
            fp += b[:k] + [f"s_waitcnt vmcnt({first[st]})"] + b[k+1:]
            j = max(i for i in range(k) if b[i].startswith(MF)); j = max(i for i in range(j) if b[i].startswith(MF))
            b = b[:j+1] + [f"s_cmp_eq_u32 s{sCNT}, 0"] + b[j+1:k] + [f"s_cbranch_scc1 F_US{st}", b[k], f"F_UB{st}:"] + b[k+1:]
            tstubs.extend([f"F_US{st}:", f"s_waitcnt vmcnt({first[st]})", f"s_branch F_UB{st}"])
        else: fp += b
        body += b
    ctl = [f"s_add_u32 s{sCNT}, s{sCNT}, 1", f"s_cmp_lt_u32 s{sCNT}, s46", "s_cbranch_scc1 F_TLS"]
    return pre, body, ctl, steady, fp
def pb_off(): return E()(f"s_lshl_b32 s41, s{sWAVE}, 2", f"s_add_u32 s41, s41, s{sSP}", "s_mul_i32 s41, s41, 20480",
                         f"s_cmp_eq_u32 s{sWAVE}, s{sSP}", "s_cselect_b32 s41, 0x10000000, s41")
def own_write():
    l = newlab("O")
    e = E()(f"s_cmp_lg_u32 s{sWAVE}, s{sSP}", f"s_cbranch_scc1 {l}", f"v_add_u32 v4, {OWN}, v{LX}")
    for i in range(20): e(f"ds_write_b128 v4, {a(tacc(i % 10, i // 10), 4)} offset:{1024*i}")
    return e(f"{l}:")
def tfinal(cnt):
    FA = lambda nt, k: TA + 16*(nt % 4) + 4*k
    frd = lambda nt, k: t_rd(30 + (k >> 1), nt, k & 1, FA(nt, k))
    e = E()
    for l in tstage(28, False, "@W29,@B29", last=32):
        e(l)
        if l.startswith("buffer_load") and l.endswith("@W31") and "offset:2048" in l:
            e.last = len(e)
    tail = e[e.last:]; del e[e.last:]
    k = [i for i, l in enumerate(tail) if l.startswith(MF)]
    assert len(k) == 1
    e(t_dmaW(31, 3), tail[k[0]], t_m0(31, 4), "s_nop 0", t_dmaW(31, 4))
    n = 0
    for l in tstage(29, False, "0", last=31):
        if l.startswith("ds_read"):
            n += 1
            if n > 14: continue
        if l == "s_waitcnt lgkmcnt(4)" and n > 14: l = "s_waitcnt lgkmcnt(0)"
        if l.startswith("s_waitcnt vmcnt") or l == "s_barrier": continue
        e(l)
    e("s_waitcnt vmcnt(@W30,@B30,@W31,@B31)", "s_barrier")
    e([frd(0, k) for k in range(4)], [frd(1, k) for k in range(4)], pb_off(), "s_waitcnt lgkmcnt(4)")
    pend = []
    for nt in range(10):
        for qt in range(2):
            for k in range(4):
                g = 4*qt + k
                acc = a(tacc(nt, qt), 4)
                e(f"{MF} {acc}, {v(FA(nt,k),4)}, {v(t_B(30 + (k >> 1), k & 1, qt),4)}, {acc}")
                if g < 4 and nt + 2 < 10: e(frd(nt+2, g))
                if g == 3 and nt + 1 < 10: e(f"s_waitcnt lgkmcnt({4 if nt + 2 < 10 else 0})")
                if g in (4, 6) and nt > 0:
                    q2 = (g-4)//2; i = q2*10 + nt-1
                    e(f"buffer_store_dwordx4 {a(tacc(nt-1,q2),4)}, v{LX}, s[20:23], s{42+q2} offen sc1")
                if g in (1, 2) and nt > 0:
                    q2 = g - 1; e(f"s_add_u32 s{42+q2}, s41, {1024*(q2*10 + nt-1)}")
    e("s_add_u32 s42, s41, 9216", "s_add_u32 s43, s41, 19456", "s_nop 5")
    for q2 in range(2): e(f"buffer_store_dwordx4 {a(tacc(9,q2),4)}, v{LX}, s[20:23], s{42+q2} offen sc1")
    e(own_write())
    return e
def gfinal():
    e = E()(pb_off(), "s_waitcnt vmcnt(0) lgkmcnt(0)", "s_nop 1")
    for i in range(20):
        b = tacc(i % 10, i // 10); d = 16 + 6*(i % 8)
        for r in range(4): e(f"v_accvgpr_read_b32 v{d+r}, a{b+r}")
        e(f"v_cvt_pk_bf16_f32 v{d+4}, v{d}, v{d+1}", f"v_cvt_pk_bf16_f32 v{d+5}, v{d+2}, v{d+3}")
        if i % 8 == 0: e(f"s_add_u32 s42, s41, {512*i}")
        e(f"buffer_store_dwordx2 {v(d+4,2)}, v{TB8}, s[20:23], s42 offen offset:{512*(i%8)} sc1")
    e(own_write())
    return e
def items(lst):
    x = 0
    for k, (rb, th) in enumerate(lst): x |= (rb | th << 3) << (5*k)
    return x
def blk(*rbs): return [(rb, th) for rb in rbs for th in range(3)]
PATTERNS = {"B": [blk(0, 2, 4), blk(1, 3, 5), blk(6, 7)],
            "C": [blk(0, 2, 4) + [(5, 0)], blk(1, 3) + [(5, 1), (5, 2)], blk(6, 7)],
            "D": [blk(0, 2, 4), blk(1, 3) + [(5, 0), (5, 1)], [(5, 2)] + blk(6, 7)],
            "E": [blk(0, 2, 4) + [(5, 0)], blk(1, 3) + [(5, 1)], [(5, 2)] + blk(6, 7)],
            "F": [blk(0, 3) + [(6, 0), (6, 1)], blk(1, 4) + [(6, 2), (7, 0)], blk(2, 5) + [(7, 1), (7, 2)]],
            "G": [blk(0, 2) + [(4, 0), (4, 1)], blk(1, 3) + [(4, 2), (5, 0)], [(5, 1), (5, 2)] + blk(6, 7)],
            "A": [blk(0, 3) + [(6, 0), (6, 1)], blk(1, 4) + [(6, 2), (7, 0)], blk(2, 5) + [(7, 1), (7, 2)]]}
DV_ = 136
def roles():
    e = E()
    l, d = newlab("R"), newlab("D")
    e(f"s_mov_b32 s{sU}, 0", f"{l}:", f"v_cmp_eq_u32 vcc, 0, v{DV_}", f"s_add_u32 s{sU}, s{sU}, 1", "s_nop 2", "s_and_b32 s41, vcc_lo, 0xff00", f"s_cbranch_scc0 {d}",
      f"s_cmp_gt_u32 s{sU}, {SPIN}", f"s_cbranch_scc1 {d}", f"buffer_load_dword v{DV_}, v{DV_+1}, s[28:31], 0 offen sc1", "s_waitcnt vmcnt(0)", f"s_branch {l}", f"{d}:")
    e(f"v_readlane_b32 s{sT}, v{DV_}, 0", f"s_mov_b32 s{sCP}, 0", "s_and_b32 s41, s2, 7", "s_add_u32 s41, s41, 8", f"v_readlane_b32 s42, v{DV_}, s41")
    e([f"v_readlane_b32 s{12+c}, v{DV_}, {8+c}" for c in range(8)], "s_nop 3")
    for c in range(1, 8):
        e(f"s_sub_u32 s41, s{12+c}, 1", "s_and_b32 s41, s41, 7", "s_lshl_b32 s41, s41, 2", f"s_lshl_b32 s41, {c}, s41", f"s_or_b32 s{sCP}, s{sCP}, s41")
    e("s_sub_u32 s42, s42, 1", "s_and_b32 s42, s42, 7")
    if X("static"): e("s_and_b32 s42, s2, 7", f"s_mov_b32 s{sCP}, 0x76543210")
    e(f"s_lshr_b32 s{sSP}, s42, 1", "s_add_u32 s55, s42, 1", "s_lshr_b32 s55, s55, 1", "s_and_b32 s55, s55, 1", f"s_and_b32 s56, s{sHEAD}, 3")
    pat = PATTERNS[[x[3:] for x in EXP[0].split() if x.startswith("pat")][0] if "pat" in EXP[0] else "D"]
    pat = pat + [blk(0, 1)]
    for m in (3, 2, 1, 0):
        x = items(pat[m])
        if m == 3: e(f"s_mov_b32 s{sIT}, {hx(x)}", f"s_mov_b32 s{sIT+1}, {hx(x >> 32)}", f"s_mov_b32 s46, {len(pat[m]) - 1}")
        else: e(f"s_cmp_eq_u32 s{sSP}, {m}", f"s_cselect_b32 s{sIT}, {hx(x)}, s{sIT}", f"s_cselect_b32 s{sIT+1}, {hx(x >> 32)}, s{sIT+1}", f"s_cselect_b32 s46, {len(pat[m]) - 1}, s46")
    e(f"s_lshl_b32 s41, s{sQB}, 7", f"s_lshl_b32 s42, s{sHEAD}, 2", "s_add_u32 s42, s42, s41", f"s_cmp_eq_u32 s{sSP}, 3", f"s_cselect_b32 s{sCP}, 0x98, s{sCP}",
      f"s_cselect_b32 s{sFM}, 0, 16", f"s_cselect_b32 s{sFB}, s42, s41", "s_cselect_b32 s40, 0, 3")
    return e
def tail_setup():
    e = E()
    e("v_and_b32 v1, s40, v0", f"v_lshlrev_b32 v{FA_}, 2, v1")
    e(f"s_mul_i32 s41, s56, {WF160}", f"s_add_u32 s41, s41, {hx(WS_WF)}")
    e(srd(12, pWS, pWS+1, WF160, "s41"))
    e(f"s_lshl_b32 s41, s{sQB}, 2", "s_lshl_b32 s42, s55, 1", "s_add_u32 s41, s41, s42", f"s_lshr_b32 s42, s{sWAVE}, 1", "s_add_u32 s41, s41, s42",
      f"s_mul_i32 s41, s41, {OF_BLK}",
      f"s_and_b32 s42, s{sWAVE}, 1", "s_lshl_b32 s42, s42, 11", "s_add_u32 s41, s41, s42", f"s_add_u32 s41, s41, {hx(WS_OF)}",
      f"s_sub_u32 s43, {OF_BLK}, s42")
    e(srd(16, pWS, pWS+1, "s43", "s41"))
    e(f"s_mov_b32 s{sTB}, 0", f"s_mov_b32 s{sTB+1}, 4096", f"s_mov_b32 s{sTW}, 0", f"s_mul_i32 s{sMT}, s{sWAVE}, 5120")
    e(f"s_lshl_b32 s41, s{sQB}, 1", "s_add_u32 s41, s41, s55", "s_lshl_b32 s41, s41, 2", "s_add_u32 s41, s41, s56", "s_mul_i32 s41, s41, 327680",
      f"s_add_u32 s41, s41, {hx(WS_PB)}")
    e(srd(20, pWS, pWS+1, 327680, "s41"))
    e(f"s_lshl_b32 s41, s{sQB}, 3", "s_lshl_b32 s42, s55, 2", "s_add_u32 s41, s41, s42", f"s_add_u32 s41, s41, s{sSP}", "s_lshl_b32 s41, s41, 1",
      f"s_and_b32 s42, s{sWAVE}, 1", "s_add_u32 s41, s41, s42", "s_mul_i32 s41, s41, 20480",
      "s_mul_i32 s42, s56, 320", "s_add_u32 s41, s41, s42", f"s_lshr_b32 s42, s{sWAVE}, 1", "s_mul_i32 s42, s42, 160", "s_add_u32 s41, s41, s42",
      "s_sub_u32 s42, 2621440, s41")
    e(srd(24, pX, pX+1, "s42", "s41")); e(srd(28, pOUT, pOUT+1, "s42", "s41"))
    e("s_lshl_b32 s44, 0x11111111, s56", f"s_lshl_b32 s48, s{sQB}, 7")
    return e
def tail_vsetup():
    return E()(f"v_add_u32 v{TD}, s{sMT}, v{LX}", f"v_add_u32 v{TD+1}, 4096, v{TD}", f"v_mov_b32 v{TAD}, v{LX}", f"v_add_u32 v{TAD+1}, 61440, v{LX}",
               [f"v_accvgpr_write_b32 a{i}, 0" for i in range(80)])

def laststep(i=63):
    Pc = Pb(i)
    e = E()
    e(rdVp(62, 0))
    e(wave0([f"buffer_load_dwordx4 v[140:143], v{LX}, {srdn(sFL)}, 0 offen sc1"]))
    e(srd(28, pDBG, pDBG+1, 64), "v_and_b32 v138, 15, v0", f"v_lshlrev_b32 v{DV_+1}, 2, v138", f"buffer_load_dword v{DV_}, v{DV_+1}, s[28:31], 0 offen sc1")
    Ex, Sx = sm(S1, [2, 3], Pc, 1)
    e(Ex, rdVp(62, 1, KF))
    e([x for _, x in Sx], CHK, "s_waitcnt lgkmcnt(12)", callsite(i % 4), LADD, "s_nop 0", fstamp(2, "last"))
    RI = 8
    Xl = xlane("v_add_f32", L_, 2) + [f"v_rcp_f32 v{RI+2*qt}, v{L_+qt}" for qt in range(4)]
    def mix(m, fill, per=1):
        for x in m:
            e(x)
            for _ in range(per):
                if fill: e(fill.pop(0))
    r2, r3 = rdVp(62, 2), rdVp(62, 3, KF)
    ok = newlab("K")
    chk = E()(f"s_add_u32 s{sTMP}, s{sT}, 2")
    for r in range(4): chk(f"v_subrev_u32 v{140+r}, s{sTMP}, v{140+r}")
    chk("v_max3_u32 v140, v140, v141, v142", "v_max_u32 v140, v140, v143", "v_cmp_lt_u32 vcc, 2, v140", "s_nop 1", f"s_cbranch_vccz {ok}",
        f"v_mov_b32 v2, v{LX}", poll(2, ("-1", "-1"), "0", wide=True), f"{ok}:")
    def norm(j):
        o = E()(f"s_add_u32 s{sTMP}, s{sO}, {4096*j}")
        for qt in range(4):
            k = 4*j + qt
            t = 64 + 8*(k % 4); d = 112 + 4*(k % 6)
            for hh in range(2):
                b = Oacc(2*j+hh, qt)
                for r in range(4): o(f"v_accvgpr_read_b32 v{t+4*hh+r}, a{b+r}")
            for r in range(0, 8, 2): o(f"v_pk_mul_f32 {v(t+r,2)}, {v(t+r,2)}, {v(RI+2*qt,2)} op_sel_hi:[1,0]")
            for r in range(4): o(f"v_cvt_pk_bf16_f32 v{d+r}, v{t+2*r}, v{t+2*r+1}")
            o(f"buffer_store_dwordx4 {v(d,4)}, v{LX}, {srdn(sOF_SRD)}, s{sTMP} offen offset:{1024*qt} sc1")
        return o
    mix(pv(62, 0), Xl, 2); e(Xl, "s_waitcnt lgkmcnt(0)", fstamp(3, "last"))
    if X("oldlast"):
        mix(pv(62, 1, src=KF), r2); e("s_waitcnt lgkmcnt(0)"); mix(pv(62, 2), r3)
        e(norm(0), norm(1), "s_waitcnt lgkmcnt(0)", pv(62, 3, src=KF), norm(2), norm(3), norm(4), norm(5))
    else:
        mix(pv(62, 1, src=KF), r2); e(norm(0), "s_waitcnt lgkmcnt(0)")
        mix(pv(62, 2), r3); e(norm(1), norm(2), "s_waitcnt lgkmcnt(0)", pv(62, 3, src=KF), norm(3), norm(4), norm(5))
    CHK2[:] = wave0(chk)
    return e
CHK2 = []

def tail_end():
    e = E()
    XV = 232
    e("v_and_b32 v3, 15, v0", "v_mul_u32_u24 v3, 1280, v3", "v_lshrrev_b32 v4, 4, v0", "v_lshl_add_u32 v3, v4, 3, v3", fstamp(7, "tail"))
    e("s_waitcnt vmcnt(0) lgkmcnt(0)", fstamp(8, "tail"), "s_barrier", fstamp(9, "tail"), wave0(signal(4)))
    for nt in range(5): e(f"buffer_load_dwordx2 {v(XV+2*nt,2)}, v3, s[24:27], 0 offen offset:{32*nt}")
    e(f"s_and_b32 s42, s{sWAVE}, 1", "s_mul_i32 s42, s42, 10240", f"s_lshr_b32 s43, s{sWAVE}, 1", "s_mul_i32 s43, s43, 5120", "s_add_u32 s42, s42, s43",
      f"s_add_u32 s43, s42, {OWN}", f"v_add_u32 v5, s43, v{LX}")
    for i in range(5): e(f"ds_read_b128 {v(176+4*i,4)}, v5 offset:{1024*i}")
    e(f"s_mul_i32 s41, s{sSP}, 81920", "s_add_u32 s50, s41, s42", "s_add_u32 s51, s50, 20480", "s_add_u32 s52, s50, 40960", "s_add_u32 s53, s50, 61440")
    for src in range(4): e(f"s_cmp_eq_u32 s{sSP}, {src}", f"s_cselect_b32 s{50+src}, 0x10000000, s{50+src}")
    e(f"s_cmp_eq_u32 s{sSP}, 3", "s_cselect_b32 s56, 0, 1.0", "s_cselect_b32 s57, 1.0, 0", f"v_add_u32 v5, 4096, v{LX}", f"s_mov_b32 s38, {hx(f2u(-math.log2(math.e)))}")
    e(wave0(["v_lshlrev_b32 v2, 2, v0"] + poll(4, ("s44", "0"), "s48")), "s_barrier", stamp(4), fstamp(10, "tail"))
    def ldp(i):
        return [f"buffer_load_dwordx4 {v(16+16*i+4*src,4)}, v{LX if i < 4 else 5}, s[20:23], s{50+src} offen offset:{1024*(i%4)} sc1 ; @P{i}" for src in range(4)]
    AH_ = ([int(x[2:]) for x in EXP[0].split() if x.startswith("ah")] or [2])[0]
    k0 = len(e)
    for i in range(AH_): e(ldp(i))
    e("s_waitcnt lgkmcnt(0)")
    for nt in range(5):
        S = 16 + 16*nt; G = S + 12; Xr = XV + 2*nt; t = 112 + 12*nt; W = 176 + 4*nt
        if nt + AH_ < 5: e(ldp(nt + AH_))
        e(f"s_waitcnt vmcnt(@P{nt})", fstamp(11, "tail") if nt == 0 else [])
        for r in range(4): e(f"v_add_f32 v{S+r}, v{S+r}, v{S+4+r}")
        for r in range(4): e(f"v_fmac_f32 v{G+r}, s57, v{W+r}")
        for r in range(4): e(f"v_add_f32 v{S+r}, v{S+r}, v{S+8+r}")
        for r in range(4): e(f"v_fmac_f32 v{S+r}, s56, v{W+r}")
        e(f"v_cvt_pk_bf16_f32 v{t+2}, v{G}, v{G+1}", f"v_cvt_pk_bf16_f32 v{t+3}, v{G+2}, v{G+3}",
          f"v_cvt_pk_bf16_f32 v{t}, v{S}, v{S+1}", f"v_cvt_pk_bf16_f32 v{t+1}, v{S+2}, v{S+3}")
        for k in range(2):
            e(f"v_lshlrev_b32 v{G+2*k}, 16, v{t+2+k}", f"v_and_b32 v{G+2*k+1}, 0xffff0000, v{t+2+k}",
              f"v_lshlrev_b32 v{S+2*k}, 16, v{t+k}", f"v_and_b32 v{S+2*k+1}, 0xffff0000, v{t+k}")
        for r in range(4): e(f"v_mul_f32 v{t+4+r}, s38, v{G+r}")
        for r in range(4): e(f"v_exp_f32 v{t+4+r}, v{t+4+r}")
        for r in range(4): e(f"v_add_f32 v{t+4+r}, 1.0, v{t+4+r}")
        for r in range(4): e(f"v_rcp_f32 v{t+4+r}, v{t+4+r}")
        for r in range(4): e(f"v_mul_f32 v{G+r}, v{G+r}, v{t+4+r}")
        e(f"v_cvt_pk_bf16_f32 v{t+2}, v{G}, v{G+1}", f"v_cvt_pk_bf16_f32 v{t+3}, v{G+2}, v{G+3}")
        for k in range(2): e(f"v_lshlrev_b32 v{G+2*k}, 16, v{t+2+k}", f"v_and_b32 v{G+2*k+1}, 0xffff0000, v{t+2+k}")
        for r in range(4): e(f"v_mul_f32 v{S+r}, v{S+r}, v{G+r}")
        e(f"v_cvt_pk_bf16_f32 v{t}, v{S}, v{S+1}", f"v_cvt_pk_bf16_f32 v{t+1}, v{S+2}, v{S+3}")
        for k in range(2):
            e(f"v_lshlrev_b32 v{S+2*k}, 16, v{t+k}", f"v_and_b32 v{S+2*k+1}, 0xffff0000, v{t+k}",
              f"v_lshlrev_b32 v{G+2*k}, 16, v{Xr+k}", f"v_and_b32 v{G+2*k+1}, 0xffff0000, v{Xr+k}")
        for r in range(4): e(f"v_add_f32 v{S+r}, v{S+r}, v{G+r}")
        e(f"v_cvt_pk_bf16_f32 v{t+8}, v{S}, v{S+1}", f"v_cvt_pk_bf16_f32 v{t+9}, v{S+2}, v{S+3}")
        e(f"buffer_store_dwordx2 {v(t+8,2)}, v3, s[28:31], 0 offen offset:{32*nt}" + (" sc1" if X("outsc1") else "") + (" nt" if X("outnt") else ""))
    e[k0:] = resolve(e[k0:], [])
    e(fstamp(12, "tail"))
    return e

def encode():
    en = [x for x in EXP[0].split() if x.startswith("enc:")]
    if not en: return []
    _, i, j, mult, W = en[0].split(":")
    return E()(f"s_cmp_lg_u32 s2, {W}", "s_cbranch_scc1 F_END", f"s_sub_u32 s66, s{88+int(j)}, s{88+int(i)}", f"s_mul_i32 s66, s66, {mult}", "s_add_u32 s66, s66, 15000",
               "F_ENC:", "s_memrealtime s[86:87]", "s_waitcnt lgkmcnt(0)", "s_sub_u32 s67, s86, s88", "s_cmp_lt_u32 s67, s66", "s_cbranch_scc1 F_ENC")

def gen(exp=""):
    sites.clear(); lab[0] = 0; EXP[0] = exp
    L = E()(kernel_head(NAME))
    if X("early0"): L("s_memrealtime s[100:101]")
    L("s_cmp_ge_u32 s2, 256", "s_cbranch_scc1 F_END")
    pro = front() + (cstamp(8) if X("qcyc") else [])
    qc, qfirst, q18 = qcounts()
    qloop = []; qfp = []; stubs = E()
    for u in range(6):
        b = qsub(u, last=40, vmw=qc[u])
        if u in qfirst:
            k = b.index(f"s_waitcnt vmcnt({qc[u]})")
            qfp += b[:k] + [f"s_waitcnt vmcnt({qfirst[u]})"] + b[k+1:]
            j = max(i for i in range(k) if b[i].startswith(MF))
            j = max(i for i in range(j) if b[i].startswith(MF))
            b = b[:j+1] + [f"s_cmp_eq_u32 s{sCNT}, 0"] + b[j+1:k] + [f"s_cbranch_scc1 F_QS{u}", b[k], f"F_QB{u}:"] + b[k+1:]
            stubs(f"F_QS{u}:", f"s_waitcnt vmcnt({qfirst[u]})", f"s_branch F_QB{u}")
        else: qfp += b
        qloop += b
    qctl = [f"s_add_u32 s{sCNT}, s{sCNT}, 1", f"s_cmp_lt_u32 s{sCNT}, 3", "s_cbranch_scc1 F_QL"]
    ex = {18: {}, 19: {}}
    for (kind, j), (u, g0) in zip([("K", 0), ("K", 1), ("V", 0), ("K", 2)], [(18, 4), (18, 20), (18, 36), (19, 4)]):
        m, d = kvgroup(kind, j)
        ex[u].setdefault(g0, []).extend(m)
        for t, dg in enumerate((1, 2, 3)): ex[u].setdefault(g0 + dg, []).append(d[t])
    rd = relayout_dst()
    if X("hfirst"):
        for k, g in enumerate(8*a_ + b_ for a_ in range(6) for b_ in range(3)): ex[18].setdefault(g, []).append(rd[k])
    else:
        for k, g in enumerate((36, 37, 38, 39, 44, 45, 46, 47, 52)): ex[19].setdefault(g, []).extend(rd[2*k:2*k+2])
    q19 = qsub(19, extra=ex[19])
    if X("hfirst"):
        q19, left = fill(q19, hops())
        if X("showcnt"): print("h ops left over:", len(left))
        q19 += left
    mid = qsub(18, extra=ex[18], vmw="@W19") + q19 + stamp(6) + fstamp(1, "conv") + (cstamp(9) if X("qcyc") else []) + convert() + fstamp(2, "conv") + init() + fstamp(7, "conv") + stamp(7) + (cstamp(8) if not (X("tcyc") or X("qcyc")) else [])
    keep = mid
    mid = [l + (" ; " + re.search(r"@\S+", k).group(0) if k.startswith("buffer_") and "@" in k and "@" not in l else "") for l, k in zip(resolve(mid, q18), keep)]
    ctl = [f"s_add_u32 s{sCNT}, s{sCNT}, 1", f"s_bitcmp1_b32 {hx(1 << 11 | 1 << 12 | 1 << 15)}, s{sCNT}", "s_cbranch_scc0 F_AL"]
    rlk = {1: "dma", 3: "out"} if not X("norl") else {}
    if not X("nokvt"): rlk.update({2: "tk", 0: "tv"})
    mid = mid + [f"s_mov_b32 s{sCNT}, 0"]
    def mk(i, w): return step(i, vmw=w, tail=ctl if (i >= 3 and i % 4 == 2) else (), rl=rlk.get(i % 4) if i >= 3 else None)
    q = [re.search(r"@(\S+)", l).group(1) if "@" in l else "-" for l in mid if l.startswith("buffer_")]; cnts = {}
    for i in range(23):
        key = i if i < 3 else 3 + (i-3) % 4
        for l in mk(i, "?"):
            if "vmcnt(?)" in l:
                need = [f"K{i+2}"] + ([f"V{i}", f"V{i+1}"] if i % 2 == 0 else []) + (["R"] if i % 4 == 2 else [])
                c = len(q) - 1 - max(k for k, x in enumerate(q) if x in need)
                cnts[key] = min(cnts.get(key, 63), c)
            if l.startswith("buffer_"): q.append(re.search(r"@(\S+)", l).group(1))
    sites.clear()
    s0 = mk(0, cnts[0]) + mk(1, cnts[1]) + mk(2, cnts[2])
    body = [mk(i, cnts[i]) for i in range(3, 7)]
    def drop(pred):
        for k in range(4): body[k] = [l for l in body[k] if not pred(l)]
    if X("x_nobar"): drop(lambda l: l == "s_barrier")
    if X("x_nodma"): drop(lambda l: l.startswith("buffer_"))
    if X("x_nochk"): drop(lambda l: l.startswith("s_cbranch_vccnz"))
    if X("x_nolgkm"):
        for k in range(4): body[k] = [re.sub(r" lgkmcnt\(\d+\)", "", l) for l in body[k] if not l.startswith("s_waitcnt lgkmcnt")]
    if X("x_nods"): drop(lambda l: l.startswith("ds_"))
    if X("showcnt"): print("step counts", cnts, "q counts", qc)
    hooks = E()(f"s_cmp_eq_u32 s{sCNT}, 15", "s_cbranch_scc1 F_LAST", f"s_cmp_lg_u32 s{sWAVE}, 0", "s_cbranch_scc1 F_AL",
                f"s_cmp_eq_u32 s{sCNT}, 12", "s_cbranch_scc1 F_H1", signal(2), "s_mov_b32 s66, 4",
                "s_cmp_ge_u32 s2, 8", "s_cbranch_scc1 F_AL", srd(28, pDBG, pDBG+1, 64), "s_mov_b64 exec, 1",
                f"v_mov_b32 v{RLV}, 1", f"buffer_atomic_add v{RLV}, off, s[28:31], s66 sc0 sc1", "s_mov_b64 exec, -1", "s_branch F_AL",
                "F_H1:", "s_cmp_ge_u32 s2, 8", "s_cbranch_scc1 F_AL", "s_lshl_b32 s66, s2, 2", "s_add_u32 s66, s66, 32", "s_mov_b64 exec, 1",
                f"v_add_u32 v{RLV}, 1, v{RLV}", f"buffer_store_dword v{RLV}, off, s[28:31], s66 sc1", "s_mov_b64 exec, -1", "s_branch F_AL")
    last = (cstamp(9) if not (X("tcyc") or X("qcyc")) else []) + fstamp(1, "last") + laststep()
    h1 = E()(stamp(10), fstamp(1, "tail"), fstamp(5, "last"), "s_waitcnt vmcnt(24)", CHK2, roles(), fstamp(6, "last"), tail_setup(), tail_vsetup(), fstamp(7, "last"), "s_waitcnt vmcnt(0)", fstamp(8, "last"), fstamp(2, "tail"), "s_barrier", wave0(signal(3)), fstamp(3, "tail"))
    preS, bodyS, ctlS, cS, fpS = tloop()
    hS = E()(preS, cstamp(8) if X("tcyc") else [])
    sim = tpre(False) + [x for st in range(28) for x in tstage(st, False, 0)]
    q28 = [re.search(r"@(\S+)", l).group(1) for l in sim if l.startswith("buffer_")][-24:]
    finS = E()(resolve(tfinal(cS), q28), stamp(12), fstamp(6, "tail"), cstamp(9) if X("tcyc") else [])
    end = tail_end()
    L(pro, ".p2align 6", "F_QL:", qloop, qctl, mid, s0, ".p2align 6", "F_AL:", *body, hooks, "F_LAST:", last,
      h1, hS, ".p2align 6", "F_TLS:", bodyS, ctlS, finS, "F_TE:", end, stamp_flush(0, 13, pWS, f"s{sWAVE}"), encode(), "F_END:", "s_endpgm")
    for k, par in enumerate(sites):
        L(f"F_TR{k}:", f"s_call_b64 s[{sRET}:{sRET+1}], F_SLOW{par}", f"s_branch F_BK{k}")
    L(stubs, tstubs, flagspin("F_TSP", "F_TSB"), slow(0), slow(1), slow(2), slow(3))
    flat = lambda Z: [y for x in Z for y in x]
    tr = pro + qfp + qctl + (qloop + qctl)*2 + mid + s0 + flat(body) + flat(body) + last + h1
    if "x_" in exp: return L, kernel_desc(NAME, 512, 256), "; @launch grid=(256,1,1) block=(256,1,1) lds=163840"
    check(tr + hS + fpS + ctlS + (bodyS + ctlS)*6 + finS + end, "S")
    check(flagspin("A", "B") + bodyS, "spin")
    for n in range(4):
        b = body[n]
        idx = [i for i, x in enumerate(b) if x.startswith("F_BK")][0]
        check(body[(n-1) % 4] + b[:idx] + slow((3+n) % 4) + b[idx:] + body[(n+1) % 4], f"slow{n}")
    return L, kernel_desc(NAME, 512, 256), "; @launch grid=(256,1,1) block=(256,1,1) lds=163840"

def build(path, **kw):
    HDR = open("recurrent_scan__gqa_block_cached__dense_activation_relu__prompt.s.ref").read().split("; Override launch")[0]
    L, D, H = gen(**kw)
    L = [re.sub(r"\s*; @\S+$", "", l) for l in L]
    NOTE = """;
; One launch, 256 workgroups (one per CU), 4 waves x 64 query rows, v_mfma_f32_16x16x32_bf16 throughout.
;      the first tile and is moved to the true running maximum whenever a row sum leaves the safe range (F_SLOW*);
;      wo / w2 are re-laid out as MFMA fragments in otherwise idle issue slots
;      partial sums exchanged through d_ws, then out = x + s * silu(g)
"""
    open(path, "w").write(HDR + NOTE + H + "\n" + '.amdgcn_target "amdgcn-amd-amdhsa--gfx950"\n' + "\n".join(L) + "\n" + "\n".join(D) + "\n")
if __name__ == "__main__":
    for flag, mode in (("--ts", None), ("--tail", "tail"), ("--front", "front"), ("--last", "last"), ("--conv", "conv")):
        if flag in sys.argv:
            OPT["ts"] = True; OPT["mode"] = mode; sys.argv.remove(flag)
    build(sys.argv[1], exp=" ".join(sys.argv[2:]))
```

```python
from common import *
import re, sys

NAME = "recurrent_scan__gqa_block_cached__dense_activation_relu__prompt_kernel"
MF = "v_mfma_f32_16x16x32_bf16"
EXP = [""]
DEFAULTS = ["poll1", "touch3", "hfirst", "wfirst"]
def X(flag): return flag in EXP[0].split() or (flag in DEFAULTS and "no_" + flag not in EXP[0].split())

KR, VR = 0, 49152
WA, WB = 65536, 114688
ST = 122880
OWN = 81920
pX, pK, pV, pWQ, pWO, pWS, pW1, pW2, pOUT, pDBG = 4, 6, 8, 10, 68, 70, 72, 74, 76, 78
sK_SRD, sV_SRD, sWQ_SRD, sW1_SRD, sXF_SRD, sOF_SRD, sFL = 12, 16, 20, 24, 28, 32, 80
sWAVE, sHEAD, sM64, sKo = 36, 37, 38, 39
sMK, sMV, sMW = 40, 44, 48
sWq, sW1, sX, sCNT, sC, sTHR, sO, sVo, sRET = 54, 55, 56, 57, 58, 60, 61, 63, 64
sH = [6, 7, 62]
sTMP, sU, sT, sQB = 66, 67, 84, 85
sRSRC, sRDST, sRM, sRS = 8, 20, 24, 25
QV, NM, S0, S1, P, KF, VF, ET, T_, L_ = 16, 48, 64, 96, 112, 176, 200, 224, 232, 236
AK, AV, DK, DV, CK, LX, RLV = 240, 242, 246, 249, 224, 253, 254
AF, DA, DB, DH, AWA, AWB, AH, LXB, LX8, LXB2 = 16, 40, 44, 46, 192, 200, 204, 207, 208, 209
CSCALE = math.log2(math.e) / math.sqrt(192.0)
THR = 2.0 ** 30
SPIN = 1 << 18

def srdn(b): return f"s[{b}:{b+3}]"
class E(list):
    def __call__(self, *x):
        for y in x:
            if isinstance(y, list): self.extend(y)
            else: self.append(y)
        return self
lab = [0]
def newlab(p):
    lab[0] += 1; return f"F_{p}{lab[0]}"
def wave0(body):
    l = newlab("W")
    return E()(f"s_cmp_lg_u32 s{sWAVE}, 0", f"s_cbranch_scc1 {l}", body, f"{l}:")

def poll(phase, mask, soff, wide=False, vaddr="v2"):
    l, d = newlab("P"), newlab("D")
    e = E()
    e(f"s_mov_b32 exec_lo, {mask[0]}", f"s_mov_b32 exec_hi, {mask[1]}", f"s_add_u32 s{sTMP}, s{sT}, {phase}", f"s_mov_b32 s{sU}, 0")
    if wide:
        e(f"{l}:", f"buffer_load_dwordx4 v[4:7], {vaddr}, {srdn(sFL)}, {soff} offen sc1", "s_waitcnt vmcnt(0)")
        for r in range(4): e(f"v_subrev_u32 v{4+r}, s{sTMP}, v{4+r}")
        e("v_max3_u32 v4, v4, v5, v6", "v_max_u32 v4, v4, v7")
        e(f"v_cmp_lt_u32 vcc, {4-phase}, v4", f"s_add_u32 s{sU}, s{sU}, 1", f"s_cmp_gt_u32 s{sU}, {SPIN}", f"s_cbranch_scc1 {d}", f"s_cbranch_vccnz {l}")
    elif X("poll1"):
        e(f"{l}:", f"buffer_load_dword v4, {vaddr}, {srdn(sFL)}, {soff} offen sc1", "s_waitcnt vmcnt(0)", f"v_subrev_u32 v4, s{sTMP}, v4")
        e(f"v_cmp_lt_u32 vcc, {4-phase}, v4", f"s_add_u32 s{sU}, s{sU}, 1", f"s_cmp_gt_u32 s{sU}, {SPIN}", f"s_cbranch_scc1 {d}", f"s_cbranch_vccnz {l}")
    else:
        ld = lambda r: f"buffer_load_dword v{r}, {vaddr}, {srdn(sFL)}, {soff} offen sc1"
        e(ld(8), "s_sleep 4", ld(9), "s_sleep 4", ld(10), f"{l}:")
        for r in (8, 9, 10):
            e("s_waitcnt vmcnt(2)", f"v_subrev_u32 v11, s{sTMP}, v{r}", f"v_cmp_lt_u32 vcc, {4-phase}, v11", f"s_add_u32 s{sU}, s{sU}, 1", ld(r), "s_nop 0", f"s_cbranch_vccz {d}")
        e(f"s_cmp_le_u32 s{sU}, {SPIN}", f"s_cbranch_scc1 {l}")
    e(f"{d}:", "s_mov_b64 exec, -1")
    return e
def signal(phase):
    return E()(f"s_add_u32 s{sTMP}, s{sT}, {phase}", f"s_lshl_b32 s{sU}, s{sQB}, 5", f"s_add_u32 s{sU}, s{sU}, s{sHEAD}", f"s_lshl_b32 s{sU}, s{sU}, 2",
               f"v_mov_b32 v4, s{sTMP}", "v_mov_b32 v5, 0", "s_mov_b64 exec, 1",
               f"buffer_store_dword v4, v5, {srdn(sFL)}, s{sU} offen sc1", "s_mov_b64 exec, -1")

def qacc(ds, tb, qt):
    n = (ds*2 + tb)*4 + qt
    return R("a", 4*n) if n < 24 else R("v", 48 + 4*(n-24))
def hacc(tt, qt): return R("v", 144 + 4*(tt*4 + qt))
def BF(s, kk, qt): return a(96 + 32*(s % 3) + 16*kk + 4*qt, 4)
def ldB(s): return [f"buffer_load_dwordx4 {BF(s,kk,qt)}, v{LXB2 if kk else LXB}, {srdn(sXF_SRD)}, s{sX} offen offset:{1024*qt} sc1 ; @B{s}" for kk in range(2) for qt in range(4)]
advX = [f"s_add_u32 s{sX}, s{sX}, 8192"]
advW = [f"s_add_u32 s{sWq}, s{sWq}, 786432", f"s_add_u32 s{sW1}, s{sW1}, 196608"]
def dmaW(u):
    if u % 2 == 0: return [f"buffer_load_dwordx4 v{DA+t}, {srdn(sWQ_SRD)}, s{sWq} offen offset:{1024*t} lds ; @W{u}" for t in range(4)]
    return [f"buffer_load_dwordx4 v{DB+t}, {srdn(sWQ_SRD)}, s{sWq} offen offset:{1024*t} lds ; @W{u}" for t in range(2)] + \
           [f"buffer_load_dwordx4 v{DH+t}, {srdn(sW1_SRD)}, s{sW1} offen offset:{1024*(t+2)} lds ; @W{u}" for t in range(2)]
TCH, TCD = 210, 212
sTq, sT1 = 64, 65
def touch(): return [f"buffer_load_dword v{TCD}, v{TCH}, {srdn(sWQ_SRD)}, s{sTq} offen ; @T", f"buffer_load_dword v{TCD}, v{TCH+1}, {srdn(sW1_SRD)}, s{sT1} offen offset:3072 ; @T"]
def TPS(): return [int(x[3:]) for x in EXP[0].split() if x.startswith("tps")] or ([] if X("notps") else [3])
def advT_():
    n = 1 if TPS() else 3
    return [f"s_add_u32 s{sTq}, s{sTq}, {n*786432}", f"s_add_u32 s{sT1}, s{sT1}, {n*196608}"]
def touch_addr(nst):
    return E()("v_mul_u32_u24 v1, 171, v0", "v_lshrrev_b32 v1, 9, v1", "v_mul_u32_u24 v2, 3, v1", "v_sub_u32 v2, v0, v2",
               "v_lshrrev_b32 v3, 1, v1", "v_and_b32 v1, 1, v1", "v_lshl_add_u32 v1, v3, 6, v1", f"v_add_u32 v1, s66, v1",
               "v_mul_lo_u32 v1, v1, s67", "v_lshl_add_u32 v1, v2, 7, v1", f"v_cmp_gt_u32 vcc, {6*nst}, v0", "v_bfrev_b32 v8, 1",
               "v_lshrrev_b32 v3, 2, v0", "v_bfe_u32 v2, v0, 1, 1", f"v_cndmask_b32 v{TCH}, v8, v1, vcc",
               "v_lshl_add_u32 v3, v3, 6, v2", "v_add_u32 v3, s66, v3", f"v_cmp_gt_u32 vcc, {4*nst}, v0", "v_mul_u32_u24 v3, 3072, v3",
               "v_and_b32 v2, 1, v0", "v_mul_u32_u24 v2, 92, v2", "v_add_u32 v3, v3, v2", f"v_cndmask_b32 v{TCH+1}, v8, v3, vcc")
def m0W(u): return f"s_mov_b32 m0, s{sMW + u % 6}"
def qorder(s): return list(range(8)) + ([12, 13, 14, 8, 9, 10, 11] if s == 9 and X("hfirst") else list(range(8, 15)))
def qrd(s, pos, kk, uu):
    T = qorder(s)[pos]
    dst = v(AF + 8*(pos % 3) + 4*kk + 2*uu, 2)
    if T < 8: return f"ds_read_b64_tr_b16 {dst}, v{AWA + T} offset:{(s % 3)*16384 + kk*8192 + uu*1024}"
    reg = AWB + T - 8 if T < 12 else AH + T - 12
    return f"ds_read_b64_tr_b16 {dst}, v{reg} offset:{(s % 3)*16384 + kk*8192 + uu*512}"
def qsub(u, last=20, extra=None, vmw=None):
    extra = extra or {}
    s = u >> 1; TL = list(range(8)) if u % 2 == 0 else list(range(8, 15)); nT = len(TL)
    L = []
    lb = ldB(s + 2) if (u % 2 == 0 and s + 2 < last//2) else []
    dw = dmaW(u + 5) if u + 5 < last else []
    for ti, T in enumerate(TL):
        for p in range(4):
            qt = p if T % 2 == 0 else 3 - p
            TT = qorder(s)[T]
            acc = (qacc(TT >> 1, TT & 1, qt) if TT < 12 else hacc(TT-12, qt))(4)
            for kk in range(2):
                g = 2*p + kk; gi = 8*ti + g
                L.append(f"{MF} {acc}, {v(AF + 8*(T % 3) + 4*kk, 4)}, {BF(s, kk, qt)}, {acc}")
                s2, T2 = s + (T+2)//15, (T+2) % 15
                if g < 4:
                    if 2*s2 < last: L.append(qrd(s2, T2, g >> 1, g & 1))
                    if g == 3:
                        left = 15*(last//2) - 1 - (15*s + T)
                        if left >= 1: L.append(f"s_waitcnt lgkmcnt({4 if left >= 2 else 0})")
                if lb and ti < 4 and g in (4, 6): L.append(lb[2*ti + (g-4)//2])
                if lb and ti == 4 and g == 4: L += advX
                if u % 6 == 2 and last > 20 and X("kvq"):
                    if ti == 4 and g == 5: L += [f"s_cmp_eq_u32 s{sCNT}, 1", "s_cselect_b32 s66, 0, s3"]
                    if ti == 4 and g == 6: L.append(f"buffer_load_dword v{TCD}, v{KVT}, {srdn(sK_SRD)}, s66 offen ; @T")
                    if ti == 5 and g == 4: L.append(f"buffer_load_dword v{TCD}, v{KVT}, {srdn(sV_SRD)}, s66 offen ; @T")
                if u % (2 if TPS() else 6) == 0 and last > 20 and not X("notouch"):
                    if ti == 4 and g == 6: L.append(touch()[0])
                    if ti == 5 and g == 4: L.append(touch()[1])
                    if ti == 5 and g == 5: L += advT_()
                if ti == nT-3 and g == 6 and dw: L.append(m0W(u+5))
                if ti == nT-3 and g == 7 and vmw is not None: L += [f"s_waitcnt vmcnt({vmw})", "s_barrier"]
                if dw and ti >= nT-2 and g in (4, 6): L.append(dw[2*(ti-nT+2) + (g-4)//2])
                if dw and u % 2 == 0 and ti == nT-1 and g == 7: L += advW
                L += extra.get(gi, [])
    return L
def qcounts():
    q = ["B1"]*8 + (["W2"]*4 + ["W3"]*4 + ["W4"]*4 if X("lateW") else [])
    out = {}; first = {}
    for u in range(18):
        for l in qsub(u, last=40, vmw="?"):
            if "vmcnt(?)" in l:
                need = ["W%d" % (u+1)] + (["B%d" % ((u+1)//2)] if u % 2 else [])
                idx = [i for i, x in enumerate(q) if x in need]
                if idx:
                    c = len(q) - 1 - max(idx)
                    if u < 6: first[u] = c
                    else: out[u % 6] = min(out.get(u % 6, 63), c)
            if l.startswith("buffer_"): q.append(re.search(r"@(\S+)", l).group(1))
    return out, {u: c for u, c in first.items() if c < out[u]}, q

def fill(L, ops):
    gaps = []
    for l in L:
        if l.startswith(MF) or not gaps: gaps.append([l])
        else: gaps[-1].append(l)
    ops = list(ops)
    for gi, g in enumerate(gaps):
        rest = [x for x in g[1:] if not x.endswith(":")]
        ds = any(x.startswith("ds_") for x in rest); vm = any(x.startswith("buffer_") for x in rest)
        nv = sum(x.startswith("v_") for x in rest); ns = len(rest) - nv - ds - vm
        if vm or "s_barrier" in rest: continue
        free = (1 - nv - ns) if ds else (2 - nv - max(0, ns - 1))
        while ops and ops[0][0] <= gi and free > 0:
            if ops[0][1] == "m":
                if ds or rest or len(g) > 1: break
                g.append(ops.pop(0)[2]); free = 0
            else: g.append(ops.pop(0)[2]); free -= 1
    return [x for g in gaps for x in g] , [x[2] for x in ops]
def hops():
    o = []
    for tt in range(3):
        for p in range(4):
            qt = p if (8 + tt) % 2 == 0 else 3 - p
            h = hacc(tt, qt); d = 2 + 2*((4*tt + p) % 6); g0 = 8*tt + 2*p + 1 + 6
            o += [(g0, "a", f"v_cvt_pk_bf16_f32 v{d}, {h(1,0)}, {h(1,1)}"), (g0, "a", f"v_cvt_pk_bf16_f32 v{d+1}, {h(1,2)}, {h(1,3)}"),
                  (g0, "a", f"v_pk_max_i16 v{d}, v{d}, 0"), (g0, "a", f"v_pk_max_i16 v{d+1}, v{d+1}, 0"),
                  (g0, "m", f"buffer_store_dwordx2 {v(d,2)}, v{LX8}, {srdn(sOF_SRD)}, s{sH[tt]} offen offset:{1024*qt} sc1")][:4 if X("x_nohst") else 5]
    return o
def convert():
    e = E()("s_nop 7")
    early = X("earlyk")
    k = 0
    late = X("lateh")
    if late: e(f"v_mov_b32 v14, v{LX8}")
    for tt in range(3 if not X("hfirst") else 0):
        for qt in range(4):
            h = hacc(tt, qt); d = 144 + 2*k if late else 2 + 2*(k % 6); k += 1
            e(f"v_cvt_pk_bf16_f32 v{d}, {h(1,0)}, {h(1,1)}", f"v_cvt_pk_bf16_f32 v{d+1}, {h(1,2)}, {h(1,3)}",
              f"v_pk_max_i16 v{d}, v{d}, 0", f"v_pk_max_i16 v{d+1}, v{d+1}, 0")
            if not late and not X("x_nohst"): e(f"buffer_store_dwordx2 {v(d,2)}, v{LX8}, {srdn(sOF_SRD)}, s{sH[tt]} offen offset:{1024*qt} sc1")
    if early:
        e("s_waitcnt vmcnt(@K0)", "s_barrier", [rdK(0, 0, ds) for ds in range(6)], [rdK(0, 1, ds, VF) for ds in range(6)])
        m, d = kvgroup("V", 1); e(m, d)
        m, d = kvgroup("K", 3); e(m, d[:2])
    for ds in (3, 4, 5, 0, 1, 2):
        dsts = []
        for qt in range(4):
            f = ds*4 + qt
            Xr, Yr = qacc(ds, 0, qt), qacc(ds, 1, qt)
            if Xr.f == "a":
                tx, ty = R("v", (192 if late else 144) + 8*qt), R("v", (196 if late else 148) + 8*qt)
                for r in range(4): e(f"v_accvgpr_read_b32 {tx(1,r)}, {Xr(1,r)}")
                for r in range(4): e(f"v_accvgpr_read_b32 {ty(1,r)}, {Yr(1,r)}")
                Xr, Yr = tx, ty
            d = QV + 4*(f-16) if f >= 16 else (224 if early else 176) + 4*qt
            dsts.append(d)
            for Z in (Xr, Yr):
                if X("nopk"):
                    for r in range(4): e(f"v_mul_f32 {Z(1,r)}, s{sC}, {Z(1,r)}")
                else:
                    for r in (0, 2): e(f"v_pk_mul_f32 {Z(2,r)}, {Z(2,r)}, s[{sC}:{sC+1}]")
            e(f"v_cvt_pk_bf16_f32 v{d}, {Xr(1,0)}, {Xr(1,1)}", f"v_cvt_pk_bf16_f32 v{d+1}, {Xr(1,2)}, {Xr(1,3)}",
              f"v_cvt_pk_bf16_f32 v{d+2}, {Yr(1,0)}, {Yr(1,1)}", f"v_cvt_pk_bf16_f32 v{d+3}, {Yr(1,2)}, {Yr(1,3)}")
        e("s_mov_b32 exec_lo, 0")
        for d in dsts: e(f"v_swap_b32 v{d}, v{d+2}", f"v_swap_b32 v{d+1}, v{d+3}")
        e("s_mov_b32 exec_lo, -1")
        if ds < 4:
            for qt in range(4):
                for r in range(4): e(f"v_accvgpr_write_b32 a{192 + 4*(ds*4+qt) + r}, v{dsts[qt]+r}")
    return e

def hstores(): return [f"buffer_store_dwordx2 {v(144 + 2*k, 2)}, v14, {srdn(sOF_SRD)}, s{sH[k//4]} offen offset:{1024*(k%4)} sc1 ; @H" for k in range(12)]

def Qf(f): return a(192 + 4*f, 4) if f < 16 else v(QV + 4*(f-16), 4)
def Oacc(dt, qt): return (dt*4 + qt)*4
def dmaK(t): return f"buffer_load_dwordx4 v{DK+t}, {srdn(sK_SRD)}, s{sKo} offen offset:{1024*t} lds"
def dmaV(t): return f"buffer_load_dwordx4 v{DV+t}, {srdn(sV_SRD)}, s{sVo} offen offset:{1024*t} lds"
def kvgroup(kind, j):
    so = sKo if kind == "K" else sVo
    return [f"s_mov_b32 m0, s{(sMK if kind=='K' else sMV) + j}", f"s_mov_b32 s{so}, {12288*j}"], [(dmaK(t) if kind == "K" else dmaV(t)) + f" ; @{kind}{j}" for t in range(3)]
def rdK(slot, kt, ds, dst=KF): return f"ds_read_b128 {v(dst+4*ds,4)}, v{AK+(ds&1)} offset:{slot*12288 + kt*6144 + (ds>>1)*128}"
def Pb(t): return P + 16*(t % 4)
def rdVp(m2, part, dst=VF):
    return [f"ds_read_b64_tr_b16 {v(dst + 8*dl + 4*tl + 2*u, 2)}, v{AV + ((3*part+dl) & 3)} offset:{((m2+tl) % 4)*12288 + u*6144 + ((3*part+dl) >> 2)*128}"
            for dl in range(3) for tl in range(2) for u in range(2)]
def qk(dst, src=KF, czero=False):
    o = []
    for qt in range(4):
        for ds in range(6):
            d = v(dst+4*qt, 4)
            c = ("0" if czero else v(NM+4*qt, 4)) if ds == 0 else d
            o.append(f"{MF} {d}, {v(src+4*ds,4)}, {Qf(ds*4+qt)}, {c}")
    return o
def pv(m2, part, czero=False, src=VF):
    o = []
    for dl in range(3):
        for p in range(4):
            qt = p if (3*part + dl) % 2 == 0 else 3 - p
            acc = a(Oacc(3*part+dl, qt), 4)
            for tl in range(2):
                o.append(f"{MF} {acc}, {v(src + 8*dl + 4*tl, 4)}, {v(Pb(m2+tl) + 4*qt, 4)}, {'0' if czero and tl == 0 else acc}")
    return o
def sm(src, qts, Pb, kt):
    Ex, Sx = [], []
    k = 0
    for qt in qts:
        for pr in range(2):
            t0 = ET + 2*k; t1 = t0 + 1; k += 1
            Ex += [f"v_exp_f32 v{t0}, v{src+4*qt+2*pr}", f"v_exp_f32 v{t1}, v{src+4*qt+2*pr+1}"]
            n = len(Ex)
            if kt == 0 and pr == 0: Sx.append((n, f"v_add_f32 v{T_+qt}, v{t0}, v{t1}"))
            else: Sx += [(n-1, f"v_add_f32 v{T_+qt}, v{T_+qt}, v{t0}"), (n, f"v_add_f32 v{T_+qt}, v{T_+qt}, v{t1}")]
            Sx.append((n, f"v_cvt_pk_bf16_f32 v{Pb+4*qt+2*kt+pr}, v{t0}, v{t1}"))
    return Ex, Sx
def quarter(mf, pat, Ex, Sx, D, B, salu):
    assert len(pat) == len(mf) == 24, (pat, len(pat))
    out = []; ei = si = di = bi = 0
    for gi, m in enumerate(mf):
        out.append(m); ty = pat[gi]
        sc = salu.get(gi, [])
        def take(n):
            nonlocal si
            r = []
            while n > 0 and si < len(Sx) and Sx[si][0] <= ei: r.append(Sx[si][1]); si += 1; n -= 1
            return r
        if ty == "e": out += sc + [Ex[ei]]; ei += 1
        elif ty == "d": out += [D[di]] + take(1) + sc; di += 1
        elif ty == "a": out += sc + take(2)
        elif ty == "1": out += sc + take(1)
        elif ty == "b": out += sc + [B[bi]]; bi += 1
        elif ty == "-": out += sc
        else: raise ValueError(ty)
    assert ei == len(Ex) and si == len(Sx) and di == len(D) and bi == len(B), (pat, ei, len(Ex), si, len(Sx), di, len(D), bi, len(B))
    return out
P1 = "ee" + "de"*6 + "d"*6 + "a1b-"
P2 = "de"*6 + "ee" + "baabaa" + "----"
P3 = "ed"*8 + "dddd" + "b---"
P4 = "ebeb" + "de"*6 + "aaa" + "-----"
CHK = [f"v_max3_f32 v{CK}, v{T_}, v{T_+1}, v{T_+2}", f"v_max_f32 v{CK}, v{CK}, v{T_+3}", f"v_cmp_lt_f32 vcc, s{sTHR}, v{CK}"]
LADD = [f"v_add_f32 v{L_+q}, v{L_+q}, v{T_+q}" for q in range(4)]
sites = []
def callsite(par):
    k = len(sites); sites.append(par)
    return [f"s_cbranch_vccnz F_TR{k}", f"F_BK{k}:"]
def step(i, vmw=12, tail=(), rl=None):
    par, slot = i & 1, i % 4
    S0n = S0 + 16*(1-par); Pc = Pb(i); Pn = Pb(i+1)
    m2 = i-1 if par else i-2
    p0 = 0 if par else 2
    nopv = i == 0; cz = i in (1, 2)
    mK = lambda j: f"s_mov_b32 m0, s{sMK + j % 4}"
    mV = lambda j: f"s_mov_b32 m0, s{sMV + j % 4}"
    aK = f"s_add_u32 s{sKo}, s{sKo}, 12288"; aV = f"s_add_u32 s{sVo}, s{sVo}, 12288"
    if par:
        B1 = [dmaV(2) + f" ; @V{i+1}"]; B2 = [dmaV(0) + f" ; @V{i+2}", dmaV(1) + f" ; @V{i+2}"]; B3 = [dmaV(2) + f" ; @V{i+2}"]
        B4 = [dmaK(0) + f" ; @K{i+4}", dmaK(1) + f" ; @K{i+4}"]; m2_, a2, a3, m4 = mV(i+2), aV, aV, mK(i+4)
    else:
        B1 = [dmaK(2) + f" ; @K{i+3}"]; B2 = [dmaK(0) + f" ; @K{i+4}", dmaK(1) + f" ; @K{i+4}"]; B3 = [dmaK(2) + f" ; @K{i+4}"]
        B4 = [dmaV(0) + f" ; @V{i+2}", dmaV(1) + f" ; @V{i+2}"]; m2_, a2, a3, m4 = mK(i+4), aK, aK, mV(i+2)
    L = []
    def emit(mf, pat, Ex, Sx, D, B, sal):
        if mf is None:
            sc = [x for g in sorted(sal) for x in sal[g] if not x.startswith("s_waitcnt")]
            hs = hstores()[6*emit.n:6*emit.n+6] if X("lateh") else []; emit.n += 1
            mixed = []
            for k, x in enumerate(Ex):
                mixed.append(x)
                if k < len(hs): mixed.append(hs[k])
            return D + sc + ["s_nop 3"] + B + mixed + [x for _, x in Sx] + ["s_waitcnt lgkmcnt(0)"]
        return quarter(mf, pat, Ex, Sx, D, B, sal)
    emit.n = 0
    Ex, Sx = sm(S1, [2, 3], Pc, 1)
    D1 = rdVp(m2, p0) if not nopv else []
    L += quarter(qk(S0n), P1 if D1 else P1.replace("d", "1"), Ex, Sx + [(8, x) for x in CHK], D1, B1, {23: ["s_waitcnt lgkmcnt(6)"]} if D1 else {})
    L += callsite(i % 4)
    Ex, Sx = sm(S0n, [0, 1], Pn, 0)
    pat = P2; D = [rdK((slot+1) % 4, 1, ds) for ds in range(6)]; B = B2
    sal = {3: [a2], 7: ["s_waitcnt lgkmcnt(4)"], 13: [m2_], 23: ["s_waitcnt lgkmcnt(0)"]}
    if rl == "dma":
        pat = P2[:20] + "b---"; B = B + [rl_dma() + " ; @R"]
        sal.update({18: [f"s_cmp_lt_u32 s{sCNT}, 9"], 19: [f"s_mov_b32 m0, s{sRM}"], 21: [f"s_cselect_b32 s{sTMP}, 128, s3", f"s_cselect_b32 s{sRI}, 1024, 0"],
                    22: [m2_, f"s_add_u32 s{sRS}, s{sRS}, s{sTMP}"], 23: ["s_waitcnt lgkmcnt(0)", f"s_add_u32 s{sRM}, s{sRM}, s{sRI}"]})
    if rl in ("tk", "tv"):
        pat = P2[:20] + "b---"
        B = B + [f"buffer_load_dword v1, v{KVT}, {srdn(sK_SRD if rl == 'tk' else sV_SRD)}, s{sKT} offen ; @T"]
        if rl == "tk": sal[22] = [f"s_add_u32 s{sKT}, s{sKT}, 49152"]
    if rl == "out":
        pat = P2[:20] + "dad-"; D = D + [rl_rd(0), rl_rd(1)]; sal[23] = ["s_waitcnt lgkmcnt(2)"]
        xs = [(8, f"v_xor_b32 v{RTD+2}, s{sRX}, v{RTV}"), (8, f"v_add_u32 v{RTD+2}, s{sRU}, v{RTD+2}")]
    if rl == "out":
        q = quarter(pv(m2, p0, cz), pat.replace("dad-", "d-d-"), Ex, [(0, x) for x in LADD] + Sx, D, B, sal)
        k = q.index(rl_rd(0)); L += q[:k+2] + [x for _, x in xs] + q[k+2:]
    else: L += emit(None if nopv else pv(m2, p0, cz), pat, Ex, [(0, x) for x in LADD] + Sx, D, B, sal)
    Ex, Sx = sm(S0n, [2, 3], Pn, 0)
    D3 = rdVp(m2, p0+1) if not nopv else []
    sal = {21: [a3], 23: [f"s_waitcnt vmcnt({vmw}) lgkmcnt(0)", "s_barrier"]}
    L += quarter(qk(S1), P3 if D3 else P3.replace("d", "1"), Ex, Sx, D3, B3, sal)
    Ex, Sx = sm(S1, [0, 1], Pn, 1)
    sal = {0: [m4], 22: ["s_waitcnt lgkmcnt(0)"]}
    pat = P4; B = B4
    tail = list(tail)
    if tail:
        sal[19] = tail[:1]; sal[20] = tail[1:2]; sal[23] = tail[2:]
    if rl == "out":
        pat = P4[:19] + "b1---"; B = B + [rl_st() + " ; @S"]
        sal.update({5: [f"s_cmp_lt_u32 s{sCNT}, 10"], 7: [f"s_cselect_b32 s{sRJ}, 1024, 0"], 9: [f"s_sub_u32 s{sTMP}, s{sCNT}, 1"],
                    11: [f"s_cmp_lt_u32 s{sTMP}, 10"], 13: [f"s_cselect_b32 s{sTMP}, s{sRO}, s3"], 15: [f"s_cselect_b32 s{sRI}, 4096, 0"],
                    16: [f"s_add_u32 s{sRO}, s{sRO}, s{sRI}"], 17: [f"s_lshr_b32 s{sRI}, s{sRI}, 10"], 18: [f"s_add_u32 s{sRR}, s{sRR}, s{sRI}"],
                    20: [f"s_cmp_gt_u32 s{sRR}, 9"], 21: [f"s_cselect_b32 s{sRI}, {WF160 - 10240}, 0", f"s_cselect_b32 s{sTMP}, 10, 0"],
                    22: ["s_waitcnt lgkmcnt(0)", f"s_add_u32 s{sRO}, s{sRO}, s{sRI}"], 23: [f"s_sub_u32 s{sRR}, s{sRR}, s{sTMP}"]})
        Sx = Sx + [(8, f"v_add_u32 v{RTV}, s{sRJ}, v{RTV}")]
    L += emit(None if nopv else pv(m2, p0+1, cz), pat, Ex, Sx, [rdK((slot+2) % 4, 0, ds) for ds in range(6)], B, sal)
    return L
sRJ, sKT, KVT = 59, 58, 252
def kv_touch_addr(D):
    return E()(f"s_lshl_b32 s66, s{sQB}, 2", f"s_add_u32 s66, s66, s{sWAVE}", "s_mul_i32 s66, s66, 1536", "v_lshlrev_b32 v3, 7, v0", "v_add_u32 v3, s66, v3",
               "v_cmp_gt_u32 vcc, 12, v0", "v_bfrev_b32 v2, 1", "s_nop 0", f"v_cndmask_b32 v{KVT}, v2, v3, vcc")
def xlane(op, dst, tmp):
    L = []
    for sw in ("v_permlane16_swap_b32", "v_permlane32_swap_b32"):
        L += [f"v_mov_b32 v{tmp+qt}, v{dst+qt}" for qt in range(4)] + ["s_nop 1"]
        L += [f"{sw} v{dst+qt}, v{tmp+qt}" for qt in range(4)]
        L += [f"{op} v{dst+qt}, v{dst+qt}, v{tmp+qt}" for qt in range(4)]
    return L
def rowmax(dst, srcs, tmp):
    L = []
    for qt in range(4):
        r = srcs(qt); d = dst + qt
        L += [f"v_max3_f32 v{d}, v{r[0]}, v{r[1]}, v{r[2]}", f"v_max3_f32 v{d}, v{d}, v{r[3]}, v{r[4]}",
              f"v_max3_f32 v{d}, v{d}, v{r[5]}, v{r[6]}", f"v_max_f32 v{d}, v{d}, v{r[7]}"]
    return L + xlane("v_max_f32", dst, tmp)
def init():
    e = E()
    if not X("earlyk"):
        e("s_waitcnt vmcnt(@K0)", "s_barrier", fstamp(3, "conv"))
        for ds in range(6): e(rdK(0, 0, ds))
        for ds in range(6): e(rdK(0, 1, ds, VF))
        m, d = kvgroup("V", 1); e(m, d)
        m, d = kvgroup("K", 3); e(m, d[:2])
    e(f"s_mov_b32 s{sKT}, {4*12288}")
    for _ in range(2):
        e(f"buffer_load_dword v1, v{KVT}, {srdn(sK_SRD)}, s{sKT} offen ; @T", f"buffer_load_dword v1, v{KVT}, {srdn(sV_SRD)}, s{sKT} offen ; @T", f"s_add_u32 s{sKT}, s{sKT}, 49152")
    e(f"s_mov_b32 s{sVo}, {2*12288}")
    for q in range(4): e(f"v_mov_b32 v{L_+q}, 0")
    e(fstamp(4, "conv"), "s_waitcnt lgkmcnt(6)", qk(S0, KF, True), "s_waitcnt vmcnt(@K1) lgkmcnt(0)", "s_barrier", fstamp(5, "conv"))
    m = qk(S1, VF, True)
    rd = [rdK(1, 0, ds) for ds in range(6)]
    for i, x in enumerate(m):
        e(x)
        if i < 6: e(rd[i])
    e("s_nop 7", fstamp(6, "conv"))
    D, TM = 2, 6
    e(rowmax(D, lambda qt: [S0+4*qt+r for r in range(4)] + [S1+4*qt+r for r in range(4)], TM))
    for qt in range(4): e(f"v_ceil_f32 v{D+qt}, v{D+qt}")
    for qt in range(4):
        for r in range(4):
            e(f"v_sub_f32 v{NM+4*qt+r}, 0, v{D+qt}", f"v_sub_f32 v{S0+4*qt+r}, v{S0+4*qt+r}, v{D+qt}", f"v_sub_f32 v{S1+4*qt+r}, v{S1+4*qt+r}, v{D+qt}")
    for src, qts, kt in ((S0, [0, 1], 0), (S0, [2, 3], 0), (S1, [0, 1], 1)):
        Ex, Sx = sm(src, qts, Pb(0), kt)
        e(Ex, [x for _, x in Sx])
    e("s_waitcnt lgkmcnt(0)")
    return e
def slow(k):
    par = k & 1
    S0c = S0 + 16*par; S0n = S0 + 16*(1-par)
    e = E()(f"F_SLOW{k}:", "s_nop 7", "s_nop 7")
    D, TM = 2, 6
    e(rowmax(D, lambda qt: [S0c+4*qt+r for r in range(4)] + [S1+4*qt+r for r in range(4)], TM))
    for qt in range(4): e(f"v_max_f32 v{D+qt}, 0, v{D+qt}", f"v_ceil_f32 v{D+qt}, v{D+qt}", f"v_sub_f32 v{TM+qt}, 0, v{D+qt}", f"v_cvt_i32_f32 v{TM+qt}, v{TM+qt}")
    for qt in range(4):
        e(f"v_ldexp_f32 v{L_+qt}, v{L_+qt}, v{TM+qt}")
        for base in (NM, S0c, S1, S0n):
            for r in range(4): e(f"v_sub_f32 v{base+4*qt+r}, v{base+4*qt+r}, v{D+qt}")
    for t in ([k-1] if par else [k-1, k-2]):
        for qt in range(4):
            for r in range(4):
                p = Pb(t) + 4*qt + r
                e(f"v_lshlrev_b32 v10, 16, v{p}", f"v_and_b32 v11, 0xffff0000, v{p}", f"v_ldexp_f32 v10, v10, v{TM+qt}", f"v_ldexp_f32 v11, v11, v{TM+qt}",
                  f"v_cvt_pk_bf16_f32 v{p}, v10, v11")
    for dt in range(12):
        for qt in range(4):
            b = Oacc(dt, qt)
            for r in range(2):
                e(f"v_accvgpr_read_b32 v10, a{b+2*r}", f"v_accvgpr_read_b32 v11, a{b+2*r+1}", f"v_ldexp_f32 v10, v10, v{TM+qt}", f"v_ldexp_f32 v11, v11, v{TM+qt}",
                  f"v_accvgpr_write_b32 a{b+2*r}, v10", f"v_accvgpr_write_b32 a{b+2*r+1}, v11")
    for src, qts, kt in ((S0c, [0, 1], 0), (S0c, [2, 3], 0), (S1, [0, 1], 1), (S1, [2, 3], 1)):
        Ex, Sx = sm(src, qts, Pb(k), kt)
        e(Ex, [x for _, x in Sx])
    e("s_nop 1", f"s_setpc_b64 s[{sRET}:{sRET+1}]")
    return e

def relayout_src():
    return E()("s_cmp_lt_u32 s2, 192", f"s_cselect_b32 s{sRSRC}, s{pWO}, s{pW2}", f"s_cselect_b32 s{sRSRC+1}, s{pWO+1}, s{pW2+1}", "s_cselect_b32 s66, 0, 192",
               "s_sub_u32 s66, s2, s66", "s_mul_i32 s66, s66, 40960", f"s_add_u32 s{sRSRC}, s{sRSRC}, s66", f"s_addc_u32 s{sRSRC+1}, s{sRSRC+1}, 0",
               "s_cmp_lt_u32 s2, 240", f"s_cselect_b32 s{sRSRC+2}, 40960, 0", f"s_mov_b32 s{sRSRC+3}, 0x20000")
def relayout_dst():
    return E()("s_mul_i32 s66, s2, 10240", f"s_add_u32 s67, s66, {hx(WS_WF)}", f"s_sub_u32 s{sRDST+2}, {4*WF160}, s66",
               "s_cmp_lt_u32 s2, 240", f"s_cselect_b32 s{sRDST+2}, s{sRDST+2}, 0", f"s_cselect_b32 s67, s67, {hx(WS_WF)}",
               f"s_add_u32 s{sRDST}, s{pWS}, s67", f"s_addc_u32 s{sRDST+1}, s{pWS+1}, 0", f"s_mov_b32 s{sRDST+3}, 0x20000",
               f"s_mul_i32 s{sRM}, s{sWAVE}, 10240", f"s_add_u32 s{sRM}, s{sRM}, {ST}", f"s_mov_b32 s{sRS}, 0",
               f"s_lshl_b32 s{sRO}, s{sWAVE}, 10", f"s_mov_b32 s{sRR}, s{sWAVE}",
               "s_cmp_lt_u32 s2, 192", f"s_cselect_b32 s{sRX}, 0, 64", f"s_mov_b32 s{sRU}, 512", f"s_cselect_b32 s{sRU}, 20480, s{sRU}")
RTV, RTD = 255, 12
sRO, sRR, sRI = 26, 27, 62
def relayout_vaddr():
    return E()(f"s_mov_b32 s67, {ST - 1024}", _relayout_vaddr())
def _relayout_vaddr():
    return E()("v_lshrrev_b32 v1, 2, v0", "v_and_b32 v1, 7, v1", "v_lshlrev_b32 v2, 7, v1", "v_lshrrev_b32 v3, 5, v0", "v_mul_u32_u24 v3, 10240, v3", "v_add_u32 v2, v2, v3",
               "v_and_b32 v3, 3, v0", "v_lshl_add_u32 v2, v3, 3, v2", f"v_add_u32 v2, {ST - 1024}, v2", "v_lshrrev_b32 v1, 1, v1", "v_lshlrev_b32 v1, 5, v1",
               f"s_lshl_b32 s66, s{sWAVE}, 5", "v_xor_b32 v1, s66, v1", "v_add_u32 v4, v1, v2",
               "v_lshrrev_b32 v1, 4, v0", "v_mul_u32_u24 v1, 10240, v1", "v_bfe_u32 v2, v0, 2, 2", "v_lshl_add_u32 v1, v2, 7, v1", "v_lshl_add_u32 v1, v3, 3, v1",
               "v_lshrrev_b32 v2, 1, v2", "v_lshlrev_b32 v2, 5, v2", "v_xor_b32 v2, s66, v2", f"v_add3_u32 v1, v1, v2, s67",
               "s_cmp_lt_u32 s2, 192", "s_cselect_b64 vcc, -1, 0", f"v_cndmask_b32 v{RTV}, v1, v4, vcc")
def rl_dma(): return f"buffer_load_dwordx4 v{RLV}, {srdn(sRSRC)}, s{sRS} offen lds"
sRX, sRU = 48, 49
def rl_rd(u): return f"ds_read_b64_tr_b16 {v(RTD+2*u,2)}, v{RTV if u == 0 else RTD+2}"
def rl_st(): return f"buffer_store_dwordx4 {v(RTD,4)}, v{LX}, {srdn(sRDST)}, s{sTMP} offen sc1"

def front():
    e = E()
    e("s_load_dwordx8 s[4:11], s[0:1], 0", f"s_load_dwordx2 s[{pWO}:{pWO+1}], s[0:1], 32", f"s_load_dwordx4 s[{pW1}:{pW1+3}], s[0:1], 48",
      f"s_load_dwordx4 s[{pOUT}:{pOUT+3}], s[0:1], 64", f"s_load_dwordx2 s[{pWS}:{pWS+1}], s[0:1], 80")
    if not X("nopf"):
        e("s_getpc_b64 s[66:67]", "F_PC:", "v_lshrrev_b32 v1, 6, v0", "s_lshr_b32 s62, s2, 3", "s_mul_i32 s62, s62, 1536", "s_add_u32 s62, s62, 8192 - 512",
          "v_and_b32 v2, 63, v0", "v_lshlrev_b32 v4, 7, v2", "v_and_b32 v2, 3, v0", "v_lshl_add_u32 v2, v1, 2, v2", "v_lshlrev_b32 v2, 7, v2", "v_add_u32 v2, s62, v2",
          "v_cmp_eq_u32 vcc, 0, v1", "v_mov_b32 v5, s67", "s_nop 0", "v_cndmask_b32 v4, v2, v4, vcc", f"v_min_u32 v4, {'F_END' if X('oldpf') else 'F_PFE'}-F_PC, v4",
          "v_add_co_u32 v4, vcc, s66, v4", "s_nop 1", "v_addc_co_u32 v5, vcc, 0, v5, vcc", f"global_load_dword v{TCD+1}, v[4:5], off")
    e(wave_id(f"s{sWAVE}"), stamp(0), "s_mov_b32 s3, 0x10000000")
    if X("early0"): e("s_mov_b32 s88, s100")
    e("s_and_b32 s66, s2, 7", "s_lshl_b32 s66, s66, 2", "s_lshr_b32 s67, s2, 3", "s_and_b32 s67, s67, 3", f"s_add_u32 s{sHEAD}, s66, s67",
      f"s_lshr_b32 s{sQB}, s2, 5", f"s_lshl_b32 s66, s{sQB}, 2", f"s_add_u32 s{sM64}, s66, s{sWAVE}")
    e(f"s_lshl_b32 s66, s{sQB}, 5", f"s_add_u32 s66, s66, s{sHEAD}", "s_lshl_b32 s66, s66, 2", f"s_add_u32 s66, s66, s{sWAVE}", "s_lshl_b32 s62, s66, 1",
      "s_mul_i32 s66, s62, 1280",
      "v_lshrrev_b32 v1, 5, v0", "v_and_b32 v2, 31, v0", "v_mul_u32_u24 v3, 1280, v1", "v_lshl_add_u32 v3, v2, 3, v3",
      f"v_lshlrev_b32 v{LX}, 4, v0", f"s_or_b32 s{sKo}, s2, s{sWAVE}")
    e("s_waitcnt lgkmcnt(0)", fstamp(1))
    e(srd(12, pX, pX+1, 2560, "s66"))
    XR, XX = 64, 80
    for m in range(5): e(f"buffer_load_dwordx2 {v(XR+2*m,2)}, v3, s[12:15], 0 offen offset:{256*m}")
    e(srd(sFL, pWS, pWS+1, 1024, WS_FL), f"s_cmp_eq_u32 s{sKo}, 0", f"s_cselect_b32 s{sFL+2}, 1024, 0",
      f"buffer_load_dwordx4 v[76:79], v{LX}, {srdn(sFL)}, 0 offen sc1", f"s_mov_b32 s{sFL+2}, 1024")
    e("s_lshr_b32 s66, s62, 6", f"s_mul_i32 s66, s66, {XF_BLK}", "s_and_b32 s67, s62, 63", "s_lshl_b32 s67, s67, 6", "s_add_u32 s66, s66, s67",
      f"s_sub_u32 s67, {XF_BLK}, s67")
    e(srd(16, pWS, pWS+1, "s67", "s66"))
    e("v_lshrrev_b32 v13, 3, v2", "v_lshlrev_b32 v13, 12, v13", "v_lshl_add_u32 v13, v1, 6, v13", "v_and_b32 v3, 7, v0", "v_lshl_add_u32 v13, v3, 3, v13")
    dry = X("dryln")
    W_ = E()
    e_real = e
    e = W_
    e(f"s_mul_i32 s66, s{sHEAD}, 384", "s_sub_u32 s67, 7864320, s66"); e(srd(sWQ_SRD, pWQ, pWQ+1, "s67", "s66"))
    e(f"s_mul_i32 s66, s{sHEAD}, 96", "s_sub_u32 s67, 1969152, s66", f"s_sub_u32 s{pW1}, s{pW1}, 3072", f"s_subb_u32 s{pW1+1}, s{pW1+1}, 0")
    e(srd(sW1_SRD, pW1, pW1+1, "s67", "s66"))
    e(f"s_lshl_b32 s66, s{sWAVE}, 4", "s_mov_b32 s67, 12288")
    e("v_lshrrev_b32 v1, 4, v0", "v_and_b32 v2, 15, v0", "v_lshlrev_b32 v3, 1, v1", "v_xor_b32 v2, v2, v3", "v_add_u32 v3, s66, v1", "v_mul_lo_u32 v3, v3, s67",
      f"v_lshl_add_u32 v{DA}, v2, 4, v3", f"v_add_u32 v{DA+1}, {4*12288 - 1024}, v{DA}", "v_xor_b32 v2, 8, v2", "v_lshl_add_u32 v3, v2, 4, v3",
      f"v_add_u32 v{DA+2}, {8*12288 - 2048}, v3", f"v_add_u32 v{DA+3}, {12*12288 - 3072}, v3")
    e("v_lshrrev_b32 v1, 3, v0", "v_and_b32 v2, 7, v0", "v_and_b32 v3, 2, v1", "v_xor_b32 v2, v2, v3", "v_add_u32 v3, s66, v1", "v_mul_lo_u32 v4, v3, s67",
      "v_add_u32 v4, 256, v4", f"v_lshl_add_u32 v{DB}, v2, 4, v4", "v_xor_b32 v5, 4, v2", "v_lshl_add_u32 v4, v5, 4, v4", f"v_add_u32 v{DB+1}, {8*12288 - 1024}, v4",
      "v_mul_u32_u24 v3, 3072, v3", "v_bfrev_b32 v8, 1", "v_cmp_gt_u32 vcc, 6, v2", "v_lshl_add_u32 v6, v2, 4, v3", "v_add_u32 v6, 1024, v6",
      f"v_cndmask_b32 v{DH}, v8, v6, vcc", "v_cmp_gt_u32 vcc, 6, v5", "v_lshl_add_u32 v6, v5, 4, v3", f"v_add_u32 v6, {8*3072}, v6",
      f"v_cndmask_b32 v{DH+1}, v8, v6, vcc")
    e(f"s_lshl_b32 s66, s{sWAVE}, 12")
    for u in range(6): e(f"s_add_u32 s{sMW+u}, s66, {(WB if u % 2 else WA) + 16384*(u >> 1)}")
    e(f"s_mov_b32 s{sWq}, 0", f"s_mov_b32 s{sW1}, 0")
    NE = 5 if X("allW") else 2
    def wgrp(lo, hi):
        o = E()
        for u in range(lo, hi):
            o(m0W(u), "s_nop 0", dmaW(u))
            if u % 2: o(advW)
        return o
    e(wgrp(0, NE))
    NT = 0 if X("notouch") else 2
    if NT:
        e(f"s_lshl_b32 s66, s{sQB}, 3", f"s_lshl_b32 s67, s{sWAVE}, 1", "s_add_u32 s66, s66, s67", "s_mov_b32 s67, 12288", touch_addr(4),
          f"s_mov_b32 s{sTq}, 786432", f"s_mov_b32 s{sT1}, 196608")
        tch = touch()
        if X("touch2") or X("touch3") or X("touch4"): NT = 0
        else: e(tch)
    e = e_real
    if not dry: e(W_)
    else:
        e("s_mov_b32 s63, s18", "s_mov_b32 s18, 0", "s_mov_b32 s39_, 0".replace("s39_", "s60"), "s_branch F_LN", "F_LN1:", "s_mov_b32 s18, s63", "s_mov_b32 s60, 1")
    e(fstamp(2), f"s_waitcnt vmcnt({0 if dry else 4*NE + NT})", stamp(1), fstamp(3))
    l1 = newlab("T")
    e(srd(12, pDBG, pDBG+1, 4), "v_mov_b32 v27, 0", f"s_cmp_lg_u32 s{sKo}, 0", f"s_cbranch_scc1 {l1}")
    e("v_and_b32 v1, 15, v0", "v_lshlrev_b32 v1, 2, v1", "ds_write_b32 v1, v27")
    for r in range(4):
        e(f"v_bfe_u32 v{4+r}, v{76+r}, 3, 9", f"v_lshrrev_b32 v{8+r}, 5, v{4+r}", f"v_lshlrev_b32 v{8+r}, 2, v{8+r}",
          f"v_and_b32 v{4+r}, 31, v{4+r}", f"v_lshlrev_b32_e64 v{4+r}, v{4+r}, 1")
    for r in range(4): e(f"ds_or_b32 v{8+r}, v{4+r}")
    e("ds_read_b32 v2, v1", "s_waitcnt lgkmcnt(0)", "v_not_b32 v2, v2", "v_ffbl_b32 v2, v2", "v_cmp_ne_u32 vcc, -1, v2",
      "s_nop 4", "s_ff1_i32_b64 s66, vcc", "s_nop 1", "v_readlane_b32 s67, v2, s66", "s_nop 4", "s_lshl_b32 s66, s66, 5", "s_add_u32 s66, s66, s67",
      "s_lshl_b32 s66, s66, 3", "s_or_b32 s66, s66, 0x40000000", "v_mov_b32 v26, s66",
      "s_mov_b64 exec, 1", "buffer_store_dword v26, v27, s[12:15], 0 offen sc1", "s_mov_b64 exec, -1", f"{l1}:")
    XO = 100 if dry else XR
    if dry: e("F_LN:")
    for i in range(10): e(f"v_lshlrev_b32 v{XX+2*i}, 16, v{XR+i}", f"v_and_b32 v{XX+2*i+1}, 0xffff0000, v{XR+i}")
    def reduce32(r, t):
        o = []
        for sh in (8, 4, 2, 1): o += ["s_nop 1", f"v_add_f32_dpp {r}, {r}, {r} row_ror:{sh} row_mask:0xf bank_mask:0xf"]
        return o + [f"v_mov_b32 {t}, {r}", "s_nop 1", f"v_permlane16_swap_b32 {r}, {t}", f"v_add_f32 {r}, {r}, {t}"]
    e(f"v_add_f32 v10, v{XX}, v{XX+1}", f"v_add_f32 v11, v{XX+2}, v{XX+3}")
    for i in range(4, 20, 2): e(f"v_add_f32 v10, v10, v{XX+i}", f"v_add_f32 v11, v11, v{XX+i+1}")
    e("v_add_f32 v10, v10, v11", reduce32("v10", "v11"))
    e(f"s_mov_b32 s66, {hx(f2u(1.0/640))}", "v_mul_f32 v10, s66, v10", "v_mov_b32 v11, 0", "v_mov_b32 v12, 0")
    for i in range(0, 20, 2):
        e(f"v_sub_f32 v1, v{XX+i}, v10", f"v_sub_f32 v2, v{XX+i+1}, v10", "v_fmac_f32 v11, v1, v1", "v_fmac_f32 v12, v2, v2")
    e("v_add_f32 v11, v11, v12", reduce32("v11", "v12"), "v_mul_f32 v11, s66, v11")
    e("v_cvt_pk_bf16_f32 v10, v10, v11", "v_and_b32 v11, 0xffff0000, v10", "v_lshlrev_b32 v10, 16, v10")
    e(f"v_add_f32 v11, {hx(f2u(1e-5))}, v11", "v_cvt_pk_bf16_f32 v11, v11, v11", "v_lshlrev_b32 v11, 16, v11",
      "v_sqrt_f32 v11, v11", "s_nop 0", "v_cvt_pk_bf16_f32 v11, v11, v11", "v_lshlrev_b32 v11, 16, v11", "v_rcp_f32 v11, v11", "s_nop 0")
    for i in range(10):
        a0, a1 = XX+2*i, XX+2*i+1
        e(f"v_sub_f32 v{a0}, v{a0}, v10", f"v_sub_f32 v{a1}, v{a1}, v10", f"v_cvt_pk_bf16_f32 v1, v{a0}, v{a1}",
          f"v_lshlrev_b32 v{a0}, 16, v1", f"v_and_b32 v{a1}, 0xffff0000, v1",
          f"v_mul_f32 v{a0}, v{a0}, v11", f"v_mul_f32 v{a1}, v{a1}, v11", f"v_cvt_pk_bf16_f32 v{XO+i}, v{a0}, v{a1}")
        if i % 2: e(f"s_mov_b32 s66, {16384*(i//2)}", f"buffer_store_dwordx2 {v(XO+i-1,2)}, v13, s[16:19], s66 offen sc1")
    if dry: e("s_cmp_eq_u32 s60, 0", "s_cbranch_scc1 F_LN1", W_)
    e(stamp(2), fstamp(4))
    e("v_lshrrev_b32 v1, 4, v0", "v_lshrrev_b32 v2, 2, v0", "v_and_b32 v2, 3, v2", "v_and_b32 v3, 3, v0",
      "v_and_b32 v5, 1, v1", "v_lshlrev_b32 v4, 1, v2", "v_lshl_or_b32 v4, v5, 3, v4",
      "v_lshl_add_u32 v6, v1, 3, v2", "v_lshlrev_b32 v6, 8, v6", f"v_add_u32 v6, {WA}, v6", "v_lshrrev_b32 v7, 1, v3")
    for T in range(8):
        e(f"v_or_b32 v8, {4*(T >> 1)}, v3", "v_xor_b32 v8, v8, v4", "v_lshl_add_u32 v8, v8, 4, v6", f"v_xor_b32 v9, {T & 1}, v7", f"v_lshl_add_u32 v{AWA+T}, v9, 3, v8")
    e("v_and_b32 v4, 2, v2", "v_lshl_or_b32 v4, v5, 2, v4",
      "v_lshl_add_u32 v6, v5, 3, v2", "v_lshlrev_b32 v6, 7, v6", "v_lshrrev_b32 v8, 1, v1", "v_lshl_add_u32 v6, v8, 12, v6", f"v_add_u32 v6, {WB}, v6")
    for T in range(4):
        e(f"v_or_b32 v8, {4*(T >> 1)}, v3", "v_xor_b32 v8, v8, v4", "v_lshl_add_u32 v8, v8, 4, v6", f"v_xor_b32 v9, {T & 1}, v7", f"v_lshl_add_u32 v{AWB+T}, v9, 3, v8")
    e("v_add_u32 v6, 2048, v6", "v_lshl_add_u32 v6, v3, 3, v6")
    for tt in range(3): e(f"v_xor_b32 v8, {2*tt}, v4", f"v_lshl_add_u32 v{AH+tt}, v8, 4, v6")
    e(fstamp(5))
    lp, ld = newlab("P"), newlab("D")
    tagpoll = E()(f"s_mov_b32 s{sU}, 0", f"{lp}:", "buffer_load_dword v26, v27, s[12:15], 0 offen sc1", "s_waitcnt vmcnt(0)", f"v_readfirstlane_b32 s{sT}, v26",
                  f"s_add_u32 s{sU}, s{sU}, 1", f"s_cmp_gt_u32 s{sU}, {SPIN}", f"s_cbranch_scc1 {ld}",
                  f"s_cmp_eq_u32 s{sT}, 0", f"s_cbranch_scc1 {lp}", f"{ld}:")
    e(wave0(tagpoll), "s_waitcnt vmcnt(0)", fstamp(6), "s_barrier", stamp(3), fstamp(7))
    e(wave0(signal(1)), fstamp(8))
    if not X("allW") and not X("lateW"): e(wgrp(NE, 5))
    if X("touch2"): e(tch)
    e("v_lshrrev_b32 v1, 3, v0", "v_and_b32 v2, 7, v0", f"s_mul_i32 s62, s{sWAVE}, 3072", f"s_lshl_b32 s66, s{sWAVE}, 2")
    for t in range(3):
        e(f"v_add_u32 v3, {8*t}, v1", "v_mul_u32_u24 v4, 171, v3", "v_lshrrev_b32 v4, 9, v4",
          "v_lshrrev_b32 v5, 1, v4", "v_add_u32 v6, s66, v5", "v_and_b32 v6, 7, v6", "v_xor_b32 v6, v2, v6",
          "v_lshlrev_b32 v7, 7, v1", "v_add_u32 v7, s62, v7", f"v_lshl_add_u32 v{DK+t}, v6, 4, v7",
          "v_and_b32 v5, 3, v5", "v_lshlrev_b32 v5, 1, v5", "v_xor_b32 v5, v2, v5", f"v_lshl_add_u32 v{DV+t}, v5, 4, v7")
    for i in range(4): e(f"s_add_u32 s{sMK+i}, s62, {KR + 12288*i}", f"s_add_u32 s{sMV+i}, s62, {VR + 12288*i}")
    e("v_and_b32 v3, 6, v1", "v_xor_b32 v3, v2, v3", "v_mul_u32_u24 v4, 1280, v1", "v_lshl_add_u32 v4, v3, 4, v4", f"s_mul_i32 s66, s{sWAVE}, 10240", f"v_add_u32 v{RLV}, s66, v4")
    e(f"s_mul_i32 s66, s{sM64}, {XF_BLK}")
    if WS_XF: e(f"s_add_u32 s66, s66, {hx(WS_XF)}")
    e(srd(sXF_SRD, pWS, pWS+1, XF_BLK, "s66"))
    e("v_and_b32 v1, 15, v0", "v_lshrrev_b32 v2, 4, v0", "v_lshlrev_b32 v1, 6, v1", f"v_lshl_add_u32 v{LXB}, v2, 4, v1", f"v_add_u32 v{LXB2}, 4096, v{LXB}",
      "v_lshrrev_b32 v3, 1, v2", "v_and_b32 v2, 1, v2", "v_lshrrev_b32 v1, 2, v1", "v_lshl_add_u32 v1, v3, 8, v1", f"v_lshl_add_u32 v{LX8}, v2, 3, v1",
      f"s_mov_b32 s{sX}, 0")
    e(f"s_mul_i32 s66, s{sHEAD}, 786432"); e(srd(sK_SRD, pK, pK+1, 786432, "s66"), srd(sV_SRD, pV, pV+1, 786432, "s66"), relayout_src())
    e(f"s_mul_i32 s66, s{sM64}, {OF_BLK}", f"s_add_u32 s66, s66, {hx(WS_OF)}"); e(srd(sOF_SRD, pWS, pWS+1, OF_BLK, "s66"))
    e(f"s_mov_b32 s{sC}, {hx(f2u(CSCALE))}", f"s_mov_b32 s{sC+1}, {hx(f2u(CSCALE))}", f"s_mov_b32 s{sTHR}, {hx(f2u(THR))}")
    e(f"s_mul_i32 s{sO}, s{sHEAD}, 24576")
    for tt in range(3):
        e(f"s_mul_i32 s66, s{sHEAD}, 3", f"s_add_u32 s66, s66, {tt}", "s_and_b32 s67, s66, 1", "s_lshl_b32 s67, s67, 9",
          "s_lshr_b32 s66, s66, 1", "s_add_u32 s66, s66, 192", "s_lshl_b32 s66, s66, 12", f"s_add_u32 s{sH[tt]}, s66, s67")
    e("v_lshrrev_b32 v1, 4, v0", "v_and_b32 v3, 3, v0",
      "v_lshrrev_b32 v5, 2, v0", "v_mul_u32_u24 v6, 384, v5", f"v_add_u32 v6, {VR}, v6", "v_lshl_add_u32 v6, v3, 3, v6",
      "v_lshrrev_b32 v5, 1, v5", "v_and_b32 v5, 3, v5", "v_lshlrev_b32 v5, 1, v5")
    for sg in range(4): e(f"v_xor_b32 v8, {2*sg}, v5", f"v_lshl_add_u32 v{AV+sg}, v8, 4, v6")
    e("v_and_b32 v2, 15, v0", "v_mul_u32_u24 v6, 384, v2", "v_lshrrev_b32 v2, 1, v2", "v_xor_b32 v2, v2, v1")
    e(f"v_lshl_add_u32 v{AK}, v2, 4, v6", "v_xor_b32 v2, 4, v2", f"v_lshl_add_u32 v{AK+1}, v2, 4, v6", relayout_vaddr(), kv_touch_addr(None), fstamp(9))
    if not X("notouch"):
        e(f"s_lshl_b32 s66, s{sQB}, 3", f"s_lshl_b32 s67, s{sWAVE}, 1", "s_add_u32 s66, s66, s67", "s_mov_b32 s67, 12288", touch_addr(1 if TPS() else 3),
          f"s_mov_b32 s{sTq}, {(TPS()[0] if TPS() else 3 if X('touch3') else 5)*786432}", f"s_mov_b32 s{sT1}, {(TPS()[0] if TPS() else 3 if X('touch3') else 5)*196608}")
    if X("pre2"): e(f"s_mov_b32 s{sTq}, {2*786432}", f"s_mov_b32 s{sT1}, {2*196608}", touch(), advT_())
    for i in range(96): e(f"v_accvgpr_write_b32 a{i}, 0")
    for i in range(48, 192): e(f"v_mov_b32 v{i}, 0")
    e("s_waitcnt vmcnt(0)")
    e(wave0([f"v_lshlrev_b32 v2, 2, v0", f"s_lshl_b32 s{sCNT}, s{sQB}, 7"] + poll(1, ("-1", "0"), f"s{sCNT}")))
    e("s_barrier", fstamp(10))
    for k in range(2): e(ldB(k), advX)
    e([qrd(0, T, kk, uu) for T in range(2) for kk in range(2) for uu in range(2)], wgrp(NE, 5) if X("lateW") else [])
    e(f"s_mov_b32 s{sCNT}, 0", fstamp(11), f"s_waitcnt vmcnt({20 if X('lateW') else 8}) lgkmcnt(4)", stamp(5), fstamp(12))
    return e

TB, TA, TAD, TD, TB8 = 16, 96, 160, 162, 164
sTW, sTB, sMT, sSP = 39, 58, 40, 54
LEAD = 3
def tacc(nt, qt): return (nt*2 + qt)*4
def t_rd(st, nt, kk, dst):
    slot = st % 4
    return f"ds_read_b128 {v(dst, 4)}, v{TAD + slot//3} offset:{(slot%3)*20480 + (kk*10 + nt)*1024}"
def t_A(st, nt, kk): return TA + 8*((10*st + nt) % 4) + 4*kk
def t_B(st, kk, qt): return TB + 16*(st % 4) + 8*kk + 4*qt
def t_ldB(st, g):
    if not g: return [f"buffer_load_dwordx4 {v(t_B(st,kk,qt), 4)}, v{LX}, s[16:19], s{sTB + kk} offen offset:{1024*qt} sc1 ; @B{st}" for kk in range(2) for qt in range(2)]
    return [f"buffer_load_dwordx2 {v(t_B(st,kk,qt) + 2*h, 2)}, v{TB8}, s[16:19], s{sTB + kk} offen offset:{1024*qt + 512*h} sc1 ; @B{st}" for kk in range(2) for qt in range(2) for h in range(2)]
t_advB = [f"s_add_u32 s{sTB}, s{sTB}, 8192", f"s_add_u32 s{sTB+1}, s{sTB+1}, 8192"]
def t_dmaW(st, t): return f"buffer_load_dwordx4 v{TD + (t == 4)}, s[12:15], s{sTW} offen offset:{1024*(t%4)} {'' if X('wplain') else 'sc1 '}lds ; @W{st}"
def t_m0(st, t): return f"s_add_u32 m0, s{sMT}, {(st%4)*20480 + (4096 if t == 4 else 0)}"
t_advW = [f"s_add_u32 s{sTW}, s{sTW}, 20480"]
def tplan(g):
    if g: pl = {2: ("W", LEAD-1, 3), 3: ("B", 0), 6: ("B", 1), 7: ("B", 2), 11: ("W", LEAD-1, 4), 10: ("B", 3), 14: ("B", 4), 15: ("B", 5), 19: ("B", 6), 22: ("B", 7)}
    else: pl = {2: ("W", LEAD-1, 3), 6: ("B", 0), 11: ("W", LEAD-1, 4), 15: ("B", 1), 19: ("B", 2), 23: ("B", 3)}
    pl.update({30: ("W", LEAD, 0), 34: ("W", LEAD, 1), 38: ("W", LEAD, 2)})
    return pl
sIT, sCP, sNW, sNB, sNF, sDA, sDB, FV, FA_ = 50, 52, 53, 49, 47, 45, 43, 166, 165
sFM, sFB = 60, 62
def decode():
    return [f"s_and_b32 s{sDA}, s{sIT}, 7", f"s_lshl_b32 s{sDA}, s{sDA}, 2", f"s_lshr_b32 s{sDA}, s{sCP}, s{sDA}", f"s_and_b32 s{sDA}, s{sDA}, 15",
            f"s_bfe_u32 s{sDB}, s{sIT}, 0x20003", f"s_mul_i32 s{sNF}, s{sDA}, s{sFM}", f"s_add_u32 s{sNF}, s{sNF}, s{sFB}",
            f"s_mul_i32 s{sDA}, s{sDA}, 3", f"s_add_u32 s{sDA}, s{sDA}, s{sDB}", f"s_mul_i32 s{sNW}, s{sDA}, 81920", f"s_lshl_b32 s{sNB}, s{sDA}, 15"]
shiftIT = f"s_lshr_b64 s[{sIT}:{sIT+1}], s[{sIT}:{sIT+1}], 5"
def flagld(): return f"buffer_load_dword v{FV}, v{FA_}, {srdn(sFL)}, s{sNF} offen sc1 ; @F"
def flagchk(): return [f"v_subrev_u32 v{FV}, s{sT}, v{FV}", f"v_subrev_u32 v{FV}, 3, v{FV}", f"v_cmp_lt_u32 vcc, 1, v{FV}"]
def flagspin(entry, back):
    l = newlab("S")
    return E()(f"{entry}:", f"s_mov_b32 s{sU}, 0", f"{l}:", flagld(), "s_waitcnt vmcnt(0)", flagchk(), f"s_add_u32 s{sU}, s{sU}, 1", f"s_cmp_gt_u32 s{sU}, {SPIN}",
               f"s_cbranch_scc1 {back}", f"s_cbranch_vccnz {l}", f"s_branch {back}")
def tstage(st, g, vmw, last=1 << 30, nextA=None):
    L = []
    pl = tplan(g)
    ldb = t_ldB(st + LEAD, g)
    for p in range(20):
        nt = p >> 1; qt = (p & 1) ^ (nt & 1)
        for kk in range(2):
            gi = 2*p + kk
            acc = a(tacc(nt, qt), 4)
            L.append(f"{MF} {acc}, {v(t_A(st,nt,kk), 4)}, {v(t_B(st,kk,qt), 4)}, {acc}")
            if gi % 4 < 2:
                st2, nt2 = st + (nt+3)//10, (nt+3) % 10
                if st2 == st or nextA is None: L.append(t_rd(st2, nt2, gi % 4, t_A(st2, nt2, gi % 4)))
                else: L.append(nextA[2*nt2 + gi % 4])
                if gi % 4 == 1: L.append("s_waitcnt lgkmcnt(4)")
                if gi == 28 and st + LEAD < last: L.append(t_m0(st + LEAD, 0))
                if gi == 4 and st + LEAD - 1 < last: L.append(t_m0(st + LEAD - 1, 4))
                dyn = not g and last > 32
                if gi == 12 and st + LEAD - 1 < last: L += [f"s_mov_b32 s{sTW}, s{sNW}"] if dyn and st % 4 == 1 else t_advW
                if gi == 24 and st + LEAD < last: L.append(f"s_mov_b32 s{sTB}, s{sNB}" if dyn and st % 4 == 0 else t_advB[0])
                if gi == 32 and st + LEAD < last: L.append(f"s_add_u32 s{sTB+1}, s{sNB}, 4096" if dyn and st % 4 == 0 else t_advB[1])
            if not g and last > 32:
                if st % 4 == 2:
                    dc = [shiftIT] + decode()
                    pos = {0: dc[0:1], 3: dc[1:3], 7: dc[3:5], 8: dc[5:6], 10: dc[6:8], 14: dc[8:10], 16: dc[10:11], 18: dc[11:12]}
                    L += pos.get(gi, [])
                    if gi == 26: L.append(flagld())
                if st % 4 == 0:
                    fc = flagchk()
                    if gi == 31: L += fc[:2]
                    if gi == 35: L += fc[2:]
                    if gi == 39: L += ["s_cbranch_vccnz F_TSP", "F_TSB:"]
            if gi in pl:
                x = pl[gi]
                if x[0] == "W":
                    if st + x[1] < last: L.append(t_dmaW(st + x[1], x[2]))
                elif st + LEAD < last: L.append(ldb[x[1]])
            if gi == 27: L += [f"s_waitcnt vmcnt({vmw})", "s_barrier"]
    return L
def tpreW():
    e = E()
    for st in range(LEAD-1):
        e(t_m0(st, 0), "s_nop 0", [t_dmaW(st, t) for t in range(4)], t_m0(st, 4), "s_nop 0", t_dmaW(st, 4), t_advW)
    return e(t_m0(LEAD-1, 0), "s_nop 0", [t_dmaW(LEAD-1, t) for t in range(3)])
def tpreB():
    e = E()
    for st in range(LEAD): e(t_ldB(st, False), t_advB)
    return e
def tpre(g=False):
    if X("wfirst"): return tpreW() + tpreB()
    e = E()
    for st in range(LEAD-1):
        e(t_m0(st, 0), "s_nop 0", [t_dmaW(st, t) for t in range(4)], t_m0(st, 4), "s_nop 0", t_dmaW(st, 4), t_advW, t_ldB(st, g), t_advB)
    e(t_ldB(LEAD-1, g), t_advB, t_m0(LEAD-1, 0), "s_nop 0", [t_dmaW(LEAD-1, t) for t in range(3)])
    return e
def tcounts():
    L = tpre()
    for st in range(12): L = L + tstage(st, False, f"@W{st+1},@B{st+1}")
    L = [l for l in L if not l.startswith(("s_cbranch", "F_"))]
    c = [int(re.search(r"vmcnt\((\d+)\)", l).group(1)) for l in resolve(L, []) if "vmcnt" in l]
    steady = [min(c[4+k], c[8+k]) for k in range(4)]
    return steady, {k: c[k] for k in range(4) if c[k] < steady[k]}
tstubs = []
def tloop():
    steady, first = tcounts()
    dec1 = E()(f"s_mov_b32 s{sTW}, s{sNW}", f"s_mov_b32 s{sTB}, s{sNB}", f"s_add_u32 s{sTB+1}, s{sNB}, 4096")
    quick = E()(flagchk(), "s_nop 1", "s_cbranch_vccz F_T0B") if X("qflag") else []
    wait0 = E()(f"s_cmp_eq_u32 s{sSP}, 3", "s_cbranch_scc1 F_T0B", quick, flagspin("F_T0", "F_T0B"), "F_T0B:", stamp(11), fstamp(4, "tail"), fstamp(9, "last"), shiftIT, decode(), flagld())
    if X("wfirst"): pre = E()(decode() if not X("qflag") else [], dec1, tpreW(), wait0, resolve(tpreB() + ["s_waitcnt vmcnt(@B0)"], []))
    else: pre = E()(decode(), dec1, wait0, resolve(tpre() + ["s_waitcnt vmcnt(@W0,@B0)"], []))
    pre("s_barrier", [t_rd(0, nt, kk, t_A(0, nt, kk)) for nt in range(3) for kk in range(2)], f"s_mov_b32 s{sCNT}, 0", "s_waitcnt lgkmcnt(4)", fstamp(10, "last"), fstamp(5, "tail"))
    body = []; fp = []; tstubs.clear()
    for st in range(4):
        b = tstage(st, False, steady[st])
        if st in first:
            k = b.index(f"s_waitcnt vmcnt({steady[st]})")
            fp += b[:k] + [f"s_waitcnt vmcnt({first[st]})"] + b[k+1:]
            j = max(i for i in range(k) if b[i].startswith(MF)); j = max(i for i in range(j) if b[i].startswith(MF))
            b = b[:j+1] + [f"s_cmp_eq_u32 s{sCNT}, 0"] + b[j+1:k] + [f"s_cbranch_scc1 F_US{st}", b[k], f"F_UB{st}:"] + b[k+1:]
            tstubs.extend([f"F_US{st}:", f"s_waitcnt vmcnt({first[st]})", f"s_branch F_UB{st}"])
        else: fp += b
        body += b
    ctl = [f"s_add_u32 s{sCNT}, s{sCNT}, 1", f"s_cmp_lt_u32 s{sCNT}, s46", "s_cbranch_scc1 F_TLS"]
    return pre, body, ctl, steady, fp
def pb_off(): return E()(f"s_lshl_b32 s41, s{sWAVE}, 2", f"s_add_u32 s41, s41, s{sSP}", "s_mul_i32 s41, s41, 20480",
                         f"s_cmp_eq_u32 s{sWAVE}, s{sSP}", "s_cselect_b32 s41, 0x10000000, s41")
def own_write():
    l = newlab("O")
    e = E()(f"s_cmp_lg_u32 s{sWAVE}, s{sSP}", f"s_cbranch_scc1 {l}", f"v_add_u32 v4, {OWN}, v{LX}")
    for i in range(20): e(f"ds_write_b128 v4, {a(tacc(i % 10, i // 10), 4)} offset:{1024*i}")
    return e(f"{l}:")
def tfinal(cnt):
    FA = lambda nt, k: TA + 16*(nt % 4) + 4*k
    frd = lambda nt, k: t_rd(30 + (k >> 1), nt, k & 1, FA(nt, k))
    e = E()
    for l in tstage(28, False, "@W29,@B29", last=32):
        e(l)
        if l.startswith("buffer_load") and l.endswith("@W31") and "offset:2048" in l:
            e.last = len(e)
    tail = e[e.last:]; del e[e.last:]
    k = [i for i, l in enumerate(tail) if l.startswith(MF)]
    assert len(k) == 1
    e(t_dmaW(31, 3), tail[k[0]], t_m0(31, 4), "s_nop 0", t_dmaW(31, 4))
    n = 0
    for l in tstage(29, False, "0", last=31):
        if l.startswith("ds_read"):
            n += 1
            if n > 14: continue
        if l == "s_waitcnt lgkmcnt(4)" and n > 14: l = "s_waitcnt lgkmcnt(0)"
        if l.startswith("s_waitcnt vmcnt") or l == "s_barrier": continue
        e(l)
    e("s_waitcnt vmcnt(@W30,@B30,@W31,@B31)", "s_barrier")
    e([frd(0, k) for k in range(4)], [frd(1, k) for k in range(4)], pb_off(), "s_waitcnt lgkmcnt(4)")
    pend = []
    for nt in range(10):
        for qt in range(2):
            for k in range(4):
                g = 4*qt + k
                acc = a(tacc(nt, qt), 4)
                e(f"{MF} {acc}, {v(FA(nt,k),4)}, {v(t_B(30 + (k >> 1), k & 1, qt),4)}, {acc}")
                if g < 4 and nt + 2 < 10: e(frd(nt+2, g))
                if g == 3 and nt + 1 < 10: e(f"s_waitcnt lgkmcnt({4 if nt + 2 < 10 else 0})")
                if g in (4, 6) and nt > 0:
                    q2 = (g-4)//2; i = q2*10 + nt-1
                    e(f"buffer_store_dwordx4 {a(tacc(nt-1,q2),4)}, v{LX}, s[20:23], s{42+q2} offen sc1")
                if g in (1, 2) and nt > 0:
                    q2 = g - 1; e(f"s_add_u32 s{42+q2}, s41, {1024*(q2*10 + nt-1)}")
    e("s_add_u32 s42, s41, 9216", "s_add_u32 s43, s41, 19456", "s_nop 5")
    for q2 in range(2): e(f"buffer_store_dwordx4 {a(tacc(9,q2),4)}, v{LX}, s[20:23], s{42+q2} offen sc1")
    e(own_write())
    return e
def gfinal():
    e = E()(pb_off(), "s_waitcnt vmcnt(0) lgkmcnt(0)", "s_nop 1")
    for i in range(20):
        b = tacc(i % 10, i // 10); d = 16 + 6*(i % 8)
        for r in range(4): e(f"v_accvgpr_read_b32 v{d+r}, a{b+r}")
        e(f"v_cvt_pk_bf16_f32 v{d+4}, v{d}, v{d+1}", f"v_cvt_pk_bf16_f32 v{d+5}, v{d+2}, v{d+3}")
        if i % 8 == 0: e(f"s_add_u32 s42, s41, {512*i}")
        e(f"buffer_store_dwordx2 {v(d+4,2)}, v{TB8}, s[20:23], s42 offen offset:{512*(i%8)} sc1")
    e(own_write())
    return e
def items(lst):
    x = 0
    for k, (rb, th) in enumerate(lst): x |= (rb | th << 3) << (5*k)
    return x
def blk(*rbs): return [(rb, th) for rb in rbs for th in range(3)]
PATTERNS = {"B": [blk(0, 2, 4), blk(1, 3, 5), blk(6, 7)],
            "C": [blk(0, 2, 4) + [(5, 0)], blk(1, 3) + [(5, 1), (5, 2)], blk(6, 7)],
            "D": [blk(0, 2, 4), blk(1, 3) + [(5, 0), (5, 1)], [(5, 2)] + blk(6, 7)],
            "E": [blk(0, 2, 4) + [(5, 0)], blk(1, 3) + [(5, 1)], [(5, 2)] + blk(6, 7)],
            "F": [blk(0, 3) + [(6, 0), (6, 1)], blk(1, 4) + [(6, 2), (7, 0)], blk(2, 5) + [(7, 1), (7, 2)]],
            "G": [blk(0, 2) + [(4, 0), (4, 1)], blk(1, 3) + [(4, 2), (5, 0)], [(5, 1), (5, 2)] + blk(6, 7)],
            "A": [blk(0, 3) + [(6, 0), (6, 1)], blk(1, 4) + [(6, 2), (7, 0)], blk(2, 5) + [(7, 1), (7, 2)]]}
DV_ = 136
def roles():
    e = E()
    l, d = newlab("R"), newlab("D")
    e(f"s_mov_b32 s{sU}, 0", f"{l}:", f"v_cmp_eq_u32 vcc, 0, v{DV_}", f"s_add_u32 s{sU}, s{sU}, 1", "s_nop 2", "s_and_b32 s41, vcc_lo, 0xff00", f"s_cbranch_scc0 {d}",
      f"s_cmp_gt_u32 s{sU}, {SPIN}", f"s_cbranch_scc1 {d}", f"buffer_load_dword v{DV_}, v{DV_+1}, s[28:31], 0 offen sc1", "s_waitcnt vmcnt(0)", f"s_branch {l}", f"{d}:")
    e(f"v_readlane_b32 s{sT}, v{DV_}, 0", f"s_mov_b32 s{sCP}, 0", "s_and_b32 s41, s2, 7", "s_add_u32 s41, s41, 8", f"v_readlane_b32 s42, v{DV_}, s41")
    e([f"v_readlane_b32 s{12+c}, v{DV_}, {8+c}" for c in range(8)], "s_nop 3")
    for c in range(1, 8):
        e(f"s_sub_u32 s41, s{12+c}, 1", "s_and_b32 s41, s41, 7", "s_lshl_b32 s41, s41, 2", f"s_lshl_b32 s41, {c}, s41", f"s_or_b32 s{sCP}, s{sCP}, s41")
    e("s_sub_u32 s42, s42, 1", "s_and_b32 s42, s42, 7")
    if X("static"): e("s_and_b32 s42, s2, 7", f"s_mov_b32 s{sCP}, 0x76543210")
    e(f"s_lshr_b32 s{sSP}, s42, 1", "s_add_u32 s55, s42, 1", "s_lshr_b32 s55, s55, 1", "s_and_b32 s55, s55, 1", f"s_and_b32 s56, s{sHEAD}, 3")
    pat = PATTERNS[[x[3:] for x in EXP[0].split() if x.startswith("pat")][0] if "pat" in EXP[0] else "D"]
    pat = pat + [blk(0, 1)]
    for m in (3, 2, 1, 0):
        x = items(pat[m])
        if m == 3: e(f"s_mov_b32 s{sIT}, {hx(x)}", f"s_mov_b32 s{sIT+1}, {hx(x >> 32)}", f"s_mov_b32 s46, {len(pat[m]) - 1}")
        else: e(f"s_cmp_eq_u32 s{sSP}, {m}", f"s_cselect_b32 s{sIT}, {hx(x)}, s{sIT}", f"s_cselect_b32 s{sIT+1}, {hx(x >> 32)}, s{sIT+1}", f"s_cselect_b32 s46, {len(pat[m]) - 1}, s46")
    e(f"s_lshl_b32 s41, s{sQB}, 7", f"s_lshl_b32 s42, s{sHEAD}, 2", "s_add_u32 s42, s42, s41", f"s_cmp_eq_u32 s{sSP}, 3", f"s_cselect_b32 s{sCP}, 0x98, s{sCP}",
      f"s_cselect_b32 s{sFM}, 0, 16", f"s_cselect_b32 s{sFB}, s42, s41", "s_cselect_b32 s40, 0, 3")
    return e
def tail_setup():
    e = E()
    e("v_and_b32 v1, s40, v0", f"v_lshlrev_b32 v{FA_}, 2, v1")
    e(f"s_mul_i32 s41, s56, {WF160}", f"s_add_u32 s41, s41, {hx(WS_WF)}")
    e(srd(12, pWS, pWS+1, WF160, "s41"))
    e(f"s_lshl_b32 s41, s{sQB}, 2", "s_lshl_b32 s42, s55, 1", "s_add_u32 s41, s41, s42", f"s_lshr_b32 s42, s{sWAVE}, 1", "s_add_u32 s41, s41, s42",
      f"s_mul_i32 s41, s41, {OF_BLK}",
      f"s_and_b32 s42, s{sWAVE}, 1", "s_lshl_b32 s42, s42, 11", "s_add_u32 s41, s41, s42", f"s_add_u32 s41, s41, {hx(WS_OF)}",
      f"s_sub_u32 s43, {OF_BLK}, s42")
    e(srd(16, pWS, pWS+1, "s43", "s41"))
    e(f"s_mov_b32 s{sTB}, 0", f"s_mov_b32 s{sTB+1}, 4096", f"s_mov_b32 s{sTW}, 0", f"s_mul_i32 s{sMT}, s{sWAVE}, 5120")
    e(f"s_lshl_b32 s41, s{sQB}, 1", "s_add_u32 s41, s41, s55", "s_lshl_b32 s41, s41, 2", "s_add_u32 s41, s41, s56", "s_mul_i32 s41, s41, 327680",
      f"s_add_u32 s41, s41, {hx(WS_PB)}")
    e(srd(20, pWS, pWS+1, 327680, "s41"))
    e(f"s_lshl_b32 s41, s{sQB}, 3", "s_lshl_b32 s42, s55, 2", "s_add_u32 s41, s41, s42", f"s_add_u32 s41, s41, s{sSP}", "s_lshl_b32 s41, s41, 1",
      f"s_and_b32 s42, s{sWAVE}, 1", "s_add_u32 s41, s41, s42", "s_mul_i32 s41, s41, 20480",
      "s_mul_i32 s42, s56, 320", "s_add_u32 s41, s41, s42", f"s_lshr_b32 s42, s{sWAVE}, 1", "s_mul_i32 s42, s42, 160", "s_add_u32 s41, s41, s42",
      "s_sub_u32 s42, 2621440, s41")
    e(srd(24, pX, pX+1, "s42", "s41")); e(srd(28, pOUT, pOUT+1, "s42", "s41"))
    e("s_lshl_b32 s44, 0x11111111, s56", f"s_lshl_b32 s48, s{sQB}, 7")
    return e
def tail_vsetup():
    return E()(f"v_add_u32 v{TD}, s{sMT}, v{LX}", f"v_add_u32 v{TD+1}, 4096, v{TD}", f"v_mov_b32 v{TAD}, v{LX}", f"v_add_u32 v{TAD+1}, 61440, v{LX}",
               [f"v_accvgpr_write_b32 a{i}, 0" for i in range(80)])

def laststep(i=63):
    Pc = Pb(i)
    e = E()
    e(rdVp(62, 0))
    e(wave0([f"buffer_load_dwordx4 v[140:143], v{LX}, {srdn(sFL)}, 0 offen sc1"]))
    e(srd(28, pDBG, pDBG+1, 64), "v_and_b32 v138, 15, v0", f"v_lshlrev_b32 v{DV_+1}, 2, v138", f"buffer_load_dword v{DV_}, v{DV_+1}, s[28:31], 0 offen sc1")
    Ex, Sx = sm(S1, [2, 3], Pc, 1)
    e(Ex, rdVp(62, 1, KF))
    e([x for _, x in Sx], CHK, "s_waitcnt lgkmcnt(12)", callsite(i % 4), LADD, "s_nop 0", fstamp(2, "last"))
    RI = 8
    Xl = xlane("v_add_f32", L_, 2) + [f"v_rcp_f32 v{RI+2*qt}, v{L_+qt}" for qt in range(4)]
    def mix(m, fill, per=1):
        for x in m:
            e(x)
            for _ in range(per):
                if fill: e(fill.pop(0))
    r2, r3 = rdVp(62, 2), rdVp(62, 3, KF)
    ok = newlab("K")
    chk = E()(f"s_add_u32 s{sTMP}, s{sT}, 2")
    for r in range(4): chk(f"v_subrev_u32 v{140+r}, s{sTMP}, v{140+r}")
    chk("v_max3_u32 v140, v140, v141, v142", "v_max_u32 v140, v140, v143", "v_cmp_lt_u32 vcc, 2, v140", "s_nop 1", f"s_cbranch_vccz {ok}",
        f"v_mov_b32 v2, v{LX}", poll(2, ("-1", "-1"), "0", wide=True), f"{ok}:")
    def norm(j):
        o = E()(f"s_add_u32 s{sTMP}, s{sO}, {4096*j}")
        for qt in range(4):
            k = 4*j + qt
            t = 64 + 8*(k % 4); d = 112 + 4*(k % 6)
            for hh in range(2):
                b = Oacc(2*j+hh, qt)
                for r in range(4): o(f"v_accvgpr_read_b32 v{t+4*hh+r}, a{b+r}")
            for r in range(0, 8, 2): o(f"v_pk_mul_f32 {v(t+r,2)}, {v(t+r,2)}, {v(RI+2*qt,2)} op_sel_hi:[1,0]")
            for r in range(4): o(f"v_cvt_pk_bf16_f32 v{d+r}, v{t+2*r}, v{t+2*r+1}")
            o(f"buffer_store_dwordx4 {v(d,4)}, v{LX}, {srdn(sOF_SRD)}, s{sTMP} offen offset:{1024*qt} sc1")
        return o
    mix(pv(62, 0), Xl, 2); e(Xl, "s_waitcnt lgkmcnt(0)", fstamp(3, "last"))
    if X("oldlast"):
        mix(pv(62, 1, src=KF), r2); e("s_waitcnt lgkmcnt(0)"); mix(pv(62, 2), r3)
        e(norm(0), norm(1), "s_waitcnt lgkmcnt(0)", pv(62, 3, src=KF), norm(2), norm(3), norm(4), norm(5))
    else:
        mix(pv(62, 1, src=KF), r2); e(norm(0), "s_waitcnt lgkmcnt(0)")
        mix(pv(62, 2), r3); e(norm(1), norm(2), "s_waitcnt lgkmcnt(0)", pv(62, 3, src=KF), norm(3), norm(4), norm(5))
    CHK2[:] = wave0(chk)
    return e
CHK2 = []

def tail_end():
    e = E()
    XV = 232
    e("v_and_b32 v3, 15, v0", "v_mul_u32_u24 v3, 1280, v3", "v_lshrrev_b32 v4, 4, v0", "v_lshl_add_u32 v3, v4, 3, v3", fstamp(7, "tail"))
    e("s_waitcnt vmcnt(0) lgkmcnt(0)", fstamp(8, "tail"), "s_barrier", fstamp(9, "tail"), wave0(signal(4)))
    for nt in range(5): e(f"buffer_load_dwordx2 {v(XV+2*nt,2)}, v3, s[24:27], 0 offen offset:{32*nt}")
    e(f"s_and_b32 s42, s{sWAVE}, 1", "s_mul_i32 s42, s42, 10240", f"s_lshr_b32 s43, s{sWAVE}, 1", "s_mul_i32 s43, s43, 5120", "s_add_u32 s42, s42, s43",
      f"s_add_u32 s43, s42, {OWN}", f"v_add_u32 v5, s43, v{LX}")
    for i in range(5): e(f"ds_read_b128 {v(176+4*i,4)}, v5 offset:{1024*i}")
    e(f"s_mul_i32 s41, s{sSP}, 81920", "s_add_u32 s50, s41, s42", "s_add_u32 s51, s50, 20480", "s_add_u32 s52, s50, 40960", "s_add_u32 s53, s50, 61440")
    for src in range(4): e(f"s_cmp_eq_u32 s{sSP}, {src}", f"s_cselect_b32 s{50+src}, 0x10000000, s{50+src}")
    e(f"s_cmp_eq_u32 s{sSP}, 3", "s_cselect_b32 s56, 0, 1.0", "s_cselect_b32 s57, 1.0, 0", f"v_add_u32 v5, 4096, v{LX}", f"s_mov_b32 s38, {hx(f2u(-math.log2(math.e)))}")
    pl = wave0(["v_lshlrev_b32 v2, 2, v0"] + poll(4, ("s44", "0"), "s48"))
    if X("dryfin"):
        e("s_mov_b32 s59, s30", "s_mov_b32 s58, 0", f"s_cmp_eq_u32 s{sWAVE}, 0", "s_cbranch_scc1 F_FP", "s_mov_b32 s22, 0", "s_mov_b32 s30, 0", "s_branch F_FIN",
          "F_FP:", pl, "F_FD:", "s_waitcnt vmcnt(0)", "s_mov_b32 s22, 327680", "s_mov_b32 s30, s59", "s_mov_b32 s58, 1", "s_barrier", stamp(4), fstamp(10, "tail"), "F_FIN:")
    else: e(pl, "s_barrier", stamp(4), fstamp(10, "tail"))
    def ldp(i):
        return [f"buffer_load_dwordx4 {v(16+16*i+4*src,4)}, v{LX if i < 4 else 5}, s[20:23], s{50+src} offen offset:{1024*(i%4)} sc1 ; @P{i}" for src in range(4)]
    AH_ = ([int(x[2:]) for x in EXP[0].split() if x.startswith("ah")] or [2])[0]
    k0 = len(e)
    for i in range(AH_): e(ldp(i))
    e("s_waitcnt lgkmcnt(0)")
    for nt in range(5):
        S = 16 + 16*nt; G = S + 12; Xr = XV + 2*nt; t = 112 + 12*nt; W = 176 + 4*nt
        if nt + AH_ < 5: e(ldp(nt + AH_))
        e(f"s_waitcnt vmcnt(@P{nt})", fstamp(11, "tail") if nt == 0 else [])
        for r in range(4): e(f"v_add_f32 v{S+r}, v{S+r}, v{S+4+r}")
        for r in range(4): e(f"v_fmac_f32 v{G+r}, s57, v{W+r}")
        for r in range(4): e(f"v_add_f32 v{S+r}, v{S+r}, v{S+8+r}")
        for r in range(4): e(f"v_fmac_f32 v{S+r}, s56, v{W+r}")
        e(f"v_cvt_pk_bf16_f32 v{t+2}, v{G}, v{G+1}", f"v_cvt_pk_bf16_f32 v{t+3}, v{G+2}, v{G+3}",
          f"v_cvt_pk_bf16_f32 v{t}, v{S}, v{S+1}", f"v_cvt_pk_bf16_f32 v{t+1}, v{S+2}, v{S+3}")
        for k in range(2):
            e(f"v_lshlrev_b32 v{G+2*k}, 16, v{t+2+k}", f"v_and_b32 v{G+2*k+1}, 0xffff0000, v{t+2+k}",
              f"v_lshlrev_b32 v{S+2*k}, 16, v{t+k}", f"v_and_b32 v{S+2*k+1}, 0xffff0000, v{t+k}")
        for r in range(4): e(f"v_mul_f32 v{t+4+r}, s38, v{G+r}")
        for r in range(4): e(f"v_exp_f32 v{t+4+r}, v{t+4+r}")
        for r in range(4): e(f"v_add_f32 v{t+4+r}, 1.0, v{t+4+r}")
        for r in range(4): e(f"v_rcp_f32 v{t+4+r}, v{t+4+r}")
        for r in range(4): e(f"v_mul_f32 v{G+r}, v{G+r}, v{t+4+r}")
        e(f"v_cvt_pk_bf16_f32 v{t+2}, v{G}, v{G+1}", f"v_cvt_pk_bf16_f32 v{t+3}, v{G+2}, v{G+3}")
        for k in range(2): e(f"v_lshlrev_b32 v{G+2*k}, 16, v{t+2+k}", f"v_and_b32 v{G+2*k+1}, 0xffff0000, v{t+2+k}")
        for r in range(4): e(f"v_mul_f32 v{S+r}, v{S+r}, v{G+r}")
        e(f"v_cvt_pk_bf16_f32 v{t}, v{S}, v{S+1}", f"v_cvt_pk_bf16_f32 v{t+1}, v{S+2}, v{S+3}")
        for k in range(2):
            e(f"v_lshlrev_b32 v{S+2*k}, 16, v{t+k}", f"v_and_b32 v{S+2*k+1}, 0xffff0000, v{t+k}",
              f"v_lshlrev_b32 v{G+2*k}, 16, v{Xr+k}", f"v_and_b32 v{G+2*k+1}, 0xffff0000, v{Xr+k}")
        for r in range(4): e(f"v_add_f32 v{S+r}, v{S+r}, v{G+r}")
        e(f"v_cvt_pk_bf16_f32 v{t+8}, v{S}, v{S+1}", f"v_cvt_pk_bf16_f32 v{t+9}, v{S+2}, v{S+3}")
        e(f"buffer_store_dwordx2 {v(t+8,2)}, v3, s[28:31], 0 offen offset:{32*nt}" + (" sc1" if X("outsc1") else "") + (" nt" if X("outnt") else ""))
    e[k0:] = resolve(e[k0:], [])
    if X("dryfin"): e("s_cmp_eq_u32 s58, 0", "s_cbranch_scc1 F_FD")
    e(fstamp(12, "tail"))
    return e

def encode():
    en = [x for x in EXP[0].split() if x.startswith("enc:")]
    if not en: return []
    _, i, j, mult, W = en[0].split(":")
    return E()(f"s_cmp_lg_u32 s2, {W}", "s_cbranch_scc1 F_END", f"s_sub_u32 s66, s{88+int(j)}, s{88+int(i)}", f"s_mul_i32 s66, s66, {mult}", "s_add_u32 s66, s66, 15000",
               "F_ENC:", "s_memrealtime s[86:87]", "s_waitcnt lgkmcnt(0)", "s_sub_u32 s67, s86, s88", "s_cmp_lt_u32 s67, s66", "s_cbranch_scc1 F_ENC")

def gen(exp=""):
    sites.clear(); lab[0] = 0; EXP[0] = exp
    L = E()(kernel_head(NAME))
    if X("early0"): L("s_memrealtime s[100:101]")
    L("s_cmp_ge_u32 s2, 256", "s_cbranch_scc1 F_END")
    pro = front() + (cstamp(8) if X("qcyc") else [])
    qc, qfirst, q18 = qcounts()
    qloop = []; qfp = []; stubs = E()
    for u in range(6):
        b = qsub(u, last=40, vmw=qc[u])
        if u in qfirst:
            k = b.index(f"s_waitcnt vmcnt({qc[u]})")
            qfp += b[:k] + [f"s_waitcnt vmcnt({qfirst[u]})"] + b[k+1:]
            j = max(i for i in range(k) if b[i].startswith(MF))
            j = max(i for i in range(j) if b[i].startswith(MF))
            b = b[:j+1] + [f"s_cmp_eq_u32 s{sCNT}, 0"] + b[j+1:k] + [f"s_cbranch_scc1 F_QS{u}", b[k], f"F_QB{u}:"] + b[k+1:]
            stubs(f"F_QS{u}:", f"s_waitcnt vmcnt({qfirst[u]})", f"s_branch F_QB{u}")
        else: qfp += b
        qloop += b
    qctl = [f"s_add_u32 s{sCNT}, s{sCNT}, 1", f"s_cmp_lt_u32 s{sCNT}, 3", "s_cbranch_scc1 F_QL"]
    ex = {18: {}, 19: {}}
    for (kind, j), (u, g0) in zip([("K", 0), ("K", 1), ("V", 0), ("K", 2)], [(18, 4), (18, 20), (18, 36), (19, 4)]):
        m, d = kvgroup(kind, j)
        ex[u].setdefault(g0, []).extend(m)
        for t, dg in enumerate((1, 2, 3)): ex[u].setdefault(g0 + dg, []).append(d[t])
    rd = relayout_dst()
    if X("hfirst"):
        for k, g in enumerate(8*a_ + b_ for a_ in range(6) for b_ in range(3)): ex[18].setdefault(g, []).append(rd[k])
    else:
        for k, g in enumerate((36, 37, 38, 39, 44, 45, 46, 47, 52)): ex[19].setdefault(g, []).extend(rd[2*k:2*k+2])
    q19 = qsub(19, extra=ex[19])
    if X("hfirst"):
        q19, left = fill(q19, hops())
        if X("showcnt"): print("h ops left over:", len(left))
        q19 += left
    mid = qsub(18, extra=ex[18], vmw="@W19") + q19 + stamp(6) + fstamp(1, "conv") + (cstamp(9) if X("qcyc") else []) + convert() + fstamp(2, "conv") + init() + fstamp(7, "conv") + stamp(7) + (cstamp(8) if not (X("tcyc") or X("qcyc")) else [])
    keep = mid
    mid = [l + (" ; " + re.search(r"@\S+", k).group(0) if k.startswith("buffer_") and "@" in k and "@" not in l else "") for l, k in zip(resolve(mid, q18), keep)]
    ctl = [f"s_add_u32 s{sCNT}, s{sCNT}, 1", f"s_bitcmp1_b32 {hx(1 << 11 | 1 << 12 | 1 << 15 | (1 << 14 if X('x_tlb') else 0))}, s{sCNT}", "s_cbranch_scc0 F_AL"]
    rlk = {1: "dma", 3: "out"} if not X("norl") else {}
    if not X("nokvt"): rlk.update({2: "tk", 0: "tv"})
    mid = mid + [f"s_mov_b32 s{sCNT}, 0"]
    def mk(i, w): return step(i, vmw=w, tail=ctl if (i >= 3 and i % 4 == 2) else (), rl=rlk.get(i % 4) if i >= 3 else None)
    q = [re.search(r"@(\S+)", l).group(1) if "@" in l else "-" for l in mid if l.startswith("buffer_")]; cnts = {}
    for i in range(23):
        key = i if i < 3 else 3 + (i-3) % 4
        for l in mk(i, "?"):
            if "vmcnt(?)" in l:
                need = [f"K{i+2}"] + ([f"V{i}", f"V{i+1}"] if i % 2 == 0 else []) + (["R"] if i % 4 == 2 else [])
                c = len(q) - 1 - max(k for k, x in enumerate(q) if x in need)
                cnts[key] = min(cnts.get(key, 63), c)
            if l.startswith("buffer_"): q.append(re.search(r"@(\S+)", l).group(1))
    sites.clear()
    s0 = mk(0, cnts[0]) + mk(1, cnts[1]) + mk(2, cnts[2])
    body = [mk(i, cnts[i]) for i in range(3, 7)]
    def drop(pred):
        for k in range(4): body[k] = [l for l in body[k] if not pred(l)]
    if X("x_nobar"): drop(lambda l: l == "s_barrier")
    if X("x_nodma"): drop(lambda l: l.startswith("buffer_"))
    if X("x_nochk"): drop(lambda l: l.startswith("s_cbranch_vccnz"))
    if X("x_nolgkm"):
        for k in range(4): body[k] = [re.sub(r" lgkmcnt\(\d+\)", "", l) for l in body[k] if not l.startswith("s_waitcnt lgkmcnt")]
    if X("x_nods"): drop(lambda l: l.startswith("ds_"))
    if X("showcnt"): print("step counts", cnts, "q counts", qc)
    tlb = E()
    if X("x_tlb"):
        tlb(f"s_cmp_lg_u32 s{sCNT}, 14", "s_cbranch_scc1 F_H0", srd(28, pWS, pWS+1, 0x8000000),
            f"s_lshl_b32 s66, s{sQB}, 2", f"s_mul_i32 s66, s66, {OF_BLK}", f"s_add_u32 s66, s66, {hx(WS_OF + 190*4096)}", f"v_mul_u32_u24 v2, {OF_BLK}, v0", "v_add_u32 v2, s66, v2",
            f"s_and_b32 s66, s{sHEAD}, 3", f"s_mul_i32 s67, s66, {WF160}", f"s_add_u32 s67, s67, {hx(WS_WF)}", "v_subrev_u32 v3, 4, v0", "v_lshlrev_b32 v3, 20, v3", "v_add_u32 v3, s67, v3",
            "v_cmp_gt_u32 vcc, 4, v0", f"s_lshl_b32 s67, s{sQB}, 3", "s_add_u32 s66, s66, s67", "v_cndmask_b32 v2, v3, v2, vcc",
            "s_mul_i32 s66, s66, 327680", f"s_add_u32 s66, s66, {hx(WS_PB)}", "v_subrev_u32 v3, 7, v0", f"v_mul_u32_u24 v3, {4*327680}, v3", "v_add_u32 v3, s66, v3",
            "v_cmp_gt_u32 vcc, 7, v0", "s_nop 1", "v_cndmask_b32 v2, v3, v2, vcc", "v_cmp_gt_u32 vcc, 9, v0", "v_bfrev_b32 v3, 1", "s_nop 0", "v_cndmask_b32 v2, v3, v2, vcc",
            "buffer_load_dword v1, v2, s[28:31], 0 offen", srd(28, pOUT, pOUT+1, 2621440), f"s_mul_i32 s66, s{sQB}, 327680", "buffer_load_dword v1, off, s[28:31], s66",
            "s_branch F_AL", "F_H0:")
    hooks = E()(f"s_cmp_eq_u32 s{sCNT}, 15", "s_cbranch_scc1 F_LAST", tlb, f"s_cmp_lg_u32 s{sWAVE}, 0", "s_cbranch_scc1 F_AL",
                f"s_cmp_eq_u32 s{sCNT}, 12", "s_cbranch_scc1 F_H1", signal(2), "s_mov_b32 s66, 4",
                "s_cmp_ge_u32 s2, 8", "s_cbranch_scc1 F_AL", srd(28, pDBG, pDBG+1, 64), "s_mov_b64 exec, 1",
                f"v_mov_b32 v{RLV}, 1", f"buffer_atomic_add v{RLV}, off, s[28:31], s66 sc0 sc1", "s_mov_b64 exec, -1", "s_branch F_AL",
                "F_H1:", "s_cmp_ge_u32 s2, 8", "s_cbranch_scc1 F_AL", "s_lshl_b32 s66, s2, 2", "s_add_u32 s66, s66, 32", "s_mov_b64 exec, 1",
                f"v_add_u32 v{RLV}, 1, v{RLV}", f"buffer_store_dword v{RLV}, off, s[28:31], s66 sc1", "s_mov_b64 exec, -1", "s_branch F_AL")
    last = (cstamp(9) if not (X("tcyc") or X("qcyc")) else []) + fstamp(1, "last") + laststep()
    h1 = E()(stamp(10), fstamp(1, "tail"), fstamp(5, "last"), "s_waitcnt vmcnt(24)", CHK2, roles(), fstamp(6, "last"), tail_setup(), (decode() + [flagld()]) if X("qflag") else [], tail_vsetup(), fstamp(7, "last"), "s_waitcnt vmcnt(0)", fstamp(8, "last"), fstamp(2, "tail"), "s_barrier", wave0(signal(3)), fstamp(3, "tail"))
    preS, bodyS, ctlS, cS, fpS = tloop()
    hS = E()(preS, cstamp(8) if X("tcyc") else [])
    sim = tpre(False) + [x for st in range(28) for x in tstage(st, False, 0)]
    q28 = [re.search(r"@(\S+)", l).group(1) for l in sim if l.startswith("buffer_")][-24:]
    finS = E()(resolve(tfinal(cS), q28), stamp(12), fstamp(6, "tail"), cstamp(9) if X("tcyc") else [])
    end = tail_end()
    L(pro, ".p2align 6", "F_QL:", qloop, qctl, mid, s0, ".p2align 6", ["s_nop 0"]*([int(x[2:]) for x in exp.split() if x.startswith("sh")] or [0])[0], "F_AL:", *body, hooks, "F_LAST:", last,
      h1, hS, ".p2align 6", "F_TLS:", bodyS, ctlS, finS, "F_TE:", end, stamp_flush(0, 13, pWS, f"s{sWAVE}"), encode(), "F_END:", "s_endpgm")
    for k, par in enumerate(sites):
        L(f"F_TR{k}:", f"s_call_b64 s[{sRET}:{sRET+1}], F_SLOW{par}", f"s_branch F_BK{k}")
    L(stubs, tstubs, flagspin("F_TSP", "F_TSB"), "F_PFE:", slow(0), slow(1), slow(2), slow(3))
    flat = lambda Z: [y for x in Z for y in x]
    pro = [l for l in pro if l not in ("s_branch F_LN",)]
    tr = pro + qfp + qctl + (qloop + qctl)*2 + mid + s0 + flat(body) + flat(body) + last + h1
    if "x_" in exp: return L, kernel_desc(NAME, 512, 256), "; @launch grid=(256,1,1) block=(256,1,1) lds=163840"
    check(tr + hS + fpS + ctlS + (bodyS + ctlS)*6 + finS + end, "S")
    check(flagspin("A", "B") + bodyS, "spin")
    for n in range(4):
        b = body[n]
        idx = [i for i, x in enumerate(b) if x.startswith("F_BK")][0]
        check(body[(n-1) % 4] + b[:idx] + slow((3+n) % 4) + b[idx:] + body[(n+1) % 4], f"slow{n}")
    return L, kernel_desc(NAME, 512, 256), "; @launch grid=(256,1,1) block=(256,1,1) lds=163840"

def build(path, **kw):
    HDR = open("recurrent_scan__gqa_block_cached__dense_activation_relu__prompt.s.ref").read().split("; Override launch")[0]
    L, D, H = gen(**kw)
    L = [re.sub(r"\s*; @\S+$", "", l) for l in L]
    NOTE = """;
; One launch, 256 workgroups (one per CU), 4 waves x 64 query rows, v_mfma_f32_16x16x32_bf16 throughout.
;   3. flash attention over 64 key tiles; exp2 is taken against a running reference that starts at the true maximum of
;      the first tile and is moved to the true running maximum whenever a row sum leaves the safe range (F_SLOW*);
;      wo / w2 are re-laid out as MFMA fragments in otherwise idle issue slots
;   4. o @ wo and h @ w2 as 128 x 160 tiles with K split over four workgroups (shares follow the order of arrival),
;      partial sums exchanged through d_ws, then out = x + s * silu(g)
"""
    open(path, "w").write(HDR + NOTE + H + "\n" + '.amdgcn_target "amdgcn-amd-amdhsa--gfx950"\n' + "\n".join(L) + "\n" + "\n".join(D) + "\n")
if __name__ == "__main__":
    for flag, mode in (("--ts", None), ("--tail", "tail"), ("--front", "front"), ("--last", "last"), ("--conv", "conv")):
        if flag in sys.argv:
            OPT["ts"] = True; OPT["mode"] = mode; sys.argv.remove(flag)
    build(sys.argv[1], exp=" ".join(sys.argv[2:]))
```

```python
from common import *
import re, sys

NAME = "recurrent_scan__gqa_block_cached__dense_activation_relu__prompt_kernel"
MF = "v_mfma_f32_16x16x32_bf16"
EXP = [""]
DEFAULTS = ["poll1", "touch3", "hfirst", "wfirst", "qsnake"]
def X(flag): return flag in EXP[0].split() or (flag in DEFAULTS and "no_" + flag not in EXP[0].split())

KR, VR = 0, 49152
WA, WB = 65536, 114688
ST = 122880
OWN = 81920
pX, pK, pV, pWQ, pWO, pWS, pW1, pW2, pOUT, pDBG = 4, 6, 8, 10, 68, 70, 72, 74, 76, 78
sK_SRD, sV_SRD, sWQ_SRD, sW1_SRD, sXF_SRD, sOF_SRD, sFL = 12, 16, 20, 24, 28, 32, 80
sWAVE, sHEAD, sM64, sKo = 36, 37, 38, 39
sMK, sMV, sMW = 40, 44, 48
sWq, sW1, sX, sCNT, sC, sTHR, sO, sVo, sRET = 54, 55, 56, 57, 58, 60, 61, 63, 64
sH = [6, 7, 62]
sTMP, sU, sT, sQB = 66, 67, 84, 85
sRSRC, sRDST, sRM, sRS = 8, 20, 24, 25
QV, NM, S0, S1, P, KF, VF, ET, T_, L_ = 16, 48, 64, 96, 112, 176, 200, 224, 232, 236
AK, AV, DK, DV, CK, LX, RLV = 240, 242, 246, 249, 224, 253, 254
AF, DA, DB, DH, AWA, AWB, AH, LXB, LX8, LXB2 = 16, 40, 44, 46, 192, 200, 204, 207, 208, 209
CSCALE = math.log2(math.e) / math.sqrt(192.0)
THR = 2.0 ** 30
SPIN = 1 << 18

def srdn(b): return f"s[{b}:{b+3}]"
class E(list):
    def __call__(self, *x):
        for y in x:
            if isinstance(y, list): self.extend(y)
            else: self.append(y)
        return self
lab = [0]
def newlab(p):
    lab[0] += 1; return f"F_{p}{lab[0]}"
def wave0(body):
    l = newlab("W")
    return E()(f"s_cmp_lg_u32 s{sWAVE}, 0", f"s_cbranch_scc1 {l}", body, f"{l}:")

def poll(phase, mask, soff, wide=False, vaddr="v2"):
    l, d = newlab("P"), newlab("D")
    e = E()
    e(f"s_mov_b32 exec_lo, {mask[0]}", f"s_mov_b32 exec_hi, {mask[1]}", f"s_add_u32 s{sTMP}, s{sT}, {phase}", f"s_mov_b32 s{sU}, 0")
    if wide:
        e(f"{l}:", f"buffer_load_dwordx4 v[4:7], {vaddr}, {srdn(sFL)}, {soff} offen sc1", "s_waitcnt vmcnt(0)")
        for r in range(4): e(f"v_subrev_u32 v{4+r}, s{sTMP}, v{4+r}")
        e("v_max3_u32 v4, v4, v5, v6", "v_max_u32 v4, v4, v7")
        e(f"v_cmp_lt_u32 vcc, {4-phase}, v4", f"s_add_u32 s{sU}, s{sU}, 1", f"s_cmp_gt_u32 s{sU}, {SPIN}", f"s_cbranch_scc1 {d}", f"s_cbranch_vccnz {l}")
    elif X("poll1"):
        e(f"{l}:", f"buffer_load_dword v4, {vaddr}, {srdn(sFL)}, {soff} offen sc1", "s_waitcnt vmcnt(0)", f"v_subrev_u32 v4, s{sTMP}, v4")
        e(f"v_cmp_lt_u32 vcc, {4-phase}, v4", f"s_add_u32 s{sU}, s{sU}, 1", f"s_cmp_gt_u32 s{sU}, {SPIN}", f"s_cbranch_scc1 {d}", f"s_cbranch_vccnz {l}")
    else:
        ld = lambda r: f"buffer_load_dword v{r}, {vaddr}, {srdn(sFL)}, {soff} offen sc1"
        e(ld(8), "s_sleep 4", ld(9), "s_sleep 4", ld(10), f"{l}:")
        for r in (8, 9, 10):
            e("s_waitcnt vmcnt(2)", f"v_subrev_u32 v11, s{sTMP}, v{r}", f"v_cmp_lt_u32 vcc, {4-phase}, v11", f"s_add_u32 s{sU}, s{sU}, 1", ld(r), "s_nop 0", f"s_cbranch_vccz {d}")
        e(f"s_cmp_le_u32 s{sU}, {SPIN}", f"s_cbranch_scc1 {l}")
    e(f"{d}:", "s_mov_b64 exec, -1")
    return e
def signal(phase):
    return E()(f"s_add_u32 s{sTMP}, s{sT}, {phase}", f"s_lshl_b32 s{sU}, s{sQB}, 5", f"s_add_u32 s{sU}, s{sU}, s{sHEAD}", f"s_lshl_b32 s{sU}, s{sU}, 2",
               f"v_mov_b32 v4, s{sTMP}", "v_mov_b32 v5, 0", "s_mov_b64 exec, 1",
               f"buffer_store_dword v4, v5, {srdn(sFL)}, s{sU} offen sc1", "s_mov_b64 exec, -1")

def qacc(ds, tb, qt):
    n = (ds*2 + tb)*4 + qt
    return R("a", 4*n) if n < 24 else R("v", 48 + 4*(n-24))
def hacc(tt, qt): return R("v", 144 + 4*(tt*4 + qt))
def BF(s, kk, qt): return a(96 + 32*(s % 3) + 16*kk + 4*qt, 4)
def ldB(s): return [f"buffer_load_dwordx4 {BF(s,kk,qt)}, v{LXB2 if kk else LXB}, {srdn(sXF_SRD)}, s{sX} offen offset:{1024*qt} sc1 ; @B{s}" for kk in range(2) for qt in range(4)]
advX = [f"s_add_u32 s{sX}, s{sX}, 8192"]
advW = [f"s_add_u32 s{sWq}, s{sWq}, 786432", f"s_add_u32 s{sW1}, s{sW1}, 196608"]
def dmaW(u):
    if u % 2 == 0: return [f"buffer_load_dwordx4 v{DA+t}, {srdn(sWQ_SRD)}, s{sWq} offen offset:{1024*t} lds ; @W{u}" for t in range(4)]
    return [f"buffer_load_dwordx4 v{DB+t}, {srdn(sWQ_SRD)}, s{sWq} offen offset:{1024*t} lds ; @W{u}" for t in range(2)] + \
           [f"buffer_load_dwordx4 v{DH+t}, {srdn(sW1_SRD)}, s{sW1} offen offset:{1024*(t+2)} lds ; @W{u}" for t in range(2)]
TCH, TCD = 210, 212
sTq, sT1 = 64, 65
def touch(): return [f"buffer_load_dword v{TCD}, v{TCH}, {srdn(sWQ_SRD)}, s{sTq} offen ; @T", f"buffer_load_dword v{TCD}, v{TCH+1}, {srdn(sW1_SRD)}, s{sT1} offen offset:3072 ; @T"]
def TPS(): return [int(x[3:]) for x in EXP[0].split() if x.startswith("tps")] or ([] if X("notps") else [3])
def advT_():
    n = 1 if TPS() else 3
    return [f"s_add_u32 s{sTq}, s{sTq}, {n*786432}", f"s_add_u32 s{sT1}, s{sT1}, {n*196608}"]
def touch_addr(nst):
    return E()("v_mul_u32_u24 v1, 171, v0", "v_lshrrev_b32 v1, 9, v1", "v_mul_u32_u24 v2, 3, v1", "v_sub_u32 v2, v0, v2",
               "v_lshrrev_b32 v3, 1, v1", "v_and_b32 v1, 1, v1", "v_lshl_add_u32 v1, v3, 6, v1", f"v_add_u32 v1, s66, v1",
               "v_mul_lo_u32 v1, v1, s67", "v_lshl_add_u32 v1, v2, 7, v1", f"v_cmp_gt_u32 vcc, {6*nst}, v0", "v_bfrev_b32 v8, 1",
               "v_lshrrev_b32 v3, 2, v0", "v_bfe_u32 v2, v0, 1, 1", f"v_cndmask_b32 v{TCH}, v8, v1, vcc",
               "v_lshl_add_u32 v3, v3, 6, v2", "v_add_u32 v3, s66, v3", f"v_cmp_gt_u32 vcc, {4*nst}, v0", "v_mul_u32_u24 v3, 3072, v3",
               "v_and_b32 v2, 1, v0", "v_mul_u32_u24 v2, 92, v2", "v_add_u32 v3, v3, v2", f"v_cndmask_b32 v{TCH+1}, v8, v3, vcc")
def m0W(u): return f"s_mov_b32 m0, s{sMW + u % 6}"
def qorder(s): return list(range(8)) + ([12, 13, 14, 8, 9, 10, 11] if s == 9 and X("hfirst") else list(range(8, 15)))
def qrd(s, pos, kk, uu):
    T = qorder(s)[pos]
    dst = v(AF + 8*(pos % 3) + 4*kk + 2*uu, 2)
    if T < 8: return f"ds_read_b64_tr_b16 {dst}, v{AWA + T} offset:{(s % 3)*16384 + kk*8192 + uu*1024}"
    reg = AWB + T - 8 if T < 12 else AH + T - 12
    return f"ds_read_b64_tr_b16 {dst}, v{reg} offset:{(s % 3)*16384 + kk*8192 + uu*512}"
def qsub(u, last=20, extra=None, vmw=None):
    extra = extra or {}
    s = u >> 1; TL = list(range(8)) if u % 2 == 0 else list(range(8, 15)); nT = len(TL)
    L = []
    lb = ldB(s + 2) if (u % 2 == 0 and s + 2 < last//2) else []
    dw = dmaW(u + 5) if u + 5 < last else []
    for ti, T in enumerate(TL):
        for p in range(4):
            qt = p if T % 2 == 0 else 3 - p
            TT = qorder(s)[T]
            acc = (qacc(TT >> 1, TT & 1, qt) if TT < 12 else hacc(TT-12, qt))(4)
            for kk in range(2):
                g = 2*p + kk; gi = 8*ti + g
                L.append(f"{MF} {acc}, {v(AF + 8*(T % 3) + 4*kk, 4)}, {BF(s, kk, qt)}, {acc}")
                s2, T2 = s + (T+2)//15, (T+2) % 15
                if g < 4:
                    if 2*s2 < last: L.append(qrd(s2, T2, g >> 1, g & 1))
                    if g == 3:
                        left = 15*(last//2) - 1 - (15*s + T)
                        if left >= 1: L.append(f"s_waitcnt lgkmcnt({4 if left >= 2 else 0})")
                if lb and ti < 4 and g in (4, 6): L.append(lb[2*ti + (g-4)//2])
                if lb and ti == 4 and g == 4: L += advX
                if u % 6 == 2 and last > 20 and X("kvq"):
                    if ti == 4 and g == 5: L += [f"s_cmp_eq_u32 s{sCNT}, 1", "s_cselect_b32 s66, 0, s3"]
                    if ti == 4 and g == 6: L.append(f"buffer_load_dword v{TCD}, v{KVT}, {srdn(sK_SRD)}, s66 offen ; @T")
                    if ti == 5 and g == 4: L.append(f"buffer_load_dword v{TCD}, v{KVT}, {srdn(sV_SRD)}, s66 offen ; @T")
                if u % (2 if TPS() else 6) == 0 and last > 20 and not X("notouch"):
                    if ti == 4 and g == 6: L.append(touch()[0])
                    if ti == 5 and g == 4: L.append(touch()[1])
                    if ti == 5 and g == 5: L += advT_()
                if ti == nT-3 and g == 6 and dw: L.append(m0W(u+5))
                if ti == nT-3 and g == 7 and vmw is not None: L += [f"s_waitcnt vmcnt({vmw})", "s_barrier"]
                if dw and ti >= nT-2 and g in (4, 6): L.append(dw[2*(ti-nT+2) + (g-4)//2])
                if dw and u % 2 == 0 and ti == nT-1 and g == 7: L += advW
                L += extra.get(gi, [])
    return L
def qcounts():
    q = ["B1"]*8 + (["W2"]*4 + ["W3"]*4 + ["W4"]*4 if X("lateW") else [])
    out = {}; first = {}
    for u in range(18):
        for l in qsub(u, last=40, vmw="?"):
            if "vmcnt(?)" in l:
                need = ["W%d" % (u+1)] + (["B%d" % ((u+1)//2)] if u % 2 else [])
                idx = [i for i, x in enumerate(q) if x in need]
                if idx:
                    c = len(q) - 1 - max(idx)
                    if u < 6: first[u] = c
                    else: out[u % 6] = min(out.get(u % 6, 63), c)
            if l.startswith("buffer_"): q.append(re.search(r"@(\S+)", l).group(1))
    return out, {u: c for u, c in first.items() if c < out[u]}, q

def fill(L, ops):
    gaps = []
    for l in L:
        if l.startswith(MF) or not gaps: gaps.append([l])
        else: gaps[-1].append(l)
    ops = list(ops)
    for gi, g in enumerate(gaps):
        rest = [x for x in g[1:] if not x.endswith(":")]
        ds = any(x.startswith("ds_") for x in rest); vm = any(x.startswith("buffer_") for x in rest)
        nv = sum(x.startswith("v_") for x in rest); ns = len(rest) - nv - ds - vm
        if vm or "s_barrier" in rest: continue
        free = (1 - nv - ns) if ds else (2 - nv - max(0, ns - 1))
        while ops and ops[0][0] <= gi and free > 0:
            if ops[0][1] == "m":
                if ds or rest or len(g) > 1: break
                g.append(ops.pop(0)[2]); free = 0
            else: g.append(ops.pop(0)[2]); free -= 1
    return [x for g in gaps for x in g] , [x[2] for x in ops]
def hops():
    o = []
    for tt in range(3):
        for p in range(4):
            qt = p if (8 + tt) % 2 == 0 else 3 - p
            h = hacc(tt, qt); d = 2 + 2*((4*tt + p) % 6); g0 = 8*tt + 2*p + 1 + 6
            o += [(g0, "a", f"v_cvt_pk_bf16_f32 v{d}, {h(1,0)}, {h(1,1)}"), (g0, "a", f"v_cvt_pk_bf16_f32 v{d+1}, {h(1,2)}, {h(1,3)}"),
                  (g0, "a", f"v_pk_max_i16 v{d}, v{d}, 0"), (g0, "a", f"v_pk_max_i16 v{d+1}, v{d+1}, 0"),
                  (g0, "m", f"buffer_store_dwordx2 {v(d,2)}, v{LX8}, {srdn(sOF_SRD)}, s{sH[tt]} offen offset:{1024*qt} sc1")][:4 if X("x_nohst") else 5]
    return o
def convert():
    e = E()("s_nop 7")
    early = X("earlyk")
    k = 0
    late = X("lateh")
    if late: e(f"v_mov_b32 v14, v{LX8}")
    for tt in range(3 if not X("hfirst") else 0):
        for qt in range(4):
            h = hacc(tt, qt); d = 144 + 2*k if late else 2 + 2*(k % 6); k += 1
            e(f"v_cvt_pk_bf16_f32 v{d}, {h(1,0)}, {h(1,1)}", f"v_cvt_pk_bf16_f32 v{d+1}, {h(1,2)}, {h(1,3)}",
              f"v_pk_max_i16 v{d}, v{d}, 0", f"v_pk_max_i16 v{d+1}, v{d+1}, 0")
            if not late and not X("x_nohst"): e(f"buffer_store_dwordx2 {v(d,2)}, v{LX8}, {srdn(sOF_SRD)}, s{sH[tt]} offen offset:{1024*qt} sc1")
    if early:
        e("s_waitcnt vmcnt(@K0)", "s_barrier", [rdK(0, 0, ds) for ds in range(6)], [rdK(0, 1, ds, VF) for ds in range(6)])
        m, d = kvgroup("V", 1); e(m, d)
        m, d = kvgroup("K", 3); e(m, d[:2])
    for ds in (3, 4, 5, 0, 1, 2):
        dsts = []
        for qt in range(4):
            f = ds*4 + qt
            Xr, Yr = qacc(ds, 0, qt), qacc(ds, 1, qt)
            if Xr.f == "a":
                tx, ty = R("v", (192 if late else 144) + 8*qt), R("v", (196 if late else 148) + 8*qt)
                for r in range(4): e(f"v_accvgpr_read_b32 {tx(1,r)}, {Xr(1,r)}")
                for r in range(4): e(f"v_accvgpr_read_b32 {ty(1,r)}, {Yr(1,r)}")
                Xr, Yr = tx, ty
            d = QV + 4*(f-16) if f >= 16 else (224 if early else 176) + 4*qt
            dsts.append(d)
            for Z in (Xr, Yr):
                if X("nopk"):
                    for r in range(4): e(f"v_mul_f32 {Z(1,r)}, s{sC}, {Z(1,r)}")
                else:
                    for r in (0, 2): e(f"v_pk_mul_f32 {Z(2,r)}, {Z(2,r)}, s[{sC}:{sC+1}]")
            e(f"v_cvt_pk_bf16_f32 v{d}, {Xr(1,0)}, {Xr(1,1)}", f"v_cvt_pk_bf16_f32 v{d+1}, {Xr(1,2)}, {Xr(1,3)}",
              f"v_cvt_pk_bf16_f32 v{d+2}, {Yr(1,0)}, {Yr(1,1)}", f"v_cvt_pk_bf16_f32 v{d+3}, {Yr(1,2)}, {Yr(1,3)}")
        e("s_mov_b32 exec_lo, 0")
        for d in dsts: e(f"v_swap_b32 v{d}, v{d+2}", f"v_swap_b32 v{d+1}, v{d+3}")
        e("s_mov_b32 exec_lo, -1")
        if ds < 4:
            for qt in range(4):
                for r in range(4): e(f"v_accvgpr_write_b32 a{192 + 4*(ds*4+qt) + r}, v{dsts[qt]+r}")
    return e

def hstores(): return [f"buffer_store_dwordx2 {v(144 + 2*k, 2)}, v14, {srdn(sOF_SRD)}, s{sH[k//4]} offen offset:{1024*(k%4)} sc1 ; @H" for k in range(12)]

def Qf(f): return a(192 + 4*f, 4) if f < 16 else v(QV + 4*(f-16), 4)
def Oacc(dt, qt): return (dt*4 + qt)*4
def dmaK(t): return f"buffer_load_dwordx4 v{DK+t}, {srdn(sK_SRD)}, s{sKo} offen offset:{1024*t} lds"
def dmaV(t): return f"buffer_load_dwordx4 v{DV+t}, {srdn(sV_SRD)}, s{sVo} offen offset:{1024*t} lds"
def kvgroup(kind, j):
    so = sKo if kind == "K" else sVo
    return [f"s_mov_b32 m0, s{(sMK if kind=='K' else sMV) + j}", f"s_mov_b32 s{so}, {12288*j}"], [(dmaK(t) if kind == "K" else dmaV(t)) + f" ; @{kind}{j}" for t in range(3)]
def rdK(slot, kt, ds, dst=KF): return f"ds_read_b128 {v(dst+4*ds,4)}, v{AK+(ds&1)} offset:{slot*12288 + kt*6144 + (ds>>1)*128}"
def Pb(t): return P + 16*(t % 4)
def rdVp(m2, part, dst=VF):
    return [f"ds_read_b64_tr_b16 {v(dst + 8*dl + 4*tl + 2*u, 2)}, v{AV + ((3*part+dl) & 3)} offset:{((m2+tl) % 4)*12288 + u*6144 + ((3*part+dl) >> 2)*128}"
            for dl in range(3) for tl in range(2) for u in range(2)]
def qk(dst, src=KF, czero=False):
    o = []
    for qt in range(4):
        for k in range(6):
            ds = 5 - k if (qt & 1 and X("qsnake")) else k
            d = v(dst+4*qt, 4)
            c = ("0" if czero else v(NM+4*qt, 4)) if k == 0 else d
            o.append(f"{MF} {d}, {v(src+4*ds,4)}, {Qf(ds*4+qt)}, {c}")
    return o
def pv(m2, part, czero=False, src=VF):
    o = []
    for dl in range(3):
        for p in range(4):
            qt = p if (3*part + dl) % 2 == 0 else 3 - p
            acc = a(Oacc(3*part+dl, qt), 4)
            for tl in range(2):
                o.append(f"{MF} {acc}, {v(src + 8*dl + 4*tl, 4)}, {v(Pb(m2+tl) + 4*qt, 4)}, {'0' if czero and tl == 0 else acc}")
    return o
def sm(src, qts, Pb, kt):
    Ex, Sx = [], []
    k = 0
    for qt in qts:
        for pr in range(2):
            t0 = ET + 2*k; t1 = t0 + 1; k += 1
            Ex += [f"v_exp_f32 v{t0}, v{src+4*qt+2*pr}", f"v_exp_f32 v{t1}, v{src+4*qt+2*pr+1}"]
            n = len(Ex)
            if kt == 0 and pr == 0: Sx.append((n, f"v_add_f32 v{T_+qt}, v{t0}, v{t1}"))
            else: Sx += [(n-1, f"v_add_f32 v{T_+qt}, v{T_+qt}, v{t0}"), (n, f"v_add_f32 v{T_+qt}, v{T_+qt}, v{t1}")]
            Sx.append((n, f"v_cvt_pk_bf16_f32 v{Pb+4*qt+2*kt+pr}, v{t0}, v{t1}"))
    return Ex, Sx
def quarter(mf, pat, Ex, Sx, D, B, salu):
    assert len(pat) == len(mf) == 24, (pat, len(pat))
    out = []; ei = si = di = bi = 0
    for gi, m in enumerate(mf):
        out.append(m); ty = pat[gi]
        sc = salu.get(gi, [])
        def take(n):
            nonlocal si
            r = []
            while n > 0 and si < len(Sx) and Sx[si][0] <= ei: r.append(Sx[si][1]); si += 1; n -= 1
            return r
        if ty == "e": out += sc + [Ex[ei]]; ei += 1
        elif ty == "d": out += [D[di]] + take(1) + sc; di += 1
        elif ty == "a": out += sc + take(2)
        elif ty == "1": out += sc + take(1)
        elif ty == "b": out += sc + [B[bi]]; bi += 1
        elif ty == "-": out += sc
        else: raise ValueError(ty)
    assert ei == len(Ex) and si == len(Sx) and di == len(D) and bi == len(B), (pat, ei, len(Ex), si, len(Sx), di, len(D), bi, len(B))
    return out
P1 = "ee" + "de"*6 + "d"*6 + "a1b-"
P2 = "de"*6 + "ee" + "baabaa" + "----"
P3 = "ed"*8 + "dddd" + "b---"
P4 = "ebeb" + "de"*6 + "aaa" + "-----"
CHK = [f"v_max3_f32 v{CK}, v{T_}, v{T_+1}, v{T_+2}", f"v_max_f32 v{CK}, v{CK}, v{T_+3}", f"v_cmp_lt_f32 vcc, s{sTHR}, v{CK}"]
LADD = [f"v_add_f32 v{L_+q}, v{L_+q}, v{T_+q}" for q in range(4)]
sites = []
def callsite(par):
    k = len(sites); sites.append(par)
    return [f"s_cbranch_vccnz F_TR{k}", f"F_BK{k}:"]
def step(i, vmw=12, tail=(), rl=None):
    par, slot = i & 1, i % 4
    S0n = S0 + 16*(1-par); Pc = Pb(i); Pn = Pb(i+1)
    m2 = i-1 if par else i-2
    p0 = 0 if par else 2
    nopv = i == 0; cz = i in (1, 2)
    mK = lambda j: f"s_mov_b32 m0, s{sMK + j % 4}"
    mV = lambda j: f"s_mov_b32 m0, s{sMV + j % 4}"
    aK = f"s_add_u32 s{sKo}, s{sKo}, 12288"; aV = f"s_add_u32 s{sVo}, s{sVo}, 12288"
    if par:
        B1 = [dmaV(2) + f" ; @V{i+1}"]; B2 = [dmaV(0) + f" ; @V{i+2}", dmaV(1) + f" ; @V{i+2}"]; B3 = [dmaV(2) + f" ; @V{i+2}"]
        B4 = [dmaK(0) + f" ; @K{i+4}", dmaK(1) + f" ; @K{i+4}"]; m2_, a2, a3, m4 = mV(i+2), aV, aV, mK(i+4)
    else:
        B1 = [dmaK(2) + f" ; @K{i+3}"]; B2 = [dmaK(0) + f" ; @K{i+4}", dmaK(1) + f" ; @K{i+4}"]; B3 = [dmaK(2) + f" ; @K{i+4}"]
        B4 = [dmaV(0) + f" ; @V{i+2}", dmaV(1) + f" ; @V{i+2}"]; m2_, a2, a3, m4 = mK(i+4), aK, aK, mV(i+2)
    L = []
    def emit(mf, pat, Ex, Sx, D, B, sal):
        if mf is None:
            sc = [x for g in sorted(sal) for x in sal[g] if not x.startswith("s_waitcnt")]
            hs = hstores()[6*emit.n:6*emit.n+6] if X("lateh") else []; emit.n += 1
            mixed = []
            for k, x in enumerate(Ex):
                mixed.append(x)
                if k < len(hs): mixed.append(hs[k])
            return D + sc + ["s_nop 3"] + B + mixed + [x for _, x in Sx] + ["s_waitcnt lgkmcnt(0)"]
        return quarter(mf, pat, Ex, Sx, D, B, sal)
    emit.n = 0
    Ex, Sx = sm(S1, [2, 3], Pc, 1)
    D1 = rdVp(m2, p0) if not nopv else []
    L += quarter(qk(S0n), P1 if D1 else P1.replace("d", "1"), Ex, Sx + [(8, x) for x in CHK], D1, B1, {23: ["s_waitcnt lgkmcnt(6)"]} if D1 else {})
    L += callsite(i % 4)
    Ex, Sx = sm(S0n, [0, 1], Pn, 0)
    pat = P2; D = [rdK((slot+1) % 4, 1, ds) for ds in range(6)]; B = B2
    sal = {3: [a2], 7: ["s_waitcnt lgkmcnt(4)"], 13: [m2_], 23: ["s_waitcnt lgkmcnt(0)"]}
    if rl == "dma":
        pat = P2[:20] + "b---"; B = B + [rl_dma() + " ; @R"]
        sal.update({18: [f"s_cmp_lt_u32 s{sCNT}, 9"], 19: [f"s_mov_b32 m0, s{sRM}"], 21: [f"s_cselect_b32 s{sTMP}, 128, s3", f"s_cselect_b32 s{sRI}, 1024, 0"],
                    22: [m2_, f"s_add_u32 s{sRS}, s{sRS}, s{sTMP}"], 23: ["s_waitcnt lgkmcnt(0)", f"s_add_u32 s{sRM}, s{sRM}, s{sRI}"]})
    if rl in ("tk", "tv"):
        pat = P2[:20] + "b---"
        B = B + [f"buffer_load_dword v1, v{KVT}, {srdn(sK_SRD if rl == 'tk' else sV_SRD)}, s{sKT} offen ; @T"]
        if rl == "tk": sal[22] = [f"s_add_u32 s{sKT}, s{sKT}, 49152"]
    if rl == "out":
        pat = P2[:20] + "dad-"; D = D + [rl_rd(0), rl_rd(1)]; sal[23] = ["s_waitcnt lgkmcnt(2)"]
        xs = [(8, f"v_xor_b32 v{RTD+2}, s{sRX}, v{RTV}"), (8, f"v_add_u32 v{RTD+2}, s{sRU}, v{RTD+2}")]
    if rl == "out":
        q = quarter(pv(m2, p0, cz), pat.replace("dad-", "d-d-"), Ex, [(0, x) for x in LADD] + Sx, D, B, sal)
        k = q.index(rl_rd(0)); L += q[:k+2] + [x for _, x in xs] + q[k+2:]
    else: L += emit(None if nopv else pv(m2, p0, cz), pat, Ex, [(0, x) for x in LADD] + Sx, D, B, sal)
    Ex, Sx = sm(S0n, [2, 3], Pn, 0)
    D3 = rdVp(m2, p0+1) if not nopv else []
    sal = {21: [a3], 23: [f"s_waitcnt vmcnt({vmw}) lgkmcnt(0)", "s_barrier"]}
    L += quarter(qk(S1), P3 if D3 else P3.replace("d", "1"), Ex, Sx, D3, B3, sal)
    Ex, Sx = sm(S1, [0, 1], Pn, 1)
    sal = {0: [m4], 22: ["s_waitcnt lgkmcnt(0)"]}
    pat = P4; B = B4
    tail = list(tail)
    if tail:
        sal[19] = tail[:1]; sal[20] = tail[1:2]; sal[23] = tail[2:]
    if rl == "out":
        pat = P4[:19] + "b1---"; B = B + [rl_st() + " ; @S"]
        sal.update({5: [f"s_cmp_lt_u32 s{sCNT}, 10"], 7: [f"s_cselect_b32 s{sRJ}, 1024, 0"], 9: [f"s_sub_u32 s{sTMP}, s{sCNT}, 1"],
                    11: [f"s_cmp_lt_u32 s{sTMP}, 10"], 13: [f"s_cselect_b32 s{sTMP}, s{sRO}, s3"], 15: [f"s_cselect_b32 s{sRI}, 4096, 0"],
                    16: [f"s_add_u32 s{sRO}, s{sRO}, s{sRI}"], 17: [f"s_lshr_b32 s{sRI}, s{sRI}, 10"], 18: [f"s_add_u32 s{sRR}, s{sRR}, s{sRI}"],
                    20: [f"s_cmp_gt_u32 s{sRR}, 9"], 21: [f"s_cselect_b32 s{sRI}, {WF160 - 10240}, 0", f"s_cselect_b32 s{sTMP}, 10, 0"],
                    22: ["s_waitcnt lgkmcnt(0)", f"s_add_u32 s{sRO}, s{sRO}, s{sRI}"], 23: [f"s_sub_u32 s{sRR}, s{sRR}, s{sTMP}"]})
        Sx = Sx + [(8, f"v_add_u32 v{RTV}, s{sRJ}, v{RTV}")]
    L += emit(None if nopv else pv(m2, p0+1, cz), pat, Ex, Sx, [rdK((slot+2) % 4, 0, ds) for ds in range(6)], B, sal)
    return L
sRJ, sKT, KVT = 59, 58, 252
def kv_touch_addr(D):
    return E()(f"s_lshl_b32 s66, s{sQB}, 2", f"s_add_u32 s66, s66, s{sWAVE}", "s_mul_i32 s66, s66, 1536", "v_lshlrev_b32 v3, 7, v0", "v_add_u32 v3, s66, v3",
               "v_cmp_gt_u32 vcc, 12, v0", "v_bfrev_b32 v2, 1", "s_nop 0", f"v_cndmask_b32 v{KVT}, v2, v3, vcc")
def xlane(op, dst, tmp):
    L = []
    for sw in ("v_permlane16_swap_b32", "v_permlane32_swap_b32"):
        L += [f"v_mov_b32 v{tmp+qt}, v{dst+qt}" for qt in range(4)] + ["s_nop 1"]
        L += [f"{sw} v{dst+qt}, v{tmp+qt}" for qt in range(4)]
        L += [f"{op} v{dst+qt}, v{dst+qt}, v{tmp+qt}" for qt in range(4)]
    return L
def rowmax(dst, srcs, tmp):
    L = []
    for qt in range(4):
        r = srcs(qt); d = dst + qt
        L += [f"v_max3_f32 v{d}, v{r[0]}, v{r[1]}, v{r[2]}", f"v_max3_f32 v{d}, v{d}, v{r[3]}, v{r[4]}",
              f"v_max3_f32 v{d}, v{d}, v{r[5]}, v{r[6]}", f"v_max_f32 v{d}, v{d}, v{r[7]}"]
    return L + xlane("v_max_f32", dst, tmp)
def init():
    e = E()
    if not X("earlyk"):
        e("s_waitcnt vmcnt(@K0)", "s_barrier", fstamp(3, "conv"))
        for ds in range(6): e(rdK(0, 0, ds))
        for ds in range(6): e(rdK(0, 1, ds, VF))
        m, d = kvgroup("V", 1); e(m, d)
        m, d = kvgroup("K", 3); e(m, d[:2])
    e(f"s_mov_b32 s{sKT}, {4*12288}")
    for _ in range(2):
        e(f"buffer_load_dword v1, v{KVT}, {srdn(sK_SRD)}, s{sKT} offen ; @T", f"buffer_load_dword v1, v{KVT}, {srdn(sV_SRD)}, s{sKT} offen ; @T", f"s_add_u32 s{sKT}, s{sKT}, 49152")
    e(f"s_mov_b32 s{sVo}, {2*12288}")
    for q in range(4): e(f"v_mov_b32 v{L_+q}, 0")
    e(fstamp(4, "conv"), "s_waitcnt lgkmcnt(6)", qk(S0, KF, True), "s_waitcnt vmcnt(@K1) lgkmcnt(0)", "s_barrier", fstamp(5, "conv"))
    m = qk(S1, VF, True)
    rd = [rdK(1, 0, ds) for ds in range(6)]
    for i, x in enumerate(m):
        e(x)
        if i < 6: e(rd[i])
    e("s_nop 7", fstamp(6, "conv"))
    D, TM = 2, 6
    e(rowmax(D, lambda qt: [S0+4*qt+r for r in range(4)] + [S1+4*qt+r for r in range(4)], TM))
    for qt in range(4): e(f"v_ceil_f32 v{D+qt}, v{D+qt}")
    for qt in range(4):
        for r in range(4):
            e(f"v_sub_f32 v{NM+4*qt+r}, 0, v{D+qt}", f"v_sub_f32 v{S0+4*qt+r}, v{S0+4*qt+r}, v{D+qt}", f"v_sub_f32 v{S1+4*qt+r}, v{S1+4*qt+r}, v{D+qt}")
    for src, qts, kt in ((S0, [0, 1], 0), (S0, [2, 3], 0), (S1, [0, 1], 1)):
        Ex, Sx = sm(src, qts, Pb(0), kt)
        e(Ex, [x for _, x in Sx])
    e("s_waitcnt lgkmcnt(0)")
    return e
def slow(k):
    par = k & 1
    S0c = S0 + 16*par; S0n = S0 + 16*(1-par)
    e = E()(f"F_SLOW{k}:", "s_nop 7", "s_nop 7")
    D, TM = 2, 6
    e(rowmax(D, lambda qt: [S0c+4*qt+r for r in range(4)] + [S1+4*qt+r for r in range(4)], TM))
    for qt in range(4): e(f"v_max_f32 v{D+qt}, 0, v{D+qt}", f"v_ceil_f32 v{D+qt}, v{D+qt}", f"v_sub_f32 v{TM+qt}, 0, v{D+qt}", f"v_cvt_i32_f32 v{TM+qt}, v{TM+qt}")
    for qt in range(4):
        e(f"v_ldexp_f32 v{L_+qt}, v{L_+qt}, v{TM+qt}")
        for base in (NM, S0c, S1, S0n):
            for r in range(4): e(f"v_sub_f32 v{base+4*qt+r}, v{base+4*qt+r}, v{D+qt}")
    for t in ([k-1] if par else [k-1, k-2]):
        for qt in range(4):
            for r in range(4):
                p = Pb(t) + 4*qt + r
                e(f"v_lshlrev_b32 v10, 16, v{p}", f"v_and_b32 v11, 0xffff0000, v{p}", f"v_ldexp_f32 v10, v10, v{TM+qt}", f"v_ldexp_f32 v11, v11, v{TM+qt}",
                  f"v_cvt_pk_bf16_f32 v{p}, v10, v11")
    for dt in range(12):
        for qt in range(4):
            b = Oacc(dt, qt)
            for r in range(2):
                e(f"v_accvgpr_read_b32 v10, a{b+2*r}", f"v_accvgpr_read_b32 v11, a{b+2*r+1}", f"v_ldexp_f32 v10, v10, v{TM+qt}", f"v_ldexp_f32 v11, v11, v{TM+qt}",
                  f"v_accvgpr_write_b32 a{b+2*r}, v10", f"v_accvgpr_write_b32 a{b+2*r+1}, v11")
    for src, qts, kt in ((S0c, [0, 1], 0), (S0c, [2, 3], 0), (S1, [0, 1], 1), (S1, [2, 3], 1)):
        Ex, Sx = sm(src, qts, Pb(k), kt)
        e(Ex, [x for _, x in Sx])
    e("s_nop 1", f"s_setpc_b64 s[{sRET}:{sRET+1}]")
    return e

def relayout_src():
    return E()("s_cmp_lt_u32 s2, 192", f"s_cselect_b32 s{sRSRC}, s{pWO}, s{pW2}", f"s_cselect_b32 s{sRSRC+1}, s{pWO+1}, s{pW2+1}", "s_cselect_b32 s66, 0, 192",
               "s_sub_u32 s66, s2, s66", "s_mul_i32 s66, s66, 40960", f"s_add_u32 s{sRSRC}, s{sRSRC}, s66", f"s_addc_u32 s{sRSRC+1}, s{sRSRC+1}, 0",
               "s_cmp_lt_u32 s2, 240", f"s_cselect_b32 s{sRSRC+2}, 40960, 0", f"s_mov_b32 s{sRSRC+3}, 0x20000")
def relayout_dst():
    return E()("s_mul_i32 s66, s2, 10240", f"s_add_u32 s67, s66, {hx(WS_WF)}", f"s_sub_u32 s{sRDST+2}, {4*WF160}, s66",
               "s_cmp_lt_u32 s2, 240", f"s_cselect_b32 s{sRDST+2}, s{sRDST+2}, 0", f"s_cselect_b32 s67, s67, {hx(WS_WF)}",
               f"s_add_u32 s{sRDST}, s{pWS}, s67", f"s_addc_u32 s{sRDST+1}, s{pWS+1}, 0", f"s_mov_b32 s{sRDST+3}, 0x20000",
               f"s_mul_i32 s{sRM}, s{sWAVE}, 10240", f"s_add_u32 s{sRM}, s{sRM}, {ST}", f"s_mov_b32 s{sRS}, 0",
               f"s_lshl_b32 s{sRO}, s{sWAVE}, 10", f"s_mov_b32 s{sRR}, s{sWAVE}",
               "s_cmp_lt_u32 s2, 192", f"s_cselect_b32 s{sRX}, 0, 64", f"s_mov_b32 s{sRU}, 512", f"s_cselect_b32 s{sRU}, 20480, s{sRU}")
RTV, RTD = 255, 12
sRO, sRR, sRI = 26, 27, 62
def relayout_vaddr():
    return E()(f"s_mov_b32 s67, {ST - 1024}", _relayout_vaddr())
def _relayout_vaddr():
    return E()("v_lshrrev_b32 v1, 2, v0", "v_and_b32 v1, 7, v1", "v_lshlrev_b32 v2, 7, v1", "v_lshrrev_b32 v3, 5, v0", "v_mul_u32_u24 v3, 10240, v3", "v_add_u32 v2, v2, v3",
               "v_and_b32 v3, 3, v0", "v_lshl_add_u32 v2, v3, 3, v2", f"v_add_u32 v2, {ST - 1024}, v2", "v_lshrrev_b32 v1, 1, v1", "v_lshlrev_b32 v1, 5, v1",
               f"s_lshl_b32 s66, s{sWAVE}, 5", "v_xor_b32 v1, s66, v1", "v_add_u32 v4, v1, v2",
               "v_lshrrev_b32 v1, 4, v0", "v_mul_u32_u24 v1, 10240, v1", "v_bfe_u32 v2, v0, 2, 2", "v_lshl_add_u32 v1, v2, 7, v1", "v_lshl_add_u32 v1, v3, 3, v1",
               "v_lshrrev_b32 v2, 1, v2", "v_lshlrev_b32 v2, 5, v2", "v_xor_b32 v2, s66, v2", f"v_add3_u32 v1, v1, v2, s67",
               "s_cmp_lt_u32 s2, 192", "s_cselect_b64 vcc, -1, 0", f"v_cndmask_b32 v{RTV}, v1, v4, vcc")
def rl_dma(): return f"buffer_load_dwordx4 v{RLV}, {srdn(sRSRC)}, s{sRS} offen lds"
sRX, sRU = 48, 49
def rl_rd(u): return f"ds_read_b64_tr_b16 {v(RTD+2*u,2)}, v{RTV if u == 0 else RTD+2}"
def rl_st(): return f"buffer_store_dwordx4 {v(RTD,4)}, v{LX}, {srdn(sRDST)}, s{sTMP} offen sc1"

def front():
    e = E()
    e("s_load_dwordx8 s[4:11], s[0:1], 0", f"s_load_dwordx2 s[{pWO}:{pWO+1}], s[0:1], 32", f"s_load_dwordx4 s[{pW1}:{pW1+3}], s[0:1], 48",
      f"s_load_dwordx4 s[{pOUT}:{pOUT+3}], s[0:1], 64", f"s_load_dwordx2 s[{pWS}:{pWS+1}], s[0:1], 80")
    if not X("nopf"):
        e("s_getpc_b64 s[66:67]", "F_PC:", "v_lshrrev_b32 v1, 6, v0", "s_lshr_b32 s62, s2, 3", "s_mul_i32 s62, s62, 1536", "s_add_u32 s62, s62, 8192 - 512",
          "v_and_b32 v2, 63, v0", "v_lshlrev_b32 v4, 7, v2", "v_and_b32 v2, 3, v0", "v_lshl_add_u32 v2, v1, 2, v2", "v_lshlrev_b32 v2, 7, v2", "v_add_u32 v2, s62, v2",
          "v_cmp_eq_u32 vcc, 0, v1", "v_mov_b32 v5, s67", "s_nop 0", "v_cndmask_b32 v4, v2, v4, vcc", f"v_min_u32 v4, {'F_END' if X('oldpf') else 'F_PFE'}-F_PC, v4",
          "v_add_co_u32 v4, vcc, s66, v4", "s_nop 1", "v_addc_co_u32 v5, vcc, 0, v5, vcc", f"global_load_dword v{TCD+1}, v[4:5], off")
    e(wave_id(f"s{sWAVE}"), stamp(0), "s_mov_b32 s3, 0x10000000")
    if X("early0"): e("s_mov_b32 s88, s100")
    e("s_and_b32 s66, s2, 7", "s_lshl_b32 s66, s66, 2", "s_lshr_b32 s67, s2, 3", "s_and_b32 s67, s67, 3", f"s_add_u32 s{sHEAD}, s66, s67",
      f"s_lshr_b32 s{sQB}, s2, 5", f"s_lshl_b32 s66, s{sQB}, 2", f"s_add_u32 s{sM64}, s66, s{sWAVE}")
    e(f"s_lshl_b32 s66, s{sQB}, 5", f"s_add_u32 s66, s66, s{sHEAD}", "s_lshl_b32 s66, s66, 2", f"s_add_u32 s66, s66, s{sWAVE}", "s_lshl_b32 s62, s66, 1",
      "s_mul_i32 s66, s62, 1280",
      "v_lshrrev_b32 v1, 5, v0", "v_and_b32 v2, 31, v0", "v_mul_u32_u24 v3, 1280, v1", "v_lshl_add_u32 v3, v2, 3, v3",
      f"v_lshlrev_b32 v{LX}, 4, v0", f"s_or_b32 s{sKo}, s2, s{sWAVE}")
    e("s_waitcnt lgkmcnt(0)", fstamp(1))
    e(srd(12, pX, pX+1, 2560, "s66"))
    XR, XX = 64, 80
    for m in range(5): e(f"buffer_load_dwordx2 {v(XR+2*m,2)}, v3, s[12:15], 0 offen offset:{256*m}")
    e(srd(sFL, pWS, pWS+1, 1024, WS_FL), f"s_cmp_eq_u32 s{sKo}, 0", f"s_cselect_b32 s{sFL+2}, 1024, 0",
      f"buffer_load_dwordx4 v[76:79], v{LX}, {srdn(sFL)}, 0 offen sc1", f"s_mov_b32 s{sFL+2}, 1024")
    e("s_lshr_b32 s66, s62, 6", f"s_mul_i32 s66, s66, {XF_BLK}", "s_and_b32 s67, s62, 63", "s_lshl_b32 s67, s67, 6", "s_add_u32 s66, s66, s67",
      f"s_sub_u32 s67, {XF_BLK}, s67")
    e(srd(16, pWS, pWS+1, "s67", "s66"))
    e("v_lshrrev_b32 v13, 3, v2", "v_lshlrev_b32 v13, 12, v13", "v_lshl_add_u32 v13, v1, 6, v13", "v_and_b32 v3, 7, v0", "v_lshl_add_u32 v13, v3, 3, v13")
    dry = X("dryln")
    W_ = E()
    e_real = e
    e = W_
    e(f"s_mul_i32 s66, s{sHEAD}, 384", "s_sub_u32 s67, 7864320, s66"); e(srd(sWQ_SRD, pWQ, pWQ+1, "s67", "s66"))
    e(f"s_mul_i32 s66, s{sHEAD}, 96", "s_sub_u32 s67, 1969152, s66", f"s_sub_u32 s{pW1}, s{pW1}, 3072", f"s_subb_u32 s{pW1+1}, s{pW1+1}, 0")
    e(srd(sW1_SRD, pW1, pW1+1, "s67", "s66"))
    e(f"s_lshl_b32 s66, s{sWAVE}, 4", "s_mov_b32 s67, 12288")
    e("v_lshrrev_b32 v1, 4, v0", "v_and_b32 v2, 15, v0", "v_lshlrev_b32 v3, 1, v1", "v_xor_b32 v2, v2, v3", "v_add_u32 v3, s66, v1", "v_mul_lo_u32 v3, v3, s67",
      f"v_lshl_add_u32 v{DA}, v2, 4, v3", f"v_add_u32 v{DA+1}, {4*12288 - 1024}, v{DA}", "v_xor_b32 v2, 8, v2", "v_lshl_add_u32 v3, v2, 4, v3",
      f"v_add_u32 v{DA+2}, {8*12288 - 2048}, v3", f"v_add_u32 v{DA+3}, {12*12288 - 3072}, v3")
    e("v_lshrrev_b32 v1, 3, v0", "v_and_b32 v2, 7, v0", "v_and_b32 v3, 2, v1", "v_xor_b32 v2, v2, v3", "v_add_u32 v3, s66, v1", "v_mul_lo_u32 v4, v3, s67",
      "v_add_u32 v4, 256, v4", f"v_lshl_add_u32 v{DB}, v2, 4, v4", "v_xor_b32 v5, 4, v2", "v_lshl_add_u32 v4, v5, 4, v4", f"v_add_u32 v{DB+1}, {8*12288 - 1024}, v4",
      "v_mul_u32_u24 v3, 3072, v3", "v_bfrev_b32 v8, 1", "v_cmp_gt_u32 vcc, 6, v2", "v_lshl_add_u32 v6, v2, 4, v3", "v_add_u32 v6, 1024, v6",
      f"v_cndmask_b32 v{DH}, v8, v6, vcc", "v_cmp_gt_u32 vcc, 6, v5", "v_lshl_add_u32 v6, v5, 4, v3", f"v_add_u32 v6, {8*3072}, v6",
      f"v_cndmask_b32 v{DH+1}, v8, v6, vcc")
    e(f"s_lshl_b32 s66, s{sWAVE}, 12")
    for u in range(6): e(f"s_add_u32 s{sMW+u}, s66, {(WB if u % 2 else WA) + 16384*(u >> 1)}")
    e(f"s_mov_b32 s{sWq}, 0", f"s_mov_b32 s{sW1}, 0")
    NE = 5 if X("allW") else 2
    def wgrp(lo, hi):
        o = E()
        for u in range(lo, hi):
            o(m0W(u), "s_nop 0", dmaW(u))
            if u % 2: o(advW)
        return o
    e(wgrp(0, NE))
    NT = 0 if X("notouch") else 2
    if NT:
        e(f"s_lshl_b32 s66, s{sQB}, 3", f"s_lshl_b32 s67, s{sWAVE}, 1", "s_add_u32 s66, s66, s67", "s_mov_b32 s67, 12288", touch_addr(4),
          f"s_mov_b32 s{sTq}, 786432", f"s_mov_b32 s{sT1}, 196608")
        tch = touch()
        if X("touch2") or X("touch3") or X("touch4"): NT = 0
        else: e(tch)
    e = e_real
    if not dry: e(W_)
    else:
        e("s_mov_b32 s63, s18", "s_mov_b32 s18, 0", "s_mov_b32 s39_, 0".replace("s39_", "s60"), "s_branch F_LN", "F_LN1:", "s_mov_b32 s18, s63", "s_mov_b32 s60, 1")
    e(fstamp(2), f"s_waitcnt vmcnt({0 if dry else 4*NE + NT})", stamp(1), fstamp(3))
    l1 = newlab("T")
    e(srd(12, pDBG, pDBG+1, 4), "v_mov_b32 v27, 0", f"s_cmp_lg_u32 s{sKo}, 0", f"s_cbranch_scc1 {l1}")
    e("v_and_b32 v1, 15, v0", "v_lshlrev_b32 v1, 2, v1", "ds_write_b32 v1, v27")
    for r in range(4):
        e(f"v_bfe_u32 v{4+r}, v{76+r}, 3, 9", f"v_lshrrev_b32 v{8+r}, 5, v{4+r}", f"v_lshlrev_b32 v{8+r}, 2, v{8+r}",
          f"v_and_b32 v{4+r}, 31, v{4+r}", f"v_lshlrev_b32_e64 v{4+r}, v{4+r}, 1")
    for r in range(4): e(f"ds_or_b32 v{8+r}, v{4+r}")
    e("ds_read_b32 v2, v1", "s_waitcnt lgkmcnt(0)", "v_not_b32 v2, v2", "v_ffbl_b32 v2, v2", "v_cmp_ne_u32 vcc, -1, v2",
      "s_nop 4", "s_ff1_i32_b64 s66, vcc", "s_nop 1", "v_readlane_b32 s67, v2, s66", "s_nop 4", "s_lshl_b32 s66, s66, 5", "s_add_u32 s66, s66, s67",
      "s_lshl_b32 s66, s66, 3", "s_or_b32 s66, s66, 0x40000000", "v_mov_b32 v26, s66",
      "s_mov_b64 exec, 1", "buffer_store_dword v26, v27, s[12:15], 0 offen sc1", "s_mov_b64 exec, -1", f"{l1}:")
    XO = 100 if dry else XR
    if dry: e("F_LN:")
    for i in range(10): e(f"v_lshlrev_b32 v{XX+2*i}, 16, v{XR+i}", f"v_and_b32 v{XX+2*i+1}, 0xffff0000, v{XR+i}")
    def reduce32(r, t):
        o = []
        for sh in (8, 4, 2, 1): o += ["s_nop 1", f"v_add_f32_dpp {r}, {r}, {r} row_ror:{sh} row_mask:0xf bank_mask:0xf"]
        return o + [f"v_mov_b32 {t}, {r}", "s_nop 1", f"v_permlane16_swap_b32 {r}, {t}", f"v_add_f32 {r}, {r}, {t}"]
    e(f"v_add_f32 v10, v{XX}, v{XX+1}", f"v_add_f32 v11, v{XX+2}, v{XX+3}")
    for i in range(4, 20, 2): e(f"v_add_f32 v10, v10, v{XX+i}", f"v_add_f32 v11, v11, v{XX+i+1}")
    e("v_add_f32 v10, v10, v11", reduce32("v10", "v11"))
    e(f"s_mov_b32 s66, {hx(f2u(1.0/640))}", "v_mul_f32 v10, s66, v10", "v_mov_b32 v11, 0", "v_mov_b32 v12, 0")
    for i in range(0, 20, 2):
        e(f"v_sub_f32 v1, v{XX+i}, v10", f"v_sub_f32 v2, v{XX+i+1}, v10", "v_fmac_f32 v11, v1, v1", "v_fmac_f32 v12, v2, v2")
    e("v_add_f32 v11, v11, v12", reduce32("v11", "v12"), "v_mul_f32 v11, s66, v11")
    e("v_cvt_pk_bf16_f32 v10, v10, v11", "v_and_b32 v11, 0xffff0000, v10", "v_lshlrev_b32 v10, 16, v10")
    e(f"v_add_f32 v11, {hx(f2u(1e-5))}, v11", "v_cvt_pk_bf16_f32 v11, v11, v11", "v_lshlrev_b32 v11, 16, v11",
      "v_sqrt_f32 v11, v11", "s_nop 0", "v_cvt_pk_bf16_f32 v11, v11, v11", "v_lshlrev_b32 v11, 16, v11", "v_rcp_f32 v11, v11", "s_nop 0")
    for i in range(10):
        a0, a1 = XX+2*i, XX+2*i+1
        e(f"v_sub_f32 v{a0}, v{a0}, v10", f"v_sub_f32 v{a1}, v{a1}, v10", f"v_cvt_pk_bf16_f32 v1, v{a0}, v{a1}",
          f"v_lshlrev_b32 v{a0}, 16, v1", f"v_and_b32 v{a1}, 0xffff0000, v1",
          f"v_mul_f32 v{a0}, v{a0}, v11", f"v_mul_f32 v{a1}, v{a1}, v11", f"v_cvt_pk_bf16_f32 v{XO+i}, v{a0}, v{a1}")
        if i % 2: e(f"s_mov_b32 s66, {16384*(i//2)}", f"buffer_store_dwordx2 {v(XO+i-1,2)}, v13, s[16:19], s66 offen sc1")
    if dry: e("s_cmp_eq_u32 s60, 0", "s_cbranch_scc1 F_LN1", W_)
    e(stamp(2), fstamp(4))
    e("v_lshrrev_b32 v1, 4, v0", "v_lshrrev_b32 v2, 2, v0", "v_and_b32 v2, 3, v2", "v_and_b32 v3, 3, v0",
      "v_and_b32 v5, 1, v1", "v_lshlrev_b32 v4, 1, v2", "v_lshl_or_b32 v4, v5, 3, v4",
      "v_lshl_add_u32 v6, v1, 3, v2", "v_lshlrev_b32 v6, 8, v6", f"v_add_u32 v6, {WA}, v6", "v_lshrrev_b32 v7, 1, v3")
    for T in range(8):
        e(f"v_or_b32 v8, {4*(T >> 1)}, v3", "v_xor_b32 v8, v8, v4", "v_lshl_add_u32 v8, v8, 4, v6", f"v_xor_b32 v9, {T & 1}, v7", f"v_lshl_add_u32 v{AWA+T}, v9, 3, v8")
    e("v_and_b32 v4, 2, v2", "v_lshl_or_b32 v4, v5, 2, v4",
      "v_lshl_add_u32 v6, v5, 3, v2", "v_lshlrev_b32 v6, 7, v6", "v_lshrrev_b32 v8, 1, v1", "v_lshl_add_u32 v6, v8, 12, v6", f"v_add_u32 v6, {WB}, v6")
    for T in range(4):
        e(f"v_or_b32 v8, {4*(T >> 1)}, v3", "v_xor_b32 v8, v8, v4", "v_lshl_add_u32 v8, v8, 4, v6", f"v_xor_b32 v9, {T & 1}, v7", f"v_lshl_add_u32 v{AWB+T}, v9, 3, v8")
    e("v_add_u32 v6, 2048, v6", "v_lshl_add_u32 v6, v3, 3, v6")
    for tt in range(3): e(f"v_xor_b32 v8, {2*tt}, v4", f"v_lshl_add_u32 v{AH+tt}, v8, 4, v6")
    e(fstamp(5))
    lp, ld = newlab("P"), newlab("D")
    tagpoll = E()(f"s_mov_b32 s{sU}, 0", f"{lp}:", "buffer_load_dword v26, v27, s[12:15], 0 offen sc1", "s_waitcnt vmcnt(0)", f"v_readfirstlane_b32 s{sT}, v26",
                  f"s_add_u32 s{sU}, s{sU}, 1", f"s_cmp_gt_u32 s{sU}, {SPIN}", f"s_cbranch_scc1 {ld}",
                  f"s_cmp_eq_u32 s{sT}, 0", f"s_cbranch_scc1 {lp}", f"{ld}:")
    e(wave0(tagpoll), "s_waitcnt vmcnt(0)", fstamp(6), "s_barrier", stamp(3), fstamp(7))
    e(wave0(signal(1)), fstamp(8))
    if not X("allW") and not X("lateW"): e(wgrp(NE, 5))
    if X("touch2"): e(tch)
    e("v_lshrrev_b32 v1, 3, v0", "v_and_b32 v2, 7, v0", f"s_mul_i32 s62, s{sWAVE}, 3072", f"s_lshl_b32 s66, s{sWAVE}, 2")
    for t in range(3):
        e(f"v_add_u32 v3, {8*t}, v1", "v_mul_u32_u24 v4, 171, v3", "v_lshrrev_b32 v4, 9, v4",
          "v_lshrrev_b32 v5, 1, v4", "v_add_u32 v6, s66, v5", "v_and_b32 v6, 7, v6", "v_xor_b32 v6, v2, v6",
          "v_lshlrev_b32 v7, 7, v1", "v_add_u32 v7, s62, v7", f"v_lshl_add_u32 v{DK+t}, v6, 4, v7",
          "v_and_b32 v5, 3, v5", "v_lshlrev_b32 v5, 1, v5", "v_xor_b32 v5, v2, v5", f"v_lshl_add_u32 v{DV+t}, v5, 4, v7")
    for i in range(4): e(f"s_add_u32 s{sMK+i}, s62, {KR + 12288*i}", f"s_add_u32 s{sMV+i}, s62, {VR + 12288*i}")
    e("v_and_b32 v3, 6, v1", "v_xor_b32 v3, v2, v3", "v_mul_u32_u24 v4, 1280, v1", "v_lshl_add_u32 v4, v3, 4, v4", f"s_mul_i32 s66, s{sWAVE}, 10240", f"v_add_u32 v{RLV}, s66, v4")
    e(f"s_mul_i32 s66, s{sM64}, {XF_BLK}")
    if WS_XF: e(f"s_add_u32 s66, s66, {hx(WS_XF)}")
    e(srd(sXF_SRD, pWS, pWS+1, XF_BLK, "s66"))
    e("v_and_b32 v1, 15, v0", "v_lshrrev_b32 v2, 4, v0", "v_lshlrev_b32 v1, 6, v1", f"v_lshl_add_u32 v{LXB}, v2, 4, v1", f"v_add_u32 v{LXB2}, 4096, v{LXB}",
      "v_lshrrev_b32 v3, 1, v2", "v_and_b32 v2, 1, v2", "v_lshrrev_b32 v1, 2, v1", "v_lshl_add_u32 v1, v3, 8, v1", f"v_lshl_add_u32 v{LX8}, v2, 3, v1",
      f"s_mov_b32 s{sX}, 0")
    e(f"s_mul_i32 s66, s{sHEAD}, 786432"); e(srd(sK_SRD, pK, pK+1, 786432, "s66"), srd(sV_SRD, pV, pV+1, 786432, "s66"), relayout_src())
    e(f"s_mul_i32 s66, s{sM64}, {OF_BLK}", f"s_add_u32 s66, s66, {hx(WS_OF)}"); e(srd(sOF_SRD, pWS, pWS+1, OF_BLK, "s66"))
    e(f"s_mov_b32 s{sC}, {hx(f2u(CSCALE))}", f"s_mov_b32 s{sC+1}, {hx(f2u(CSCALE))}", f"s_mov_b32 s{sTHR}, {hx(f2u(THR))}")
    e(f"s_mul_i32 s{sO}, s{sHEAD}, 24576")
    for tt in range(3):
        e(f"s_mul_i32 s66, s{sHEAD}, 3", f"s_add_u32 s66, s66, {tt}", "s_and_b32 s67, s66, 1", "s_lshl_b32 s67, s67, 9",
          "s_lshr_b32 s66, s66, 1", "s_add_u32 s66, s66, 192", "s_lshl_b32 s66, s66, 12", f"s_add_u32 s{sH[tt]}, s66, s67")
    e("v_lshrrev_b32 v1, 4, v0", "v_and_b32 v3, 3, v0",
      "v_lshrrev_b32 v5, 2, v0", "v_mul_u32_u24 v6, 384, v5", f"v_add_u32 v6, {VR}, v6", "v_lshl_add_u32 v6, v3, 3, v6",
      "v_lshrrev_b32 v5, 1, v5", "v_and_b32 v5, 3, v5", "v_lshlrev_b32 v5, 1, v5")
    for sg in range(4): e(f"v_xor_b32 v8, {2*sg}, v5", f"v_lshl_add_u32 v{AV+sg}, v8, 4, v6")
    e("v_and_b32 v2, 15, v0", "v_mul_u32_u24 v6, 384, v2", "v_lshrrev_b32 v2, 1, v2", "v_xor_b32 v2, v2, v1")
    e(f"v_lshl_add_u32 v{AK}, v2, 4, v6", "v_xor_b32 v2, 4, v2", f"v_lshl_add_u32 v{AK+1}, v2, 4, v6", relayout_vaddr(), kv_touch_addr(None), fstamp(9))
    if not X("notouch"):
        e(f"s_lshl_b32 s66, s{sQB}, 3", f"s_lshl_b32 s67, s{sWAVE}, 1", "s_add_u32 s66, s66, s67", "s_mov_b32 s67, 12288", touch_addr(1 if TPS() else 3),
          f"s_mov_b32 s{sTq}, {(TPS()[0] if TPS() else 3 if X('touch3') else 5)*786432}", f"s_mov_b32 s{sT1}, {(TPS()[0] if TPS() else 3 if X('touch3') else 5)*196608}")
    if X("pre2"): e(f"s_mov_b32 s{sTq}, {2*786432}", f"s_mov_b32 s{sT1}, {2*196608}", touch(), advT_())
    for i in range(96): e(f"v_accvgpr_write_b32 a{i}, 0")
    for i in range(48, 192): e(f"v_mov_b32 v{i}, 0")
    e("s_waitcnt vmcnt(0)")
    e(wave0([f"v_lshlrev_b32 v2, 2, v0", f"s_lshl_b32 s{sCNT}, s{sQB}, 7"] + poll(1, ("-1", "0"), f"s{sCNT}")))
    e("s_barrier", fstamp(10))
    for k in range(2): e(ldB(k), advX)
    e([qrd(0, T, kk, uu) for T in range(2) for kk in range(2) for uu in range(2)], wgrp(NE, 5) if X("lateW") else [])
    e(f"s_mov_b32 s{sCNT}, 0", fstamp(11), f"s_waitcnt vmcnt({20 if X('lateW') else 8}) lgkmcnt(4)", stamp(5), fstamp(12))
    return e

TB, TA, TAD, TD, TB8 = 16, 96, 160, 162, 164
sTW, sTB, sMT, sSP = 39, 58, 40, 54
LEAD = 3
def tacc(nt, qt): return (nt*2 + qt)*4
def t_rd(st, nt, kk, dst):
    slot = st % 4
    return f"ds_read_b128 {v(dst, 4)}, v{TAD + slot//3} offset:{(slot%3)*20480 + (kk*10 + nt)*1024}"
def t_A(st, nt, kk): return TA + 8*((10*st + nt) % 4) + 4*kk
def t_B(st, kk, qt): return TB + 16*(st % 4) + 8*kk + 4*qt
def t_ldB(st, g):
    if not g: return [f"buffer_load_dwordx4 {v(t_B(st,kk,qt), 4)}, v{LX}, s[16:19], s{sTB + kk} offen offset:{1024*qt} sc1 ; @B{st}" for kk in range(2) for qt in range(2)]
    return [f"buffer_load_dwordx2 {v(t_B(st,kk,qt) + 2*h, 2)}, v{TB8}, s[16:19], s{sTB + kk} offen offset:{1024*qt + 512*h} sc1 ; @B{st}" for kk in range(2) for qt in range(2) for h in range(2)]
t_advB = [f"s_add_u32 s{sTB}, s{sTB}, 8192", f"s_add_u32 s{sTB+1}, s{sTB+1}, 8192"]
def t_dmaW(st, t): return f"buffer_load_dwordx4 v{TD + (t == 4)}, s[12:15], s{sTW} offen offset:{1024*(t%4)} {'' if X('wplain') else 'sc1 '}lds ; @W{st}"
def t_m0(st, t): return f"s_add_u32 m0, s{sMT}, {(st%4)*20480 + (4096 if t == 4 else 0)}"
t_advW = [f"s_add_u32 s{sTW}, s{sTW}, 20480"]
def tplan(g):
    if g: pl = {2: ("W", LEAD-1, 3), 3: ("B", 0), 6: ("B", 1), 7: ("B", 2), 11: ("W", LEAD-1, 4), 10: ("B", 3), 14: ("B", 4), 15: ("B", 5), 19: ("B", 6), 22: ("B", 7)}
    else: pl = {2: ("W", LEAD-1, 3), 6: ("B", 0), 11: ("W", LEAD-1, 4), 15: ("B", 1), 19: ("B", 2), 23: ("B", 3)}
    pl.update({30: ("W", LEAD, 0), 34: ("W", LEAD, 1), 38: ("W", LEAD, 2)})
    return pl
sIT, sCP, sNW, sNB, sNF, sDA, sDB, FV, FA_ = 50, 52, 53, 49, 47, 45, 43, 166, 165
sFM, sFB = 60, 62
def decode():
    return [f"s_and_b32 s{sDA}, s{sIT}, 7", f"s_lshl_b32 s{sDA}, s{sDA}, 2", f"s_lshr_b32 s{sDA}, s{sCP}, s{sDA}", f"s_and_b32 s{sDA}, s{sDA}, 15",
            f"s_bfe_u32 s{sDB}, s{sIT}, 0x20003", f"s_mul_i32 s{sNF}, s{sDA}, s{sFM}", f"s_add_u32 s{sNF}, s{sNF}, s{sFB}",
            f"s_mul_i32 s{sDA}, s{sDA}, 3", f"s_add_u32 s{sDA}, s{sDA}, s{sDB}", f"s_mul_i32 s{sNW}, s{sDA}, 81920", f"s_lshl_b32 s{sNB}, s{sDA}, 15"]
shiftIT = f"s_lshr_b64 s[{sIT}:{sIT+1}], s[{sIT}:{sIT+1}], 5"
def flagld(): return f"buffer_load_dword v{FV}, v{FA_}, {srdn(sFL)}, s{sNF} offen sc1 ; @F"
def flagchk(): return [f"v_subrev_u32 v{FV}, s{sT}, v{FV}", f"v_subrev_u32 v{FV}, 3, v{FV}", f"v_cmp_lt_u32 vcc, 1, v{FV}"]
def flagspin(entry, back):
    l = newlab("S")
    return E()(f"{entry}:", f"s_mov_b32 s{sU}, 0", f"{l}:", flagld(), "s_waitcnt vmcnt(0)", flagchk(), f"s_add_u32 s{sU}, s{sU}, 1", f"s_cmp_gt_u32 s{sU}, {SPIN}",
               f"s_cbranch_scc1 {back}", f"s_cbranch_vccnz {l}", f"s_branch {back}")
def tstage(st, g, vmw, last=1 << 30, nextA=None):
    L = []
    pl = tplan(g)
    ldb = t_ldB(st + LEAD, g)
    for p in range(20):
        nt = p >> 1; qt = (p & 1) ^ (nt & 1)
        for kk in range(2):
            gi = 2*p + kk
            acc = a(tacc(nt, qt), 4)
            L.append(f"{MF} {acc}, {v(t_A(st,nt,kk), 4)}, {v(t_B(st,kk,qt), 4)}, {acc}")
            if gi % 4 < 2:
                st2, nt2 = st + (nt+3)//10, (nt+3) % 10
                if st2 == st or nextA is None: L.append(t_rd(st2, nt2, gi % 4, t_A(st2, nt2, gi % 4)))
                else: L.append(nextA[2*nt2 + gi % 4])
                if gi % 4 == 1: L.append("s_waitcnt lgkmcnt(4)")
                if gi == 28 and st + LEAD < last: L.append(t_m0(st + LEAD, 0))
                if gi == 4 and st + LEAD - 1 < last: L.append(t_m0(st + LEAD - 1, 4))
                dyn = not g and last > 32
                if gi == 12 and st + LEAD - 1 < last: L += [f"s_mov_b32 s{sTW}, s{sNW}"] if dyn and st % 4 == 1 else t_advW
                if gi == 24 and st + LEAD < last: L.append(f"s_mov_b32 s{sTB}, s{sNB}" if dyn and st % 4 == 0 else t_advB[0])
                if gi == 32 and st + LEAD < last: L.append(f"s_add_u32 s{sTB+1}, s{sNB}, 4096" if dyn and st % 4 == 0 else t_advB[1])
            if not g and last > 32:
                if st % 4 == 2:
                    dc = [shiftIT] + decode()
                    pos = {0: dc[0:1], 3: dc[1:3], 7: dc[3:5], 8: dc[5:6], 10: dc[6:8], 14: dc[8:10], 16: dc[10:11], 18: dc[11:12]}
                    L += pos.get(gi, [])
                    if gi == 26: L.append(flagld())
                if st % 4 == 0:
                    fc = flagchk()
                    if gi == 31: L += fc[:2]
                    if gi == 35: L += fc[2:]
                    if gi == 39: L += ["s_cbranch_vccnz F_TSP", "F_TSB:"]
            if gi in pl:
                x = pl[gi]
                if x[0] == "W":
                    if st + x[1] < last: L.append(t_dmaW(st + x[1], x[2]))
                elif st + LEAD < last: L.append(ldb[x[1]])
            if gi == 27: L += [f"s_waitcnt vmcnt({vmw})", "s_barrier"]
    return L
def tpreW():
    e = E()
    for st in range(LEAD-1):
        e(t_m0(st, 0), "s_nop 0", [t_dmaW(st, t) for t in range(4)], t_m0(st, 4), "s_nop 0", t_dmaW(st, 4), t_advW)
    return e(t_m0(LEAD-1, 0), "s_nop 0", [t_dmaW(LEAD-1, t) for t in range(3)])
def tpreB():
    e = E()
    for st in range(LEAD): e(t_ldB(st, False), t_advB)
    return e
def tpre(g=False):
    if X("wfirst"): return tpreW() + tpreB()
    e = E()
    for st in range(LEAD-1):
        e(t_m0(st, 0), "s_nop 0", [t_dmaW(st, t) for t in range(4)], t_m0(st, 4), "s_nop 0", t_dmaW(st, 4), t_advW, t_ldB(st, g), t_advB)
    e(t_ldB(LEAD-1, g), t_advB, t_m0(LEAD-1, 0), "s_nop 0", [t_dmaW(LEAD-1, t) for t in range(3)])
    return e
def tcounts():
    L = tpre()
    for st in range(12): L = L + tstage(st, False, f"@W{st+1},@B{st+1}")
    L = [l for l in L if not l.startswith(("s_cbranch", "F_"))]
    c = [int(re.search(r"vmcnt\((\d+)\)", l).group(1)) for l in resolve(L, []) if "vmcnt" in l]
    steady = [min(c[4+k], c[8+k]) for k in range(4)]
    return steady, {k: c[k] for k in range(4) if c[k] < steady[k]}
tstubs = []
def tloop():
    steady, first = tcounts()
    dec1 = E()(f"s_mov_b32 s{sTW}, s{sNW}", f"s_mov_b32 s{sTB}, s{sNB}", f"s_add_u32 s{sTB+1}, s{sNB}, 4096")
    quick = E()(flagchk(), "s_nop 1", "s_cbranch_vccz F_T0B") if X("qflag") else []
    wait0 = E()(f"s_cmp_eq_u32 s{sSP}, 3", "s_cbranch_scc1 F_T0B", quick, flagspin("F_T0", "F_T0B"), "F_T0B:", stamp(11), fstamp(4, "tail"), fstamp(9, "last"), shiftIT, decode(), flagld())
    if X("wfirst"): pre = E()(decode() if not X("qflag") else [], dec1, tpreW(), wait0, resolve(tpreB() + ["s_waitcnt vmcnt(@B0)"], []))
    else: pre = E()(decode(), dec1, wait0, resolve(tpre() + ["s_waitcnt vmcnt(@W0,@B0)"], []))
    pre("s_barrier", [t_rd(0, nt, kk, t_A(0, nt, kk)) for nt in range(3) for kk in range(2)], f"s_mov_b32 s{sCNT}, 0", "s_waitcnt lgkmcnt(4)", fstamp(10, "last"), fstamp(5, "tail"))
    body = []; fp = []; tstubs.clear()
    for st in range(4):
        b = tstage(st, False, steady[st])
        if st in first:
            k = b.index(f"s_waitcnt vmcnt({steady[st]})")
            fp += b[:k] + [f"s_waitcnt vmcnt({first[st]})"] + b[k+1:]
            j = max(i for i in range(k) if b[i].startswith(MF)); j = max(i for i in range(j) if b[i].startswith(MF))
            b = b[:j+1] + [f"s_cmp_eq_u32 s{sCNT}, 0"] + b[j+1:k] + [f"s_cbranch_scc1 F_US{st}", b[k], f"F_UB{st}:"] + b[k+1:]
            tstubs.extend([f"F_US{st}:", f"s_waitcnt vmcnt({first[st]})", f"s_branch F_UB{st}"])
        else: fp += b
        body += b
    ctl = [f"s_add_u32 s{sCNT}, s{sCNT}, 1", f"s_cmp_lt_u32 s{sCNT}, s46", "s_cbranch_scc1 F_TLS"]
    return pre, body, ctl, steady, fp
def pb_off(): return E()(f"s_lshl_b32 s41, s{sWAVE}, 2", f"s_add_u32 s41, s41, s{sSP}", "s_mul_i32 s41, s41, 20480",
                         f"s_cmp_eq_u32 s{sWAVE}, s{sSP}", "s_cselect_b32 s41, 0x10000000, s41")
def own_write():
    l = newlab("O")
    e = E()(f"s_cmp_lg_u32 s{sWAVE}, s{sSP}", f"s_cbranch_scc1 {l}", f"v_add_u32 v4, {OWN}, v{LX}")
    for i in range(20): e(f"ds_write_b128 v4, {a(tacc(i % 10, i // 10), 4)} offset:{1024*i}")
    return e(f"{l}:")
def tfinal(cnt):
    FA = lambda nt, k: TA + 16*(nt % 4) + 4*k
    frd = lambda nt, k: t_rd(30 + (k >> 1), nt, k & 1, FA(nt, k))
    e = E()
    for l in tstage(28, False, "@W29,@B29", last=32):
        e(l)
        if l.startswith("buffer_load") and l.endswith("@W31") and "offset:2048" in l:
            e.last = len(e)
    tail = e[e.last:]; del e[e.last:]
    k = [i for i, l in enumerate(tail) if l.startswith(MF)]
    assert len(k) == 1
    e(t_dmaW(31, 3), tail[k[0]], t_m0(31, 4), "s_nop 0", t_dmaW(31, 4))
    n = 0
    for l in tstage(29, False, "0", last=31):
        if l.startswith("ds_read"):
            n += 1
            if n > 14: continue
        if l == "s_waitcnt lgkmcnt(4)" and n > 14: l = "s_waitcnt lgkmcnt(0)"
        if l.startswith("s_waitcnt vmcnt") or l == "s_barrier": continue
        e(l)
    e("s_waitcnt vmcnt(@W30,@B30,@W31,@B31)", "s_barrier")
    e([frd(0, k) for k in range(4)], [frd(1, k) for k in range(4)], pb_off(), "s_waitcnt lgkmcnt(4)")
    pend = []
    for nt in range(10):
        for qt in range(2):
            for k_ in range(4):
                g = 4*qt + k_; k = 3 - k_ if qt else k_
                acc = a(tacc(nt, qt), 4)
                e(f"{MF} {acc}, {v(FA(nt,k),4)}, {v(t_B(30 + (k >> 1), k & 1, qt),4)}, {acc}")
                if g < 4 and nt + 2 < 10: e(frd(nt+2, g))
                if g == 3 and nt + 1 < 10: e(f"s_waitcnt lgkmcnt({4 if nt + 2 < 10 else 0})")
                if g in (4, 6) and nt > 0:
                    q2 = (g-4)//2; i = q2*10 + nt-1
                    e(f"buffer_store_dwordx4 {a(tacc(nt-1,q2),4)}, v{LX}, s[20:23], s{42+q2} offen sc1")
                if g in (1, 2) and nt > 0:
                    q2 = g - 1; e(f"s_add_u32 s{42+q2}, s41, {1024*(q2*10 + nt-1)}")
    e("s_add_u32 s42, s41, 9216", "s_add_u32 s43, s41, 19456", "s_nop 5")
    for q2 in range(2): e(f"buffer_store_dwordx4 {a(tacc(9,q2),4)}, v{LX}, s[20:23], s{42+q2} offen sc1")
    e(own_write())
    return e
def gfinal():
    e = E()(pb_off(), "s_waitcnt vmcnt(0) lgkmcnt(0)", "s_nop 1")
    for i in range(20):
        b = tacc(i % 10, i // 10); d = 16 + 6*(i % 8)
        for r in range(4): e(f"v_accvgpr_read_b32 v{d+r}, a{b+r}")
        e(f"v_cvt_pk_bf16_f32 v{d+4}, v{d}, v{d+1}", f"v_cvt_pk_bf16_f32 v{d+5}, v{d+2}, v{d+3}")
        if i % 8 == 0: e(f"s_add_u32 s42, s41, {512*i}")
        e(f"buffer_store_dwordx2 {v(d+4,2)}, v{TB8}, s[20:23], s42 offen offset:{512*(i%8)} sc1")
    e(own_write())
    return e
def items(lst):
    x = 0
    for k, (rb, th) in enumerate(lst): x |= (rb | th << 3) << (5*k)
    return x
def blk(*rbs): return [(rb, th) for rb in rbs for th in range(3)]
PATTERNS = {"B": [blk(0, 2, 4), blk(1, 3, 5), blk(6, 7)],
            "C": [blk(0, 2, 4) + [(5, 0)], blk(1, 3) + [(5, 1), (5, 2)], blk(6, 7)],
            "D": [blk(0, 2, 4), blk(1, 3) + [(5, 0), (5, 1)], [(5, 2)] + blk(6, 7)],
            "E": [blk(0, 2, 4) + [(5, 0)], blk(1, 3) + [(5, 1)], [(5, 2)] + blk(6, 7)],
            "F": [blk(0, 3) + [(6, 0), (6, 1)], blk(1, 4) + [(6, 2), (7, 0)], blk(2, 5) + [(7, 1), (7, 2)]],
            "G": [blk(0, 2) + [(4, 0), (4, 1)], blk(1, 3) + [(4, 2), (5, 0)], [(5, 1), (5, 2)] + blk(6, 7)],
            "A": [blk(0, 3) + [(6, 0), (6, 1)], blk(1, 4) + [(6, 2), (7, 0)], blk(2, 5) + [(7, 1), (7, 2)]]}
DV_ = 136
def roles():
    e = E()
    l, d = newlab("R"), newlab("D")
    e(f"s_mov_b32 s{sU}, 0", f"{l}:", f"v_cmp_eq_u32 vcc, 0, v{DV_}", f"s_add_u32 s{sU}, s{sU}, 1", "s_nop 2", "s_and_b32 s41, vcc_lo, 0xff00", f"s_cbranch_scc0 {d}",
      f"s_cmp_gt_u32 s{sU}, {SPIN}", f"s_cbranch_scc1 {d}", f"buffer_load_dword v{DV_}, v{DV_+1}, s[28:31], 0 offen sc1", "s_waitcnt vmcnt(0)", f"s_branch {l}", f"{d}:")
    e(f"v_readlane_b32 s{sT}, v{DV_}, 0", f"s_mov_b32 s{sCP}, 0", "s_and_b32 s41, s2, 7", "s_add_u32 s41, s41, 8", f"v_readlane_b32 s42, v{DV_}, s41")
    e([f"v_readlane_b32 s{12+c}, v{DV_}, {8+c}" for c in range(8)], "s_nop 3")
    for c in range(1, 8):
        e(f"s_sub_u32 s41, s{12+c}, 1", "s_and_b32 s41, s41, 7", "s_lshl_b32 s41, s41, 2", f"s_lshl_b32 s41, {c}, s41", f"s_or_b32 s{sCP}, s{sCP}, s41")
    e("s_sub_u32 s42, s42, 1", "s_and_b32 s42, s42, 7")
    if X("static"): e("s_and_b32 s42, s2, 7", f"s_mov_b32 s{sCP}, 0x76543210")
    e(f"s_lshr_b32 s{sSP}, s42, 1", "s_add_u32 s55, s42, 1", "s_lshr_b32 s55, s55, 1", "s_and_b32 s55, s55, 1", f"s_and_b32 s56, s{sHEAD}, 3")
    pat = PATTERNS[[x[3:] for x in EXP[0].split() if x.startswith("pat")][0] if "pat" in EXP[0] else "D"]
    pat = pat + [blk(0, 1)]
    for m in (3, 2, 1, 0):
        x = items(pat[m])
        if m == 3: e(f"s_mov_b32 s{sIT}, {hx(x)}", f"s_mov_b32 s{sIT+1}, {hx(x >> 32)}", f"s_mov_b32 s46, {len(pat[m]) - 1}")
        else: e(f"s_cmp_eq_u32 s{sSP}, {m}", f"s_cselect_b32 s{sIT}, {hx(x)}, s{sIT}", f"s_cselect_b32 s{sIT+1}, {hx(x >> 32)}, s{sIT+1}", f"s_cselect_b32 s46, {len(pat[m]) - 1}, s46")
    e(f"s_lshl_b32 s41, s{sQB}, 7", f"s_lshl_b32 s42, s{sHEAD}, 2", "s_add_u32 s42, s42, s41", f"s_cmp_eq_u32 s{sSP}, 3", f"s_cselect_b32 s{sCP}, 0x98, s{sCP}",
      f"s_cselect_b32 s{sFM}, 0, 16", f"s_cselect_b32 s{sFB}, s42, s41", "s_cselect_b32 s40, 0, 3")
    return e
def tail_setup():
    e = E()
    e("v_and_b32 v1, s40, v0", f"v_lshlrev_b32 v{FA_}, 2, v1")
    e(f"s_mul_i32 s41, s56, {WF160}", f"s_add_u32 s41, s41, {hx(WS_WF)}")
    e(srd(12, pWS, pWS+1, WF160, "s41"))
    e(f"s_lshl_b32 s41, s{sQB}, 2", "s_lshl_b32 s42, s55, 1", "s_add_u32 s41, s41, s42", f"s_lshr_b32 s42, s{sWAVE}, 1", "s_add_u32 s41, s41, s42",
      f"s_mul_i32 s41, s41, {OF_BLK}",
      f"s_and_b32 s42, s{sWAVE}, 1", "s_lshl_b32 s42, s42, 11", "s_add_u32 s41, s41, s42", f"s_add_u32 s41, s41, {hx(WS_OF)}",
      f"s_sub_u32 s43, {OF_BLK}, s42")
    e(srd(16, pWS, pWS+1, "s43", "s41"))
    e(f"s_mov_b32 s{sTB}, 0", f"s_mov_b32 s{sTB+1}, 4096", f"s_mov_b32 s{sTW}, 0", f"s_mul_i32 s{sMT}, s{sWAVE}, 5120")
    e(f"s_lshl_b32 s41, s{sQB}, 1", "s_add_u32 s41, s41, s55", "s_lshl_b32 s41, s41, 2", "s_add_u32 s41, s41, s56", "s_mul_i32 s41, s41, 327680",
      f"s_add_u32 s41, s41, {hx(WS_PB)}")
    e(srd(20, pWS, pWS+1, 327680, "s41"))
    e(f"s_lshl_b32 s41, s{sQB}, 3", "s_lshl_b32 s42, s55, 2", "s_add_u32 s41, s41, s42", f"s_add_u32 s41, s41, s{sSP}", "s_lshl_b32 s41, s41, 1",
      f"s_and_b32 s42, s{sWAVE}, 1", "s_add_u32 s41, s41, s42", "s_mul_i32 s41, s41, 20480",
      "s_mul_i32 s42, s56, 320", "s_add_u32 s41, s41, s42", f"s_lshr_b32 s42, s{sWAVE}, 1", "s_mul_i32 s42, s42, 160", "s_add_u32 s41, s41, s42",
      "s_sub_u32 s42, 2621440, s41")
    e(srd(24, pX, pX+1, "s42", "s41")); e(srd(28, pOUT, pOUT+1, "s42", "s41"))
    e("s_lshl_b32 s44, 0x11111111, s56", f"s_lshl_b32 s48, s{sQB}, 7")
    return e
def tail_vsetup():
    return E()(f"v_add_u32 v{TD}, s{sMT}, v{LX}", f"v_add_u32 v{TD+1}, 4096, v{TD}", f"v_mov_b32 v{TAD}, v{LX}", f"v_add_u32 v{TAD+1}, 61440, v{LX}",
               [f"v_accvgpr_write_b32 a{i}, 0" for i in range(80)])

def laststep(i=63):
    Pc = Pb(i)
    e = E()
    e(rdVp(62, 0))
    e(wave0([f"buffer_load_dwordx4 v[140:143], v{LX}, {srdn(sFL)}, 0 offen sc1"]))
    e(srd(28, pDBG, pDBG+1, 64), "v_and_b32 v138, 15, v0", f"v_lshlrev_b32 v{DV_+1}, 2, v138", f"buffer_load_dword v{DV_}, v{DV_+1}, s[28:31], 0 offen sc1")
    Ex, Sx = sm(S1, [2, 3], Pc, 1)
    e(Ex, rdVp(62, 1, KF))
    e([x for _, x in Sx], CHK, "s_waitcnt lgkmcnt(12)", callsite(i % 4), LADD, "s_nop 0", fstamp(2, "last"))
    RI = 8
    Xl = xlane("v_add_f32", L_, 2) + [f"v_rcp_f32 v{RI+2*qt}, v{L_+qt}" for qt in range(4)]
    def mix(m, fill, per=1):
        for x in m:
            e(x)
            for _ in range(per):
                if fill: e(fill.pop(0))
    r2, r3 = rdVp(62, 2), rdVp(62, 3, KF)
    ok = newlab("K")
    chk = E()(f"s_add_u32 s{sTMP}, s{sT}, 2")
    for r in range(4): chk(f"v_subrev_u32 v{140+r}, s{sTMP}, v{140+r}")
    chk("v_max3_u32 v140, v140, v141, v142", "v_max_u32 v140, v140, v143", "v_cmp_lt_u32 vcc, 2, v140", "s_nop 1", f"s_cbranch_vccz {ok}",
        f"v_mov_b32 v2, v{LX}", poll(2, ("-1", "-1"), "0", wide=True), f"{ok}:")
    def norm(j):
        o = E()(f"s_add_u32 s{sTMP}, s{sO}, {4096*j}")
        for qt in range(4):
            k = 4*j + qt
            t = 64 + 8*(k % 4); d = 112 + 4*(k % 6)
            for hh in range(2):
                b = Oacc(2*j+hh, qt)
                for r in range(4): o(f"v_accvgpr_read_b32 v{t+4*hh+r}, a{b+r}")
            for r in range(0, 8, 2): o(f"v_pk_mul_f32 {v(t+r,2)}, {v(t+r,2)}, {v(RI+2*qt,2)} op_sel_hi:[1,0]")
            for r in range(4): o(f"v_cvt_pk_bf16_f32 v{d+r}, v{t+2*r}, v{t+2*r+1}")
            o(f"buffer_store_dwordx4 {v(d,4)}, v{LX}, {srdn(sOF_SRD)}, s{sTMP} offen offset:{1024*qt} sc1")
        return o
    mix(pv(62, 0), Xl, 2); e(Xl, "s_waitcnt lgkmcnt(0)", fstamp(3, "last"))
    if X("oldlast"):
        mix(pv(62, 1, src=KF), r2); e("s_waitcnt lgkmcnt(0)"); mix(pv(62, 2), r3)
        e(norm(0), norm(1), "s_waitcnt lgkmcnt(0)", pv(62, 3, src=KF), norm(2), norm(3), norm(4), norm(5))
    else:
        mix(pv(62, 1, src=KF), r2); e(norm(0), "s_waitcnt lgkmcnt(0)")
        mix(pv(62, 2), r3); e(norm(1), norm(2), "s_waitcnt lgkmcnt(0)", pv(62, 3, src=KF), norm(3), norm(4), norm(5))
    CHK2[:] = wave0(chk)
    return e
CHK2 = []

def tail_end():
    e = E()
    XV = 232
    e("v_and_b32 v3, 15, v0", "v_mul_u32_u24 v3, 1280, v3", "v_lshrrev_b32 v4, 4, v0", "v_lshl_add_u32 v3, v4, 3, v3", fstamp(7, "tail"))
    e("s_waitcnt vmcnt(0) lgkmcnt(0)", fstamp(8, "tail"), "s_barrier", fstamp(9, "tail"), wave0(signal(4)))
    for nt in range(5): e(f"buffer_load_dwordx2 {v(XV+2*nt,2)}, v3, s[24:27], 0 offen offset:{32*nt}")
    e(f"s_and_b32 s42, s{sWAVE}, 1", "s_mul_i32 s42, s42, 10240", f"s_lshr_b32 s43, s{sWAVE}, 1", "s_mul_i32 s43, s43, 5120", "s_add_u32 s42, s42, s43",
      f"s_add_u32 s43, s42, {OWN}", f"v_add_u32 v5, s43, v{LX}")
    for i in range(5): e(f"ds_read_b128 {v(176+4*i,4)}, v5 offset:{1024*i}")
    e(f"s_mul_i32 s41, s{sSP}, 81920", "s_add_u32 s50, s41, s42", "s_add_u32 s51, s50, 20480", "s_add_u32 s52, s50, 40960", "s_add_u32 s53, s50, 61440")
    for src in range(4): e(f"s_cmp_eq_u32 s{sSP}, {src}", f"s_cselect_b32 s{50+src}, 0x10000000, s{50+src}")
    e(f"s_cmp_eq_u32 s{sSP}, 3", "s_cselect_b32 s56, 0, 1.0", "s_cselect_b32 s57, 1.0, 0", f"v_add_u32 v5, 4096, v{LX}", f"s_mov_b32 s38, {hx(f2u(-math.log2(math.e)))}")
    pl = wave0(["v_lshlrev_b32 v2, 2, v0"] + poll(4, ("s44", "0"), "s48"))
    if X("dryfin"):
        e("s_mov_b32 s59, s30", "s_mov_b32 s58, 0", f"s_cmp_eq_u32 s{sWAVE}, 0", "s_cbranch_scc1 F_FP", "s_mov_b32 s22, 0", "s_mov_b32 s30, 0", "s_branch F_FIN",
          "F_FP:", pl, "F_FD:", "s_waitcnt vmcnt(0)", "s_mov_b32 s22, 327680", "s_mov_b32 s30, s59", "s_mov_b32 s58, 1", "s_barrier", stamp(4), fstamp(10, "tail"), "F_FIN:")
    else: e(pl, "s_barrier", stamp(4), fstamp(10, "tail"))
    def ldp(i):
        return [f"buffer_load_dwordx4 {v(16+16*i+4*src,4)}, v{LX if i < 4 else 5}, s[20:23], s{50+src} offen offset:{1024*(i%4)} sc1 ; @P{i}" for src in range(4)]
    AH_ = ([int(x[2:]) for x in EXP[0].split() if x.startswith("ah")] or [2])[0]
    k0 = len(e)
    for i in range(AH_): e(ldp(i))
    e("s_waitcnt lgkmcnt(0)")
    for nt in range(5):
        S = 16 + 16*nt; G = S + 12; Xr = XV + 2*nt; t = 112 + 12*nt; W = 176 + 4*nt
        if nt + AH_ < 5: e(ldp(nt + AH_))
        e(f"s_waitcnt vmcnt(@P{nt})", fstamp(11, "tail") if nt == 0 else [])
        for r in range(4): e(f"v_add_f32 v{S+r}, v{S+r}, v{S+4+r}")
        for r in range(4): e(f"v_fmac_f32 v{G+r}, s57, v{W+r}")
        for r in range(4): e(f"v_add_f32 v{S+r}, v{S+r}, v{S+8+r}")
        for r in range(4): e(f"v_fmac_f32 v{S+r}, s56, v{W+r}")
        e(f"v_cvt_pk_bf16_f32 v{t+2}, v{G}, v{G+1}", f"v_cvt_pk_bf16_f32 v{t+3}, v{G+2}, v{G+3}",
          f"v_cvt_pk_bf16_f32 v{t}, v{S}, v{S+1}", f"v_cvt_pk_bf16_f32 v{t+1}, v{S+2}, v{S+3}")
        for k in range(2):
            e(f"v_lshlrev_b32 v{G+2*k}, 16, v{t+2+k}", f"v_and_b32 v{G+2*k+1}, 0xffff0000, v{t+2+k}",
              f"v_lshlrev_b32 v{S+2*k}, 16, v{t+k}", f"v_and_b32 v{S+2*k+1}, 0xffff0000, v{t+k}")
        for r in range(4): e(f"v_mul_f32 v{t+4+r}, s38, v{G+r}")
        for r in range(4): e(f"v_exp_f32 v{t+4+r}, v{t+4+r}")
        for r in range(4): e(f"v_add_f32 v{t+4+r}, 1.0, v{t+4+r}")
        for r in range(4): e(f"v_rcp_f32 v{t+4+r}, v{t+4+r}")
        for r in range(4): e(f"v_mul_f32 v{G+r}, v{G+r}, v{t+4+r}")
        e(f"v_cvt_pk_bf16_f32 v{t+2}, v{G}, v{G+1}", f"v_cvt_pk_bf16_f32 v{t+3}, v{G+2}, v{G+3}")
        for k in range(2): e(f"v_lshlrev_b32 v{G+2*k}, 16, v{t+2+k}", f"v_and_b32 v{G+2*k+1}, 0xffff0000, v{t+2+k}")
        for r in range(4): e(f"v_mul_f32 v{S+r}, v{S+r}, v{G+r}")
        e(f"v_cvt_pk_bf16_f32 v{t}, v{S}, v{S+1}", f"v_cvt_pk_bf16_f32 v{t+1}, v{S+2}, v{S+3}")
        for k in range(2):
            e(f"v_lshlrev_b32 v{S+2*k}, 16, v{t+k}", f"v_and_b32 v{S+2*k+1}, 0xffff0000, v{t+k}",
              f"v_lshlrev_b32 v{G+2*k}, 16, v{Xr+k}", f"v_and_b32 v{G+2*k+1}, 0xffff0000, v{Xr+k}")
        for r in range(4): e(f"v_add_f32 v{S+r}, v{S+r}, v{G+r}")
        e(f"v_cvt_pk_bf16_f32 v{t+8}, v{S}, v{S+1}", f"v_cvt_pk_bf16_f32 v{t+9}, v{S+2}, v{S+3}")
        e(f"buffer_store_dwordx2 {v(t+8,2)}, v3, s[28:31], 0 offen offset:{32*nt}" + (" sc1" if X("outsc1") else "") + (" nt" if X("outnt") else ""))
    e[k0:] = resolve(e[k0:], [])
    if X("dryfin"): e("s_cmp_eq_u32 s58, 0", "s_cbranch_scc1 F_FD")
    e(fstamp(12, "tail"))
    return e

def encode():
    en = [x for x in EXP[0].split() if x.startswith("enc:")]
    if not en: return []
    _, i, j, mult, W = en[0].split(":")
    return E()(f"s_cmp_lg_u32 s2, {W}", "s_cbranch_scc1 F_END", f"s_sub_u32 s66, s{88+int(j)}, s{88+int(i)}", f"s_mul_i32 s66, s66, {mult}", "s_add_u32 s66, s66, 15000",
               "F_ENC:", "s_memrealtime s[86:87]", "s_waitcnt lgkmcnt(0)", "s_sub_u32 s67, s86, s88", "s_cmp_lt_u32 s67, s66", "s_cbranch_scc1 F_ENC")

def gen(exp=""):
    sites.clear(); lab[0] = 0; EXP[0] = exp
    L = E()(kernel_head(NAME))
    if X("early0"): L("s_memrealtime s[100:101]")
    L("s_cmp_ge_u32 s2, 256", "s_cbranch_scc1 F_END")
    pro = front() + (cstamp(8) if X("qcyc") else [])
    qc, qfirst, q18 = qcounts()
    qloop = []; qfp = []; stubs = E()
    for u in range(6):
        b = qsub(u, last=40, vmw=qc[u])
        if u in qfirst:
            k = b.index(f"s_waitcnt vmcnt({qc[u]})")
            qfp += b[:k] + [f"s_waitcnt vmcnt({qfirst[u]})"] + b[k+1:]
            j = max(i for i in range(k) if b[i].startswith(MF))
            j = max(i for i in range(j) if b[i].startswith(MF))
            b = b[:j+1] + [f"s_cmp_eq_u32 s{sCNT}, 0"] + b[j+1:k] + [f"s_cbranch_scc1 F_QS{u}", b[k], f"F_QB{u}:"] + b[k+1:]
            stubs(f"F_QS{u}:", f"s_waitcnt vmcnt({qfirst[u]})", f"s_branch F_QB{u}")
        else: qfp += b
        qloop += b
    qctl = [f"s_add_u32 s{sCNT}, s{sCNT}, 1", f"s_cmp_lt_u32 s{sCNT}, 3", "s_cbranch_scc1 F_QL"]
    ex = {18: {}, 19: {}}
    for (kind, j), (u, g0) in zip([("K", 0), ("K", 1), ("V", 0), ("K", 2)], [(18, 4), (18, 20), (18, 36), (19, 4)]):
        m, d = kvgroup(kind, j)
        ex[u].setdefault(g0, []).extend(m)
        for t, dg in enumerate((1, 2, 3)): ex[u].setdefault(g0 + dg, []).append(d[t])
    rd = relayout_dst()
    if X("hfirst"):
        for k, g in enumerate(8*a_ + b_ for a_ in range(6) for b_ in range(3)): ex[18].setdefault(g, []).append(rd[k])
    else:
        for k, g in enumerate((36, 37, 38, 39, 44, 45, 46, 47, 52)): ex[19].setdefault(g, []).extend(rd[2*k:2*k+2])
    q19 = qsub(19, extra=ex[19])
    if X("hfirst"):
        q19, left = fill(q19, hops())
        if X("showcnt"): print("h ops left over:", len(left))
        q19 += left
    mid = qsub(18, extra=ex[18], vmw="@W19") + q19 + stamp(6) + fstamp(1, "conv") + (cstamp(9) if X("qcyc") else []) + convert() + fstamp(2, "conv") + init() + fstamp(7, "conv") + stamp(7) + (cstamp(8) if not (X("tcyc") or X("qcyc")) else [])
    keep = mid
    mid = [l + (" ; " + re.search(r"@\S+", k).group(0) if k.startswith("buffer_") and "@" in k and "@" not in l else "") for l, k in zip(resolve(mid, q18), keep)]
    ctl = [f"s_add_u32 s{sCNT}, s{sCNT}, 1", f"s_bitcmp1_b32 {hx(1 << 11 | 1 << 12 | 1 << 15 | (1 << 14 if X('x_tlb') else 0))}, s{sCNT}", "s_cbranch_scc0 F_AL"]
    rlk = {1: "dma", 3: "out"} if not X("norl") else {}
    if not X("nokvt"): rlk.update({2: "tk", 0: "tv"})
    mid = mid + [f"s_mov_b32 s{sCNT}, 0"]
    def mk(i, w): return step(i, vmw=w, tail=ctl if (i >= 3 and i % 4 == 2) else (), rl=rlk.get(i % 4) if i >= 3 else None)
    q = [re.search(r"@(\S+)", l).group(1) if "@" in l else "-" for l in mid if l.startswith("buffer_")]; cnts = {}
    for i in range(23):
        key = i if i < 3 else 3 + (i-3) % 4
        for l in mk(i, "?"):
            if "vmcnt(?)" in l:
                need = [f"K{i+2}"] + ([f"V{i}", f"V{i+1}"] if i % 2 == 0 else []) + (["R"] if i % 4 == 2 else [])
                c = len(q) - 1 - max(k for k, x in enumerate(q) if x in need)
                cnts[key] = min(cnts.get(key, 63), c)
            if l.startswith("buffer_"): q.append(re.search(r"@(\S+)", l).group(1))
    sites.clear()
    s0 = mk(0, cnts[0]) + mk(1, cnts[1]) + mk(2, cnts[2])
    body = [mk(i, cnts[i]) for i in range(3, 7)]
    def drop(pred):
        for k in range(4): body[k] = [l for l in body[k] if not pred(l)]
    if X("x_nobar"): drop(lambda l: l == "s_barrier")
    if X("x_nodma"): drop(lambda l: l.startswith("buffer_"))
    if X("x_nochk"): drop(lambda l: l.startswith("s_cbranch_vccnz"))
    if X("x_nolgkm"):
        for k in range(4): body[k] = [re.sub(r" lgkmcnt\(\d+\)", "", l) for l in body[k] if not l.startswith("s_waitcnt lgkmcnt")]
    if X("x_nods"): drop(lambda l: l.startswith("ds_"))
    if X("showcnt"): print("step counts", cnts, "q counts", qc)
    tlb = E()
    if X("x_tlb"):
        tlb(f"s_cmp_lg_u32 s{sCNT}, 14", "s_cbranch_scc1 F_H0", srd(28, pWS, pWS+1, 0x8000000),
            f"s_lshl_b32 s66, s{sQB}, 2", f"s_mul_i32 s66, s66, {OF_BLK}", f"s_add_u32 s66, s66, {hx(WS_OF + 190*4096)}", f"v_mul_u32_u24 v2, {OF_BLK}, v0", "v_add_u32 v2, s66, v2",
            f"s_and_b32 s66, s{sHEAD}, 3", f"s_mul_i32 s67, s66, {WF160}", f"s_add_u32 s67, s67, {hx(WS_WF)}", "v_subrev_u32 v3, 4, v0", "v_lshlrev_b32 v3, 20, v3", "v_add_u32 v3, s67, v3",
            "v_cmp_gt_u32 vcc, 4, v0", f"s_lshl_b32 s67, s{sQB}, 3", "s_add_u32 s66, s66, s67", "v_cndmask_b32 v2, v3, v2, vcc",
            "s_mul_i32 s66, s66, 327680", f"s_add_u32 s66, s66, {hx(WS_PB)}", "v_subrev_u32 v3, 7, v0", f"v_mul_u32_u24 v3, {4*327680}, v3", "v_add_u32 v3, s66, v3",
            "v_cmp_gt_u32 vcc, 7, v0", "s_nop 1", "v_cndmask_b32 v2, v3, v2, vcc", "v_cmp_gt_u32 vcc, 9, v0", "v_bfrev_b32 v3, 1", "s_nop 0", "v_cndmask_b32 v2, v3, v2, vcc",
            "buffer_load_dword v1, v2, s[28:31], 0 offen", srd(28, pOUT, pOUT+1, 2621440), f"s_mul_i32 s66, s{sQB}, 327680", "buffer_load_dword v1, off, s[28:31], s66",
            "s_branch F_AL", "F_H0:")
    hooks = E()(f"s_cmp_eq_u32 s{sCNT}, 15", "s_cbranch_scc1 F_LAST", tlb, f"s_cmp_lg_u32 s{sWAVE}, 0", "s_cbranch_scc1 F_AL",
                f"s_cmp_eq_u32 s{sCNT}, 12", "s_cbranch_scc1 F_H1", signal(2), "s_mov_b32 s66, 4",
                "s_cmp_ge_u32 s2, 8", "s_cbranch_scc1 F_AL", srd(28, pDBG, pDBG+1, 64), "s_mov_b64 exec, 1",
                f"v_mov_b32 v{RLV}, 1", f"buffer_atomic_add v{RLV}, off, s[28:31], s66 sc0 sc1", "s_mov_b64 exec, -1", "s_branch F_AL",
                "F_H1:", "s_cmp_ge_u32 s2, 8", "s_cbranch_scc1 F_AL", "s_lshl_b32 s66, s2, 2", "s_add_u32 s66, s66, 32", "s_mov_b64 exec, 1",
                f"v_add_u32 v{RLV}, 1, v{RLV}", f"buffer_store_dword v{RLV}, off, s[28:31], s66 sc1", "s_mov_b64 exec, -1", "s_branch F_AL")
    last = (cstamp(9) if not (X("tcyc") or X("qcyc")) else []) + fstamp(1, "last") + laststep()
    h1 = E()(stamp(10), fstamp(1, "tail"), fstamp(5, "last"), "s_waitcnt vmcnt(24)", CHK2, roles(), fstamp(6, "last"), tail_setup(), (decode() + [flagld()]) if X("qflag") else [], tail_vsetup(), fstamp(7, "last"), "s_waitcnt vmcnt(0)", fstamp(8, "last"), fstamp(2, "tail"), "s_barrier", wave0(signal(3)), fstamp(3, "tail"))
    preS, bodyS, ctlS, cS, fpS = tloop()
    hS = E()(preS, cstamp(8) if X("tcyc") else [])
    sim = tpre(False) + [x for st in range(28) for x in tstage(st, False, 0)]
    q28 = [re.search(r"@(\S+)", l).group(1) for l in sim if l.startswith("buffer_")][-24:]
    finS = E()(resolve(tfinal(cS), q28), stamp(12), fstamp(6, "tail"), cstamp(9) if X("tcyc") else [])
    end = tail_end()
    L(pro, ".p2align 6", "F_QL:", qloop, qctl, mid, s0, ".p2align 6", ["s_nop 0"]*([int(x[2:]) for x in exp.split() if x.startswith("sh")] or [0])[0], "F_AL:", *body, hooks, "F_LAST:", last,
      h1, hS, ".p2align 6", "F_TLS:", bodyS, ctlS, finS, "F_TE:", end, stamp_flush(0, 13, pWS, f"s{sWAVE}"), encode(), "F_END:", "s_endpgm")
    for k, par in enumerate(sites):
        L(f"F_TR{k}:", f"s_call_b64 s[{sRET}:{sRET+1}], F_SLOW{par}", f"s_branch F_BK{k}")
    L(stubs, tstubs, flagspin("F_TSP", "F_TSB"), "F_PFE:", slow(0), slow(1), slow(2), slow(3))
    flat = lambda Z: [y for x in Z for y in x]
    pro = [l for l in pro if l not in ("s_branch F_LN",)]
    tr = pro + qfp + qctl + (qloop + qctl)*2 + mid + s0 + flat(body) + flat(body) + last + h1
    if "x_" in exp: return L, kernel_desc(NAME, 512, 256), "; @launch grid=(256,1,1) block=(256,1,1) lds=163840"
    check(tr + hS + fpS + ctlS + (bodyS + ctlS)*6 + finS + end, "S")
    check(flagspin("A", "B") + bodyS, "spin")
    for n in range(4):
        b = body[n]
        idx = [i for i, x in enumerate(b) if x.startswith("F_BK")][0]
        check(body[(n-1) % 4] + b[:idx] + slow((3+n) % 4) + b[idx:] + body[(n+1) % 4], f"slow{n}")
    return L, kernel_desc(NAME, 512, 256), "; @launch grid=(256,1,1) block=(256,1,1) lds=163840"

def build(path, **kw):
    HDR = open("recurrent_scan__gqa_block_cached__dense_activation_relu__prompt.s.ref").read().split("; Override launch")[0]
    L, D, H = gen(**kw)
    L = [re.sub(r"\s*; @\S+$", "", l) for l in L]
    NOTE = """;
; One launch, 256 workgroups (one per CU), 4 waves x 64 query rows, v_mfma_f32_16x16x32_bf16 throughout.
;   3. flash attention over 64 key tiles; exp2 is taken against a running reference that starts at the true maximum of
;      the first tile and is moved to the true running maximum whenever a row sum leaves the safe range (F_SLOW*);
;      wo / w2 are re-laid out as MFMA fragments in otherwise idle issue slots
;   4. o @ wo and h @ w2 as 128 x 160 tiles with K split over four workgroups (shares follow the order of arrival),
;      partial sums exchanged through d_ws, then out = x + s * silu(g)
"""
    open(path, "w").write(HDR + NOTE + H + "\n" + '.amdgcn_target "amdgcn-amd-amdhsa--gfx950"\n' + "\n".join(L) + "\n" + "\n".join(D) + "\n")
if __name__ == "__main__":
    for flag, mode in (("--ts", None), ("--tail", "tail"), ("--front", "front"), ("--last", "last"), ("--conv", "conv")):
        if flag in sys.argv:
            OPT["ts"] = True; OPT["mode"] = mode; sys.argv.remove(flag)
    build(sys.argv[1], exp=" ".join(sys.argv[2:]))
```

```python
from common import *
import re, sys

NAME = "recurrent_scan__gqa_block_cached__dense_activation_relu__prompt_kernel"
MF = "v_mfma_f32_16x16x32_bf16"
EXP = [""]
DEFAULTS = ["poll1", "touch3", "hfirst", "wfirst", "qsnake"]
def X(flag): return flag in EXP[0].split() or (flag in DEFAULTS and "no_" + flag not in EXP[0].split())

KR, VR = 0, 49152
WA, WB = 65536, 114688
ST = 122880
OWN = 81920
pX, pK, pV, pWQ, pWO, pWS, pW1, pW2, pOUT, pDBG = 4, 6, 8, 10, 68, 70, 72, 74, 76, 78
sK_SRD, sV_SRD, sWQ_SRD, sW1_SRD, sXF_SRD, sOF_SRD, sFL = 12, 16, 20, 24, 28, 32, 80
sWAVE, sHEAD, sM64, sKo = 36, 37, 38, 39
sMK, sMV, sMW = 40, 44, 48
sWq, sW1, sX, sCNT, sC, sTHR, sO, sVo, sRET = 54, 55, 56, 57, 58, 60, 61, 63, 64
sH = [6, 7, 62]
sTMP, sU, sT, sQB = 66, 67, 84, 85
sRSRC, sRDST, sRM, sRS = 8, 20, 24, 25
QV, NM, S0, S1, P, KF, VF, ET, T_, L_ = 16, 48, 64, 96, 112, 176, 200, 224, 232, 236
AK, AV, DK, DV, CK, LX, RLV = 240, 242, 246, 249, 224, 253, 254
AF, DA, DB, DH, AWA, AWB, AH, LXB, LX8, LXB2 = 16, 40, 44, 46, 192, 200, 204, 207, 208, 209
CSCALE = math.log2(math.e) / math.sqrt(192.0)
THR = 2.0 ** 30
SPIN = 1 << 18

def srdn(b): return f"s[{b}:{b+3}]"
class E(list):
    def __call__(self, *x):
        for y in x:
            if isinstance(y, list): self.extend(y)
            else: self.append(y)
        return self
lab = [0]
def newlab(p):
    lab[0] += 1; return f"F_{p}{lab[0]}"
def wave0(body):
    l = newlab("W")
    return E()(f"s_cmp_lg_u32 s{sWAVE}, 0", f"s_cbranch_scc1 {l}", body, f"{l}:")

def poll(phase, mask, soff, wide=False, vaddr="v2"):
    l, d = newlab("P"), newlab("D")
    e = E()
    e(f"s_mov_b32 exec_lo, {mask[0]}", f"s_mov_b32 exec_hi, {mask[1]}", f"s_add_u32 s{sTMP}, s{sT}, {phase}", f"s_mov_b32 s{sU}, 0")
    if wide:
        e(f"{l}:", f"buffer_load_dwordx4 v[4:7], {vaddr}, {srdn(sFL)}, {soff} offen sc1", "s_waitcnt vmcnt(0)")
        for r in range(4): e(f"v_subrev_u32 v{4+r}, s{sTMP}, v{4+r}")
        e("v_max3_u32 v4, v4, v5, v6", "v_max_u32 v4, v4, v7")
        e(f"v_cmp_lt_u32 vcc, {4-phase}, v4", f"s_add_u32 s{sU}, s{sU}, 1", f"s_cmp_gt_u32 s{sU}, {SPIN}", f"s_cbranch_scc1 {d}", f"s_cbranch_vccnz {l}")
    elif X("poll1"):
        e(f"{l}:", f"buffer_load_dword v4, {vaddr}, {srdn(sFL)}, {soff} offen sc1", "s_waitcnt vmcnt(0)", f"v_subrev_u32 v4, s{sTMP}, v4")
        e(f"v_cmp_lt_u32 vcc, {4-phase}, v4", f"s_add_u32 s{sU}, s{sU}, 1", f"s_cmp_gt_u32 s{sU}, {SPIN}", f"s_cbranch_scc1 {d}", f"s_cbranch_vccnz {l}")
    else:
        ld = lambda r: f"buffer_load_dword v{r}, {vaddr}, {srdn(sFL)}, {soff} offen sc1"
        e(ld(8), "s_sleep 4", ld(9), "s_sleep 4", ld(10), f"{l}:")
        for r in (8, 9, 10):
            e("s_waitcnt vmcnt(2)", f"v_subrev_u32 v11, s{sTMP}, v{r}", f"v_cmp_lt_u32 vcc, {4-phase}, v11", f"s_add_u32 s{sU}, s{sU}, 1", ld(r), "s_nop 0", f"s_cbranch_vccz {d}")
        e(f"s_cmp_le_u32 s{sU}, {SPIN}", f"s_cbranch_scc1 {l}")
    e(f"{d}:", "s_mov_b64 exec, -1")
    return e
def signal(phase):
    return E()(f"s_add_u32 s{sTMP}, s{sT}, {phase}", f"s_lshl_b32 s{sU}, s{sQB}, 5", f"s_add_u32 s{sU}, s{sU}, s{sHEAD}", f"s_lshl_b32 s{sU}, s{sU}, 2",
               f"v_mov_b32 v4, s{sTMP}", "v_mov_b32 v5, 0", "s_mov_b64 exec, 1",
               f"buffer_store_dword v4, v5, {srdn(sFL)}, s{sU} offen sc1", "s_mov_b64 exec, -1")

def qacc(ds, tb, qt):
    n = (ds*2 + tb)*4 + qt
    return R("a", 4*n) if n < 24 else R("v", 48 + 4*(n-24))
def hacc(tt, qt): return R("v", 144 + 4*(tt*4 + qt))
def BF(s, kk, qt): return a(96 + 32*(s % 3) + 16*kk + 4*qt, 4)
def ldB(s): return [f"buffer_load_dwordx4 {BF(s,kk,qt)}, v{LXB2 if kk else LXB}, {srdn(sXF_SRD)}, s{sX} offen offset:{1024*qt} sc1 ; @B{s}" for kk in range(2) for qt in range(4)]
advX = [f"s_add_u32 s{sX}, s{sX}, 8192"]
advW = [f"s_add_u32 s{sWq}, s{sWq}, 786432", f"s_add_u32 s{sW1}, s{sW1}, 196608"]
def dmaW(u):
    if u % 2 == 0: return [f"buffer_load_dwordx4 v{DA+t}, {srdn(sWQ_SRD)}, s{sWq} offen offset:{1024*t} lds ; @W{u}" for t in range(4)]
    return [f"buffer_load_dwordx4 v{DB+t}, {srdn(sWQ_SRD)}, s{sWq} offen offset:{1024*t} lds ; @W{u}" for t in range(2)] + \
           [f"buffer_load_dwordx4 v{DH+t}, {srdn(sW1_SRD)}, s{sW1} offen offset:{1024*(t+2)} lds ; @W{u}" for t in range(2)]
TCH, TCD = 210, 212
sTq, sT1 = 64, 65
def touch(): return [f"buffer_load_dword v{TCD}, v{TCH}, {srdn(sWQ_SRD)}, s{sTq} offen ; @T", f"buffer_load_dword v{TCD}, v{TCH+1}, {srdn(sW1_SRD)}, s{sT1} offen offset:3072 ; @T"]
def TPS(): return [int(x[3:]) for x in EXP[0].split() if x.startswith("tps")] or ([] if X("notps") else [3])
def advT_():
    n = 1 if TPS() else 3
    return [f"s_add_u32 s{sTq}, s{sTq}, {n*786432}", f"s_add_u32 s{sT1}, s{sT1}, {n*196608}"]
def touch_addr(nst):
    return E()("v_mul_u32_u24 v1, 171, v0", "v_lshrrev_b32 v1, 9, v1", "v_mul_u32_u24 v2, 3, v1", "v_sub_u32 v2, v0, v2",
               "v_lshrrev_b32 v3, 1, v1", "v_and_b32 v1, 1, v1", "v_lshl_add_u32 v1, v3, 6, v1", f"v_add_u32 v1, s66, v1",
               "v_mul_lo_u32 v1, v1, s67", "v_lshl_add_u32 v1, v2, 7, v1", f"v_cmp_gt_u32 vcc, {6*nst}, v0", "v_bfrev_b32 v8, 1",
               "v_lshrrev_b32 v3, 2, v0", "v_bfe_u32 v2, v0, 1, 1", f"v_cndmask_b32 v{TCH}, v8, v1, vcc",
               "v_lshl_add_u32 v3, v3, 6, v2", "v_add_u32 v3, s66, v3", f"v_cmp_gt_u32 vcc, {4*nst}, v0", "v_mul_u32_u24 v3, 3072, v3",
               "v_and_b32 v2, 1, v0", "v_mul_u32_u24 v2, 92, v2", "v_add_u32 v3, v3, v2", f"v_cndmask_b32 v{TCH+1}, v8, v3, vcc")
def m0W(u): return f"s_mov_b32 m0, s{sMW + u % 6}"
def qorder(s): return list(range(8)) + ([12, 13, 14, 8, 9, 10, 11] if s == 9 and X("hfirst") else list(range(8, 15)))
def qrd(s, pos, kk, uu):
    T = qorder(s)[pos]
    dst = v(AF + 8*(pos % 3) + 4*kk + 2*uu, 2)
    if T < 8: return f"ds_read_b64_tr_b16 {dst}, v{AWA + T} offset:{(s % 3)*16384 + kk*8192 + uu*1024}"
    reg = AWB + T - 8 if T < 12 else AH + T - 12
    return f"ds_read_b64_tr_b16 {dst}, v{reg} offset:{(s % 3)*16384 + kk*8192 + uu*512}"
def qsub(u, last=20, extra=None, vmw=None):
    extra = extra or {}
    s = u >> 1; TL = list(range(8)) if u % 2 == 0 else list(range(8, 15)); nT = len(TL)
    L = []
    lb = ldB(s + 2) if (u % 2 == 0 and s + 2 < last//2) else []
    dw = dmaW(u + 5) if u + 5 < last else []
    for ti, T in enumerate(TL):
        for p in range(4):
            qt = p if T % 2 == 0 else 3 - p
            TT = qorder(s)[T]
            acc = (qacc(TT >> 1, TT & 1, qt) if TT < 12 else hacc(TT-12, qt))(4)
            for kk in range(2):
                g = 2*p + kk; gi = 8*ti + g
                L.append(f"{MF} {acc}, {v(AF + 8*(T % 3) + 4*kk, 4)}, {BF(s, kk, qt)}, {acc}")
                s2, T2 = s + (T+2)//15, (T+2) % 15
                if g < 4:
                    if 2*s2 < last: L.append(qrd(s2, T2, g >> 1, g & 1))
                    if g == 3:
                        left = 15*(last//2) - 1 - (15*s + T)
                        if left >= 1: L.append(f"s_waitcnt lgkmcnt({4 if left >= 2 else 0})")
                if lb and ti < 4 and g in (4, 6): L.append(lb[2*ti + (g-4)//2])
                if lb and ti == 4 and g == 4: L += advX
                if u % 6 == 2 and last > 20 and X("kvq"):
                    if ti == 4 and g == 5: L += [f"s_cmp_eq_u32 s{sCNT}, 1", "s_cselect_b32 s66, 0, s3"]
                    if ti == 4 and g == 6: L.append(f"buffer_load_dword v{TCD}, v{KVT}, {srdn(sK_SRD)}, s66 offen ; @T")
                    if ti == 5 and g == 4: L.append(f"buffer_load_dword v{TCD}, v{KVT}, {srdn(sV_SRD)}, s66 offen ; @T")
                if u % (2 if TPS() else 6) == 0 and last > 20 and not X("notouch"):
                    if ti == 4 and g == 6: L.append(touch()[0])
                    if ti == 5 and g == 4: L.append(touch()[1])
                    if ti == 5 and g == 5: L += advT_()
                if ti == nT-3 and g == 6 and dw: L.append(m0W(u+5))
                if ti == nT-3 and g == 7 and vmw is not None: L += [f"s_waitcnt vmcnt({vmw})", "s_barrier"]
                if dw and ti >= nT-2 and g in (4, 6): L.append(dw[2*(ti-nT+2) + (g-4)//2])
                if dw and u % 2 == 0 and ti == nT-1 and g == 7: L += advW
                L += extra.get(gi, [])
    return L
def qcounts():
    q = ["B1"]*8 + (["W2"]*4 + ["W3"]*4 + ["W4"]*4 if X("lateW") else [])
    out = {}; first = {}
    for u in range(18):
        for l in qsub(u, last=40, vmw="?"):
            if "vmcnt(?)" in l:
                need = ["W%d" % (u+1)] + (["B%d" % ((u+1)//2)] if u % 2 else [])
                idx = [i for i, x in enumerate(q) if x in need]
                if idx:
                    c = len(q) - 1 - max(idx)
                    if u < 6: first[u] = c
                    else: out[u % 6] = min(out.get(u % 6, 63), c)
            if l.startswith("buffer_"): q.append(re.search(r"@(\S+)", l).group(1))
    return out, {u: c for u, c in first.items() if c < out[u]}, q

def fill(L, ops):
    gaps = []
    for l in L:
        if l.startswith(MF) or not gaps: gaps.append([l])
        else: gaps[-1].append(l)
    ops = list(ops)
    for gi, g in enumerate(gaps):
        rest = [x for x in g[1:] if not x.endswith(":")]
        ds = any(x.startswith("ds_") for x in rest); vm = any(x.startswith("buffer_") for x in rest)
        nv = sum(x.startswith("v_") for x in rest); ns = len(rest) - nv - ds - vm
        if vm or "s_barrier" in rest: continue
        free = (1 - nv - ns) if ds else (2 - nv - max(0, ns - 1))
        while ops and ops[0][0] <= gi and free > 0:
            if ops[0][1] == "m":
                if ds or rest or len(g) > 1: break
                g.append(ops.pop(0)[2]); free = 0
            else: g.append(ops.pop(0)[2]); free -= 1
    return [x for g in gaps for x in g] , [x[2] for x in ops]
def hops():
    o = []
    for tt in range(3):
        for p in range(4):
            qt = p if (8 + tt) % 2 == 0 else 3 - p
            h = hacc(tt, qt); d = 2 + 2*((4*tt + p) % 6); g0 = 8*tt + 2*p + 1 + 6
            o += [(g0, "a", f"v_cvt_pk_bf16_f32 v{d}, {h(1,0)}, {h(1,1)}"), (g0, "a", f"v_cvt_pk_bf16_f32 v{d+1}, {h(1,2)}, {h(1,3)}"),
                  (g0, "a", f"v_pk_max_i16 v{d}, v{d}, 0"), (g0, "a", f"v_pk_max_i16 v{d+1}, v{d+1}, 0"),
                  (g0, "m", f"buffer_store_dwordx2 {v(d,2)}, v{LX8}, {srdn(sOF_SRD)}, s{sH[tt]} offen offset:{1024*qt} sc1")][:4 if X("x_nohst") else 5]
    return o
def convert():
    e = E()("s_nop 7")
    early = X("earlyk")
    k = 0
    late = X("lateh")
    if late: e(f"v_mov_b32 v14, v{LX8}")
    for tt in range(3 if not X("hfirst") else 0):
        for qt in range(4):
            h = hacc(tt, qt); d = 144 + 2*k if late else 2 + 2*(k % 6); k += 1
            e(f"v_cvt_pk_bf16_f32 v{d}, {h(1,0)}, {h(1,1)}", f"v_cvt_pk_bf16_f32 v{d+1}, {h(1,2)}, {h(1,3)}",
              f"v_pk_max_i16 v{d}, v{d}, 0", f"v_pk_max_i16 v{d+1}, v{d+1}, 0")
            if not late and not X("x_nohst"): e(f"buffer_store_dwordx2 {v(d,2)}, v{LX8}, {srdn(sOF_SRD)}, s{sH[tt]} offen offset:{1024*qt} sc1")
    if early:
        e("s_waitcnt vmcnt(@K0)", "s_barrier", [rdK(0, 0, ds) for ds in range(6)], [rdK(0, 1, ds, VF) for ds in range(6)])
        m, d = kvgroup("V", 1); e(m, d)
        m, d = kvgroup("K", 3); e(m, d[:2])
    for ds in (3, 4, 5, 0, 1, 2):
        dsts = []
        for qt in range(4):
            f = ds*4 + qt
            Xr, Yr = qacc(ds, 0, qt), qacc(ds, 1, qt)
            if Xr.f == "a":
                tx, ty = R("v", (192 if late else 144) + 8*qt), R("v", (196 if late else 148) + 8*qt)
                for r in range(4): e(f"v_accvgpr_read_b32 {tx(1,r)}, {Xr(1,r)}")
                for r in range(4): e(f"v_accvgpr_read_b32 {ty(1,r)}, {Yr(1,r)}")
                Xr, Yr = tx, ty
            d = QV + 4*(f-16) if f >= 16 else (224 if early else 176) + 4*qt
            dsts.append(d)
            for Z in (Xr, Yr):
                if X("nopk"):
                    for r in range(4): e(f"v_mul_f32 {Z(1,r)}, s{sC}, {Z(1,r)}")
                else:
                    for r in (0, 2): e(f"v_pk_mul_f32 {Z(2,r)}, {Z(2,r)}, s[{sC}:{sC+1}]")
            e(f"v_cvt_pk_bf16_f32 v{d}, {Xr(1,0)}, {Xr(1,1)}", f"v_cvt_pk_bf16_f32 v{d+1}, {Xr(1,2)}, {Xr(1,3)}",
              f"v_cvt_pk_bf16_f32 v{d+2}, {Yr(1,0)}, {Yr(1,1)}", f"v_cvt_pk_bf16_f32 v{d+3}, {Yr(1,2)}, {Yr(1,3)}")
        e("s_mov_b32 exec_lo, 0")
        for d in dsts: e(f"v_swap_b32 v{d}, v{d+2}", f"v_swap_b32 v{d+1}, v{d+3}")
        e("s_mov_b32 exec_lo, -1")
        if ds < 4:
            for qt in range(4):
                for r in range(4): e(f"v_accvgpr_write_b32 a{192 + 4*(ds*4+qt) + r}, v{dsts[qt]+r}")
    return e

def hstores(): return [f"buffer_store_dwordx2 {v(144 + 2*k, 2)}, v14, {srdn(sOF_SRD)}, s{sH[k//4]} offen offset:{1024*(k%4)} sc1 ; @H" for k in range(12)]

def Qf(f): return a(192 + 4*f, 4) if f < 16 else v(QV + 4*(f-16), 4)
def Oacc(dt, qt): return (dt*4 + qt)*4
def dmaK(t): return f"buffer_load_dwordx4 v{DK+t}, {srdn(sK_SRD)}, s{sKo} offen offset:{1024*t} lds"
def dmaV(t): return f"buffer_load_dwordx4 v{DV+t}, {srdn(sV_SRD)}, s{sVo} offen offset:{1024*t} lds"
def kvgroup(kind, j):
    so = sKo if kind == "K" else sVo
    return [f"s_mov_b32 m0, s{(sMK if kind=='K' else sMV) + j}", f"s_mov_b32 s{so}, {12288*j}"], [(dmaK(t) if kind == "K" else dmaV(t)) + f" ; @{kind}{j}" for t in range(3)]
def rdK(slot, kt, ds, dst=KF): return f"ds_read_b128 {v(dst+4*ds,4)}, v{AK+(ds&1)} offset:{slot*12288 + kt*6144 + (ds>>1)*128}"
def Pb(t): return P + 16*(t % 4)
def rdVp(m2, part, dst=VF):
    return [f"ds_read_b64_tr_b16 {v(dst + 8*dl + 4*tl + 2*u, 2)}, v{AV + ((3*part+dl) & 3)} offset:{((m2+tl) % 4)*12288 + u*6144 + ((3*part+dl) >> 2)*128}"
            for dl in range(3) for tl in range(2) for u in range(2)]
def qk(dst, src=KF, czero=False):
    o = []
    for qt in range(4):
        for k in range(6):
            ds = 5 - k if (qt & 1 and X("qsnake")) else k
            d = v(dst+4*qt, 4)
            c = ("0" if czero else v(NM+4*qt, 4)) if k == 0 else d
            o.append(f"{MF} {d}, {v(src+4*ds,4)}, {Qf(ds*4+qt)}, {c}")
    return o
def pv(m2, part, czero=False, src=VF):
    o = []
    for dl in range(3):
        for p in range(4):
            qt = p if (3*part + dl) % 2 == 0 else 3 - p
            acc = a(Oacc(3*part+dl, qt), 4)
            for tl in range(2):
                o.append(f"{MF} {acc}, {v(src + 8*dl + 4*tl, 4)}, {v(Pb(m2+tl) + 4*qt, 4)}, {'0' if czero and tl == 0 else acc}")
    return o
def sm(src, qts, Pb, kt):
    Ex, Sx = [], []
    k = 0
    for qt in qts:
        for pr in range(2):
            t0 = ET + 2*k; t1 = t0 + 1; k += 1
            Ex += [f"v_exp_f32 v{t0}, v{src+4*qt+2*pr}", f"v_exp_f32 v{t1}, v{src+4*qt+2*pr+1}"]
            n = len(Ex)
            if kt == 0 and pr == 0: Sx.append((n, f"v_add_f32 v{T_+qt}, v{t0}, v{t1}"))
            else: Sx += [(n-1, f"v_add_f32 v{T_+qt}, v{T_+qt}, v{t0}"), (n, f"v_add_f32 v{T_+qt}, v{T_+qt}, v{t1}")]
            Sx.append((n, f"v_cvt_pk_bf16_f32 v{Pb+4*qt+2*kt+pr}, v{t0}, v{t1}"))
    return Ex, Sx
def quarter(mf, pat, Ex, Sx, D, B, salu):
    assert len(pat) == len(mf) == 24, (pat, len(pat))
    out = []; ei = si = di = bi = 0
    for gi, m in enumerate(mf):
        out.append(m); ty = pat[gi]
        sc = salu.get(gi, [])
        def take(n):
            nonlocal si
            r = []
            while n > 0 and si < len(Sx) and Sx[si][0] <= ei: r.append(Sx[si][1]); si += 1; n -= 1
            return r
        if ty == "e": out += sc + [Ex[ei]]; ei += 1
        elif ty == "d": out += [D[di]] + take(1) + sc; di += 1
        elif ty == "a": out += sc + take(2)
        elif ty == "1": out += sc + take(1)
        elif ty == "b": out += sc + [B[bi]]; bi += 1
        elif ty == "-": out += sc
        else: raise ValueError(ty)
    assert ei == len(Ex) and si == len(Sx) and di == len(D) and bi == len(B), (pat, ei, len(Ex), si, len(Sx), di, len(D), bi, len(B))
    return out
P1 = "ee" + "de"*6 + "d"*6 + "a1b-"
P2 = "de"*6 + "ee" + "baabaa" + "----"
P3 = "ed"*8 + "dddd" + "b---"
P4 = "ebeb" + "de"*6 + "aaa" + "-----"
CHK = [f"v_max3_f32 v{CK}, v{T_}, v{T_+1}, v{T_+2}", f"v_max_f32 v{CK}, v{CK}, v{T_+3}", f"v_cmp_lt_f32 vcc, s{sTHR}, v{CK}"]
LADD = [f"v_add_f32 v{L_+q}, v{L_+q}, v{T_+q}" for q in range(4)]
sites = []
def callsite(par):
    k = len(sites); sites.append(par)
    return [f"s_cbranch_vccnz F_TR{k}", f"F_BK{k}:"]
def step(i, vmw=12, tail=(), rl=None):
    par, slot = i & 1, i % 4
    S0n = S0 + 16*(1-par); Pc = Pb(i); Pn = Pb(i+1)
    m2 = i-1 if par else i-2
    p0 = 0 if par else 2
    nopv = i == 0; cz = i in (1, 2)
    mK = lambda j: f"s_mov_b32 m0, s{sMK + j % 4}"
    mV = lambda j: f"s_mov_b32 m0, s{sMV + j % 4}"
    aK = f"s_add_u32 s{sKo}, s{sKo}, 12288"; aV = f"s_add_u32 s{sVo}, s{sVo}, 12288"
    if par:
        B1 = [dmaV(2) + f" ; @V{i+1}"]; B2 = [dmaV(0) + f" ; @V{i+2}", dmaV(1) + f" ; @V{i+2}"]; B3 = [dmaV(2) + f" ; @V{i+2}"]
        B4 = [dmaK(0) + f" ; @K{i+4}", dmaK(1) + f" ; @K{i+4}"]; m2_, a2, a3, m4 = mV(i+2), aV, aV, mK(i+4)
    else:
        B1 = [dmaK(2) + f" ; @K{i+3}"]; B2 = [dmaK(0) + f" ; @K{i+4}", dmaK(1) + f" ; @K{i+4}"]; B3 = [dmaK(2) + f" ; @K{i+4}"]
        B4 = [dmaV(0) + f" ; @V{i+2}", dmaV(1) + f" ; @V{i+2}"]; m2_, a2, a3, m4 = mK(i+4), aK, aK, mV(i+2)
    L = []
    def emit(mf, pat, Ex, Sx, D, B, sal):
        if mf is None:
            sc = [x for g in sorted(sal) for x in sal[g] if not x.startswith("s_waitcnt")]
            hs = hstores()[6*emit.n:6*emit.n+6] if X("lateh") else []; emit.n += 1
            mixed = []
            for k, x in enumerate(Ex):
                mixed.append(x)
                if k < len(hs): mixed.append(hs[k])
            return D + sc + ["s_nop 3"] + B + mixed + [x for _, x in Sx] + ["s_waitcnt lgkmcnt(0)"]
        return quarter(mf, pat, Ex, Sx, D, B, sal)
    emit.n = 0
    Ex, Sx = sm(S1, [2, 3], Pc, 1)
    D1 = rdVp(m2, p0) if not nopv else []
    L += quarter(qk(S0n), P1 if D1 else P1.replace("d", "1"), Ex, Sx + [(8, x) for x in CHK], D1, B1, {23: ["s_waitcnt lgkmcnt(6)"]} if D1 else {})
    L += callsite(i % 4)
    Ex, Sx = sm(S0n, [0, 1], Pn, 0)
    pat = P2; D = [rdK((slot+1) % 4, 1, ds) for ds in range(6)]; B = B2
    sal = {3: [a2], 7: ["s_waitcnt lgkmcnt(4)"], 13: [m2_], 23: ["s_waitcnt lgkmcnt(0)"]}
    if rl == "dma":
        pat = P2[:20] + "b---"; B = B + [rl_dma() + " ; @R"]
        sal.update({18: [f"s_cmp_lt_u32 s{sCNT}, 9"], 19: [f"s_mov_b32 m0, s{sRM}"], 21: [f"s_cselect_b32 s{sTMP}, 128, s3", f"s_cselect_b32 s{sRI}, 1024, 0"],
                    22: [m2_, f"s_add_u32 s{sRS}, s{sRS}, s{sTMP}"], 23: ["s_waitcnt lgkmcnt(0)", f"s_add_u32 s{sRM}, s{sRM}, s{sRI}"]})
    if rl in ("tk", "tv") and X("kvt2"):
        pat = P2[:20] + "bb--"
        B = B + [f"buffer_load_dword v1, v{KVT}, {srdn(x)}, s{sKT} offen ; @T" for x in (sK_SRD, sV_SRD)]
        sal[22] = [f"s_add_u32 s{sKT}, s{sKT}, 24576"]
    elif rl in ("tk", "tv"):
        pat = P2[:20] + "b---"
        B = B + [f"buffer_load_dword v1, v{KVT}, {srdn(sK_SRD if rl == 'tk' else sV_SRD)}, s{sKT} offen ; @T"]
        if rl == "tk": sal[22] = [f"s_add_u32 s{sKT}, s{sKT}, 49152"]
    if rl == "out":
        pat = P2[:20] + "dad-"; D = D + [rl_rd(0), rl_rd(1)]; sal[23] = ["s_waitcnt lgkmcnt(2)"]
        xs = [(8, f"v_xor_b32 v{RTD+2}, s{sRX}, v{RTV}"), (8, f"v_add_u32 v{RTD+2}, s{sRU}, v{RTD+2}")]
    if rl == "out":
        q = quarter(pv(m2, p0, cz), pat.replace("dad-", "d-d-"), Ex, [(0, x) for x in LADD] + Sx, D, B, sal)
        k = q.index(rl_rd(0)); L += q[:k+2] + [x for _, x in xs] + q[k+2:]
    else: L += emit(None if nopv else pv(m2, p0, cz), pat, Ex, [(0, x) for x in LADD] + Sx, D, B, sal)
    Ex, Sx = sm(S0n, [2, 3], Pn, 0)
    D3 = rdVp(m2, p0+1) if not nopv else []
    sal = {21: [a3], 23: [f"s_waitcnt vmcnt({vmw}) lgkmcnt(0)", "s_barrier"]}
    L += quarter(qk(S1), P3 if D3 else P3.replace("d", "1"), Ex, Sx, D3, B3, sal)
    Ex, Sx = sm(S1, [0, 1], Pn, 1)
    sal = {0: [m4], 22: ["s_waitcnt lgkmcnt(0)"]}
    pat = P4; B = B4
    tail = list(tail)
    if tail:
        sal[19] = tail[:1]; sal[20] = tail[1:2]; sal[23] = tail[2:]
    if rl == "out":
        pat = P4[:19] + "b1---"; B = B + [rl_st() + " ; @S"]
        sal.update({5: [f"s_cmp_lt_u32 s{sCNT}, 10"], 7: [f"s_cselect_b32 s{sRJ}, 1024, 0"], 9: [f"s_sub_u32 s{sTMP}, s{sCNT}, 1"],
                    11: [f"s_cmp_lt_u32 s{sTMP}, 10"], 13: [f"s_cselect_b32 s{sTMP}, s{sRO}, s3"], 15: [f"s_cselect_b32 s{sRI}, 4096, 0"],
                    16: [f"s_add_u32 s{sRO}, s{sRO}, s{sRI}"], 17: [f"s_lshr_b32 s{sRI}, s{sRI}, 10"], 18: [f"s_add_u32 s{sRR}, s{sRR}, s{sRI}"],
                    20: [f"s_cmp_gt_u32 s{sRR}, 9"], 21: [f"s_cselect_b32 s{sRI}, {WF160 - 10240}, 0", f"s_cselect_b32 s{sTMP}, 10, 0"],
                    22: ["s_waitcnt lgkmcnt(0)", f"s_add_u32 s{sRO}, s{sRO}, s{sRI}"], 23: [f"s_sub_u32 s{sRR}, s{sRR}, s{sTMP}"]})
        Sx = Sx + [(8, f"v_add_u32 v{RTV}, s{sRJ}, v{RTV}")]
    L += emit(None if nopv else pv(m2, p0+1, cz), pat, Ex, Sx, [rdK((slot+2) % 4, 0, ds) for ds in range(6)], B, sal)
    return L
sRJ, sKT, KVT = 59, 58, 252
def kv_touch_addr(D):
    return E()(f"s_lshl_b32 s66, s{sQB}, 2", f"s_add_u32 s66, s66, s{sWAVE}", f"s_mul_i32 s66, s66, {768 if X('kvt2') else 1536}", "v_lshlrev_b32 v3, 7, v0", "v_add_u32 v3, s66, v3",
               f"v_cmp_gt_u32 vcc, {6 if X('kvt2') else 12}, v0", "v_bfrev_b32 v2, 1", "s_nop 0", f"v_cndmask_b32 v{KVT}, v2, v3, vcc")
def xlane(op, dst, tmp):
    L = []
    for sw in ("v_permlane16_swap_b32", "v_permlane32_swap_b32"):
        L += [f"v_mov_b32 v{tmp+qt}, v{dst+qt}" for qt in range(4)] + ["s_nop 1"]
        L += [f"{sw} v{dst+qt}, v{tmp+qt}" for qt in range(4)]
        L += [f"{op} v{dst+qt}, v{dst+qt}, v{tmp+qt}" for qt in range(4)]
    return L
def rowmax(dst, srcs, tmp):
    L = []
    for qt in range(4):
        r = srcs(qt); d = dst + qt
        L += [f"v_max3_f32 v{d}, v{r[0]}, v{r[1]}, v{r[2]}", f"v_max3_f32 v{d}, v{d}, v{r[3]}, v{r[4]}",
              f"v_max3_f32 v{d}, v{d}, v{r[5]}, v{r[6]}", f"v_max_f32 v{d}, v{d}, v{r[7]}"]
    return L + xlane("v_max_f32", dst, tmp)
def init():
    e = E()
    if not X("earlyk"):
        e("s_waitcnt vmcnt(@K0)", "s_barrier", fstamp(3, "conv"))
        for ds in range(6): e(rdK(0, 0, ds))
        for ds in range(6): e(rdK(0, 1, ds, VF))
        m, d = kvgroup("V", 1); e(m, d)
        m, d = kvgroup("K", 3); e(m, d[:2])
    e(f"s_mov_b32 s{sKT}, {4*12288}")
    NI = ([int(x[3:]) for x in EXP[0].split() if x.startswith("kvi")] or [4 if X("kvt2") else 2])[0]
    for _ in range(NI):
        e(f"buffer_load_dword v1, v{KVT}, {srdn(sK_SRD)}, s{sKT} offen ; @T", f"buffer_load_dword v1, v{KVT}, {srdn(sV_SRD)}, s{sKT} offen ; @T", f"s_add_u32 s{sKT}, s{sKT}, {24576 if X('kvt2') else 49152}")
    e(f"s_mov_b32 s{sVo}, {2*12288}")
    for q in range(4): e(f"v_mov_b32 v{L_+q}, 0")
    e(fstamp(4, "conv"), "s_waitcnt lgkmcnt(6)", qk(S0, KF, True), "s_waitcnt vmcnt(@K1) lgkmcnt(0)", "s_barrier", fstamp(5, "conv"))
    m = qk(S1, VF, True)
    rd = [rdK(1, 0, ds) for ds in range(6)]
    for i, x in enumerate(m):
        e(x)
        if i < 6: e(rd[i])
    e("s_nop 7", fstamp(6, "conv"))
    D, TM = 2, 6
    e(rowmax(D, lambda qt: [S0+4*qt+r for r in range(4)] + [S1+4*qt+r for r in range(4)], TM))
    for qt in range(4): e(f"v_ceil_f32 v{D+qt}, v{D+qt}")
    for qt in range(4):
        for r in range(4):
            e(f"v_sub_f32 v{NM+4*qt+r}, 0, v{D+qt}", f"v_sub_f32 v{S0+4*qt+r}, v{S0+4*qt+r}, v{D+qt}", f"v_sub_f32 v{S1+4*qt+r}, v{S1+4*qt+r}, v{D+qt}")
    for src, qts, kt in ((S0, [0, 1], 0), (S0, [2, 3], 0), (S1, [0, 1], 1)):
        Ex, Sx = sm(src, qts, Pb(0), kt)
        e(Ex, [x for _, x in Sx])
    e("s_waitcnt lgkmcnt(0)")
    return e
def slow(k):
    par = k & 1
    S0c = S0 + 16*par; S0n = S0 + 16*(1-par)
    e = E()(f"F_SLOW{k}:", "s_nop 7", "s_nop 7")
    D, TM = 2, 6
    e(rowmax(D, lambda qt: [S0c+4*qt+r for r in range(4)] + [S1+4*qt+r for r in range(4)], TM))
    for qt in range(4): e(f"v_max_f32 v{D+qt}, 0, v{D+qt}", f"v_ceil_f32 v{D+qt}, v{D+qt}", f"v_sub_f32 v{TM+qt}, 0, v{D+qt}", f"v_cvt_i32_f32 v{TM+qt}, v{TM+qt}")
    for qt in range(4):
        e(f"v_ldexp_f32 v{L_+qt}, v{L_+qt}, v{TM+qt}")
        for base in (NM, S0c, S1, S0n):
            for r in range(4): e(f"v_sub_f32 v{base+4*qt+r}, v{base+4*qt+r}, v{D+qt}")
    for t in ([k-1] if par else [k-1, k-2]):
        for qt in range(4):
            for r in range(4):
                p = Pb(t) + 4*qt + r
                e(f"v_lshlrev_b32 v10, 16, v{p}", f"v_and_b32 v11, 0xffff0000, v{p}", f"v_ldexp_f32 v10, v10, v{TM+qt}", f"v_ldexp_f32 v11, v11, v{TM+qt}",
                  f"v_cvt_pk_bf16_f32 v{p}, v10, v11")
    for dt in range(12):
        for qt in range(4):
            b = Oacc(dt, qt)
            for r in range(2):
                e(f"v_accvgpr_read_b32 v10, a{b+2*r}", f"v_accvgpr_read_b32 v11, a{b+2*r+1}", f"v_ldexp_f32 v10, v10, v{TM+qt}", f"v_ldexp_f32 v11, v11, v{TM+qt}",
                  f"v_accvgpr_write_b32 a{b+2*r}, v10", f"v_accvgpr_write_b32 a{b+2*r+1}, v11")
    for src, qts, kt in ((S0c, [0, 1], 0), (S0c, [2, 3], 0), (S1, [0, 1], 1), (S1, [2, 3], 1)):
        Ex, Sx = sm(src, qts, Pb(k), kt)
        e(Ex, [x for _, x in Sx])
    e("s_nop 1", f"s_setpc_b64 s[{sRET}:{sRET+1}]")
    return e

def relayout_src():
    return E()("s_cmp_lt_u32 s2, 192", f"s_cselect_b32 s{sRSRC}, s{pWO}, s{pW2}", f"s_cselect_b32 s{sRSRC+1}, s{pWO+1}, s{pW2+1}", "s_cselect_b32 s66, 0, 192",
               "s_sub_u32 s66, s2, s66", "s_mul_i32 s66, s66, 40960", f"s_add_u32 s{sRSRC}, s{sRSRC}, s66", f"s_addc_u32 s{sRSRC+1}, s{sRSRC+1}, 0",
               "s_cmp_lt_u32 s2, 240", f"s_cselect_b32 s{sRSRC+2}, 40960, 0", f"s_mov_b32 s{sRSRC+3}, 0x20000")
def relayout_dst():
    return E()("s_mul_i32 s66, s2, 10240", f"s_add_u32 s67, s66, {hx(WS_WF)}", f"s_sub_u32 s{sRDST+2}, {4*WF160}, s66",
               "s_cmp_lt_u32 s2, 240", f"s_cselect_b32 s{sRDST+2}, s{sRDST+2}, 0", f"s_cselect_b32 s67, s67, {hx(WS_WF)}",
               f"s_add_u32 s{sRDST}, s{pWS}, s67", f"s_addc_u32 s{sRDST+1}, s{pWS+1}, 0", f"s_mov_b32 s{sRDST+3}, 0x20000",
               f"s_mul_i32 s{sRM}, s{sWAVE}, 10240", f"s_add_u32 s{sRM}, s{sRM}, {ST}", f"s_mov_b32 s{sRS}, 0",
               f"s_lshl_b32 s{sRO}, s{sWAVE}, 10", f"s_mov_b32 s{sRR}, s{sWAVE}",
               "s_cmp_lt_u32 s2, 192", f"s_cselect_b32 s{sRX}, 0, 64", f"s_mov_b32 s{sRU}, 512", f"s_cselect_b32 s{sRU}, 20480, s{sRU}")
RTV, RTD = 255, 12
sRO, sRR, sRI = 26, 27, 62
def relayout_vaddr():
    return E()(f"s_mov_b32 s67, {ST - 1024}", _relayout_vaddr())
def _relayout_vaddr():
    return E()("v_lshrrev_b32 v1, 2, v0", "v_and_b32 v1, 7, v1", "v_lshlrev_b32 v2, 7, v1", "v_lshrrev_b32 v3, 5, v0", "v_mul_u32_u24 v3, 10240, v3", "v_add_u32 v2, v2, v3",
               "v_and_b32 v3, 3, v0", "v_lshl_add_u32 v2, v3, 3, v2", f"v_add_u32 v2, {ST - 1024}, v2", "v_lshrrev_b32 v1, 1, v1", "v_lshlrev_b32 v1, 5, v1",
               f"s_lshl_b32 s66, s{sWAVE}, 5", "v_xor_b32 v1, s66, v1", "v_add_u32 v4, v1, v2",
               "v_lshrrev_b32 v1, 4, v0", "v_mul_u32_u24 v1, 10240, v1", "v_bfe_u32 v2, v0, 2, 2", "v_lshl_add_u32 v1, v2, 7, v1", "v_lshl_add_u32 v1, v3, 3, v1",
               "v_lshrrev_b32 v2, 1, v2", "v_lshlrev_b32 v2, 5, v2", "v_xor_b32 v2, s66, v2", f"v_add3_u32 v1, v1, v2, s67",
               "s_cmp_lt_u32 s2, 192", "s_cselect_b64 vcc, -1, 0", f"v_cndmask_b32 v{RTV}, v1, v4, vcc")
def rl_dma(): return f"buffer_load_dwordx4 v{RLV}, {srdn(sRSRC)}, s{sRS} offen lds"
sRX, sRU = 48, 49
def rl_rd(u): return f"ds_read_b64_tr_b16 {v(RTD+2*u,2)}, v{RTV if u == 0 else RTD+2}"
def rl_st(): return f"buffer_store_dwordx4 {v(RTD,4)}, v{LX}, {srdn(sRDST)}, s{sTMP} offen sc1"

def front():
    e = E()
    e("s_load_dwordx8 s[4:11], s[0:1], 0", f"s_load_dwordx2 s[{pWO}:{pWO+1}], s[0:1], 32", f"s_load_dwordx4 s[{pW1}:{pW1+3}], s[0:1], 48",
      f"s_load_dwordx4 s[{pOUT}:{pOUT+3}], s[0:1], 64", f"s_load_dwordx2 s[{pWS}:{pWS+1}], s[0:1], 80")
    if not X("nopf"):
        e("s_getpc_b64 s[66:67]", "F_PC:", "v_lshrrev_b32 v1, 6, v0", "s_lshr_b32 s62, s2, 3", "s_mul_i32 s62, s62, 1536", "s_add_u32 s62, s62, 8192 - 512",
          "v_and_b32 v2, 63, v0", "v_lshlrev_b32 v4, 7, v2", "v_and_b32 v2, 3, v0", "v_lshl_add_u32 v2, v1, 2, v2", "v_lshlrev_b32 v2, 7, v2", "v_add_u32 v2, s62, v2",
          "v_cmp_eq_u32 vcc, 0, v1", "v_mov_b32 v5, s67", "s_nop 0", "v_cndmask_b32 v4, v2, v4, vcc", f"v_min_u32 v4, {'F_END' if X('oldpf') else 'F_PFE'}-F_PC, v4",
          "v_add_co_u32 v4, vcc, s66, v4", "s_nop 1", "v_addc_co_u32 v5, vcc, 0, v5, vcc", f"global_load_dword v{TCD+1}, v[4:5], off")
    e(wave_id(f"s{sWAVE}"), stamp(0), "s_mov_b32 s3, 0x10000000")
    if X("early0"): e("s_mov_b32 s88, s100")
    e("s_and_b32 s66, s2, 7", "s_lshl_b32 s66, s66, 2", "s_lshr_b32 s67, s2, 3", "s_and_b32 s67, s67, 3", f"s_add_u32 s{sHEAD}, s66, s67",
      f"s_lshr_b32 s{sQB}, s2, 5", f"s_lshl_b32 s66, s{sQB}, 2", f"s_add_u32 s{sM64}, s66, s{sWAVE}")
    e(f"s_lshl_b32 s66, s{sQB}, 5", f"s_add_u32 s66, s66, s{sHEAD}", "s_lshl_b32 s66, s66, 2", f"s_add_u32 s66, s66, s{sWAVE}", "s_lshl_b32 s62, s66, 1",
      "s_mul_i32 s66, s62, 1280",
      "v_lshrrev_b32 v1, 5, v0", "v_and_b32 v2, 31, v0", "v_mul_u32_u24 v3, 1280, v1", "v_lshl_add_u32 v3, v2, 3, v3",
      f"v_lshlrev_b32 v{LX}, 4, v0", f"s_or_b32 s{sKo}, s2, s{sWAVE}")
    e("s_waitcnt lgkmcnt(0)", fstamp(1))
    e(srd(12, pX, pX+1, 2560, "s66"))
    XR, XX = 64, 80
    for m in range(5): e(f"buffer_load_dwordx2 {v(XR+2*m,2)}, v3, s[12:15], 0 offen offset:{256*m}")
    e(srd(sFL, pWS, pWS+1, 1024, WS_FL), f"s_cmp_eq_u32 s{sKo}, 0", f"s_cselect_b32 s{sFL+2}, 1024, 0",
      f"buffer_load_dwordx4 v[76:79], v{LX}, {srdn(sFL)}, 0 offen sc1", f"s_mov_b32 s{sFL+2}, 1024")
    e("s_lshr_b32 s66, s62, 6", f"s_mul_i32 s66, s66, {XF_BLK}", "s_and_b32 s67, s62, 63", "s_lshl_b32 s67, s67, 6", "s_add_u32 s66, s66, s67",
      f"s_sub_u32 s67, {XF_BLK}, s67")
    e(srd(16, pWS, pWS+1, "s67", "s66"))
    e("v_lshrrev_b32 v13, 3, v2", "v_lshlrev_b32 v13, 12, v13", "v_lshl_add_u32 v13, v1, 6, v13", "v_and_b32 v3, 7, v0", "v_lshl_add_u32 v13, v3, 3, v13")
    dry = X("dryln")
    W_ = E()
    e_real = e
    e = W_
    e(f"s_mul_i32 s66, s{sHEAD}, 384", "s_sub_u32 s67, 7864320, s66"); e(srd(sWQ_SRD, pWQ, pWQ+1, "s67", "s66"))
    e(f"s_mul_i32 s66, s{sHEAD}, 96", "s_sub_u32 s67, 1969152, s66", f"s_sub_u32 s{pW1}, s{pW1}, 3072", f"s_subb_u32 s{pW1+1}, s{pW1+1}, 0")
    e(srd(sW1_SRD, pW1, pW1+1, "s67", "s66"))
    e(f"s_lshl_b32 s66, s{sWAVE}, 4", "s_mov_b32 s67, 12288")
    e("v_lshrrev_b32 v1, 4, v0", "v_and_b32 v2, 15, v0", "v_lshlrev_b32 v3, 1, v1", "v_xor_b32 v2, v2, v3", "v_add_u32 v3, s66, v1", "v_mul_lo_u32 v3, v3, s67",
      f"v_lshl_add_u32 v{DA}, v2, 4, v3", f"v_add_u32 v{DA+1}, {4*12288 - 1024}, v{DA}", "v_xor_b32 v2, 8, v2", "v_lshl_add_u32 v3, v2, 4, v3",
      f"v_add_u32 v{DA+2}, {8*12288 - 2048}, v3", f"v_add_u32 v{DA+3}, {12*12288 - 3072}, v3")
    e("v_lshrrev_b32 v1, 3, v0", "v_and_b32 v2, 7, v0", "v_and_b32 v3, 2, v1", "v_xor_b32 v2, v2, v3", "v_add_u32 v3, s66, v1", "v_mul_lo_u32 v4, v3, s67",
      "v_add_u32 v4, 256, v4", f"v_lshl_add_u32 v{DB}, v2, 4, v4", "v_xor_b32 v5, 4, v2", "v_lshl_add_u32 v4, v5, 4, v4", f"v_add_u32 v{DB+1}, {8*12288 - 1024}, v4",
      "v_mul_u32_u24 v3, 3072, v3", "v_bfrev_b32 v8, 1", "v_cmp_gt_u32 vcc, 6, v2", "v_lshl_add_u32 v6, v2, 4, v3", "v_add_u32 v6, 1024, v6",
      f"v_cndmask_b32 v{DH}, v8, v6, vcc", "v_cmp_gt_u32 vcc, 6, v5", "v_lshl_add_u32 v6, v5, 4, v3", f"v_add_u32 v6, {8*3072}, v6",
      f"v_cndmask_b32 v{DH+1}, v8, v6, vcc")
    e(f"s_lshl_b32 s66, s{sWAVE}, 12")
    for u in range(6): e(f"s_add_u32 s{sMW+u}, s66, {(WB if u % 2 else WA) + 16384*(u >> 1)}")
    e(f"s_mov_b32 s{sWq}, 0", f"s_mov_b32 s{sW1}, 0")
    NE = 5 if X("allW") else 2
    def wgrp(lo, hi):
        o = E()
        for u in range(lo, hi):
            o(m0W(u), "s_nop 0", dmaW(u))
            if u % 2: o(advW)
        return o
    e(wgrp(0, NE))
    NT = 0 if X("notouch") else 2
    if NT:
        e(f"s_lshl_b32 s66, s{sQB}, 3", f"s_lshl_b32 s67, s{sWAVE}, 1", "s_add_u32 s66, s66, s67", "s_mov_b32 s67, 12288", touch_addr(4),
          f"s_mov_b32 s{sTq}, 786432", f"s_mov_b32 s{sT1}, 196608")
        tch = touch()
        if X("touch2") or X("touch3") or X("touch4"): NT = 0
        else: e(tch)
    e = e_real
    if not dry: e(W_)
    else:
        e("s_mov_b32 s63, s18", "s_mov_b32 s18, 0", "s_mov_b32 s39_, 0".replace("s39_", "s60"), "s_branch F_LN", "F_LN1:", "s_mov_b32 s18, s63", "s_mov_b32 s60, 1")
    e(fstamp(2), f"s_waitcnt vmcnt({0 if dry else 4*NE + NT})", stamp(1), fstamp(3))
    l1 = newlab("T")
    e(srd(12, pDBG, pDBG+1, 4), "v_mov_b32 v27, 0", f"s_cmp_lg_u32 s{sKo}, 0", f"s_cbranch_scc1 {l1}")
    e("v_and_b32 v1, 15, v0", "v_lshlrev_b32 v1, 2, v1", "ds_write_b32 v1, v27")
    for r in range(4):
        e(f"v_bfe_u32 v{4+r}, v{76+r}, 3, 9", f"v_lshrrev_b32 v{8+r}, 5, v{4+r}", f"v_lshlrev_b32 v{8+r}, 2, v{8+r}",
          f"v_and_b32 v{4+r}, 31, v{4+r}", f"v_lshlrev_b32_e64 v{4+r}, v{4+r}, 1")
    for r in range(4): e(f"ds_or_b32 v{8+r}, v{4+r}")
    e("ds_read_b32 v2, v1", "s_waitcnt lgkmcnt(0)", "v_not_b32 v2, v2", "v_ffbl_b32 v2, v2", "v_cmp_ne_u32 vcc, -1, v2",
      "s_nop 4", "s_ff1_i32_b64 s66, vcc", "s_nop 1", "v_readlane_b32 s67, v2, s66", "s_nop 4", "s_lshl_b32 s66, s66, 5", "s_add_u32 s66, s66, s67",
      "s_lshl_b32 s66, s66, 3", "s_or_b32 s66, s66, 0x40000000", "v_mov_b32 v26, s66",
      "s_mov_b64 exec, 1", "buffer_store_dword v26, v27, s[12:15], 0 offen sc1", "s_mov_b64 exec, -1", f"{l1}:")
    XO = 100 if dry else XR
    if dry: e("F_LN:")
    for i in range(10): e(f"v_lshlrev_b32 v{XX+2*i}, 16, v{XR+i}", f"v_and_b32 v{XX+2*i+1}, 0xffff0000, v{XR+i}")
    def reduce32(r, t):
        o = []
        for sh in (8, 4, 2, 1): o += ["s_nop 1", f"v_add_f32_dpp {r}, {r}, {r} row_ror:{sh} row_mask:0xf bank_mask:0xf"]
        return o + [f"v_mov_b32 {t}, {r}", "s_nop 1", f"v_permlane16_swap_b32 {r}, {t}", f"v_add_f32 {r}, {r}, {t}"]
    e(f"v_add_f32 v10, v{XX}, v{XX+1}", f"v_add_f32 v11, v{XX+2}, v{XX+3}")
    for i in range(4, 20, 2): e(f"v_add_f32 v10, v10, v{XX+i}", f"v_add_f32 v11, v11, v{XX+i+1}")
    e("v_add_f32 v10, v10, v11", reduce32("v10", "v11"))
    e(f"s_mov_b32 s66, {hx(f2u(1.0/640))}", "v_mul_f32 v10, s66, v10", "v_mov_b32 v11, 0", "v_mov_b32 v12, 0")
    for i in range(0, 20, 2):
        e(f"v_sub_f32 v1, v{XX+i}, v10", f"v_sub_f32 v2, v{XX+i+1}, v10", "v_fmac_f32 v11, v1, v1", "v_fmac_f32 v12, v2, v2")
    e("v_add_f32 v11, v11, v12", reduce32("v11", "v12"), "v_mul_f32 v11, s66, v11")
    e("v_cvt_pk_bf16_f32 v10, v10, v11", "v_and_b32 v11, 0xffff0000, v10", "v_lshlrev_b32 v10, 16, v10")
    e(f"v_add_f32 v11, {hx(f2u(1e-5))}, v11", "v_cvt_pk_bf16_f32 v11, v11, v11", "v_lshlrev_b32 v11, 16, v11",
      "v_sqrt_f32 v11, v11", "s_nop 0", "v_cvt_pk_bf16_f32 v11, v11, v11", "v_lshlrev_b32 v11, 16, v11", "v_rcp_f32 v11, v11", "s_nop 0")
    for i in range(10):
        a0, a1 = XX+2*i, XX+2*i+1
        e(f"v_sub_f32 v{a0}, v{a0}, v10", f"v_sub_f32 v{a1}, v{a1}, v10", f"v_cvt_pk_bf16_f32 v1, v{a0}, v{a1}",
          f"v_lshlrev_b32 v{a0}, 16, v1", f"v_and_b32 v{a1}, 0xffff0000, v1",
          f"v_mul_f32 v{a0}, v{a0}, v11", f"v_mul_f32 v{a1}, v{a1}, v11", f"v_cvt_pk_bf16_f32 v{XO+i}, v{a0}, v{a1}")
        if i % 2: e(f"s_mov_b32 s66, {16384*(i//2)}", f"buffer_store_dwordx2 {v(XO+i-1,2)}, v13, s[16:19], s66 offen sc1")
    if dry: e("s_cmp_eq_u32 s60, 0", "s_cbranch_scc1 F_LN1", W_)
    e(stamp(2), fstamp(4))
    e("v_lshrrev_b32 v1, 4, v0", "v_lshrrev_b32 v2, 2, v0", "v_and_b32 v2, 3, v2", "v_and_b32 v3, 3, v0",
      "v_and_b32 v5, 1, v1", "v_lshlrev_b32 v4, 1, v2", "v_lshl_or_b32 v4, v5, 3, v4",
      "v_lshl_add_u32 v6, v1, 3, v2", "v_lshlrev_b32 v6, 8, v6", f"v_add_u32 v6, {WA}, v6", "v_lshrrev_b32 v7, 1, v3")
    for T in range(8):
        e(f"v_or_b32 v8, {4*(T >> 1)}, v3", "v_xor_b32 v8, v8, v4", "v_lshl_add_u32 v8, v8, 4, v6", f"v_xor_b32 v9, {T & 1}, v7", f"v_lshl_add_u32 v{AWA+T}, v9, 3, v8")
    e("v_and_b32 v4, 2, v2", "v_lshl_or_b32 v4, v5, 2, v4",
      "v_lshl_add_u32 v6, v5, 3, v2", "v_lshlrev_b32 v6, 7, v6", "v_lshrrev_b32 v8, 1, v1", "v_lshl_add_u32 v6, v8, 12, v6", f"v_add_u32 v6, {WB}, v6")
    for T in range(4):
        e(f"v_or_b32 v8, {4*(T >> 1)}, v3", "v_xor_b32 v8, v8, v4", "v_lshl_add_u32 v8, v8, 4, v6", f"v_xor_b32 v9, {T & 1}, v7", f"v_lshl_add_u32 v{AWB+T}, v9, 3, v8")
    e("v_add_u32 v6, 2048, v6", "v_lshl_add_u32 v6, v3, 3, v6")
    for tt in range(3): e(f"v_xor_b32 v8, {2*tt}, v4", f"v_lshl_add_u32 v{AH+tt}, v8, 4, v6")
    e(fstamp(5))
    lp, ld = newlab("P"), newlab("D")
    tagpoll = E()(f"s_mov_b32 s{sU}, 0", f"{lp}:", "buffer_load_dword v26, v27, s[12:15], 0 offen sc1", "s_waitcnt vmcnt(0)", f"v_readfirstlane_b32 s{sT}, v26",
                  f"s_add_u32 s{sU}, s{sU}, 1", f"s_cmp_gt_u32 s{sU}, {SPIN}", f"s_cbranch_scc1 {ld}",
                  f"s_cmp_eq_u32 s{sT}, 0", f"s_cbranch_scc1 {lp}", f"{ld}:")
    e(wave0(tagpoll), "s_waitcnt vmcnt(0)", fstamp(6), "s_barrier", stamp(3), fstamp(7))
    e(wave0(signal(1)), fstamp(8))
    if not X("allW") and not X("lateW"): e(wgrp(NE, 5))
    if X("touch2"): e(tch)
    e("v_lshrrev_b32 v1, 3, v0", "v_and_b32 v2, 7, v0", f"s_mul_i32 s62, s{sWAVE}, 3072", f"s_lshl_b32 s66, s{sWAVE}, 2")
    for t in range(3):
        e(f"v_add_u32 v3, {8*t}, v1", "v_mul_u32_u24 v4, 171, v3", "v_lshrrev_b32 v4, 9, v4",
          "v_lshrrev_b32 v5, 1, v4", "v_add_u32 v6, s66, v5", "v_and_b32 v6, 7, v6", "v_xor_b32 v6, v2, v6",
          "v_lshlrev_b32 v7, 7, v1", "v_add_u32 v7, s62, v7", f"v_lshl_add_u32 v{DK+t}, v6, 4, v7",
          "v_and_b32 v5, 3, v5", "v_lshlrev_b32 v5, 1, v5", "v_xor_b32 v5, v2, v5", f"v_lshl_add_u32 v{DV+t}, v5, 4, v7")
    for i in range(4): e(f"s_add_u32 s{sMK+i}, s62, {KR + 12288*i}", f"s_add_u32 s{sMV+i}, s62, {VR + 12288*i}")
    e("v_and_b32 v3, 6, v1", "v_xor_b32 v3, v2, v3", "v_mul_u32_u24 v4, 1280, v1", "v_lshl_add_u32 v4, v3, 4, v4", f"s_mul_i32 s66, s{sWAVE}, 10240", f"v_add_u32 v{RLV}, s66, v4")
    e(f"s_mul_i32 s66, s{sM64}, {XF_BLK}")
    if WS_XF: e(f"s_add_u32 s66, s66, {hx(WS_XF)}")
    e(srd(sXF_SRD, pWS, pWS+1, XF_BLK, "s66"))
    e("v_and_b32 v1, 15, v0", "v_lshrrev_b32 v2, 4, v0", "v_lshlrev_b32 v1, 6, v1", f"v_lshl_add_u32 v{LXB}, v2, 4, v1", f"v_add_u32 v{LXB2}, 4096, v{LXB}",
      "v_lshrrev_b32 v3, 1, v2", "v_and_b32 v2, 1, v2", "v_lshrrev_b32 v1, 2, v1", "v_lshl_add_u32 v1, v3, 8, v1", f"v_lshl_add_u32 v{LX8}, v2, 3, v1",
      f"s_mov_b32 s{sX}, 0")
    e(f"s_mul_i32 s66, s{sHEAD}, 786432"); e(srd(sK_SRD, pK, pK+1, 786432, "s66"), srd(sV_SRD, pV, pV+1, 786432, "s66"), relayout_src())
    e(f"s_mul_i32 s66, s{sM64}, {OF_BLK}", f"s_add_u32 s66, s66, {hx(WS_OF)}"); e(srd(sOF_SRD, pWS, pWS+1, OF_BLK, "s66"))
    e(f"s_mov_b32 s{sC}, {hx(f2u(CSCALE))}", f"s_mov_b32 s{sC+1}, {hx(f2u(CSCALE))}", f"s_mov_b32 s{sTHR}, {hx(f2u(THR))}")
    e(f"s_mul_i32 s{sO}, s{sHEAD}, 24576")
    for tt in range(3):
        e(f"s_mul_i32 s66, s{sHEAD}, 3", f"s_add_u32 s66, s66, {tt}", "s_and_b32 s67, s66, 1", "s_lshl_b32 s67, s67, 9",
          "s_lshr_b32 s66, s66, 1", "s_add_u32 s66, s66, 192", "s_lshl_b32 s66, s66, 12", f"s_add_u32 s{sH[tt]}, s66, s67")
    e("v_lshrrev_b32 v1, 4, v0", "v_and_b32 v3, 3, v0",
      "v_lshrrev_b32 v5, 2, v0", "v_mul_u32_u24 v6, 384, v5", f"v_add_u32 v6, {VR}, v6", "v_lshl_add_u32 v6, v3, 3, v6",
      "v_lshrrev_b32 v5, 1, v5", "v_and_b32 v5, 3, v5", "v_lshlrev_b32 v5, 1, v5")
    for sg in range(4): e(f"v_xor_b32 v8, {2*sg}, v5", f"v_lshl_add_u32 v{AV+sg}, v8, 4, v6")
    e("v_and_b32 v2, 15, v0", "v_mul_u32_u24 v6, 384, v2", "v_lshrrev_b32 v2, 1, v2", "v_xor_b32 v2, v2, v1")
    e(f"v_lshl_add_u32 v{AK}, v2, 4, v6", "v_xor_b32 v2, 4, v2", f"v_lshl_add_u32 v{AK+1}, v2, 4, v6", relayout_vaddr(), kv_touch_addr(None), fstamp(9))
    if not X("notouch"):
        e(f"s_lshl_b32 s66, s{sQB}, 3", f"s_lshl_b32 s67, s{sWAVE}, 1", "s_add_u32 s66, s66, s67", "s_mov_b32 s67, 12288", touch_addr(1 if TPS() else 3),
          f"s_mov_b32 s{sTq}, {(TPS()[0] if TPS() else 3 if X('touch3') else 5)*786432}", f"s_mov_b32 s{sT1}, {(TPS()[0] if TPS() else 3 if X('touch3') else 5)*196608}")
    if X("pre2"): e(f"s_mov_b32 s{sTq}, {2*786432}", f"s_mov_b32 s{sT1}, {2*196608}", touch(), advT_())
    for i in range(96): e(f"v_accvgpr_write_b32 a{i}, 0")
    for i in range(48, 192): e(f"v_mov_b32 v{i}, 0")
    e("s_waitcnt vmcnt(0)")
    e(wave0([f"v_lshlrev_b32 v2, 2, v0", f"s_lshl_b32 s{sCNT}, s{sQB}, 7"] + poll(1, ("-1", "0"), f"s{sCNT}")))
    e("s_barrier", fstamp(10))
    for k in range(2): e(ldB(k), advX)
    e([qrd(0, T, kk, uu) for T in range(2) for kk in range(2) for uu in range(2)], wgrp(NE, 5) if X("lateW") else [])
    e(f"s_mov_b32 s{sCNT}, 0", fstamp(11), f"s_waitcnt vmcnt({20 if X('lateW') else 8}) lgkmcnt(4)", stamp(5), fstamp(12))
    return e

TB, TA, TAD, TD, TB8 = 16, 96, 160, 162, 164
sTW, sTB, sMT, sSP = 39, 58, 40, 54
LEAD = 3
def tacc(nt, qt): return (nt*2 + qt)*4
def t_rd(st, nt, kk, dst):
    slot = st % 4
    return f"ds_read_b128 {v(dst, 4)}, v{TAD + slot//3} offset:{(slot%3)*20480 + (kk*10 + nt)*1024}"
def t_A(st, nt, kk): return TA + 8*((10*st + nt) % 4) + 4*kk
def t_B(st, kk, qt): return TB + 16*(st % 4) + 8*kk + 4*qt
def t_ldB(st, g):
    if not g: return [f"buffer_load_dwordx4 {v(t_B(st,kk,qt), 4)}, v{LX}, s[16:19], s{sTB + kk} offen offset:{1024*qt} sc1 ; @B{st}" for kk in range(2) for qt in range(2)]
    return [f"buffer_load_dwordx2 {v(t_B(st,kk,qt) + 2*h, 2)}, v{TB8}, s[16:19], s{sTB + kk} offen offset:{1024*qt + 512*h} sc1 ; @B{st}" for kk in range(2) for qt in range(2) for h in range(2)]
t_advB = [f"s_add_u32 s{sTB}, s{sTB}, 8192", f"s_add_u32 s{sTB+1}, s{sTB+1}, 8192"]
def t_dmaW(st, t): return f"buffer_load_dwordx4 v{TD + (t == 4)}, s[12:15], s{sTW} offen offset:{1024*(t%4)} {'' if X('wplain') else 'sc1 '}lds ; @W{st}"
def t_m0(st, t): return f"s_add_u32 m0, s{sMT}, {(st%4)*20480 + (4096 if t == 4 else 0)}"
t_advW = [f"s_add_u32 s{sTW}, s{sTW}, 20480"]
def tplan(g):
    if g: pl = {2: ("W", LEAD-1, 3), 3: ("B", 0), 6: ("B", 1), 7: ("B", 2), 11: ("W", LEAD-1, 4), 10: ("B", 3), 14: ("B", 4), 15: ("B", 5), 19: ("B", 6), 22: ("B", 7)}
    else: pl = {2: ("W", LEAD-1, 3), 6: ("B", 0), 11: ("W", LEAD-1, 4), 15: ("B", 1), 19: ("B", 2), 23: ("B", 3)}
    pl.update({30: ("W", LEAD, 0), 34: ("W", LEAD, 1), 38: ("W", LEAD, 2)})
    return pl
sIT, sCP, sNW, sNB, sNF, sDA, sDB, FV, FA_ = 50, 52, 53, 49, 47, 45, 43, 166, 165
sFM, sFB = 60, 62
def decode():
    return [f"s_and_b32 s{sDA}, s{sIT}, 7", f"s_lshl_b32 s{sDA}, s{sDA}, 2", f"s_lshr_b32 s{sDA}, s{sCP}, s{sDA}", f"s_and_b32 s{sDA}, s{sDA}, 15",
            f"s_bfe_u32 s{sDB}, s{sIT}, 0x20003", f"s_mul_i32 s{sNF}, s{sDA}, s{sFM}", f"s_add_u32 s{sNF}, s{sNF}, s{sFB}",
            f"s_mul_i32 s{sDA}, s{sDA}, 3", f"s_add_u32 s{sDA}, s{sDA}, s{sDB}", f"s_mul_i32 s{sNW}, s{sDA}, 81920", f"s_lshl_b32 s{sNB}, s{sDA}, 15"]
shiftIT = f"s_lshr_b64 s[{sIT}:{sIT+1}], s[{sIT}:{sIT+1}], 5"
def flagld(): return f"buffer_load_dword v{FV}, v{FA_}, {srdn(sFL)}, s{sNF} offen sc1 ; @F"
def flagchk(): return [f"v_subrev_u32 v{FV}, s{sT}, v{FV}", f"v_subrev_u32 v{FV}, 3, v{FV}", f"v_cmp_lt_u32 vcc, 1, v{FV}"]
def flagspin(entry, back):
    l = newlab("S")
    return E()(f"{entry}:", f"s_mov_b32 s{sU}, 0", f"{l}:", flagld(), "s_waitcnt vmcnt(0)", flagchk(), f"s_add_u32 s{sU}, s{sU}, 1", f"s_cmp_gt_u32 s{sU}, {SPIN}",
               f"s_cbranch_scc1 {back}", f"s_cbranch_vccnz {l}", f"s_branch {back}")
def tstage(st, g, vmw, last=1 << 30, nextA=None):
    L = []
    pl = tplan(g)
    ldb = t_ldB(st + LEAD, g)
    for p in range(20):
        nt = p >> 1; qt = (p & 1) ^ (nt & 1)
        for kk in range(2):
            gi = 2*p + kk
            acc = a(tacc(nt, qt), 4)
            L.append(f"{MF} {acc}, {v(t_A(st,nt,kk), 4)}, {v(t_B(st,kk,qt), 4)}, {acc}")
            if gi % 4 < 2:
                st2, nt2 = st + (nt+3)//10, (nt+3) % 10
                if st2 == st or nextA is None: L.append(t_rd(st2, nt2, gi % 4, t_A(st2, nt2, gi % 4)))
                else: L.append(nextA[2*nt2 + gi % 4])
                if gi % 4 == 1: L.append("s_waitcnt lgkmcnt(4)")
                if gi == 28 and st + LEAD < last: L.append(t_m0(st + LEAD, 0))
                if gi == 4 and st + LEAD - 1 < last: L.append(t_m0(st + LEAD - 1, 4))
                dyn = not g and last > 32
                if gi == 12 and st + LEAD - 1 < last: L += [f"s_mov_b32 s{sTW}, s{sNW}"] if dyn and st % 4 == 1 else t_advW
                if gi == 24 and st + LEAD < last: L.append(f"s_mov_b32 s{sTB}, s{sNB}" if dyn and st % 4 == 0 else t_advB[0])
                if gi == 32 and st + LEAD < last: L.append(f"s_add_u32 s{sTB+1}, s{sNB}, 4096" if dyn and st % 4 == 0 else t_advB[1])
            if not g and last > 32:
                if st % 4 == 2:
                    dc = [shiftIT] + decode()
                    pos = {0: dc[0:1], 3: dc[1:3], 7: dc[3:5], 8: dc[5:6], 10: dc[6:8], 14: dc[8:10], 16: dc[10:11], 18: dc[11:12]}
                    L += pos.get(gi, [])
                    if gi == 26: L.append(flagld())
                if st % 4 == 0:
                    fc = flagchk()
                    if gi == 31: L += fc[:2]
                    if gi == 35: L += fc[2:]
                    if gi == 39: L += ["s_cbranch_vccnz F_TSP", "F_TSB:"]
            if gi in pl:
                x = pl[gi]
                if x[0] == "W":
                    if st + x[1] < last: L.append(t_dmaW(st + x[1], x[2]))
                elif st + LEAD < last: L.append(ldb[x[1]])
            if gi == 27: L += [f"s_waitcnt vmcnt({vmw})", "s_barrier"]
    return L
def tpreW():
    e = E()
    for st in range(LEAD-1):
        e(t_m0(st, 0), "s_nop 0", [t_dmaW(st, t) for t in range(4)], t_m0(st, 4), "s_nop 0", t_dmaW(st, 4), t_advW)
    return e(t_m0(LEAD-1, 0), "s_nop 0", [t_dmaW(LEAD-1, t) for t in range(3)])
def tpreB():
    e = E()
    for st in range(LEAD): e(t_ldB(st, False), t_advB)
    return e
def tpre(g=False):
    if X("wfirst"): return tpreW() + tpreB()
    e = E()
    for st in range(LEAD-1):
        e(t_m0(st, 0), "s_nop 0", [t_dmaW(st, t) for t in range(4)], t_m0(st, 4), "s_nop 0", t_dmaW(st, 4), t_advW, t_ldB(st, g), t_advB)
    e(t_ldB(LEAD-1, g), t_advB, t_m0(LEAD-1, 0), "s_nop 0", [t_dmaW(LEAD-1, t) for t in range(3)])
    return e
def tcounts():
    L = tpre()
    for st in range(12): L = L + tstage(st, False, f"@W{st+1},@B{st+1}")
    L = [l for l in L if not l.startswith(("s_cbranch", "F_"))]
    c = [int(re.search(r"vmcnt\((\d+)\)", l).group(1)) for l in resolve(L, []) if "vmcnt" in l]
    steady = [min(c[4+k], c[8+k]) for k in range(4)]
    return steady, {k: c[k] for k in range(4) if c[k] < steady[k]}
tstubs = []
def tloop():
    steady, first = tcounts()
    dec1 = E()(f"s_mov_b32 s{sTW}, s{sNW}", f"s_mov_b32 s{sTB}, s{sNB}", f"s_add_u32 s{sTB+1}, s{sNB}, 4096")
    quick = E()(flagchk(), "s_nop 1", "s_cbranch_vccz F_T0B") if X("qflag") else []
    wait0 = E()(f"s_cmp_eq_u32 s{sSP}, 3", "s_cbranch_scc1 F_T0B", quick, flagspin("F_T0", "F_T0B"), "F_T0B:", stamp(11), fstamp(4, "tail"), fstamp(9, "last"), shiftIT, decode(), flagld())
    if X("wfirst"): pre = E()(decode() if not X("qflag") else [], dec1, tpreW(), wait0, resolve(tpreB() + ["s_waitcnt vmcnt(@B0)"], []))
    else: pre = E()(decode(), dec1, wait0, resolve(tpre() + ["s_waitcnt vmcnt(@W0,@B0)"], []))
    pre("s_barrier", [t_rd(0, nt, kk, t_A(0, nt, kk)) for nt in range(3) for kk in range(2)], f"s_mov_b32 s{sCNT}, 0", "s_waitcnt lgkmcnt(4)", fstamp(10, "last"), fstamp(5, "tail"))
    body = []; fp = []; tstubs.clear()
    for st in range(4):
        b = tstage(st, False, steady[st])
        if st in first:
            k = b.index(f"s_waitcnt vmcnt({steady[st]})")
            fp += b[:k] + [f"s_waitcnt vmcnt({first[st]})"] + b[k+1:]
            j = max(i for i in range(k) if b[i].startswith(MF)); j = max(i for i in range(j) if b[i].startswith(MF))
            b = b[:j+1] + [f"s_cmp_eq_u32 s{sCNT}, 0"] + b[j+1:k] + [f"s_cbranch_scc1 F_US{st}", b[k], f"F_UB{st}:"] + b[k+1:]
            tstubs.extend([f"F_US{st}:", f"s_waitcnt vmcnt({first[st]})", f"s_branch F_UB{st}"])
        else: fp += b
        body += b
    ctl = [f"s_add_u32 s{sCNT}, s{sCNT}, 1", f"s_cmp_lt_u32 s{sCNT}, s46", "s_cbranch_scc1 F_TLS"]
    return pre, body, ctl, steady, fp
def pb_off(): return E()(f"s_lshl_b32 s41, s{sWAVE}, 2", f"s_add_u32 s41, s41, s{sSP}", "s_mul_i32 s41, s41, 20480",
                         f"s_cmp_eq_u32 s{sWAVE}, s{sSP}", "s_cselect_b32 s41, 0x10000000, s41")
def own_write():
    l = newlab("O")
    e = E()(f"s_cmp_lg_u32 s{sWAVE}, s{sSP}", f"s_cbranch_scc1 {l}", f"v_add_u32 v4, {OWN}, v{LX}")
    for i in range(20): e(f"ds_write_b128 v4, {a(tacc(i % 10, i // 10), 4)} offset:{1024*i}")
    return e(f"{l}:")
def tfinal(cnt):
    FA = lambda nt, k: TA + 16*(nt % 4) + 4*k
    frd = lambda nt, k: t_rd(30 + (k >> 1), nt, k & 1, FA(nt, k))
    e = E()
    for l in tstage(28, False, "@W29,@B29", last=32):
        e(l)
        if l.startswith("buffer_load") and l.endswith("@W31") and "offset:2048" in l:
            e.last = len(e)
    tail = e[e.last:]; del e[e.last:]
    k = [i for i, l in enumerate(tail) if l.startswith(MF)]
    assert len(k) == 1
    e(t_dmaW(31, 3), tail[k[0]], t_m0(31, 4), "s_nop 0", t_dmaW(31, 4))
    n = 0
    for l in tstage(29, False, "0", last=31):
        if l.startswith("ds_read"):
            n += 1
            if n > 14: continue
        if l == "s_waitcnt lgkmcnt(4)" and n > 14: l = "s_waitcnt lgkmcnt(0)"
        if l.startswith("s_waitcnt vmcnt") or l == "s_barrier": continue
        e(l)
    e("s_waitcnt vmcnt(@W30,@B30,@W31,@B31)", "s_barrier")
    e([frd(0, k) for k in range(4)], [frd(1, k) for k in range(4)], pb_off(), "s_waitcnt lgkmcnt(4)")
    pend = []
    for nt in range(10):
        for qt in range(2):
            for k_ in range(4):
                g = 4*qt + k_; k = 3 - k_ if qt else k_
                acc = a(tacc(nt, qt), 4)
                e(f"{MF} {acc}, {v(FA(nt,k),4)}, {v(t_B(30 + (k >> 1), k & 1, qt),4)}, {acc}")
                if g < 4 and nt + 2 < 10: e(frd(nt+2, g))
                if g == 3 and nt + 1 < 10: e(f"s_waitcnt lgkmcnt({4 if nt + 2 < 10 else 0})")
                if g in (4, 6) and nt > 0:
                    q2 = (g-4)//2; i = q2*10 + nt-1
                    e(f"buffer_store_dwordx4 {a(tacc(nt-1,q2),4)}, v{LX}, s[20:23], s{42+q2} offen sc1")
                if g in (1, 2) and nt > 0:
                    q2 = g - 1; e(f"s_add_u32 s{42+q2}, s41, {1024*(q2*10 + nt-1)}")
    e("s_add_u32 s42, s41, 9216", "s_add_u32 s43, s41, 19456", "s_nop 5")
    for q2 in range(2): e(f"buffer_store_dwordx4 {a(tacc(9,q2),4)}, v{LX}, s[20:23], s{42+q2} offen sc1")
    e(own_write())
    return e
def gfinal():
    e = E()(pb_off(), "s_waitcnt vmcnt(0) lgkmcnt(0)", "s_nop 1")
    for i in range(20):
        b = tacc(i % 10, i // 10); d = 16 + 6*(i % 8)
        for r in range(4): e(f"v_accvgpr_read_b32 v{d+r}, a{b+r}")
        e(f"v_cvt_pk_bf16_f32 v{d+4}, v{d}, v{d+1}", f"v_cvt_pk_bf16_f32 v{d+5}, v{d+2}, v{d+3}")
        if i % 8 == 0: e(f"s_add_u32 s42, s41, {512*i}")
        e(f"buffer_store_dwordx2 {v(d+4,2)}, v{TB8}, s[20:23], s42 offen offset:{512*(i%8)} sc1")
    e(own_write())
    return e
def items(lst):
    x = 0
    for k, (rb, th) in enumerate(lst): x |= (rb | th << 3) << (5*k)
    return x
def blk(*rbs): return [(rb, th) for rb in rbs for th in range(3)]
PATTERNS = {"B": [blk(0, 2, 4), blk(1, 3, 5), blk(6, 7)],
            "C": [blk(0, 2, 4) + [(5, 0)], blk(1, 3) + [(5, 1), (5, 2)], blk(6, 7)],
            "D": [blk(0, 2, 4), blk(1, 3) + [(5, 0), (5, 1)], [(5, 2)] + blk(6, 7)],
            "E": [blk(0, 2, 4) + [(5, 0)], blk(1, 3) + [(5, 1)], [(5, 2)] + blk(6, 7)],
            "F": [blk(0, 3) + [(6, 0), (6, 1)], blk(1, 4) + [(6, 2), (7, 0)], blk(2, 5) + [(7, 1), (7, 2)]],
            "G": [blk(0, 2) + [(4, 0), (4, 1)], blk(1, 3) + [(4, 2), (5, 0)], [(5, 1), (5, 2)] + blk(6, 7)],
            "A": [blk(0, 3) + [(6, 0), (6, 1)], blk(1, 4) + [(6, 2), (7, 0)], blk(2, 5) + [(7, 1), (7, 2)]]}
DV_ = 136
def roles():
    e = E()
    l, d = newlab("R"), newlab("D")
    e(f"s_mov_b32 s{sU}, 0", f"{l}:", f"v_cmp_eq_u32 vcc, 0, v{DV_}", f"s_add_u32 s{sU}, s{sU}, 1", "s_nop 2", "s_and_b32 s41, vcc_lo, 0xff00", f"s_cbranch_scc0 {d}",
      f"s_cmp_gt_u32 s{sU}, {SPIN}", f"s_cbranch_scc1 {d}", f"buffer_load_dword v{DV_}, v{DV_+1}, s[28:31], 0 offen sc1", "s_waitcnt vmcnt(0)", f"s_branch {l}", f"{d}:")
    e(f"v_readlane_b32 s{sT}, v{DV_}, 0", f"s_mov_b32 s{sCP}, 0", "s_and_b32 s41, s2, 7", "s_add_u32 s41, s41, 8", f"v_readlane_b32 s42, v{DV_}, s41")
    e([f"v_readlane_b32 s{12+c}, v{DV_}, {8+c}" for c in range(8)], "s_nop 3")
    for c in range(1, 8):
        e(f"s_sub_u32 s41, s{12+c}, 1", "s_and_b32 s41, s41, 7", "s_lshl_b32 s41, s41, 2", f"s_lshl_b32 s41, {c}, s41", f"s_or_b32 s{sCP}, s{sCP}, s41")
    e("s_sub_u32 s42, s42, 1", "s_and_b32 s42, s42, 7")
    if X("static"): e("s_and_b32 s42, s2, 7", f"s_mov_b32 s{sCP}, 0x76543210")
    e(f"s_lshr_b32 s{sSP}, s42, 1", "s_add_u32 s55, s42, 1", "s_lshr_b32 s55, s55, 1", "s_and_b32 s55, s55, 1", f"s_and_b32 s56, s{sHEAD}, 3")
    pat = PATTERNS[[x[3:] for x in EXP[0].split() if x.startswith("pat")][0] if "pat" in EXP[0] else "D"]
    pat = pat + [blk(0, 1)]
    for m in (3, 2, 1, 0):
        x = items(pat[m])
        if m == 3: e(f"s_mov_b32 s{sIT}, {hx(x)}", f"s_mov_b32 s{sIT+1}, {hx(x >> 32)}", f"s_mov_b32 s46, {len(pat[m]) - 1}")
        else: e(f"s_cmp_eq_u32 s{sSP}, {m}", f"s_cselect_b32 s{sIT}, {hx(x)}, s{sIT}", f"s_cselect_b32 s{sIT+1}, {hx(x >> 32)}, s{sIT+1}", f"s_cselect_b32 s46, {len(pat[m]) - 1}, s46")
    e(f"s_lshl_b32 s41, s{sQB}, 7", f"s_lshl_b32 s42, s{sHEAD}, 2", "s_add_u32 s42, s42, s41", f"s_cmp_eq_u32 s{sSP}, 3", f"s_cselect_b32 s{sCP}, 0x98, s{sCP}",
      f"s_cselect_b32 s{sFM}, 0, 16", f"s_cselect_b32 s{sFB}, s42, s41", "s_cselect_b32 s40, 0, 3")
    return e
def tail_setup():
    e = E()
    e("v_and_b32 v1, s40, v0", f"v_lshlrev_b32 v{FA_}, 2, v1")
    e(f"s_mul_i32 s41, s56, {WF160}", f"s_add_u32 s41, s41, {hx(WS_WF)}")
    e(srd(12, pWS, pWS+1, WF160, "s41"))
    e(f"s_lshl_b32 s41, s{sQB}, 2", "s_lshl_b32 s42, s55, 1", "s_add_u32 s41, s41, s42", f"s_lshr_b32 s42, s{sWAVE}, 1", "s_add_u32 s41, s41, s42",
      f"s_mul_i32 s41, s41, {OF_BLK}",
      f"s_and_b32 s42, s{sWAVE}, 1", "s_lshl_b32 s42, s42, 11", "s_add_u32 s41, s41, s42", f"s_add_u32 s41, s41, {hx(WS_OF)}",
      f"s_sub_u32 s43, {OF_BLK}, s42")
    e(srd(16, pWS, pWS+1, "s43", "s41"))
    e(f"s_mov_b32 s{sTB}, 0", f"s_mov_b32 s{sTB+1}, 4096", f"s_mov_b32 s{sTW}, 0", f"s_mul_i32 s{sMT}, s{sWAVE}, 5120")
    e(f"s_lshl_b32 s41, s{sQB}, 1", "s_add_u32 s41, s41, s55", "s_lshl_b32 s41, s41, 2", "s_add_u32 s41, s41, s56", "s_mul_i32 s41, s41, 327680",
      f"s_add_u32 s41, s41, {hx(WS_PB)}")
    e(srd(20, pWS, pWS+1, 327680, "s41"))
    e(f"s_lshl_b32 s41, s{sQB}, 3", "s_lshl_b32 s42, s55, 2", "s_add_u32 s41, s41, s42", f"s_add_u32 s41, s41, s{sSP}", "s_lshl_b32 s41, s41, 1",
      f"s_and_b32 s42, s{sWAVE}, 1", "s_add_u32 s41, s41, s42", "s_mul_i32 s41, s41, 20480",
      "s_mul_i32 s42, s56, 320", "s_add_u32 s41, s41, s42", f"s_lshr_b32 s42, s{sWAVE}, 1", "s_mul_i32 s42, s42, 160", "s_add_u32 s41, s41, s42",
      "s_sub_u32 s42, 2621440, s41")
    e(srd(24, pX, pX+1, "s42", "s41")); e(srd(28, pOUT, pOUT+1, "s42", "s41"))
    e("s_lshl_b32 s44, 0x11111111, s56", f"s_lshl_b32 s48, s{sQB}, 7")
    return e
def tail_vsetup():
    return E()(f"v_add_u32 v{TD}, s{sMT}, v{LX}", f"v_add_u32 v{TD+1}, 4096, v{TD}", f"v_mov_b32 v{TAD}, v{LX}", f"v_add_u32 v{TAD+1}, 61440, v{LX}",
               [f"v_accvgpr_write_b32 a{i}, 0" for i in range(80)])

def laststep(i=63):
    Pc = Pb(i)
    e = E()
    e(rdVp(62, 0))
    e(wave0([f"buffer_load_dwordx4 v[140:143], v{LX}, {srdn(sFL)}, 0 offen sc1"]))
    e(srd(28, pDBG, pDBG+1, 64), "v_and_b32 v138, 15, v0", f"v_lshlrev_b32 v{DV_+1}, 2, v138", f"buffer_load_dword v{DV_}, v{DV_+1}, s[28:31], 0 offen sc1")
    Ex, Sx = sm(S1, [2, 3], Pc, 1)
    e(Ex, rdVp(62, 1, KF))
    e([x for _, x in Sx], CHK, "s_waitcnt lgkmcnt(12)", callsite(i % 4), LADD, "s_nop 0", fstamp(2, "last"))
    RI = 8
    Xl = xlane("v_add_f32", L_, 2) + [f"v_rcp_f32 v{RI+2*qt}, v{L_+qt}" for qt in range(4)]
    def mix(m, fill, per=1):
        for x in m:
            e(x)
            for _ in range(per):
                if fill: e(fill.pop(0))
    r2, r3 = rdVp(62, 2), rdVp(62, 3, KF)
    ok = newlab("K")
    chk = E()(f"s_add_u32 s{sTMP}, s{sT}, 2")
    for r in range(4): chk(f"v_subrev_u32 v{140+r}, s{sTMP}, v{140+r}")
    chk("v_max3_u32 v140, v140, v141, v142", "v_max_u32 v140, v140, v143", "v_cmp_lt_u32 vcc, 2, v140", "s_nop 1", f"s_cbranch_vccz {ok}",
        f"v_mov_b32 v2, v{LX}", poll(2, ("-1", "-1"), "0", wide=True), f"{ok}:")
    def norm(j):
        o = E()(f"s_add_u32 s{sTMP}, s{sO}, {4096*j}")
        for qt in range(4):
            k = 4*j + qt
            t = 64 + 8*(k % 4); d = 112 + 4*(k % 6)
            for hh in range(2):
                b = Oacc(2*j+hh, qt)
                for r in range(4): o(f"v_accvgpr_read_b32 v{t+4*hh+r}, a{b+r}")
            for r in range(0, 8, 2): o(f"v_pk_mul_f32 {v(t+r,2)}, {v(t+r,2)}, {v(RI+2*qt,2)} op_sel_hi:[1,0]")
            for r in range(4): o(f"v_cvt_pk_bf16_f32 v{d+r}, v{t+2*r}, v{t+2*r+1}")
            o(f"buffer_store_dwordx4 {v(d,4)}, v{LX}, {srdn(sOF_SRD)}, s{sTMP} offen offset:{1024*qt} sc1")
        return o
    mix(pv(62, 0), Xl, 2); e(Xl, "s_waitcnt lgkmcnt(0)", fstamp(3, "last"))
    if X("oldlast"):
        mix(pv(62, 1, src=KF), r2); e("s_waitcnt lgkmcnt(0)"); mix(pv(62, 2), r3)
        e(norm(0), norm(1), "s_waitcnt lgkmcnt(0)", pv(62, 3, src=KF), norm(2), norm(3), norm(4), norm(5))
    else:
        mix(pv(62, 1, src=KF), r2); e(norm(0), "s_waitcnt lgkmcnt(0)")
        mix(pv(62, 2), r3); e(norm(1), norm(2), "s_waitcnt lgkmcnt(0)", pv(62, 3, src=KF), norm(3), norm(4), norm(5))
    CHK2[:] = wave0(chk)
    return e
CHK2 = []

def tail_end():
    e = E()
    XV = 232
    e("v_and_b32 v3, 15, v0", "v_mul_u32_u24 v3, 1280, v3", "v_lshrrev_b32 v4, 4, v0", "v_lshl_add_u32 v3, v4, 3, v3", fstamp(7, "tail"))
    e("s_waitcnt vmcnt(0) lgkmcnt(0)", fstamp(8, "tail"), "s_barrier", fstamp(9, "tail"), wave0(signal(4)))
    for nt in range(5): e(f"buffer_load_dwordx2 {v(XV+2*nt,2)}, v3, s[24:27], 0 offen offset:{32*nt}")
    e(f"s_and_b32 s42, s{sWAVE}, 1", "s_mul_i32 s42, s42, 10240", f"s_lshr_b32 s43, s{sWAVE}, 1", "s_mul_i32 s43, s43, 5120", "s_add_u32 s42, s42, s43",
      f"s_add_u32 s43, s42, {OWN}", f"v_add_u32 v5, s43, v{LX}")
    for i in range(5): e(f"ds_read_b128 {v(176+4*i,4)}, v5 offset:{1024*i}")
    e(f"s_mul_i32 s41, s{sSP}, 81920", "s_add_u32 s50, s41, s42", "s_add_u32 s51, s50, 20480", "s_add_u32 s52, s50, 40960", "s_add_u32 s53, s50, 61440")
    for src in range(4): e(f"s_cmp_eq_u32 s{sSP}, {src}", f"s_cselect_b32 s{50+src}, 0x10000000, s{50+src}")
    e(f"s_cmp_eq_u32 s{sSP}, 3", "s_cselect_b32 s56, 0, 1.0", "s_cselect_b32 s57, 1.0, 0", f"v_add_u32 v5, 4096, v{LX}", f"s_mov_b32 s38, {hx(f2u(-math.log2(math.e)))}")
    pl = wave0(["v_lshlrev_b32 v2, 2, v0"] + poll(4, ("s44", "0"), "s48"))
    if X("dryfin"):
        e("s_mov_b32 s59, s30", "s_mov_b32 s58, 0", f"s_cmp_eq_u32 s{sWAVE}, 0", "s_cbranch_scc1 F_FP", "s_mov_b32 s22, 0", "s_mov_b32 s30, 0", "s_branch F_FIN",
          "F_FP:", pl, "F_FD:", "s_waitcnt vmcnt(0)", "s_mov_b32 s22, 327680", "s_mov_b32 s30, s59", "s_mov_b32 s58, 1", "s_barrier", stamp(4), fstamp(10, "tail"), "F_FIN:")
    else: e(pl, "s_barrier", stamp(4), fstamp(10, "tail"))
    def ldp(i):
        return [f"buffer_load_dwordx4 {v(16+16*i+4*src,4)}, v{LX if i < 4 else 5}, s[20:23], s{50+src} offen offset:{1024*(i%4)} sc1 ; @P{i}" for src in range(4)]
    AH_ = ([int(x[2:]) for x in EXP[0].split() if x.startswith("ah")] or [2])[0]
    k0 = len(e)
    for i in range(AH_): e(ldp(i))
    e("s_waitcnt lgkmcnt(0)")
    for nt in range(5):
        S = 16 + 16*nt; G = S + 12; Xr = XV + 2*nt; t = 112 + 12*nt; W = 176 + 4*nt
        if nt + AH_ < 5: e(ldp(nt + AH_))
        e(f"s_waitcnt vmcnt(@P{nt})", fstamp(11, "tail") if nt == 0 else [])
        for r in range(4): e(f"v_add_f32 v{S+r}, v{S+r}, v{S+4+r}")
        for r in range(4): e(f"v_fmac_f32 v{G+r}, s57, v{W+r}")
        for r in range(4): e(f"v_add_f32 v{S+r}, v{S+r}, v{S+8+r}")
        for r in range(4): e(f"v_fmac_f32 v{S+r}, s56, v{W+r}")
        e(f"v_cvt_pk_bf16_f32 v{t+2}, v{G}, v{G+1}", f"v_cvt_pk_bf16_f32 v{t+3}, v{G+2}, v{G+3}",
          f"v_cvt_pk_bf16_f32 v{t}, v{S}, v{S+1}", f"v_cvt_pk_bf16_f32 v{t+1}, v{S+2}, v{S+3}")
        for k in range(2):
            e(f"v_lshlrev_b32 v{G+2*k}, 16, v{t+2+k}", f"v_and_b32 v{G+2*k+1}, 0xffff0000, v{t+2+k}",
              f"v_lshlrev_b32 v{S+2*k}, 16, v{t+k}", f"v_and_b32 v{S+2*k+1}, 0xffff0000, v{t+k}")
        for r in range(4): e(f"v_mul_f32 v{t+4+r}, s38, v{G+r}")
        for r in range(4): e(f"v_exp_f32 v{t+4+r}, v{t+4+r}")
        for r in range(4): e(f"v_add_f32 v{t+4+r}, 1.0, v{t+4+r}")
        for r in range(4): e(f"v_rcp_f32 v{t+4+r}, v{t+4+r}")
        for r in range(4): e(f"v_mul_f32 v{G+r}, v{G+r}, v{t+4+r}")
        e(f"v_cvt_pk_bf16_f32 v{t+2}, v{G}, v{G+1}", f"v_cvt_pk_bf16_f32 v{t+3}, v{G+2}, v{G+3}")
        for k in range(2): e(f"v_lshlrev_b32 v{G+2*k}, 16, v{t+2+k}", f"v_and_b32 v{G+2*k+1}, 0xffff0000, v{t+2+k}")
        for r in range(4): e(f"v_mul_f32 v{S+r}, v{S+r}, v{G+r}")
        e(f"v_cvt_pk_bf16_f32 v{t}, v{S}, v{S+1}", f"v_cvt_pk_bf16_f32 v{t+1}, v{S+2}, v{S+3}")
        for k in range(2):
            e(f"v_lshlrev_b32 v{S+2*k}, 16, v{t+k}", f"v_and_b32 v{S+2*k+1}, 0xffff0000, v{t+k}",
              f"v_lshlrev_b32 v{G+2*k}, 16, v{Xr+k}", f"v_and_b32 v{G+2*k+1}, 0xffff0000, v{Xr+k}")
        for r in range(4): e(f"v_add_f32 v{S+r}, v{S+r}, v{G+r}")
        e(f"v_cvt_pk_bf16_f32 v{t+8}, v{S}, v{S+1}", f"v_cvt_pk_bf16_f32 v{t+9}, v{S+2}, v{S+3}")
        e(f"buffer_store_dwordx2 {v(t+8,2)}, v3, s[28:31], 0 offen offset:{32*nt}" + (" sc1" if X("outsc1") else "") + (" nt" if X("outnt") else ""))
    e[k0:] = resolve(e[k0:], [])
    if X("dryfin"): e("s_cmp_eq_u32 s58, 0", "s_cbranch_scc1 F_FD")
    e(fstamp(12, "tail"))
    return e

def encode():
    en = [x for x in EXP[0].split() if x.startswith("enc:")]
    if not en: return []
    _, i, j, mult, W = en[0].split(":")
    return E()(f"s_cmp_lg_u32 s2, {W}", "s_cbranch_scc1 F_END", f"s_sub_u32 s66, s{88+int(j)}, s{88+int(i)}", f"s_mul_i32 s66, s66, {mult}", "s_add_u32 s66, s66, 15000",
               "F_ENC:", "s_memrealtime s[86:87]", "s_waitcnt lgkmcnt(0)", "s_sub_u32 s67, s86, s88", "s_cmp_lt_u32 s67, s66", "s_cbranch_scc1 F_ENC")

def gen(exp=""):
    sites.clear(); lab[0] = 0; EXP[0] = exp
    L = E()(kernel_head(NAME))
    if X("early0"): L("s_memrealtime s[100:101]")
    L("s_cmp_ge_u32 s2, 256", "s_cbranch_scc1 F_END")
    pro = front() + (cstamp(8) if X("qcyc") else [])
    qc, qfirst, q18 = qcounts()
    qloop = []; qfp = []; stubs = E()
    for u in range(6):
        b = qsub(u, last=40, vmw=qc[u])
        if u in qfirst:
            k = b.index(f"s_waitcnt vmcnt({qc[u]})")
            qfp += b[:k] + [f"s_waitcnt vmcnt({qfirst[u]})"] + b[k+1:]
            j = max(i for i in range(k) if b[i].startswith(MF))
            j = max(i for i in range(j) if b[i].startswith(MF))
            b = b[:j+1] + [f"s_cmp_eq_u32 s{sCNT}, 0"] + b[j+1:k] + [f"s_cbranch_scc1 F_QS{u}", b[k], f"F_QB{u}:"] + b[k+1:]
            stubs(f"F_QS{u}:", f"s_waitcnt vmcnt({qfirst[u]})", f"s_branch F_QB{u}")
        else: qfp += b
        qloop += b
    qctl = [f"s_add_u32 s{sCNT}, s{sCNT}, 1", f"s_cmp_lt_u32 s{sCNT}, 3", "s_cbranch_scc1 F_QL"]
    ex = {18: {}, 19: {}}
    for (kind, j), (u, g0) in zip([("K", 0), ("K", 1), ("V", 0), ("K", 2)], [(18, 4), (18, 20), (18, 36), (19, 4)]):
        m, d = kvgroup(kind, j)
        ex[u].setdefault(g0, []).extend(m)
        for t, dg in enumerate((1, 2, 3)): ex[u].setdefault(g0 + dg, []).append(d[t])
    rd = relayout_dst()
    if X("hfirst"):
        for k, g in enumerate(8*a_ + b_ for a_ in range(6) for b_ in range(3)): ex[18].setdefault(g, []).append(rd[k])
    else:
        for k, g in enumerate((36, 37, 38, 39, 44, 45, 46, 47, 52)): ex[19].setdefault(g, []).extend(rd[2*k:2*k+2])
    q19 = qsub(19, extra=ex[19])
    if X("hfirst"):
        q19, left = fill(q19, hops())
        if X("showcnt"): print("h ops left over:", len(left))
        q19 += left
    mid = qsub(18, extra=ex[18], vmw="@W19") + q19 + stamp(6) + fstamp(1, "conv") + (cstamp(9) if X("qcyc") else []) + convert() + fstamp(2, "conv") + init() + fstamp(7, "conv") + stamp(7) + (cstamp(8) if not (X("tcyc") or X("qcyc")) else [])
    keep = mid
    mid = [l + (" ; " + re.search(r"@\S+", k).group(0) if k.startswith("buffer_") and "@" in k and "@" not in l else "") for l, k in zip(resolve(mid, q18), keep)]
    ctl = [f"s_add_u32 s{sCNT}, s{sCNT}, 1", f"s_bitcmp1_b32 {hx(1 << 11 | 1 << 12 | 1 << 15 | (1 << 14 if X('x_tlb') else 0))}, s{sCNT}", "s_cbranch_scc0 F_AL"]
    rlk = {1: "dma", 3: "out"} if not X("norl") else {}
    if not X("nokvt"): rlk.update({2: "tk", 0: "tv"})
    mid = mid + [f"s_mov_b32 s{sCNT}, 0"]
    def mk(i, w): return step(i, vmw=w, tail=ctl if (i >= 3 and i % 4 == 2) else (), rl=rlk.get(i % 4) if i >= 3 else None)
    q = [re.search(r"@(\S+)", l).group(1) if "@" in l else "-" for l in mid if l.startswith("buffer_")]; cnts = {}
    for i in range(23):
        key = i if i < 3 else 3 + (i-3) % 4
        for l in mk(i, "?"):
            if "vmcnt(?)" in l:
                need = [f"K{i+2}"] + ([f"V{i}", f"V{i+1}"] if i % 2 == 0 else []) + (["R"] if i % 4 == 2 else [])
                c = len(q) - 1 - max(k for k, x in enumerate(q) if x in need)
                cnts[key] = min(cnts.get(key, 63), c)
            if l.startswith("buffer_"): q.append(re.search(r"@(\S+)", l).group(1))
    sites.clear()
    s0 = mk(0, cnts[0]) + mk(1, cnts[1]) + mk(2, cnts[2])
    body = [mk(i, cnts[i]) for i in range(3, 7)]
    def drop(pred):
        for k in range(4): body[k] = [l for l in body[k] if not pred(l)]
    if X("x_nobar"): drop(lambda l: l == "s_barrier")
    if X("x_nodma"): drop(lambda l: l.startswith("buffer_"))
    if X("x_nochk"): drop(lambda l: l.startswith("s_cbranch_vccnz"))
    if X("x_nolgkm"):
        for k in range(4): body[k] = [re.sub(r" lgkmcnt\(\d+\)", "", l) for l in body[k] if not l.startswith("s_waitcnt lgkmcnt")]
    if X("x_nods"): drop(lambda l: l.startswith("ds_"))
    if X("showcnt"): print("step counts", cnts, "q counts", qc)
    tlb = E()
    if X("x_tlb"):
        tlb(f"s_cmp_lg_u32 s{sCNT}, 14", "s_cbranch_scc1 F_H0", srd(28, pWS, pWS+1, 0x8000000),
            f"s_lshl_b32 s66, s{sQB}, 2", f"s_mul_i32 s66, s66, {OF_BLK}", f"s_add_u32 s66, s66, {hx(WS_OF + 190*4096)}", f"v_mul_u32_u24 v2, {OF_BLK}, v0", "v_add_u32 v2, s66, v2",
            f"s_and_b32 s66, s{sHEAD}, 3", f"s_mul_i32 s67, s66, {WF160}", f"s_add_u32 s67, s67, {hx(WS_WF)}", "v_subrev_u32 v3, 4, v0", "v_lshlrev_b32 v3, 20, v3", "v_add_u32 v3, s67, v3",
            "v_cmp_gt_u32 vcc, 4, v0", f"s_lshl_b32 s67, s{sQB}, 3", "s_add_u32 s66, s66, s67", "v_cndmask_b32 v2, v3, v2, vcc",
            "s_mul_i32 s66, s66, 327680", f"s_add_u32 s66, s66, {hx(WS_PB)}", "v_subrev_u32 v3, 7, v0", f"v_mul_u32_u24 v3, {4*327680}, v3", "v_add_u32 v3, s66, v3",
            "v_cmp_gt_u32 vcc, 7, v0", "s_nop 1", "v_cndmask_b32 v2, v3, v2, vcc", "v_cmp_gt_u32 vcc, 9, v0", "v_bfrev_b32 v3, 1", "s_nop 0", "v_cndmask_b32 v2, v3, v2, vcc",
            "buffer_load_dword v1, v2, s[28:31], 0 offen", srd(28, pOUT, pOUT+1, 2621440), f"s_mul_i32 s66, s{sQB}, 327680", "buffer_load_dword v1, off, s[28:31], s66",
            "s_branch F_AL", "F_H0:")
    hooks = E()(f"s_cmp_eq_u32 s{sCNT}, 15", "s_cbranch_scc1 F_LAST", tlb, f"s_cmp_lg_u32 s{sWAVE}, 0", "s_cbranch_scc1 F_AL",
                f"s_cmp_eq_u32 s{sCNT}, 12", "s_cbranch_scc1 F_H1", signal(2), "s_mov_b32 s66, 4",
                "s_cmp_ge_u32 s2, 8", "s_cbranch_scc1 F_AL", srd(28, pDBG, pDBG+1, 64), "s_mov_b64 exec, 1",
                f"v_mov_b32 v{RLV}, 1", f"buffer_atomic_add v{RLV}, off, s[28:31], s66 sc0 sc1", "s_mov_b64 exec, -1", "s_branch F_AL",
                "F_H1:", "s_cmp_ge_u32 s2, 8", "s_cbranch_scc1 F_AL", "s_lshl_b32 s66, s2, 2", "s_add_u32 s66, s66, 32", "s_mov_b64 exec, 1",
                f"v_add_u32 v{RLV}, 1, v{RLV}", f"buffer_store_dword v{RLV}, off, s[28:31], s66 sc1", "s_mov_b64 exec, -1", "s_branch F_AL")
    last = (cstamp(9) if not (X("tcyc") or X("qcyc")) else []) + fstamp(1, "last") + laststep()
    h1 = E()(stamp(10), fstamp(1, "tail"), fstamp(5, "last"), "s_waitcnt vmcnt(24)", CHK2, roles(), fstamp(6, "last"), tail_setup(), (decode() + [flagld()]) if X("qflag") else [], tail_vsetup(), fstamp(7, "last"), "s_waitcnt vmcnt(0)", fstamp(8, "last"), fstamp(2, "tail"), "s_barrier", wave0(signal(3)), fstamp(3, "tail"))
    preS, bodyS, ctlS, cS, fpS = tloop()
    hS = E()(preS, cstamp(8) if X("tcyc") else [])
    sim = tpre(False) + [x for st in range(28) for x in tstage(st, False, 0)]
    q28 = [re.search(r"@(\S+)", l).group(1) for l in sim if l.startswith("buffer_")][-24:]
    finS = E()(resolve(tfinal(cS), q28), stamp(12), fstamp(6, "tail"), cstamp(9) if X("tcyc") else [])
    end = tail_end()
    L(pro, ".p2align 6", "F_QL:", qloop, qctl, mid, s0, ".p2align 6", ["s_nop 0"]*([int(x[2:]) for x in exp.split() if x.startswith("sh")] or [0])[0], "F_AL:", *body, hooks, "F_LAST:", last,
      h1, hS, ".p2align 6", "F_TLS:", bodyS, ctlS, finS, "F_TE:", end, stamp_flush(0, 13, pWS, f"s{sWAVE}"), encode(), "F_END:", "s_endpgm")
    for k, par in enumerate(sites):
        L(f"F_TR{k}:", f"s_call_b64 s[{sRET}:{sRET+1}], F_SLOW{par}", f"s_branch F_BK{k}")
    L(stubs, tstubs, flagspin("F_TSP", "F_TSB"), "F_PFE:", slow(0), slow(1), slow(2), slow(3))
    flat = lambda Z: [y for x in Z for y in x]
    pro = [l for l in pro if l not in ("s_branch F_LN",)]
    tr = pro + qfp + qctl + (qloop + qctl)*2 + mid + s0 + flat(body) + flat(body) + last + h1
    if "x_" in exp: return L, kernel_desc(NAME, 512, 256), "; @launch grid=(256,1,1) block=(256,1,1) lds=163840"
    check(tr + hS + fpS + ctlS + (bodyS + ctlS)*6 + finS + end, "S")
    check(flagspin("A", "B") + bodyS, "spin")
    for n in range(4):
        b = body[n]
        idx = [i for i, x in enumerate(b) if x.startswith("F_BK")][0]
        check(body[(n-1) % 4] + b[:idx] + slow((3+n) % 4) + b[idx:] + body[(n+1) % 4], f"slow{n}")
    return L, kernel_desc(NAME, 512, 256), "; @launch grid=(256,1,1) block=(256,1,1) lds=163840"

def build(path, **kw):
    HDR = open("recurrent_scan__gqa_block_cached__dense_activation_relu__prompt.s.ref").read().split("; Override launch")[0]
    L, D, H = gen(**kw)
    L = [re.sub(r"\s*; @\S+$", "", l) for l in L]
    NOTE = """;
; One launch, 256 workgroups (one per CU), 4 waves x 64 query rows, v_mfma_f32_16x16x32_bf16 throughout.
;   3. flash attention over 64 key tiles; exp2 is taken against a running reference that starts at the true maximum of
;      the first tile and is moved to the true running maximum whenever a row sum leaves the safe range (F_SLOW*);
;      wo / w2 are re-laid out as MFMA fragments in otherwise idle issue slots
;   4. o @ wo and h @ w2 as 128 x 160 tiles with K split over four workgroups (shares follow the order of arrival),
;      partial sums exchanged through d_ws, then out = x + s * silu(g)
"""
    open(path, "w").write(HDR + NOTE + H + "\n" + '.amdgcn_target "amdgcn-amd-amdhsa--gfx950"\n' + "\n".join(L) + "\n" + "\n".join(D) + "\n")
if __name__ == "__main__":
    for flag, mode in (("--ts", None), ("--tail", "tail"), ("--front", "front"), ("--last", "last"), ("--conv", "conv")):
        if flag in sys.argv:
            OPT["ts"] = True; OPT["mode"] = mode; sys.argv.remove(flag)
    build(sys.argv[1], exp=" ".join(sys.argv[2:]))
```

```python
from common import *
import re, sys

NAME = "recurrent_scan__gqa_block_cached__dense_activation_relu__prompt_kernel"
MF = "v_mfma_f32_16x16x32_bf16"
EXP = [""]
DEFAULTS = ["poll1", "touch3", "hfirst", "wfirst", "qsnake"]
def X(flag): return flag in EXP[0].split() or (flag in DEFAULTS and "no_" + flag not in EXP[0].split())

KR, VR = 0, 49152
WA, WB = 65536, 114688
ST = 122880
OWN = 81920
pX, pK, pV, pWQ, pWO, pWS, pW1, pW2, pOUT, pDBG = 4, 6, 8, 10, 68, 70, 72, 74, 76, 78
sK_SRD, sV_SRD, sWQ_SRD, sW1_SRD, sXF_SRD, sOF_SRD, sFL = 12, 16, 20, 24, 28, 32, 80
sWAVE, sHEAD, sM64, sKo = 36, 37, 38, 39
sMK, sMV, sMW = 40, 44, 48
sWq, sW1, sX, sCNT, sC, sTHR, sO, sVo, sRET = 54, 55, 56, 57, 58, 60, 61, 63, 64
sH = [6, 7, 62]
sTMP, sU, sT, sQB = 66, 67, 84, 85
sRSRC, sRDST, sRM, sRS = 8, 20, 24, 25
QV, NM, S0, S1, P, KF, VF, ET, T_, L_ = 16, 48, 64, 96, 112, 176, 200, 224, 232, 236
AK, AV, DK, DV, CK, LX, RLV = 240, 242, 246, 249, 224, 253, 254
AF, DA, DB, DH, AWA, AWB, AH, LXB, LX8, LXB2 = 16, 40, 44, 46, 192, 200, 204, 207, 208, 209
CSCALE = math.log2(math.e) / math.sqrt(192.0)
THR = 2.0 ** 30
SPIN = 1 << 18

def srdn(b): return f"s[{b}:{b+3}]"
class E(list):
    def __call__(self, *x):
        for y in x:
            if isinstance(y, list): self.extend(y)
            else: self.append(y)
        return self
lab = [0]
def newlab(p):
    lab[0] += 1; return f"F_{p}{lab[0]}"
def wave0(body):
    l = newlab("W")
    return E()(f"s_cmp_lg_u32 s{sWAVE}, 0", f"s_cbranch_scc1 {l}", body, f"{l}:")

def poll(phase, mask, soff, wide=False, vaddr="v2"):
    l, d = newlab("P"), newlab("D")
    e = E()
    e(f"s_mov_b32 exec_lo, {mask[0]}", f"s_mov_b32 exec_hi, {mask[1]}", f"s_add_u32 s{sTMP}, s{sT}, {phase}", f"s_mov_b32 s{sU}, 0")
    if wide:
        e(f"{l}:", f"buffer_load_dwordx4 v[4:7], {vaddr}, {srdn(sFL)}, {soff} offen sc1", "s_waitcnt vmcnt(0)")
        for r in range(4): e(f"v_subrev_u32 v{4+r}, s{sTMP}, v{4+r}")
        e("v_max3_u32 v4, v4, v5, v6", "v_max_u32 v4, v4, v7")
        e(f"v_cmp_lt_u32 vcc, {4-phase}, v4", f"s_add_u32 s{sU}, s{sU}, 1", f"s_cmp_gt_u32 s{sU}, {SPIN}", f"s_cbranch_scc1 {d}", f"s_cbranch_vccnz {l}")
    elif X("poll1"):
        e(f"{l}:", f"buffer_load_dword v4, {vaddr}, {srdn(sFL)}, {soff} offen sc1", "s_waitcnt vmcnt(0)", f"v_subrev_u32 v4, s{sTMP}, v4")
        e(f"v_cmp_lt_u32 vcc, {4-phase}, v4", f"s_add_u32 s{sU}, s{sU}, 1", f"s_cmp_gt_u32 s{sU}, {SPIN}", f"s_cbranch_scc1 {d}", f"s_cbranch_vccnz {l}")
    else:
        ld = lambda r: f"buffer_load_dword v{r}, {vaddr}, {srdn(sFL)}, {soff} offen sc1"
        e(ld(8), "s_sleep 4", ld(9), "s_sleep 4", ld(10), f"{l}:")
        for r in (8, 9, 10):
            e("s_waitcnt vmcnt(2)", f"v_subrev_u32 v11, s{sTMP}, v{r}", f"v_cmp_lt_u32 vcc, {4-phase}, v11", f"s_add_u32 s{sU}, s{sU}, 1", ld(r), "s_nop 0", f"s_cbranch_vccz {d}")
        e(f"s_cmp_le_u32 s{sU}, {SPIN}", f"s_cbranch_scc1 {l}")
    e(f"{d}:", "s_mov_b64 exec, -1")
    return e
def signal(phase):
    return E()(f"s_add_u32 s{sTMP}, s{sT}, {phase}", f"s_lshl_b32 s{sU}, s{sQB}, 5", f"s_add_u32 s{sU}, s{sU}, s{sHEAD}", f"s_lshl_b32 s{sU}, s{sU}, 2",
               f"v_mov_b32 v4, s{sTMP}", "v_mov_b32 v5, 0", "s_mov_b64 exec, 1",
               f"buffer_store_dword v4, v5, {srdn(sFL)}, s{sU} offen sc1", "s_mov_b64 exec, -1")

def qacc(ds, tb, qt):
    n = (ds*2 + tb)*4 + qt
    return R("a", 4*n) if n < 24 else R("v", 48 + 4*(n-24))
def hacc(tt, qt): return R("v", 144 + 4*(tt*4 + qt))
def BF(s, kk, qt): return a(96 + 32*(s % 3) + 16*kk + 4*qt, 4)
def ldB(s): return [f"buffer_load_dwordx4 {BF(s,kk,qt)}, v{LXB2 if kk else LXB}, {srdn(sXF_SRD)}, s{sX} offen offset:{1024*qt} sc1 ; @B{s}" for kk in range(2) for qt in range(4)]
advX = [f"s_add_u32 s{sX}, s{sX}, 8192"]
advW = [f"s_add_u32 s{sWq}, s{sWq}, 786432", f"s_add_u32 s{sW1}, s{sW1}, 196608"]
def dmaW(u):
    if u % 2 == 0: return [f"buffer_load_dwordx4 v{DA+t}, {srdn(sWQ_SRD)}, s{sWq} offen offset:{1024*t} lds ; @W{u}" for t in range(4)]
    return [f"buffer_load_dwordx4 v{DB+t}, {srdn(sWQ_SRD)}, s{sWq} offen offset:{1024*t} lds ; @W{u}" for t in range(2)] + \
           [f"buffer_load_dwordx4 v{DH+t}, {srdn(sW1_SRD)}, s{sW1} offen offset:{1024*(t+2)} lds ; @W{u}" for t in range(2)]
TCH, TCD = 210, 212
sTq, sT1 = 64, 65
def touch(): return [f"buffer_load_dword v{TCD}, v{TCH}, {srdn(sWQ_SRD)}, s{sTq} offen ; @T", f"buffer_load_dword v{TCD}, v{TCH+1}, {srdn(sW1_SRD)}, s{sT1} offen offset:3072 ; @T"]
def TPS(): return [int(x[3:]) for x in EXP[0].split() if x.startswith("tps")] or ([] if X("notps") else [3])
def advT_():
    n = 1 if TPS() else 3
    return [f"s_add_u32 s{sTq}, s{sTq}, {n*786432}", f"s_add_u32 s{sT1}, s{sT1}, {n*196608}"]
def touch_addr(nst):
    return E()("v_mul_u32_u24 v1, 171, v0", "v_lshrrev_b32 v1, 9, v1", "v_mul_u32_u24 v2, 3, v1", "v_sub_u32 v2, v0, v2",
               "v_lshrrev_b32 v3, 1, v1", "v_and_b32 v1, 1, v1", "v_lshl_add_u32 v1, v3, 6, v1", f"v_add_u32 v1, s66, v1",
               "v_mul_lo_u32 v1, v1, s67", "v_lshl_add_u32 v1, v2, 7, v1", f"v_cmp_gt_u32 vcc, {6*nst}, v0", "v_bfrev_b32 v8, 1",
               "v_lshrrev_b32 v3, 2, v0", "v_bfe_u32 v2, v0, 1, 1", f"v_cndmask_b32 v{TCH}, v8, v1, vcc",
               "v_lshl_add_u32 v3, v3, 6, v2", "v_add_u32 v3, s66, v3", f"v_cmp_gt_u32 vcc, {4*nst}, v0", "v_mul_u32_u24 v3, 3072, v3",
               "v_and_b32 v2, 1, v0", "v_mul_u32_u24 v2, 92, v2", "v_add_u32 v3, v3, v2", f"v_cndmask_b32 v{TCH+1}, v8, v3, vcc")
def m0W(u): return f"s_mov_b32 m0, s{sMW + u % 6}"
def qorder(s): return list(range(8)) + ([12, 13, 14, 8, 9, 10, 11] if s == 9 and X("hfirst") else list(range(8, 15)))
def qrd(s, pos, kk, uu):
    T = qorder(s)[pos]
    dst = v(AF + 8*(pos % 3) + 4*kk + 2*uu, 2)
    if T < 8: return f"ds_read_b64_tr_b16 {dst}, v{AWA + T} offset:{(s % 3)*16384 + kk*8192 + uu*1024}"
    reg = AWB + T - 8 if T < 12 else AH + T - 12
    return f"ds_read_b64_tr_b16 {dst}, v{reg} offset:{(s % 3)*16384 + kk*8192 + uu*512}"
def qsub(u, last=20, extra=None, vmw=None):
    extra = extra or {}
    s = u >> 1; TL = list(range(8)) if u % 2 == 0 else list(range(8, 15)); nT = len(TL)
    L = []
    lb = ldB(s + 2) if (u % 2 == 0 and s + 2 < last//2) else []
    dw = dmaW(u + 5) if u + 5 < last else []
    for ti, T in enumerate(TL):
        for p in range(4):
            qt = p if T % 2 == 0 else 3 - p
            TT = qorder(s)[T]
            acc = (qacc(TT >> 1, TT & 1, qt) if TT < 12 else hacc(TT-12, qt))(4)
            for kk in range(2):
                g = 2*p + kk; gi = 8*ti + g
                L.append(f"{MF} {acc}, {v(AF + 8*(T % 3) + 4*kk, 4)}, {BF(s, kk, qt)}, {acc}")
                s2, T2 = s + (T+2)//15, (T+2) % 15
                if g < 4:
                    if 2*s2 < last: L.append(qrd(s2, T2, g >> 1, g & 1))
                    if g == 3:
                        left = 15*(last//2) - 1 - (15*s + T)
                        if left >= 1: L.append(f"s_waitcnt lgkmcnt({4 if left >= 2 else 0})")
                if lb and ti < 4 and g in (4, 6): L.append(lb[2*ti + (g-4)//2])
                if lb and ti == 4 and g == 4: L += advX
                if u % 6 == 2 and last > 20 and X("kvq"):
                    if ti == 4 and g == 5: L += [f"s_cmp_eq_u32 s{sCNT}, 1", "s_cselect_b32 s66, 0, s3"]
                    if ti == 4 and g == 6: L.append(f"buffer_load_dword v{TCD}, v{KVT}, {srdn(sK_SRD)}, s66 offen ; @T")
                    if ti == 5 and g == 4: L.append(f"buffer_load_dword v{TCD}, v{KVT}, {srdn(sV_SRD)}, s66 offen ; @T")
                if u % (2 if TPS() else 6) == 0 and last > 20 and not X("notouch"):
                    if ti == 4 and g == 6: L.append(touch()[0])
                    if ti == 5 and g == 4: L.append(touch()[1])
                    if ti == 5 and g == 5: L += advT_()
                if ti == nT-3 and g == 6 and dw: L.append(m0W(u+5))
                if ti == nT-3 and g == 7 and vmw is not None: L += [f"s_waitcnt vmcnt({vmw})", "s_barrier"]
                if dw and ti >= nT-2 and g in (4, 6): L.append(dw[2*(ti-nT+2) + (g-4)//2])
                if dw and u % 2 == 0 and ti == nT-1 and g == 7: L += advW
                L += extra.get(gi, [])
    return L
def qcounts():
    q = ["B1"]*8 + (["W2"]*4 + ["W3"]*4 + ["W4"]*4 if X("lateW") else [])
    out = {}; first = {}
    for u in range(18):
        for l in qsub(u, last=40, vmw="?"):
            if "vmcnt(?)" in l:
                need = ["W%d" % (u+1)] + (["B%d" % ((u+1)//2)] if u % 2 else [])
                idx = [i for i, x in enumerate(q) if x in need]
                if idx:
                    c = len(q) - 1 - max(idx)
                    if u < 6: first[u] = c
                    else: out[u % 6] = min(out.get(u % 6, 63), c)
            if l.startswith("buffer_"): q.append(re.search(r"@(\S+)", l).group(1))
    return out, {u: c for u, c in first.items() if c < out[u]}, q

def fill(L, ops):
    gaps = []
    for l in L:
        if l.startswith(MF) or not gaps: gaps.append([l])
        else: gaps[-1].append(l)
    ops = list(ops)
    for gi, g in enumerate(gaps):
        rest = [x for x in g[1:] if not x.endswith(":")]
        ds = any(x.startswith("ds_") for x in rest); vm = any(x.startswith("buffer_") for x in rest)
        nv = sum(x.startswith("v_") for x in rest); ns = len(rest) - nv - ds - vm
        if vm or "s_barrier" in rest: continue
        free = (1 - nv - ns) if ds else (2 - nv - max(0, ns - 1))
        while ops and ops[0][0] <= gi and free > 0:
            if ops[0][1] == "m":
                if ds or rest or len(g) > 1: break
                g.append(ops.pop(0)[2]); free = 0
            else: g.append(ops.pop(0)[2]); free -= 1
    return [x for g in gaps for x in g] , [x[2] for x in ops]
def hops():
    o = []
    for tt in range(3):
        for p in range(4):
            qt = p if (8 + tt) % 2 == 0 else 3 - p
            h = hacc(tt, qt); d = 2 + 2*((4*tt + p) % 6); g0 = 8*tt + 2*p + 1 + 6
            o += [(g0, "a", f"v_cvt_pk_bf16_f32 v{d}, {h(1,0)}, {h(1,1)}"), (g0, "a", f"v_cvt_pk_bf16_f32 v{d+1}, {h(1,2)}, {h(1,3)}"),
                  (g0, "a", f"v_pk_max_i16 v{d}, v{d}, 0"), (g0, "a", f"v_pk_max_i16 v{d+1}, v{d+1}, 0"),
                  (g0, "m", f"buffer_store_dwordx2 {v(d,2)}, v{LX8}, {srdn(sOF_SRD)}, s{sH[tt]} offen offset:{1024*qt} sc1")][:4 if X("x_nohst") else 5]
    return o
def convert():
    e = E()("s_nop 7")
    early = X("earlyk")
    k = 0
    late = X("lateh")
    if late: e(f"v_mov_b32 v14, v{LX8}")
    for tt in range(3 if not X("hfirst") else 0):
        for qt in range(4):
            h = hacc(tt, qt); d = 144 + 2*k if late else 2 + 2*(k % 6); k += 1
            e(f"v_cvt_pk_bf16_f32 v{d}, {h(1,0)}, {h(1,1)}", f"v_cvt_pk_bf16_f32 v{d+1}, {h(1,2)}, {h(1,3)}",
              f"v_pk_max_i16 v{d}, v{d}, 0", f"v_pk_max_i16 v{d+1}, v{d+1}, 0")
            if not late and not X("x_nohst"): e(f"buffer_store_dwordx2 {v(d,2)}, v{LX8}, {srdn(sOF_SRD)}, s{sH[tt]} offen offset:{1024*qt} sc1")
    if early:
        e("s_waitcnt vmcnt(@K0)", "s_barrier", [rdK(0, 0, ds) for ds in range(6)], [rdK(0, 1, ds, VF) for ds in range(6)])
        m, d = kvgroup("V", 1); e(m, d)
        m, d = kvgroup("K", 3); e(m, d[:2])
    kvl = [("K", 0), ("K", 1), ("V", 0), ("K", 2)] if X("kvlate") else []
    for ds in (3, 4, 5, 0, 1, 2):
        if kvl:
            m, d = kvgroup(*kvl.pop(0)); e(m, d)
        dsts = []
        for qt in range(4):
            f = ds*4 + qt
            Xr, Yr = qacc(ds, 0, qt), qacc(ds, 1, qt)
            if Xr.f == "a":
                tx, ty = R("v", (192 if late else 144) + 8*qt), R("v", (196 if late else 148) + 8*qt)
                for r in range(4): e(f"v_accvgpr_read_b32 {tx(1,r)}, {Xr(1,r)}")
                for r in range(4): e(f"v_accvgpr_read_b32 {ty(1,r)}, {Yr(1,r)}")
                Xr, Yr = tx, ty
            d = QV + 4*(f-16) if f >= 16 else (224 if early else 176) + 4*qt
            dsts.append(d)
            for Z in (Xr, Yr):
                if X("nopk"):
                    for r in range(4): e(f"v_mul_f32 {Z(1,r)}, s{sC}, {Z(1,r)}")
                else:
                    for r in (0, 2): e(f"v_pk_mul_f32 {Z(2,r)}, {Z(2,r)}, s[{sC}:{sC+1}]")
            e(f"v_cvt_pk_bf16_f32 v{d}, {Xr(1,0)}, {Xr(1,1)}", f"v_cvt_pk_bf16_f32 v{d+1}, {Xr(1,2)}, {Xr(1,3)}",
              f"v_cvt_pk_bf16_f32 v{d+2}, {Yr(1,0)}, {Yr(1,1)}", f"v_cvt_pk_bf16_f32 v{d+3}, {Yr(1,2)}, {Yr(1,3)}")
        e("s_mov_b32 exec_lo, 0")
        for d in dsts: e(f"v_swap_b32 v{d}, v{d+2}", f"v_swap_b32 v{d+1}, v{d+3}")
        e("s_mov_b32 exec_lo, -1")
        if ds < 4:
            for qt in range(4):
                for r in range(4): e(f"v_accvgpr_write_b32 a{192 + 4*(ds*4+qt) + r}, v{dsts[qt]+r}")
    return e

def hstores(): return [f"buffer_store_dwordx2 {v(144 + 2*k, 2)}, v14, {srdn(sOF_SRD)}, s{sH[k//4]} offen offset:{1024*(k%4)} sc1 ; @H" for k in range(12)]

def Qf(f): return a(192 + 4*f, 4) if f < 16 else v(QV + 4*(f-16), 4)
def Oacc(dt, qt): return (dt*4 + qt)*4
def dmaK(t): return f"buffer_load_dwordx4 v{DK+t}, {srdn(sK_SRD)}, s{sKo} offen offset:{1024*t} lds"
def dmaV(t): return f"buffer_load_dwordx4 v{DV+t}, {srdn(sV_SRD)}, s{sVo} offen offset:{1024*t} lds"
def kvgroup(kind, j):
    so = sKo if kind == "K" else sVo
    return [f"s_mov_b32 m0, s{(sMK if kind=='K' else sMV) + j}", f"s_mov_b32 s{so}, {12288*j}"], [(dmaK(t) if kind == "K" else dmaV(t)) + f" ; @{kind}{j}" for t in range(3)]
def rdK(slot, kt, ds, dst=KF): return f"ds_read_b128 {v(dst+4*ds,4)}, v{AK+(ds&1)} offset:{slot*12288 + kt*6144 + (ds>>1)*128}"
def Pb(t): return P + 16*(t % 4)
def rdVp(m2, part, dst=VF):
    return [f"ds_read_b64_tr_b16 {v(dst + 8*dl + 4*tl + 2*u, 2)}, v{AV + ((3*part+dl) & 3)} offset:{((m2+tl) % 4)*12288 + u*6144 + ((3*part+dl) >> 2)*128}"
            for dl in range(3) for tl in range(2) for u in range(2)]
def qk(dst, src=KF, czero=False):
    o = []
    for qt in range(4):
        for k in range(6):
            ds = 5 - k if (qt & 1 and X("qsnake")) else k
            d = v(dst+4*qt, 4)
            c = ("0" if czero else v(NM+4*qt, 4)) if k == 0 else d
            o.append(f"{MF} {d}, {v(src+4*ds,4)}, {Qf(ds*4+qt)}, {c}")
    return o
def pv(m2, part, czero=False, src=VF):
    o = []
    for dl in range(3):
        for p in range(4):
            qt = p if (3*part + dl) % 2 == 0 else 3 - p
            acc = a(Oacc(3*part+dl, qt), 4)
            for tl in range(2):
                o.append(f"{MF} {acc}, {v(src + 8*dl + 4*tl, 4)}, {v(Pb(m2+tl) + 4*qt, 4)}, {'0' if czero and tl == 0 else acc}")
    return o
def sm(src, qts, Pb, kt):
    Ex, Sx = [], []
    k = 0
    for qt in qts:
        for pr in range(2):
            t0 = ET + 2*k; t1 = t0 + 1; k += 1
            Ex += [f"v_exp_f32 v{t0}, v{src+4*qt+2*pr}", f"v_exp_f32 v{t1}, v{src+4*qt+2*pr+1}"]
            n = len(Ex)
            if kt == 0 and pr == 0: Sx.append((n, f"v_add_f32 v{T_+qt}, v{t0}, v{t1}"))
            else: Sx += [(n-1, f"v_add_f32 v{T_+qt}, v{T_+qt}, v{t0}"), (n, f"v_add_f32 v{T_+qt}, v{T_+qt}, v{t1}")]
            Sx.append((n, f"v_cvt_pk_bf16_f32 v{Pb+4*qt+2*kt+pr}, v{t0}, v{t1}"))
    return Ex, Sx
def quarter(mf, pat, Ex, Sx, D, B, salu):
    assert len(pat) == len(mf) == 24, (pat, len(pat))
    out = []; ei = si = di = bi = 0
    for gi, m in enumerate(mf):
        out.append(m); ty = pat[gi]
        sc = salu.get(gi, [])
        def take(n):
            nonlocal si
            r = []
            while n > 0 and si < len(Sx) and Sx[si][0] <= ei: r.append(Sx[si][1]); si += 1; n -= 1
            return r
        if ty == "e": out += sc + [Ex[ei]]; ei += 1
        elif ty == "d": out += [D[di]] + take(1) + sc; di += 1
        elif ty == "a": out += sc + take(2)
        elif ty == "1": out += sc + take(1)
        elif ty == "b": out += sc + [B[bi]]; bi += 1
        elif ty == "-": out += sc
        else: raise ValueError(ty)
    assert ei == len(Ex) and si == len(Sx) and di == len(D) and bi == len(B), (pat, ei, len(Ex), si, len(Sx), di, len(D), bi, len(B))
    return out
P1 = "ee" + "de"*6 + "d"*6 + "a1b-"
P2 = "de"*6 + "ee" + "baabaa" + "----"
P3 = "ed"*8 + "dddd" + "b---"
P4 = "ebeb" + "de"*6 + "aaa" + "-----"
CHK = [f"v_max3_f32 v{CK}, v{T_}, v{T_+1}, v{T_+2}", f"v_max_f32 v{CK}, v{CK}, v{T_+3}", f"v_cmp_lt_f32 vcc, s{sTHR}, v{CK}"]
LADD = [f"v_add_f32 v{L_+q}, v{L_+q}, v{T_+q}" for q in range(4)]
sites = []
def callsite(par):
    k = len(sites); sites.append(par)
    return [f"s_cbranch_vccnz F_TR{k}", f"F_BK{k}:"]
def step(i, vmw=12, tail=(), rl=None):
    par, slot = i & 1, i % 4
    S0n = S0 + 16*(1-par); Pc = Pb(i); Pn = Pb(i+1)
    m2 = i-1 if par else i-2
    p0 = 0 if par else 2
    nopv = i == 0; cz = i in (1, 2)
    mK = lambda j: f"s_mov_b32 m0, s{sMK + j % 4}"
    mV = lambda j: f"s_mov_b32 m0, s{sMV + j % 4}"
    aK = f"s_add_u32 s{sKo}, s{sKo}, 12288"; aV = f"s_add_u32 s{sVo}, s{sVo}, 12288"
    if par:
        B1 = [dmaV(2) + f" ; @V{i+1}"]; B2 = [dmaV(0) + f" ; @V{i+2}", dmaV(1) + f" ; @V{i+2}"]; B3 = [dmaV(2) + f" ; @V{i+2}"]
        B4 = [dmaK(0) + f" ; @K{i+4}", dmaK(1) + f" ; @K{i+4}"]; m2_, a2, a3, m4 = mV(i+2), aV, aV, mK(i+4)
    else:
        B1 = [dmaK(2) + f" ; @K{i+3}"]; B2 = [dmaK(0) + f" ; @K{i+4}", dmaK(1) + f" ; @K{i+4}"]; B3 = [dmaK(2) + f" ; @K{i+4}"]
        B4 = [dmaV(0) + f" ; @V{i+2}", dmaV(1) + f" ; @V{i+2}"]; m2_, a2, a3, m4 = mK(i+4), aK, aK, mV(i+2)
    L = []
    def emit(mf, pat, Ex, Sx, D, B, sal):
        if mf is None:
            sc = [x for g in sorted(sal) for x in sal[g] if not x.startswith("s_waitcnt")]
            hs = hstores()[6*emit.n:6*emit.n+6] if X("lateh") else []; emit.n += 1
            mixed = []
            for k, x in enumerate(Ex):
                mixed.append(x)
                if k < len(hs): mixed.append(hs[k])
            return D + sc + ["s_nop 3"] + B + mixed + [x for _, x in Sx] + ["s_waitcnt lgkmcnt(0)"]
        return quarter(mf, pat, Ex, Sx, D, B, sal)
    emit.n = 0
    Ex, Sx = sm(S1, [2, 3], Pc, 1)
    D1 = rdVp(m2, p0) if not nopv else []
    L += quarter(qk(S0n), P1 if D1 else P1.replace("d", "1"), Ex, Sx + [(8, x) for x in CHK], D1, B1, {23: ["s_waitcnt lgkmcnt(6)"]} if D1 else {})
    L += callsite(i % 4)
    Ex, Sx = sm(S0n, [0, 1], Pn, 0)
    pat = P2; D = [rdK((slot+1) % 4, 1, ds) for ds in range(6)]; B = B2
    sal = {3: [a2], 7: ["s_waitcnt lgkmcnt(4)"], 13: [m2_], 23: ["s_waitcnt lgkmcnt(0)"]}
    if rl == "dma":
        pat = P2[:20] + "b---"; B = B + [rl_dma() + " ; @R"]
        sal.update({18: [f"s_cmp_lt_u32 s{sCNT}, 9"], 19: [f"s_mov_b32 m0, s{sRM}"], 21: [f"s_cselect_b32 s{sTMP}, 128, s3", f"s_cselect_b32 s{sRI}, 1024, 0"],
                    22: [m2_, f"s_add_u32 s{sRS}, s{sRS}, s{sTMP}"], 23: ["s_waitcnt lgkmcnt(0)", f"s_add_u32 s{sRM}, s{sRM}, s{sRI}"]})
    if rl in ("tk", "tv") and X("kvt2"):
        pat = P2[:20] + "bb--"
        B = B + [f"buffer_load_dword v1, v{KVT}, {srdn(x)}, s{sKT} offen ; @T" for x in (sK_SRD, sV_SRD)]
        sal[22] = [f"s_add_u32 s{sKT}, s{sKT}, 24576"]
    elif rl in ("tk", "tv"):
        pat = P2[:20] + "b---"
        B = B + [f"buffer_load_dword v1, v{KVT}, {srdn(sK_SRD if rl == 'tk' else sV_SRD)}, s{sKT} offen ; @T"]
        if rl == "tk": sal[22] = [f"s_add_u32 s{sKT}, s{sKT}, 49152"]
    if rl == "out":
        pat = P2[:20] + "dad-"; D = D + [rl_rd(0), rl_rd(1)]; sal[23] = ["s_waitcnt lgkmcnt(2)"]
        xs = [(8, f"v_xor_b32 v{RTD+2}, s{sRX}, v{RTV}"), (8, f"v_add_u32 v{RTD+2}, s{sRU}, v{RTD+2}")]
    if rl == "out":
        q = quarter(pv(m2, p0, cz), pat.replace("dad-", "d-d-"), Ex, [(0, x) for x in LADD] + Sx, D, B, sal)
        k = q.index(rl_rd(0)); L += q[:k+2] + [x for _, x in xs] + q[k+2:]
    else: L += emit(None if nopv else pv(m2, p0, cz), pat, Ex, [(0, x) for x in LADD] + Sx, D, B, sal)
    Ex, Sx = sm(S0n, [2, 3], Pn, 0)
    D3 = rdVp(m2, p0+1) if not nopv else []
    sal = {21: [a3], 23: [f"s_waitcnt vmcnt({vmw}) lgkmcnt(0)", "s_barrier"]}
    L += quarter(qk(S1), P3 if D3 else P3.replace("d", "1"), Ex, Sx, D3, B3, sal)
    Ex, Sx = sm(S1, [0, 1], Pn, 1)
    sal = {0: [m4], 22: ["s_waitcnt lgkmcnt(0)"]}
    pat = P4; B = B4
    tail = list(tail)
    if tail:
        sal[19] = tail[:1]; sal[20] = tail[1:2]; sal[23] = tail[2:]
    if rl == "out":
        pat = P4[:19] + "b1---"; B = B + [rl_st() + " ; @S"]
        sal.update({5: [f"s_cmp_lt_u32 s{sCNT}, 10"], 7: [f"s_cselect_b32 s{sRJ}, 1024, 0"], 9: [f"s_sub_u32 s{sTMP}, s{sCNT}, 1"],
                    11: [f"s_cmp_lt_u32 s{sTMP}, 10"], 13: [f"s_cselect_b32 s{sTMP}, s{sRO}, s3"], 15: [f"s_cselect_b32 s{sRI}, 4096, 0"],
                    16: [f"s_add_u32 s{sRO}, s{sRO}, s{sRI}"], 17: [f"s_lshr_b32 s{sRI}, s{sRI}, 10"], 18: [f"s_add_u32 s{sRR}, s{sRR}, s{sRI}"],
                    20: [f"s_cmp_gt_u32 s{sRR}, 9"], 21: [f"s_cselect_b32 s{sRI}, {WF160 - 10240}, 0", f"s_cselect_b32 s{sTMP}, 10, 0"],
                    22: ["s_waitcnt lgkmcnt(0)", f"s_add_u32 s{sRO}, s{sRO}, s{sRI}"], 23: [f"s_sub_u32 s{sRR}, s{sRR}, s{sTMP}"]})
        Sx = Sx + [(8, f"v_add_u32 v{RTV}, s{sRJ}, v{RTV}")]
    L += emit(None if nopv else pv(m2, p0+1, cz), pat, Ex, Sx, [rdK((slot+2) % 4, 0, ds) for ds in range(6)], B, sal)
    return L
sRJ, sKT, KVT = 59, 58, 252
def kv_touch_addr(D):
    return E()(f"s_lshl_b32 s66, s{sQB}, 2", f"s_add_u32 s66, s66, s{sWAVE}", f"s_mul_i32 s66, s66, {768 if X('kvt2') else 1536}", "v_lshlrev_b32 v3, 7, v0", "v_add_u32 v3, s66, v3",
               f"v_cmp_gt_u32 vcc, {6 if X('kvt2') else 12}, v0", "v_bfrev_b32 v2, 1", "s_nop 0", f"v_cndmask_b32 v{KVT}, v2, v3, vcc")
def xlane(op, dst, tmp):
    L = []
    for sw in ("v_permlane16_swap_b32", "v_permlane32_swap_b32"):
        L += [f"v_mov_b32 v{tmp+qt}, v{dst+qt}" for qt in range(4)] + ["s_nop 1"]
        L += [f"{sw} v{dst+qt}, v{tmp+qt}" for qt in range(4)]
        L += [f"{op} v{dst+qt}, v{dst+qt}, v{tmp+qt}" for qt in range(4)]
    return L
def rowmax(dst, srcs, tmp):
    L = []
    for qt in range(4):
        r = srcs(qt); d = dst + qt
        L += [f"v_max3_f32 v{d}, v{r[0]}, v{r[1]}, v{r[2]}", f"v_max3_f32 v{d}, v{d}, v{r[3]}, v{r[4]}",
              f"v_max3_f32 v{d}, v{d}, v{r[5]}, v{r[6]}", f"v_max_f32 v{d}, v{d}, v{r[7]}"]
    return L + xlane("v_max_f32", dst, tmp)
def init():
    e = E()
    if not X("earlyk"):
        e("s_waitcnt vmcnt(@K0)", "s_barrier", fstamp(3, "conv"))
        for ds in range(6): e(rdK(0, 0, ds))
        for ds in range(6): e(rdK(0, 1, ds, VF))
        m, d = kvgroup("V", 1); e(m, d)
        m, d = kvgroup("K", 3); e(m, d[:2])
    e(f"s_mov_b32 s{sKT}, {4*12288}")
    NI = ([int(x[3:]) for x in EXP[0].split() if x.startswith("kvi")] or [4 if X("kvt2") else 2])[0]
    for _ in range(NI):
        e(f"buffer_load_dword v1, v{KVT}, {srdn(sK_SRD)}, s{sKT} offen ; @T", f"buffer_load_dword v1, v{KVT}, {srdn(sV_SRD)}, s{sKT} offen ; @T", f"s_add_u32 s{sKT}, s{sKT}, {24576 if X('kvt2') else 49152}")
    e(f"s_mov_b32 s{sVo}, {2*12288}")
    for q in range(4): e(f"v_mov_b32 v{L_+q}, 0")
    e(fstamp(4, "conv"), "s_waitcnt lgkmcnt(6)", qk(S0, KF, True), "s_waitcnt vmcnt(@K1) lgkmcnt(0)", "s_barrier", fstamp(5, "conv"))
    m = qk(S1, VF, True)
    rd = [rdK(1, 0, ds) for ds in range(6)]
    for i, x in enumerate(m):
        e(x)
        if i < 6: e(rd[i])
    e("s_nop 7", fstamp(6, "conv"))
    D, TM = 2, 6
    e(rowmax(D, lambda qt: [S0+4*qt+r for r in range(4)] + [S1+4*qt+r for r in range(4)], TM))
    for qt in range(4): e(f"v_ceil_f32 v{D+qt}, v{D+qt}")
    for qt in range(4):
        for r in range(4):
            e(f"v_sub_f32 v{NM+4*qt+r}, 0, v{D+qt}", f"v_sub_f32 v{S0+4*qt+r}, v{S0+4*qt+r}, v{D+qt}", f"v_sub_f32 v{S1+4*qt+r}, v{S1+4*qt+r}, v{D+qt}")
    for src, qts, kt in ((S0, [0, 1], 0), (S0, [2, 3], 0), (S1, [0, 1], 1)):
        Ex, Sx = sm(src, qts, Pb(0), kt)
        e(Ex, [x for _, x in Sx])
    e("s_waitcnt lgkmcnt(0)")
    return e
def slow(k):
    par = k & 1
    S0c = S0 + 16*par; S0n = S0 + 16*(1-par)
    e = E()(f"F_SLOW{k}:", "s_nop 7", "s_nop 7")
    D, TM = 2, 6
    e(rowmax(D, lambda qt: [S0c+4*qt+r for r in range(4)] + [S1+4*qt+r for r in range(4)], TM))
    for qt in range(4): e(f"v_max_f32 v{D+qt}, 0, v{D+qt}", f"v_ceil_f32 v{D+qt}, v{D+qt}", f"v_sub_f32 v{TM+qt}, 0, v{D+qt}", f"v_cvt_i32_f32 v{TM+qt}, v{TM+qt}")
    for qt in range(4):
        e(f"v_ldexp_f32 v{L_+qt}, v{L_+qt}, v{TM+qt}")
        for base in (NM, S0c, S1, S0n):
            for r in range(4): e(f"v_sub_f32 v{base+4*qt+r}, v{base+4*qt+r}, v{D+qt}")
    for t in ([k-1] if par else [k-1, k-2]):
        for qt in range(4):
            for r in range(4):
                p = Pb(t) + 4*qt + r
                e(f"v_lshlrev_b32 v10, 16, v{p}", f"v_and_b32 v11, 0xffff0000, v{p}", f"v_ldexp_f32 v10, v10, v{TM+qt}", f"v_ldexp_f32 v11, v11, v{TM+qt}",
                  f"v_cvt_pk_bf16_f32 v{p}, v10, v11")
    for dt in range(12):
        for qt in range(4):
            b = Oacc(dt, qt)
            for r in range(2):
                e(f"v_accvgpr_read_b32 v10, a{b+2*r}", f"v_accvgpr_read_b32 v11, a{b+2*r+1}", f"v_ldexp_f32 v10, v10, v{TM+qt}", f"v_ldexp_f32 v11, v11, v{TM+qt}",
                  f"v_accvgpr_write_b32 a{b+2*r}, v10", f"v_accvgpr_write_b32 a{b+2*r+1}, v11")
    for src, qts, kt in ((S0c, [0, 1], 0), (S0c, [2, 3], 0), (S1, [0, 1], 1), (S1, [2, 3], 1)):
        Ex, Sx = sm(src, qts, Pb(k), kt)
        e(Ex, [x for _, x in Sx])
    e("s_nop 1", f"s_setpc_b64 s[{sRET}:{sRET+1}]")
    return e

def relayout_src():
    return E()("s_cmp_lt_u32 s2, 192", f"s_cselect_b32 s{sRSRC}, s{pWO}, s{pW2}", f"s_cselect_b32 s{sRSRC+1}, s{pWO+1}, s{pW2+1}", "s_cselect_b32 s66, 0, 192",
               "s_sub_u32 s66, s2, s66", "s_mul_i32 s66, s66, 40960", f"s_add_u32 s{sRSRC}, s{sRSRC}, s66", f"s_addc_u32 s{sRSRC+1}, s{sRSRC+1}, 0",
               "s_cmp_lt_u32 s2, 240", f"s_cselect_b32 s{sRSRC+2}, 40960, 0", f"s_mov_b32 s{sRSRC+3}, 0x20000")
def relayout_dst():
    return E()("s_mul_i32 s66, s2, 10240", f"s_add_u32 s67, s66, {hx(WS_WF)}", f"s_sub_u32 s{sRDST+2}, {4*WF160}, s66",
               "s_cmp_lt_u32 s2, 240", f"s_cselect_b32 s{sRDST+2}, s{sRDST+2}, 0", f"s_cselect_b32 s67, s67, {hx(WS_WF)}",
               f"s_add_u32 s{sRDST}, s{pWS}, s67", f"s_addc_u32 s{sRDST+1}, s{pWS+1}, 0", f"s_mov_b32 s{sRDST+3}, 0x20000",
               f"s_mul_i32 s{sRM}, s{sWAVE}, 10240", f"s_add_u32 s{sRM}, s{sRM}, {ST}", f"s_mov_b32 s{sRS}, 0",
               f"s_lshl_b32 s{sRO}, s{sWAVE}, 10", f"s_mov_b32 s{sRR}, s{sWAVE}",
               "s_cmp_lt_u32 s2, 192", f"s_cselect_b32 s{sRX}, 0, 64", f"s_mov_b32 s{sRU}, 512", f"s_cselect_b32 s{sRU}, 20480, s{sRU}")
RTV, RTD = 255, 12
sRO, sRR, sRI = 26, 27, 62
def relayout_vaddr():
    return E()(f"s_mov_b32 s67, {ST - 1024}", _relayout_vaddr())
def _relayout_vaddr():
    return E()("v_lshrrev_b32 v1, 2, v0", "v_and_b32 v1, 7, v1", "v_lshlrev_b32 v2, 7, v1", "v_lshrrev_b32 v3, 5, v0", "v_mul_u32_u24 v3, 10240, v3", "v_add_u32 v2, v2, v3",
               "v_and_b32 v3, 3, v0", "v_lshl_add_u32 v2, v3, 3, v2", f"v_add_u32 v2, {ST - 1024}, v2", "v_lshrrev_b32 v1, 1, v1", "v_lshlrev_b32 v1, 5, v1",
               f"s_lshl_b32 s66, s{sWAVE}, 5", "v_xor_b32 v1, s66, v1", "v_add_u32 v4, v1, v2",
               "v_lshrrev_b32 v1, 4, v0", "v_mul_u32_u24 v1, 10240, v1", "v_bfe_u32 v2, v0, 2, 2", "v_lshl_add_u32 v1, v2, 7, v1", "v_lshl_add_u32 v1, v3, 3, v1",
               "v_lshrrev_b32 v2, 1, v2", "v_lshlrev_b32 v2, 5, v2", "v_xor_b32 v2, s66, v2", f"v_add3_u32 v1, v1, v2, s67",
               "s_cmp_lt_u32 s2, 192", "s_cselect_b64 vcc, -1, 0", f"v_cndmask_b32 v{RTV}, v1, v4, vcc")
def rl_dma(): return f"buffer_load_dwordx4 v{RLV}, {srdn(sRSRC)}, s{sRS} offen lds"
sRX, sRU = 48, 49
def rl_rd(u): return f"ds_read_b64_tr_b16 {v(RTD+2*u,2)}, v{RTV if u == 0 else RTD+2}"
def rl_st(): return f"buffer_store_dwordx4 {v(RTD,4)}, v{LX}, {srdn(sRDST)}, s{sTMP} offen sc1"

def front():
    e = E()
    e("s_load_dwordx8 s[4:11], s[0:1], 0", f"s_load_dwordx2 s[{pWO}:{pWO+1}], s[0:1], 32", f"s_load_dwordx4 s[{pW1}:{pW1+3}], s[0:1], 48",
      f"s_load_dwordx4 s[{pOUT}:{pOUT+3}], s[0:1], 64", f"s_load_dwordx2 s[{pWS}:{pWS+1}], s[0:1], 80")
    if not X("nopf"):
        e("s_getpc_b64 s[66:67]", "F_PC:", "v_lshrrev_b32 v1, 6, v0", "s_lshr_b32 s62, s2, 3", "s_mul_i32 s62, s62, 1536", "s_add_u32 s62, s62, 8192 - 512",
          "v_and_b32 v2, 63, v0", "v_lshlrev_b32 v4, 7, v2", "v_and_b32 v2, 3, v0", "v_lshl_add_u32 v2, v1, 2, v2", "v_lshlrev_b32 v2, 7, v2", "v_add_u32 v2, s62, v2",
          "v_cmp_eq_u32 vcc, 0, v1", "v_mov_b32 v5, s67", "s_nop 0", "v_cndmask_b32 v4, v2, v4, vcc", f"v_min_u32 v4, {'F_END' if X('oldpf') else 'F_PFE'}-F_PC, v4",
          "v_add_co_u32 v4, vcc, s66, v4", "s_nop 1", "v_addc_co_u32 v5, vcc, 0, v5, vcc", f"global_load_dword v{TCD+1}, v[4:5], off")
    e(wave_id(f"s{sWAVE}"), stamp(0), "s_mov_b32 s3, 0x10000000")
    if X("early0"): e("s_mov_b32 s88, s100")
    e("s_and_b32 s66, s2, 7", "s_lshl_b32 s66, s66, 2", "s_lshr_b32 s67, s2, 3", "s_and_b32 s67, s67, 3", f"s_add_u32 s{sHEAD}, s66, s67",
      f"s_lshr_b32 s{sQB}, s2, 5", f"s_lshl_b32 s66, s{sQB}, 2", f"s_add_u32 s{sM64}, s66, s{sWAVE}")
    e(f"s_lshl_b32 s66, s{sQB}, 5", f"s_add_u32 s66, s66, s{sHEAD}", "s_lshl_b32 s66, s66, 2", f"s_add_u32 s66, s66, s{sWAVE}", "s_lshl_b32 s62, s66, 1",
      "s_mul_i32 s66, s62, 1280",
      "v_lshrrev_b32 v1, 5, v0", "v_and_b32 v2, 31, v0", "v_mul_u32_u24 v3, 1280, v1", "v_lshl_add_u32 v3, v2, 3, v3",
      f"v_lshlrev_b32 v{LX}, 4, v0", f"s_or_b32 s{sKo}, s2, s{sWAVE}")
    e("s_waitcnt lgkmcnt(0)", fstamp(1))
    e(srd(12, pX, pX+1, 2560, "s66"))
    XR, XX = 64, 80
    for m in range(5): e(f"buffer_load_dwordx2 {v(XR+2*m,2)}, v3, s[12:15], 0 offen offset:{256*m}")
    e(srd(sFL, pWS, pWS+1, 1024, WS_FL), f"s_cmp_eq_u32 s{sKo}, 0", f"s_cselect_b32 s{sFL+2}, 1024, 0",
      f"buffer_load_dwordx4 v[76:79], v{LX}, {srdn(sFL)}, 0 offen sc1", f"s_mov_b32 s{sFL+2}, 1024")
    e("s_lshr_b32 s66, s62, 6", f"s_mul_i32 s66, s66, {XF_BLK}", "s_and_b32 s67, s62, 63", "s_lshl_b32 s67, s67, 6", "s_add_u32 s66, s66, s67",
      f"s_sub_u32 s67, {XF_BLK}, s67")
    e(srd(16, pWS, pWS+1, "s67", "s66"))
    e("v_lshrrev_b32 v13, 3, v2", "v_lshlrev_b32 v13, 12, v13", "v_lshl_add_u32 v13, v1, 6, v13", "v_and_b32 v3, 7, v0", "v_lshl_add_u32 v13, v3, 3, v13")
    dry = X("dryln")
    W_ = E()
    e_real = e
    e = W_
    e(f"s_mul_i32 s66, s{sHEAD}, 384", "s_sub_u32 s67, 7864320, s66"); e(srd(sWQ_SRD, pWQ, pWQ+1, "s67", "s66"))
    e(f"s_mul_i32 s66, s{sHEAD}, 96", "s_sub_u32 s67, 1969152, s66", f"s_sub_u32 s{pW1}, s{pW1}, 3072", f"s_subb_u32 s{pW1+1}, s{pW1+1}, 0")
    e(srd(sW1_SRD, pW1, pW1+1, "s67", "s66"))
    e(f"s_lshl_b32 s66, s{sWAVE}, 4", "s_mov_b32 s67, 12288")
    e("v_lshrrev_b32 v1, 4, v0", "v_and_b32 v2, 15, v0", "v_lshlrev_b32 v3, 1, v1", "v_xor_b32 v2, v2, v3", "v_add_u32 v3, s66, v1", "v_mul_lo_u32 v3, v3, s67",
      f"v_lshl_add_u32 v{DA}, v2, 4, v3", f"v_add_u32 v{DA+1}, {4*12288 - 1024}, v{DA}", "v_xor_b32 v2, 8, v2", "v_lshl_add_u32 v3, v2, 4, v3",
      f"v_add_u32 v{DA+2}, {8*12288 - 2048}, v3", f"v_add_u32 v{DA+3}, {12*12288 - 3072}, v3")
    e("v_lshrrev_b32 v1, 3, v0", "v_and_b32 v2, 7, v0", "v_and_b32 v3, 2, v1", "v_xor_b32 v2, v2, v3", "v_add_u32 v3, s66, v1", "v_mul_lo_u32 v4, v3, s67",
      "v_add_u32 v4, 256, v4", f"v_lshl_add_u32 v{DB}, v2, 4, v4", "v_xor_b32 v5, 4, v2", "v_lshl_add_u32 v4, v5, 4, v4", f"v_add_u32 v{DB+1}, {8*12288 - 1024}, v4",
      "v_mul_u32_u24 v3, 3072, v3", "v_bfrev_b32 v8, 1", "v_cmp_gt_u32 vcc, 6, v2", "v_lshl_add_u32 v6, v2, 4, v3", "v_add_u32 v6, 1024, v6",
      f"v_cndmask_b32 v{DH}, v8, v6, vcc", "v_cmp_gt_u32 vcc, 6, v5", "v_lshl_add_u32 v6, v5, 4, v3", f"v_add_u32 v6, {8*3072}, v6",
      f"v_cndmask_b32 v{DH+1}, v8, v6, vcc")
    e(f"s_lshl_b32 s66, s{sWAVE}, 12")
    for u in range(6): e(f"s_add_u32 s{sMW+u}, s66, {(WB if u % 2 else WA) + 16384*(u >> 1)}")
    e(f"s_mov_b32 s{sWq}, 0", f"s_mov_b32 s{sW1}, 0")
    NE = 5 if X("allW") else 2
    def wgrp(lo, hi):
        o = E()
        for u in range(lo, hi):
            o(m0W(u), "s_nop 0", dmaW(u))
            if u % 2: o(advW)
        return o
    e(wgrp(0, NE))
    NT = 0 if X("notouch") else 2
    if NT:
        e(f"s_lshl_b32 s66, s{sQB}, 3", f"s_lshl_b32 s67, s{sWAVE}, 1", "s_add_u32 s66, s66, s67", "s_mov_b32 s67, 12288", touch_addr(4),
          f"s_mov_b32 s{sTq}, 786432", f"s_mov_b32 s{sT1}, 196608")
        tch = touch()
        if X("touch2") or X("touch3") or X("touch4"): NT = 0
        else: e(tch)
    e = e_real
    if not dry: e(W_)
    else:
        e("s_mov_b32 s63, s18", "s_mov_b32 s18, 0", "s_mov_b32 s39_, 0".replace("s39_", "s60"), "s_branch F_LN", "F_LN1:", "s_mov_b32 s18, s63", "s_mov_b32 s60, 1")
    e(fstamp(2), f"s_waitcnt vmcnt({0 if dry else 4*NE + NT})", stamp(1), fstamp(3))
    l1 = newlab("T")
    e(srd(12, pDBG, pDBG+1, 4), "v_mov_b32 v27, 0", f"s_cmp_lg_u32 s{sKo}, 0", f"s_cbranch_scc1 {l1}")
    e("v_and_b32 v1, 15, v0", "v_lshlrev_b32 v1, 2, v1", "ds_write_b32 v1, v27")
    for r in range(4):
        e(f"v_bfe_u32 v{4+r}, v{76+r}, 3, 9", f"v_lshrrev_b32 v{8+r}, 5, v{4+r}", f"v_lshlrev_b32 v{8+r}, 2, v{8+r}",
          f"v_and_b32 v{4+r}, 31, v{4+r}", f"v_lshlrev_b32_e64 v{4+r}, v{4+r}, 1")
    for r in range(4): e(f"ds_or_b32 v{8+r}, v{4+r}")
    e("ds_read_b32 v2, v1", "s_waitcnt lgkmcnt(0)", "v_not_b32 v2, v2", "v_ffbl_b32 v2, v2", "v_cmp_ne_u32 vcc, -1, v2",
      "s_nop 4", "s_ff1_i32_b64 s66, vcc", "s_nop 1", "v_readlane_b32 s67, v2, s66", "s_nop 4", "s_lshl_b32 s66, s66, 5", "s_add_u32 s66, s66, s67",
      "s_lshl_b32 s66, s66, 3", "s_or_b32 s66, s66, 0x40000000", "v_mov_b32 v26, s66",
      "s_mov_b64 exec, 1", "buffer_store_dword v26, v27, s[12:15], 0 offen sc1", "s_mov_b64 exec, -1", f"{l1}:")
    XO = 100 if dry else XR
    if dry: e("F_LN:")
    for i in range(10): e(f"v_lshlrev_b32 v{XX+2*i}, 16, v{XR+i}", f"v_and_b32 v{XX+2*i+1}, 0xffff0000, v{XR+i}")
    def reduce32(r, t):
        o = []
        for sh in (8, 4, 2, 1): o += ["s_nop 1", f"v_add_f32_dpp {r}, {r}, {r} row_ror:{sh} row_mask:0xf bank_mask:0xf"]
        return o + [f"v_mov_b32 {t}, {r}", "s_nop 1", f"v_permlane16_swap_b32 {r}, {t}", f"v_add_f32 {r}, {r}, {t}"]
    e(f"v_add_f32 v10, v{XX}, v{XX+1}", f"v_add_f32 v11, v{XX+2}, v{XX+3}")
    for i in range(4, 20, 2): e(f"v_add_f32 v10, v10, v{XX+i}", f"v_add_f32 v11, v11, v{XX+i+1}")
    e("v_add_f32 v10, v10, v11", reduce32("v10", "v11"))
    e(f"s_mov_b32 s66, {hx(f2u(1.0/640))}", "v_mul_f32 v10, s66, v10", "v_mov_b32 v11, 0", "v_mov_b32 v12, 0")
    for i in range(0, 20, 2):
        e(f"v_sub_f32 v1, v{XX+i}, v10", f"v_sub_f32 v2, v{XX+i+1}, v10", "v_fmac_f32 v11, v1, v1", "v_fmac_f32 v12, v2, v2")
    e("v_add_f32 v11, v11, v12", reduce32("v11", "v12"), "v_mul_f32 v11, s66, v11")
    e("v_cvt_pk_bf16_f32 v10, v10, v11", "v_and_b32 v11, 0xffff0000, v10", "v_lshlrev_b32 v10, 16, v10")
    e(f"v_add_f32 v11, {hx(f2u(1e-5))}, v11", "v_cvt_pk_bf16_f32 v11, v11, v11", "v_lshlrev_b32 v11, 16, v11",
      "v_sqrt_f32 v11, v11", "s_nop 0", "v_cvt_pk_bf16_f32 v11, v11, v11", "v_lshlrev_b32 v11, 16, v11", "v_rcp_f32 v11, v11", "s_nop 0")
    for i in range(10):
        a0, a1 = XX+2*i, XX+2*i+1
        e(f"v_sub_f32 v{a0}, v{a0}, v10", f"v_sub_f32 v{a1}, v{a1}, v10", f"v_cvt_pk_bf16_f32 v1, v{a0}, v{a1}",
          f"v_lshlrev_b32 v{a0}, 16, v1", f"v_and_b32 v{a1}, 0xffff0000, v1",
          f"v_mul_f32 v{a0}, v{a0}, v11", f"v_mul_f32 v{a1}, v{a1}, v11", f"v_cvt_pk_bf16_f32 v{XO+i}, v{a0}, v{a1}")
        if i % 2: e(f"s_mov_b32 s66, {16384*(i//2)}", f"buffer_store_dwordx2 {v(XO+i-1,2)}, v13, s[16:19], s66 offen sc1")
    if dry: e("s_cmp_eq_u32 s60, 0", "s_cbranch_scc1 F_LN1", W_)
    e(stamp(2), fstamp(4))
    e("v_lshrrev_b32 v1, 4, v0", "v_lshrrev_b32 v2, 2, v0", "v_and_b32 v2, 3, v2", "v_and_b32 v3, 3, v0",
      "v_and_b32 v5, 1, v1", "v_lshlrev_b32 v4, 1, v2", "v_lshl_or_b32 v4, v5, 3, v4",
      "v_lshl_add_u32 v6, v1, 3, v2", "v_lshlrev_b32 v6, 8, v6", f"v_add_u32 v6, {WA}, v6", "v_lshrrev_b32 v7, 1, v3")
    for T in range(8):
        e(f"v_or_b32 v8, {4*(T >> 1)}, v3", "v_xor_b32 v8, v8, v4", "v_lshl_add_u32 v8, v8, 4, v6", f"v_xor_b32 v9, {T & 1}, v7", f"v_lshl_add_u32 v{AWA+T}, v9, 3, v8")
    e("v_and_b32 v4, 2, v2", "v_lshl_or_b32 v4, v5, 2, v4",
      "v_lshl_add_u32 v6, v5, 3, v2", "v_lshlrev_b32 v6, 7, v6", "v_lshrrev_b32 v8, 1, v1", "v_lshl_add_u32 v6, v8, 12, v6", f"v_add_u32 v6, {WB}, v6")
    for T in range(4):
        e(f"v_or_b32 v8, {4*(T >> 1)}, v3", "v_xor_b32 v8, v8, v4", "v_lshl_add_u32 v8, v8, 4, v6", f"v_xor_b32 v9, {T & 1}, v7", f"v_lshl_add_u32 v{AWB+T}, v9, 3, v8")
    e("v_add_u32 v6, 2048, v6", "v_lshl_add_u32 v6, v3, 3, v6")
    for tt in range(3): e(f"v_xor_b32 v8, {2*tt}, v4", f"v_lshl_add_u32 v{AH+tt}, v8, 4, v6")
    e(fstamp(5))
    lp, ld = newlab("P"), newlab("D")
    tagpoll = E()(f"s_mov_b32 s{sU}, 0", f"{lp}:", "buffer_load_dword v26, v27, s[12:15], 0 offen sc1", "s_waitcnt vmcnt(0)", f"v_readfirstlane_b32 s{sT}, v26",
                  f"s_add_u32 s{sU}, s{sU}, 1", f"s_cmp_gt_u32 s{sU}, {SPIN}", f"s_cbranch_scc1 {ld}",
                  f"s_cmp_eq_u32 s{sT}, 0", f"s_cbranch_scc1 {lp}", f"{ld}:")
    e(wave0(tagpoll), "s_waitcnt vmcnt(0)", fstamp(6), "s_barrier", stamp(3), fstamp(7))
    e(wave0(signal(1)), fstamp(8))
    if not X("allW") and not X("lateW"): e(wgrp(NE, 5))
    if X("touch2"): e(tch)
    e("v_lshrrev_b32 v1, 3, v0", "v_and_b32 v2, 7, v0", f"s_mul_i32 s62, s{sWAVE}, 3072", f"s_lshl_b32 s66, s{sWAVE}, 2")
    for t in range(3):
        e(f"v_add_u32 v3, {8*t}, v1", "v_mul_u32_u24 v4, 171, v3", "v_lshrrev_b32 v4, 9, v4",
          "v_lshrrev_b32 v5, 1, v4", "v_add_u32 v6, s66, v5", "v_and_b32 v6, 7, v6", "v_xor_b32 v6, v2, v6",
          "v_lshlrev_b32 v7, 7, v1", "v_add_u32 v7, s62, v7", f"v_lshl_add_u32 v{DK+t}, v6, 4, v7",
          "v_and_b32 v5, 3, v5", "v_lshlrev_b32 v5, 1, v5", "v_xor_b32 v5, v2, v5", f"v_lshl_add_u32 v{DV+t}, v5, 4, v7")
    for i in range(4): e(f"s_add_u32 s{sMK+i}, s62, {KR + 12288*i}", f"s_add_u32 s{sMV+i}, s62, {VR + 12288*i}")
    e("v_and_b32 v3, 6, v1", "v_xor_b32 v3, v2, v3", "v_mul_u32_u24 v4, 1280, v1", "v_lshl_add_u32 v4, v3, 4, v4", f"s_mul_i32 s66, s{sWAVE}, 10240", f"v_add_u32 v{RLV}, s66, v4")
    e(f"s_mul_i32 s66, s{sM64}, {XF_BLK}")
    if WS_XF: e(f"s_add_u32 s66, s66, {hx(WS_XF)}")
    e(srd(sXF_SRD, pWS, pWS+1, XF_BLK, "s66"))
    e("v_and_b32 v1, 15, v0", "v_lshrrev_b32 v2, 4, v0", "v_lshlrev_b32 v1, 6, v1", f"v_lshl_add_u32 v{LXB}, v2, 4, v1", f"v_add_u32 v{LXB2}, 4096, v{LXB}",
      "v_lshrrev_b32 v3, 1, v2", "v_and_b32 v2, 1, v2", "v_lshrrev_b32 v1, 2, v1", "v_lshl_add_u32 v1, v3, 8, v1", f"v_lshl_add_u32 v{LX8}, v2, 3, v1",
      f"s_mov_b32 s{sX}, 0")
    e(f"s_mul_i32 s66, s{sHEAD}, 786432"); e(srd(sK_SRD, pK, pK+1, 786432, "s66"), srd(sV_SRD, pV, pV+1, 786432, "s66"), relayout_src())
    e(f"s_mul_i32 s66, s{sM64}, {OF_BLK}", f"s_add_u32 s66, s66, {hx(WS_OF)}"); e(srd(sOF_SRD, pWS, pWS+1, OF_BLK, "s66"))
    e(f"s_mov_b32 s{sC}, {hx(f2u(CSCALE))}", f"s_mov_b32 s{sC+1}, {hx(f2u(CSCALE))}", f"s_mov_b32 s{sTHR}, {hx(f2u(THR))}")
    e(f"s_mul_i32 s{sO}, s{sHEAD}, 24576")
    for tt in range(3):
        e(f"s_mul_i32 s66, s{sHEAD}, 3", f"s_add_u32 s66, s66, {tt}", "s_and_b32 s67, s66, 1", "s_lshl_b32 s67, s67, 9",
          "s_lshr_b32 s66, s66, 1", "s_add_u32 s66, s66, 192", "s_lshl_b32 s66, s66, 12", f"s_add_u32 s{sH[tt]}, s66, s67")
    e("v_lshrrev_b32 v1, 4, v0", "v_and_b32 v3, 3, v0",
      "v_lshrrev_b32 v5, 2, v0", "v_mul_u32_u24 v6, 384, v5", f"v_add_u32 v6, {VR}, v6", "v_lshl_add_u32 v6, v3, 3, v6",
      "v_lshrrev_b32 v5, 1, v5", "v_and_b32 v5, 3, v5", "v_lshlrev_b32 v5, 1, v5")
    for sg in range(4): e(f"v_xor_b32 v8, {2*sg}, v5", f"v_lshl_add_u32 v{AV+sg}, v8, 4, v6")
    e("v_and_b32 v2, 15, v0", "v_mul_u32_u24 v6, 384, v2", "v_lshrrev_b32 v2, 1, v2", "v_xor_b32 v2, v2, v1")
    e(f"v_lshl_add_u32 v{AK}, v2, 4, v6", "v_xor_b32 v2, 4, v2", f"v_lshl_add_u32 v{AK+1}, v2, 4, v6", relayout_vaddr(), kv_touch_addr(None), fstamp(9))
    if not X("notouch"):
        e(f"s_lshl_b32 s66, s{sQB}, 3", f"s_lshl_b32 s67, s{sWAVE}, 1", "s_add_u32 s66, s66, s67", "s_mov_b32 s67, 12288", touch_addr(1 if TPS() else 3),
          f"s_mov_b32 s{sTq}, {(TPS()[0] if TPS() else 3 if X('touch3') else 5)*786432}", f"s_mov_b32 s{sT1}, {(TPS()[0] if TPS() else 3 if X('touch3') else 5)*196608}")
    if X("pre2"): e(f"s_mov_b32 s{sTq}, {2*786432}", f"s_mov_b32 s{sT1}, {2*196608}", touch(), advT_())
    for i in range(96): e(f"v_accvgpr_write_b32 a{i}, 0")
    for i in range(48, 192): e(f"v_mov_b32 v{i}, 0")
    e("s_waitcnt vmcnt(0)")
    e(wave0([f"v_lshlrev_b32 v2, 2, v0", f"s_lshl_b32 s{sCNT}, s{sQB}, 7"] + poll(1, ("-1", "0"), f"s{sCNT}")))
    e("s_barrier", fstamp(10))
    for k in range(2): e(ldB(k), advX)
    e([qrd(0, T, kk, uu) for T in range(2) for kk in range(2) for uu in range(2)], wgrp(NE, 5) if X("lateW") else [])
    e(f"s_mov_b32 s{sCNT}, 0", fstamp(11), f"s_waitcnt vmcnt({20 if X('lateW') else 8}) lgkmcnt(4)", stamp(5), fstamp(12))
    return e

TB, TA, TAD, TD, TB8 = 16, 96, 160, 162, 164
sTW, sTB, sMT, sSP = 39, 58, 40, 54
LEAD = 3
def tacc(nt, qt): return (nt*2 + qt)*4
def t_rd(st, nt, kk, dst):
    slot = st % 4
    return f"ds_read_b128 {v(dst, 4)}, v{TAD + slot//3} offset:{(slot%3)*20480 + (kk*10 + nt)*1024}"
def t_A(st, nt, kk): return TA + 8*((10*st + nt) % 4) + 4*kk
def t_B(st, kk, qt): return TB + 16*(st % 4) + 8*kk + 4*qt
def t_ldB(st, g):
    if not g: return [f"buffer_load_dwordx4 {v(t_B(st,kk,qt), 4)}, v{LX}, s[16:19], s{sTB + kk} offen offset:{1024*qt} sc1 ; @B{st}" for kk in range(2) for qt in range(2)]
    return [f"buffer_load_dwordx2 {v(t_B(st,kk,qt) + 2*h, 2)}, v{TB8}, s[16:19], s{sTB + kk} offen offset:{1024*qt + 512*h} sc1 ; @B{st}" for kk in range(2) for qt in range(2) for h in range(2)]
t_advB = [f"s_add_u32 s{sTB}, s{sTB}, 8192", f"s_add_u32 s{sTB+1}, s{sTB+1}, 8192"]
def t_dmaW(st, t): return f"buffer_load_dwordx4 v{TD + (t == 4)}, s[12:15], s{sTW} offen offset:{1024*(t%4)} {'' if X('wplain') else 'sc1 '}lds ; @W{st}"
def t_m0(st, t): return f"s_add_u32 m0, s{sMT}, {(st%4)*20480 + (4096 if t == 4 else 0)}"
t_advW = [f"s_add_u32 s{sTW}, s{sTW}, 20480"]
def tplan(g):
    if g: pl = {2: ("W", LEAD-1, 3), 3: ("B", 0), 6: ("B", 1), 7: ("B", 2), 11: ("W", LEAD-1, 4), 10: ("B", 3), 14: ("B", 4), 15: ("B", 5), 19: ("B", 6), 22: ("B", 7)}
    else: pl = {2: ("W", LEAD-1, 3), 6: ("B", 0), 11: ("W", LEAD-1, 4), 15: ("B", 1), 19: ("B", 2), 23: ("B", 3)}
    pl.update({30: ("W", LEAD, 0), 34: ("W", LEAD, 1), 38: ("W", LEAD, 2)})
    return pl
sIT, sCP, sNW, sNB, sNF, sDA, sDB, FV, FA_ = 50, 52, 53, 49, 47, 45, 43, 166, 165
sFM, sFB = 60, 62
def decode():
    return [f"s_and_b32 s{sDA}, s{sIT}, 7", f"s_lshl_b32 s{sDA}, s{sDA}, 2", f"s_lshr_b32 s{sDA}, s{sCP}, s{sDA}", f"s_and_b32 s{sDA}, s{sDA}, 15",
            f"s_bfe_u32 s{sDB}, s{sIT}, 0x20003", f"s_mul_i32 s{sNF}, s{sDA}, s{sFM}", f"s_add_u32 s{sNF}, s{sNF}, s{sFB}",
            f"s_mul_i32 s{sDA}, s{sDA}, 3", f"s_add_u32 s{sDA}, s{sDA}, s{sDB}", f"s_mul_i32 s{sNW}, s{sDA}, 81920", f"s_lshl_b32 s{sNB}, s{sDA}, 15"]
shiftIT = f"s_lshr_b64 s[{sIT}:{sIT+1}], s[{sIT}:{sIT+1}], 5"
def flagld(): return f"buffer_load_dword v{FV}, v{FA_}, {srdn(sFL)}, s{sNF} offen sc1 ; @F"
def flagchk(): return [f"v_subrev_u32 v{FV}, s{sT}, v{FV}", f"v_subrev_u32 v{FV}, 3, v{FV}", f"v_cmp_lt_u32 vcc, 1, v{FV}"]
def flagspin(entry, back):
    l = newlab("S")
    return E()(f"{entry}:", f"s_mov_b32 s{sU}, 0", f"{l}:", flagld(), "s_waitcnt vmcnt(0)", flagchk(), f"s_add_u32 s{sU}, s{sU}, 1", f"s_cmp_gt_u32 s{sU}, {SPIN}",
               f"s_cbranch_scc1 {back}", f"s_cbranch_vccnz {l}", f"s_branch {back}")
def tstage(st, g, vmw, last=1 << 30, nextA=None):
    L = []
    pl = tplan(g)
    ldb = t_ldB(st + LEAD, g)
    for p in range(20):
        nt = p >> 1; qt = (p & 1) ^ (nt & 1)
        for kk in range(2):
            gi = 2*p + kk
            acc = a(tacc(nt, qt), 4)
            L.append(f"{MF} {acc}, {v(t_A(st,nt,kk), 4)}, {v(t_B(st,kk,qt), 4)}, {acc}")
            if gi % 4 < 2:
                st2, nt2 = st + (nt+3)//10, (nt+3) % 10
                if st2 == st or nextA is None: L.append(t_rd(st2, nt2, gi % 4, t_A(st2, nt2, gi % 4)))
                else: L.append(nextA[2*nt2 + gi % 4])
                if gi % 4 == 1: L.append("s_waitcnt lgkmcnt(4)")
                if gi == 28 and st + LEAD < last: L.append(t_m0(st + LEAD, 0))
                if gi == 4 and st + LEAD - 1 < last: L.append(t_m0(st + LEAD - 1, 4))
                dyn = not g and last > 32
                if gi == 12 and st + LEAD - 1 < last: L += [f"s_mov_b32 s{sTW}, s{sNW}"] if dyn and st % 4 == 1 else t_advW
                if gi == 24 and st + LEAD < last: L.append(f"s_mov_b32 s{sTB}, s{sNB}" if dyn and st % 4 == 0 else t_advB[0])
                if gi == 32 and st + LEAD < last: L.append(f"s_add_u32 s{sTB+1}, s{sNB}, 4096" if dyn and st % 4 == 0 else t_advB[1])
            if not g and last > 32:
                if st % 4 == 2:
                    dc = [shiftIT] + decode()
                    pos = {0: dc[0:1], 3: dc[1:3], 7: dc[3:5], 8: dc[5:6], 10: dc[6:8], 14: dc[8:10], 16: dc[10:11], 18: dc[11:12]}
                    L += pos.get(gi, [])
                    if gi == 26: L.append(flagld())
                if st % 4 == 0:
                    fc = flagchk()
                    if gi == 31: L += fc[:2]
                    if gi == 35: L += fc[2:]
                    if gi == 39: L += ["s_cbranch_vccnz F_TSP", "F_TSB:"]
            if gi in pl:
                x = pl[gi]
                if x[0] == "W":
                    if st + x[1] < last: L.append(t_dmaW(st + x[1], x[2]))
                elif st + LEAD < last: L.append(ldb[x[1]])
            if gi == 27: L += [f"s_waitcnt vmcnt({vmw})", "s_barrier"]
    return L
def tpreW():
    e = E()
    for st in range(LEAD-1):
        e(t_m0(st, 0), "s_nop 0", [t_dmaW(st, t) for t in range(4)], t_m0(st, 4), "s_nop 0", t_dmaW(st, 4), t_advW)
    return e(t_m0(LEAD-1, 0), "s_nop 0", [t_dmaW(LEAD-1, t) for t in range(3)])
def tpreB():
    e = E()
    for st in range(LEAD): e(t_ldB(st, False), t_advB)
    return e
def tpre(g=False):
    if X("wfirst"): return tpreW() + tpreB()
    e = E()
    for st in range(LEAD-1):
        e(t_m0(st, 0), "s_nop 0", [t_dmaW(st, t) for t in range(4)], t_m0(st, 4), "s_nop 0", t_dmaW(st, 4), t_advW, t_ldB(st, g), t_advB)
    e(t_ldB(LEAD-1, g), t_advB, t_m0(LEAD-1, 0), "s_nop 0", [t_dmaW(LEAD-1, t) for t in range(3)])
    return e
def tcounts():
    L = tpre()
    for st in range(12): L = L + tstage(st, False, f"@W{st+1},@B{st+1}")
    L = [l for l in L if not l.startswith(("s_cbranch", "F_"))]
    c = [int(re.search(r"vmcnt\((\d+)\)", l).group(1)) for l in resolve(L, []) if "vmcnt" in l]
    steady = [min(c[4+k], c[8+k]) for k in range(4)]
    return steady, {k: c[k] for k in range(4) if c[k] < steady[k]}
tstubs = []
def tloop():
    steady, first = tcounts()
    dec1 = E()(f"s_mov_b32 s{sTW}, s{sNW}", f"s_mov_b32 s{sTB}, s{sNB}", f"s_add_u32 s{sTB+1}, s{sNB}, 4096")
    quick = E()(flagchk(), "s_nop 1", "s_cbranch_vccz F_T0B") if X("qflag") else []
    wait0 = E()(f"s_cmp_eq_u32 s{sSP}, 3", "s_cbranch_scc1 F_T0B", quick, flagspin("F_T0", "F_T0B"), "F_T0B:", stamp(11), fstamp(4, "tail"), fstamp(9, "last"), shiftIT, decode(), flagld())
    if X("wfirst"): pre = E()(decode() if not X("qflag") else [], dec1, tpreW(), wait0, resolve(tpreB() + ["s_waitcnt vmcnt(@B0)"], []))
    else: pre = E()(decode(), dec1, wait0, resolve(tpre() + ["s_waitcnt vmcnt(@W0,@B0)"], []))
    pre("s_barrier", [t_rd(0, nt, kk, t_A(0, nt, kk)) for nt in range(3) for kk in range(2)], f"s_mov_b32 s{sCNT}, 0", "s_waitcnt lgkmcnt(4)", fstamp(10, "last"), fstamp(5, "tail"))
    body = []; fp = []; tstubs.clear()
    for st in range(4):
        b = tstage(st, False, steady[st])
        if st in first:
            k = b.index(f"s_waitcnt vmcnt({steady[st]})")
            fp += b[:k] + [f"s_waitcnt vmcnt({first[st]})"] + b[k+1:]
            j = max(i for i in range(k) if b[i].startswith(MF)); j = max(i for i in range(j) if b[i].startswith(MF))
            b = b[:j+1] + [f"s_cmp_eq_u32 s{sCNT}, 0"] + b[j+1:k] + [f"s_cbranch_scc1 F_US{st}", b[k], f"F_UB{st}:"] + b[k+1:]
            tstubs.extend([f"F_US{st}:", f"s_waitcnt vmcnt({first[st]})", f"s_branch F_UB{st}"])
        else: fp += b
        body += b
    ctl = [f"s_add_u32 s{sCNT}, s{sCNT}, 1", f"s_cmp_lt_u32 s{sCNT}, s46", "s_cbranch_scc1 F_TLS"]
    return pre, body, ctl, steady, fp
def pb_off(): return E()(f"s_lshl_b32 s41, s{sWAVE}, 2", f"s_add_u32 s41, s41, s{sSP}", "s_mul_i32 s41, s41, 20480",
                         f"s_cmp_eq_u32 s{sWAVE}, s{sSP}", "s_cselect_b32 s41, 0x10000000, s41")
def own_write():
    l = newlab("O")
    e = E()(f"s_cmp_lg_u32 s{sWAVE}, s{sSP}", f"s_cbranch_scc1 {l}", f"v_add_u32 v4, {OWN}, v{LX}")
    for i in range(20): e(f"ds_write_b128 v4, {a(tacc(i % 10, i // 10), 4)} offset:{1024*i}")
    return e(f"{l}:")
def tfinal(cnt):
    FA = lambda nt, k: TA + 16*(nt % 4) + 4*k
    frd = lambda nt, k: t_rd(30 + (k >> 1), nt, k & 1, FA(nt, k))
    e = E()
    for l in tstage(28, False, "@W29,@B29", last=32):
        e(l)
        if l.startswith("buffer_load") and l.endswith("@W31") and "offset:2048" in l:
            e.last = len(e)
    tail = e[e.last:]; del e[e.last:]
    k = [i for i, l in enumerate(tail) if l.startswith(MF)]
    assert len(k) == 1
    e(t_dmaW(31, 3), tail[k[0]], t_m0(31, 4), "s_nop 0", t_dmaW(31, 4))
    n = 0
    for l in tstage(29, False, "0", last=31):
        if l.startswith("ds_read"):
            n += 1
            if n > 14: continue
        if l == "s_waitcnt lgkmcnt(4)" and n > 14: l = "s_waitcnt lgkmcnt(0)"
        if l.startswith("s_waitcnt vmcnt") or l == "s_barrier": continue
        e(l)
    e("s_waitcnt vmcnt(@W30,@B30,@W31,@B31)", "s_barrier")
    e([frd(0, k) for k in range(4)], [frd(1, k) for k in range(4)], pb_off(), "s_waitcnt lgkmcnt(4)")
    pend = []
    for nt in range(10):
        for qt in range(2):
            for k_ in range(4):
                g = 4*qt + k_; k = 3 - k_ if qt else k_
                acc = a(tacc(nt, qt), 4)
                e(f"{MF} {acc}, {v(FA(nt,k),4)}, {v(t_B(30 + (k >> 1), k & 1, qt),4)}, {acc}")
                if g < 4 and nt + 2 < 10: e(frd(nt+2, g))
                if g == 3 and nt + 1 < 10: e(f"s_waitcnt lgkmcnt({4 if nt + 2 < 10 else 0})")
                if g in (4, 6) and nt > 0:
                    q2 = (g-4)//2; i = q2*10 + nt-1
                    e(f"buffer_store_dwordx4 {a(tacc(nt-1,q2),4)}, v{LX}, s[20:23], s{42+q2} offen sc1")
                if g in (1, 2) and nt > 0:
                    q2 = g - 1; e(f"s_add_u32 s{42+q2}, s41, {1024*(q2*10 + nt-1)}")
    e("s_add_u32 s42, s41, 9216", "s_add_u32 s43, s41, 19456", "s_nop 5")
    for q2 in range(2): e(f"buffer_store_dwordx4 {a(tacc(9,q2),4)}, v{LX}, s[20:23], s{42+q2} offen sc1")
    e(own_write())
    return e
def gfinal():
    e = E()(pb_off(), "s_waitcnt vmcnt(0) lgkmcnt(0)", "s_nop 1")
    for i in range(20):
        b = tacc(i % 10, i // 10); d = 16 + 6*(i % 8)
        for r in range(4): e(f"v_accvgpr_read_b32 v{d+r}, a{b+r}")
        e(f"v_cvt_pk_bf16_f32 v{d+4}, v{d}, v{d+1}", f"v_cvt_pk_bf16_f32 v{d+5}, v{d+2}, v{d+3}")
        if i % 8 == 0: e(f"s_add_u32 s42, s41, {512*i}")
        e(f"buffer_store_dwordx2 {v(d+4,2)}, v{TB8}, s[20:23], s42 offen offset:{512*(i%8)} sc1")
    e(own_write())
    return e
def items(lst):
    x = 0
    for k, (rb, th) in enumerate(lst): x |= (rb | th << 3) << (5*k)
    return x
def blk(*rbs): return [(rb, th) for rb in rbs for th in range(3)]
PATTERNS = {"B": [blk(0, 2, 4), blk(1, 3, 5), blk(6, 7)],
            "C": [blk(0, 2, 4) + [(5, 0)], blk(1, 3) + [(5, 1), (5, 2)], blk(6, 7)],
            "D": [blk(0, 2, 4), blk(1, 3) + [(5, 0), (5, 1)], [(5, 2)] + blk(6, 7)],
            "E": [blk(0, 2, 4) + [(5, 0)], blk(1, 3) + [(5, 1)], [(5, 2)] + blk(6, 7)],
            "F": [blk(0, 3) + [(6, 0), (6, 1)], blk(1, 4) + [(6, 2), (7, 0)], blk(2, 5) + [(7, 1), (7, 2)]],
            "G": [blk(0, 2) + [(4, 0), (4, 1)], blk(1, 3) + [(4, 2), (5, 0)], [(5, 1), (5, 2)] + blk(6, 7)],
            "A": [blk(0, 3) + [(6, 0), (6, 1)], blk(1, 4) + [(6, 2), (7, 0)], blk(2, 5) + [(7, 1), (7, 2)]]}
DV_ = 136
def roles():
    e = E()
    l, d = newlab("R"), newlab("D")
    e(f"s_mov_b32 s{sU}, 0", f"{l}:", f"v_cmp_eq_u32 vcc, 0, v{DV_}", f"s_add_u32 s{sU}, s{sU}, 1", "s_nop 2", "s_and_b32 s41, vcc_lo, 0xff00", f"s_cbranch_scc0 {d}",
      f"s_cmp_gt_u32 s{sU}, {SPIN}", f"s_cbranch_scc1 {d}", f"buffer_load_dword v{DV_}, v{DV_+1}, s[28:31], 0 offen sc1", "s_waitcnt vmcnt(0)", f"s_branch {l}", f"{d}:")
    e(f"v_readlane_b32 s{sT}, v{DV_}, 0", f"s_mov_b32 s{sCP}, 0", "s_and_b32 s41, s2, 7", "s_add_u32 s41, s41, 8", f"v_readlane_b32 s42, v{DV_}, s41")
    e([f"v_readlane_b32 s{12+c}, v{DV_}, {8+c}" for c in range(8)], "s_nop 3")
    for c in range(1, 8):
        e(f"s_sub_u32 s41, s{12+c}, 1", "s_and_b32 s41, s41, 7", "s_lshl_b32 s41, s41, 2", f"s_lshl_b32 s41, {c}, s41", f"s_or_b32 s{sCP}, s{sCP}, s41")
    e("s_sub_u32 s42, s42, 1", "s_and_b32 s42, s42, 7")
    if X("static"): e("s_and_b32 s42, s2, 7", f"s_mov_b32 s{sCP}, 0x76543210")
    e(f"s_lshr_b32 s{sSP}, s42, 1", "s_add_u32 s55, s42, 1", "s_lshr_b32 s55, s55, 1", "s_and_b32 s55, s55, 1", f"s_and_b32 s56, s{sHEAD}, 3")
    pat = PATTERNS[[x[3:] for x in EXP[0].split() if x.startswith("pat")][0] if "pat" in EXP[0] else "D"]
    pat = pat + [blk(0, 1)]
    for m in (3, 2, 1, 0):
        x = items(pat[m])
        if m == 3: e(f"s_mov_b32 s{sIT}, {hx(x)}", f"s_mov_b32 s{sIT+1}, {hx(x >> 32)}", f"s_mov_b32 s46, {len(pat[m]) - 1}")
        else: e(f"s_cmp_eq_u32 s{sSP}, {m}", f"s_cselect_b32 s{sIT}, {hx(x)}, s{sIT}", f"s_cselect_b32 s{sIT+1}, {hx(x >> 32)}, s{sIT+1}", f"s_cselect_b32 s46, {len(pat[m]) - 1}, s46")
    e(f"s_lshl_b32 s41, s{sQB}, 7", f"s_lshl_b32 s42, s{sHEAD}, 2", "s_add_u32 s42, s42, s41", f"s_cmp_eq_u32 s{sSP}, 3", f"s_cselect_b32 s{sCP}, 0x98, s{sCP}",
      f"s_cselect_b32 s{sFM}, 0, 16", f"s_cselect_b32 s{sFB}, s42, s41", "s_cselect_b32 s40, 0, 3")
    return e
def tail_setup():
    e = E()
    e("v_and_b32 v1, s40, v0", f"v_lshlrev_b32 v{FA_}, 2, v1")
    e(f"s_mul_i32 s41, s56, {WF160}", f"s_add_u32 s41, s41, {hx(WS_WF)}")
    e(srd(12, pWS, pWS+1, WF160, "s41"))
    e(f"s_lshl_b32 s41, s{sQB}, 2", "s_lshl_b32 s42, s55, 1", "s_add_u32 s41, s41, s42", f"s_lshr_b32 s42, s{sWAVE}, 1", "s_add_u32 s41, s41, s42",
      f"s_mul_i32 s41, s41, {OF_BLK}",
      f"s_and_b32 s42, s{sWAVE}, 1", "s_lshl_b32 s42, s42, 11", "s_add_u32 s41, s41, s42", f"s_add_u32 s41, s41, {hx(WS_OF)}",
      f"s_sub_u32 s43, {OF_BLK}, s42")
    e(srd(16, pWS, pWS+1, "s43", "s41"))
    e(f"s_mov_b32 s{sTB}, 0", f"s_mov_b32 s{sTB+1}, 4096", f"s_mov_b32 s{sTW}, 0", f"s_mul_i32 s{sMT}, s{sWAVE}, 5120")
    e(f"s_lshl_b32 s41, s{sQB}, 1", "s_add_u32 s41, s41, s55", "s_lshl_b32 s41, s41, 2", "s_add_u32 s41, s41, s56", "s_mul_i32 s41, s41, 327680",
      f"s_add_u32 s41, s41, {hx(WS_PB)}")
    e(srd(20, pWS, pWS+1, 327680, "s41"))
    e(f"s_lshl_b32 s41, s{sQB}, 3", "s_lshl_b32 s42, s55, 2", "s_add_u32 s41, s41, s42", f"s_add_u32 s41, s41, s{sSP}", "s_lshl_b32 s41, s41, 1",
      f"s_and_b32 s42, s{sWAVE}, 1", "s_add_u32 s41, s41, s42", "s_mul_i32 s41, s41, 20480",
      "s_mul_i32 s42, s56, 320", "s_add_u32 s41, s41, s42", f"s_lshr_b32 s42, s{sWAVE}, 1", "s_mul_i32 s42, s42, 160", "s_add_u32 s41, s41, s42",
      "s_sub_u32 s42, 2621440, s41")
    e(srd(24, pX, pX+1, "s42", "s41")); e(srd(28, pOUT, pOUT+1, "s42", "s41"))
    e("s_lshl_b32 s44, 0x11111111, s56", f"s_lshl_b32 s48, s{sQB}, 7")
    return e
def tail_vsetup():
    return E()(f"v_add_u32 v{TD}, s{sMT}, v{LX}", f"v_add_u32 v{TD+1}, 4096, v{TD}", f"v_mov_b32 v{TAD}, v{LX}", f"v_add_u32 v{TAD+1}, 61440, v{LX}",
               [f"v_accvgpr_write_b32 a{i}, 0" for i in range(80)])

def laststep(i=63):
    Pc = Pb(i)
    e = E()
    e(rdVp(62, 0))
    e(wave0([f"buffer_load_dwordx4 v[140:143], v{LX}, {srdn(sFL)}, 0 offen sc1"]))
    e(srd(28, pDBG, pDBG+1, 64), "v_and_b32 v138, 15, v0", f"v_lshlrev_b32 v{DV_+1}, 2, v138", f"buffer_load_dword v{DV_}, v{DV_+1}, s[28:31], 0 offen sc1")
    Ex, Sx = sm(S1, [2, 3], Pc, 1)
    e(Ex, rdVp(62, 1, KF))
    e([x for _, x in Sx], CHK, "s_waitcnt lgkmcnt(12)", callsite(i % 4), LADD, "s_nop 0", fstamp(2, "last"))
    RI = 8
    Xl = xlane("v_add_f32", L_, 2) + [f"v_rcp_f32 v{RI+2*qt}, v{L_+qt}" for qt in range(4)]
    def mix(m, fill, per=1):
        for x in m:
            e(x)
            for _ in range(per):
                if fill: e(fill.pop(0))
    r2, r3 = rdVp(62, 2), rdVp(62, 3, KF)
    ok = newlab("K")
    chk = E()(f"s_add_u32 s{sTMP}, s{sT}, 2")
    for r in range(4): chk(f"v_subrev_u32 v{140+r}, s{sTMP}, v{140+r}")
    chk("v_max3_u32 v140, v140, v141, v142", "v_max_u32 v140, v140, v143", "v_cmp_lt_u32 vcc, 2, v140", "s_nop 1", f"s_cbranch_vccz {ok}",
        f"v_mov_b32 v2, v{LX}", poll(2, ("-1", "-1"), "0", wide=True), f"{ok}:")
    def norm(j):
        o = E()(f"s_add_u32 s{sTMP}, s{sO}, {4096*j}")
        for qt in range(4):
            k = 4*j + qt
            t = 64 + 8*(k % 4); d = 112 + 4*(k % 6)
            for hh in range(2):
                b = Oacc(2*j+hh, qt)
                for r in range(4): o(f"v_accvgpr_read_b32 v{t+4*hh+r}, a{b+r}")
            for r in range(0, 8, 2): o(f"v_pk_mul_f32 {v(t+r,2)}, {v(t+r,2)}, {v(RI+2*qt,2)} op_sel_hi:[1,0]")
            for r in range(4): o(f"v_cvt_pk_bf16_f32 v{d+r}, v{t+2*r}, v{t+2*r+1}")
            o(f"buffer_store_dwordx4 {v(d,4)}, v{LX}, {srdn(sOF_SRD)}, s{sTMP} offen offset:{1024*qt} sc1")
        return o
    mix(pv(62, 0), Xl, 2); e(Xl, "s_waitcnt lgkmcnt(0)", fstamp(3, "last"))
    if X("oldlast"):
        mix(pv(62, 1, src=KF), r2); e("s_waitcnt lgkmcnt(0)"); mix(pv(62, 2), r3)
        e(norm(0), norm(1), "s_waitcnt lgkmcnt(0)", pv(62, 3, src=KF), norm(2), norm(3), norm(4), norm(5))
    else:
        mix(pv(62, 1, src=KF), r2); e(norm(0), "s_waitcnt lgkmcnt(0)")
        mix(pv(62, 2), r3); e(norm(1), norm(2), "s_waitcnt lgkmcnt(0)", pv(62, 3, src=KF), norm(3), norm(4), norm(5))
    CHK2[:] = wave0(chk)
    return e
CHK2 = []

def tail_end():
    e = E()
    XV = 232
    e("v_and_b32 v3, 15, v0", "v_mul_u32_u24 v3, 1280, v3", "v_lshrrev_b32 v4, 4, v0", "v_lshl_add_u32 v3, v4, 3, v3", fstamp(7, "tail"))
    e("s_waitcnt vmcnt(0) lgkmcnt(0)", fstamp(8, "tail"), "s_barrier", fstamp(9, "tail"), wave0(signal(4)))
    for nt in range(5): e(f"buffer_load_dwordx2 {v(XV+2*nt,2)}, v3, s[24:27], 0 offen offset:{32*nt}")
    e(f"s_and_b32 s42, s{sWAVE}, 1", "s_mul_i32 s42, s42, 10240", f"s_lshr_b32 s43, s{sWAVE}, 1", "s_mul_i32 s43, s43, 5120", "s_add_u32 s42, s42, s43",
      f"s_add_u32 s43, s42, {OWN}", f"v_add_u32 v5, s43, v{LX}")
    for i in range(5): e(f"ds_read_b128 {v(176+4*i,4)}, v5 offset:{1024*i}")
    e(f"s_mul_i32 s41, s{sSP}, 81920", "s_add_u32 s50, s41, s42", "s_add_u32 s51, s50, 20480", "s_add_u32 s52, s50, 40960", "s_add_u32 s53, s50, 61440")
    for src in range(4): e(f"s_cmp_eq_u32 s{sSP}, {src}", f"s_cselect_b32 s{50+src}, 0x10000000, s{50+src}")
    e(f"s_cmp_eq_u32 s{sSP}, 3", "s_cselect_b32 s56, 0, 1.0", "s_cselect_b32 s57, 1.0, 0", f"v_add_u32 v5, 4096, v{LX}", f"s_mov_b32 s38, {hx(f2u(-math.log2(math.e)))}")
    pl = wave0(["v_lshlrev_b32 v2, 2, v0"] + poll(4, ("s44", "0"), "s48"))
    if X("dryfin"):
        e("s_mov_b32 s59, s30", "s_mov_b32 s58, 0", f"s_cmp_eq_u32 s{sWAVE}, 0", "s_cbranch_scc1 F_FP", "s_mov_b32 s22, 0", "s_mov_b32 s30, 0", "s_branch F_FIN",
          "F_FP:", pl, "F_FD:", "s_waitcnt vmcnt(0)", "s_mov_b32 s22, 327680", "s_mov_b32 s30, s59", "s_mov_b32 s58, 1", "s_barrier", stamp(4), fstamp(10, "tail"), "F_FIN:")
    else: e(pl, "s_barrier", stamp(4), fstamp(10, "tail"))
    def ldp(i):
        return [f"buffer_load_dwordx4 {v(16+16*i+4*src,4)}, v{LX if i < 4 else 5}, s[20:23], s{50+src} offen offset:{1024*(i%4)} sc1 ; @P{i}" for src in range(4)]
    AH_ = ([int(x[2:]) for x in EXP[0].split() if x.startswith("ah")] or [2])[0]
    k0 = len(e)
    for i in range(AH_): e(ldp(i))
    e("s_waitcnt lgkmcnt(0)")
    for nt in range(5):
        S = 16 + 16*nt; G = S + 12; Xr = XV + 2*nt; t = 112 + 12*nt; W = 176 + 4*nt
        if nt + AH_ < 5: e(ldp(nt + AH_))
        e(f"s_waitcnt vmcnt(@P{nt})", fstamp(11, "tail") if nt == 0 else [])
        for r in range(4): e(f"v_add_f32 v{S+r}, v{S+r}, v{S+4+r}")
        for r in range(4): e(f"v_fmac_f32 v{G+r}, s57, v{W+r}")
        for r in range(4): e(f"v_add_f32 v{S+r}, v{S+r}, v{S+8+r}")
        for r in range(4): e(f"v_fmac_f32 v{S+r}, s56, v{W+r}")
        e(f"v_cvt_pk_bf16_f32 v{t+2}, v{G}, v{G+1}", f"v_cvt_pk_bf16_f32 v{t+3}, v{G+2}, v{G+3}",
          f"v_cvt_pk_bf16_f32 v{t}, v{S}, v{S+1}", f"v_cvt_pk_bf16_f32 v{t+1}, v{S+2}, v{S+3}")
        for k in range(2):
            e(f"v_lshlrev_b32 v{G+2*k}, 16, v{t+2+k}", f"v_and_b32 v{G+2*k+1}, 0xffff0000, v{t+2+k}",
              f"v_lshlrev_b32 v{S+2*k}, 16, v{t+k}", f"v_and_b32 v{S+2*k+1}, 0xffff0000, v{t+k}")
        for r in range(4): e(f"v_mul_f32 v{t+4+r}, s38, v{G+r}")
        for r in range(4): e(f"v_exp_f32 v{t+4+r}, v{t+4+r}")
        for r in range(4): e(f"v_add_f32 v{t+4+r}, 1.0, v{t+4+r}")
        for r in range(4): e(f"v_rcp_f32 v{t+4+r}, v{t+4+r}")
        for r in range(4): e(f"v_mul_f32 v{G+r}, v{G+r}, v{t+4+r}")
        e(f"v_cvt_pk_bf16_f32 v{t+2}, v{G}, v{G+1}", f"v_cvt_pk_bf16_f32 v{t+3}, v{G+2}, v{G+3}")
        for k in range(2): e(f"v_lshlrev_b32 v{G+2*k}, 16, v{t+2+k}", f"v_and_b32 v{G+2*k+1}, 0xffff0000, v{t+2+k}")
        for r in range(4): e(f"v_mul_f32 v{S+r}, v{S+r}, v{G+r}")
        e(f"v_cvt_pk_bf16_f32 v{t}, v{S}, v{S+1}", f"v_cvt_pk_bf16_f32 v{t+1}, v{S+2}, v{S+3}")
        for k in range(2):
            e(f"v_lshlrev_b32 v{S+2*k}, 16, v{t+k}", f"v_and_b32 v{S+2*k+1}, 0xffff0000, v{t+k}",
              f"v_lshlrev_b32 v{G+2*k}, 16, v{Xr+k}", f"v_and_b32 v{G+2*k+1}, 0xffff0000, v{Xr+k}")
        for r in range(4): e(f"v_add_f32 v{S+r}, v{S+r}, v{G+r}")
        e(f"v_cvt_pk_bf16_f32 v{t+8}, v{S}, v{S+1}", f"v_cvt_pk_bf16_f32 v{t+9}, v{S+2}, v{S+3}")
        e(f"buffer_store_dwordx2 {v(t+8,2)}, v3, s[28:31], 0 offen offset:{32*nt}" + (" sc1" if X("outsc1") else "") + (" nt" if X("outnt") else ""))
    e[k0:] = resolve(e[k0:], [])
    if X("dryfin"): e("s_cmp_eq_u32 s58, 0", "s_cbranch_scc1 F_FD")
    e(fstamp(12, "tail"))
    return e

def encode():
    en = [x for x in EXP[0].split() if x.startswith("enc:")]
    if not en: return []
    _, i, j, mult, W = en[0].split(":")
    return E()(f"s_cmp_lg_u32 s2, {W}", "s_cbranch_scc1 F_END", f"s_sub_u32 s66, s{88+int(j)}, s{88+int(i)}", f"s_mul_i32 s66, s66, {mult}", "s_add_u32 s66, s66, 15000",
               "F_ENC:", "s_memrealtime s[86:87]", "s_waitcnt lgkmcnt(0)", "s_sub_u32 s67, s86, s88", "s_cmp_lt_u32 s67, s66", "s_cbranch_scc1 F_ENC")

def gen(exp=""):
    sites.clear(); lab[0] = 0; EXP[0] = exp
    L = E()(kernel_head(NAME))
    if X("early0"): L("s_memrealtime s[100:101]")
    L("s_cmp_ge_u32 s2, 256", "s_cbranch_scc1 F_END")
    pro = front() + (cstamp(8) if X("qcyc") else [])
    qc, qfirst, q18 = qcounts()
    qloop = []; qfp = []; stubs = E()
    for u in range(6):
        b = qsub(u, last=40, vmw=qc[u])
        if u in qfirst:
            k = b.index(f"s_waitcnt vmcnt({qc[u]})")
            qfp += b[:k] + [f"s_waitcnt vmcnt({qfirst[u]})"] + b[k+1:]
            j = max(i for i in range(k) if b[i].startswith(MF))
            j = max(i for i in range(j) if b[i].startswith(MF))
            b = b[:j+1] + [f"s_cmp_eq_u32 s{sCNT}, 0"] + b[j+1:k] + [f"s_cbranch_scc1 F_QS{u}", b[k], f"F_QB{u}:"] + b[k+1:]
            stubs(f"F_QS{u}:", f"s_waitcnt vmcnt({qfirst[u]})", f"s_branch F_QB{u}")
        else: qfp += b
        qloop += b
    qctl = [f"s_add_u32 s{sCNT}, s{sCNT}, 1", f"s_cmp_lt_u32 s{sCNT}, 3", "s_cbranch_scc1 F_QL"]
    ex = {18: {}, 19: {}}
    for (kind, j), (u, g0) in zip([("K", 0), ("K", 1), ("V", 0), ("K", 2)] if not X("kvlate") else [], [(18, 4), (18, 20), (18, 36), (19, 4)]):
        m, d = kvgroup(kind, j)
        ex[u].setdefault(g0, []).extend(m)
        for t, dg in enumerate((1, 2, 3)): ex[u].setdefault(g0 + dg, []).append(d[t])
    rd = relayout_dst()
    if X("hfirst"):
        for k, g in enumerate(8*a_ + b_ for a_ in range(6) for b_ in range(3)): ex[18].setdefault(g, []).append(rd[k])
    else:
        for k, g in enumerate((36, 37, 38, 39, 44, 45, 46, 47, 52)): ex[19].setdefault(g, []).extend(rd[2*k:2*k+2])
    q19 = qsub(19, extra=ex[19])
    if X("hfirst"):
        q19, left = fill(q19, hops())
        if X("showcnt"): print("h ops left over:", len(left))
        q19 += left
    mid = qsub(18, extra=ex[18], vmw="@W19") + q19 + stamp(6) + fstamp(1, "conv") + (cstamp(9) if X("qcyc") else []) + convert() + fstamp(2, "conv") + init() + fstamp(7, "conv") + stamp(7) + (cstamp(8) if not (X("tcyc") or X("qcyc")) else [])
    keep = mid
    mid = [l + (" ; " + re.search(r"@\S+", k).group(0) if k.startswith("buffer_") and "@" in k and "@" not in l else "") for l, k in zip(resolve(mid, q18), keep)]
    ctl = [f"s_add_u32 s{sCNT}, s{sCNT}, 1", f"s_bitcmp1_b32 {hx(1 << 11 | 1 << 12 | 1 << 15 | (1 << 14 if X('x_tlb') else 0))}, s{sCNT}", "s_cbranch_scc0 F_AL"]
    rlk = {1: "dma", 3: "out"} if not X("norl") else {}
    if not X("nokvt"): rlk.update({2: "tk", 0: "tv"})
    mid = mid + [f"s_mov_b32 s{sCNT}, 0"]
    def mk(i, w): return step(i, vmw=w, tail=ctl if (i >= 3 and i % 4 == 2) else (), rl=rlk.get(i % 4) if i >= 3 else None)
    q = [re.search(r"@(\S+)", l).group(1) if "@" in l else "-" for l in mid if l.startswith("buffer_")]; cnts = {}
    for i in range(23):
        key = i if i < 3 else 3 + (i-3) % 4
        for l in mk(i, "?"):
            if "vmcnt(?)" in l:
                need = [f"K{i+2}"] + ([f"V{i}", f"V{i+1}"] if i % 2 == 0 else []) + (["R"] if i % 4 == 2 else [])
                c = len(q) - 1 - max(k for k, x in enumerate(q) if x in need)
                cnts[key] = min(cnts.get(key, 63), c)
            if l.startswith("buffer_"): q.append(re.search(r"@(\S+)", l).group(1))
    sites.clear()
    s0 = mk(0, cnts[0]) + mk(1, cnts[1]) + mk(2, cnts[2])
    body = [mk(i, cnts[i]) for i in range(3, 7)]
    def drop(pred):
        for k in range(4): body[k] = [l for l in body[k] if not pred(l)]
    if X("x_nobar"): drop(lambda l: l == "s_barrier")
    if X("x_nodma"): drop(lambda l: l.startswith("buffer_"))
    if X("x_nochk"): drop(lambda l: l.startswith("s_cbranch_vccnz"))
    if X("x_nolgkm"):
        for k in range(4): body[k] = [re.sub(r" lgkmcnt\(\d+\)", "", l) for l in body[k] if not l.startswith("s_waitcnt lgkmcnt")]
    if X("x_nods"): drop(lambda l: l.startswith("ds_"))
    if X("showcnt"): print("step counts", cnts, "q counts", qc)
    tlb = E()
    if X("x_tlb"):
        tlb(f"s_cmp_lg_u32 s{sCNT}, 14", "s_cbranch_scc1 F_H0", srd(28, pWS, pWS+1, 0x8000000),
            f"s_lshl_b32 s66, s{sQB}, 2", f"s_mul_i32 s66, s66, {OF_BLK}", f"s_add_u32 s66, s66, {hx(WS_OF + 190*4096)}", f"v_mul_u32_u24 v2, {OF_BLK}, v0", "v_add_u32 v2, s66, v2",
            f"s_and_b32 s66, s{sHEAD}, 3", f"s_mul_i32 s67, s66, {WF160}", f"s_add_u32 s67, s67, {hx(WS_WF)}", "v_subrev_u32 v3, 4, v0", "v_lshlrev_b32 v3, 20, v3", "v_add_u32 v3, s67, v3",
            "v_cmp_gt_u32 vcc, 4, v0", f"s_lshl_b32 s67, s{sQB}, 3", "s_add_u32 s66, s66, s67", "v_cndmask_b32 v2, v3, v2, vcc",
            "s_mul_i32 s66, s66, 327680", f"s_add_u32 s66, s66, {hx(WS_PB)}", "v_subrev_u32 v3, 7, v0", f"v_mul_u32_u24 v3, {4*327680}, v3", "v_add_u32 v3, s66, v3",
            "v_cmp_gt_u32 vcc, 7, v0", "s_nop 1", "v_cndmask_b32 v2, v3, v2, vcc", "v_cmp_gt_u32 vcc, 9, v0", "v_bfrev_b32 v3, 1", "s_nop 0", "v_cndmask_b32 v2, v3, v2, vcc",
            "buffer_load_dword v1, v2, s[28:31], 0 offen", srd(28, pOUT, pOUT+1, 2621440), f"s_mul_i32 s66, s{sQB}, 327680", "buffer_load_dword v1, off, s[28:31], s66",
            "s_branch F_AL", "F_H0:")
    hooks = E()(f"s_cmp_eq_u32 s{sCNT}, 15", "s_cbranch_scc1 F_LAST", tlb, f"s_cmp_lg_u32 s{sWAVE}, 0", "s_cbranch_scc1 F_AL",
                f"s_cmp_eq_u32 s{sCNT}, 12", "s_cbranch_scc1 F_H1", signal(2), "s_mov_b32 s66, 4",
                "s_cmp_ge_u32 s2, 8", "s_cbranch_scc1 F_AL", srd(28, pDBG, pDBG+1, 64), "s_mov_b64 exec, 1",
                f"v_mov_b32 v{RLV}, 1", f"buffer_atomic_add v{RLV}, off, s[28:31], s66 sc0 sc1", "s_mov_b64 exec, -1", "s_branch F_AL",
                "F_H1:", "s_cmp_ge_u32 s2, 8", "s_cbranch_scc1 F_AL", "s_lshl_b32 s66, s2, 2", "s_add_u32 s66, s66, 32", "s_mov_b64 exec, 1",
                f"v_add_u32 v{RLV}, 1, v{RLV}", f"buffer_store_dword v{RLV}, off, s[28:31], s66 sc1", "s_mov_b64 exec, -1", "s_branch F_AL")
    last = (cstamp(9) if not (X("tcyc") or X("qcyc")) else []) + fstamp(1, "last") + laststep()
    h1 = E()(stamp(10), fstamp(1, "tail"), fstamp(5, "last"), "s_waitcnt vmcnt(24)", CHK2, roles(), fstamp(6, "last"), tail_setup(), (decode() + [flagld()]) if X("qflag") else [], tail_vsetup(), fstamp(7, "last"), "s_waitcnt vmcnt(0)", fstamp(8, "last"), fstamp(2, "tail"), "s_barrier", wave0(signal(3)), fstamp(3, "tail"))
    preS, bodyS, ctlS, cS, fpS = tloop()
    hS = E()(preS, cstamp(8) if X("tcyc") else [])
    sim = tpre(False) + [x for st in range(28) for x in tstage(st, False, 0)]
    q28 = [re.search(r"@(\S+)", l).group(1) for l in sim if l.startswith("buffer_")][-24:]
    finS = E()(resolve(tfinal(cS), q28), stamp(12), fstamp(6, "tail"), cstamp(9) if X("tcyc") else [])
    end = tail_end()
    L(pro, ".p2align 6", "F_QL:", qloop, qctl, mid, s0, ".p2align 6", ["s_nop 0"]*([int(x[2:]) for x in exp.split() if x.startswith("sh")] or [0])[0], "F_AL:", *body, hooks, "F_LAST:", last,
      h1, hS, ".p2align 6", "F_TLS:", bodyS, ctlS, finS, "F_TE:", end, stamp_flush(0, 13, pWS, f"s{sWAVE}"), encode(), "F_END:", "s_endpgm")
    for k, par in enumerate(sites):
        L(f"F_TR{k}:", f"s_call_b64 s[{sRET}:{sRET+1}], F_SLOW{par}", f"s_branch F_BK{k}")
    L(stubs, tstubs, flagspin("F_TSP", "F_TSB"), "F_PFE:", slow(0), slow(1), slow(2), slow(3))
    flat = lambda Z: [y for x in Z for y in x]
    pro = [l for l in pro if l not in ("s_branch F_LN",)]
    tr = pro + qfp + qctl + (qloop + qctl)*2 + mid + s0 + flat(body) + flat(body) + last + h1
    if "x_" in exp: return L, kernel_desc(NAME, 512, 256), "; @launch grid=(256,1,1) block=(256,1,1) lds=163840"
    check(tr + hS + fpS + ctlS + (bodyS + ctlS)*6 + finS + end, "S")
    check(flagspin("A", "B") + bodyS, "spin")
    for n in range(4):
        b = body[n]
        idx = [i for i, x in enumerate(b) if x.startswith("F_BK")][0]
        check(body[(n-1) % 4] + b[:idx] + slow((3+n) % 4) + b[idx:] + body[(n+1) % 4], f"slow{n}")
    return L, kernel_desc(NAME, 512, 256), "; @launch grid=(256,1,1) block=(256,1,1) lds=163840"

def build(path, **kw):
    HDR = open("recurrent_scan__gqa_block_cached__dense_activation_relu__prompt.s.ref").read().split("; Override launch")[0]
    L, D, H = gen(**kw)
    L = [re.sub(r"\s*; @\S+$", "", l) for l in L]
    NOTE = """;
; One launch, 256 workgroups (one per CU), 4 waves x 64 query rows, v_mfma_f32_16x16x32_bf16 throughout.
;   3. flash attention over 64 key tiles; exp2 is taken against a running reference that starts at the true maximum of
;      the first tile and is moved to the true running maximum whenever a row sum leaves the safe range (F_SLOW*);
;      wo / w2 are re-laid out as MFMA fragments in otherwise idle issue slots
;   4. o @ wo and h @ w2 as 128 x 160 tiles with K split over four workgroups (shares follow the order of arrival),
;      partial sums exchanged through d_ws, then out = x + s * silu(g)
"""
    open(path, "w").write(HDR + NOTE + H + "\n" + '.amdgcn_target "amdgcn-amd-amdhsa--gfx950"\n' + "\n".join(L) + "\n" + "\n".join(D) + "\n")
if __name__ == "__main__":
    for flag, mode in (("--ts", None), ("--tail", "tail"), ("--front", "front"), ("--last", "last"), ("--conv", "conv")):
        if flag in sys.argv:
            OPT["ts"] = True; OPT["mode"] = mode; sys.argv.remove(flag)
    build(sys.argv[1], exp=" ".join(sys.argv[2:]))
```

```python
from common import *
import re, sys

NAME = "recurrent_scan__gqa_block_cached__dense_activation_relu__prompt_kernel"
MF = "v_mfma_f32_16x16x32_bf16"
EXP = [""]
DEFAULTS = ["poll1", "touch3", "hfirst", "wfirst", "qsnake"]
def X(flag): return flag in EXP[0].split() or (flag in DEFAULTS and "no_" + flag not in EXP[0].split())

KR, VR = 0, 49152
WA, WB = 65536, 114688
ST = 122880
OWN = 81920
pX, pK, pV, pWQ, pWO, pWS, pW1, pW2, pOUT, pDBG = 4, 6, 8, 10, 68, 70, 72, 74, 76, 78
sK_SRD, sV_SRD, sWQ_SRD, sW1_SRD, sXF_SRD, sOF_SRD, sFL = 12, 16, 20, 24, 28, 32, 80
sWAVE, sHEAD, sM64, sKo = 36, 37, 38, 39
sMK, sMV, sMW = 40, 44, 48
sWq, sW1, sX, sCNT, sC, sTHR, sO, sVo, sRET = 54, 55, 56, 57, 58, 60, 61, 63, 64
sH = [6, 7, 62]
sTMP, sU, sT, sQB = 66, 67, 84, 85
sRSRC, sRDST, sRM, sRS = 8, 20, 24, 25
QV, NM, S0, S1, P, KF, VF, ET, T_, L_ = 16, 48, 64, 96, 112, 176, 200, 224, 232, 236
AK, AV, DK, DV, CK, LX, RLV = 240, 242, 246, 249, 224, 253, 254
AF, DA, DB, DH, AWA, AWB, AH, LXB, LX8, LXB2 = 16, 40, 44, 46, 192, 200, 204, 207, 208, 209
CSCALE = math.log2(math.e) / math.sqrt(192.0)
THR = 2.0 ** 30
SPIN = 1 << 18

def srdn(b): return f"s[{b}:{b+3}]"
class E(list):
    def __call__(self, *x):
        for y in x:
            if isinstance(y, list): self.extend(y)
            else: self.append(y)
        return self
lab = [0]
def newlab(p):
    lab[0] += 1; return f"F_{p}{lab[0]}"
def wave0(body):
    l = newlab("W")
    return E()(f"s_cmp_lg_u32 s{sWAVE}, 0", f"s_cbranch_scc1 {l}", body, f"{l}:")

def poll(phase, mask, soff, wide=False, vaddr="v2"):
    l, d = newlab("P"), newlab("D")
    e = E()
    e(f"s_mov_b32 exec_lo, {mask[0]}", f"s_mov_b32 exec_hi, {mask[1]}", f"s_add_u32 s{sTMP}, s{sT}, {phase}", f"s_mov_b32 s{sU}, 0")
    if wide:
        e(f"{l}:", f"buffer_load_dwordx4 v[4:7], {vaddr}, {srdn(sFL)}, {soff} offen sc1", "s_waitcnt vmcnt(0)")
        for r in range(4): e(f"v_subrev_u32 v{4+r}, s{sTMP}, v{4+r}")
        e("v_max3_u32 v4, v4, v5, v6", "v_max_u32 v4, v4, v7")
        e(f"v_cmp_lt_u32 vcc, {4-phase}, v4", f"s_add_u32 s{sU}, s{sU}, 1", f"s_cmp_gt_u32 s{sU}, {SPIN}", f"s_cbranch_scc1 {d}", f"s_cbranch_vccnz {l}")
    elif X("poll1"):
        e(f"{l}:", f"buffer_load_dword v4, {vaddr}, {srdn(sFL)}, {soff} offen sc1", "s_waitcnt vmcnt(0)", f"v_subrev_u32 v4, s{sTMP}, v4")
        e(f"v_cmp_lt_u32 vcc, {4-phase}, v4", f"s_add_u32 s{sU}, s{sU}, 1", f"s_cmp_gt_u32 s{sU}, {SPIN}", f"s_cbranch_scc1 {d}", f"s_cbranch_vccnz {l}")
    else:
        ld = lambda r: f"buffer_load_dword v{r}, {vaddr}, {srdn(sFL)}, {soff} offen sc1"
        e(ld(8), "s_sleep 4", ld(9), "s_sleep 4", ld(10), f"{l}:")
        for r in (8, 9, 10):
            e("s_waitcnt vmcnt(2)", f"v_subrev_u32 v11, s{sTMP}, v{r}", f"v_cmp_lt_u32 vcc, {4-phase}, v11", f"s_add_u32 s{sU}, s{sU}, 1", ld(r), "s_nop 0", f"s_cbranch_vccz {d}")
        e(f"s_cmp_le_u32 s{sU}, {SPIN}", f"s_cbranch_scc1 {l}")
    e(f"{d}:", "s_mov_b64 exec, -1")
    return e
def signal(phase):
    return E()(f"s_add_u32 s{sTMP}, s{sT}, {phase}", f"s_lshl_b32 s{sU}, s{sQB}, 5", f"s_add_u32 s{sU}, s{sU}, s{sHEAD}", f"s_lshl_b32 s{sU}, s{sU}, 2",
               f"v_mov_b32 v4, s{sTMP}", "v_mov_b32 v5, 0", "s_mov_b64 exec, 1",
               f"buffer_store_dword v4, v5, {srdn(sFL)}, s{sU} offen sc1", "s_mov_b64 exec, -1")

def qacc(ds, tb, qt):
    n = (ds*2 + tb)*4 + qt
    return R("a", 4*n) if n < 24 else R("v", 48 + 4*(n-24))
def hacc(tt, qt): return R("v", 144 + 4*(tt*4 + qt))
def BF(s, kk, qt): return a(96 + 32*(s % 3) + 16*kk + 4*qt, 4)
def ldB(s): return [f"buffer_load_dwordx4 {BF(s,kk,qt)}, v{LXB2 if kk else LXB}, {srdn(sXF_SRD)}, s{sX} offen offset:{1024*qt} sc1 ; @B{s}" for kk in range(2) for qt in range(4)]
advX = [f"s_add_u32 s{sX}, s{sX}, 8192"]
advW = [f"s_add_u32 s{sWq}, s{sWq}, 786432", f"s_add_u32 s{sW1}, s{sW1}, 196608"]
def dmaW(u):
    if u % 2 == 0: return [f"buffer_load_dwordx4 v{DA+t}, {srdn(sWQ_SRD)}, s{sWq} offen offset:{1024*t} lds ; @W{u}" for t in range(4)]
    return [f"buffer_load_dwordx4 v{DB+t}, {srdn(sWQ_SRD)}, s{sWq} offen offset:{1024*t} lds ; @W{u}" for t in range(2)] + \
           [f"buffer_load_dwordx4 v{DH+t}, {srdn(sW1_SRD)}, s{sW1} offen offset:{1024*(t+2)} lds ; @W{u}" for t in range(2)]
TCH, TCD = 210, 212
sTq, sT1 = 64, 65
def touch(): return [f"buffer_load_dword v{TCD}, v{TCH}, {srdn(sWQ_SRD)}, s{sTq} offen ; @T", f"buffer_load_dword v{TCD}, v{TCH+1}, {srdn(sW1_SRD)}, s{sT1} offen offset:3072 ; @T"]
def TPS(): return [int(x[3:]) for x in EXP[0].split() if x.startswith("tps")] or ([] if X("notps") else [3])
def advT_():
    n = 1 if TPS() else 3
    return [f"s_add_u32 s{sTq}, s{sTq}, {n*786432}", f"s_add_u32 s{sT1}, s{sT1}, {n*196608}"]
def touch_addr(nst):
    return E()("v_mul_u32_u24 v1, 171, v0", "v_lshrrev_b32 v1, 9, v1", "v_mul_u32_u24 v2, 3, v1", "v_sub_u32 v2, v0, v2",
               "v_lshrrev_b32 v3, 1, v1", "v_and_b32 v1, 1, v1", "v_lshl_add_u32 v1, v3, 6, v1", f"v_add_u32 v1, s66, v1",
               "v_mul_lo_u32 v1, v1, s67", "v_lshl_add_u32 v1, v2, 7, v1", f"v_cmp_gt_u32 vcc, {6*nst}, v0", "v_bfrev_b32 v8, 1",
               "v_lshrrev_b32 v3, 2, v0", "v_bfe_u32 v2, v0, 1, 1", f"v_cndmask_b32 v{TCH}, v8, v1, vcc",
               "v_lshl_add_u32 v3, v3, 6, v2", "v_add_u32 v3, s66, v3", f"v_cmp_gt_u32 vcc, {4*nst}, v0", "v_mul_u32_u24 v3, 3072, v3",
               "v_and_b32 v2, 1, v0", "v_mul_u32_u24 v2, 92, v2", "v_add_u32 v3, v3, v2", f"v_cndmask_b32 v{TCH+1}, v8, v3, vcc")
def m0W(u): return f"s_mov_b32 m0, s{sMW + u % 6}"
def qorder(s): return list(range(8)) + ([12, 13, 14, 8, 9, 10, 11] if s == 9 and X("hfirst") else list(range(8, 15)))
def qrd(s, pos, kk, uu):
    T = qorder(s)[pos]
    dst = v(AF + 8*(pos % 3) + 4*kk + 2*uu, 2)
    if T < 8: return f"ds_read_b64_tr_b16 {dst}, v{AWA + T} offset:{(s % 3)*16384 + kk*8192 + uu*1024}"
    reg = AWB + T - 8 if T < 12 else AH + T - 12
    return f"ds_read_b64_tr_b16 {dst}, v{reg} offset:{(s % 3)*16384 + kk*8192 + uu*512}"
def qsub(u, last=20, extra=None, vmw=None):
    extra = extra or {}
    s = u >> 1; TL = list(range(8)) if u % 2 == 0 else list(range(8, 15)); nT = len(TL)
    L = []
    lb = ldB(s + 2) if (u % 2 == 0 and s + 2 < last//2) else []
    dw = dmaW(u + 5) if u + 5 < last else []
    for ti, T in enumerate(TL):
        for p in range(4):
            qt = p if T % 2 == 0 else 3 - p
            TT = qorder(s)[T]
            acc = (qacc(TT >> 1, TT & 1, qt) if TT < 12 else hacc(TT-12, qt))(4)
            for kk in range(2):
                g = 2*p + kk; gi = 8*ti + g
                L.append(f"{MF} {acc}, {v(AF + 8*(T % 3) + 4*kk, 4)}, {BF(s, kk, qt)}, {acc}")
                s2, T2 = s + (T+2)//15, (T+2) % 15
                if g < 4:
                    if 2*s2 < last: L.append(qrd(s2, T2, g >> 1, g & 1))
                    if g == 3:
                        left = 15*(last//2) - 1 - (15*s + T)
                        if left >= 1: L.append(f"s_waitcnt lgkmcnt({4 if left >= 2 else 0})")
                if lb and ti < 4 and g in (4, 6): L.append(lb[2*ti + (g-4)//2])
                if lb and ti == 4 and g == 4: L += advX
                if u % 6 == 2 and last > 20 and X("kvq"):
                    if ti == 4 and g == 5: L += [f"s_cmp_eq_u32 s{sCNT}, 1", "s_cselect_b32 s66, 0, s3"]
                    if ti == 4 and g == 6: L.append(f"buffer_load_dword v{TCD}, v{KVT}, {srdn(sK_SRD)}, s66 offen ; @T")
                    if ti == 5 and g == 4: L.append(f"buffer_load_dword v{TCD}, v{KVT}, {srdn(sV_SRD)}, s66 offen ; @T")
                if u % (2 if TPS() else 6) == 0 and last > 20 and not X("notouch"):
                    if ti == 4 and g == 6: L.append(touch()[0])
                    if ti == 5 and g == 4: L.append(touch()[1])
                    if ti == 5 and g == 5: L += advT_()
                if ti == nT-3 and g == 6 and dw: L.append(m0W(u+5))
                if ti == nT-3 and g == 7 and vmw is not None: L += [f"s_waitcnt vmcnt({vmw})", "s_barrier"]
                if dw and ti >= nT-2 and g in (4, 6): L.append(dw[2*(ti-nT+2) + (g-4)//2])
                if dw and u % 2 == 0 and ti == nT-1 and g == 7: L += advW
                L += extra.get(gi, [])
    return L
def qcounts():
    q = ["B1"]*8 + (["W2"]*4 + ["W3"]*4 + ["W4"]*4 if X("lateW") else [])
    out = {}; first = {}
    for u in range(18):
        for l in qsub(u, last=40, vmw="?"):
            if "vmcnt(?)" in l:
                need = ["W%d" % (u+1)] + (["B%d" % ((u+1)//2)] if u % 2 else [])
                idx = [i for i, x in enumerate(q) if x in need]
                if idx:
                    c = len(q) - 1 - max(idx)
                    if u < 6: first[u] = c
                    else: out[u % 6] = min(out.get(u % 6, 63), c)
            if l.startswith("buffer_"): q.append(re.search(r"@(\S+)", l).group(1))
    return out, {u: c for u, c in first.items() if c < out[u]}, q

def fill(L, ops):
    gaps = []
    for l in L:
        if l.startswith(MF) or not gaps: gaps.append([l])
        else: gaps[-1].append(l)
    ops = list(ops)
    for gi, g in enumerate(gaps):
        rest = [x for x in g[1:] if not x.endswith(":")]
        ds = any(x.startswith("ds_") for x in rest); vm = any(x.startswith("buffer_") for x in rest)
        nv = sum(x.startswith("v_") for x in rest); ns = len(rest) - nv - ds - vm
        if vm or "s_barrier" in rest: continue
        free = (1 - nv - ns) if ds else (2 - nv - max(0, ns - 1))
        while ops and ops[0][0] <= gi and free > 0:
            if ops[0][1] == "m":
                if ds or rest or len(g) > 1: break
                g.append(ops.pop(0)[2]); free = 0
            else: g.append(ops.pop(0)[2]); free -= 1
    return [x for g in gaps for x in g] , [x[2] for x in ops]
def hops():
    o = []
    for tt in range(3):
        for p in range(4):
            qt = p if (8 + tt) % 2 == 0 else 3 - p
            h = hacc(tt, qt); d = 2 + 2*((4*tt + p) % 6); g0 = 8*tt + 2*p + 1 + 6
            o += [(g0, "a", f"v_cvt_pk_bf16_f32 v{d}, {h(1,0)}, {h(1,1)}"), (g0, "a", f"v_cvt_pk_bf16_f32 v{d+1}, {h(1,2)}, {h(1,3)}"),
                  (g0, "a", f"v_pk_max_i16 v{d}, v{d}, 0"), (g0, "a", f"v_pk_max_i16 v{d+1}, v{d+1}, 0"),
                  (g0, "m", f"buffer_store_dwordx2 {v(d,2)}, v{LX8}, {srdn(sOF_SRD)}, s{sH[tt]} offen offset:{1024*qt} sc1")][:4 if X("x_nohst") else 5]
    return o
def convert():
    e = E()("s_nop 7")
    early = X("earlyk")
    k = 0
    late = X("lateh")
    if late: e(f"v_mov_b32 v14, v{LX8}")
    for tt in range(3 if not X("hfirst") else 0):
        for qt in range(4):
            h = hacc(tt, qt); d = 144 + 2*k if late else 2 + 2*(k % 6); k += 1
            e(f"v_cvt_pk_bf16_f32 v{d}, {h(1,0)}, {h(1,1)}", f"v_cvt_pk_bf16_f32 v{d+1}, {h(1,2)}, {h(1,3)}",
              f"v_pk_max_i16 v{d}, v{d}, 0", f"v_pk_max_i16 v{d+1}, v{d+1}, 0")
            if not late and not X("x_nohst"): e(f"buffer_store_dwordx2 {v(d,2)}, v{LX8}, {srdn(sOF_SRD)}, s{sH[tt]} offen offset:{1024*qt} sc1")
    if early:
        e("s_waitcnt vmcnt(@K0)", "s_barrier", [rdK(0, 0, ds) for ds in range(6)], [rdK(0, 1, ds, VF) for ds in range(6)])
        m, d = kvgroup("V", 1); e(m, d)
        m, d = kvgroup("K", 3); e(m, d[:2])
    kvl = [("K", 0), ("K", 1), ("V", 0), ("K", 2)] if X("kvlate") else []
    for ds in (3, 4, 5, 0, 1, 2):
        if kvl:
            m, d = kvgroup(*kvl.pop(0)); e(m, d)
        dsts = []
        for qt in range(4):
            f = ds*4 + qt
            Xr, Yr = qacc(ds, 0, qt), qacc(ds, 1, qt)
            if Xr.f == "a":
                tx, ty = R("v", (192 if late else 144) + 8*qt), R("v", (196 if late else 148) + 8*qt)
                for r in range(4): e(f"v_accvgpr_read_b32 {tx(1,r)}, {Xr(1,r)}")
                for r in range(4): e(f"v_accvgpr_read_b32 {ty(1,r)}, {Yr(1,r)}")
                Xr, Yr = tx, ty
            d = QV + 4*(f-16) if f >= 16 else (224 if early else 176) + 4*qt
            dsts.append(d)
            for Z in (Xr, Yr):
                if X("nopk"):
                    for r in range(4): e(f"v_mul_f32 {Z(1,r)}, s{sC}, {Z(1,r)}")
                else:
                    for r in (0, 2): e(f"v_pk_mul_f32 {Z(2,r)}, {Z(2,r)}, s[{sC}:{sC+1}]")
            e(f"v_cvt_pk_bf16_f32 v{d}, {Xr(1,0)}, {Xr(1,1)}", f"v_cvt_pk_bf16_f32 v{d+1}, {Xr(1,2)}, {Xr(1,3)}",
              f"v_cvt_pk_bf16_f32 v{d+2}, {Yr(1,0)}, {Yr(1,1)}", f"v_cvt_pk_bf16_f32 v{d+3}, {Yr(1,2)}, {Yr(1,3)}")
        e("s_mov_b32 exec_lo, 0")
        for d in dsts: e(f"v_swap_b32 v{d}, v{d+2}", f"v_swap_b32 v{d+1}, v{d+3}")
        e("s_mov_b32 exec_lo, -1")
        if ds < 4:
            for qt in range(4):
                for r in range(4): e(f"v_accvgpr_write_b32 a{192 + 4*(ds*4+qt) + r}, v{dsts[qt]+r}")
    return e

def hstores(): return [f"buffer_store_dwordx2 {v(144 + 2*k, 2)}, v14, {srdn(sOF_SRD)}, s{sH[k//4]} offen offset:{1024*(k%4)} sc1 ; @H" for k in range(12)]

def Qf(f): return a(192 + 4*f, 4) if f < 16 else v(QV + 4*(f-16), 4)
def Oacc(dt, qt): return (dt*4 + qt)*4
def dmaK(t): return f"buffer_load_dwordx4 v{DK+t}, {srdn(sK_SRD)}, s{sKo} offen offset:{1024*t} lds"
def dmaV(t): return f"buffer_load_dwordx4 v{DV+t}, {srdn(sV_SRD)}, s{sVo} offen offset:{1024*t} lds"
def kvgroup(kind, j):
    so = sKo if kind == "K" else sVo
    return [f"s_mov_b32 m0, s{(sMK if kind=='K' else sMV) + j}", f"s_mov_b32 s{so}, {12288*j}"], [(dmaK(t) if kind == "K" else dmaV(t)) + f" ; @{kind}{j}" for t in range(3)]
def rdK(slot, kt, ds, dst=KF): return f"ds_read_b128 {v(dst+4*ds,4)}, v{AK+(ds&1)} offset:{slot*12288 + kt*6144 + (ds>>1)*128}"
def Pb(t): return P + 16*(t % 4)
def rdVp(m2, part, dst=VF):
    return [f"ds_read_b64_tr_b16 {v(dst + 8*dl + 4*tl + 2*u, 2)}, v{AV + ((3*part+dl) & 3)} offset:{((m2+tl) % 4)*12288 + u*6144 + ((3*part+dl) >> 2)*128}"
            for dl in range(3) for tl in range(2) for u in range(2)]
def qk(dst, src=KF, czero=False):
    o = []
    for qt in range(4):
        for k in range(6):
            ds = 5 - k if (qt & 1 and X("qsnake")) else k
            d = v(dst+4*qt, 4)
            c = ("0" if czero else v(NM+4*qt, 4)) if k == 0 else d
            o.append(f"{MF} {d}, {v(src+4*ds,4)}, {Qf(ds*4+qt)}, {c}")
    return o
def pv(m2, part, czero=False, src=VF):
    o = []
    for dl in range(3):
        for p in range(4):
            qt = p if (3*part + dl) % 2 == 0 else 3 - p
            acc = a(Oacc(3*part+dl, qt), 4)
            for tl in range(2):
                o.append(f"{MF} {acc}, {v(src + 8*dl + 4*tl, 4)}, {v(Pb(m2+tl) + 4*qt, 4)}, {'0' if czero and tl == 0 else acc}")
    return o
def sm(src, qts, Pb, kt):
    Ex, Sx = [], []
    k = 0
    for qt in qts:
        for pr in range(2):
            t0 = ET + 2*k; t1 = t0 + 1; k += 1
            Ex += [f"v_exp_f32 v{t0}, v{src+4*qt+2*pr}", f"v_exp_f32 v{t1}, v{src+4*qt+2*pr+1}"]
            n = len(Ex)
            if kt == 0 and pr == 0: Sx.append((n, f"v_add_f32 v{T_+qt}, v{t0}, v{t1}"))
            else: Sx += [(n-1, f"v_add_f32 v{T_+qt}, v{T_+qt}, v{t0}"), (n, f"v_add_f32 v{T_+qt}, v{T_+qt}, v{t1}")]
            Sx.append((n, f"v_cvt_pk_bf16_f32 v{Pb+4*qt+2*kt+pr}, v{t0}, v{t1}"))
    return Ex, Sx
def quarter(mf, pat, Ex, Sx, D, B, salu):
    assert len(pat) == len(mf) == 24, (pat, len(pat))
    out = []; ei = si = di = bi = 0
    for gi, m in enumerate(mf):
        out.append(m); ty = pat[gi]
        sc = salu.get(gi, [])
        def take(n):
            nonlocal si
            r = []
            while n > 0 and si < len(Sx) and Sx[si][0] <= ei: r.append(Sx[si][1]); si += 1; n -= 1
            return r
        if ty == "e": out += sc + [Ex[ei]]; ei += 1
        elif ty == "d": out += [D[di]] + take(1) + sc; di += 1
        elif ty == "a": out += sc + take(2)
        elif ty == "1": out += sc + take(1)
        elif ty == "b": out += sc + [B[bi]]; bi += 1
        elif ty == "-": out += sc
        else: raise ValueError(ty)
    assert ei == len(Ex) and si == len(Sx) and di == len(D) and bi == len(B), (pat, ei, len(Ex), si, len(Sx), di, len(D), bi, len(B))
    return out
P1 = "ee" + "de"*6 + "d"*6 + "a1b-"
P2 = "de"*6 + "ee" + "baabaa" + "----"
P3 = "ed"*8 + "dddd" + "b---"
P4 = "ebeb" + "de"*6 + "aaa" + "-----"
CHK = [f"v_max3_f32 v{CK}, v{T_}, v{T_+1}, v{T_+2}", f"v_max_f32 v{CK}, v{CK}, v{T_+3}", f"v_cmp_lt_f32 vcc, s{sTHR}, v{CK}"]
LADD = [f"v_add_f32 v{L_+q}, v{L_+q}, v{T_+q}" for q in range(4)]
sites = []
def callsite(par):
    k = len(sites); sites.append(par)
    return [f"s_cbranch_vccnz F_TR{k}", f"F_BK{k}:"]
def step(i, vmw=12, tail=(), rl=None):
    par, slot = i & 1, i % 4
    S0n = S0 + 16*(1-par); Pc = Pb(i); Pn = Pb(i+1)
    m2 = i-1 if par else i-2
    p0 = 0 if par else 2
    nopv = i == 0; cz = i in (1, 2)
    mK = lambda j: f"s_mov_b32 m0, s{sMK + j % 4}"
    mV = lambda j: f"s_mov_b32 m0, s{sMV + j % 4}"
    aK = f"s_add_u32 s{sKo}, s{sKo}, 12288"; aV = f"s_add_u32 s{sVo}, s{sVo}, 12288"
    if par:
        B1 = [dmaV(2) + f" ; @V{i+1}"]; B2 = [dmaV(0) + f" ; @V{i+2}", dmaV(1) + f" ; @V{i+2}"]; B3 = [dmaV(2) + f" ; @V{i+2}"]
        B4 = [dmaK(0) + f" ; @K{i+4}", dmaK(1) + f" ; @K{i+4}"]; m2_, a2, a3, m4 = mV(i+2), aV, aV, mK(i+4)
    else:
        B1 = [dmaK(2) + f" ; @K{i+3}"]; B2 = [dmaK(0) + f" ; @K{i+4}", dmaK(1) + f" ; @K{i+4}"]; B3 = [dmaK(2) + f" ; @K{i+4}"]
        B4 = [dmaV(0) + f" ; @V{i+2}", dmaV(1) + f" ; @V{i+2}"]; m2_, a2, a3, m4 = mK(i+4), aK, aK, mV(i+2)
    L = []
    def emit(mf, pat, Ex, Sx, D, B, sal):
        if mf is None:
            sc = [x for g in sorted(sal) for x in sal[g] if not x.startswith("s_waitcnt")]
            hs = hstores()[6*emit.n:6*emit.n+6] if X("lateh") else []; emit.n += 1
            mixed = []
            for k, x in enumerate(Ex):
                mixed.append(x)
                if k < len(hs): mixed.append(hs[k])
            return D + sc + ["s_nop 3"] + B + mixed + [x for _, x in Sx] + ["s_waitcnt lgkmcnt(0)"]
        return quarter(mf, pat, Ex, Sx, D, B, sal)
    emit.n = 0
    Ex, Sx = sm(S1, [2, 3], Pc, 1)
    D1 = rdVp(m2, p0) if not nopv else []
    L += quarter(qk(S0n), P1 if D1 else P1.replace("d", "1"), Ex, Sx + [(8, x) for x in CHK], D1, B1, {23: ["s_waitcnt lgkmcnt(6)"]} if D1 else {})
    L += callsite(i % 4)
    Ex, Sx = sm(S0n, [0, 1], Pn, 0)
    pat = P2; D = [rdK((slot+1) % 4, 1, ds) for ds in range(6)]; B = B2
    sal = {3: [a2], 7: ["s_waitcnt lgkmcnt(4)"], 13: [m2_], 23: ["s_waitcnt lgkmcnt(0)"]}
    if rl == "dma":
        pat = P2[:20] + "b---"; B = B + [rl_dma() + " ; @R"]
        sal.update({18: [f"s_cmp_lt_u32 s{sCNT}, 9"], 19: [f"s_mov_b32 m0, s{sRM}"], 21: [f"s_cselect_b32 s{sTMP}, 128, s3", f"s_cselect_b32 s{sRI}, 1024, 0"],
                    22: [m2_, f"s_add_u32 s{sRS}, s{sRS}, s{sTMP}"], 23: ["s_waitcnt lgkmcnt(0)", f"s_add_u32 s{sRM}, s{sRM}, s{sRI}"]})
    if rl in ("tk", "tv") and X("kvt2"):
        pat = P2[:20] + "bb--"
        B = B + [f"buffer_load_dword v1, v{KVT}, {srdn(x)}, s{sKT} offen ; @T" for x in (sK_SRD, sV_SRD)]
        sal[22] = [f"s_add_u32 s{sKT}, s{sKT}, 24576"]
    elif rl in ("tk", "tv"):
        pat = P2[:20] + "b---"
        B = B + [f"buffer_load_dword v1, v{KVT}, {srdn(sK_SRD if rl == 'tk' else sV_SRD)}, s{sKT} offen ; @T"]
        if rl == "tk": sal[22] = [f"s_add_u32 s{sKT}, s{sKT}, 49152"]
    if rl == "out":
        pat = P2[:20] + "dad-"; D = D + [rl_rd(0), rl_rd(1)]; sal[23] = ["s_waitcnt lgkmcnt(2)"]
        xs = [(8, f"v_xor_b32 v{RTD+2}, s{sRX}, v{RTV}"), (8, f"v_add_u32 v{RTD+2}, s{sRU}, v{RTD+2}")]
    if rl == "out":
        q = quarter(pv(m2, p0, cz), pat.replace("dad-", "d-d-"), Ex, [(0, x) for x in LADD] + Sx, D, B, sal)
        k = q.index(rl_rd(0)); L += q[:k+2] + [x for _, x in xs] + q[k+2:]
    else: L += emit(None if nopv else pv(m2, p0, cz), pat, Ex, [(0, x) for x in LADD] + Sx, D, B, sal)
    Ex, Sx = sm(S0n, [2, 3], Pn, 0)
    D3 = rdVp(m2, p0+1) if not nopv else []
    sal = {21: [a3], 23: [f"s_waitcnt vmcnt({vmw}) lgkmcnt(0)", "s_barrier"]}
    L += quarter(qk(S1), P3 if D3 else P3.replace("d", "1"), Ex, Sx, D3, B3, sal)
    Ex, Sx = sm(S1, [0, 1], Pn, 1)
    sal = {0: [m4], 22: ["s_waitcnt lgkmcnt(0)"]}
    pat = P4; B = B4
    tail = list(tail)
    if tail:
        sal[19] = tail[:1]; sal[20] = tail[1:2]; sal[23] = tail[2:]
    if rl == "out":
        pat = P4[:19] + "b1---"; B = B + [rl_st() + " ; @S"]
        sal.update({5: [f"s_cmp_lt_u32 s{sCNT}, 10"], 7: [f"s_cselect_b32 s{sRJ}, 1024, 0"], 9: [f"s_sub_u32 s{sTMP}, s{sCNT}, 1"],
                    11: [f"s_cmp_lt_u32 s{sTMP}, 10"], 13: [f"s_cselect_b32 s{sTMP}, s{sRO}, s3"], 15: [f"s_cselect_b32 s{sRI}, 4096, 0"],
                    16: [f"s_add_u32 s{sRO}, s{sRO}, s{sRI}"], 17: [f"s_lshr_b32 s{sRI}, s{sRI}, 10"], 18: [f"s_add_u32 s{sRR}, s{sRR}, s{sRI}"],
                    20: [f"s_cmp_gt_u32 s{sRR}, 9"], 21: [f"s_cselect_b32 s{sRI}, {WF160 - 10240}, 0", f"s_cselect_b32 s{sTMP}, 10, 0"],
                    22: ["s_waitcnt lgkmcnt(0)", f"s_add_u32 s{sRO}, s{sRO}, s{sRI}"], 23: [f"s_sub_u32 s{sRR}, s{sRR}, s{sTMP}"]})
        Sx = Sx + [(8, f"v_add_u32 v{RTV}, s{sRJ}, v{RTV}")]
    L += emit(None if nopv else pv(m2, p0+1, cz), pat, Ex, Sx, [rdK((slot+2) % 4, 0, ds) for ds in range(6)], B, sal)
    return L
sRJ, sKT, KVT = 59, 58, 252
def kv_touch_addr(D):
    return E()(f"s_lshl_b32 s66, s{sQB}, 2", f"s_add_u32 s66, s66, s{sWAVE}", f"s_mul_i32 s66, s66, {768 if X('kvt2') else 1536}", "v_lshlrev_b32 v3, 7, v0", "v_add_u32 v3, s66, v3",
               f"v_cmp_gt_u32 vcc, {6 if X('kvt2') else 12}, v0", "v_bfrev_b32 v2, 1", "s_nop 0", f"v_cndmask_b32 v{KVT}, v2, v3, vcc")
def xlane(op, dst, tmp):
    L = []
    for sw in ("v_permlane16_swap_b32", "v_permlane32_swap_b32"):
        L += [f"v_mov_b32 v{tmp+qt}, v{dst+qt}" for qt in range(4)] + ["s_nop 1"]
        L += [f"{sw} v{dst+qt}, v{tmp+qt}" for qt in range(4)]
        L += [f"{op} v{dst+qt}, v{dst+qt}, v{tmp+qt}" for qt in range(4)]
    return L
def rowmax(dst, srcs, tmp):
    L = []
    for qt in range(4):
        r = srcs(qt); d = dst + qt
        L += [f"v_max3_f32 v{d}, v{r[0]}, v{r[1]}, v{r[2]}", f"v_max3_f32 v{d}, v{d}, v{r[3]}, v{r[4]}",
              f"v_max3_f32 v{d}, v{d}, v{r[5]}, v{r[6]}", f"v_max_f32 v{d}, v{d}, v{r[7]}"]
    return L + xlane("v_max_f32", dst, tmp)
def init():
    e = E()
    if not X("earlyk"):
        e("s_waitcnt vmcnt(@K0)", "s_barrier", fstamp(3, "conv"))
        for ds in range(6): e(rdK(0, 0, ds))
        for ds in range(6): e(rdK(0, 1, ds, VF))
        m, d = kvgroup("V", 1); e(m, d)
        m, d = kvgroup("K", 3); e(m, d[:2])
    e(f"s_mov_b32 s{sKT}, {4*12288}")
    NI = ([int(x[3:]) for x in EXP[0].split() if x.startswith("kvi")] or [4 if X("kvt2") else 2])[0]
    for _ in range(NI):
        e(f"buffer_load_dword v1, v{KVT}, {srdn(sK_SRD)}, s{sKT} offen ; @T", f"buffer_load_dword v1, v{KVT}, {srdn(sV_SRD)}, s{sKT} offen ; @T", f"s_add_u32 s{sKT}, s{sKT}, {24576 if X('kvt2') else 49152}")
    e(f"s_mov_b32 s{sVo}, {2*12288}")
    for q in range(4): e(f"v_mov_b32 v{L_+q}, 0")
    e(fstamp(4, "conv"), "s_waitcnt lgkmcnt(6)", qk(S0, KF, True), "s_waitcnt vmcnt(@K1) lgkmcnt(0)", "s_barrier", fstamp(5, "conv"))
    m = qk(S1, VF, True)
    rd = [rdK(1, 0, ds) for ds in range(6)]
    for i, x in enumerate(m):
        e(x)
        if i < 6: e(rd[i])
    e("s_nop 7", fstamp(6, "conv"))
    D, TM = 2, 6
    e(rowmax(D, lambda qt: [S0+4*qt+r for r in range(4)] + [S1+4*qt+r for r in range(4)], TM))
    for qt in range(4): e(f"v_ceil_f32 v{D+qt}, v{D+qt}")
    for qt in range(4):
        for r in range(4):
            e(f"v_sub_f32 v{NM+4*qt+r}, 0, v{D+qt}", f"v_sub_f32 v{S0+4*qt+r}, v{S0+4*qt+r}, v{D+qt}", f"v_sub_f32 v{S1+4*qt+r}, v{S1+4*qt+r}, v{D+qt}")
    for src, qts, kt in ((S0, [0, 1], 0), (S0, [2, 3], 0), (S1, [0, 1], 1)):
        Ex, Sx = sm(src, qts, Pb(0), kt)
        e(Ex, [x for _, x in Sx])
    e("s_waitcnt lgkmcnt(0)")
    return e
def slow(k):
    par = k & 1
    S0c = S0 + 16*par; S0n = S0 + 16*(1-par)
    e = E()(f"F_SLOW{k}:", "s_nop 7", "s_nop 7")
    D, TM = 2, 6
    e(rowmax(D, lambda qt: [S0c+4*qt+r for r in range(4)] + [S1+4*qt+r for r in range(4)], TM))
    for qt in range(4): e(f"v_max_f32 v{D+qt}, 0, v{D+qt}", f"v_ceil_f32 v{D+qt}, v{D+qt}", f"v_sub_f32 v{TM+qt}, 0, v{D+qt}", f"v_cvt_i32_f32 v{TM+qt}, v{TM+qt}")
    for qt in range(4):
        e(f"v_ldexp_f32 v{L_+qt}, v{L_+qt}, v{TM+qt}")
        for base in (NM, S0c, S1, S0n):
            for r in range(4): e(f"v_sub_f32 v{base+4*qt+r}, v{base+4*qt+r}, v{D+qt}")
    for t in ([k-1] if par else [k-1, k-2]):
        for qt in range(4):
            for r in range(4):
                p = Pb(t) + 4*qt + r
                e(f"v_lshlrev_b32 v10, 16, v{p}", f"v_and_b32 v11, 0xffff0000, v{p}", f"v_ldexp_f32 v10, v10, v{TM+qt}", f"v_ldexp_f32 v11, v11, v{TM+qt}",
                  f"v_cvt_pk_bf16_f32 v{p}, v10, v11")
    for dt in range(12):
        for qt in range(4):
            b = Oacc(dt, qt)
            for r in range(2):
                e(f"v_accvgpr_read_b32 v10, a{b+2*r}", f"v_accvgpr_read_b32 v11, a{b+2*r+1}", f"v_ldexp_f32 v10, v10, v{TM+qt}", f"v_ldexp_f32 v11, v11, v{TM+qt}",
                  f"v_accvgpr_write_b32 a{b+2*r}, v10", f"v_accvgpr_write_b32 a{b+2*r+1}, v11")
    for src, qts, kt in ((S0c, [0, 1], 0), (S0c, [2, 3], 0), (S1, [0, 1], 1), (S1, [2, 3], 1)):
        Ex, Sx = sm(src, qts, Pb(k), kt)
        e(Ex, [x for _, x in Sx])
    e("s_nop 1", f"s_setpc_b64 s[{sRET}:{sRET+1}]")
    return e

def relayout_src():
    return E()("s_cmp_lt_u32 s2, 192", f"s_cselect_b32 s{sRSRC}, s{pWO}, s{pW2}", f"s_cselect_b32 s{sRSRC+1}, s{pWO+1}, s{pW2+1}", "s_cselect_b32 s66, 0, 192",
               "s_sub_u32 s66, s2, s66", "s_mul_i32 s66, s66, 40960", f"s_add_u32 s{sRSRC}, s{sRSRC}, s66", f"s_addc_u32 s{sRSRC+1}, s{sRSRC+1}, 0",
               "s_cmp_lt_u32 s2, 240", f"s_cselect_b32 s{sRSRC+2}, 40960, 0", f"s_mov_b32 s{sRSRC+3}, 0x20000")
def relayout_dst():
    return E()("s_mul_i32 s66, s2, 10240", f"s_add_u32 s67, s66, {hx(WS_WF)}", f"s_sub_u32 s{sRDST+2}, {4*WF160}, s66",
               "s_cmp_lt_u32 s2, 240", f"s_cselect_b32 s{sRDST+2}, s{sRDST+2}, 0", f"s_cselect_b32 s67, s67, {hx(WS_WF)}",
               f"s_add_u32 s{sRDST}, s{pWS}, s67", f"s_addc_u32 s{sRDST+1}, s{pWS+1}, 0", f"s_mov_b32 s{sRDST+3}, 0x20000",
               f"s_mul_i32 s{sRM}, s{sWAVE}, 10240", f"s_add_u32 s{sRM}, s{sRM}, {ST}", f"s_mov_b32 s{sRS}, 0",
               f"s_lshl_b32 s{sRO}, s{sWAVE}, 10", f"s_mov_b32 s{sRR}, s{sWAVE}",
               "s_cmp_lt_u32 s2, 192", f"s_cselect_b32 s{sRX}, 0, 64", f"s_mov_b32 s{sRU}, 512", f"s_cselect_b32 s{sRU}, 20480, s{sRU}")
RTV, RTD = 255, 12
sRO, sRR, sRI = 26, 27, 62
def relayout_vaddr():
    return E()(f"s_mov_b32 s67, {ST - 1024}", _relayout_vaddr())
def _relayout_vaddr():
    return E()("v_lshrrev_b32 v1, 2, v0", "v_and_b32 v1, 7, v1", "v_lshlrev_b32 v2, 7, v1", "v_lshrrev_b32 v3, 5, v0", "v_mul_u32_u24 v3, 10240, v3", "v_add_u32 v2, v2, v3",
               "v_and_b32 v3, 3, v0", "v_lshl_add_u32 v2, v3, 3, v2", f"v_add_u32 v2, {ST - 1024}, v2", "v_lshrrev_b32 v1, 1, v1", "v_lshlrev_b32 v1, 5, v1",
               f"s_lshl_b32 s66, s{sWAVE}, 5", "v_xor_b32 v1, s66, v1", "v_add_u32 v4, v1, v2",
               "v_lshrrev_b32 v1, 4, v0", "v_mul_u32_u24 v1, 10240, v1", "v_bfe_u32 v2, v0, 2, 2", "v_lshl_add_u32 v1, v2, 7, v1", "v_lshl_add_u32 v1, v3, 3, v1",
               "v_lshrrev_b32 v2, 1, v2", "v_lshlrev_b32 v2, 5, v2", "v_xor_b32 v2, s66, v2", f"v_add3_u32 v1, v1, v2, s67",
               "s_cmp_lt_u32 s2, 192", "s_cselect_b64 vcc, -1, 0", f"v_cndmask_b32 v{RTV}, v1, v4, vcc")
def rl_dma(): return f"buffer_load_dwordx4 v{RLV}, {srdn(sRSRC)}, s{sRS} offen lds"
sRX, sRU = 48, 49
def rl_rd(u): return f"ds_read_b64_tr_b16 {v(RTD+2*u,2)}, v{RTV if u == 0 else RTD+2}"
def rl_st(): return f"buffer_store_dwordx4 {v(RTD,4)}, v{LX}, {srdn(sRDST)}, s{sTMP} offen sc1"

def front():
    e = E()
    e("s_load_dwordx8 s[4:11], s[0:1], 0", f"s_load_dwordx2 s[{pWO}:{pWO+1}], s[0:1], 32", f"s_load_dwordx4 s[{pW1}:{pW1+3}], s[0:1], 48",
      f"s_load_dwordx4 s[{pOUT}:{pOUT+3}], s[0:1], 64", f"s_load_dwordx2 s[{pWS}:{pWS+1}], s[0:1], 80")
    if not X("nopf"):
        e("s_getpc_b64 s[66:67]", "F_PC:", "v_lshrrev_b32 v1, 6, v0", "s_lshr_b32 s62, s2, 3", "s_mul_i32 s62, s62, 1536", "s_add_u32 s62, s62, 8192 - 512",
          "v_and_b32 v2, 63, v0", "v_lshlrev_b32 v4, 7, v2", "v_and_b32 v2, 3, v0", "v_lshl_add_u32 v2, v1, 2, v2", "v_lshlrev_b32 v2, 7, v2", "v_add_u32 v2, s62, v2",
          "v_cmp_eq_u32 vcc, 0, v1", "v_mov_b32 v5, s67", "s_nop 0", "v_cndmask_b32 v4, v2, v4, vcc", f"v_min_u32 v4, {'F_END' if X('oldpf') else 'F_PFE'}-F_PC, v4",
          "v_add_co_u32 v4, vcc, s66, v4", "s_nop 1", "v_addc_co_u32 v5, vcc, 0, v5, vcc", f"global_load_dword v{TCD+1}, v[4:5], off")
    e(wave_id(f"s{sWAVE}"), stamp(0), "s_mov_b32 s3, 0x10000000")
    if X("early0"): e("s_mov_b32 s88, s100")
    e("s_and_b32 s66, s2, 7", "s_lshl_b32 s66, s66, 2", "s_lshr_b32 s67, s2, 3", "s_and_b32 s67, s67, 3", f"s_add_u32 s{sHEAD}, s66, s67",
      f"s_lshr_b32 s{sQB}, s2, 5", f"s_lshl_b32 s66, s{sQB}, 2", f"s_add_u32 s{sM64}, s66, s{sWAVE}")
    e(f"s_lshl_b32 s66, s{sQB}, 5", f"s_add_u32 s66, s66, s{sHEAD}", "s_lshl_b32 s66, s66, 2", f"s_add_u32 s66, s66, s{sWAVE}", "s_lshl_b32 s62, s66, 1",
      "s_mul_i32 s66, s62, 1280",
      "v_lshrrev_b32 v1, 5, v0", "v_and_b32 v2, 31, v0", "v_mul_u32_u24 v3, 1280, v1", "v_lshl_add_u32 v3, v2, 3, v3",
      f"v_lshlrev_b32 v{LX}, 4, v0", f"s_or_b32 s{sKo}, s2, s{sWAVE}")
    e("s_waitcnt lgkmcnt(0)", fstamp(1))
    e(srd(12, pX, pX+1, 2560, "s66"))
    XR, XX = 64, 80
    for m in range(5): e(f"buffer_load_dwordx2 {v(XR+2*m,2)}, v3, s[12:15], 0 offen offset:{256*m}")
    e(srd(sFL, pWS, pWS+1, 1024, WS_FL), f"s_cmp_eq_u32 s{sKo}, 0", f"s_cselect_b32 s{sFL+2}, 1024, 0",
      f"buffer_load_dwordx4 v[76:79], v{LX}, {srdn(sFL)}, 0 offen sc1", f"s_mov_b32 s{sFL+2}, 1024",
      f"s_lshl_b32 s66, s{sQB}, 5", f"s_add_u32 s66, s66, s{sHEAD}", "s_lshl_b32 s66, s66, 2", f"buffer_load_dword v75, off, {srdn(sFL)}, s66 sc1")
    e("s_lshr_b32 s66, s62, 6", f"s_mul_i32 s66, s66, {XF_BLK}", "s_and_b32 s67, s62, 63", "s_lshl_b32 s67, s67, 6", "s_add_u32 s66, s66, s67",
      f"s_sub_u32 s67, {XF_BLK}, s67")
    e(srd(16, pWS, pWS+1, "s67", "s66"))
    e("v_lshrrev_b32 v13, 3, v2", "v_lshlrev_b32 v13, 12, v13", "v_lshl_add_u32 v13, v1, 6, v13", "v_and_b32 v3, 7, v0", "v_lshl_add_u32 v13, v3, 3, v13")
    dry = X("dryln")
    W_ = E()
    e_real = e
    e = W_
    e(f"s_mul_i32 s66, s{sHEAD}, 384", "s_sub_u32 s67, 7864320, s66"); e(srd(sWQ_SRD, pWQ, pWQ+1, "s67", "s66"))
    e(f"s_mul_i32 s66, s{sHEAD}, 96", "s_sub_u32 s67, 1969152, s66", f"s_sub_u32 s{pW1}, s{pW1}, 3072", f"s_subb_u32 s{pW1+1}, s{pW1+1}, 0")
    e(srd(sW1_SRD, pW1, pW1+1, "s67", "s66"))
    e(f"s_lshl_b32 s66, s{sWAVE}, 4", "s_mov_b32 s67, 12288")
    e("v_lshrrev_b32 v1, 4, v0", "v_and_b32 v2, 15, v0", "v_lshlrev_b32 v3, 1, v1", "v_xor_b32 v2, v2, v3", "v_add_u32 v3, s66, v1", "v_mul_lo_u32 v3, v3, s67",
      f"v_lshl_add_u32 v{DA}, v2, 4, v3", f"v_add_u32 v{DA+1}, {4*12288 - 1024}, v{DA}", "v_xor_b32 v2, 8, v2", "v_lshl_add_u32 v3, v2, 4, v3",
      f"v_add_u32 v{DA+2}, {8*12288 - 2048}, v3", f"v_add_u32 v{DA+3}, {12*12288 - 3072}, v3")
    e("v_lshrrev_b32 v1, 3, v0", "v_and_b32 v2, 7, v0", "v_and_b32 v3, 2, v1", "v_xor_b32 v2, v2, v3", "v_add_u32 v3, s66, v1", "v_mul_lo_u32 v4, v3, s67",
      "v_add_u32 v4, 256, v4", f"v_lshl_add_u32 v{DB}, v2, 4, v4", "v_xor_b32 v5, 4, v2", "v_lshl_add_u32 v4, v5, 4, v4", f"v_add_u32 v{DB+1}, {8*12288 - 1024}, v4",
      "v_mul_u32_u24 v3, 3072, v3", "v_bfrev_b32 v8, 1", "v_cmp_gt_u32 vcc, 6, v2", "v_lshl_add_u32 v6, v2, 4, v3", "v_add_u32 v6, 1024, v6",
      f"v_cndmask_b32 v{DH}, v8, v6, vcc", "v_cmp_gt_u32 vcc, 6, v5", "v_lshl_add_u32 v6, v5, 4, v3", f"v_add_u32 v6, {8*3072}, v6",
      f"v_cndmask_b32 v{DH+1}, v8, v6, vcc")
    e(f"s_lshl_b32 s66, s{sWAVE}, 12")
    for u in range(6): e(f"s_add_u32 s{sMW+u}, s66, {(WB if u % 2 else WA) + 16384*(u >> 1)}")
    e(f"s_mov_b32 s{sWq}, 0", f"s_mov_b32 s{sW1}, 0")
    NE = 5 if X("allW") else 2
    def wgrp(lo, hi):
        o = E()
        for u in range(lo, hi):
            o(m0W(u), "s_nop 0", dmaW(u))
            if u % 2: o(advW)
        return o
    e(wgrp(0, NE))
    NT = 0 if X("notouch") else 2
    if NT:
        e(f"s_lshl_b32 s66, s{sQB}, 3", f"s_lshl_b32 s67, s{sWAVE}, 1", "s_add_u32 s66, s66, s67", "s_mov_b32 s67, 12288", touch_addr(4),
          f"s_mov_b32 s{sTq}, 786432", f"s_mov_b32 s{sT1}, 196608")
        tch = touch()
        if X("touch2") or X("touch3") or X("touch4"): NT = 0
        else: e(tch)
    e = e_real
    if not dry: e(W_)
    else:
        e("s_mov_b32 s63, s18", "s_mov_b32 s18, 0", "s_mov_b32 s39_, 0".replace("s39_", "s60"), "s_branch F_LN", "F_LN1:", "s_mov_b32 s18, s63", "s_mov_b32 s60, 1")
    e(fstamp(2), f"s_waitcnt vmcnt({0 if dry else 4*NE + NT})", stamp(1), fstamp(3))
    l1 = newlab("T")
    e(srd(12, pDBG, pDBG+1, 4), "v_mov_b32 v27, 0", f"s_cmp_lg_u32 s{sKo}, 0", f"s_cbranch_scc1 {l1}")
    e("v_and_b32 v1, 15, v0", "v_lshlrev_b32 v1, 2, v1", "ds_write_b32 v1, v27")
    for r in range(4):
        e(f"v_bfe_u32 v{4+r}, v{76+r}, 3, 9", f"v_lshrrev_b32 v{8+r}, 5, v{4+r}", f"v_lshlrev_b32 v{8+r}, 2, v{8+r}",
          f"v_and_b32 v{4+r}, 31, v{4+r}", f"v_lshlrev_b32_e64 v{4+r}, v{4+r}, 1")
    for r in range(4): e(f"ds_or_b32 v{8+r}, v{4+r}")
    e("ds_read_b32 v2, v1", "s_waitcnt lgkmcnt(0)", "v_not_b32 v2, v2", "v_ffbl_b32 v2, v2", "v_cmp_ne_u32 vcc, -1, v2",
      "s_nop 4", "s_ff1_i32_b64 s66, vcc", "s_nop 1", "v_readlane_b32 s67, v2, s66", "s_nop 4", "s_lshl_b32 s66, s66, 5", "s_add_u32 s66, s66, s67",
      "s_lshl_b32 s66, s66, 3", "s_or_b32 s66, s66, 0x40000000", "v_mov_b32 v26, s66",
      "s_mov_b64 exec, 1", "buffer_store_dword v26, v27, s[12:15], 0 offen sc1", "s_mov_b64 exec, -1", f"{l1}:")
    XO = 100 if dry else XR
    if dry: e("F_LN:")
    for i in range(10): e(f"v_lshlrev_b32 v{XX+2*i}, 16, v{XR+i}", f"v_and_b32 v{XX+2*i+1}, 0xffff0000, v{XR+i}")
    def reduce32(r, t):
        o = []
        for sh in (8, 4, 2, 1): o += ["s_nop 1", f"v_add_f32_dpp {r}, {r}, {r} row_ror:{sh} row_mask:0xf bank_mask:0xf"]
        return o + [f"v_mov_b32 {t}, {r}", "s_nop 1", f"v_permlane16_swap_b32 {r}, {t}", f"v_add_f32 {r}, {r}, {t}"]
    e(f"v_add_f32 v10, v{XX}, v{XX+1}", f"v_add_f32 v11, v{XX+2}, v{XX+3}")
    for i in range(4, 20, 2): e(f"v_add_f32 v10, v10, v{XX+i}", f"v_add_f32 v11, v11, v{XX+i+1}")
    e("v_add_f32 v10, v10, v11", reduce32("v10", "v11"))
    e(f"s_mov_b32 s66, {hx(f2u(1.0/640))}", "v_mul_f32 v10, s66, v10", "v_mov_b32 v11, 0", "v_mov_b32 v12, 0")
    for i in range(0, 20, 2):
        e(f"v_sub_f32 v1, v{XX+i}, v10", f"v_sub_f32 v2, v{XX+i+1}, v10", "v_fmac_f32 v11, v1, v1", "v_fmac_f32 v12, v2, v2")
    e("v_add_f32 v11, v11, v12", reduce32("v11", "v12"), "v_mul_f32 v11, s66, v11")
    e("v_cvt_pk_bf16_f32 v10, v10, v11", "v_and_b32 v11, 0xffff0000, v10", "v_lshlrev_b32 v10, 16, v10")
    e(f"v_add_f32 v11, {hx(f2u(1e-5))}, v11", "v_cvt_pk_bf16_f32 v11, v11, v11", "v_lshlrev_b32 v11, 16, v11",
      "v_sqrt_f32 v11, v11", "s_nop 0", "v_cvt_pk_bf16_f32 v11, v11, v11", "v_lshlrev_b32 v11, 16, v11", "v_rcp_f32 v11, v11", "s_nop 0")
    for i in range(10):
        a0, a1 = XX+2*i, XX+2*i+1
        e(f"v_sub_f32 v{a0}, v{a0}, v10", f"v_sub_f32 v{a1}, v{a1}, v10", f"v_cvt_pk_bf16_f32 v1, v{a0}, v{a1}",
          f"v_lshlrev_b32 v{a0}, 16, v1", f"v_and_b32 v{a1}, 0xffff0000, v1",
          f"v_mul_f32 v{a0}, v{a0}, v11", f"v_mul_f32 v{a1}, v{a1}, v11", f"v_cvt_pk_bf16_f32 v{XO+i}, v{a0}, v{a1}")
        if i % 2: e(f"s_mov_b32 s66, {16384*(i//2)}", f"buffer_store_dwordx2 {v(XO+i-1,2)}, v13, s[16:19], s66 offen sc1")
    if dry: e("s_cmp_eq_u32 s60, 0", "s_cbranch_scc1 F_LN1", W_)
    e(stamp(2), fstamp(4))
    e("v_lshrrev_b32 v1, 4, v0", "v_lshrrev_b32 v2, 2, v0", "v_and_b32 v2, 3, v2", "v_and_b32 v3, 3, v0",
      "v_and_b32 v5, 1, v1", "v_lshlrev_b32 v4, 1, v2", "v_lshl_or_b32 v4, v5, 3, v4",
      "v_lshl_add_u32 v6, v1, 3, v2", "v_lshlrev_b32 v6, 8, v6", f"v_add_u32 v6, {WA}, v6", "v_lshrrev_b32 v7, 1, v3")
    for T in range(8):
        e(f"v_or_b32 v8, {4*(T >> 1)}, v3", "v_xor_b32 v8, v8, v4", "v_lshl_add_u32 v8, v8, 4, v6", f"v_xor_b32 v9, {T & 1}, v7", f"v_lshl_add_u32 v{AWA+T}, v9, 3, v8")
    e("v_and_b32 v4, 2, v2", "v_lshl_or_b32 v4, v5, 2, v4",
      "v_lshl_add_u32 v6, v5, 3, v2", "v_lshlrev_b32 v6, 7, v6", "v_lshrrev_b32 v8, 1, v1", "v_lshl_add_u32 v6, v8, 12, v6", f"v_add_u32 v6, {WB}, v6")
    for T in range(4):
        e(f"v_or_b32 v8, {4*(T >> 1)}, v3", "v_xor_b32 v8, v8, v4", "v_lshl_add_u32 v8, v8, 4, v6", f"v_xor_b32 v9, {T & 1}, v7", f"v_lshl_add_u32 v{AWB+T}, v9, 3, v8")
    e("v_add_u32 v6, 2048, v6", "v_lshl_add_u32 v6, v3, 3, v6")
    for tt in range(3): e(f"v_xor_b32 v8, {2*tt}, v4", f"v_lshl_add_u32 v{AH+tt}, v8, 4, v6")
    e(fstamp(5))
    lp, ld = newlab("P"), newlab("D")
    tagpoll = E()("v_readfirstlane_b32 s62, v75", f"s_mov_b32 s{sU}, 0", f"{lp}:", "buffer_load_dword v26, v27, s[12:15], 0 offen sc1", "s_waitcnt vmcnt(0)", f"v_readfirstlane_b32 s{sT}, v26",
                  f"s_add_u32 s{sU}, s{sU}, 1", f"s_cmp_gt_u32 s{sU}, {SPIN}", f"s_cbranch_scc1 {ld}",
                  f"s_cmp_eq_u32 s{sT}, 0", f"s_cbranch_scc1 {lp}",
                  f"s_xor_b32 s66, s{sT}, s62", "s_bfe_u32 s66, s66, 0x90003", "s_cmp_eq_u32 s66, 0", f"s_cbranch_scc1 {lp}", f"{ld}:")
    e(wave0(tagpoll), "s_waitcnt vmcnt(0)", fstamp(6), "s_barrier", stamp(3), fstamp(7))
    e(wave0(signal(1)), fstamp(8))
    if not X("allW") and not X("lateW"): e(wgrp(NE, 5))
    if X("touch2"): e(tch)
    e("v_lshrrev_b32 v1, 3, v0", "v_and_b32 v2, 7, v0", f"s_mul_i32 s62, s{sWAVE}, 3072", f"s_lshl_b32 s66, s{sWAVE}, 2")
    for t in range(3):
        e(f"v_add_u32 v3, {8*t}, v1", "v_mul_u32_u24 v4, 171, v3", "v_lshrrev_b32 v4, 9, v4",
          "v_lshrrev_b32 v5, 1, v4", "v_add_u32 v6, s66, v5", "v_and_b32 v6, 7, v6", "v_xor_b32 v6, v2, v6",
          "v_lshlrev_b32 v7, 7, v1", "v_add_u32 v7, s62, v7", f"v_lshl_add_u32 v{DK+t}, v6, 4, v7",
          "v_and_b32 v5, 3, v5", "v_lshlrev_b32 v5, 1, v5", "v_xor_b32 v5, v2, v5", f"v_lshl_add_u32 v{DV+t}, v5, 4, v7")
    for i in range(4): e(f"s_add_u32 s{sMK+i}, s62, {KR + 12288*i}", f"s_add_u32 s{sMV+i}, s62, {VR + 12288*i}")
    e("v_and_b32 v3, 6, v1", "v_xor_b32 v3, v2, v3", "v_mul_u32_u24 v4, 1280, v1", "v_lshl_add_u32 v4, v3, 4, v4", f"s_mul_i32 s66, s{sWAVE}, 10240", f"v_add_u32 v{RLV}, s66, v4")
    e(f"s_mul_i32 s66, s{sM64}, {XF_BLK}")
    if WS_XF: e(f"s_add_u32 s66, s66, {hx(WS_XF)}")
    e(srd(sXF_SRD, pWS, pWS+1, XF_BLK, "s66"))
    e("v_and_b32 v1, 15, v0", "v_lshrrev_b32 v2, 4, v0", "v_lshlrev_b32 v1, 6, v1", f"v_lshl_add_u32 v{LXB}, v2, 4, v1", f"v_add_u32 v{LXB2}, 4096, v{LXB}",
      "v_lshrrev_b32 v3, 1, v2", "v_and_b32 v2, 1, v2", "v_lshrrev_b32 v1, 2, v1", "v_lshl_add_u32 v1, v3, 8, v1", f"v_lshl_add_u32 v{LX8}, v2, 3, v1",
      f"s_mov_b32 s{sX}, 0")
    e(f"s_mul_i32 s66, s{sHEAD}, 786432"); e(srd(sK_SRD, pK, pK+1, 786432, "s66"), srd(sV_SRD, pV, pV+1, 786432, "s66"), relayout_src())
    e(f"s_mul_i32 s66, s{sM64}, {OF_BLK}", f"s_add_u32 s66, s66, {hx(WS_OF)}"); e(srd(sOF_SRD, pWS, pWS+1, OF_BLK, "s66"))
    e(f"s_mov_b32 s{sC}, {hx(f2u(CSCALE))}", f"s_mov_b32 s{sC+1}, {hx(f2u(CSCALE))}", f"s_mov_b32 s{sTHR}, {hx(f2u(THR))}")
    e(f"s_mul_i32 s{sO}, s{sHEAD}, 24576")
    for tt in range(3):
        e(f"s_mul_i32 s66, s{sHEAD}, 3", f"s_add_u32 s66, s66, {tt}", "s_and_b32 s67, s66, 1", "s_lshl_b32 s67, s67, 9",
          "s_lshr_b32 s66, s66, 1", "s_add_u32 s66, s66, 192", "s_lshl_b32 s66, s66, 12", f"s_add_u32 s{sH[tt]}, s66, s67")
    e("v_lshrrev_b32 v1, 4, v0", "v_and_b32 v3, 3, v0",
      "v_lshrrev_b32 v5, 2, v0", "v_mul_u32_u24 v6, 384, v5", f"v_add_u32 v6, {VR}, v6", "v_lshl_add_u32 v6, v3, 3, v6",
      "v_lshrrev_b32 v5, 1, v5", "v_and_b32 v5, 3, v5", "v_lshlrev_b32 v5, 1, v5")
    for sg in range(4): e(f"v_xor_b32 v8, {2*sg}, v5", f"v_lshl_add_u32 v{AV+sg}, v8, 4, v6")
    e("v_and_b32 v2, 15, v0", "v_mul_u32_u24 v6, 384, v2", "v_lshrrev_b32 v2, 1, v2", "v_xor_b32 v2, v2, v1")
    e(f"v_lshl_add_u32 v{AK}, v2, 4, v6", "v_xor_b32 v2, 4, v2", f"v_lshl_add_u32 v{AK+1}, v2, 4, v6", relayout_vaddr(), kv_touch_addr(None), fstamp(9))
    if not X("notouch"):
        e(f"s_lshl_b32 s66, s{sQB}, 3", f"s_lshl_b32 s67, s{sWAVE}, 1", "s_add_u32 s66, s66, s67", "s_mov_b32 s67, 12288", touch_addr(1 if TPS() else 3),
          f"s_mov_b32 s{sTq}, {(TPS()[0] if TPS() else 3 if X('touch3') else 5)*786432}", f"s_mov_b32 s{sT1}, {(TPS()[0] if TPS() else 3 if X('touch3') else 5)*196608}")
    if X("pre2"): e(f"s_mov_b32 s{sTq}, {2*786432}", f"s_mov_b32 s{sT1}, {2*196608}", touch(), advT_())
    for i in range(96): e(f"v_accvgpr_write_b32 a{i}, 0")
    for i in range(48, 192): e(f"v_mov_b32 v{i}, 0")
    e("s_waitcnt vmcnt(0)")
    e(wave0([f"v_lshlrev_b32 v2, 2, v0", f"s_lshl_b32 s{sCNT}, s{sQB}, 7"] + poll(1, ("-1", "0"), f"s{sCNT}")))
    e("s_barrier", fstamp(10))
    for k in range(2): e(ldB(k), advX)
    e([qrd(0, T, kk, uu) for T in range(2) for kk in range(2) for uu in range(2)], wgrp(NE, 5) if X("lateW") else [])
    e(f"s_mov_b32 s{sCNT}, 0", fstamp(11), f"s_waitcnt vmcnt({20 if X('lateW') else 8}) lgkmcnt(4)", stamp(5), fstamp(12))
    return e

TB, TA, TAD, TD, TB8 = 16, 96, 160, 162, 164
sTW, sTB, sMT, sSP = 39, 58, 40, 54
LEAD = 3
def tacc(nt, qt): return (nt*2 + qt)*4
def t_rd(st, nt, kk, dst):
    slot = st % 4
    return f"ds_read_b128 {v(dst, 4)}, v{TAD + slot//3} offset:{(slot%3)*20480 + (kk*10 + nt)*1024}"
def t_A(st, nt, kk): return TA + 8*((10*st + nt) % 4) + 4*kk
def t_B(st, kk, qt): return TB + 16*(st % 4) + 8*kk + 4*qt
def t_ldB(st, g):
    if not g: return [f"buffer_load_dwordx4 {v(t_B(st,kk,qt), 4)}, v{LX}, s[16:19], s{sTB + kk} offen offset:{1024*qt} sc1 ; @B{st}" for kk in range(2) for qt in range(2)]
    return [f"buffer_load_dwordx2 {v(t_B(st,kk,qt) + 2*h, 2)}, v{TB8}, s[16:19], s{sTB + kk} offen offset:{1024*qt + 512*h} sc1 ; @B{st}" for kk in range(2) for qt in range(2) for h in range(2)]
t_advB = [f"s_add_u32 s{sTB}, s{sTB}, 8192", f"s_add_u32 s{sTB+1}, s{sTB+1}, 8192"]
def t_dmaW(st, t): return f"buffer_load_dwordx4 v{TD + (t == 4)}, s[12:15], s{sTW} offen offset:{1024*(t%4)} {'' if X('wplain') else 'sc1 '}lds ; @W{st}"
def t_m0(st, t): return f"s_add_u32 m0, s{sMT}, {(st%4)*20480 + (4096 if t == 4 else 0)}"
t_advW = [f"s_add_u32 s{sTW}, s{sTW}, 20480"]
def tplan(g):
    if g: pl = {2: ("W", LEAD-1, 3), 3: ("B", 0), 6: ("B", 1), 7: ("B", 2), 11: ("W", LEAD-1, 4), 10: ("B", 3), 14: ("B", 4), 15: ("B", 5), 19: ("B", 6), 22: ("B", 7)}
    else: pl = {2: ("W", LEAD-1, 3), 6: ("B", 0), 11: ("W", LEAD-1, 4), 15: ("B", 1), 19: ("B", 2), 23: ("B", 3)}
    pl.update({30: ("W", LEAD, 0), 34: ("W", LEAD, 1), 38: ("W", LEAD, 2)})
    return pl
sIT, sCP, sNW, sNB, sNF, sDA, sDB, FV, FA_ = 50, 52, 53, 49, 47, 45, 43, 166, 165
sFM, sFB = 60, 62
def decode():
    return [f"s_and_b32 s{sDA}, s{sIT}, 7", f"s_lshl_b32 s{sDA}, s{sDA}, 2", f"s_lshr_b32 s{sDA}, s{sCP}, s{sDA}", f"s_and_b32 s{sDA}, s{sDA}, 15",
            f"s_bfe_u32 s{sDB}, s{sIT}, 0x20003", f"s_mul_i32 s{sNF}, s{sDA}, s{sFM}", f"s_add_u32 s{sNF}, s{sNF}, s{sFB}",
            f"s_mul_i32 s{sDA}, s{sDA}, 3", f"s_add_u32 s{sDA}, s{sDA}, s{sDB}", f"s_mul_i32 s{sNW}, s{sDA}, 81920", f"s_lshl_b32 s{sNB}, s{sDA}, 15"]
shiftIT = f"s_lshr_b64 s[{sIT}:{sIT+1}], s[{sIT}:{sIT+1}], 5"
def flagld(): return f"buffer_load_dword v{FV}, v{FA_}, {srdn(sFL)}, s{sNF} offen sc1 ; @F"
def flagchk(): return [f"v_subrev_u32 v{FV}, s{sT}, v{FV}", f"v_subrev_u32 v{FV}, 3, v{FV}", f"v_cmp_lt_u32 vcc, 1, v{FV}"]
def flagspin(entry, back):
    l = newlab("S")
    return E()(f"{entry}:", f"s_mov_b32 s{sU}, 0", f"{l}:", flagld(), "s_waitcnt vmcnt(0)", flagchk(), f"s_add_u32 s{sU}, s{sU}, 1", f"s_cmp_gt_u32 s{sU}, {SPIN}",
               f"s_cbranch_scc1 {back}", f"s_cbranch_vccnz {l}", f"s_branch {back}")
def tstage(st, g, vmw, last=1 << 30, nextA=None):
    L = []
    pl = tplan(g)
    ldb = t_ldB(st + LEAD, g)
    for p in range(20):
        nt = p >> 1; qt = (p & 1) ^ (nt & 1)
        for kk in range(2):
            gi = 2*p + kk
            acc = a(tacc(nt, qt), 4)
            L.append(f"{MF} {acc}, {v(t_A(st,nt,kk), 4)}, {v(t_B(st,kk,qt), 4)}, {acc}")
            if gi % 4 < 2:
                st2, nt2 = st + (nt+3)//10, (nt+3) % 10
                if st2 == st or nextA is None: L.append(t_rd(st2, nt2, gi % 4, t_A(st2, nt2, gi % 4)))
                else: L.append(nextA[2*nt2 + gi % 4])
                if gi % 4 == 1: L.append("s_waitcnt lgkmcnt(4)")
                if gi == 28 and st + LEAD < last: L.append(t_m0(st + LEAD, 0))
                if gi == 4 and st + LEAD - 1 < last: L.append(t_m0(st + LEAD - 1, 4))
                dyn = not g and last > 32
                if gi == 12 and st + LEAD - 1 < last: L += [f"s_mov_b32 s{sTW}, s{sNW}"] if dyn and st % 4 == 1 else t_advW
                if gi == 24 and st + LEAD < last: L.append(f"s_mov_b32 s{sTB}, s{sNB}" if dyn and st % 4 == 0 else t_advB[0])
                if gi == 32 and st + LEAD < last: L.append(f"s_add_u32 s{sTB+1}, s{sNB}, 4096" if dyn and st % 4 == 0 else t_advB[1])
            if not g and last > 32:
                if st % 4 == 2:
                    dc = [shiftIT] + decode()
                    pos = {0: dc[0:1], 3: dc[1:3], 7: dc[3:5], 8: dc[5:6], 10: dc[6:8], 14: dc[8:10], 16: dc[10:11], 18: dc[11:12]}
                    L += pos.get(gi, [])
                    if gi == 26: L.append(flagld())
                if st % 4 == 0:
                    fc = flagchk()
                    if gi == 31: L += fc[:2]
                    if gi == 35: L += fc[2:]
                    if gi == 39: L += ["s_cbranch_vccnz F_TSP", "F_TSB:"]
            if gi in pl:
                x = pl[gi]
                if x[0] == "W":
                    if st + x[1] < last: L.append(t_dmaW(st + x[1], x[2]))
                elif st + LEAD < last: L.append(ldb[x[1]])
            if gi == 27: L += [f"s_waitcnt vmcnt({vmw})", "s_barrier"]
    return L
def tpreW():
    e = E()
    for st in range(LEAD-1):
        e(t_m0(st, 0), "s_nop 0", [t_dmaW(st, t) for t in range(4)], t_m0(st, 4), "s_nop 0", t_dmaW(st, 4), t_advW)
    return e(t_m0(LEAD-1, 0), "s_nop 0", [t_dmaW(LEAD-1, t) for t in range(3)])
def tpreB():
    e = E()
    for st in range(LEAD): e(t_ldB(st, False), t_advB)
    return e
def tpre(g=False):
    if X("wfirst"): return tpreW() + tpreB()
    e = E()
    for st in range(LEAD-1):
        e(t_m0(st, 0), "s_nop 0", [t_dmaW(st, t) for t in range(4)], t_m0(st, 4), "s_nop 0", t_dmaW(st, 4), t_advW, t_ldB(st, g), t_advB)
    e(t_ldB(LEAD-1, g), t_advB, t_m0(LEAD-1, 0), "s_nop 0", [t_dmaW(LEAD-1, t) for t in range(3)])
    return e
def tcounts():
    L = tpre()
    for st in range(12): L = L + tstage(st, False, f"@W{st+1},@B{st+1}")
    L = [l for l in L if not l.startswith(("s_cbranch", "F_"))]
    c = [int(re.search(r"vmcnt\((\d+)\)", l).group(1)) for l in resolve(L, []) if "vmcnt" in l]
    steady = [min(c[4+k], c[8+k]) for k in range(4)]
    return steady, {k: c[k] for k in range(4) if c[k] < steady[k]}
tstubs = []
def tloop():
    steady, first = tcounts()
    dec1 = E()(f"s_mov_b32 s{sTW}, s{sNW}", f"s_mov_b32 s{sTB}, s{sNB}", f"s_add_u32 s{sTB+1}, s{sNB}, 4096")
    quick = E()(flagchk(), "s_nop 1", "s_cbranch_vccz F_T0B") if X("qflag") else []
    wait0 = E()(f"s_cmp_eq_u32 s{sSP}, 3", "s_cbranch_scc1 F_T0B", quick, flagspin("F_T0", "F_T0B"), "F_T0B:", stamp(11), fstamp(4, "tail"), fstamp(9, "last"), shiftIT, decode(), flagld())
    if X("wfirst"): pre = E()(decode() if not X("qflag") else [], dec1, tpreW(), wait0, resolve(tpreB() + ["s_waitcnt vmcnt(@B0)"], []))
    else: pre = E()(decode(), dec1, wait0, resolve(tpre() + ["s_waitcnt vmcnt(@W0,@B0)"], []))
    pre("s_barrier", [t_rd(0, nt, kk, t_A(0, nt, kk)) for nt in range(3) for kk in range(2)], f"s_mov_b32 s{sCNT}, 0", "s_waitcnt lgkmcnt(4)", fstamp(10, "last"), fstamp(5, "tail"))
    body = []; fp = []; tstubs.clear()
    for st in range(4):
        b = tstage(st, False, steady[st])
        if st in first:
            k = b.index(f"s_waitcnt vmcnt({steady[st]})")
            fp += b[:k] + [f"s_waitcnt vmcnt({first[st]})"] + b[k+1:]
            j = max(i for i in range(k) if b[i].startswith(MF)); j = max(i for i in range(j) if b[i].startswith(MF))
            b = b[:j+1] + [f"s_cmp_eq_u32 s{sCNT}, 0"] + b[j+1:k] + [f"s_cbranch_scc1 F_US{st}", b[k], f"F_UB{st}:"] + b[k+1:]
            tstubs.extend([f"F_US{st}:", f"s_waitcnt vmcnt({first[st]})", f"s_branch F_UB{st}"])
        else: fp += b
        body += b
    ctl = [f"s_add_u32 s{sCNT}, s{sCNT}, 1", f"s_cmp_lt_u32 s{sCNT}, s46", "s_cbranch_scc1 F_TLS"]
    return pre, body, ctl, steady, fp
def pb_off(): return E()(f"s_lshl_b32 s41, s{sWAVE}, 2", f"s_add_u32 s41, s41, s{sSP}", "s_mul_i32 s41, s41, 20480",
                         f"s_cmp_eq_u32 s{sWAVE}, s{sSP}", "s_cselect_b32 s41, 0x10000000, s41")
def own_write():
    l = newlab("O")
    e = E()(f"s_cmp_lg_u32 s{sWAVE}, s{sSP}", f"s_cbranch_scc1 {l}", f"v_add_u32 v4, {OWN}, v{LX}")
    for i in range(20): e(f"ds_write_b128 v4, {a(tacc(i % 10, i // 10), 4)} offset:{1024*i}")
    return e(f"{l}:")
def tfinal(cnt):
    FA = lambda nt, k: TA + 16*(nt % 4) + 4*k
    frd = lambda nt, k: t_rd(30 + (k >> 1), nt, k & 1, FA(nt, k))
    e = E()
    for l in tstage(28, False, "@W29,@B29", last=32):
        e(l)
        if l.startswith("buffer_load") and l.endswith("@W31") and "offset:2048" in l:
            e.last = len(e)
    tail = e[e.last:]; del e[e.last:]
    k = [i for i, l in enumerate(tail) if l.startswith(MF)]
    assert len(k) == 1
    e(t_dmaW(31, 3), tail[k[0]], t_m0(31, 4), "s_nop 0", t_dmaW(31, 4))
    n = 0
    for l in tstage(29, False, "0", last=31):
        if l.startswith("ds_read"):
            n += 1
            if n > 14: continue
        if l == "s_waitcnt lgkmcnt(4)" and n > 14: l = "s_waitcnt lgkmcnt(0)"
        if l.startswith("s_waitcnt vmcnt") or l == "s_barrier": continue
        e(l)
    e("s_waitcnt vmcnt(@W30,@B30,@W31,@B31)", "s_barrier")
    e([frd(0, k) for k in range(4)], [frd(1, k) for k in range(4)], pb_off(), "s_waitcnt lgkmcnt(4)")
    pend = []
    for nt in range(10):
        for qt in range(2):
            for k_ in range(4):
                g = 4*qt + k_; k = 3 - k_ if qt else k_
                acc = a(tacc(nt, qt), 4)
                e(f"{MF} {acc}, {v(FA(nt,k),4)}, {v(t_B(30 + (k >> 1), k & 1, qt),4)}, {acc}")
                if g < 4 and nt + 2 < 10: e(frd(nt+2, g))
                if g == 3 and nt + 1 < 10: e(f"s_waitcnt lgkmcnt({4 if nt + 2 < 10 else 0})")
                if g in (4, 6) and nt > 0:
                    q2 = (g-4)//2; i = q2*10 + nt-1
                    e(f"buffer_store_dwordx4 {a(tacc(nt-1,q2),4)}, v{LX}, s[20:23], s{42+q2} offen sc1")
                if g in (1, 2) and nt > 0:
                    q2 = g - 1; e(f"s_add_u32 s{42+q2}, s41, {1024*(q2*10 + nt-1)}")
    e("s_add_u32 s42, s41, 9216", "s_add_u32 s43, s41, 19456", "s_nop 5")
    for q2 in range(2): e(f"buffer_store_dwordx4 {a(tacc(9,q2),4)}, v{LX}, s[20:23], s{42+q2} offen sc1")
    e(own_write())
    return e
def gfinal():
    e = E()(pb_off(), "s_waitcnt vmcnt(0) lgkmcnt(0)", "s_nop 1")
    for i in range(20):
        b = tacc(i % 10, i // 10); d = 16 + 6*(i % 8)
        for r in range(4): e(f"v_accvgpr_read_b32 v{d+r}, a{b+r}")
        e(f"v_cvt_pk_bf16_f32 v{d+4}, v{d}, v{d+1}", f"v_cvt_pk_bf16_f32 v{d+5}, v{d+2}, v{d+3}")
        if i % 8 == 0: e(f"s_add_u32 s42, s41, {512*i}")
        e(f"buffer_store_dwordx2 {v(d+4,2)}, v{TB8}, s[20:23], s42 offen offset:{512*(i%8)} sc1")
    e(own_write())
    return e
def items(lst):
    x = 0
    for k, (rb, th) in enumerate(lst): x |= (rb | th << 3) << (5*k)
    return x
def blk(*rbs): return [(rb, th) for rb in rbs for th in range(3)]
PATTERNS = {"B": [blk(0, 2, 4), blk(1, 3, 5), blk(6, 7)],
            "C": [blk(0, 2, 4) + [(5, 0)], blk(1, 3) + [(5, 1), (5, 2)], blk(6, 7)],
            "D": [blk(0, 2, 4), blk(1, 3) + [(5, 0), (5, 1)], [(5, 2)] + blk(6, 7)],
            "E": [blk(0, 2, 4) + [(5, 0)], blk(1, 3) + [(5, 1)], [(5, 2)] + blk(6, 7)],
            "F": [blk(0, 3) + [(6, 0), (6, 1)], blk(1, 4) + [(6, 2), (7, 0)], blk(2, 5) + [(7, 1), (7, 2)]],
            "G": [blk(0, 2) + [(4, 0), (4, 1)], blk(1, 3) + [(4, 2), (5, 0)], [(5, 1), (5, 2)] + blk(6, 7)],
            "A": [blk(0, 3) + [(6, 0), (6, 1)], blk(1, 4) + [(6, 2), (7, 0)], blk(2, 5) + [(7, 1), (7, 2)]]}
DV_ = 136
def roles():
    e = E()
    l, d = newlab("R"), newlab("D")
    e(f"s_mov_b32 s{sU}, 0", f"{l}:", f"v_readlane_b32 s{sT}, v{DV_}, 0", f"s_add_u32 s{sU}, s{sU}, 1", "s_nop 0", f"v_subrev_u32 v{DV_+2}, s{sT}, v{DV_}",
      f"v_cmp_lt_u32 vcc, 7, v{DV_+2}", "s_nop 3", "s_and_b32 s41, vcc_lo, 0xff00", f"s_cbranch_scc0 {d}",
      f"s_cmp_gt_u32 s{sU}, {SPIN}", f"s_cbranch_scc1 {d}", f"buffer_load_dword v{DV_}, v{DV_+1}, s[28:31], 0 offen sc1", "s_waitcnt vmcnt(0)", f"s_branch {l}", f"{d}:")
    e(f"s_mov_b32 s{sCP}, 0", "s_and_b32 s41, s2, 7", "s_add_u32 s41, s41, 8", f"v_readlane_b32 s42, v{DV_+2}, s41")
    e([f"v_readlane_b32 s{12+c}, v{DV_+2}, {8+c}" for c in range(8)], "s_nop 3")
    for c in range(1, 8):
        e(f"s_and_b32 s41, s{12+c}, 7", "s_lshl_b32 s41, s41, 2", f"s_lshl_b32 s41, {c}, s41", f"s_or_b32 s{sCP}, s{sCP}, s41")
    e("s_and_b32 s42, s42, 7")
    if X("static"): e("s_and_b32 s42, s2, 7", f"s_mov_b32 s{sCP}, 0x76543210")
    e(f"s_lshr_b32 s{sSP}, s42, 1", "s_add_u32 s55, s42, 1", "s_lshr_b32 s55, s55, 1", "s_and_b32 s55, s55, 1", f"s_and_b32 s56, s{sHEAD}, 3")
    pat = PATTERNS[[x[3:] for x in EXP[0].split() if x.startswith("pat")][0] if "pat" in EXP[0] else "D"]
    pat = pat + [blk(0, 1)]
    for m in (3, 2, 1, 0):
        x = items(pat[m])
        if m == 3: e(f"s_mov_b32 s{sIT}, {hx(x)}", f"s_mov_b32 s{sIT+1}, {hx(x >> 32)}", f"s_mov_b32 s46, {len(pat[m]) - 1}")
        else: e(f"s_cmp_eq_u32 s{sSP}, {m}", f"s_cselect_b32 s{sIT}, {hx(x)}, s{sIT}", f"s_cselect_b32 s{sIT+1}, {hx(x >> 32)}, s{sIT+1}", f"s_cselect_b32 s46, {len(pat[m]) - 1}, s46")
    e(f"s_lshl_b32 s41, s{sQB}, 7", f"s_lshl_b32 s42, s{sHEAD}, 2", "s_add_u32 s42, s42, s41", f"s_cmp_eq_u32 s{sSP}, 3", f"s_cselect_b32 s{sCP}, 0x98, s{sCP}",
      f"s_cselect_b32 s{sFM}, 0, 16", f"s_cselect_b32 s{sFB}, s42, s41", "s_cselect_b32 s40, 0, 3")
    return e
def tail_setup():
    e = E()
    e("v_and_b32 v1, s40, v0", f"v_lshlrev_b32 v{FA_}, 2, v1")
    e(f"s_mul_i32 s41, s56, {WF160}", f"s_add_u32 s41, s41, {hx(WS_WF)}")
    e(srd(12, pWS, pWS+1, WF160, "s41"))
    e(f"s_lshl_b32 s41, s{sQB}, 2", "s_lshl_b32 s42, s55, 1", "s_add_u32 s41, s41, s42", f"s_lshr_b32 s42, s{sWAVE}, 1", "s_add_u32 s41, s41, s42",
      f"s_mul_i32 s41, s41, {OF_BLK}",
      f"s_and_b32 s42, s{sWAVE}, 1", "s_lshl_b32 s42, s42, 11", "s_add_u32 s41, s41, s42", f"s_add_u32 s41, s41, {hx(WS_OF)}",
      f"s_sub_u32 s43, {OF_BLK}, s42")
    e(srd(16, pWS, pWS+1, "s43", "s41"))
    e(f"s_mov_b32 s{sTB}, 0", f"s_mov_b32 s{sTB+1}, 4096", f"s_mov_b32 s{sTW}, 0", f"s_mul_i32 s{sMT}, s{sWAVE}, 5120")
    e(f"s_lshl_b32 s41, s{sQB}, 1", "s_add_u32 s41, s41, s55", "s_lshl_b32 s41, s41, 2", "s_add_u32 s41, s41, s56", "s_mul_i32 s41, s41, 327680",
      f"s_add_u32 s41, s41, {hx(WS_PB)}")
    e(srd(20, pWS, pWS+1, 327680, "s41"))
    e(f"s_lshl_b32 s41, s{sQB}, 3", "s_lshl_b32 s42, s55, 2", "s_add_u32 s41, s41, s42", f"s_add_u32 s41, s41, s{sSP}", "s_lshl_b32 s41, s41, 1",
      f"s_and_b32 s42, s{sWAVE}, 1", "s_add_u32 s41, s41, s42", "s_mul_i32 s41, s41, 20480",
      "s_mul_i32 s42, s56, 320", "s_add_u32 s41, s41, s42", f"s_lshr_b32 s42, s{sWAVE}, 1", "s_mul_i32 s42, s42, 160", "s_add_u32 s41, s41, s42",
      "s_sub_u32 s42, 2621440, s41")
    e(srd(24, pX, pX+1, "s42", "s41")); e(srd(28, pOUT, pOUT+1, "s42", "s41"))
    e("s_lshl_b32 s44, 0x11111111, s56", f"s_lshl_b32 s48, s{sQB}, 7")
    return e
def tail_vsetup():
    return E()(f"v_add_u32 v{TD}, s{sMT}, v{LX}", f"v_add_u32 v{TD+1}, 4096, v{TD}", f"v_mov_b32 v{TAD}, v{LX}", f"v_add_u32 v{TAD+1}, 61440, v{LX}",
               [f"v_accvgpr_write_b32 a{i}, 0" for i in range(80)])

def laststep(i=63):
    Pc = Pb(i)
    e = E()
    e(rdVp(62, 0))
    e(wave0([f"buffer_load_dwordx4 v[140:143], v{LX}, {srdn(sFL)}, 0 offen sc1"]))
    e(srd(28, pDBG, pDBG+1, 64), "v_and_b32 v138, 15, v0", f"v_lshlrev_b32 v{DV_+1}, 2, v138", f"buffer_load_dword v{DV_}, v{DV_+1}, s[28:31], 0 offen sc1")
    Ex, Sx = sm(S1, [2, 3], Pc, 1)
    e(Ex, rdVp(62, 1, KF))
    e([x for _, x in Sx], CHK, "s_waitcnt lgkmcnt(12)", callsite(i % 4), LADD, "s_nop 0", fstamp(2, "last"))
    RI = 8
    Xl = xlane("v_add_f32", L_, 2) + [f"v_rcp_f32 v{RI+2*qt}, v{L_+qt}" for qt in range(4)]
    def mix(m, fill, per=1):
        for x in m:
            e(x)
            for _ in range(per):
                if fill: e(fill.pop(0))
    r2, r3 = rdVp(62, 2), rdVp(62, 3, KF)
    ok = newlab("K")
    chk = E()(f"s_add_u32 s{sTMP}, s{sT}, 2")
    for r in range(4): chk(f"v_subrev_u32 v{140+r}, s{sTMP}, v{140+r}")
    chk("v_max3_u32 v140, v140, v141, v142", "v_max_u32 v140, v140, v143", "v_cmp_lt_u32 vcc, 2, v140", "s_nop 1", f"s_cbranch_vccz {ok}",
        f"v_mov_b32 v2, v{LX}", poll(2, ("-1", "-1"), "0", wide=True), f"{ok}:")
    def norm(j):
        o = E()(f"s_add_u32 s{sTMP}, s{sO}, {4096*j}")
        for qt in range(4):
            k = 4*j + qt
            t = 64 + 8*(k % 4); d = 112 + 4*(k % 6)
            for hh in range(2):
                b = Oacc(2*j+hh, qt)
                for r in range(4): o(f"v_accvgpr_read_b32 v{t+4*hh+r}, a{b+r}")
            for r in range(0, 8, 2): o(f"v_pk_mul_f32 {v(t+r,2)}, {v(t+r,2)}, {v(RI+2*qt,2)} op_sel_hi:[1,0]")
            for r in range(4): o(f"v_cvt_pk_bf16_f32 v{d+r}, v{t+2*r}, v{t+2*r+1}")
            o(f"buffer_store_dwordx4 {v(d,4)}, v{LX}, {srdn(sOF_SRD)}, s{sTMP} offen offset:{1024*qt} sc1")
        return o
    mix(pv(62, 0), Xl, 2); e(Xl, "s_waitcnt lgkmcnt(0)", fstamp(3, "last"))
    if X("oldlast"):
        mix(pv(62, 1, src=KF), r2); e("s_waitcnt lgkmcnt(0)"); mix(pv(62, 2), r3)
        e(norm(0), norm(1), "s_waitcnt lgkmcnt(0)", pv(62, 3, src=KF), norm(2), norm(3), norm(4), norm(5))
    else:
        mix(pv(62, 1, src=KF), r2); e(norm(0), "s_waitcnt lgkmcnt(0)")
        mix(pv(62, 2), r3); e(norm(1), norm(2), "s_waitcnt lgkmcnt(0)", pv(62, 3, src=KF), norm(3), norm(4), norm(5))
    CHK2[:] = wave0(chk)
    return e
CHK2 = []

def tail_end():
    e = E()
    XV = 232
    e("v_and_b32 v3, 15, v0", "v_mul_u32_u24 v3, 1280, v3", "v_lshrrev_b32 v4, 4, v0", "v_lshl_add_u32 v3, v4, 3, v3", fstamp(7, "tail"))
    e("s_waitcnt vmcnt(0) lgkmcnt(0)", fstamp(8, "tail"), "s_barrier", fstamp(9, "tail"), wave0(signal(4)))
    for nt in range(5): e(f"buffer_load_dwordx2 {v(XV+2*nt,2)}, v3, s[24:27], 0 offen offset:{32*nt}")
    e(f"s_and_b32 s42, s{sWAVE}, 1", "s_mul_i32 s42, s42, 10240", f"s_lshr_b32 s43, s{sWAVE}, 1", "s_mul_i32 s43, s43, 5120", "s_add_u32 s42, s42, s43",
      f"s_add_u32 s43, s42, {OWN}", f"v_add_u32 v5, s43, v{LX}")
    for i in range(5): e(f"ds_read_b128 {v(176+4*i,4)}, v5 offset:{1024*i}")
    e(f"s_mul_i32 s41, s{sSP}, 81920", "s_add_u32 s50, s41, s42", "s_add_u32 s51, s50, 20480", "s_add_u32 s52, s50, 40960", "s_add_u32 s53, s50, 61440")
    for src in range(4): e(f"s_cmp_eq_u32 s{sSP}, {src}", f"s_cselect_b32 s{50+src}, 0x10000000, s{50+src}")
    e(f"s_cmp_eq_u32 s{sSP}, 3", "s_cselect_b32 s56, 0, 1.0", "s_cselect_b32 s57, 1.0, 0", f"v_add_u32 v5, 4096, v{LX}", f"s_mov_b32 s38, {hx(f2u(-math.log2(math.e)))}")
    pl = wave0(["v_lshlrev_b32 v2, 2, v0"] + poll(4, ("s44", "0"), "s48"))
    if X("dryfin"):
        e("s_mov_b32 s59, s30", "s_mov_b32 s58, 0", f"s_cmp_eq_u32 s{sWAVE}, 0", "s_cbranch_scc1 F_FP", "s_mov_b32 s22, 0", "s_mov_b32 s30, 0", "s_branch F_FIN",
          "F_FP:", pl, "F_FD:", "s_waitcnt vmcnt(0)", "s_mov_b32 s22, 327680", "s_mov_b32 s30, s59", "s_mov_b32 s58, 1", "s_barrier", stamp(4), fstamp(10, "tail"), "F_FIN:")
    else: e(pl, "s_barrier", stamp(4), fstamp(10, "tail"))
    def ldp(i):
        return [f"buffer_load_dwordx4 {v(16+16*i+4*src,4)}, v{LX if i < 4 else 5}, s[20:23], s{50+src} offen offset:{1024*(i%4)} sc1 ; @P{i}" for src in range(4)]
    AH_ = ([int(x[2:]) for x in EXP[0].split() if x.startswith("ah")] or [2])[0]
    k0 = len(e)
    for i in range(AH_): e(ldp(i))
    e("s_waitcnt lgkmcnt(0)")
    for nt in range(5):
        S = 16 + 16*nt; G = S + 12; Xr = XV + 2*nt; t = 112 + 12*nt; W = 176 + 4*nt
        if nt + AH_ < 5: e(ldp(nt + AH_))
        e(f"s_waitcnt vmcnt(@P{nt})", fstamp(11, "tail") if nt == 0 else [])
        for r in range(4): e(f"v_add_f32 v{S+r}, v{S+r}, v{S+4+r}")
        for r in range(4): e(f"v_fmac_f32 v{G+r}, s57, v{W+r}")
        for r in range(4): e(f"v_add_f32 v{S+r}, v{S+r}, v{S+8+r}")
        for r in range(4): e(f"v_fmac_f32 v{S+r}, s56, v{W+r}")
        e(f"v_cvt_pk_bf16_f32 v{t+2}, v{G}, v{G+1}", f"v_cvt_pk_bf16_f32 v{t+3}, v{G+2}, v{G+3}",
          f"v_cvt_pk_bf16_f32 v{t}, v{S}, v{S+1}", f"v_cvt_pk_bf16_f32 v{t+1}, v{S+2}, v{S+3}")
        for k in range(2):
            e(f"v_lshlrev_b32 v{G+2*k}, 16, v{t+2+k}", f"v_and_b32 v{G+2*k+1}, 0xffff0000, v{t+2+k}",
              f"v_lshlrev_b32 v{S+2*k}, 16, v{t+k}", f"v_and_b32 v{S+2*k+1}, 0xffff0000, v{t+k}")
        for r in range(4): e(f"v_mul_f32 v{t+4+r}, s38, v{G+r}")
        for r in range(4): e(f"v_exp_f32 v{t+4+r}, v{t+4+r}")
        for r in range(4): e(f"v_add_f32 v{t+4+r}, 1.0, v{t+4+r}")
        for r in range(4): e(f"v_rcp_f32 v{t+4+r}, v{t+4+r}")
        for r in range(4): e(f"v_mul_f32 v{G+r}, v{G+r}, v{t+4+r}")
        e(f"v_cvt_pk_bf16_f32 v{t+2}, v{G}, v{G+1}", f"v_cvt_pk_bf16_f32 v{t+3}, v{G+2}, v{G+3}")
        for k in range(2): e(f"v_lshlrev_b32 v{G+2*k}, 16, v{t+2+k}", f"v_and_b32 v{G+2*k+1}, 0xffff0000, v{t+2+k}")
        for r in range(4): e(f"v_mul_f32 v{S+r}, v{S+r}, v{G+r}")
        e(f"v_cvt_pk_bf16_f32 v{t}, v{S}, v{S+1}", f"v_cvt_pk_bf16_f32 v{t+1}, v{S+2}, v{S+3}")
        for k in range(2):
            e(f"v_lshlrev_b32 v{S+2*k}, 16, v{t+k}", f"v_and_b32 v{S+2*k+1}, 0xffff0000, v{t+k}",
              f"v_lshlrev_b32 v{G+2*k}, 16, v{Xr+k}", f"v_and_b32 v{G+2*k+1}, 0xffff0000, v{Xr+k}")
        for r in range(4): e(f"v_add_f32 v{S+r}, v{S+r}, v{G+r}")
        e(f"v_cvt_pk_bf16_f32 v{t+8}, v{S}, v{S+1}", f"v_cvt_pk_bf16_f32 v{t+9}, v{S+2}, v{S+3}")
        e(f"buffer_store_dwordx2 {v(t+8,2)}, v3, s[28:31], 0 offen offset:{32*nt}" + (" sc1" if X("outsc1") else "") + (" nt" if X("outnt") else ""))
    e[k0:] = resolve(e[k0:], [])
    if X("dryfin"): e("s_cmp_eq_u32 s58, 0", "s_cbranch_scc1 F_FD")
    e(fstamp(12, "tail"))
    return e

def encode():
    en = [x for x in EXP[0].split() if x.startswith("enc:")]
    if not en: return []
    _, i, j, mult, W = en[0].split(":")
    return E()(f"s_cmp_lg_u32 s2, {W}", "s_cbranch_scc1 F_END", f"s_sub_u32 s66, s{88+int(j)}, s{88+int(i)}", f"s_mul_i32 s66, s66, {mult}", "s_add_u32 s66, s66, 15000",
               "F_ENC:", "s_memrealtime s[86:87]", "s_waitcnt lgkmcnt(0)", "s_sub_u32 s67, s86, s88", "s_cmp_lt_u32 s67, s66", "s_cbranch_scc1 F_ENC")

def gen(exp=""):
    sites.clear(); lab[0] = 0; EXP[0] = exp
    L = E()(kernel_head(NAME))
    if X("early0"): L("s_memrealtime s[100:101]")
    L("s_cmp_ge_u32 s2, 256", "s_cbranch_scc1 F_END")
    pro = front() + (cstamp(8) if X("qcyc") else [])
    qc, qfirst, q18 = qcounts()
    qloop = []; qfp = []; stubs = E()
    for u in range(6):
        b = qsub(u, last=40, vmw=qc[u])
        if u in qfirst:
            k = b.index(f"s_waitcnt vmcnt({qc[u]})")
            qfp += b[:k] + [f"s_waitcnt vmcnt({qfirst[u]})"] + b[k+1:]
            j = max(i for i in range(k) if b[i].startswith(MF))
            j = max(i for i in range(j) if b[i].startswith(MF))
            b = b[:j+1] + [f"s_cmp_eq_u32 s{sCNT}, 0"] + b[j+1:k] + [f"s_cbranch_scc1 F_QS{u}", b[k], f"F_QB{u}:"] + b[k+1:]
            stubs(f"F_QS{u}:", f"s_waitcnt vmcnt({qfirst[u]})", f"s_branch F_QB{u}")
        else: qfp += b
        qloop += b
    qctl = [f"s_add_u32 s{sCNT}, s{sCNT}, 1", f"s_cmp_lt_u32 s{sCNT}, 3", "s_cbranch_scc1 F_QL"]
    ex = {18: {}, 19: {}}
    for (kind, j), (u, g0) in zip([("K", 0), ("K", 1), ("V", 0), ("K", 2)] if not X("kvlate") else [], [(18, 4), (18, 20), (18, 36), (19, 4)]):
        m, d = kvgroup(kind, j)
        ex[u].setdefault(g0, []).extend(m)
        for t, dg in enumerate((1, 2, 3)): ex[u].setdefault(g0 + dg, []).append(d[t])
    rd = relayout_dst()
    if X("hfirst"):
        for k, g in enumerate(8*a_ + b_ for a_ in range(6) for b_ in range(3)): ex[18].setdefault(g, []).append(rd[k])
    else:
        for k, g in enumerate((36, 37, 38, 39, 44, 45, 46, 47, 52)): ex[19].setdefault(g, []).extend(rd[2*k:2*k+2])
    q19 = qsub(19, extra=ex[19])
    if X("hfirst"):
        q19, left = fill(q19, hops())
        if X("showcnt"): print("h ops left over:", len(left))
        q19 += left
    mid = qsub(18, extra=ex[18], vmw="@W19") + q19 + stamp(6) + fstamp(1, "conv") + (cstamp(9) if X("qcyc") else []) + convert() + fstamp(2, "conv") + init() + fstamp(7, "conv") + stamp(7) + (cstamp(8) if not (X("tcyc") or X("qcyc")) else [])
    keep = mid
    mid = [l + (" ; " + re.search(r"@\S+", k).group(0) if k.startswith("buffer_") and "@" in k and "@" not in l else "") for l, k in zip(resolve(mid, q18), keep)]
    ctl = [f"s_add_u32 s{sCNT}, s{sCNT}, 1", f"s_bitcmp1_b32 {hx(1 << 11 | 1 << 12 | 1 << 15 | (1 << 14 if X('x_tlb') else 0))}, s{sCNT}", "s_cbranch_scc0 F_AL"]
    rlk = {1: "dma", 3: "out"} if not X("norl") else {}
    if not X("nokvt"): rlk.update({2: "tk", 0: "tv"})
    mid = mid + [f"s_mov_b32 s{sCNT}, 0"]
    def mk(i, w): return step(i, vmw=w, tail=ctl if (i >= 3 and i % 4 == 2) else (), rl=rlk.get(i % 4) if i >= 3 else None)
    q = [re.search(r"@(\S+)", l).group(1) if "@" in l else "-" for l in mid if l.startswith("buffer_")]; cnts = {}
    for i in range(23):
        key = i if i < 3 else 3 + (i-3) % 4
        for l in mk(i, "?"):
            if "vmcnt(?)" in l:
                need = [f"K{i+2}"] + ([f"V{i}", f"V{i+1}"] if i % 2 == 0 else []) + (["R"] if i % 4 == 2 else [])
                c = len(q) - 1 - max(k for k, x in enumerate(q) if x in need)
                cnts[key] = min(cnts.get(key, 63), c)
            if l.startswith("buffer_"): q.append(re.search(r"@(\S+)", l).group(1))
    sites.clear()
    s0 = mk(0, cnts[0]) + mk(1, cnts[1]) + mk(2, cnts[2])
    body = [mk(i, cnts[i]) for i in range(3, 7)]
    def drop(pred):
        for k in range(4): body[k] = [l for l in body[k] if not pred(l)]
    if X("x_nobar"): drop(lambda l: l == "s_barrier")
    if X("x_nodma"): drop(lambda l: l.startswith("buffer_"))
    if X("x_nochk"): drop(lambda l: l.startswith("s_cbranch_vccnz"))
    if X("x_nolgkm"):
        for k in range(4): body[k] = [re.sub(r" lgkmcnt\(\d+\)", "", l) for l in body[k] if not l.startswith("s_waitcnt lgkmcnt")]
    if X("x_nods"): drop(lambda l: l.startswith("ds_"))
    if X("showcnt"): print("step counts", cnts, "q counts", qc)
    tlb = E()
    if X("x_tlb"):
        tlb(f"s_cmp_lg_u32 s{sCNT}, 14", "s_cbranch_scc1 F_H0", srd(28, pWS, pWS+1, 0x8000000),
            f"s_lshl_b32 s66, s{sQB}, 2", f"s_mul_i32 s66, s66, {OF_BLK}", f"s_add_u32 s66, s66, {hx(WS_OF + 190*4096)}", f"v_mul_u32_u24 v2, {OF_BLK}, v0", "v_add_u32 v2, s66, v2",
            f"s_and_b32 s66, s{sHEAD}, 3", f"s_mul_i32 s67, s66, {WF160}", f"s_add_u32 s67, s67, {hx(WS_WF)}", "v_subrev_u32 v3, 4, v0", "v_lshlrev_b32 v3, 20, v3", "v_add_u32 v3, s67, v3",
            "v_cmp_gt_u32 vcc, 4, v0", f"s_lshl_b32 s67, s{sQB}, 3", "s_add_u32 s66, s66, s67", "v_cndmask_b32 v2, v3, v2, vcc",
            "s_mul_i32 s66, s66, 327680", f"s_add_u32 s66, s66, {hx(WS_PB)}", "v_subrev_u32 v3, 7, v0", f"v_mul_u32_u24 v3, {4*327680}, v3", "v_add_u32 v3, s66, v3",
            "v_cmp_gt_u32 vcc, 7, v0", "s_nop 1", "v_cndmask_b32 v2, v3, v2, vcc", "v_cmp_gt_u32 vcc, 9, v0", "v_bfrev_b32 v3, 1", "s_nop 0", "v_cndmask_b32 v2, v3, v2, vcc",
            "buffer_load_dword v1, v2, s[28:31], 0 offen", srd(28, pOUT, pOUT+1, 2621440), f"s_mul_i32 s66, s{sQB}, 327680", "buffer_load_dword v1, off, s[28:31], s66",
            "s_branch F_AL", "F_H0:")
    hooks = E()(f"s_cmp_eq_u32 s{sCNT}, 15", "s_cbranch_scc1 F_LAST", tlb, f"s_cmp_lg_u32 s{sWAVE}, 0", "s_cbranch_scc1 F_AL",
                f"s_cmp_eq_u32 s{sCNT}, 12", "s_cbranch_scc1 F_H1", signal(2), "s_mov_b32 s66, 4",
                "s_cmp_ge_u32 s2, 8", "s_cbranch_scc1 F_AL", srd(28, pDBG, pDBG+1, 64), "s_mov_b64 exec, 1",
                f"v_mov_b32 v{RLV}, 1", f"buffer_atomic_add v{RLV}, off, s[28:31], s66 sc0 sc1", "s_mov_b64 exec, -1", "s_branch F_AL",
                "F_H1:", "s_cmp_ge_u32 s2, 8", "s_cbranch_scc1 F_AL", "s_lshl_b32 s66, s2, 2", "s_add_u32 s66, s66, 32", "s_mov_b64 exec, 1",
                f"v_and_b32 v{RLV}, 7, v{RLV}", f"v_add_u32 v{RLV}, s{sT}, v{RLV}", f"buffer_store_dword v{RLV}, off, s[28:31], s66 sc1", "s_mov_b64 exec, -1", "s_branch F_AL")
    last = (cstamp(9) if not (X("tcyc") or X("qcyc")) else []) + fstamp(1, "last") + laststep()
    h1 = E()(stamp(10), fstamp(1, "tail"), fstamp(5, "last"), "s_waitcnt vmcnt(24)", CHK2, roles(), fstamp(6, "last"), tail_setup(), (decode() + [flagld()]) if X("qflag") else [], tail_vsetup(), fstamp(7, "last"), "s_waitcnt vmcnt(0)", fstamp(8, "last"), fstamp(2, "tail"), "s_barrier", wave0(signal(3)), fstamp(3, "tail"))
    preS, bodyS, ctlS, cS, fpS = tloop()
    hS = E()(preS, cstamp(8) if X("tcyc") else [])
    sim = tpre(False) + [x for st in range(28) for x in tstage(st, False, 0)]
    q28 = [re.search(r"@(\S+)", l).group(1) for l in sim if l.startswith("buffer_")][-24:]
    finS = E()(resolve(tfinal(cS), q28), stamp(12), fstamp(6, "tail"), cstamp(9) if X("tcyc") else [])
    end = tail_end()
    L(pro, ".p2align 6", "F_QL:", qloop, qctl, mid, s0, ".p2align 6", ["s_nop 0"]*([int(x[2:]) for x in exp.split() if x.startswith("sh")] or [0])[0], "F_AL:", *body, hooks, "F_LAST:", last,
      h1, hS, ".p2align 6", "F_TLS:", bodyS, ctlS, finS, "F_TE:", end, stamp_flush(0, 13, pWS, f"s{sWAVE}"), encode(), "F_END:", "s_endpgm")
    for k, par in enumerate(sites):
        L(f"F_TR{k}:", f"s_call_b64 s[{sRET}:{sRET+1}], F_SLOW{par}", f"s_branch F_BK{k}")
    L(stubs, tstubs, flagspin("F_TSP", "F_TSB"), "F_PFE:", slow(0), slow(1), slow(2), slow(3))
    flat = lambda Z: [y for x in Z for y in x]
    pro = [l for l in pro if l not in ("s_branch F_LN",)]
    tr = pro + qfp + qctl + (qloop + qctl)*2 + mid + s0 + flat(body) + flat(body) + last + h1
    if "x_" in exp: return L, kernel_desc(NAME, 512, 256), "; @launch grid=(256,1,1) block=(256,1,1) lds=163840"
    check(tr + hS + fpS + ctlS + (bodyS + ctlS)*6 + finS + end, "S")
    check(flagspin("A", "B") + bodyS, "spin")
    for n in range(4):
        b = body[n]
        idx = [i for i, x in enumerate(b) if x.startswith("F_BK")][0]
        check(body[(n-1) % 4] + b[:idx] + slow((3+n) % 4) + b[idx:] + body[(n+1) % 4], f"slow{n}")
    return L, kernel_desc(NAME, 512, 256), "; @launch grid=(256,1,1) block=(256,1,1) lds=163840"

def build(path, **kw):
    HDR = open("recurrent_scan__gqa_block_cached__dense_activation_relu__prompt.s.ref").read().split("; Override launch")[0]
    L, D, H = gen(**kw)
    L = [re.sub(r"\s*; @\S+$", "", l) for l in L]
    NOTE = """;
; One launch, 256 workgroups (one per CU), 4 waves x 64 query rows, v_mfma_f32_16x16x32_bf16 throughout.
;   3. flash attention over 64 key tiles; exp2 is taken against a running reference that starts at the true maximum of
;      the first tile and is moved to the true running maximum whenever a row sum leaves the safe range (F_SLOW*);
;      wo / w2 are re-laid out as MFMA fragments in otherwise idle issue slots
;   4. o @ wo and h @ w2 as 128 x 160 tiles with K split over four workgroups (shares follow the order of arrival),
;      partial sums exchanged through d_ws, then out = x + s * silu(g)
"""
    open(path, "w").write(HDR + NOTE + H + "\n" + '.amdgcn_target "amdgcn-amd-amdhsa--gfx950"\n' + "\n".join(L) + "\n" + "\n".join(D) + "\n")
if __name__ == "__main__":
    for flag, mode in (("--ts", None), ("--tail", "tail"), ("--front", "front"), ("--last", "last"), ("--conv", "conv")):
        if flag in sys.argv:
            OPT["ts"] = True; OPT["mode"] = mode; sys.argv.remove(flag)
    build(sys.argv[1], exp=" ".join(sys.argv[2:]))
```
